```python
import torch

def _softmax(x, axis=-1):
    return torch.softmax(x, dim=axis)
def _gelu(x):
    return torch.nn.functional.gelu(x, approximate="tanh")
def _silu(x):
    return torch.nn.functional.silu(x)
def _sigmoid(x):
    return torch.sigmoid(x)
def _layernorm(x, axis=-1, eps=1e-5):
    m = x.mean(dim=axis, keepdim=True)
    v = x.var(dim=axis, keepdim=True, unbiased=False)
    return (x - m) / torch.sqrt(v + eps)
def _scatter_add(tgt, idx, src, axis=0):
    return tgt.clone().index_add_(axis, idx, src)
def _segment_sum(src, seg, n):
    out = torch.zeros((n,) + src.shape[1:], dtype=src.dtype)
    return out.index_add_(0, seg, src)
def _pad(x, pw):
    flat = tuple(v for pair in reversed(pw) for v in pair)
    return torch.nn.functional.pad(x, flat)

kernel_name = 'standalone__edge_featured_mpnn_mpnn__graph'

def setup_inputs():

    _w = (lambda a: (lambda t: t.to(torch.bfloat16) if t.is_floating_point() else t)(torch.as_tensor(a)))
    N, deg, D, De = 12500, 32, 128, max(4, 1)
    E = N * deg
    H = 2 * D
    return {
        "x": _w((lambda *s: torch.randn(*s, dtype=torch.bfloat16) * 0.05)(N, D)),
        "e_attr": _w((lambda *s: torch.randn(*s, dtype=torch.bfloat16) * 1.6)(E, De)),
        "src": _w((lambda lo, hi, *s: torch.randint(lo, hi, s))(0, N, E).to(torch.int64)),
        "dst": _w((lambda lo, hi, *s: torch.randint(lo, hi, s))(0, N, E).to(torch.int64)),
        "w1": _w((lambda *s: torch.randn(*s, dtype=torch.bfloat16) * 1.6)(2 * D + De, H) * (1.0 / (2 * D + De) ** 0.5)),
        "b1": _w((lambda *s: torch.randn(*s, dtype=torch.bfloat16) * 3.2)(H) * 0.01),
        "w2": _w((lambda *s: torch.randn(*s, dtype=torch.bfloat16) * 0.05)(H, D) * (1.0 / H ** 0.5)),
        "b2": _w((lambda *s: torch.randn(*s, dtype=torch.bfloat16) * 0.1)(D) * 0.01),
    }

def reference(x, e_attr, src, dst, w1, b1, w2, b2):
    N, D = x.shape
    h_src = x[src]
    h_dst = x[dst]
    m_in = torch.concatenate([h_src, h_dst, e_attr], axis=-1)
    h = _silu(m_in @ w1 + b1)
    msg = h @ w2 + b2
    return _segment_sum(msg, dst, N)
```

```python
import re

TRANS = ("v_exp_f32", "v_log_f32", "v_rcp_f32", "v_rsq_f32", "v_sqrt_f32", "v_sin_f32", "v_cos_f32",
         "v_rcp_iflag_f32", "v_exp_f16", "v_rcp_f16")


def vr(i, n): return f"v[{i}:{i+n-1}]"
def sr(i, n): return f"s[{i}:{i+n-1}]"
def ar(i, n): return f"a[{i}:{i+n-1}]"


_reg = re.compile(r"^-?(\|)?(abs\()?([vsa])(\d+|\[(\d+):(\d+)\])\)?\|?$")


def regs_of(op):
    op = op.strip()
    if op in ("vcc", "vcc_lo", "vcc_hi"): return {("vcc",)}
    if op in ("exec", "exec_lo", "exec_hi"): return {("exec",)}
    if op == "m0": return {("m0",)}
    m = _reg.match(op)
    if not m: return set()
    k = m.group(3)
    if m.group(5) is not None:
        return {(k, i) for i in range(int(m.group(5)), int(m.group(6)) + 1)}
    return {(k, int(m.group(4)))}


class Ins:
    def __init__(self, text):
        self.text = text
        t = text.split(";")[0].strip()
        self.label = None
        self.mn = None
        if t.endswith(":"):
            self.label = t[:-1]; return
        if not t or t.startswith("."):
            return
        parts = t.split(None, 1)
        self.mn = mn = parts[0]
        rest = parts[1] if len(parts) > 1 else ""
        ops, depth, cur = [], 0, ""
        for ch in rest:
            if ch in "[(": depth += 1
            if ch in "])": depth -= 1
            if ch == "," and depth == 0:
                ops.append(cur.strip()); cur = ""
            else: cur += ch
        if cur.strip(): ops.append(cur.strip())
        mods = ""
        if ops:
            sp = ops[-1].split(None, 1)
            ops[-1] = sp[0]
            mods = sp[1] if len(sp) > 1 else ""
        self.ops, self.mods = ops, mods
        self.mfma = mn.startswith("v_mfma") or mn.startswith("v_smfmac")
        self.valu = mn.startswith("v_") and not self.mfma
        self.salu = mn.startswith("s_")
        self.ds = mn.startswith("ds_")
        self.vmem = mn.startswith("buffer_") or mn.startswith("global_")
        self.trans = any(mn.startswith(x) for x in TRANS)
        self.dpp = "_dpp" in mn or "row_" in mods or "quad_perm" in mods
        self.lds_dma = self.vmem and re.search(r"\blds\b", mods) is not None
        R = [regs_of(o) for o in ops]
        w, r = set(), set()
        if self.mfma:
            w = R[0]; r = set().union(*R[1:])
            self.srcc = R[3] if mn.startswith("v_mfma") else R[0]
            self.srcab = R[1] | R[2]
            if mn.startswith("v_smfmac"): r |= R[0]
            self.passes = 8 if "32x32" in mn else 4
        elif self.valu:
            if mn.startswith("v_cmp"):
                w = R[0]; r = set().union(*R[1:])
            elif mn.startswith("v_permlane") and "swap" in mn:
                w = R[0] | R[1]; r = set(w)
            elif "_co_" in mn:
                w = R[0] | R[1]; r = set().union(*R[2:])
            else:
                w = R[0]; r = set().union(*R[1:]) if len(R) > 1 else set()
                if mn.startswith(("v_fmac", "v_writelane", "v_dot2c")) or self.dpp: r |= R[0]
        elif self.ds:
            if mn.startswith(("ds_read", "ds_bpermute", "ds_permute", "ds_swizzle")) or "_rtn" in mn:
                w = R[0]; r = set().union(*R[1:]) if len(R) > 1 else set()
                if "d16" in mn: r |= R[0]
            else:
                r = set().union(*R)
        elif self.vmem:
            if "load" in mn and not self.lds_dma:
                w = R[0]; r = set().union(*R[1:])
            else:
                r = set().union(*R)
            if self.lds_dma: r |= {("m0",)}
            self.wide_store = ("store" in mn and ("x3" in mn or "x4" in mn))
            if self.wide_store:
                self.sdata = R[0] if mn.startswith("buffer_") else R[1]
        elif self.salu:
            if mn.startswith(("s_cmp", "s_cbranch", "s_branch", "s_waitcnt", "s_barrier", "s_nop", "s_setprio",
                              "s_endpgm", "s_bitcmp", "s_sleep")):
                r = set().union(*R) if R else set()
            else:
                w = R[0] if R else set(); r = set().union(*R[1:]) if len(R) > 1 else set()
                if "saveexec" in mn: w = w | {("exec",)}
        self.w, self.r = w, r

    def states(self):
        if self.mn == "s_nop": return int(self.ops[0], 0) + 1
        return 1


def need(prod, cons):
    n = 0
    isv = lambda s: {x for x in s if x[0] in ("v", "a")}
    iss = lambda s: {x for x in s if x[0] in ("s", "vcc")}
    if prod.valu:
        vw = isv(prod.w); sw = iss(prod.w)
        if vw & cons.r:
            if cons.valu and cons.mn.startswith(("v_readlane", "v_readfirstlane")): n = max(n, 1)
            if cons.valu and cons.dpp: n = max(n, 2)
            if cons.valu and cons.mn.startswith("v_permlane"): n = max(n, 2)
            if prod.trans and cons.valu: n = max(n, 1)
            if cons.mfma: n = max(n, 2)
        if sw & cons.r:
            if cons.valu: n = max(n, 4 if cons.mn.startswith(("v_readlane", "v_writelane")) else 2)
            if cons.vmem: n = max(n, 5)
            if cons.salu: n = max(n, 1)
        if cons.valu and cons.mn.startswith("v_cndmask") and ("vcc",) in prod.w and "vcc" in cons.ops[3:]:
            n = max(n, 2)
    if prod.salu and ("m0",) in prod.w and (getattr(cons, "lds_dma", False) or "addtid" in (cons.mn or "")):
        n = max(n, 1)
    if prod.mfma:
        big = 12 if prod.passes == 8 else 8
        D = prod.w
        if cons.mfma:
            if D & cons.srcab: n = max(n, big)
            if D & cons.srcc:
                if not (cons.srcc == D and cons.passes == prod.passes): n = max(n, big - 2)
        elif cons.valu or cons.ds or cons.vmem:
            if D & (cons.r | cons.w): n = max(n, big)
        if cons.valu and (prod.srcc & cons.w): n = max(n, 7 if prod.passes == 8 else 3)
    if prod.vmem and getattr(prod, "wide_store", False):
        if (cons.valu or cons.mfma) and (prod.sdata & cons.w): n = max(n, 2)
        elif prod.sdata & cons.w: n = max(n, 1)
    return n


def pad_hazards(lines, verbose=False):
    ins = [Ins(l) for l in lines]
    back = {}
    for it in range(3):
        out, state, fwd, newback, seen = [], [], {}, {}, set()
        added = 0
        for x in ins:
            if x.label is not None:
                seen.add(x.label)
                for st in fwd.get(x.label, []) + back.get(x.label, []):
                    state = sorted(state + st, key=lambda e: e[0])
                out.append(x.text); continue
            if x.mn is None:
                out.append(x.text); continue
            req = 0
            for age, p in state:
                k = need(p, x) - age
                if k > req: req = k; why = p
            if req > 0:
                added += 1
                if verbose and it == 2: print(f"pad {req}: [{why.text.strip()}] -> [{x.text.strip()}]")
                k = req
                while k > 0:
                    m = min(k, 16); out.append(f"s_nop {m-1}"); k -= m
                state = [(a + req, p) for a, p in state]
            out.append(x.text)
            state = [(a + x.states(), p) for a, p in state if a + x.states() < 24]
            if x.valu or x.mfma or x.vmem or (x.salu and ("m0",) in x.w):
                state.append((0, x))
            if x.mn == "s_setpc_b64": state = []
            if x.mn.startswith(("s_cbranch", "s_branch")):
                tgt = x.ops[0]
                (newback if tgt in seen else fwd).setdefault(tgt, []).append(list(state))
                if x.mn == "s_branch": state = []
            if x.mn == "s_endpgm": state = []
        back = newback
    return out


class Asm:
    def __init__(self): self.L = []
    def __call__(self, s):
        for line in s.strip("\n").split("\n"):
            line = line.strip()
            if line: self.L.append(line)
    def text(self, verbose=False):
        out = pad_hazards(self.L, verbose)
        return "\n".join((l if l.endswith(":") or l.startswith(".") else "    " + l) for l in out) + "\n"
```

```python
import sys, struct
from asmlib import Asm, vr, sr

N, E = 12500, 400000
NPB, NB = 49, 256
CH, CE = 125, 3200
ATAB = 0
AROWS = 25088
REC = 13 << 20
OFF = 19 << 20
W1BOP = 20 << 20
W2OP = W1BOP + 65536
MAXA = W2OP + 65536
MAXE = MAXA + 1024
NG = 196
K1_GRID = CH + NG + 3

def f2u(x): return struct.unpack("<I", struct.pack("<f", x))[0]
NLOG2E = f2u(-1.4426950408889634)
NLN2 = f2u(-0.6931471805599453)

OPT = dict(prio=1, prio_at=4)
for a_ in sys.argv[2:]:
    k_, v_ = a_.split("="); OPT[k_] = int(v_)


def srd(a, d, base, add, size, stride=0):
    if add is None:
        a(f"s_mov_b32 s{d}, s{base}\ns_mov_b32 s{d+1}, s{base+1}")
    else:
        a(f"s_add_u32 s{d}, s{base}, {add}\ns_addc_u32 s{d+1}, s{base+1}, 0")
    if stride: a(f"s_or_b32 s{d+1}, s{d+1}, {stride << 16}")
    a(f"s_mov_b32 s{d+2}, {size}\ns_mov_b32 s{d+3}, 0x00020000")


def ldargs(a):
    a("""s_load_dwordx16 s[4:19], s[0:1], 0
    s_load_dwordx4 s[20:23], s[0:1], 64
    s_load_dwordx2 s[24:25], s[0:1], 80""")
X, EA_, SRC, DST, W1, B1, W2, B2, OUT, DBG, WS = 4, 6, 8, 10, 12, 14, 16, 18, 20, 22, 24


def dpp_red(a, op, v, full=True):
    for m in ("row_shr:1", "row_shr:2", "row_shr:4", "row_shr:8"):
        a(f"{op}_dpp v{v}, v{v}, v{v} {m} row_mask:0xf bank_mask:0xf bound_ctrl:0")
    a(f"{op}_dpp v{v}, v{v}, v{v} row_bcast:15 row_mask:0xa bank_mask:0xf")
    if full: a(f"{op}_dpp v{v}, v{v}, v{v} row_bcast:31 row_mask:0xc bank_mask:0xf")


def lane63(a): a("s_mov_b32 exec_lo, 0\ns_mov_b32 exec_hi, 0x80000000")
def full(a): a("s_mov_b64 exec, -1")
def mfma(D, A, B, C): return f"v_mfma_f32_32x32x16_bf16 {vr(D,16)}, {vr(A,4)}, {vr(B,4)}, " + ("0" if C is None else vr(C, 16))


def k1(a):
    a("k1_kernel:")
    a(f"s_cmp_ge_u32 s2, {K1_GRID}\ns_cbranch_scc1 L1_exit")
    ldargs(a)
    a(f"""v_and_b32 v1, 63, v0
    v_lshrrev_b32 v2, 6, v0
    s_nop 0
    v_readfirstlane_b32 s3, v2
    s_cmp_ge_u32 s2, {CH}
    s_cbranch_scc1 L1_gemm""")
    HIST, START, MAXW = 40960, 41984, 43008
    a(f"""v_lshlrev_b32 v2, 2, v0
    v_mov_b32 v3, 0
    ds_write_b32 v2, v3 offset:{HIST}
    ds_write_b32 v2, v3 offset:{MAXW}
    v_mov_b32 v60, 0
    v_mov_b32 v61, 1
    s_mul_i32 s26, s2, {CE*4}
    s_add_u32 s27, s26, {CE*2}
    s_lshl_b32 s52, s26, 1
    s_add_u32 s53, s52, {CE*4}
    v_lshlrev_b32 v3, 4, v0
    v_lshlrev_b32 v20, 5, v0
    v_cmp_gt_u32 vcc, {CE//8}, v0
    s_waitcnt lgkmcnt(0)""")
    srd(a, 28, DST, None, E*4); srd(a, 32, SRC, None, E*4); srd(a, 36, EA_, None, E*8)
    a(f"""s_and_saveexec_b64 s[54:55], vcc
    s_mov_b64 s[54:55], exec
    s_cbranch_execz L1_p1
    buffer_load_dwordx4 v[4:7], v3, s[28:31], s26 offen
    buffer_load_dwordx4 v[8:11], v3, s[28:31], s27 offen
    buffer_load_dwordx4 v[12:15], v3, s[32:35], s26 offen
    buffer_load_dwordx4 v[16:19], v3, s[32:35], s27 offen
    buffer_load_dwordx4 v[24:27], v20, s[36:39], s52 offen
    buffer_load_dwordx4 v[28:31], v20, s[36:39], s52 offen offset:16
    buffer_load_dwordx4 v[32:35], v20, s[36:39], s53 offen
    buffer_load_dwordx4 v[36:39], v20, s[36:39], s53 offen offset:16
    L1_p1:
    s_mov_b64 exec, -1
    s_mul_i32 s26, s2, {CE*12}
    s_add_u32 s26, s26, {REC}""")
    srd(a, 40, WS, "s26", CE*12)
    a(f"s_lshl_b32 s26, s2, 10\ns_add_u32 s26, s26, {OFF}")
    srd(a, 44, WS, "s26", 1024)
    srd(a, 48, WS, MAXE, CH*4)
    a("""s_barrier
    s_mov_b64 exec, s[54:55]
    s_cbranch_execz L1_p2
    s_waitcnt vmcnt(6)""")
    for k in range(8):
        a(f"""v_mul_u32_u24 v21, 10700, v{4+k}
        v_lshrrev_b32 v21, 19, v21
        v_lshlrev_b32 v{40+k}, 2, v21
        ds_add_rtn_u32 v{48+k}, v{40+k}, v61 offset:{HIST}
        v_mul_u32_u24 v21, {NPB}, v21
        v_sub_u32 v{4+k}, v{4+k}, v21""")
    a("s_waitcnt vmcnt(4)")
    for k in range(8): a(f"v_lshl_or_b32 v{12+k}, v{4+k}, 16, v{12+k}")
    a("s_waitcnt vmcnt(0)")
    for k in range(8):
        a(f"v_dot2_f32_bf16 v{4+k}, v{24+2*k}, v{24+2*k}, 0")
    a("s_nop 2")
    for k in range(8):
        a(f"v_dot2_f32_bf16 v{4+k}, v{25+2*k}, v{25+2*k}, v{4+k}")
    a("s_nop 2")
    for k in range(0, 8, 2): a(f"v_max3_u32 v60, v60, v{4+k}, v{5+k}")
    a("L1_p2:")
    full(a)
    dpp_red(a, "v_max_u32", 60)
    a("v_mov_b32 v21, 0")
    lane63(a)
    a(f"ds_max_u32 v21, v60 offset:{MAXW}")
    full(a)
    a(f"""v_lshlrev_b32 v2, 4, v1
    s_waitcnt lgkmcnt(0)
    s_barrier
    ds_read_b128 v[4:7], v2 offset:{HIST}
    s_waitcnt lgkmcnt(0)
    v_add_u32 v8, v4, v5
    v_add_u32 v9, v8, v6
    v_add_u32 v10, v9, v7
    v_mov_b32 v11, v10""")
    dpp_red(a, "v_add_u32", 11)
    a(f"""v_sub_u32 v56, v11, v10
    v_add_u32 v57, v56, v4
    v_add_u32 v58, v56, v8
    v_add_u32 v59, v56, v9
    ds_write_b128 v2, v[56:59] offset:{START}
    s_cmp_lg_u32 s3, 0
    s_cbranch_scc1 L1_p3
    v_lshl_or_b32 v4, v4, 16, v56
    v_lshl_or_b32 v5, v5, 16, v57
    v_lshl_or_b32 v6, v6, 16, v58
    v_lshl_or_b32 v7, v7, 16, v59
    buffer_store_dwordx4 v[4:7], v2, s[44:47], 0 offen
    L1_p3:
    s_waitcnt lgkmcnt(0)
    s_mov_b64 exec, s[54:55]
    s_cbranch_execz L1_p4""")
    for k in range(8): a(f"ds_read_b32 v{40+k}, v{40+k} offset:{START}")
    for k in range(8):
        a(f"""s_waitcnt lgkmcnt({7+k})
        v_add_u32 v{40+k}, v{40+k}, v{48+k}
        v_mul_u32_u24 v{40+k}, 12, v{40+k}
        ds_write2_b32 v{40+k}, v{24+2*k}, v{25+2*k} offset0:0 offset1:1
        ds_write_b32 v{40+k}, v{12+k} offset:8""")
    a("L1_p4:")
    full(a)
    a("""s_waitcnt lgkmcnt(0)
    s_barrier""")
    for i in range(5): a(f"ds_read_b128 {vr(4+4*i,4)}, v3 offset:{8192*i}")
    a(f"v_mov_b32 v2, 0\nds_read_b32 v24, v2 offset:{MAXW}")
    for i in range(5):
        a(f"s_mov_b32 s26, {8192*i}\ns_waitcnt lgkmcnt({5-i})\nbuffer_store_dwordx4 {vr(4+4*i,4)}, v3, s[40:43], s26 offen")
    a(f"""s_lshl_b32 s26, s2, 2
    v_cmp_eq_u32 vcc, 0, v0
    s_and_saveexec_b64 s[54:55], vcc
    s_cbranch_execz L1_exit
    s_waitcnt lgkmcnt(0)
    buffer_store_dword v24, v2, s[48:51], s26 offen
    s_endpgm""")

    WOP = 56
    a(f"""L1_gemm:
    s_sub_u32 s26, s2, {CH}
    s_cmp_eq_u32 s26, {NG+2}
    s_cbranch_scc1 L1_w2
    s_and_b32 s27, s26, 1
    s_lshr_b32 s28, s26, 1
    v_lshrrev_b32 v18, 4, v1
    v_and_b32 v19, 15, v1
    v_lshlrev_b32 v24, 2, v18
    v_xor_b32 v24, v24, v19
    v_lshlrev_b32 v24, 4, v24
    v_lshl_or_b32 v24, v18, 9, v24""")
    for ii in range(4):
        a(f"""v_add_u32 v20, {4*ii}, v18
        v_xor_b32 v20, v20, v19
        v_lshlrev_b32 v20, 4, v20
        v_lshl_or_b32 v{25+ii}, v18, 8, v20""")
    a(f"""v_mov_b32 v2, 0
    v_mov_b32 v3, 65536
    ds_write_b32 v3, v2
    s_lshl_b32 s29, s3, 13
    s_lshl_b32 s30, s27, 8
    s_add_u32 s29, s29, s30
    s_cmp_ge_u32 s26, {NG}
    s_cselect_b32 s30, {128*512}, 0
    s_add_u32 s29, s29, s30
    s_lshl_b32 s31, s3, 12
    s_mov_b32 m0, s31
    s_waitcnt lgkmcnt(0)""")
    srd(a, 32, W1, None, 260*512); srd(a, 36, X, None, N*256)
    for ii in range(4):
        a(f"buffer_load_dwordx4 v24, s[32:35], s29 offen lds")
        if ii < 3: a("s_add_u32 s29, s29, 2048\ns_add_u32 m0, m0, 1024")
    a(f"""s_lshl_b32 s29, s28, 15
    s_add_u32 s29, s29, s31
    s_add_u32 s31, s31, 32768
    s_mov_b32 m0, s31""")
    for ii in range(4):
        a(f"buffer_load_dwordx4 v{25+ii}, s[36:39], s29 offen lds")
        if ii < 3: a("s_add_u32 s29, s29, 1024\ns_add_u32 m0, m0, 1024")
    a(f"""s_and_b32 s40, s3, 1
    s_lshr_b32 s41, s3, 1
    v_bfe_u32 v18, v1, 2, 2
    v_lshrrev_b32 v6, 5, v1
    v_lshl_add_u32 v19, v6, 3, v18
    v_lshlrev_b32 v19, 8, v19
    v_bfe_u32 v20, v1, 4, 1
    v_lshlrev_b32 v20, 5, v20
    v_and_b32 v21, 3, v1
    v_lshl_add_u32 v20, v21, 3, v20
    v_add_u32 v19, v19, v20
    s_lshl_b32 s42, s40, 1
    v_xor_b32 v20, s42, v18
    v_lshl_add_u32 v8, v20, 6, v19
    v_xor_b32 v20, 1, v20
    v_lshl_add_u32 v9, v20, 6, v19
    v_and_b32 v7, 31, v1
    s_lshl_b32 s42, s41, 5
    v_add_u32 v19, s42, v7
    v_lshlrev_b32 v19, 8, v19
    v_and_b32 v20, 15, v1
    v_xor_b32 v20, v20, v6
    v_lshl_add_u32 v10, v20, 4, v19
    v_add_u32 v10, 32768, v10""")
    for s in range(1, 8): a(f"v_xor_b32 v{10+s}, {32*s}, v10")
    srd(a, 44, WS, None, N*512)
    a(f"""s_lshl_b32 s42, s28, 2
    s_add_u32 s42, s42, s41
    s_lshl_b32 s42, s42, 14
    s_lshl_b32 s43, s27, 1
    s_add_u32 s43, s43, s40
    s_lshl_b32 s43, s43, 7
    s_add_u32 s48, s42, s43
    s_add_u32 s49, s48, 4096
    s_add_u32 s50, s48, 8192
    s_add_u32 s51, s48, 12288
    v_lshlrev_b32 v4, 11, v6
    v_lshl_add_u32 v4, v7, 2, v4
    s_mov_b32 s52, {NLOG2E}
    s_mov_b32 s53, {NLOG2E}
    v_mov_b32 v5, 0""")
    a("s_waitcnt vmcnt(0)\ns_barrier")
    def wread(t):
        for s in range(8):
            for hf in range(2):
                a(f"ds_read_b64_tr_b16 {vr(WOP+32*t+4*s+2*hf,2)}, v{8+t} offset:{4096*s+1024*hf}")
    for s in range(8): a(f"ds_read_b128 {vr(24+4*s,4)}, v{10+s}")
    wread(0); wread(1)
    a(f"s_cmp_ge_u32 s26, {NG}\ns_cbranch_scc1 L1_w1b")
    GD0, GD1 = 8, WOP
    a("s_waitcnt lgkmcnt(15)")
    for s in range(8): a(mfma(GD0, 24+4*s, WOP+4*s, None if s == 0 else GD0))
    a("s_waitcnt lgkmcnt(0)")
    for s in range(8): a(mfma(GD1, 24+4*s, WOP+32+4*s, None if s == 0 else GD1))
    for j in range(0, 16, 2): a(f"v_pk_mul_f32 {vr(GD0+j,2)}, {vr(GD0+j,2)}, s[52:53]")
    for j in range(0, 16, 2): a(f"v_pk_mul_f32 {vr(GD1+j,2)}, {vr(GD1+j,2)}, s[52:53]")
    for j in range(16):
        a(f"""v_cvt_pk_bf16_f32 v{24+j}, v{GD0+j}, v{GD1+j}
        buffer_store_dword v{24+j}, v4, s[44:47], s{48+j//4} offen offset:{512*(j%4)}
        v_pk_max_i16 v5, v5, v{24+j}""")
    a("""v_lshlrev_b32 v6, 16, v5
    v_and_b32 v5, 0xffff0000, v5
    v_max_u32 v5, v5, v6""")
    dpp_red(a, "v_max_u32", 5)
    lane63(a)
    a("ds_max_u32 v3, v5")
    full(a)
    srd(a, 44, WS, MAXA, NG*4)
    a(f"""s_lshl_b32 s26, s26, 2
    s_waitcnt lgkmcnt(0)
    s_barrier
    v_cmp_eq_u32 vcc, 0, v0
    s_and_saveexec_b64 s[54:55], vcc
    s_cbranch_execz L1_exit
    ds_read_b32 v6, v3
    s_waitcnt lgkmcnt(0)
    buffer_store_dword v6, v2, s[44:47], s26 offen
    s_endpgm""")
    a(f"""L1_w1b:
    s_lshl_b32 s43, s27, 1
    s_add_u32 s43, s43, s40
    s_lshl_b32 s43, s43, 14
    v_lshlrev_b32 v2, 4, v1""")
    srd(a, 44, WS, W1BOP, 65536)
    a("s_cmp_lg_u32 s41, 0\ns_cbranch_scc1 L1_exit\ns_waitcnt lgkmcnt(0)")
    for q in range(16):
        a(f"buffer_store_dwordx4 {vr(WOP+4*q,4)}, v2, s[44:47], s43 offen\ns_add_u32 s43, s43, 1024")
    a("s_endpgm")
    a(f"""L1_w2:
    v_lshlrev_b32 v2, 4, v1
    s_lshl_b32 s29, s3, 13
    s_mov_b32 m0, s29
    s_waitcnt lgkmcnt(0)""")
    srd(a, 32, W2, None, 65536)
    for ii in range(8):
        a("buffer_load_dwordx4 v2, s[32:35], s29 offen lds")
        if ii < 7: a("s_add_u32 s29, s29, 1024\ns_add_u32 m0, m0, 1024")
    a(f"""s_and_b32 s40, s3, 3
    s_lshr_b32 s41, s3, 2
    v_bfe_u32 v5, v1, 2, 1
    v_lshlrev_b32 v5, 5, v5
    v_bfe_u32 v6, v1, 3, 1
    v_add_u32 v5, v5, v6
    v_lshrrev_b32 v6, 5, v1
    v_lshl_add_u32 v5, v6, 2, v5
    v_lshlrev_b32 v5, 8, v5
    v_bfe_u32 v6, v1, 4, 1
    v_lshl_add_u32 v5, v6, 5, v5
    v_and_b32 v6, 3, v1
    v_lshl_add_u32 v5, v6, 3, v5
    s_lshl_b32 s42, s40, 6
    s_lshl_b32 s43, s41, 15
    s_add_u32 s42, s42, s43
    v_add_u32 v5, s42, v5
    s_lshl_b32 s43, s40, 14
    s_lshl_b32 s42, s41, 13
    s_add_u32 s43, s43, s42""")
    srd(a, 44, WS, W2OP, 65536)
    a("s_waitcnt vmcnt(0)\ns_barrier")
    for s in range(8):
        for hf in range(2):
            row = 64*(s//4) + 16*((s//2) % 2) + 8*(s % 2) + 2*hf
            a(f"ds_read_b64_tr_b16 {vr(WOP+4*s+2*hf,2)}, v5 offset:{256*row}")
    a("s_waitcnt lgkmcnt(0)")
    for s in range(8):
        a(f"buffer_store_dwordx4 {vr(WOP+4*s,4)}, v2, s[44:47], s43 offen\ns_add_u32 s43, s43, 1024")
    a("L1_exit:\ns_endpgm")


CAPT = 60
L_IDX, L_QA, L_CNT, L_MISC, L_DEG, L_EA, L_P, L_BT, L_STG = 256, 8448, 10496, 10752, 10816, 11264, 26624, 57344, 87040
BTS = 576
L_NULL = L_BT + NPB*BTS
K2_LDS = L_STG + 65536
D0, D1, EE, TT, HQ0, HQ1, S0, S1 = 0, 16, 32, 48, 56, 60, 64, 80
ALO, AHI, ID0, ID1, A2, B2R, PP, IP = 96, (104, 112), 120, 124, (128, 132), (136, 140), 144, 148
QV, QST, RA, IB, EB, QB, PB = (156, 157), 158, 159, 163, 164, 165, 166
TID, LANE, DEG, VONE = 167, 168, 169, 170
RECR, OFR = 176, 224
MASK = 56
S_BASE, S_LIM, S_IMASK, S_SLOW, S_N, S_T0, S_FIRST, S_K, S_MAXC, S_SAFE, S_PI, S_STG, S_BETA, S_NEG = range(80, 94)
S_CG, S_GRP = 26, 27


def valu_half(D, hq, safe):
    L = [f"v_exp_f32 v{EE+j}, v{D+j}" for j in range(16)]
    p2 = lambda x: vr(x, 2)
    if not safe:
        for q in range(2): L.append(f"v_pk_add_f32 {p2(TT+4*q)}, {p2(EE+8*q)}, 1.0 op_sel_hi:[1,0]")
        for s in range(1, 4):
            for q in range(2):
                n = D+8*q if s == 1 else TT+4*q+2
                L.append(f"v_pk_fma_f32 {p2(TT+4*q+2)}, {p2(n)}, {p2(EE+8*q+2*s)}, {p2(n)}")
            for q in range(2):
                L.append(f"v_pk_fma_f32 {p2(TT+4*q+2)}, {p2(D+8*q+2*s)}, {p2(TT+4*q)}, {p2(TT+4*q+2)}")
            for q in range(2):
                L.append(f"v_pk_fma_f32 {p2(TT+4*q)}, {p2(TT+4*q)}, {p2(EE+8*q+2*s)}, {p2(TT+4*q)}")
        for q in range(2):
            for p in range(2): L.append(f"v_rcp_f32 v{TT+4*q+p}, v{TT+4*q+p}")
        for q in range(2): L.append(f"v_pk_mul_f32 {p2(TT+4*q+2)}, {p2(TT+4*q+2)}, {p2(TT+4*q)}")
    else:
        for j in range(0, 16, 2): L.append(f"v_pk_add_f32 {p2(EE+j)}, {p2(EE+j)}, 1.0 op_sel_hi:[1,0]")
        for j in range(16): L.append(f"v_rcp_f32 v{EE+j}, v{EE+j}")
        for q in range(2): L.append(f"v_pk_mul_f32 {p2(TT+4*q+2)}, {p2(D+8*q)}, {p2(EE+8*q)}")
        for s in range(1, 4):
            for q in range(2):
                L.append(f"v_pk_fma_f32 {p2(TT+4*q+2)}, {p2(D+8*q+2*s)}, {p2(EE+8*q+2*s)}, {p2(TT+4*q+2)}")
    for q in range(2): L.append(f"v_cvt_pk_bf16_f32 v{hq+q}, v{TT+4*q+2}, v{TT+4*q+3}")
    return L


def weave(V, M, pos):
    out = []
    for i, x in enumerate(V):
        out += [m for m, p in zip(M, pos) if p == i]
        out.append(x)
    return out


def block(a, par, safe):
    M1 = [mfma(D1, AHI[par], ID0, None), mfma(D1, AHI[par]+4, ID1, D1), mfma(D1, A2[par], B2R[1], D1)]
    if par == 0: M1.append(mfma(S1, HQ1, PP, S1))
    M2 = [mfma(D0, ALO, ID0, None), mfma(D0, ALO+4, ID1, D0), mfma(D0, A2[par ^ 1], B2R[0], D0)]
    if par == 1: M2.append(mfma(S0, HQ0, PP, S0))
    pos = [1, 4, 7, 10]
    h1 = weave(valu_half(D0, HQ0+2*par, safe), M1, pos)
    h2 = weave(valu_half(D1, HQ1+2*par, safe), M2, pos)
    extra = [f"v_add_u32 v{QV[par]}, v{QV[par]}, v{QST}"]
    if par == 0:
        extra += [f"v_add_u32 v{IB}, 256, v{IB}", f"v_add_u32 v{EB}, 512, v{EB}",
                  f"v_add_u32 v{QB}, 64, v{QB}", f"v_add_u32 v{PB}, 1024, v{PB}"]
    L = h1 + extra + h2
    if OPT["prio"]:
        L.insert(OPT["prio_at"], "s_setprio 1"); L.append("s_setprio 0")
    a("\n".join(L))


def dma(a, par):
    a(f"s_add_u32 m0, s{S_STG}, {4096*par}")
    for u in range(4):
        a(f"buffer_load_dwordx4 {vr(IP+2*u,2)}, s[36:39], 0 idxen offen lds")
        if u < 3: a("s_add_u32 m0, m0, 1024")


def rd_idx(a, t):
    for u in range(4): a(f"ds_read_b32 v{IP+2*u}, v{IB} offset:{128*t+32*u}")


def rd_rows(a, par):
    for s in range(4):
        d = ALO+4*s if s < 2 else AHI[par]+4*(s-2)
        a(f"ds_read_b128 {vr(d,4)}, v{RA+s} offset:{4096*par}")


def group(a, par):
    a("s_waitcnt vmcnt(4)")
    rd_rows(a, par)
    a(f"ds_read_b64_tr_b16 {vr(B2R[1],2)}, v{QV[par^1]} offset:64")
    a(f"ds_read_b64_tr_b16 {vr(B2R[0],2)}, v{QV[par]}")
    a(f"ds_read2st64_b32 {vr(A2[par]+2,2)}, v{EB} offset0:{2+par} offset1:{2+par}")
    if par == 0: a(f"ds_read_b128 {vr(PP,4)}, v{PB}")
    a(f"s_cmp_gt_u32 s{S_N}, 3\ns_cselect_b32 s38, {AROWS}, 0")
    a(f"s_waitcnt lgkmcnt({4 if par == 0 else 3})")
    dma(a, par)
    rd_idx(a, 5+par)
    a(f"ds_read_b32 v{QV[par^1]}, v{QB} offset:{32*(3+par)}")
    a("s_waitcnt lgkmcnt(0)")


def main_loop(a, safe, tag):
    a(f"L2_loop{tag}:")
    block(a, 0, safe)
    a(f"s_sub_u32 s{S_N}, s{S_N}, 1\ns_cmp_eq_u32 s{S_N}, 0\ns_cbranch_scc1 L2_end_odd")
    group(a, 0)
    block(a, 1, safe)
    a(f"s_sub_u32 s{S_N}, s{S_N}, 1\ns_cmp_eq_u32 s{S_N}, 0\ns_cbranch_scc1 L2_end_even")
    group(a, 1)
    a(f"s_branch L2_loop{tag}")


def k2(a):
    a("k2_kernel:")
    a(f"s_cmp_ge_u32 s2, {NB}\ns_cbranch_scc1 L2_exit")
    ldargs(a)
    a(f"""v_mov_b32 v{TID}, v0
    v_and_b32 v{LANE}, 63, v0
    v_lshrrev_b32 v2, 6, v0
    v_mov_b32 v{DEG}, 0
    v_readfirstlane_b32 s3, v2
    v_mov_b32 v{VONE}, 1
    s_mov_b32 s{S_BASE}, 0
    s_mov_b32 s{S_LIM}, 48
    s_mov_b32 s{S_IMASK}, 15
    s_mov_b32 s{S_SLOW}, 0
    s_mov_b32 s{S_FIRST}, 1
    s_mov_b32 s{S_BETA}, 0
    s_and_b32 s{S_CG}, s3, 3
    s_lshr_b32 s{S_GRP}, s3, 2
    s_lshl_b32 s{S_STG}, s3, 13
    s_add_u32 s{S_STG}, s{S_STG}, {L_STG}
    s_mul_i32 s{S_NEG}, s2, {NPB}""")
    L = LANE
    a(f"""v_lshrrev_b32 v3, 4, v{L}
    v_and_b32 v4, 15, v{L}
    s_and_b32 s28, s3, 1
    s_lshl_b32 s28, s28, 3
    v_add_u32 v5, s28, v3
    v_xor_b32 v6, v5, v4
    v_lshlrev_b32 v6, 4, v6
    v_lshl_or_b32 v6, v3, 8, v6
    v_add_u32 v5, 4, v5
    v_xor_b32 v7, v5, v4
    v_lshlrev_b32 v7, 4, v7
    v_lshl_or_b32 v7, v3, 8, v7
    v_lshrrev_b32 v8, 4, v{TID}
    v_lshlrev_b32 v9, 10, v8
    s_lshl_b32 s28, s2, 2
    v_add_u32 v9, s28, v9
    s_lshl_b32 s29, s3, 11
    s_add_u32 s30, s29, {L_STG}
    s_mov_b32 m0, s30
    s_lshl_b32 s30, s{S_NEG}, 8
    s_add_u32 s94, s30, s29
    s_add_u32 s95, s94, 1024
    s_waitcnt lgkmcnt(0)""")
    srd(a, 40, X, None, N*256); srd(a, 28, WS, OFF, CH*1024)
    a(f"""buffer_load_dwordx4 v6, s[40:43], s94 offen lds
    s_add_u32 m0, m0, 1024
    s_mov_b32 s96, 32768
    buffer_load_dwordx4 v7, s[40:43], s95 offen lds
    s_mov_b32 s97, 65536
    s_mov_b32 s98, 98304
    buffer_load_dword v{OFR}, v9, s[28:31], 0 offen
    buffer_load_dword v{OFR+1}, v9, s[28:31], s96 offen
    buffer_load_dword v{OFR+2}, v9, s[28:31], s97 offen
    buffer_load_dword v{OFR+3}, v9, s[28:31], s98 offen""")
    srd(a, 44, WS, MAXA, NG*4); srd(a, 48, WS, MAXE, CH*4); srd(a, 52, W1, None, 260*512)
    a(f"""v_lshlrev_b32 v10, 4, v{L}
    v_lshlrev_b32 v11, 3, v{L}
    buffer_load_dwordx4 v[240:243], v10, s[44:47], 0 offen
    buffer_load_dwordx2 v[244:245], v11, s[48:51], 0 offen
    v_and_b32 v11, 1, v{L}
    v_lshlrev_b32 v11, 5, v11
    v_bfe_u32 v12, v{L}, 1, 4
    v_add_u32 v11, v11, v12
    v_lshlrev_b32 v11, 1, v11
    v_lshrrev_b32 v12, 5, v{L}
    v_lshl_add_u32 v11, v12, 10, v11
    s_lshl_b32 s96, s{S_CG}, 7
    s_add_u32 s97, s96, {256*512}""")
    srd(a, 44, B1, None, 512)
    a(f"""buffer_load_ushort v246, v11, s[52:55], s97 offen
    buffer_load_ushort v247, v11, s[52:55], s97 offen offset:512
    buffer_load_ushort v248, v11, s[52:55], s97 offen offset:32
    buffer_load_ushort v249, v11, s[52:55], s97 offen offset:544
    v_and_b32 v11, 31, v{L}
    v_lshlrev_b32 v11, 1, v11
    buffer_load_ushort v250, v11, s[44:47], s96 offen
    buffer_load_ushort v251, v11, s[44:47], s96 offen offset:64""")
    srd(a, 32, WS, REC, CH*CE*12); srd(a, 36, WS, None, AROWS, stride=512)
    a(f"s_cmp_lg_u32 s{S_GRP}, 0\ns_cbranch_scc1 L2_batch")
    srd(a, 44, WS, W1BOP, 65536)
    a(f"s_lshl_b32 s96, s{S_CG}, 14")
    for q in range(16):
        if q % 4 == 0 and q: a("s_add_u32 s96, s96, 4096")
        a(f"buffer_load_dwordx4 {vr(64+4*q,4)}, v10, s[44:47], s96 offen offset:{1024*(q%4)}")
    a(f"""L2_batch:
    v_lshlrev_b32 v1, 4, v{TID}
    v_mov_b32 v12, -1
    v_mov_b32 v13, -1
    v_mov_b32 v14, -1
    v_mov_b32 v15, -1
    v_mov_b32 v16, 0
    v_mov_b32 v17, 0
    v_mov_b32 v18, 0
    v_mov_b32 v19, 0
    ds_write_b128 v1, v[12:15] offset:{L_IDX}""")
    for i in range(5): a(f"ds_write_b128 v1, v[16:19] offset:{L_CNT + 8192*i}")
    a(f"""v_cmp_gt_u32 vcc, {(L_BT-L_CNT)//16 - 2560}, v{TID}
    s_and_saveexec_b64 s[96:97], vcc
    ds_write_b128 v1, v[16:19] offset:{L_CNT + 8192*5}
    v_mov_b32 v12, {L_NULL}
    v_mov_b32 v13, {L_NULL}
    v_mov_b32 v14, {L_NULL}
    v_mov_b32 v15, {L_NULL}
    v_cmp_gt_u32 vcc, 128, v{TID}
    s_and_b64 exec, exec, vcc
    ds_write_b128 v1, v[12:15] offset:{L_QA}
    v_add_u32 v2, {L_NULL}, v1
    v_cmp_gt_u32 vcc, 36, v{TID}
    s_and_b64 exec, exec, vcc
    ds_write_b128 v2, v[16:19]
    s_mov_b64 exec, -1
    s_cmp_eq_u32 s{S_FIRST}, 0
    s_cbranch_scc1 L2_b1
    s_cmp_eq_u32 s{S_GRP}, 0
    s_cbranch_scc1 L2_b0
    s_waitcnt vmcnt(8)
    s_branch L2_b1
    L2_b0:
    s_waitcnt vmcnt(24)
    L2_b1:
    v_and_b32 v2, 15, v{L}
    v_add_u32 v2, s{S_BASE}, v2
    s_add_u32 s96, s{S_BASE}, s{S_LIM}
    v_lshrrev_b32 v8, 4, v{TID}
    s_mov_b32 s97, {CE*12}
    v_mul_lo_u32 v8, v8, s97
    s_mov_b32 s{S_K}, 0""")
    for i in range(4):
        a(f"""v_lshrrev_b32 v{4+i}, 16, v{OFR+i}
        v_min_u32 v{4+i}, s96, v{4+i}
        s_bitcmp1_b32 s{S_IMASK}, {i}
        s_cselect_b32 s98, -1, 0
        v_and_b32 v{4+i}, s98, v{4+i}
        v_and_b32 v3, 0xffff, v{OFR+i}
        v_add_u32 v3, v3, v2
        v_mad_u32_u24 v{12+i}, v3, 12, v8
        v_add_u32 v8, {32*CE*12}, v8""")
    for rnd in range(3):
        if rnd: a("v_add_u32 v2, 16, v2")
        for i in range(4):
            k = 4*rnd + i
            a(f"""v_cmp_lt_u32 {sr(MASK+2*k,2)}, v2, v{4+i}
            s_mov_b64 exec, {sr(MASK+2*k,2)}
            s_cbranch_execz L2_r{k}
            buffer_load_dwordx3 {vr(RECR+4*k,3)}, v{12+i}, s[32:35], 0 offen offset:{192*rnd}
            s_add_u32 s{S_K}, s{S_K}, 1
            L2_r{k}:
            s_mov_b64 exec, -1""")
    a(f"""s_waitcnt lgkmcnt(0)
    s_barrier
    s_cmp_eq_u32 s{S_FIRST}, 0
    s_cbranch_scc1 L2_rank0""")
    for n in range(12, 0, -1):
        a(f"s_cmp_lt_u32 s{S_K}, {n}\ns_cbranch_scc1 L2_w{n}\ns_waitcnt vmcnt({n})\ns_branch L2_wd\nL2_w{n}:")
    a("s_waitcnt vmcnt(0)\nL2_wd:")
    a(f"""v_lshrrev_b32 v2, 16, v{OFR}
    v_lshrrev_b32 v3, 16, v{OFR+1}
    v_lshrrev_b32 v4, 16, v{OFR+2}
    v_lshrrev_b32 v5, 16, v{OFR+3}
    v_max3_u32 v2, v2, v3, v4
    v_max_u32 v2, v2, v5""")
    dpp_red(a, "v_max_u32", 2)
    a("v_mov_b32 v3, 0")
    lane63(a); a(f"ds_max_u32 v3, v2 offset:{L_MISC+4}"); full(a)
    a(f"""s_mov_b32 s94, {NLOG2E}
    s_mov_b32 s95, {NLOG2E}
    s_cmp_lg_u32 s{S_GRP}, 0
    s_cbranch_scc1 L2_stat""")
    a(f"""v_and_b32 v171, 31, v{L}
    v_lshrrev_b32 v172, 5, v{L}
    v_and_b32 v173, 15, v{L}
    v_xor_b32 v173, v173, v172
    v_lshlrev_b32 v173, 4, v173
    v_lshl_add_u32 v228, v171, 8, v173
    v_add_u32 v228, {L_STG}, v228""")
    for s in range(1, 8): a(f"v_xor_b32 v{228+s}, {32*s}, v228")
    a(f"""s_lshl_b32 s96, s{S_CG}, 7
    v_lshl_add_u32 v173, v171, 2, s96
    v_mul_u32_u24 v174, {4*BTS}, v172
    v_add_u32 v174, v174, v173
    v_add_u32 v174, {L_BT}, v174
    v_lshl_add_u32 v173, v172, 11, v173
    v_lshlrev_b32 v250, 16, v250
    v_lshlrev_b32 v251, 16, v251
    v_mul_f32 v252, s94, v250
    v_mul_f32 v254, s94, v251
    v_mov_b32 v175, 0
    s_add_u32 s96, s{S_NEG}, {N}
    s_lshl_b32 s96, s96, 9""")
    srd(a, 44, WS, "s96", NPB*512)
    for mt in range(2):
        for s in range(8): a(f"ds_read_b128 {vr(32+4*s,4)}, v{228+s} offset:{8192*mt}")
        for s in range(8):
            a(f"s_waitcnt lgkmcnt({7-s})")
            a(mfma(0, 32+4*s, 64+4*s, None if s == 0 else 0))
            a(mfma(16, 32+4*s, 96+4*s, None if s == 0 else 16))
        nj = 16 if mt == 0 else 10
        for j in range(0, nj, 2): a(f"v_pk_fma_f32 {vr(j,2)}, {vr(j,2)}, s[94:95], v[252:253] op_sel_hi:[1,1,0]")
        for j in range(0, nj, 2): a(f"v_pk_fma_f32 {vr(16+j,2)}, {vr(16+j,2)}, s[94:95], v[254:255] op_sel_hi:[1,1,0]")
        for j in range(16 if mt == 0 else 9):
            row = 32*mt + 8*(j//4) + j % 4
            if j % 4 == 0: a(f"s_mov_b32 s96, {(32*mt + 8*(j//4))*512}")
            a(f"v_cvt_pk_bf16_f32 v{32+j}, v{j}, v{16+j}")
            if mt == 1 and j == 8: a("s_mov_b32 exec_hi, 0")
            a(f"""ds_write_b32 v174, v{32+j} offset:{row*BTS}
            v_pk_max_i16 v175, v175, v{32+j}
            v_xor_b32 v{48+j}, 0x80008000, v{32+j}
            buffer_store_dword v{48+j}, v173, s[44:47], s96 offen offset:{512*(j%4)}""")
        if mt == 0: a("s_waitcnt lgkmcnt(0)")
    full(a)
    a("""v_lshlrev_b32 v2, 16, v175
    v_and_b32 v175, 0xffff0000, v175
    v_max_u32 v175, v175, v2""")
    dpp_red(a, "v_max_u32", 175)
    a("v_mov_b32 v3, 0")
    lane63(a); a(f"ds_max_u32 v3, v175 offset:{L_MISC}"); full(a)
    a("L2_stat:")
    for j in range(32): a(f"v_mov_b32 v{S0+j}, 0")
    a(f"""v_and_b32 v2, 31, v{L}
    v_lshrrev_b32 v3, 5, v{L}
    v_and_b32 v4, 1, v{L}
    v_lshlrev_b32 v4, 4, v4
    v_mov_b32 v5, 0x3f80
    v_lshlrev_b32 v5, v4, v5
    v_lshrrev_b32 v6, 1, v2
    v_lshlrev_b32 v7, 2, v3""")
    for s in range(2):
        for r in range(4):
            a(f"""v_add_u32 v8, {8*s + r}, v7
            v_cmp_eq_u32 vcc, v8, v6
            v_cndmask_b32 v{ID0+4*s+r}, 0, v5, vcc""")
    a(f"""v_bfe_u32 v8, v2, 2, 1
    v_lshrrev_b32 v9, 4, v2
    v_xor_b32 v8, v8, v3
    v_lshl_or_b32 v8, v8, 1, v9""")
    for q in range(2):
        a(f"""v_cmp_eq_u32 vcc, {q}, v8
        v_cndmask_b32 v{A2[0]+q}, 0, v5, vcc
        v_mov_b32 v{A2[1]+q}, v{A2[0]+q}""")
    for c in range(2):
        a(f"""v_lshlrev_b32 v10, 16, v{246+2*c}
        v_lshlrev_b32 v11, 16, v{247+2*c}
        v_mul_f32 v10, s94, v10
        v_mul_f32 v11, s94, v11
        v_cvt_pk_bf16_f32 v{B2R[c]+3}, v10, v11
        v_mul_f32 v{20+c}, v10, v10
        v_fmac_f32 v{20+c}, v11, v11
        v_lshlrev_b32 v12, 16, v{B2R[c]+3}
        v_and_b32 v13, 0xffff0000, v{B2R[c]+3}
        v_sub_f32 v10, v10, v12
        v_sub_f32 v11, v11, v13
        v_cvt_pk_bf16_f32 v{B2R[c]+2}, v10, v11""")
    a("v_max_u32 v20, v20, v21\nv_max3_u32 v240, v240, v241, v242\nv_max_u32 v240, v240, v243\nv_max_u32 v244, v244, v245")
    dpp_red(a, "v_max_u32", 20, full=False); dpp_red(a, "v_max_u32", 240); dpp_red(a, "v_max_u32", 244)
    a(f"""v_readlane_b32 s96, v20, 31
    v_readlane_b32 s97, v20, 63
    v_readlane_b32 s98, v244, 63
    v_readlane_b32 s99, v240, 63
    v_mov_b32 v171, s96
    v_add_f32 v171, s97, v171
    v_mul_f32 v171, s98, v171
    v_sqrt_f32 v171, v171
    v_add_f32 v171, s99, v171""")
    a(f"""v_bfe_u32 v8, v2, 2, 1
    v_lshlrev_b32 v8, 4, v8
    v_lshrrev_b32 v9, 4, v2
    v_lshl_or_b32 v8, v9, 3, v8
    v_and_b32 v10, 1, v2
    v_lshl_or_b32 v8, v10, 2, v8
    v_bfe_u32 v11, v2, 3, 1
    v_lshl_or_b32 v8, v11, 1, v8
    v_bfe_u32 v12, v2, 1, 1
    v_or_b32 v8, v8, v12
    v_lshl_or_b32 v10, v11, 1, v10
    v_lshl_or_b32 v10, v9, 2, v10
    v_xor_b32 v10, v10, v3
    v_lshlrev_b32 v10, 4, v10
    v_lshl_add_u32 v10, v8, 7, v10
    v_add_u32 v{RA}, s{S_STG}, v10
    v_lshlrev_b32 v172, 3, v8
    v_lshl_add_u32 v172, v3, 2, v172""")
    for s in range(1, 4): a(f"v_xor_b32 v{RA+s}, {32*s}, v{RA}")
    a(f"""v_bfe_u32 v8, v{L}, 4, 1
    v_lshlrev_b32 v9, 1, v8
    v_or_b32 v9, v9, v3
    v_and_b32 v10, 7, v{L}
    v_xor_b32 v9, v9, v10
    s_lshl_b32 s96, s{S_CG}, 7
    v_lshl_add_u32 v{IP+1}, v9, 4, s96
    v_xor_b32 v{IP+3}, 64, v{IP+1}
    v_mov_b32 v{IP+5}, v{IP+1}
    v_mov_b32 v{IP+7}, v{IP+3}
    v_lshlrev_b32 v8, 5, v8
    v_and_b32 v10, 3, v{L}
    v_lshl_add_u32 v8, v10, 3, v8
    v_add_u32 v{QST}, s96, v8
    v_bfe_u32 v8, v{L}, 2, 2
    v_lshl_add_u32 v173, v3, 2, v8
    v_lshlrev_b32 v173, 2, v173
    s_cmp_eq_u32 s{S_GRP}, 0
    s_cbranch_scc1 L2_rank1""")
    a(f"""L2_rank0:
    s_waitcnt vmcnt(0)
    s_branch L2_rank2
    L2_rank1:
    s_waitcnt vmcnt(25)
    L2_rank2:""")
    for k in range(12):
        a(f"""s_mov_b64 exec, {sr(MASK+2*k,2)}
        s_cbranch_execz L2_k{k}
        v_lshrrev_b32 v{k}, 14, v{RECR+4*k+2}
        ds_add_rtn_u32 v{RECR+4*k+3}, v{k}, v{VONE} offset:{L_CNT}
        L2_k{k}:""")
    a(f"""s_mov_b64 exec, -1
    v_lshlrev_b32 v20, 2, v{L}
    v_mov_b32 v21, 0
    s_waitcnt lgkmcnt(0)
    s_barrier
    ds_read_b32 v22, v20 offset:{L_CNT}
    ds_read_b64 v[24:25], v21 offset:{L_MISC}
    s_waitcnt lgkmcnt(1)
    v_add_u32 v23, 3, v22
    v_and_b32 v23, -4, v23
    v_mov_b32 v26, v23""")
    dpp_red(a, "v_add_u32", 26)
    a(f"""v_sub_u32 v27, v26, v23
    v_readlane_b32 s96, v26, 63
    v_readlane_b32 s97, v27, 17
    v_readlane_b32 s98, v27, 32
    s_cmp_eq_u32 s{S_FIRST}, 0
    s_cbranch_scc1 L2_s1
    s_waitcnt lgkmcnt(0)
    v_readfirstlane_b32 s{S_MAXC}, v25
    v_add_f32 v171, v171, v24
    v_mov_b32 v28, 0x41f00000
    v_cmp_lt_f32 vcc, v171, v28
    s_cmp_eq_u64 vcc, 0
    s_cselect_b32 s{S_SAFE}, 1, 0
    s_mov_b32 s{S_FIRST}, 0
    L2_s1:
    s_add_u32 s{S_PI}, s96, 64
    s_lshr_b32 s{S_PI}, s{S_PI}, 7
    s_add_u32 s97, s97, 63
    s_lshr_b32 s97, s97, 6
    s_max_u32 s{S_PI}, s{S_PI}, s97
    s_add_u32 s97, s98, 63
    s_lshr_b32 s97, s97, 6
    s_min_u32 s{S_PI}, s{S_PI}, s97
    s_lshl_b32 s97, s{S_PI}, 6
    s_max_u32 s97, s97, s98
    s_sub_u32 s97, s97, s98
    s_add_u32 s96, s96, s97
    s_add_u32 s96, s96, 31
    s_lshr_b32 s96, s96, 5
    v_mov_b32 v28, s97
    v_cmp_lt_u32 vcc, 31, v{L}
    v_cndmask_b32 v28, 0, v28, vcc
    v_add_u32 v27, v27, v28
    s_cmp_lg_u32 s{S_SLOW}, 0
    s_cbranch_scc1 L2_s2
    s_cmp_gt_u32 s96, {CAPT}
    s_cselect_b32 s97, 1, 0
    s_cmp_gt_u32 s{S_MAXC}, 48
    s_cselect_b32 s97, 1, s97
    s_cmp_eq_u32 s97, 0
    s_cbranch_scc1 L2_s2
    s_mov_b32 s{S_SLOW}, 1
    s_mov_b32 s{S_LIM}, 16
    s_mov_b32 s{S_IMASK}, 3
    s_barrier
    s_branch L2_batch
    L2_s2:
    v_add_u32 v{DEG}, v{DEG}, v22
    s_lshl_b32 s97, s{S_PI}, 1
    s_min_u32 s98, s97, s96
    s_sub_u32 s99, s96, s98
    s_cmp_eq_u32 s{S_GRP}, 0
    s_cselect_b32 s{S_N}, s98, s99
    s_cselect_b32 s{S_T0}, 0, s97""")
    for k in range(12):
        a(f"""s_cmp_eq_u64 {sr(MASK+2*k,2)}, 0
        s_cbranch_scc1 L2_m{k}
        ds_bpermute_b32 v{k}, v{k}, v27
        L2_m{k}:""")
    a(f"""s_cmp_ge_u32 s3, 3
    s_cbranch_scc1 L2_pad
    v_add_u32 v28, s3, v22
    v_cmp_lt_u32 vcc, v28, v23
    s_and_b64 exec, exec, vcc
    s_add_u32 s96, s{S_NEG}, {N}
    v_add_u32 v29, s96, v{L}
    v_add_lshl_u32 v28, v28, v27, 2
    ds_write_b32 v28, v29 offset:{L_IDX}
    s_mov_b64 exec, -1
    L2_pad:
    v_lshrrev_b32 v23, 2, v23
    v_lshrrev_b32 v30, 2, v27
    v_mul_u32_u24 v31, {BTS}, v{L}
    v_add_u32 v31, {L_BT}, v31
    v_mov_b32 v32, 0x3f80
    s_lshl_b32 s96, s{S_PI}, 4
    s_mov_b32 s97, s3
    L2_q:
    v_cmp_lt_u32 vcc, s97, v23
    s_and_b64 exec, exec, vcc
    s_cbranch_execz L2_qd
    v_add_u32 v33, s97, v30
    v_lshlrev_b32 v34, 2, v33
    ds_write_b32 v34, v31 offset:{L_QA}
    v_cmp_le_u32 vcc, s96, v33
    v_cndmask_b32 v34, 0, 17, vcc
    v_sub_u32 v34, v{L}, v34
    v_lshlrev_b32 v34, 4, v34
    v_and_b32 v35, -16, v33
    v_lshl_add_u32 v34, v35, 6, v34
    v_and_b32 v35, 4, v33
    v_lshl_add_u32 v34, v35, 7, v34
    v_and_b32 v35, 8, v33
    v_add_u32 v34, v34, v35
    v_and_b32 v35, 3, v33
    v_lshl_add_u32 v34, v35, 1, v34
    ds_write_b16 v34, v32 offset:{L_P}
    s_add_u32 s97, s97, 8
    s_branch L2_q
    L2_qd:
    s_mov_b64 exec, -1
    s_waitcnt lgkmcnt(0)""".replace("v_cndmask_b32 v34, 0, 17, vcc", "v_cndmask_b32_e64 v34, 0, 17, vcc"))
    for k in range(12):
        a(f"""s_mov_b64 exec, {sr(MASK+2*k,2)}
        s_cbranch_execz L2_c{k}
        v_add_u32 v{k}, v{k}, v{RECR+4*k+3}
        v_and_b32 v{RECR+4*k+2}, 0xffff, v{RECR+4*k+2}
        v_lshlrev_b32 v{12+k}, 2, v{k}
        v_lshlrev_b32 v{k}, 3, v{k}
        ds_write_b32 v{12+k}, v{RECR+4*k+2} offset:{L_IDX}
        ds_write_b64 v{k}, {vr(RECR+4*k,2)} offset:{L_EA}
        L2_c{k}:""")
    a(f"""s_mov_b64 exec, -1
    s_lshl_b32 s96, s{S_T0}, 7
    s_add_u32 s96, s96, {L_IDX-256}
    v_lshrrev_b32 v2, 3, v{L}
    v_lshl_add_u32 v{IB}, v2, 2, s96
    s_lshl_b32 s96, s{S_T0}, 8
    s_add_u32 s96, s96, {L_EA-512}
    v_add_u32 v{EB}, s96, v172
    s_lshl_b32 s96, s{S_T0}, 5
    s_add_u32 s96, s96, {L_QA-64}
    v_add_u32 v{QB}, s96, v173
    s_lshl_b32 s96, s{S_T0}, 9
    s_add_u32 s96, s96, {L_P-1024}
    v_lshl_add_u32 v{PB}, v{L}, 4, s96""")
    for j in range(8): a(f"v_mov_b32 v{HQ0+j}, 0")
    for j in range(4): a(f"v_mov_b32 v{PP+j}, 0")
    a(f"""s_mov_b32 s38, {AROWS}
    s_waitcnt vmcnt(0) lgkmcnt(0)
    s_barrier
    s_cmp_eq_u32 s{S_N}, 0
    s_cbranch_scc1 L2_done""")
    rd_idx(a, 2); a("s_waitcnt lgkmcnt(0)"); dma(a, 0)
    rd_idx(a, 3); a("s_waitcnt lgkmcnt(0)"); dma(a, 1)
    rd_idx(a, 4)
    a(f"""ds_read_b32 v{QV[0]}, v{QB} offset:64
    ds_read_b32 v{QV[1]}, v{QB} offset:96
    ds_read2st64_b32 {vr(A2[0]+2,2)}, v{EB} offset0:2 offset1:2
    s_waitcnt lgkmcnt(0)
    v_add_u32 v{QV[0]}, v{QV[0]}, v{QST}
    v_add_u32 v{QV[1]}, v{QV[1]}, v{QST}
    s_waitcnt vmcnt(4)""")
    rd_rows(a, 0)
    a(f"ds_read_b64_tr_b16 {vr(B2R[0],2)}, v{QV[0]}\ns_waitcnt lgkmcnt(0)")
    dma(a, 0); rd_idx(a, 5)
    a(mfma(D0, ALO, ID0, None)); a(mfma(D0, ALO+4, ID1, D0)); a(mfma(D0, A2[0], B2R[0], D0))
    group(a, 1)
    a(f"s_cmp_lg_u32 s{S_SAFE}, 0\ns_cbranch_scc1 L2_loopS")
    main_loop(a, False, "F")
    main_loop(a, True, "S")
    a(f"""L2_end_odd:
    ds_read_b128 {vr(PP,4)}, v{PB}
    s_waitcnt lgkmcnt(0)""")
    a(mfma(S0, HQ0, PP, S0))
    a("L2_end_even:")
    a(mfma(S1, HQ1, PP, S1))
    a(f"""L2_done:
    s_waitcnt vmcnt(0)
    s_cmp_eq_u32 s{S_SLOW}, 0
    s_cbranch_scc1 L2_epi
    s_add_u32 s{S_BETA}, s{S_BETA}, 1
    s_lshr_b32 s{S_BASE}, s{S_BETA}, 1
    s_lshl_b32 s{S_BASE}, s{S_BASE}, 4
    s_xor_b32 s{S_IMASK}, s{S_IMASK}, 15
    s_cmp_ge_u32 s{S_BASE}, s{S_MAXC}
    s_cbranch_scc1 L2_epi
    s_barrier
    s_branch L2_batch""")
    a("L2_epi:")
    srd(a, 44, WS, W2OP, 65536); srd(a, 48, B2, None, 256)
    a(f"""v_lshlrev_b32 v10, 4, v{L}
    s_lshl_b32 s96, s{S_CG}, 14""")
    for q in range(16):
        if q % 4 == 0 and q: a("s_add_u32 s96, s96, 4096")
        a(f"buffer_load_dwordx4 {vr(176+4*q,4)}, v10, s[44:47], s96 offen offset:{1024*(q%4)}")
    a(f"""v_and_b32 v2, 31, v{L}
    v_lshrrev_b32 v3, 5, v{L}
    s_lshl_b32 s96, s{S_CG}, 6
    v_lshlrev_b32 v4, 1, v2
    buffer_load_ushort v240, v4, s[48:51], s96 offen
    s_mov_b32 s94, {NLN2}
    s_mov_b32 s95, {NLN2}
    v_bfe_u32 v5, v2, 1, 3
    v_lshlrev_b32 v5, 4, v5
    v_lshl_add_u32 v5, v2, 7, v5
    v_lshl_add_u32 v6, v3, 3, v5
    v_add_u32 v6, s{S_STG}, v6
    v_lshlrev_b32 v7, 4, v3
    v_xor_b32 v5, v5, v7
    s_lshl_b32 s97, s{S_GRP}, 15
    s_add_u32 s97, s97, {L_STG}
    v_add_u32 v241, s97, v5
    v_xor_b32 v242, 32, v241
    v_xor_b32 v243, 64, v241
    v_xor_b32 v244, 96, v241""")
    for j in range(0, 32, 2): a(f"v_pk_mul_f32 {vr(S0+j,2)}, {vr(S0+j,2)}, s[94:95]")
    for u in range(8):
        a(f"""v_cvt_pk_bf16_f32 v{16+2*u}, v{S0+4*u}, v{S0+4*u+1}
        v_cvt_pk_bf16_f32 v{17+2*u}, v{S0+4*u+2}, v{S0+4*u+3}
        v_xor_b32 v{32+u}, {16*u}, v6
        ds_write_b64 v{32+u}, {vr(16+2*u,2)}""")
    a(f"""s_cmp_lg_u32 s3, 0
    s_cbranch_scc1 L2_e1
    v_cvt_f32_u32 v8, v{DEG}
    v_lshlrev_b32 v9, 2, v{L}
    s_mov_b32 exec_hi, 0
    ds_write_b32 v9, v8 offset:{L_DEG}
    s_mov_b32 exec_lo, 0xfffe0000
    s_mov_b32 exec_hi, 0x1ffff
    ds_write_b32 v9, v8 offset:{L_DEG+128-68}
    s_mov_b64 exec, -1
    L2_e1:
    s_lshl_b32 s97, s{S_GRP}, 7
    v_lshl_add_u32 v245, v3, 4, s97
    s_lshl_b32 s96, s{S_CG}, 7
    s_add_u32 s96, s96, {L_P-512}
    v_lshlrev_b32 v246, 11, v3
    v_lshl_add_u32 v246, v2, 2, v246
    v_add_u32 v246, s96, v246
    s_mul_i32 s96, s{S_GRP}, {17*256}
    s_lshl_b32 s97, s{S_CG}, 6
    s_add_u32 s96, s96, s97
    v_lshlrev_b32 v247, 10, v3
    v_lshl_add_u32 v247, v2, 1, v247
    v_add_u32 v247, s96, v247
    s_sub_u32 s96, {N}, s{S_NEG}
    s_min_u32 s96, s96, {NPB}
    s_lshl_b32 s96, s96, 8
    s_lshl_b32 s97, s{S_NEG}, 8""")
    srd(a, 52, OUT, "s97", "s96")
    a("""s_mov_b32 s97, 4096
    s_waitcnt lgkmcnt(0)
    s_barrier""")
    for s in range(16): a(f"ds_read_b128 {vr(4*s,4)}, v{241+s%4} offset:{8192*(s//4)}")
    for jq in range(4): a(f"ds_read_b128 {vr(96+4*jq,4)}, v245 offset:{L_DEG+32*jq}")
    a("s_waitcnt vmcnt(0)")
    O = 64
    for s in range(16):
        a(f"s_waitcnt lgkmcnt({min(15, 19-s)})")
        a(mfma(O, 4*s, 176+4*s, None if s == 0 else O))
    a(f"""v_lshlrev_b32 v240, 16, v240
    s_cmp_eq_u32 s{S_GRP}, 0
    s_cbranch_scc1 L2_e2""")
    for j in range(8): a(f"ds_write_b32 v246, v{O+j} offset:{(8*(j//4)+j%4+1)*512}")
    a("""L2_e2:
    s_waitcnt lgkmcnt(0)
    s_barrier""")
    a(f"s_cmp_lg_u32 s{S_GRP}, 0\ns_cbranch_scc1 L2_e3")
    for j in range(8, 16): a(f"ds_read_b32 v{j}, v246 offset:{(8*(j//4)+j%4-16)*512}")
    a(f"""s_waitcnt lgkmcnt(0)
    s_mov_b32 exec_lo, 0
    v_add_f32 v{O+8}, v{O+8}, v8
    s_mov_b64 exec, -1""")
    for j in range(9, 16): a(f"v_add_f32 v{O+j}, v{O+j}, v{j}")
    a("L2_e3:")
    for j in range(16): a(f"v_fmac_f32 v{O+j}, v{96+j}, v240")
    for j in range(0, 16, 2): a(f"v_cvt_pk_bf16_f32 v{16+j//2}, v{O+j}, v{O+j+1}")
    def st(j):
        off = (8*(j//4) + j % 4)*256
        so = "0" if off < 4096 else "s97"
        return f"buffer_store_short{'_d16_hi' if j & 1 else ''} v{16+j//2}, v247, s[52:55], {so} offen offset:{off % 4096}"
    a(f"s_cmp_eq_u32 s{S_GRP}, 0\ns_cbranch_scc1 L2_e4\ns_mov_b32 exec_lo, 0")
    a(st(7)); a("s_mov_b64 exec, -1\ns_branch L2_e5\nL2_e4:")
    for j in range(8): a(st(j))
    a("L2_e5:")
    for j in range(8, 16): a(st(j))
    a("L2_exit:\ns_endpgm")


HEAD = """; edge-featured MPNN: K1 = edge partition by dst bucket + A = x@W1a table + operand prep ; K2 = gather/silu/segment-sum/final GEMM
; @launch kernel=k1_kernel grid=({g1},1,1) block=(512,1,1) lds={l1}
; @launch kernel=k2_kernel grid=({g2},1,1) block=(512,1,1) lds={l2}
.amdgcn_target "amdgcn-amd-amdhsa--gfx950"
.text
"""
KD = """.amdhsa_kernel {name}
  .amdhsa_next_free_vgpr {v}
  .amdhsa_next_free_sgpr 102
  .amdhsa_accum_offset {v}
  .amdhsa_group_segment_fixed_size 0
  .amdhsa_kernarg_size 88
  .amdhsa_user_sgpr_count 2
  .amdhsa_user_sgpr_kernarg_segment_ptr 1
  .amdhsa_system_sgpr_workgroup_id_x 1
.end_amdhsa_kernel
"""


def build():
    out = HEAD.format(g1=K1_GRID, l1=65792, g2=NB, l2=K2_LDS)
    for name, fn in (("k1_kernel", k1), ("k2_kernel", k2)):
        a = Asm(); fn(a)
        out += f".globl {name}\n.p2align 8\n.type {name},@function\n" + a.text(verbose=OPT.get("v", 0))
    out += '.section .rodata,"a"\n.p2align 6\n' + KD.format(name="k1_kernel", v=120) + ".p2align 6\n" + KD.format(name="k2_kernel", v=256)
    return out


if __name__ == "__main__":
    open(sys.argv[1], "w").write(build())
```

```python
import sys, struct
from asmlib import Asm, vr, sr

N, E = 12500, 400000
NPB, NB = 49, 256
CH, CE = 125, 3200
ATAB = 0
AROWS = 25088
REC = 13 << 20
OFF = 19 << 20
W1BOP = 20 << 20
W2OP = W1BOP + 65536
MAXA = W2OP + 65536
MAXE = MAXA + 1024
NG = 98
K1_GRID = CH + NG + 2
K1_LDS = 131072 + 64

def f2u(x): return struct.unpack("<I", struct.pack("<f", x))[0]
NLOG2E = f2u(-1.4426950408889634)
NLN2 = f2u(-0.6931471805599453)

OPT = dict(prio=1, prio_at=32)
for a_ in sys.argv[2:]:
    k_, v_ = a_.split("="); OPT[k_] = int(v_)


def srd(a, d, base, add, size, stride=0):
    if add is None:
        a(f"s_mov_b32 s{d}, s{base}\ns_mov_b32 s{d+1}, s{base+1}")
    else:
        a(f"s_add_u32 s{d}, s{base}, {add}\ns_addc_u32 s{d+1}, s{base+1}, 0")
    if stride: a(f"s_or_b32 s{d+1}, s{d+1}, {stride << 16}")
    a(f"s_mov_b32 s{d+2}, {size}\ns_mov_b32 s{d+3}, 0x00020000")


def ldargs(a):
    a("""s_load_dwordx16 s[4:19], s[0:1], 0
    s_load_dwordx4 s[20:23], s[0:1], 64
    s_load_dwordx2 s[24:25], s[0:1], 80""")
X, EA_, SRC, DST, W1, B1, W2, B2, OUT, DBG, WS = 4, 6, 8, 10, 12, 14, 16, 18, 20, 22, 24


def dpp_red(a, op, v, full=True):
    for m in ("row_shr:1", "row_shr:2", "row_shr:4", "row_shr:8"):
        a(f"{op}_dpp v{v}, v{v}, v{v} {m} row_mask:0xf bank_mask:0xf bound_ctrl:0")
    a(f"{op}_dpp v{v}, v{v}, v{v} row_bcast:15 row_mask:0xa bank_mask:0xf")
    if full: a(f"{op}_dpp v{v}, v{v}, v{v} row_bcast:31 row_mask:0xc bank_mask:0xf")


STAMPS = 24 << 20
def stamp(a, k, reg):
    if not OPT.get("stamp"): return
    a(f"s_memrealtime s[100:101]\ns_waitcnt lgkmcnt(0)\nv_writelane_b32 v{reg}, s100, {k}")
    a(f"s_memtime s[100:101]\ns_waitcnt lgkmcnt(0)\nv_writelane_b32 v{reg}, s100, {32+k}")
def stamp_dump(a, reg, tmp, kern):
    if not OPT.get("stamp"): return
    a("s_mov_b64 exec, -1\ns_waitcnt vmcnt(0)")
    stamp(a, 31, reg)
    a(f"""s_lshl_b32 s96, s2, 3
    s_add_u32 s96, s96, s3
    s_lshl_b32 s96, s96, 8
    s_add_u32 s96, s96, {STAMPS + kern*(1 << 20)}""")
    srd(a, 44, WS, "s96", 256)
    a(f"""v_mbcnt_lo_u32_b32 v{tmp}, -1, 0
    v_mbcnt_hi_u32_b32 v{tmp}, -1, v{tmp}
    v_lshlrev_b32 v{tmp}, 2, v{tmp}
    buffer_store_dword v{reg}, v{tmp}, s[44:47], 0 offen""")
def lane63(a): a("s_mov_b32 exec_lo, 0\ns_mov_b32 exec_hi, 0x80000000")
def full(a): a("s_mov_b64 exec, -1")
def mfma(D, A, B, C): return f"v_mfma_f32_32x32x16_bf16 {vr(D,16)}, {vr(A,4)}, {vr(B,4)}, " + ("0" if C is None else vr(C, 16))


def k1(a):
    a("k1_kernel:")
    a(f"s_cmp_ge_u32 s2, {K1_GRID}\ns_cbranch_scc1 L1_exit2")
    if OPT.get("stamp"): a("v_mov_b32 v171, 0")
    stamp(a, 0, 171)
    ldargs(a)
    a(f"""v_and_b32 v1, 63, v0
    v_lshrrev_b32 v2, 6, v0
    s_nop 0
    v_readfirstlane_b32 s3, v2
    s_cmp_ge_u32 s2, {CH}
    s_cbranch_scc1 L1_gemm""")
    HIST, START, MAXW = 40960, 41984, 43008
    a(f"""v_lshlrev_b32 v2, 2, v0
    v_mov_b32 v3, 0
    ds_write_b32 v2, v3 offset:{HIST}
    ds_write_b32 v2, v3 offset:{MAXW}
    v_mov_b32 v60, 0
    v_mov_b32 v61, 1
    s_mul_i32 s26, s2, {CE*4}
    s_add_u32 s27, s26, {CE*2}
    s_lshl_b32 s52, s26, 1
    s_add_u32 s53, s52, {CE*4}
    v_lshlrev_b32 v3, 4, v0
    v_lshlrev_b32 v20, 5, v0
    v_cmp_gt_u32 vcc, {CE//8}, v0
    s_waitcnt lgkmcnt(0)""")
    srd(a, 28, DST, None, E*4); srd(a, 32, SRC, None, E*4); srd(a, 36, EA_, None, E*8)
    a(f"""s_and_saveexec_b64 s[54:55], vcc
    s_mov_b64 s[54:55], exec
    s_cbranch_execz L1_p1
    buffer_load_dwordx4 v[4:7], v3, s[28:31], s26 offen
    buffer_load_dwordx4 v[8:11], v3, s[28:31], s27 offen
    buffer_load_dwordx4 v[12:15], v3, s[32:35], s26 offen
    buffer_load_dwordx4 v[16:19], v3, s[32:35], s27 offen
    buffer_load_dwordx4 v[24:27], v20, s[36:39], s52 offen
    buffer_load_dwordx4 v[28:31], v20, s[36:39], s52 offen offset:16
    buffer_load_dwordx4 v[32:35], v20, s[36:39], s53 offen
    buffer_load_dwordx4 v[36:39], v20, s[36:39], s53 offen offset:16
    L1_p1:
    s_mov_b64 exec, -1
    s_mul_i32 s26, s2, {CE*12}
    s_add_u32 s26, s26, {REC}""")
    srd(a, 40, WS, "s26", CE*12)
    a(f"s_lshl_b32 s26, s2, 10\ns_add_u32 s26, s26, {OFF}")
    srd(a, 44, WS, "s26", 1024)
    srd(a, 48, WS, MAXE, CH*4)
    a("""s_barrier
    s_mov_b64 exec, s[54:55]
    s_cbranch_execz L1_p2
    s_waitcnt vmcnt(6)""")
    stamp(a, 1, 171)
    for k in range(8):
        a(f"""v_mul_u32_u24 v21, 10700, v{4+k}
        v_lshrrev_b32 v21, 19, v21
        v_lshlrev_b32 v{40+k}, 2, v21
        ds_add_rtn_u32 v{48+k}, v{40+k}, v61 offset:{HIST}
        v_mul_u32_u24 v21, {NPB}, v21
        v_sub_u32 v{4+k}, v{4+k}, v21""")
    a("s_waitcnt vmcnt(4)")
    for k in range(8): a(f"v_lshl_or_b32 v{12+k}, v{4+k}, 16, v{12+k}")
    a("s_waitcnt vmcnt(0)")
    for k in range(8):
        a(f"v_dot2_f32_bf16 v{4+k}, v{24+2*k}, v{24+2*k}, 0")
    a("s_nop 2")
    for k in range(8):
        a(f"v_dot2_f32_bf16 v{4+k}, v{25+2*k}, v{25+2*k}, v{4+k}")
    a("s_nop 2")
    for k in range(0, 8, 2): a(f"v_max3_u32 v60, v60, v{4+k}, v{5+k}")
    a("L1_p2:")
    full(a)
    dpp_red(a, "v_max_u32", 60)
    a("v_mov_b32 v21, 0")
    lane63(a)
    a(f"ds_max_u32 v21, v60 offset:{MAXW}")
    full(a)
    a(f"""v_lshlrev_b32 v2, 4, v1
    s_waitcnt lgkmcnt(0)
    s_barrier
    ds_read_b128 v[4:7], v2 offset:{HIST}
    s_waitcnt lgkmcnt(0)
    v_add_u32 v8, v4, v5
    v_add_u32 v9, v8, v6
    v_add_u32 v10, v9, v7
    v_mov_b32 v11, v10""")
    dpp_red(a, "v_add_u32", 11)
    a(f"""v_sub_u32 v56, v11, v10
    v_add_u32 v57, v56, v4
    v_add_u32 v58, v56, v8
    v_add_u32 v59, v56, v9
    ds_write_b128 v2, v[56:59] offset:{START}
    s_cmp_lg_u32 s3, 0
    s_cbranch_scc1 L1_p3
    v_lshl_or_b32 v4, v4, 16, v56
    v_lshl_or_b32 v5, v5, 16, v57
    v_lshl_or_b32 v6, v6, 16, v58
    v_lshl_or_b32 v7, v7, 16, v59
    buffer_store_dwordx4 v[4:7], v2, s[44:47], 0 offen sc1
    L1_p3:
    s_waitcnt lgkmcnt(0)
    s_mov_b64 exec, s[54:55]
    s_cbranch_execz L1_p4""")
    for k in range(8): a(f"ds_read_b32 v{40+k}, v{40+k} offset:{START}")
    for k in range(8):
        a(f"""s_waitcnt lgkmcnt({7+k})
        v_add_u32 v{40+k}, v{40+k}, v{48+k}
        v_mul_u32_u24 v{40+k}, 12, v{40+k}
        ds_write2_b32 v{40+k}, v{24+2*k}, v{25+2*k} offset0:0 offset1:1
        ds_write_b32 v{40+k}, v{12+k} offset:8""")
    a("L1_p4:")
    stamp(a, 2, 171)
    full(a)
    a("""s_waitcnt lgkmcnt(0)
    s_barrier""")
    for i in range(5): a(f"ds_read_b128 {vr(4+4*i,4)}, v3 offset:{8192*i}")
    a(f"v_mov_b32 v2, 0\nds_read_b32 v24, v2 offset:{MAXW}")
    for i in range(5):
        a(f"s_mov_b32 s26, {8192*i}\ns_waitcnt lgkmcnt({5-i})\nbuffer_store_dwordx4 {vr(4+4*i,4)}, v3, s[40:43], s26 offen sc1")
    a(f"""s_lshl_b32 s26, s2, 2
    v_cmp_eq_u32 vcc, 0, v0
    s_and_saveexec_b64 s[54:55], vcc
    s_cbranch_execz L1_exit
    s_waitcnt lgkmcnt(0)
    buffer_store_dword v24, v2, s[48:51], s26 offen sc1
    s_branch L1_exit""")

    WOP = 56
    XL, OL, MX = 65536, 98304, 131072
    a(f"""L1_gemm:
    s_sub_u32 s26, s2, {CH}
    s_cmp_eq_u32 s26, {NG+1}
    s_cbranch_scc1 L1_w2
    v_lshrrev_b32 v6, 5, v1
    v_and_b32 v7, 31, v1
    v_lshlrev_b32 v18, 2, v6
    v_xor_b32 v18, v18, v7
    v_lshlrev_b32 v18, 4, v18
    v_lshl_or_b32 v24, v6, 9, v18
    v_xor_b32 v29, 128, v24
    v_lshrrev_b32 v18, 4, v1
    v_and_b32 v19, 15, v1""")
    for ii in range(4):
        a(f"""v_add_u32 v20, {4*ii}, v18
        v_xor_b32 v20, v20, v19
        v_lshlrev_b32 v20, 4, v20
        v_lshl_or_b32 v{25+ii}, v18, 8, v20""")
    a(f"""v_mov_b32 v2, 0
    v_mov_b32 v3, {MX}
    ds_write_b32 v3, v2
    s_lshl_b32 s31, s3, 12
    s_lshl_b32 s29, s26, 15
    s_add_u32 s29, s29, s31
    s_add_u32 s31, s31, {XL}
    s_mov_b32 m0, s31
    s_lshl_b32 s31, s3, 13
    s_cmp_ge_u32 s26, {NG}
    s_cselect_b32 s30, {128*512}, 0
    s_add_u32 s30, s30, s31
    s_waitcnt lgkmcnt(0)""")
    srd(a, 32, W1, None, 260*512); srd(a, 36, X, None, N*256)
    for ii in range(4):
        a(f"buffer_load_dwordx4 v{25+ii}, s[36:39], s29 offen lds")
        if ii < 3: a("s_add_u32 m0, m0, 1024\ns_add_u32 s29, s29, 1024")
    a("s_mov_b32 m0, s31\ns_nop 0")
    for ii in range(8):
        a(f"buffer_load_dwordx4 v{24 if ii % 2 == 0 else 29}, s[32:35], s30 offen lds")
        if ii < 7: a("s_add_u32 m0, m0, 1024\ns_add_u32 s30, s30, 1024")
    a(f"""s_and_b32 s40, s3, 3
    s_lshr_b32 s41, s3, 2
    v_bfe_u32 v18, v1, 2, 2
    v_lshl_add_u32 v19, v6, 3, v18
    v_lshlrev_b32 v19, 9, v19
    v_bfe_u32 v20, v1, 4, 1
    v_lshlrev_b32 v20, 5, v20
    v_and_b32 v21, 3, v1
    v_lshl_add_u32 v20, v21, 3, v20
    v_add_u32 v19, v19, v20
    s_lshl_b32 s42, s40, 1
    v_xor_b32 v20, s42, v18
    v_lshl_add_u32 v8, v20, 6, v19
    v_xor_b32 v20, 1, v20
    v_lshl_add_u32 v9, v20, 6, v19
    s_lshl_b32 s42, s41, 14
    s_add_u32 s42, s42, {XL}
    v_lshlrev_b32 v19, 8, v7
    v_and_b32 v20, 15, v1
    v_xor_b32 v20, v20, v6
    v_lshl_add_u32 v10, v20, 4, v19
    v_add_u32 v10, s42, v10""")
    for s in range(1, 8): a(f"v_xor_b32 v{10+s}, {32*s}, v10")
    srd(a, 44, WS, None, N*512)
    a(f"""s_lshl_b32 s42, s26, 1
    s_add_u32 s42, s42, s41
    s_lshl_b32 s42, s42, 15
    s_lshl_b32 s43, s40, 7
    s_add_u32 s48, s42, s43
    s_lshl_b32 s42, s3, 12
    s_add_u32 s42, s42, {OL}
    v_lshlrev_b32 v4, 9, v6
    v_lshl_add_u32 v4, v7, 2, v4
    v_add_u32 v4, s42, v4
    v_lshl_add_u32 v168, v1, 4, s42
    v_lshrrev_b32 v169, 3, v1
    v_lshlrev_b32 v169, 9, v169
    v_and_b32 v18, 7, v1
    v_lshl_add_u32 v169, v18, 4, v169
    s_mov_b32 s52, {NLOG2E}
    s_mov_b32 s53, {NLOG2E}
    v_mov_b32 v5, 0""")
    a("s_waitcnt vmcnt(0)\ns_barrier")
    stamp(a, 1, 171)
    def wread(t):
        for s in range(8):
            for hf in range(2):
                a(f"ds_read_b64_tr_b16 {vr(WOP+32*t+4*s+2*hf,2)}, v{8+t} offset:{8192*s+2048*hf}")
    XO = (24, 136)
    for s in range(8): a(f"ds_read_b128 {vr(XO[0]+4*s,4)}, v{10+s}")
    wread(0); wread(1)
    a(f"s_cmp_ge_u32 s26, {NG}\ns_cbranch_scc1 L1_w1b")
    for s in range(8): a(f"ds_read_b128 {vr(XO[1]+4*s,4)}, v{10+s} offset:8192")
    GD0, GD1 = 8, 120
    for nt in range(2):
        if nt == 0: a("s_waitcnt lgkmcnt(15)")
        for s in range(8): a(mfma(GD0, XO[nt]+4*s, WOP+4*s, None if s == 0 else GD0))
        if nt == 0: a("s_waitcnt lgkmcnt(0)")
        for s in range(8): a(mfma(GD1, XO[nt]+4*s, WOP+32+4*s, None if s == 0 else GD1))
        for j in range(0, 16, 2): a(f"v_pk_mul_f32 {vr(GD0+j,2)}, {vr(GD0+j,2)}, s[52:53]")
        for j in range(0, 16, 2): a(f"v_pk_mul_f32 {vr(GD1+j,2)}, {vr(GD1+j,2)}, s[52:53]")
        for j in range(16):
            a(f"""v_cvt_pk_bf16_f32 v{24+j}, v{GD0+j}, v{GD1+j}
            ds_write_b32 v4, v{24+j} offset:{128*(8*(j//4)+j%4)}
            v_pk_max_i16 v5, v5, v{24+j}""")
        a("s_waitcnt lgkmcnt(0)")
        for i in range(4): a(f"ds_read_b128 {vr(40+4*i,4)}, v168 offset:{1024*i}")
        for i in range(4):
            a(f"s_waitcnt lgkmcnt({3-i})\nbuffer_store_dwordx4 {vr(40+4*i,4)}, v169, s[44:47], s48 offen sc1\ns_add_u32 s48, s48, 4096")
    stamp(a, 2, 171)
    a("""v_lshlrev_b32 v6, 16, v5
    v_and_b32 v5, 0xffff0000, v5
    v_max_u32 v5, v5, v6""")
    dpp_red(a, "v_max_u32", 5)
    lane63(a)
    a("ds_max_u32 v3, v5")
    full(a)
    srd(a, 44, WS, MAXA, NG*4)
    a(f"""s_lshl_b32 s26, s26, 2
    s_waitcnt lgkmcnt(0)
    s_barrier
    v_cmp_eq_u32 vcc, 0, v0
    s_and_saveexec_b64 s[54:55], vcc
    s_cbranch_execz L1_exit
    ds_read_b32 v6, v3
    s_waitcnt lgkmcnt(0)
    buffer_store_dword v6, v2, s[44:47], s26 offen sc1
    s_branch L1_exit""")
    a(f"""L1_w1b:
    s_lshl_b32 s43, s40, 14
    v_lshlrev_b32 v2, 4, v1""")
    srd(a, 44, WS, W1BOP, 65536)
    a("s_cmp_lg_u32 s41, 0\ns_cbranch_scc1 L1_exit\ns_waitcnt lgkmcnt(0)")
    for q in range(16):
        a(f"buffer_store_dwordx4 {vr(WOP+4*q,4)}, v2, s[44:47], s43 offen sc1\ns_add_u32 s43, s43, 1024")
    a("s_branch L1_exit")
    a(f"""L1_w2:
    v_lshlrev_b32 v2, 4, v1
    s_lshl_b32 s29, s3, 13
    s_mov_b32 m0, s29
    s_waitcnt lgkmcnt(0)""")
    srd(a, 32, W2, None, 65536)
    for ii in range(8):
        a("buffer_load_dwordx4 v2, s[32:35], s29 offen lds")
        if ii < 7: a("s_add_u32 s29, s29, 1024\ns_add_u32 m0, m0, 1024")
    a(f"""s_and_b32 s40, s3, 3
    s_lshr_b32 s41, s3, 2
    v_bfe_u32 v5, v1, 2, 1
    v_lshlrev_b32 v5, 5, v5
    v_bfe_u32 v6, v1, 3, 1
    v_add_u32 v5, v5, v6
    v_lshrrev_b32 v6, 5, v1
    v_lshl_add_u32 v5, v6, 2, v5
    v_lshlrev_b32 v5, 8, v5
    v_bfe_u32 v6, v1, 4, 1
    v_lshl_add_u32 v5, v6, 5, v5
    v_and_b32 v6, 3, v1
    v_lshl_add_u32 v5, v6, 3, v5
    s_lshl_b32 s42, s40, 6
    s_lshl_b32 s43, s41, 15
    s_add_u32 s42, s42, s43
    v_add_u32 v5, s42, v5
    s_lshl_b32 s43, s40, 14
    s_lshl_b32 s42, s41, 13
    s_add_u32 s43, s43, s42""")
    srd(a, 44, WS, W2OP, 65536)
    a("s_waitcnt vmcnt(0)\ns_barrier")
    for s in range(8):
        for hf in range(2):
            row = 64*(s//4) + 16*((s//2) % 2) + 8*(s % 2) + 2*hf
            a(f"ds_read_b64_tr_b16 {vr(WOP+4*s+2*hf,2)}, v5 offset:{256*row}")
    a("s_waitcnt lgkmcnt(0)")
    for s in range(8):
        a(f"buffer_store_dwordx4 {vr(WOP+4*s,4)}, v2, s[44:47], s43 offen sc1\ns_add_u32 s43, s43, 1024")
    a("L1_exit:")
    stamp_dump(a, 171, 170, 0)
    a("L1_exit2:\ns_endpgm")


CAPT = 60
L_IDX, L_QA, L_CNT, L_MISC, L_DEG, L_EA, L_P, L_BT, L_STG = 256, 8448, 10496, 10752, 10816, 11264, 26624, 57344, 87040
BTS = 576
L_NULL = L_BT + NPB*BTS
K2_LDS = L_STG + 65536
D0, D1, EE, TT, HQ0, HQ1, S0, S1 = 0, 16, 32, 48, 56, 60, 64, 80
ALO, AHI, ID0, ID1, A2, B2R, PP, IP = 96, (104, 112), 120, 124, (128, 132), (136, 140), 144, 148
QV, QST, RA, IB, EB, QB, PB = (156, 157), 158, 159, 163, 164, 165, 166
TID, LANE, DEG, VONE = 167, 168, 169, 170
RECR, OFR = 176, 224
MASK = 56
S_BASE, S_LIM, S_IMASK, S_SLOW, S_N, S_T0, S_FIRST, S_K, S_MAXC, S_SAFE, S_PI, S_STG, S_BETA, S_NEG = range(80, 94)
S_CG, S_GRP = 26, 27


def valu_half(D, hq, safe):
    L = [f"v_exp_f32 v{EE+j}, v{D+j}" for j in range(16)]
    p2 = lambda x: vr(x, 2)
    if not safe:
        for q in range(2): L.append(f"v_pk_add_f32 {p2(TT+4*q)}, {p2(EE+8*q)}, 1.0 op_sel_hi:[1,0]")
        for s in range(1, 4):
            for q in range(2):
                n = D+8*q if s == 1 else TT+4*q+2
                L.append(f"v_pk_fma_f32 {p2(TT+4*q+2)}, {p2(n)}, {p2(EE+8*q+2*s)}, {p2(n)}")
            for q in range(2):
                L.append(f"v_pk_fma_f32 {p2(TT+4*q+2)}, {p2(D+8*q+2*s)}, {p2(TT+4*q)}, {p2(TT+4*q+2)}")
            for q in range(2):
                L.append(f"v_pk_fma_f32 {p2(TT+4*q)}, {p2(TT+4*q)}, {p2(EE+8*q+2*s)}, {p2(TT+4*q)}")
        for q in range(2):
            for p in range(2): L.append(f"v_rcp_f32 v{TT+4*q+p}, v{TT+4*q+p}")
        for q in range(2): L.append(f"v_pk_mul_f32 {p2(TT+4*q+2)}, {p2(TT+4*q+2)}, {p2(TT+4*q)}")
    else:
        for j in range(0, 16, 2): L.append(f"v_pk_add_f32 {p2(EE+j)}, {p2(EE+j)}, 1.0 op_sel_hi:[1,0]")
        for j in range(16): L.append(f"v_rcp_f32 v{EE+j}, v{EE+j}")
        for q in range(2): L.append(f"v_pk_mul_f32 {p2(TT+4*q+2)}, {p2(D+8*q)}, {p2(EE+8*q)}")
        for s in range(1, 4):
            for q in range(2):
                L.append(f"v_pk_fma_f32 {p2(TT+4*q+2)}, {p2(D+8*q+2*s)}, {p2(EE+8*q+2*s)}, {p2(TT+4*q+2)}")
    for q in range(2): L.append(f"v_cvt_pk_bf16_f32 v{hq+q}, v{TT+4*q+2}, v{TT+4*q+3}")
    return L


def weave(V, M, pos):
    out = []
    for i, x in enumerate(V):
        out += [m for m, p in zip(M, pos) if p == i]
        out.append(x)
    return out


def block(a, par, safe):
    M1 = [mfma(D1, AHI[par], ID0, None), mfma(D1, AHI[par]+4, ID1, D1), mfma(D1, A2[par], B2R[1], D1)]
    if par == 0: M1.append(mfma(S1, HQ1, PP, S1))
    M2 = [mfma(D0, ALO, ID0, None), mfma(D0, ALO+4, ID1, D0), mfma(D0, A2[par ^ 1], B2R[0], D0)]
    if par == 1: M2.append(mfma(S0, HQ0, PP, S0))
    pos = [1, 4, 7, 10]
    h1 = weave(valu_half(D0, HQ0+2*par, safe), M1, pos)
    h2 = weave(valu_half(D1, HQ1+2*par, safe), M2, pos)
    extra = [f"v_add_u32 v{QV[par]}, v{QV[par]}, v{QST}"]
    if par == 0:
        extra += [f"v_add_u32 v{IB}, 256, v{IB}", f"v_add_u32 v{EB}, 512, v{EB}",
                  f"v_add_u32 v{QB}, 64, v{QB}", f"v_add_u32 v{PB}, 1024, v{PB}"]
    L = h1 + extra + h2
    if OPT["prio"]:
        L.insert(OPT["prio_at"], "s_setprio 1"); L.append("s_setprio 0")
    a("\n".join(L))


def dma(a, par):
    a(f"s_add_u32 m0, s{S_STG}, {4096*par}")
    for u in range(4):
        a(f"buffer_load_dwordx4 {vr(IP+2*u,2)}, s[36:39], 0 idxen offen lds")
        if u < 3: a("s_add_u32 m0, m0, 1024")


def rd_idx(a, t):
    for u in range(4): a(f"ds_read_b32 v{IP+2*u}, v{IB} offset:{128*t+32*u}")


def rd_rows(a, par):
    for s in range(4):
        d = ALO+4*s if s < 2 else AHI[par]+4*(s-2)
        a(f"ds_read_b128 {vr(d,4)}, v{RA+s} offset:{4096*par}")


def group(a, par):
    a("s_waitcnt vmcnt(4)")
    rd_rows(a, par)
    a(f"ds_read_b64_tr_b16 {vr(B2R[1],2)}, v{QV[par^1]} offset:64")
    a(f"ds_read_b64_tr_b16 {vr(B2R[0],2)}, v{QV[par]}")
    a(f"ds_read2st64_b32 {vr(A2[par]+2,2)}, v{EB} offset0:{2+par} offset1:{2+par}")
    if par == 0: a(f"ds_read_b128 {vr(PP,4)}, v{PB}")
    a(f"s_cmp_gt_u32 s{S_N}, 3\ns_cselect_b32 s38, {0 if OPT.get('nodma') else AROWS}, 0")
    a(f"s_waitcnt lgkmcnt({4 if par == 0 else 3})")
    dma(a, par)
    rd_idx(a, 5+par)
    a(f"ds_read_b32 v{QV[par^1]}, v{QB} offset:{32*(3+par)}")
    a("s_waitcnt lgkmcnt(0)")


def main_loop(a, safe, tag):
    a(f"L2_loop{tag}:")
    block(a, 0, safe)
    a(f"s_sub_u32 s{S_N}, s{S_N}, 1\ns_cmp_eq_u32 s{S_N}, 0\ns_cbranch_scc1 L2_end_odd")
    group(a, 0)
    block(a, 1, safe)
    a(f"s_sub_u32 s{S_N}, s{S_N}, 1\ns_cmp_eq_u32 s{S_N}, 0\ns_cbranch_scc1 L2_end_even")
    group(a, 1)
    a(f"s_branch L2_loop{tag}")


def k2(a):
    a("k2_kernel:")
    a(f"s_cmp_ge_u32 s2, {NB}\ns_cbranch_scc1 L2_exit2")
    if OPT.get("stamp"): a("v_mov_b32 v253, 0")
    stamp(a, 0, 253)
    ldargs(a)
    a(f"""v_mov_b32 v{TID}, v0
    v_and_b32 v{LANE}, 63, v0
    v_lshrrev_b32 v2, 6, v0
    v_mov_b32 v{DEG}, 0
    v_readfirstlane_b32 s3, v2
    v_mov_b32 v{VONE}, 1
    s_mov_b32 s{S_BASE}, 0
    s_mov_b32 s{S_LIM}, 48
    s_mov_b32 s{S_IMASK}, 15
    s_mov_b32 s{S_SLOW}, 0
    s_mov_b32 s{S_FIRST}, 1
    s_mov_b32 s{S_BETA}, 0
    s_and_b32 s{S_CG}, s3, 3
    s_lshr_b32 s{S_GRP}, s3, 2
    s_lshl_b32 s{S_STG}, s3, 13
    s_add_u32 s{S_STG}, s{S_STG}, {L_STG}
    s_mul_i32 s{S_NEG}, s2, {NPB}""")
    L = LANE
    a(f"""v_lshrrev_b32 v3, 4, v{L}
    v_and_b32 v4, 15, v{L}
    s_and_b32 s28, s3, 1
    s_lshl_b32 s28, s28, 3
    v_add_u32 v5, s28, v3
    v_xor_b32 v6, v5, v4
    v_lshlrev_b32 v6, 4, v6
    v_lshl_or_b32 v6, v3, 8, v6
    v_add_u32 v5, 4, v5
    v_xor_b32 v7, v5, v4
    v_lshlrev_b32 v7, 4, v7
    v_lshl_or_b32 v7, v3, 8, v7
    v_lshrrev_b32 v8, 4, v{TID}
    v_lshlrev_b32 v9, 10, v8
    s_lshl_b32 s28, s2, 2
    v_add_u32 v9, s28, v9
    s_lshl_b32 s29, s3, 11
    s_add_u32 s30, s29, {L_STG}
    s_mov_b32 m0, s30
    s_lshl_b32 s30, s{S_NEG}, 8
    s_add_u32 s94, s30, s29
    s_add_u32 s95, s94, 1024
    s_waitcnt lgkmcnt(0)""")
    srd(a, 40, X, None, N*256); srd(a, 28, WS, OFF, CH*1024)
    a(f"""buffer_load_dwordx4 v6, s[40:43], s94 offen lds
    s_add_u32 m0, m0, 1024
    s_mov_b32 s96, 32768
    buffer_load_dwordx4 v7, s[40:43], s95 offen lds
    s_mov_b32 s97, 65536
    s_mov_b32 s98, 98304
    buffer_load_dword v{OFR}, v9, s[28:31], 0 offen
    buffer_load_dword v{OFR+1}, v9, s[28:31], s96 offen
    buffer_load_dword v{OFR+2}, v9, s[28:31], s97 offen
    buffer_load_dword v{OFR+3}, v9, s[28:31], s98 offen""")
    srd(a, 44, WS, MAXA, NG*4); srd(a, 48, WS, MAXE, CH*4); srd(a, 52, W1, None, 260*512)
    a(f"""v_lshlrev_b32 v10, 4, v{L}
    v_lshlrev_b32 v11, 3, v{L}
    buffer_load_dwordx4 v[240:243], v10, s[44:47], 0 offen
    buffer_load_dwordx2 v[244:245], v11, s[48:51], 0 offen
    v_and_b32 v11, 1, v{L}
    v_lshlrev_b32 v11, 5, v11
    v_bfe_u32 v12, v{L}, 1, 4
    v_add_u32 v11, v11, v12
    v_lshlrev_b32 v11, 1, v11
    v_lshrrev_b32 v12, 5, v{L}
    v_lshl_add_u32 v11, v12, 10, v11
    s_lshl_b32 s96, s{S_CG}, 7
    s_add_u32 s97, s96, {256*512}""")
    srd(a, 44, B1, None, 512)
    a(f"""buffer_load_ushort v246, v11, s[52:55], s97 offen
    buffer_load_ushort v247, v11, s[52:55], s97 offen offset:512
    buffer_load_ushort v248, v11, s[52:55], s97 offen offset:32
    buffer_load_ushort v249, v11, s[52:55], s97 offen offset:544
    v_and_b32 v11, 31, v{L}
    v_lshlrev_b32 v11, 1, v11
    buffer_load_ushort v250, v11, s[44:47], s96 offen
    buffer_load_ushort v251, v11, s[44:47], s96 offen offset:64""")
    srd(a, 32, WS, REC, CH*CE*12); srd(a, 36, WS, None, AROWS, stride=512)
    a(f"s_cmp_lg_u32 s{S_GRP}, 0\ns_cbranch_scc1 L2_batch")
    srd(a, 44, WS, W1BOP, 65536)
    a(f"s_lshl_b32 s96, s{S_CG}, 14")
    for q in range(16):
        if q % 4 == 0 and q: a("s_add_u32 s96, s96, 4096")
        a(f"buffer_load_dwordx4 {vr(64+4*q,4)}, v10, s[44:47], s96 offen offset:{1024*(q%4)}")
    a(f"""L2_batch:
    v_lshlrev_b32 v1, 4, v{TID}
    v_mov_b32 v12, -1
    v_mov_b32 v13, -1
    v_mov_b32 v14, -1
    v_mov_b32 v15, -1
    v_mov_b32 v16, 0
    v_mov_b32 v17, 0
    v_mov_b32 v18, 0
    v_mov_b32 v19, 0
    ds_write_b128 v1, v[12:15] offset:{L_IDX}""")
    for i in range(5): a(f"ds_write_b128 v1, v[16:19] offset:{L_CNT + 8192*i}")
    a(f"""v_cmp_gt_u32 vcc, {(L_BT-L_CNT)//16 - 2560}, v{TID}
    s_and_saveexec_b64 s[96:97], vcc
    ds_write_b128 v1, v[16:19] offset:{L_CNT + 8192*5}
    v_mov_b32 v12, {L_NULL}
    v_mov_b32 v13, {L_NULL}
    v_mov_b32 v14, {L_NULL}
    v_mov_b32 v15, {L_NULL}
    v_cmp_gt_u32 vcc, 128, v{TID}
    s_and_b64 exec, exec, vcc
    ds_write_b128 v1, v[12:15] offset:{L_QA}
    v_add_u32 v2, {L_NULL}, v1
    v_cmp_gt_u32 vcc, 36, v{TID}
    s_and_b64 exec, exec, vcc
    ds_write_b128 v2, v[16:19]
    s_mov_b64 exec, -1
    s_cmp_eq_u32 s{S_FIRST}, 0
    s_cbranch_scc1 L2_b1
    s_cmp_eq_u32 s{S_GRP}, 0
    s_cbranch_scc1 L2_b0
    s_waitcnt vmcnt(8)
    s_branch L2_b1
    L2_b0:
    s_waitcnt vmcnt(24)
    L2_b1:""")
    stamp(a, 1, 253)
    a(f"""v_and_b32 v2, 15, v{L}
    v_add_u32 v2, s{S_BASE}, v2
    s_add_u32 s96, s{S_BASE}, s{S_LIM}
    v_lshrrev_b32 v8, 4, v{TID}
    s_mov_b32 s97, {CE*12}
    v_mul_lo_u32 v8, v8, s97
    s_mov_b32 s{S_K}, 0""")
    for i in range(4):
        a(f"""v_lshrrev_b32 v{4+i}, 16, v{OFR+i}
        v_min_u32 v{4+i}, s96, v{4+i}
        s_bitcmp1_b32 s{S_IMASK}, {i}
        s_cselect_b32 s98, -1, 0
        v_and_b32 v{4+i}, s98, v{4+i}
        v_and_b32 v3, 0xffff, v{OFR+i}
        v_add_u32 v3, v3, v2
        v_mad_u32_u24 v{12+i}, v3, 12, v8
        v_add_u32 v8, {32*CE*12}, v8""")
    for rnd in range(3):
        if rnd: a("v_add_u32 v2, 16, v2")
        for i in range(4):
            k = 4*rnd + i
            a(f"""v_cmp_lt_u32 {sr(MASK+2*k,2)}, v2, v{4+i}
            s_mov_b64 exec, {sr(MASK+2*k,2)}
            s_cbranch_execz L2_r{k}
            buffer_load_dwordx3 {vr(RECR+4*k,3)}, v{12+i}, s[32:35], 0 offen offset:{192*rnd}
            s_add_u32 s{S_K}, s{S_K}, 1
            L2_r{k}:
            s_mov_b64 exec, -1""")
    a(f"""s_waitcnt lgkmcnt(0)
    s_barrier
    s_cmp_eq_u32 s{S_FIRST}, 0
    s_cbranch_scc1 L2_rank0""")
    for n in range(12, 0, -1):
        a(f"s_cmp_lt_u32 s{S_K}, {n}\ns_cbranch_scc1 L2_w{n}\ns_waitcnt vmcnt({n})\ns_branch L2_wd\nL2_w{n}:")
    a("s_waitcnt vmcnt(0)\nL2_wd:")
    stamp(a, 2, 253)
    a(f"""v_lshrrev_b32 v2, 16, v{OFR}
    v_lshrrev_b32 v3, 16, v{OFR+1}
    v_lshrrev_b32 v4, 16, v{OFR+2}
    v_lshrrev_b32 v5, 16, v{OFR+3}
    v_max3_u32 v2, v2, v3, v4
    v_max_u32 v2, v2, v5""")
    dpp_red(a, "v_max_u32", 2)
    a("v_mov_b32 v3, 0")
    lane63(a); a(f"ds_max_u32 v3, v2 offset:{L_MISC+4}"); full(a)
    a(f"""s_mov_b32 s94, {NLOG2E}
    s_mov_b32 s95, {NLOG2E}
    s_cmp_lg_u32 s{S_GRP}, 0
    s_cbranch_scc1 L2_stat""")
    a(f"""v_and_b32 v171, 31, v{L}
    v_lshrrev_b32 v172, 5, v{L}
    v_and_b32 v173, 15, v{L}
    v_xor_b32 v173, v173, v172
    v_lshlrev_b32 v173, 4, v173
    v_lshl_add_u32 v228, v171, 8, v173
    v_add_u32 v228, {L_STG}, v228""")
    for s in range(1, 8): a(f"v_xor_b32 v{228+s}, {32*s}, v228")
    a(f"""s_lshl_b32 s96, s{S_CG}, 7
    v_lshl_add_u32 v173, v171, 2, s96
    v_mul_u32_u24 v174, {4*BTS}, v172
    v_add_u32 v174, v174, v173
    v_add_u32 v174, {L_BT}, v174
    v_lshl_add_u32 v173, v172, 11, v173
    v_lshlrev_b32 v250, 16, v250
    v_lshlrev_b32 v251, 16, v251
    v_mul_f32 v252, s94, v250
    v_mul_f32 v254, s94, v251
    v_mov_b32 v175, 0
    s_add_u32 s96, s{S_NEG}, {N}
    s_lshl_b32 s96, s96, 9""")
    srd(a, 44, WS, "s96", NPB*512)
    for mt in range(2):
        for s in range(8): a(f"ds_read_b128 {vr(32+4*s,4)}, v{228+s} offset:{8192*mt}")
        for s in range(8):
            a(f"s_waitcnt lgkmcnt({7-s})")
            a(mfma(0, 32+4*s, 64+4*s, None if s == 0 else 0))
            a(mfma(16, 32+4*s, 96+4*s, None if s == 0 else 16))
        nj = 16 if mt == 0 else 10
        for j in range(0, nj, 2): a(f"v_pk_fma_f32 {vr(j,2)}, {vr(j,2)}, s[94:95], v[252:253] op_sel_hi:[1,1,0]")
        for j in range(0, nj, 2): a(f"v_pk_fma_f32 {vr(16+j,2)}, {vr(16+j,2)}, s[94:95], v[254:255] op_sel_hi:[1,1,0]")
        for j in range(16 if mt == 0 else 9):
            row = 32*mt + 8*(j//4) + j % 4
            if j % 4 == 0: a(f"s_mov_b32 s96, {(32*mt + 8*(j//4))*512}")
            a(f"v_cvt_pk_bf16_f32 v{32+j}, v{j}, v{16+j}")
            if mt == 1 and j == 8: a("s_mov_b32 exec_hi, 0")
            a(f"""ds_write_b32 v174, v{32+j} offset:{row*BTS}
            v_pk_max_i16 v175, v175, v{32+j}
            v_xor_b32 v{48+j}, 0x80008000, v{32+j}
            buffer_store_dword v{48+j}, v173, s[44:47], s96 offen offset:{512*(j%4)}""")
        if mt == 0: a("s_waitcnt lgkmcnt(0)")
    full(a)
    a("""v_lshlrev_b32 v2, 16, v175
    v_and_b32 v175, 0xffff0000, v175
    v_max_u32 v175, v175, v2""")
    dpp_red(a, "v_max_u32", 175)
    a("v_mov_b32 v3, 0")
    lane63(a); a(f"ds_max_u32 v3, v175 offset:{L_MISC}"); full(a)
    a("L2_stat:")
    stamp(a, 3, 253)
    for j in range(32): a(f"v_mov_b32 v{S0+j}, 0")
    a(f"""v_and_b32 v2, 31, v{L}
    v_lshrrev_b32 v3, 5, v{L}
    v_and_b32 v4, 1, v{L}
    v_lshlrev_b32 v4, 4, v4
    v_mov_b32 v5, 0x3f80
    v_lshlrev_b32 v5, v4, v5
    v_lshrrev_b32 v6, 1, v2
    v_lshlrev_b32 v7, 2, v3""")
    for s in range(2):
        for r in range(4):
            a(f"""v_add_u32 v8, {8*s + r}, v7
            v_cmp_eq_u32 vcc, v8, v6
            v_cndmask_b32 v{ID0+4*s+r}, 0, v5, vcc""")
    a(f"""v_bfe_u32 v8, v2, 2, 1
    v_lshrrev_b32 v9, 4, v2
    v_xor_b32 v8, v8, v3
    v_lshl_or_b32 v8, v8, 1, v9""")
    for q in range(2):
        a(f"""v_cmp_eq_u32 vcc, {q}, v8
        v_cndmask_b32 v{A2[0]+q}, 0, v5, vcc
        v_mov_b32 v{A2[1]+q}, v{A2[0]+q}""")
    for c in range(2):
        a(f"""v_lshlrev_b32 v10, 16, v{246+2*c}
        v_lshlrev_b32 v11, 16, v{247+2*c}
        v_mul_f32 v10, s94, v10
        v_mul_f32 v11, s94, v11
        v_cvt_pk_bf16_f32 v{B2R[c]+3}, v10, v11
        v_mul_f32 v{20+c}, v10, v10
        v_fmac_f32 v{20+c}, v11, v11
        v_lshlrev_b32 v12, 16, v{B2R[c]+3}
        v_and_b32 v13, 0xffff0000, v{B2R[c]+3}
        v_sub_f32 v10, v10, v12
        v_sub_f32 v11, v11, v13
        v_cvt_pk_bf16_f32 v{B2R[c]+2}, v10, v11""")
    a("v_max_u32 v20, v20, v21\nv_max3_u32 v240, v240, v241, v242\nv_max_u32 v240, v240, v243\nv_max_u32 v244, v244, v245")
    dpp_red(a, "v_max_u32", 20, full=False); dpp_red(a, "v_max_u32", 240); dpp_red(a, "v_max_u32", 244)
    a(f"""v_readlane_b32 s96, v20, 31
    v_readlane_b32 s97, v20, 63
    v_readlane_b32 s98, v244, 63
    v_readlane_b32 s99, v240, 63
    v_mov_b32 v171, s96
    v_add_f32 v171, s97, v171
    v_mul_f32 v171, s98, v171
    v_sqrt_f32 v171, v171
    v_add_f32 v171, s99, v171""")
    a(f"""v_bfe_u32 v8, v2, 2, 1
    v_lshlrev_b32 v8, 4, v8
    v_lshrrev_b32 v9, 4, v2
    v_lshl_or_b32 v8, v9, 3, v8
    v_and_b32 v10, 1, v2
    v_lshl_or_b32 v8, v10, 2, v8
    v_bfe_u32 v11, v2, 3, 1
    v_lshl_or_b32 v8, v11, 1, v8
    v_bfe_u32 v12, v2, 1, 1
    v_or_b32 v8, v8, v12
    v_lshl_or_b32 v10, v11, 1, v10
    v_lshl_or_b32 v10, v9, 2, v10
    v_xor_b32 v10, v10, v3
    v_lshlrev_b32 v10, 4, v10
    v_lshl_add_u32 v10, v8, 7, v10
    v_add_u32 v{RA}, s{S_STG}, v10
    v_lshlrev_b32 v172, 3, v8
    v_lshl_add_u32 v172, v3, 2, v172""")
    for s in range(1, 4): a(f"v_xor_b32 v{RA+s}, {32*s}, v{RA}")
    a(f"""v_bfe_u32 v8, v{L}, 4, 1
    v_lshlrev_b32 v9, 1, v8
    v_or_b32 v9, v9, v3
    v_and_b32 v10, 7, v{L}
    v_xor_b32 v9, v9, v10
    s_lshl_b32 s96, s{S_CG}, 7
    v_lshl_add_u32 v{IP+1}, v9, 4, s96
    v_xor_b32 v{IP+3}, 64, v{IP+1}
    v_mov_b32 v{IP+5}, v{IP+1}
    v_mov_b32 v{IP+7}, v{IP+3}
    v_lshlrev_b32 v8, 5, v8
    v_and_b32 v10, 3, v{L}
    v_lshl_add_u32 v8, v10, 3, v8
    v_add_u32 v{QST}, s96, v8
    v_bfe_u32 v8, v{L}, 2, 2
    v_lshl_add_u32 v173, v3, 2, v8
    v_lshlrev_b32 v173, 2, v173
    s_cmp_eq_u32 s{S_GRP}, 0
    s_cbranch_scc1 L2_rank1""")
    a(f"""L2_rank0:
    s_waitcnt vmcnt(0)
    s_branch L2_rank2
    L2_rank1:
    s_waitcnt vmcnt(25)
    L2_rank2:""")
    stamp(a, 5, 253)
    for k in range(12):
        a(f"""s_mov_b64 exec, {sr(MASK+2*k,2)}
        s_cbranch_execz L2_k{k}
        v_lshrrev_b32 v{k}, 14, v{RECR+4*k+2}
        ds_add_rtn_u32 v{RECR+4*k+3}, v{k}, v{VONE} offset:{L_CNT}
        L2_k{k}:""")
    a(f"""s_mov_b64 exec, -1
    v_lshlrev_b32 v20, 2, v{L}
    v_mov_b32 v21, 0
    s_waitcnt lgkmcnt(0)
    s_barrier
    ds_read_b32 v22, v20 offset:{L_CNT}
    ds_read_b64 v[24:25], v21 offset:{L_MISC}
    s_waitcnt lgkmcnt(1)
    v_add_u32 v23, 3, v22
    v_and_b32 v23, -4, v23
    v_mov_b32 v26, v23""")
    dpp_red(a, "v_add_u32", 26)
    a(f"""v_sub_u32 v27, v26, v23
    v_readlane_b32 s96, v26, 63
    v_readlane_b32 s97, v27, 17
    v_readlane_b32 s98, v27, 32
    s_cmp_eq_u32 s{S_FIRST}, 0
    s_cbranch_scc1 L2_s1
    s_waitcnt lgkmcnt(0)
    v_readfirstlane_b32 s{S_MAXC}, v25
    v_add_f32 v171, v171, v24
    v_mov_b32 v28, 0x41f00000
    v_cmp_lt_f32 vcc, v171, v28
    s_cmp_eq_u64 vcc, 0
    s_cselect_b32 s{S_SAFE}, 1, 0
    s_mov_b32 s{S_FIRST}, 0
    L2_s1:
    s_add_u32 s{S_PI}, s96, 64
    s_lshr_b32 s{S_PI}, s{S_PI}, 7
    s_add_u32 s97, s97, 63
    s_lshr_b32 s97, s97, 6
    s_max_u32 s{S_PI}, s{S_PI}, s97
    s_add_u32 s97, s98, 63
    s_lshr_b32 s97, s97, 6
    s_min_u32 s{S_PI}, s{S_PI}, s97
    s_lshl_b32 s97, s{S_PI}, 6
    s_max_u32 s97, s97, s98
    s_sub_u32 s97, s97, s98
    s_add_u32 s96, s96, s97
    s_add_u32 s96, s96, 31
    s_lshr_b32 s96, s96, 5
    v_mov_b32 v28, s97
    v_cmp_lt_u32 vcc, 31, v{L}
    v_cndmask_b32 v28, 0, v28, vcc
    v_add_u32 v27, v27, v28
    s_cmp_lg_u32 s{S_SLOW}, 0
    s_cbranch_scc1 L2_s2
    s_cmp_gt_u32 s96, {CAPT}
    s_cselect_b32 s97, 1, 0
    s_cmp_gt_u32 s{S_MAXC}, 48
    s_cselect_b32 s97, 1, s97
    s_cmp_eq_u32 s97, 0
    s_cbranch_scc1 L2_s2
    s_mov_b32 s{S_SLOW}, 1
    s_mov_b32 s{S_LIM}, 16
    s_mov_b32 s{S_IMASK}, 3
    s_barrier
    s_branch L2_batch
    L2_s2:
    v_add_u32 v{DEG}, v{DEG}, v22
    s_lshl_b32 s97, s{S_PI}, 1
    s_min_u32 s98, s97, s96
    s_sub_u32 s99, s96, s98
    s_cmp_eq_u32 s{S_GRP}, 0
    s_cselect_b32 s{S_N}, s98, s99
    s_cselect_b32 s{S_T0}, 0, s97""")
    stamp(a, 6, 253)
    for k in range(12):
        a(f"""s_cmp_eq_u64 {sr(MASK+2*k,2)}, 0
        s_cbranch_scc1 L2_m{k}
        ds_bpermute_b32 v{k}, v{k}, v27
        L2_m{k}:""")
    a(f"""s_cmp_ge_u32 s3, 3
    s_cbranch_scc1 L2_pad
    v_add_u32 v28, s3, v22
    v_cmp_lt_u32 vcc, v28, v23
    s_and_b64 exec, exec, vcc
    s_add_u32 s96, s{S_NEG}, {N}
    v_add_u32 v29, s96, v{L}
    v_add_lshl_u32 v28, v28, v27, 2
    ds_write_b32 v28, v29 offset:{L_IDX}
    s_mov_b64 exec, -1
    L2_pad:
    v_lshrrev_b32 v23, 2, v23
    v_lshrrev_b32 v30, 2, v27
    v_mul_u32_u24 v31, {BTS}, v{L}
    v_add_u32 v31, {L_BT}, v31
    v_mov_b32 v32, 0x3f80
    s_lshl_b32 s96, s{S_PI}, 4
    s_mov_b32 s97, s3
    L2_q:
    v_cmp_lt_u32 vcc, s97, v23
    s_and_b64 exec, exec, vcc
    s_cbranch_execz L2_qd
    v_add_u32 v33, s97, v30
    v_lshlrev_b32 v34, 2, v33
    ds_write_b32 v34, v31 offset:{L_QA}
    v_cmp_le_u32 vcc, s96, v33
    v_cndmask_b32 v34, 0, 17, vcc
    v_sub_u32 v34, v{L}, v34
    v_lshlrev_b32 v34, 4, v34
    v_and_b32 v35, -16, v33
    v_lshl_add_u32 v34, v35, 6, v34
    v_and_b32 v35, 4, v33
    v_lshl_add_u32 v34, v35, 7, v34
    v_and_b32 v35, 8, v33
    v_add_u32 v34, v34, v35
    v_and_b32 v35, 3, v33
    v_lshl_add_u32 v34, v35, 1, v34
    ds_write_b16 v34, v32 offset:{L_P}
    s_add_u32 s97, s97, 8
    s_branch L2_q
    L2_qd:
    s_mov_b64 exec, -1
    s_waitcnt lgkmcnt(0)""".replace("v_cndmask_b32 v34, 0, 17, vcc", "v_cndmask_b32_e64 v34, 0, 17, vcc"))
    for k in range(12):
        a(f"""s_mov_b64 exec, {sr(MASK+2*k,2)}
        s_cbranch_execz L2_c{k}
        v_add_u32 v{k}, v{k}, v{RECR+4*k+3}
        v_and_b32 v{RECR+4*k+2}, {OPT.get('imask', 0xffff)}, v{RECR+4*k+2}
        v_lshlrev_b32 v{12+k}, 2, v{k}
        v_lshlrev_b32 v{k}, 3, v{k}
        ds_write_b32 v{12+k}, v{RECR+4*k+2} offset:{L_IDX}
        ds_write_b64 v{k}, {vr(RECR+4*k,2)} offset:{L_EA}
        L2_c{k}:""")
    a(f"""s_mov_b64 exec, -1
    s_lshl_b32 s96, s{S_T0}, 7
    s_add_u32 s96, s96, {L_IDX-256}
    v_lshrrev_b32 v2, 3, v{L}
    v_lshl_add_u32 v{IB}, v2, 2, s96
    s_lshl_b32 s96, s{S_T0}, 8
    s_add_u32 s96, s96, {L_EA-512}
    v_add_u32 v{EB}, s96, v172
    s_lshl_b32 s96, s{S_T0}, 5
    s_add_u32 s96, s96, {L_QA-64}
    v_add_u32 v{QB}, s96, v173
    s_lshl_b32 s96, s{S_T0}, 9
    s_add_u32 s96, s96, {L_P-1024}
    v_lshl_add_u32 v{PB}, v{L}, 4, s96""")
    for j in range(8): a(f"v_mov_b32 v{HQ0+j}, 0")
    for j in range(4): a(f"v_mov_b32 v{PP+j}, 0")
    a(f"""s_mov_b32 s38, {AROWS}
    s_waitcnt vmcnt(0) lgkmcnt(0)
    s_barrier
    s_cmp_eq_u32 s{S_N}, 0
    s_cbranch_scc1 L2_done""")
    stamp(a, 7, 253)
    rd_idx(a, 2); a("s_waitcnt lgkmcnt(0)"); dma(a, 0)
    rd_idx(a, 3); a("s_waitcnt lgkmcnt(0)"); dma(a, 1)
    rd_idx(a, 4)
    a(f"""ds_read_b32 v{QV[0]}, v{QB} offset:64
    ds_read_b32 v{QV[1]}, v{QB} offset:96
    ds_read2st64_b32 {vr(A2[0]+2,2)}, v{EB} offset0:2 offset1:2
    s_waitcnt lgkmcnt(0)
    v_add_u32 v{QV[0]}, v{QV[0]}, v{QST}
    v_add_u32 v{QV[1]}, v{QV[1]}, v{QST}
    s_waitcnt vmcnt(4)""")
    rd_rows(a, 0)
    a(f"ds_read_b64_tr_b16 {vr(B2R[0],2)}, v{QV[0]}\ns_waitcnt lgkmcnt(0)")
    dma(a, 0); rd_idx(a, 5)
    a(mfma(D0, ALO, ID0, None)); a(mfma(D0, ALO+4, ID1, D0)); a(mfma(D0, A2[0], B2R[0], D0))
    group(a, 1)
    stamp(a, 8, 253)
    if OPT.get("stamp"): a(f"v_writelane_b32 v253, s{S_N}, 30")
    a(f"s_cmp_lg_u32 s{S_SAFE}, 0\ns_cbranch_scc1 L2_loopS")
    main_loop(a, False, "F")
    main_loop(a, True, "S")
    a(f"""L2_end_odd:
    ds_read_b128 {vr(PP,4)}, v{PB}
    s_waitcnt lgkmcnt(0)""")
    a(mfma(S0, HQ0, PP, S0))
    a("L2_end_even:")
    a(mfma(S1, HQ1, PP, S1))
    a(f"""L2_done:
    s_waitcnt vmcnt(0)
    s_cmp_eq_u32 s{S_SLOW}, 0
    s_cbranch_scc1 L2_epi
    s_add_u32 s{S_BETA}, s{S_BETA}, 1
    s_lshr_b32 s{S_BASE}, s{S_BETA}, 1
    s_lshl_b32 s{S_BASE}, s{S_BASE}, 4
    s_xor_b32 s{S_IMASK}, s{S_IMASK}, 15
    s_cmp_ge_u32 s{S_BASE}, s{S_MAXC}
    s_cbranch_scc1 L2_epi
    s_barrier
    s_branch L2_batch""")
    a("L2_epi:")
    stamp(a, 9, 253)
    srd(a, 44, WS, W2OP, 65536); srd(a, 48, B2, None, 256)
    a(f"""v_lshlrev_b32 v10, 4, v{L}
    s_lshl_b32 s96, s{S_CG}, 14""")
    for q in range(16):
        if q % 4 == 0 and q: a("s_add_u32 s96, s96, 4096")
        a(f"buffer_load_dwordx4 {vr(176+4*q,4)}, v10, s[44:47], s96 offen offset:{1024*(q%4)}")
    a(f"""v_and_b32 v2, 31, v{L}
    v_lshrrev_b32 v3, 5, v{L}
    s_lshl_b32 s96, s{S_CG}, 6
    v_lshlrev_b32 v4, 1, v2
    buffer_load_ushort v240, v4, s[48:51], s96 offen
    s_mov_b32 s94, {NLN2}
    s_mov_b32 s95, {NLN2}
    v_bfe_u32 v5, v2, 1, 3
    v_lshlrev_b32 v5, 4, v5
    v_lshl_add_u32 v5, v2, 7, v5
    v_lshl_add_u32 v6, v3, 3, v5
    v_add_u32 v6, s{S_STG}, v6
    v_lshlrev_b32 v7, 4, v3
    v_xor_b32 v5, v5, v7
    s_lshl_b32 s97, s{S_GRP}, 15
    s_add_u32 s97, s97, {L_STG}
    v_add_u32 v241, s97, v5
    v_xor_b32 v242, 32, v241
    v_xor_b32 v243, 64, v241
    v_xor_b32 v244, 96, v241""")
    for j in range(0, 32, 2): a(f"v_pk_mul_f32 {vr(S0+j,2)}, {vr(S0+j,2)}, s[94:95]")
    for u in range(8):
        a(f"""v_cvt_pk_bf16_f32 v{16+2*u}, v{S0+4*u}, v{S0+4*u+1}
        v_cvt_pk_bf16_f32 v{17+2*u}, v{S0+4*u+2}, v{S0+4*u+3}
        v_xor_b32 v{32+u}, {16*u}, v6
        ds_write_b64 v{32+u}, {vr(16+2*u,2)}""")
    a(f"""s_cmp_lg_u32 s3, 0
    s_cbranch_scc1 L2_e1
    v_cvt_f32_u32 v8, v{DEG}
    v_lshlrev_b32 v9, 2, v{L}
    s_mov_b32 exec_hi, 0
    ds_write_b32 v9, v8 offset:{L_DEG}
    s_mov_b32 exec_lo, 0xfffe0000
    s_mov_b32 exec_hi, 0x1ffff
    ds_write_b32 v9, v8 offset:{L_DEG+128-68}
    s_mov_b64 exec, -1
    L2_e1:
    s_lshl_b32 s97, s{S_GRP}, 7
    v_lshl_add_u32 v245, v3, 4, s97
    s_lshl_b32 s96, s{S_CG}, 7
    s_add_u32 s96, s96, {L_P-512}
    v_lshlrev_b32 v246, 11, v3
    v_lshl_add_u32 v246, v2, 2, v246
    v_add_u32 v246, s96, v246
    s_mul_i32 s96, s{S_GRP}, {17*256}
    s_lshl_b32 s97, s{S_CG}, 6
    s_add_u32 s96, s96, s97
    v_lshlrev_b32 v247, 10, v3
    v_lshl_add_u32 v247, v2, 1, v247
    v_add_u32 v247, s96, v247
    s_sub_u32 s96, {N}, s{S_NEG}
    s_min_u32 s96, s96, {NPB}
    s_lshl_b32 s96, s96, 8
    s_lshl_b32 s97, s{S_NEG}, 8""")
    srd(a, 52, OUT, "s97", "s96")
    a("""s_mov_b32 s97, 4096
    s_waitcnt lgkmcnt(0)
    s_barrier""")
    for s in range(16): a(f"ds_read_b128 {vr(4*s,4)}, v{241+s%4} offset:{8192*(s//4)}")
    for jq in range(4): a(f"ds_read_b128 {vr(96+4*jq,4)}, v245 offset:{L_DEG+32*jq}")
    stamp(a, 10, 253)
    a("s_waitcnt vmcnt(0)")
    O = 64
    for s in range(16):
        a(f"s_waitcnt lgkmcnt({min(15, 19-s)})")
        a(mfma(O, 4*s, 176+4*s, None if s == 0 else O))
    a(f"""v_lshlrev_b32 v240, 16, v240
    s_cmp_eq_u32 s{S_GRP}, 0
    s_cbranch_scc1 L2_e2""")
    for j in range(8): a(f"ds_write_b32 v246, v{O+j} offset:{(8*(j//4)+j%4+1)*512}")
    a("""L2_e2:
    s_waitcnt lgkmcnt(0)
    s_barrier""")
    a(f"s_cmp_lg_u32 s{S_GRP}, 0\ns_cbranch_scc1 L2_e3")
    for j in range(8, 16): a(f"ds_read_b32 v{j}, v246 offset:{(8*(j//4)+j%4-16)*512}")
    a(f"""s_waitcnt lgkmcnt(0)
    s_mov_b32 exec_lo, 0
    v_add_f32 v{O+8}, v{O+8}, v8
    s_mov_b64 exec, -1""")
    for j in range(9, 16): a(f"v_add_f32 v{O+j}, v{O+j}, v{j}")
    a("L2_e3:")
    for j in range(16): a(f"v_fmac_f32 v{O+j}, v{96+j}, v240")
    for j in range(0, 16, 2): a(f"v_cvt_pk_bf16_f32 v{16+j//2}, v{O+j}, v{O+j+1}")
    def st(j):
        off = (8*(j//4) + j % 4)*256
        so = "0" if off < 4096 else "s97"
        return f"buffer_store_short{'_d16_hi' if j & 1 else ''} v{16+j//2}, v247, s[52:55], {so} offen offset:{off % 4096}"
    a(f"s_cmp_eq_u32 s{S_GRP}, 0\ns_cbranch_scc1 L2_e4\ns_mov_b32 exec_lo, 0")
    a(st(7)); a("s_mov_b64 exec, -1\ns_branch L2_e5\nL2_e4:")
    for j in range(8): a(st(j))
    a("L2_e5:")
    for j in range(8, 16): a(st(j))
    stamp_dump(a, 253, 0, 1)
    a("L2_exit2:\ns_endpgm")


HEAD = """; edge-featured MPNN: K1 = edge partition by dst bucket + A = x@W1a table + operand prep ; K2 = gather/silu/segment-sum/final GEMM
; @launch kernel=k1_kernel grid=({g1},1,1) block=(512,1,1) lds={l1}
; @launch kernel=k2_kernel grid=({g2},1,1) block=(512,1,1) lds={l2}
.amdgcn_target "amdgcn-amd-amdhsa--gfx950"
.text
"""
KD = """.amdhsa_kernel {name}
  .amdhsa_next_free_vgpr {v}
  .amdhsa_next_free_sgpr 102
  .amdhsa_accum_offset {v}
  .amdhsa_group_segment_fixed_size 0
  .amdhsa_kernarg_size 88
  .amdhsa_user_sgpr_count 2
  .amdhsa_user_sgpr_kernarg_segment_ptr 1
  .amdhsa_system_sgpr_workgroup_id_x 1
.end_amdhsa_kernel
"""


def build():
    out = HEAD.format(g1=K1_GRID, l1=K1_LDS, g2=NB, l2=K2_LDS)
    for name, fn in (("k1_kernel", k1), ("k2_kernel", k2)):
        a = Asm(); fn(a)
        out += f".globl {name}\n.p2align 8\n.type {name},@function\n" + a.text(verbose=OPT.get("v", 0))
    out += '.section .rodata,"a"\n.p2align 6\n' + KD.format(name="k1_kernel", v=172) + ".p2align 6\n" + KD.format(name="k2_kernel", v=256)
    return out


if __name__ == "__main__":
    open(sys.argv[1], "w").write(build())
```

```python
import sys, struct
from asmlib import Asm, vr, sr

N, E = 12500, 400000
NPB, NB = 49, 256
CH, CE = 250, 1600
ATAB = 0
AROWS = 25088
REC = 13 << 20
OFF = 19 << 20
W1BOP = 20 << 20
W2OP = W1BOP + 65536
MAXA = W2OP + 65536
MAXE = MAXA + 1024
NG = 208
K1_GRID = NG + 1 + CH
K1_LDS = 65536 + 64

def f2u(x): return struct.unpack("<I", struct.pack("<f", x))[0]
NLOG2E = f2u(-1.4426950408889634)
NLN2 = f2u(-0.6931471805599453)

OPT = dict(prio=1, prio_at=32, nt=1)
for a_ in sys.argv[2:]:
    k_, v_ = a_.split("="); OPT[k_] = int(v_)


def srd(a, d, base, add, size, stride=0):
    if add is None:
        a(f"s_mov_b32 s{d}, s{base}\ns_mov_b32 s{d+1}, s{base+1}")
    else:
        a(f"s_add_u32 s{d}, s{base}, {add}\ns_addc_u32 s{d+1}, s{base+1}, 0")
    if stride: a(f"s_or_b32 s{d+1}, s{d+1}, {stride << 16}")
    a(f"s_mov_b32 s{d+2}, {size}\ns_mov_b32 s{d+3}, 0x00020000")


def wsshift(a):
    if OPT.get("wsoff"): a(f"s_add_u32 s24, s24, {OPT['wsoff'] << 20}\ns_addc_u32 s25, s25, 0")


def ldargs(a):
    a("""s_load_dwordx16 s[4:19], s[0:1], 0
    s_load_dwordx4 s[20:23], s[0:1], 64
    s_load_dwordx2 s[24:25], s[0:1], 80""")
X, EA_, SRC, DST, W1, B1, W2, B2, OUT, DBG, WS = 4, 6, 8, 10, 12, 14, 16, 18, 20, 22, 24


def dpp_red(a, op, v, full=True):
    for m in ("row_shr:1", "row_shr:2", "row_shr:4", "row_shr:8"):
        a(f"{op}_dpp v{v}, v{v}, v{v} {m} row_mask:0xf bank_mask:0xf bound_ctrl:0")
    a(f"{op}_dpp v{v}, v{v}, v{v} row_bcast:15 row_mask:0xa bank_mask:0xf")
    if full: a(f"{op}_dpp v{v}, v{v}, v{v} row_bcast:31 row_mask:0xc bank_mask:0xf")


STAMPS = 24 << 20
def stamp(a, k, reg):
    if not OPT.get("stamp"): return
    a(f"s_memrealtime s[100:101]\ns_waitcnt lgkmcnt(0)\nv_writelane_b32 v{reg}, s100, {k}")
    if k in (0, 2, 7, 8, 9, 31): a(f"s_memtime s[100:101]\ns_waitcnt lgkmcnt(0)\nv_writelane_b32 v{reg}, s100, {32+k}")
def stamp_dump(a, reg, tmp, kern):
    if not OPT.get("stamp"): return
    a("s_mov_b64 exec, -1\ns_waitcnt vmcnt(0)")
    stamp(a, 31, reg)
    a(f"""s_lshl_b32 s96, s2, 3
    s_add_u32 s96, s96, s3
    s_lshl_b32 s96, s96, 8
    s_add_u32 s96, s96, {STAMPS + kern*(1 << 20)}""")
    srd(a, 44, WS, "s96", 256)
    a(f"""v_mbcnt_lo_u32_b32 v{tmp}, -1, 0
    v_mbcnt_hi_u32_b32 v{tmp}, -1, v{tmp}
    v_lshlrev_b32 v{tmp}, 2, v{tmp}
    buffer_store_dword v{reg}, v{tmp}, s[44:47], 0 offen""")
def lane63(a): a("s_mov_b32 exec_lo, 0\ns_mov_b32 exec_hi, 0x80000000")
def full(a): a("s_mov_b64 exec, -1")
def mfma(D, A, B, C): return f"v_mfma_f32_32x32x16_bf16 {vr(D,16)}, {vr(A,4)}, {vr(B,4)}, " + ("0" if C is None else vr(C, 16))


def k1(a):
    a("k1_kernel:")
    a(f"s_cmp_ge_u32 s2, {K1_GRID}\ns_cbranch_scc1 L1_exit2")
    if OPT.get("stamp"): a("v_mov_b32 v126, 0")
    stamp(a, 0, 126)
    ldargs(a)
    a(f"""v_and_b32 v1, 63, v0
    v_lshrrev_b32 v2, 6, v0
    s_nop 0
    v_readfirstlane_b32 s3, v2
    s_cmp_le_u32 s2, {NG}
    s_cbranch_scc1 L1_gemm
    s_sub_u32 s56, s2, {NG+1}""")
    HIST, START, MAXW = 24576, 25600, 26624
    a(f"""v_lshlrev_b32 v2, 2, v0
    v_mov_b32 v3, 0
    ds_write_b32 v2, v3 offset:{HIST}
    ds_write_b32 v2, v3 offset:{MAXW}
    v_mov_b32 v60, 0
    v_mov_b32 v61, 1
    s_mul_i32 s26, s56, {CE*4}
    s_lshl_b32 s52, s26, 1
    v_lshlrev_b32 v3, 4, v0
    v_lshlrev_b32 v20, 5, v0
    v_cmp_gt_u32 vcc, {CE//4}, v0
    s_waitcnt lgkmcnt(0)""")
    wsshift(a)
    stamp(a, 5, 126)
    srd(a, 28, DST, None, E*4); srd(a, 32, SRC, None, E*4); srd(a, 36, EA_, None, E*8)
    a(f"""s_and_saveexec_b64 s[54:55], vcc
    s_mov_b64 s[54:55], exec
    s_cbranch_execz L1_p1
    buffer_load_dwordx4 v[4:7], v3, s[28:31], s26 offen{" nt" if OPT.get("nt") else ""}
    buffer_load_dwordx4 v[12:15], v3, s[32:35], s26 offen{" nt" if OPT.get("nt") else ""}
    buffer_load_dwordx4 v[24:27], v20, s[36:39], s52 offen{" nt" if OPT.get("nt") else ""}
    buffer_load_dwordx4 v[28:31], v20, s[36:39], s52 offen offset:16{" nt" if OPT.get("nt") else ""}
    L1_p1:
    s_mov_b64 exec, -1
    s_mul_i32 s26, s56, {CE*12}
    s_add_u32 s26, s26, {REC}""")
    srd(a, 40, WS, "s26", CE*12)
    a(f"s_lshl_b32 s26, s56, 10\ns_add_u32 s26, s26, {OFF}")
    srd(a, 44, WS, "s26", 1024)
    srd(a, 48, WS, MAXE, CH*4)
    a("""s_barrier
    s_mov_b64 exec, s[54:55]
    s_cbranch_execz L1_p2
    s_waitcnt vmcnt(3)""")
    stamp(a, 1, 126)
    for k in range(4):
        a(f"""v_mul_u32_u24 v21, 10700, v{4+k}
        v_lshrrev_b32 v21, 19, v21
        v_lshlrev_b32 v{40+k}, 2, v21
        ds_add_rtn_u32 v{48+k}, v{40+k}, v61 offset:{HIST}
        v_mul_u32_u24 v21, {NPB}, v21
        v_sub_u32 v{4+k}, v{4+k}, v21""")
    a("L1_p2:")
    full(a)
    a(f"""v_lshlrev_b32 v2, 4, v1
    s_waitcnt lgkmcnt(0)
    s_barrier
    """)
    stamp(a, 3, 126)
    a(f"""ds_read_b128 v[32:35], v2 offset:{HIST}
    s_waitcnt lgkmcnt(0)
    v_add_u32 v8, v32, v33
    v_add_u32 v9, v8, v34
    v_add_u32 v10, v9, v35
    v_mov_b32 v11, v10""")
    dpp_red(a, "v_add_u32", 11)
    a(f"""v_sub_u32 v56, v11, v10
    v_add_u32 v57, v56, v32
    v_add_u32 v58, v56, v8
    v_add_u32 v59, v56, v9
    ds_write_b128 v2, v[56:59] offset:{START}
    s_waitcnt lgkmcnt(0)
    s_mov_b64 exec, s[54:55]
    s_cbranch_execz L1_p4""")
    for k in range(4): a(f"ds_read_b32 v{40+k}, v{40+k} offset:{START}")
    a("s_waitcnt vmcnt(0)")
    for k in range(4): a(f"v_lshl_or_b32 v{12+k}, v{4+k}, 16, v{12+k}")
    for k in range(4):
        a(f"""s_waitcnt lgkmcnt({3+k})
        v_add_u32 v{40+k}, v{40+k}, v{48+k}
        v_mul_u32_u24 v{40+k}, 12, v{40+k}
        ds_write2_b32 v{40+k}, v{24+2*k}, v{25+2*k} offset0:0 offset1:1
        ds_write_b32 v{40+k}, v{12+k} offset:8""")
    for k in range(4): a(f"v_dot2_f32_bf16 v{4+k}, v{24+2*k}, v{24+2*k}, 0")
    for k in range(4): a(f"v_dot2_f32_bf16 v{4+k}, v{25+2*k}, v{25+2*k}, v{4+k}")
    a("s_nop 2\nv_max3_u32 v60, v4, v5, v6\nv_max_u32 v60, v60, v7")
    a("L1_p4:")
    full(a)
    dpp_red(a, "v_max_u32", 60)
    a("v_mov_b32 v21, 0")
    lane63(a)
    a(f"ds_max_u32 v21, v60 offset:{MAXW}")
    full(a)
    stamp(a, 2, 126)
    a(f"""s_cmp_lg_u32 s3, 7
    s_cbranch_scc1 L1_p3
    v_lshl_or_b32 v32, v32, 16, v56
    v_lshl_or_b32 v33, v33, 16, v57
    v_lshl_or_b32 v34, v34, 16, v58
    v_lshl_or_b32 v35, v35, 16, v59
    buffer_store_dwordx4 v[32:35], v2, s[44:47], 0 offen sc1
    L1_p3:
    s_waitcnt lgkmcnt(0)
    s_barrier""")
    stamp(a, 4, 126)
    for i in range(3): a(f"ds_read_b128 {vr(4+4*i,4)}, v3 offset:{8192*i}")
    a(f"ds_read_b32 v24, v21 offset:{MAXW}")
    for i in range(3):
        a(f"s_mov_b32 s26, {8192*i}\ns_waitcnt lgkmcnt({3-i})\nbuffer_store_dwordx4 {vr(4+4*i,4)}, v3, s[40:43], s26 offen sc1")
    a(f"""s_lshl_b32 s26, s56, 2
    v_cmp_eq_u32 vcc, 0, v0
    s_and_saveexec_b64 s[54:55], vcc
    s_cbranch_execz L1_exit
    s_waitcnt lgkmcnt(0)
    buffer_store_dword v24, v21, s[48:51], s26 offen sc1
    s_branch L1_exit""")

    WOP = 56
    NTF = " nt" if OPT.get("nt") else ""
    a(f"""L1_gemm:
    s_cmp_eq_u32 s2, {NG}
    s_cbranch_scc1 L1_w2
    s_bfe_u32 s27, s2, 0x10003
    s_lshr_b32 s28, s2, 4
    s_lshl_b32 s28, s28, 3
    s_and_b32 s29, s2, 7
    s_add_u32 s28, s28, s29
    s_cmp_ge_u32 s28, 98
    s_cbranch_scc1 L1_exit2
    v_lshrrev_b32 v18, 4, v1
    v_and_b32 v19, 15, v1
    v_lshlrev_b32 v24, 2, v18
    v_xor_b32 v24, v24, v19
    v_lshlrev_b32 v24, 4, v24
    v_lshl_or_b32 v124, v18, 9, v24""")
    for ii in range(4):
        a(f"""v_add_u32 v20, {4*ii}, v18
        v_xor_b32 v20, v20, v19
        v_lshlrev_b32 v20, 4, v20
        v_lshl_or_b32 v{25+ii}, v18, 8, v20""")
    a(f"""v_mov_b32 v2, 0
    v_mov_b32 v3, 65536
    ds_write_b32 v3, v2
    s_lshl_b32 s43, s3, 13
    s_lshl_b32 s30, s27, 8
    s_add_u32 s43, s43, s30
    s_lshl_b32 s31, s3, 12
    s_lshl_b32 s29, s28, 15
    s_add_u32 s29, s29, s31
    s_add_u32 m0, s31, 32768
    s_and_b32 s40, s3, 1
    s_lshr_b32 s41, s3, 1
    v_and_b32 v7, 31, v1
    v_lshlrev_b32 v20, 1, v7
    s_lshl_b32 s42, s40, 7
    s_add_u32 s42, s42, s30
    s_waitcnt lgkmcnt(0)""")
    wsshift(a)
    stamp(a, 5, 126)
    srd(a, 32, W1, None, 260*512); srd(a, 36, X, None, N*256); srd(a, 44, B1, None, 512)
    for ii in range(4):
        a(f"buffer_load_dwordx4 v{25+ii}, s[36:39], s29 offen{NTF} lds")
        if ii < 3: a("s_add_u32 m0, m0, 1024\ns_add_u32 s29, s29, 1024")
    a("s_mov_b32 m0, s31\ns_nop 0")
    for ii in range(4):
        a(f"buffer_load_dwordx4 v124, s[32:35], s43 offen lds")
        a("s_add_u32 m0, m0, 1024\ns_add_u32 s43, s43, 2048")
    a(f"""buffer_load_ushort v122, v20, s[44:47], s42 offen
    buffer_load_ushort v123, v20, s[44:47], s42 offen offset:64
    s_add_u32 s43, s43, {128*512 - 8192}""")
    stamp(a, 6, 126)
    a(f"""v_bfe_u32 v18, v1, 2, 2
    v_lshrrev_b32 v6, 5, v1
    v_lshl_add_u32 v19, v6, 3, v18
    v_lshlrev_b32 v19, 8, v19
    v_bfe_u32 v20, v1, 4, 1
    v_lshlrev_b32 v20, 5, v20
    v_and_b32 v21, 3, v1
    v_lshl_add_u32 v20, v21, 3, v20
    v_add_u32 v19, v19, v20
    s_lshl_b32 s42, s40, 1
    v_xor_b32 v20, s42, v18
    v_lshl_add_u32 v120, v20, 6, v19
    v_xor_b32 v20, 1, v20
    v_lshl_add_u32 v121, v20, 6, v19
    s_lshl_b32 s42, s41, 5
    v_add_u32 v19, s42, v7
    v_lshlrev_b32 v19, 8, v19
    v_and_b32 v20, 15, v1
    v_xor_b32 v20, v20, v6
    v_lshl_add_u32 v10, v20, 4, v19
    v_add_u32 v10, 32768, v10""")
    for s in range(1, 8): a(f"v_xor_b32 v{10+s}, {32*s}, v10")
    srd(a, 44, WS, None, N*512); srd(a, 56, WS, N*512, N*512)
    a(f"""s_lshl_b32 s42, s28, 2
    s_add_u32 s42, s42, s41
    s_lshl_b32 s42, s42, 14
    s_lshl_b32 s48, s27, 1
    s_add_u32 s48, s48, s40
    s_lshl_b32 s48, s48, 7
    s_add_u32 s48, s42, s48
    s_add_u32 s30, s31, 32768
    v_lshlrev_b32 v4, 9, v6
    v_lshl_add_u32 v4, v7, 2, v4
    v_add_u32 v4, s30, v4
    v_lshl_add_u32 v6, v1, 4, s30
    v_lshrrev_b32 v7, 3, v1
    v_lshlrev_b32 v7, 9, v7
    v_and_b32 v18, 7, v1
    v_lshl_add_u32 v7, v18, 4, v7
    s_mov_b32 s52, {NLOG2E}
    s_mov_b32 s53, {NLOG2E}
    s_mov_b32 s60, {NLOG2E ^ 0x80000000}
    s_mov_b32 s61, {NLOG2E ^ 0x80000000}
    v_mov_b32 v5, 0
    v_mov_b32 v125, 0x80008000""")
    a("s_waitcnt vmcnt(0)\ns_barrier")
    stamp(a, 1, 126)
    def wread(t):
        for s in range(8):
            for hf in range(2):
                a(f"ds_read_b64_tr_b16 {vr(WOP+32*t+4*s+2*hf,2)}, v{120+t} offset:{4096*s+1024*hf}")
    for s in range(8): a(f"ds_read_b128 {vr(24+4*s,4)}, v{10+s}")
    GD0, GD1, CV, RB = 8, WOP, 72, 88
    for task in range(2):
        wread(0); wread(1)
        a("s_waitcnt lgkmcnt(15)")
        for s in range(8): a(mfma(GD0, 24+4*s, WOP+4*s, None if s == 0 else GD0))
        a("s_waitcnt lgkmcnt(0)")
        if task == 0:
            a("s_barrier\ns_mov_b32 m0, s31")
            stamp(a, 3, 126)
            for ii in range(4):
                a(f"buffer_load_dwordx4 v124, s[32:35], s43 offen lds")
                a("s_add_u32 m0, m0, 1024\ns_add_u32 s43, s43, 2048")
        for s in range(8): a(mfma(GD1, 24+4*s, WOP+32+4*s, None if s == 0 else GD1))
        if task == 0:
            for j in range(0, 16, 2): a(f"v_pk_mul_f32 {vr(GD0+j,2)}, {vr(GD0+j,2)}, s[52:53]")
            for j in range(0, 16, 2): a(f"v_pk_mul_f32 {vr(GD1+j,2)}, {vr(GD1+j,2)}, s[52:53]")
        else:
            a("""v_lshlrev_b32 v122, 16, v122
            v_lshlrev_b32 v124, 16, v123
            v_mul_f32 v122, s60, v122
            v_mul_f32 v124, s60, v124""")
            for j in range(0, 16, 2): a(f"v_pk_fma_f32 {vr(GD0+j,2)}, {vr(GD0+j,2)}, s[60:61], v[122:123] op_sel_hi:[1,1,0]")
            for j in range(0, 16, 2): a(f"v_pk_fma_f32 {vr(GD1+j,2)}, {vr(GD1+j,2)}, s[60:61], v[124:125] op_sel_hi:[1,1,0]")
        for j in range(16):
            a(f"""v_cvt_pk_bf16_f32 v{CV+j}, v{GD0+j}, v{GD1+j}
            ds_write_b32 v4, v{CV+j} offset:{128*(8*(j//4)+j%4)}""")
        a("s_waitcnt lgkmcnt(0)")
        if task == 0: stamp(a, 4, 126)
        for i in range(4): a(f"ds_read_b128 {vr(RB+4*i,4)}, v6 offset:{1024*i}")
        for j in range(16): a(f"v_pk_max_i16 v5, v5, v{CV+j}" if task == 0 else f"v_pk_max_u16 v125, v125, v{CV+j}")
        for i in range(4):
            a(f"s_waitcnt lgkmcnt({3-i})\nbuffer_store_dwordx4 {vr(RB+4*i,4)}, v7, {sr(44 if task == 0 else 56, 4)}, s48 offen sc1")
            a("s_add_u32 s48, s48, 4096" if i < 3 else "s_sub_u32 s48, s48, 12288")
        if task == 0: a("s_waitcnt vmcnt(4)\ns_barrier")
    stamp(a, 2, 126)
    a("""v_and_b32 v125, 0x7fff7fff, v125
    v_pk_max_i16 v5, v5, v125
    v_lshlrev_b32 v6, 16, v5
    v_and_b32 v5, 0xffff0000, v5
    v_max_u32 v5, v5, v6""")
    dpp_red(a, "v_max_u32", 5)
    lane63(a)
    a("ds_max_u32 v3, v5")
    full(a)
    srd(a, 44, WS, MAXA, 196*4)
    a(f"""s_lshl_b32 s26, s28, 1
    s_add_u32 s26, s26, s27
    s_lshl_b32 s26, s26, 2
    s_waitcnt lgkmcnt(0)
    s_barrier
    v_cmp_eq_u32 vcc, 0, v0
    s_and_saveexec_b64 s[54:55], vcc
    s_cbranch_execz L1_exit
    ds_read_b32 v6, v3
    s_waitcnt lgkmcnt(0)
    buffer_store_dword v6, v2, s[44:47], s26 offen sc1
    s_branch L1_exit""")
    a(f"""L1_w2:
    v_lshlrev_b32 v2, 4, v1
    s_lshl_b32 s29, s3, 13
    s_mov_b32 m0, s29
    s_waitcnt lgkmcnt(0)""")
    wsshift(a)
    srd(a, 32, W2, None, 65536)
    for ii in range(8):
        a("buffer_load_dwordx4 v2, s[32:35], s29 offen lds")
        if ii < 7: a("s_add_u32 s29, s29, 1024\ns_add_u32 m0, m0, 1024")
    a(f"""s_and_b32 s40, s3, 3
    s_lshr_b32 s41, s3, 2
    v_bfe_u32 v5, v1, 2, 1
    v_lshlrev_b32 v5, 5, v5
    v_bfe_u32 v6, v1, 3, 1
    v_add_u32 v5, v5, v6
    v_lshrrev_b32 v6, 5, v1
    v_lshl_add_u32 v5, v6, 2, v5
    v_lshlrev_b32 v5, 8, v5
    v_bfe_u32 v6, v1, 4, 1
    v_lshl_add_u32 v5, v6, 5, v5
    v_and_b32 v6, 3, v1
    v_lshl_add_u32 v5, v6, 3, v5
    s_lshl_b32 s42, s40, 6
    s_lshl_b32 s43, s41, 15
    s_add_u32 s42, s42, s43
    v_add_u32 v5, s42, v5
    s_lshl_b32 s43, s40, 14
    s_lshl_b32 s42, s41, 13
    s_add_u32 s43, s43, s42""")
    srd(a, 44, WS, W2OP, 65536)
    a("s_waitcnt vmcnt(0)\ns_barrier")
    for s in range(8):
        for hf in range(2):
            row = 64*(s//4) + 16*((s//2) % 2) + 8*(s % 2) + 2*hf
            a(f"ds_read_b64_tr_b16 {vr(WOP+4*s+2*hf,2)}, v5 offset:{256*row}")
    a("s_waitcnt lgkmcnt(0)")
    for s in range(8):
        a(f"buffer_store_dwordx4 {vr(WOP+4*s,4)}, v2, s[44:47], s43 offen sc1\ns_add_u32 s43, s43, 1024")
    a("L1_exit:")
    stamp_dump(a, 126, 127, 0)
    a("L1_exit2:\ns_endpgm")


CAPT = 60
L_IDX, L_QA, L_CNT, L_MISC, L_DEG, L_EA, L_P, L_BT, L_STG = 256, 8448, 10496, 10752, 10816, 11264, 26624, 57344, 87040
BTP = 1152
L_NULL = L_BT + 24*BTP + 512
SPLIT = 25
HALF = 6250
K2_LDS = L_STG + 65536
D0, D1, EE, TT, HQ0, HQ1, S0, S1 = 0, 16, 32, 48, 56, 60, 64, 80
ALO, AHI, ID0, ID1, A2, B2R, PP, IP = 96, (104, 112), 120, 124, (128, 132), (136, 140), 144, 148
QV, QST, RA, IB, EB, QB, PB = (156, 157), 158, 159, 163, 164, 165, 166
TID, LANE, DEG, VONE = 167, 168, 169, 170
RECR, OFR, W2R = 0, 240, 176
MASK = 56
S_BASE, S_LIM, S_IMASK, S_SLOW, S_N, S_T0, S_FIRST, S_K, S_MAXC, S_SAFE, S_PI, S_STG, S_BETA, S_NEG = range(80, 94)
S_R2 = 1
S_CG, S_GRP = 26, 27


def valu_half(D, hq, safe):
    L = [f"v_exp_f32 v{EE+j}, v{D+j}" for j in range(16)]
    p2 = lambda x: vr(x, 2)
    if not safe:
        for q in range(2): L.append(f"v_pk_add_f32 {p2(TT+4*q)}, {p2(EE+8*q)}, 1.0 op_sel_hi:[1,0]")
        for s in range(1, 4):
            for q in range(2):
                n = D+8*q if s == 1 else TT+4*q+2
                L.append(f"v_pk_fma_f32 {p2(TT+4*q+2)}, {p2(n)}, {p2(EE+8*q+2*s)}, {p2(n)}")
            for q in range(2):
                L.append(f"v_pk_fma_f32 {p2(TT+4*q+2)}, {p2(D+8*q+2*s)}, {p2(TT+4*q)}, {p2(TT+4*q+2)}")
            for q in range(2):
                L.append(f"v_pk_fma_f32 {p2(TT+4*q)}, {p2(TT+4*q)}, {p2(EE+8*q+2*s)}, {p2(TT+4*q)}")
        for q in range(2):
            for p in range(2): L.append(f"v_rcp_f32 v{TT+4*q+p}, v{TT+4*q+p}")
        for q in range(2): L.append(f"v_pk_mul_f32 {p2(TT+4*q+2)}, {p2(TT+4*q+2)}, {p2(TT+4*q)}")
    else:
        for j in range(0, 16, 2): L.append(f"v_pk_add_f32 {p2(EE+j)}, {p2(EE+j)}, 1.0 op_sel_hi:[1,0]")
        for j in range(16): L.append(f"v_rcp_f32 v{EE+j}, v{EE+j}")
        for q in range(2): L.append(f"v_pk_mul_f32 {p2(TT+4*q+2)}, {p2(D+8*q)}, {p2(EE+8*q)}")
        for s in range(1, 4):
            for q in range(2):
                L.append(f"v_pk_fma_f32 {p2(TT+4*q+2)}, {p2(D+8*q+2*s)}, {p2(EE+8*q+2*s)}, {p2(TT+4*q+2)}")
    for q in range(2): L.append(f"v_cvt_pk_bf16_f32 v{hq+q}, v{TT+4*q+2}, v{TT+4*q+3}")
    return L


def weave(V, M, pos):
    out = []
    for i, x in enumerate(V):
        out += [m for m, p in zip(M, pos) if p == i]
        out.append(x)
    return out


def block(a, par, safe):
    M1 = [mfma(D1, AHI[par], ID0, None), mfma(D1, AHI[par]+4, ID1, D1), mfma(D1, A2[par], B2R[1], D1)]
    if par == 0: M1.append(mfma(S1, HQ1, PP, S1))
    M2 = [mfma(D0, ALO, ID0, None), mfma(D0, ALO+4, ID1, D0), mfma(D0, A2[par ^ 1], B2R[0], D0)]
    if par == 1: M2.append(mfma(S0, HQ0, PP, S0))
    pos = [1, 4, 7, 10]
    h1 = weave(valu_half(D0, HQ0+2*par, safe), M1, pos)
    h2 = weave(valu_half(D1, HQ1+2*par, safe), M2, pos)
    extra = [f"v_add_u32 v{QV[par]}, v{QV[par]}, v{QST}"]
    if par == 0:
        extra += [f"v_add_u32 v{IB}, 256, v{IB}", f"v_add_u32 v{EB}, 512, v{EB}",
                  f"v_add_u32 v{QB}, 64, v{QB}", f"v_add_u32 v{PB}, 1024, v{PB}"]
    L = h1 + extra + h2
    if OPT["prio"]:
        L.insert(OPT["prio_at"], "s_setprio 1"); L.append("s_setprio 0")
    a("\n".join(L))


def dma(a, par):
    a(f"s_add_u32 m0, s{S_STG}, {4096*par}")
    for u in range(4):
        a(f"buffer_load_dwordx4 {vr(IP+2*u,2)}, s[36:39], 0 idxen offen lds")
        if u < 3: a("s_add_u32 m0, m0, 1024")


def rd_idx(a, t):
    for u in range(4): a(f"ds_read_b32 v{IP+2*u}, v{IB} offset:{128*t+32*u}")


def rd_rows(a, par):
    for s in range(4):
        d = ALO+4*s if s < 2 else AHI[par]+4*(s-2)
        a(f"ds_read_b128 {vr(d,4)}, v{RA+s} offset:{4096*par}")


def w2chunk(a, k):
    a(f"s_lshl_b32 s96, s{S_CG}, 14\ns_add_u32 s96, s96, {4096*k}")
    for q in range(4): a(f"buffer_load_dwordx4 {vr(W2R+16*k+4*q,4)}, v174, s[44:47], s96 offen offset:{1024*q}")


def group(a, par, tag=None):
    a("s_waitcnt vmcnt(4)")
    rd_rows(a, par)
    a(f"ds_read_b64_tr_b16 {vr(B2R[1],2)}, v{QV[par^1]} offset:64")
    a(f"ds_read_b64_tr_b16 {vr(B2R[0],2)}, v{QV[par]}")
    a(f"ds_read2st64_b32 {vr(A2[par]+2,2)}, v{EB} offset0:{2+par} offset1:{2+par}")
    if par == 0: a(f"ds_read_b128 {vr(PP,4)}, v{PB}")
    a(f"s_cmp_gt_u32 s{S_N}, 3\ns_cselect_b32 s38, {0 if OPT.get('nodma') else AROWS}, 0")
    if tag: a(f"s_cmp_le_u32 s{S_N}, 4\ns_cbranch_scc1 L2_tl{tag}{par}\nL2_tr{tag}{par}:")
    a(f"s_waitcnt lgkmcnt({4 if par == 0 else 3})")
    dma(a, par)
    rd_idx(a, 5+par)
    a(f"ds_read_b32 v{QV[par^1]}, v{QB} offset:{32*(3+par)}")
    a("s_waitcnt lgkmcnt(0)")


def main_loop(a, safe, tag):
    a(f"L2_loop{tag}:")
    block(a, 0, safe)
    a(f"s_sub_u32 s{S_N}, s{S_N}, 1\ns_cmp_eq_u32 s{S_N}, 0\ns_cbranch_scc1 L2_end_odd")
    group(a, 0, tag)
    block(a, 1, safe)
    a(f"s_sub_u32 s{S_N}, s{S_N}, 1\ns_cmp_eq_u32 s{S_N}, 0\ns_cbranch_scc1 L2_end_even")
    group(a, 1, tag)
    a(f"s_branch L2_loop{tag}")
    for par in range(2):
        a(f"L2_tl{tag}{par}:")
        for k in range(4):
            if k < 3: a(f"s_cmp_lg_u32 s{S_N}, {4-k}\ns_cbranch_scc1 L2_tl{tag}{par}_{k}")
            w2chunk(a, k)
            a(f"s_branch L2_tr{tag}{par}")
            if k < 3: a(f"L2_tl{tag}{par}_{k}:")


def k2(a):
    a("k2_kernel:")
    a(f"s_cmp_ge_u32 s2, {NB}\ns_cbranch_scc1 L2_exit2")
    if OPT.get("stamp"): a("v_mov_b32 v253, 0")
    stamp(a, 0, 253)
    ldargs(a)
    a(f"""v_mov_b32 v{TID}, v0
    v_and_b32 v{LANE}, 63, v0
    v_lshrrev_b32 v2, 6, v0
    v_mov_b32 v{DEG}, 0
    v_readfirstlane_b32 s3, v2
    v_mov_b32 v{VONE}, 1
    s_mov_b32 s{S_BASE}, 0
    s_mov_b32 s{S_LIM}, 24
    s_mov_b32 s{S_IMASK}, 15
    s_mov_b32 s{S_SLOW}, 0
    s_mov_b32 s{S_FIRST}, 1
    s_mov_b32 s{S_BETA}, 0
    s_and_b32 s{S_CG}, s3, 3
    s_lshr_b32 s{S_GRP}, s3, 2
    s_lshl_b32 s{S_STG}, s3, 13
    s_add_u32 s{S_STG}, s{S_STG}, {L_STG}
    s_mul_i32 s{S_NEG}, s2, {NPB}""")
    L = LANE
    PF = OPT.get("pf", 0)
    a(f"""v_lshrrev_b32 v8, 3, v{TID}
    v_lshlrev_b32 v9, 10, v8
    s_lshl_b32 s28, s2, 2
    v_add_u32 v9, s28, v9
    v_lshlrev_b32 v10, 4, v{L}
    v_and_b32 v11, 1, v{L}
    v_lshlrev_b32 v11, 5, v11
    v_bfe_u32 v12, v{L}, 1, 4
    v_add_u32 v11, v11, v12
    v_lshlrev_b32 v11, 1, v11
    v_lshrrev_b32 v12, 5, v{L}
    v_lshl_add_u32 v11, v12, 10, v11
    v_and_b32 v12, 31, v{L}
    v_lshlrev_b32 v12, 1, v12
    s_mul_i32 s29, s3, {BTP}
    s_add_u32 m0, s29, {L_BT}
    s_lshl_b32 s94, s3, 10
    s_add_u32 s95, s{S_NEG}, {N}
    s_lshl_b32 s95, s95, 9
    s_mov_b32 s96, 65536
    s_mov_b32 s97, 131072
    s_mov_b32 s98, 196608
    s_waitcnt lgkmcnt(0)""")
    wsshift(a)
    stamp(a, 11, 253)
    srd(a, 28, WS, OFF, CH*1024)
    a(f"""buffer_load_dword v{OFR}, v9, s[28:31], 0 offen
    buffer_load_dword v{OFR+1}, v9, s[28:31], s96 offen
    buffer_load_dword v{OFR+2}, v9, s[28:31], s97 offen
    buffer_load_dword v{OFR+3}, v9, s[28:31], s98 offen""")
    srd(a, 40, WS, "s95", NPB*512)
    srd(a, 32, WS, REC, CH*CE*12); srd(a, 36, WS, None, AROWS, stride=512)
    a(f"""L2_batch:
    v_lshlrev_b32 v104, 4, v{TID}""")
    for j in range(4): a(f"v_mov_b32 v{96+j}, -1\nv_mov_b32 v{100+j}, 0")
    a(f"ds_write_b128 v104, v[96:99] offset:{L_IDX}")
    for i in range(5): a(f"ds_write_b128 v104, v[100:103] offset:{L_CNT + 8192*i}")
    a(f"""v_cmp_gt_u32 vcc, {(L_BT-L_CNT)//16 - 2560}, v{TID}
    s_and_b64 exec, exec, vcc
    ds_write_b128 v104, v[100:103] offset:{L_CNT + 8192*5}
    v_mov_b32 v96, {L_NULL}
    v_mov_b32 v97, {L_NULL}
    v_mov_b32 v98, {L_NULL}
    v_mov_b32 v99, {L_NULL}
    v_cmp_gt_u32 vcc, 128, v{TID}
    s_and_b64 exec, exec, vcc
    ds_write_b128 v104, v[96:99] offset:{L_QA}
    s_mov_b64 exec, -1
    s_cmp_eq_u32 s{S_FIRST}, 0
    s_cbranch_scc1 L2_b1""")
    stamp(a, 12, 253)
    for q in range(4):
        if q == 3: a("s_cmp_lg_u32 s3, 0\ns_cbranch_scc1 L2_bt")
        a(f"buffer_load_dwordx4 v10, s[40:43], s94 offen lds")
        if q < 3: a(f"s_add_u32 m0, m0, {8*BTP}\ns_add_u32 s94, s94, 8192")
    a("s_waitcnt vmcnt(4)\nL2_bt:")
    srd(a, 44, WS, MAXA, 196*4); srd(a, 48, WS, MAXE, CH*4); srd(a, 52, W1, None, 260*512); srd(a, 40, B2, None, 256)
    a(f"""s_lshl_b32 s96, s{S_CG}, 7
    s_add_u32 s97, s96, {256*512}
    s_lshl_b32 s96, s{S_CG}, 6
    buffer_load_dwordx4 v[244:247], v10, s[44:47], 0 offen
    buffer_load_dwordx4 v[248:251], v10, s[48:51], 0 offen
    buffer_load_ushort v56, v11, s[52:55], s97 offen
    buffer_load_ushort v57, v11, s[52:55], s97 offen offset:512
    buffer_load_ushort v58, v11, s[52:55], s97 offen offset:32
    buffer_load_ushort v59, v11, s[52:55], s97 offen offset:544
    buffer_load_ushort v252, v12, s[40:43], s96 offen
    s_waitcnt vmcnt(10)
    L2_b1:""")
    stamp(a, 1, 253)
    a(f"""v_and_b32 v112, 7, v{L}
    v_add_u32 v112, s{S_BASE}, v112
    s_add_u32 s96, s{S_BASE}, s{S_LIM}
    v_lshrrev_b32 v113, 3, v{TID}
    v_mul_u32_u24 v113, {CE*12}, v113
    s_mov_b32 s{S_K}, 0""")
    for i in range(4):
        a(f"""v_lshrrev_b32 v{104+i}, 16, v{OFR+i}
        v_min_u32 v{104+i}, s96, v{104+i}
        s_bitcmp1_b32 s{S_IMASK}, {i}
        s_cselect_b32 s98, -1, 0
        v_and_b32 v{104+i}, s98, v{104+i}
        v_and_b32 v114, 0xffff, v{OFR+i}
        v_add_u32 v114, v114, v112
        v_mad_u32_u24 v{108+i}, v114, 12, v113""")
        if i < 3: a(f"v_add_u32 v113, {64*CE*12}, v113")
    for rnd in range(3):
        if rnd: a("v_add_u32 v112, 8, v112")
        for i in range(4): a(f"v_cmp_lt_u32 {sr(MASK+2*(4*rnd+i),2)}, v112, v{104+i}")
        if rnd == 2:
            a(f"""s_or_b64 s[96:97], {sr(MASK+16,2)}, {sr(MASK+18,2)}
            s_or_b64 s[98:99], {sr(MASK+20,2)}, {sr(MASK+22,2)}
            s_or_b64 s[96:97], s[96:97], s[98:99]
            s_cselect_b32 s{S_R2}, 1, 0
            s_cbranch_scc0 L2_r11""")
        for i in range(4):
            k = 4*rnd + i
            a(f"""s_mov_b64 exec, {sr(MASK+2*k,2)}
            s_cbranch_execz L2_r{k}
            buffer_load_dwordx3 {vr(RECR+4*k,3)}, v{108+i}, s[32:35], 0 offen offset:{96*rnd}
            s_add_u32 s{S_K}, s{S_K}, 1
            L2_r{k}:""")
        a("s_mov_b64 exec, -1")
    a(f"""s_waitcnt lgkmcnt(0)
    s_barrier
    s_cmp_eq_u32 s{S_FIRST}, 0
    s_cbranch_scc1 L2_rank0""")
    a(f"""v_lshrrev_b32 v96, 16, v{OFR}
    v_lshrrev_b32 v97, 16, v{OFR+1}
    v_lshrrev_b32 v98, 16, v{OFR+2}
    v_lshrrev_b32 v99, 16, v{OFR+3}
    v_max3_u32 v96, v96, v97, v98
    v_max_u32 v96, v96, v99""")
    dpp_red(a, "v_max_u32", 96)
    a("v_mov_b32 v97, 0")
    lane63(a); a(f"ds_max_u32 v97, v96 offset:{L_MISC+4}"); full(a)
    stamp(a, 3, 253)
    for j in range(32): a(f"v_mov_b32 v{S0+j}, 0")
    n_, h_, one, t0, t1, t2, t3, t4, t5 = 96, 97, 98, 99, 100, 101, 102, 103, 104
    a(f"""v_and_b32 v{n_}, 31, v{L}
    v_lshrrev_b32 v{h_}, 5, v{L}
    v_and_b32 v{t0}, 1, v{L}
    v_lshlrev_b32 v{t0}, 4, v{t0}
    v_mov_b32 v{one}, 0x3f80
    v_lshlrev_b32 v{one}, v{t0}, v{one}
    v_lshrrev_b32 v{t0}, 1, v{n_}
    v_lshlrev_b32 v{t1}, 2, v{h_}
    v_sub_u32 v{t0}, v{t0}, v{t1}""")
    for q in range(8):
        a(f"v_cmp_eq_u32 {sr(94+2*(q%3),2)}, {8*(q//4) + q%4}, v{t0}")
        if q >= 1: a(f"v_cndmask_b32 v{ID0+q-1}, 0, v{one}, {sr(94+2*((q-1)%3),2)}")
    a(f"""v_bfe_u32 v{t1}, v{n_}, 2, 1
    v_cndmask_b32 v{ID0+7}, 0, v{one}, {sr(94+2*(7%3),2)}
    v_lshrrev_b32 v{t2}, 4, v{n_}
    v_xor_b32 v{t1}, v{t1}, v{h_}
    v_lshl_or_b32 v{t1}, v{t1}, 1, v{t2}
    v_cmp_eq_u32 s[94:95], 0, v{t1}
    v_cmp_eq_u32 s[96:97], 1, v{t1}
    s_mov_b32 s98, {NLOG2E}
    v_mov_b32 v{t5}, 0xffff0000
    v_or_b32 v{one}, 0x80008000, v{one}
    v_and_b32 v{t2}, 1, v{L}
    v_cmp_eq_u32 vcc, 0, v{t2}
    v_mov_b32 v{t2}, 0xffff
    v_cndmask_b32 v{t2}, v{t5}, v{t2}, vcc
    v_and_b32 v{one}, v{one}, v{t2}
    v_cndmask_b32 v{A2[0]}, 0, v{one}, s[94:95]
    v_cndmask_b32 v{A2[0]+1}, 0, v{one}, s[96:97]
    v_cndmask_b32 v{A2[1]}, 0, v{one}, s[94:95]
    v_cndmask_b32 v{A2[1]+1}, 0, v{one}, s[96:97]""")
    for n in range(12, 0, -1):
        a(f"s_cmp_lt_u32 s{S_K}, {n}\ns_cbranch_scc1 L2_w{n}\ns_waitcnt vmcnt({n})\ns_branch L2_wd\nL2_w{n}:")
    a("s_waitcnt vmcnt(0)\nL2_wd:")
    stamp(a, 2, 253)
    for c in range(2):
        a(f"""v_lshlrev_b32 v{t1}, 16, v{56+2*c}
        v_lshlrev_b32 v{t2}, 16, v{57+2*c}
        v_mul_f32 v{t1}, s98, v{t1}
        v_mul_f32 v{t2}, s98, v{t2}
        v_cvt_pk_bf16_f32 v{B2R[c]+3}, v{t1}, v{t2}
        v_mul_f32 v{108+c}, v{t1}, v{t1}
        v_fmac_f32 v{108+c}, v{t2}, v{t2}
        v_lshlrev_b32 v{t3}, 16, v{B2R[c]+3}
        v_and_b32 v{t4}, 0xffff0000, v{B2R[c]+3}
        v_sub_f32 v{t1}, v{t1}, v{t3}
        v_sub_f32 v{t2}, v{t2}, v{t4}
        v_cvt_pk_bf16_f32 v{B2R[c]+2}, v{t1}, v{t2}""")
    a("""v_max_u32 v108, v108, v109
    v_max3_u32 v244, v244, v245, v246
    v_max3_u32 v248, v248, v249, v250
    v_max_u32 v244, v244, v247
    v_max_u32 v248, v248, v251""")
    for m in ("row_shr:1", "row_shr:2", "row_shr:4", "row_shr:8"):
        for v in (108, 244, 248): a(f"v_max_u32_dpp v{v}, v{v}, v{v} {m} row_mask:0xf bank_mask:0xf bound_ctrl:0")
    for v in (108, 244, 248): a(f"v_max_u32_dpp v{v}, v{v}, v{v} row_bcast:15 row_mask:0xa bank_mask:0xf")
    a("v_readlane_b32 s96, v108, 31")
    for v in (244, 248): a(f"v_max_u32_dpp v{v}, v{v}, v{v} row_bcast:31 row_mask:0xc bank_mask:0xf")
    a(f"""v_readlane_b32 s97, v108, 63
    v_readlane_b32 s99, v244, 63
    v_readlane_b32 s98, v248, 63
    v_mov_b32 v171, s96
    v_bfe_u32 v{t1}, v{n_}, 2, 1
    v_add_f32 v171, s97, v171
    v_lshlrev_b32 v{t1}, 4, v{t1}
    v_mul_f32 v171, s98, v171
    v_lshrrev_b32 v{t2}, 4, v{n_}
    v_sqrt_f32 v171, v171
    v_lshl_or_b32 v{t1}, v{t2}, 3, v{t1}
    v_fma_f32 v171, s99, 2.0, v171
    v_and_b32 v{t3}, 1, v{n_}
    v_lshl_or_b32 v{t1}, v{t3}, 2, v{t1}
    v_bfe_u32 v{t4}, v{n_}, 3, 1
    v_lshl_or_b32 v{t1}, v{t4}, 1, v{t1}
    v_bfe_u32 v{t5}, v{n_}, 1, 1
    v_or_b32 v{t1}, v{t1}, v{t5}
    v_lshl_or_b32 v{t3}, v{t4}, 1, v{t3}
    v_lshl_or_b32 v{t3}, v{t2}, 2, v{t3}
    v_xor_b32 v{t3}, v{t3}, v{h_}
    v_lshlrev_b32 v{t3}, 4, v{t3}
    v_lshl_add_u32 v{t3}, v{t1}, 7, v{t3}
    v_add_u32 v{RA}, s{S_STG}, v{t3}
    v_lshlrev_b32 v172, 3, v{t1}
    v_lshl_add_u32 v172, v{h_}, 2, v172""")
    for s in range(1, 4): a(f"v_xor_b32 v{RA+s}, {32*s}, v{RA}")
    a(f"""v_bfe_u32 v{t1}, v{L}, 4, 1
    v_lshlrev_b32 v{t2}, 1, v{t1}
    v_or_b32 v{t2}, v{t2}, v{h_}
    v_and_b32 v{t3}, 7, v{L}
    v_xor_b32 v{t2}, v{t2}, v{t3}
    s_lshl_b32 s96, s{S_CG}, 7
    v_lshl_add_u32 v{IP+1}, v{t2}, 4, s96
    v_xor_b32 v{IP+3}, 64, v{IP+1}
    v_mov_b32 v{IP+5}, v{IP+1}
    v_mov_b32 v{IP+7}, v{IP+3}
    v_lshlrev_b32 v{t1}, 5, v{t1}
    v_and_b32 v{t3}, 3, v{L}
    v_lshl_add_u32 v{t1}, v{t3}, 3, v{t1}
    v_add_u32 v{QST}, s96, v{t1}
    v_bfe_u32 v{t1}, v{L}, 2, 2
    v_lshl_add_u32 v173, v{h_}, 2, v{t1}
    v_lshlrev_b32 v173, 2, v173
    L2_rank0:
    s_waitcnt vmcnt(0)
    L2_rank2:""")
    stamp(a, 5, 253)
    RK, R2 = 96, 108
    for k in range(12):
        if k == 8: a(f"s_cmp_eq_u32 s{S_R2}, 0\ns_cbranch_scc1 L2_k12")
        a(f"""s_mov_b64 exec, {sr(MASK+2*k,2)}
        v_lshrrev_b32 v{RK+k}, 14, v{RECR+4*k+2}
        ds_add_rtn_u32 v{RECR+4*k+3}, v{RK+k}, v{VONE} offset:{L_CNT}""")
    C_, PC, MI, INC, ST = 48, 49, 50, 52, 53
    a(f"""L2_k12:
    s_mov_b64 exec, -1
    v_lshlrev_b32 v54, 2, v{L}
    v_mov_b32 v55, 0
    s_waitcnt lgkmcnt(0)
    s_barrier
    ds_read_b32 v{C_}, v54 offset:{L_CNT}
    ds_read_b64 v[{MI}:{MI+1}], v55 offset:{L_MISC}
    s_waitcnt lgkmcnt(1)
    v_add_u32 v{PC}, 3, v{C_}
    v_and_b32 v{PC}, -4, v{PC}
    v_mov_b32 v{INC}, v{PC}""")
    dpp_red(a, "v_add_u32", INC)
    a(f"""v_sub_u32 v{ST}, v{INC}, v{PC}
    v_readlane_b32 s96, v{INC}, 63
    v_readlane_b32 s97, v{ST}, 17
    v_readlane_b32 s98, v{ST}, 32
    s_cmp_eq_u32 s{S_FIRST}, 0
    s_cbranch_scc1 L2_s1
    s_waitcnt lgkmcnt(0)
    v_readfirstlane_b32 s{S_MAXC}, v{MI+1}
    v_mov_b32 v54, 0x41f00000
    v_cmp_lt_f32 vcc, v171, v54
    s_cmp_eq_u64 vcc, 0
    s_cselect_b32 s{S_SAFE}, 1, 0
    s_mov_b32 s{S_FIRST}, 0
    L2_s1:
    s_add_u32 s{S_PI}, s96, 64
    s_lshr_b32 s{S_PI}, s{S_PI}, 7
    s_add_u32 s97, s97, 63
    s_lshr_b32 s97, s97, 6
    s_max_u32 s{S_PI}, s{S_PI}, s97
    s_add_u32 s97, s98, 63
    s_lshr_b32 s97, s97, 6
    s_min_u32 s{S_PI}, s{S_PI}, s97
    s_lshl_b32 s97, s{S_PI}, 6
    s_max_u32 s97, s97, s98
    s_sub_u32 s97, s97, s98
    s_add_u32 s96, s96, s97
    s_add_u32 s96, s96, 31
    s_lshr_b32 s96, s96, 5
    s_mov_b32 exec_lo, 0
    v_add_u32 v{ST}, s97, v{ST}
    s_mov_b64 exec, -1
    s_cmp_lg_u32 s{S_SLOW}, 0
    s_cbranch_scc1 L2_s2
    s_cmp_gt_u32 s96, {CAPT}
    s_cselect_b32 s97, 1, 0
    s_cmp_gt_u32 s{S_MAXC}, 24
    s_cselect_b32 s97, 1, s97
    s_cmp_eq_u32 s97, 0
    s_cbranch_scc1 L2_s2
    s_mov_b32 s{S_SLOW}, 1
    s_mov_b32 s{S_LIM}, 8
    s_mov_b32 s{S_IMASK}, 3
    s_barrier
    s_branch L2_batch
    L2_s2:""")
    stamp(a, 6, 253)
    for k in range(12):
        if k == 8: a(f"s_cmp_eq_u32 s{S_R2}, 0\ns_cbranch_scc1 L2_m12")
        a(f"ds_bpermute_b32 v{RK+k}, v{RK+k}, v{ST}")
    a(f"""L2_m12:
    v_add_u32 v{DEG}, v{DEG}, v{C_}
    s_lshl_b32 s97, s{S_PI}, 1
    s_min_u32 s98, s97, s96
    s_sub_u32 s99, s96, s98
    s_cmp_eq_u32 s{S_GRP}, 0
    s_cselect_b32 s{S_N}, s98, s99
    s_cselect_b32 s{S_T0}, 0, s97
    s_cmp_ge_u32 s3, 3
    s_cbranch_scc1 L2_pad
    v_add_u32 v54, s3, v{C_}
    v_cmp_lt_u32 vcc, v54, v{PC}
    s_add_u32 s96, s{S_NEG}, {N}
    s_and_b64 exec, exec, vcc
    v_add_u32 v55, s96, v{L}
    v_add_lshl_u32 v54, v54, v{ST}, 2
    ds_write_b32 v54, v55 offset:{L_IDX}
    s_mov_b64 exec, -1
    L2_pad:
    v_lshrrev_b32 v{PC}, 2, v{PC}
    v_lshrrev_b32 v56, 2, v{ST}
    v_lshrrev_b32 v57, 1, v{L}
    v_mul_u32_u24 v57, {BTP}, v57
    v_and_b32 v58, 1, v{L}
    v_lshl_add_u32 v57, v58, 9, v57
    v_add_u32 v57, {L_BT}, v57
    v_mov_b32 v58, 0x3f80
    s_lshl_b32 s96, s{S_PI}, 4
    s_mov_b32 s97, s3
    L2_q:
    v_cmp_lt_u32 vcc, s97, v{PC}
    v_add_u32 v59, s97, v56
    s_and_b64 exec, exec, vcc
    s_cbranch_execz L2_qd
    v_cmp_le_u32 vcc, s96, v59
    v_lshlrev_b32 v60, 2, v59
    ds_write_b32 v60, v57 offset:{L_QA}
    v_cndmask_b32_e64 v60, 0, 17, vcc
    v_sub_u32 v60, v{L}, v60
    v_lshlrev_b32 v60, 4, v60
    v_and_b32 v61, -16, v59
    v_lshl_add_u32 v60, v61, 6, v60
    v_and_b32 v61, 4, v59
    v_lshl_add_u32 v60, v61, 7, v60
    v_and_b32 v61, 8, v59
    v_add_u32 v60, v60, v61
    v_and_b32 v61, 3, v59
    v_lshl_add_u32 v60, v61, 1, v60
    ds_write_b16 v60, v58 offset:{L_P}
    s_add_u32 s97, s97, 8
    s_branch L2_q
    L2_qd:
    s_mov_b64 exec, -1
    s_waitcnt lgkmcnt(0)""")
    for k in range(12):
        if k == 8: a(f"s_cmp_eq_u32 s{S_R2}, 0\ns_cbranch_scc1 L2_c12")
        a(f"""s_mov_b64 exec, {sr(MASK+2*k,2)}
        v_add_lshl_u32 v{RK+k}, v{RK+k}, v{RECR+4*k+3}, 2
        v_and_b32 v{RECR+4*k+2}, {OPT.get('imask', 0xffff)}, v{RECR+4*k+2}
        v_lshlrev_b32 v{R2+k}, 1, v{RK+k}
        ds_write_b32 v{RK+k}, v{RECR+4*k+2} offset:{L_IDX}
        ds_write_b64 v{R2+k}, {vr(RECR+4*k,2)} offset:{L_EA}""")
    a(f"""L2_c12:
    s_mov_b64 exec, -1
    s_lshl_b32 s96, s{S_T0}, 7
    s_add_u32 s96, s96, {L_IDX-256}
    v_lshrrev_b32 v54, 3, v{L}
    v_lshl_add_u32 v{IB}, v54, 2, s96
    s_lshl_b32 s96, s{S_T0}, 8
    s_add_u32 s96, s96, {L_EA-512}
    v_add_u32 v{EB}, s96, v172
    s_lshl_b32 s96, s{S_T0}, 5
    s_add_u32 s96, s96, {L_QA-64}
    v_add_u32 v{QB}, s96, v173
    s_lshl_b32 s96, s{S_T0}, 9
    s_add_u32 s96, s96, {L_P-1024}
    v_lshl_add_u32 v{PB}, v{L}, 4, s96""")
    for j in range(8): a(f"v_mov_b32 v{HQ0+j}, 0")
    for j in range(4): a(f"v_mov_b32 v{PP+j}, 0")
    a(f"""s_mov_b32 s38, {AROWS}
    s_waitcnt lgkmcnt(0)
    s_barrier
    s_mov_b32 s0, 0
    s_cmp_eq_u32 s{S_N}, 0
    s_cbranch_scc1 L2_done""")
    srd(a, 44, WS, W2OP, 65536)
    a(f"v_lshlrev_b32 v174, 4, v{L}\ns_mov_b32 s0, s{S_N}")
    stamp(a, 7, 253)
    rd_idx(a, 2); a("s_waitcnt lgkmcnt(0)"); dma(a, 0)
    rd_idx(a, 3); a("s_waitcnt lgkmcnt(0)"); dma(a, 1)
    rd_idx(a, 4)
    a(f"""ds_read_b32 v{QV[0]}, v{QB} offset:64
    ds_read_b32 v{QV[1]}, v{QB} offset:96
    ds_read2st64_b32 {vr(A2[0]+2,2)}, v{EB} offset0:2 offset1:2
    s_waitcnt lgkmcnt(0)
    v_add_u32 v{QV[0]}, v{QV[0]}, v{QST}
    v_add_u32 v{QV[1]}, v{QV[1]}, v{QST}
    s_waitcnt vmcnt(4)""")
    rd_rows(a, 0)
    a(f"ds_read_b64_tr_b16 {vr(B2R[0],2)}, v{QV[0]}\ns_waitcnt lgkmcnt(0)")
    dma(a, 0); rd_idx(a, 5)
    a(mfma(D0, ALO, ID0, None)); a(mfma(D0, ALO+4, ID1, D0)); a(mfma(D0, A2[0], B2R[0], D0))
    group(a, 1)
    stamp(a, 8, 253)
    if OPT.get("stamp"): a(f"v_writelane_b32 v253, s{S_N}, 30")
    a(f"s_cmp_lg_u32 s{S_SAFE}, 0\ns_cbranch_scc1 L2_loopS")
    main_loop(a, False, "F")
    main_loop(a, True, "S")
    a(f"""L2_end_odd:
    ds_read_b128 {vr(PP,4)}, v{PB}
    s_waitcnt lgkmcnt(0)""")
    a(mfma(S0, HQ0, PP, S0))
    a("L2_end_even:")
    a(mfma(S1, HQ1, PP, S1))
    a(f"""L2_done:
    s_waitcnt vmcnt(0)
    s_cmp_eq_u32 s{S_SLOW}, 0
    s_cbranch_scc1 L2_epi
    s_add_u32 s{S_BETA}, s{S_BETA}, 1
    s_lshr_b32 s{S_BASE}, s{S_BETA}, 1
    s_lshl_b32 s{S_BASE}, s{S_BASE}, 3
    s_xor_b32 s{S_IMASK}, s{S_IMASK}, 15
    s_cmp_ge_u32 s{S_BASE}, s{S_MAXC}
    s_cbranch_scc1 L2_epi
    s_barrier
    s_branch L2_batch""")
    a("L2_epi:\ns_cmp_gt_u32 s0, 4\ns_cbranch_scc1 L2_epi1")
    srd(a, 44, WS, W2OP, 65536)
    a(f"v_lshlrev_b32 v174, 4, v{L}")
    for k in range(4): w2chunk(a, k)
    a("s_waitcnt vmcnt(0)\nL2_epi1:")
    stamp(a, 9, 253)
    a(f"""v_and_b32 v2, 31, v{L}
    v_lshrrev_b32 v3, 5, v{L}
    s_mov_b32 s94, {NLN2}
    s_mov_b32 s95, {NLN2}
    v_bfe_u32 v5, v2, 1, 3
    v_lshlrev_b32 v5, 4, v5
    v_lshl_add_u32 v5, v2, 7, v5
    v_lshl_add_u32 v6, v3, 3, v5
    v_add_u32 v6, s{S_STG}, v6
    v_lshlrev_b32 v7, 4, v3
    v_xor_b32 v5, v5, v7
    s_lshl_b32 s97, s{S_GRP}, 15
    s_add_u32 s97, s97, {L_STG}
    v_add_u32 v241, s97, v5
    v_xor_b32 v242, 32, v241
    v_xor_b32 v243, 64, v241
    v_xor_b32 v244, 96, v241""")
    for j in range(0, 32, 2): a(f"v_pk_mul_f32 {vr(S0+j,2)}, {vr(S0+j,2)}, s[94:95]")
    for u in range(8):
        a(f"""v_cvt_pk_bf16_f32 v{16+2*u}, v{S0+4*u}, v{S0+4*u+1}
        v_cvt_pk_bf16_f32 v{17+2*u}, v{S0+4*u+2}, v{S0+4*u+3}
        v_xor_b32 v{32+u}, {16*u}, v6
        ds_write_b64 v{32+u}, {vr(16+2*u,2)}""")
    a(f"""s_cmp_lg_u32 s3, 0
    s_cbranch_scc1 L2_e1
    v_cvt_f32_u32 v8, v{DEG}
    v_lshlrev_b32 v9, 2, v{L}
    s_mov_b32 exec_hi, 0
    ds_write_b32 v9, v8 offset:{L_DEG}
    s_mov_b32 exec_lo, 0xfffe0000
    s_mov_b32 exec_hi, 0x1ffff
    ds_write_b32 v9, v8 offset:{L_DEG+128-68}
    s_mov_b64 exec, -1
    L2_e1:
    s_lshl_b32 s97, s{S_GRP}, 7
    v_lshl_add_u32 v245, v3, 4, s97
    s_lshl_b32 s96, s{S_CG}, 7
    s_add_u32 s96, s96, {L_P-512}
    v_lshlrev_b32 v246, 11, v3
    v_lshl_add_u32 v246, v2, 2, v246
    v_add_u32 v246, s96, v246
    s_mul_i32 s96, s{S_GRP}, {17*256}
    s_lshl_b32 s97, s{S_CG}, 6
    s_add_u32 s96, s96, s97
    v_lshlrev_b32 v247, 10, v3
    v_lshl_add_u32 v247, v2, 1, v247
    v_add_u32 v247, s96, v247
    s_sub_u32 s96, {N}, s{S_NEG}
    s_min_u32 s96, s96, {NPB}
    s_lshl_b32 s96, s96, 8
    s_lshl_b32 s97, s{S_NEG}, 8""")
    srd(a, 52, OUT, "s97", "s96")
    a("""s_mov_b32 s97, 4096
    s_waitcnt lgkmcnt(0)
    s_barrier""")
    for s in range(16): a(f"ds_read_b128 {vr(4*s,4)}, v{241+s%4} offset:{8192*(s//4)}")
    for jq in range(4): a(f"ds_read_b128 {vr(96+4*jq,4)}, v245 offset:{L_DEG+32*jq}")
    stamp(a, 10, 253)
    O = 64
    for s in range(16):
        a(f"s_waitcnt lgkmcnt({min(15, 19-s)})")
        a(mfma(O, 4*s, 176+4*s, None if s == 0 else O))
    a(f"""v_lshlrev_b32 v240, 16, v252
    s_cmp_eq_u32 s{S_GRP}, 0
    s_cbranch_scc1 L2_e2""")
    for j in range(8): a(f"ds_write_b32 v246, v{O+j} offset:{(8*(j//4)+j%4+1)*512}")
    a("""L2_e2:
    s_waitcnt lgkmcnt(0)
    s_barrier""")
    a(f"s_cmp_lg_u32 s{S_GRP}, 0\ns_cbranch_scc1 L2_e3")
    for j in range(8, 16): a(f"ds_read_b32 v{j}, v246 offset:{(8*(j//4)+j%4-16)*512}")
    a(f"""s_waitcnt lgkmcnt(0)
    s_mov_b32 exec_lo, 0
    v_add_f32 v{O+8}, v{O+8}, v8
    s_mov_b64 exec, -1""")
    for j in range(9, 16): a(f"v_add_f32 v{O+j}, v{O+j}, v{j}")
    a("L2_e3:")
    for j in range(16): a(f"v_fmac_f32 v{O+j}, v{96+j}, v240")
    for j in range(0, 16, 2): a(f"v_cvt_pk_bf16_f32 v{16+j//2}, v{O+j}, v{O+j+1}")
    def st(j):
        off = (8*(j//4) + j % 4)*256
        so = "0" if off < 4096 else "s97"
        return f"buffer_store_short{'_d16_hi' if j & 1 else ''} v{16+j//2}, v247, s[52:55], {so} offen offset:{off % 4096}"
    a(f"s_cmp_eq_u32 s{S_GRP}, 0\ns_cbranch_scc1 L2_e4\ns_mov_b32 exec_lo, 0")
    a(st(7)); a("s_mov_b64 exec, -1\ns_branch L2_e5\nL2_e4:")
    for j in range(8): a(st(j))
    a("L2_e5:")
    for j in range(8, 16): a(st(j))
    stamp_dump(a, 253, 0, 1)
    a("L2_exit2:\ns_endpgm")


HEAD = """; edge-featured MPNN: K1 = edge partition by dst bucket + A = x@W1a table + operand prep ; K2 = gather/silu/segment-sum/final GEMM
; @launch kernel=k1_kernel grid=({g1},1,1) block=(512,1,1) lds={l1}
; @launch kernel=k2_kernel grid=({g2},1,1) block=(512,1,1) lds={l2}
.amdgcn_target "amdgcn-amd-amdhsa--gfx950"
.text
"""
KD = """.amdhsa_kernel {name}
  .amdhsa_next_free_vgpr {v}
  .amdhsa_next_free_sgpr 102
  .amdhsa_accum_offset {v}
  .amdhsa_group_segment_fixed_size 0
  .amdhsa_kernarg_size 88
  .amdhsa_user_sgpr_count 2
  .amdhsa_user_sgpr_kernarg_segment_ptr 1
  .amdhsa_system_sgpr_workgroup_id_x 1
.end_amdhsa_kernel
"""


def build():
    out = HEAD.format(g1=K1_GRID, l1=K1_LDS, g2=NB, l2=K2_LDS)
    for name, fn in (("k1_kernel", k1), ("k2_kernel", k2)):
        a = Asm(); fn(a)
        out += f".globl {name}\n.p2align 8\n.type {name},@function\n" + a.text(verbose=OPT.get("v", 0))
    out += '.section .rodata,"a"\n.p2align 6\n' + KD.format(name="k1_kernel", v=128) + ".p2align 6\n" + KD.format(name="k2_kernel", v=256)
    return out


if __name__ == "__main__":
    open(sys.argv[1], "w").write(build())
```

```python
import sys, struct
from asmlib import Asm, vr, sr

N, E = 12500, 400000
NPB, NB = 49, 256
CH, CE = 250, 1600
SPLIT, HALF = 23, 6250
ATAB = 0
AROWS = 25088
REC = 13 << 20
OFF = 19 << 20
W1BOP = 20 << 20
W2OP = W1BOP + 65536
MAXA = W2OP + 65536
MAXE = MAXA + 1024
NG = 208
K1_GRID = NG + 3 + CH
K1_LDS = 65536 + 64

def f2u(x): return struct.unpack("<I", struct.pack("<f", x))[0]
NLOG2E = f2u(-1.4426950408889634)
NLN2 = f2u(-0.6931471805599453)

OPT = dict(prio=1, prio_at=32, nt=1, pf=1, k1prio=2)
for a_ in sys.argv[2:]:
    k_, v_ = a_.split("="); OPT[k_] = int(v_)


def srd(a, d, base, add, size, stride=0):
    if add is None:
        a(f"s_mov_b32 s{d}, s{base}\ns_mov_b32 s{d+1}, s{base+1}")
    else:
        a(f"s_add_u32 s{d}, s{base}, {add}\ns_addc_u32 s{d+1}, s{base+1}, 0")
    if stride: a(f"s_or_b32 s{d+1}, s{d+1}, {stride << 16}")
    a(f"s_mov_b32 s{d+2}, {size}\ns_mov_b32 s{d+3}, 0x00020000")


def wsshift(a):
    if OPT.get("wsoff"): a(f"s_add_u32 s24, s24, {OPT['wsoff'] << 20}\ns_addc_u32 s25, s25, 0")


def ldargs(a):
    a("""s_load_dwordx16 s[4:19], s[0:1], 0
    s_load_dwordx4 s[20:23], s[0:1], 64
    s_load_dwordx2 s[24:25], s[0:1], 80""")
X, EA_, SRC, DST, W1, B1, W2, B2, OUT, DBG, WS = 4, 6, 8, 10, 12, 14, 16, 18, 20, 22, 24


def dpp_red(a, op, v, full=True):
    for m in ("row_shr:1", "row_shr:2", "row_shr:4", "row_shr:8"):
        a(f"{op}_dpp v{v}, v{v}, v{v} {m} row_mask:0xf bank_mask:0xf bound_ctrl:0")
    a(f"{op}_dpp v{v}, v{v}, v{v} row_bcast:15 row_mask:0xa bank_mask:0xf")
    if full: a(f"{op}_dpp v{v}, v{v}, v{v} row_bcast:31 row_mask:0xc bank_mask:0xf")


STAMPS = 24 << 20
def stamp(a, k, reg):
    if not OPT.get("stamp"): return
    a(f"s_memrealtime s[100:101]\ns_waitcnt lgkmcnt(0)\nv_writelane_b32 v{reg}, s100, {k}")
    if k in (0, 2, 7, 8, 9, 31): a(f"s_memtime s[100:101]\ns_waitcnt lgkmcnt(0)\nv_writelane_b32 v{reg}, s100, {32+k}")
def stamp_dump(a, reg, tmp, kern):
    if not OPT.get("stamp"): return
    a("s_mov_b64 exec, -1\ns_waitcnt vmcnt(0)")
    stamp(a, 31, reg)
    a(f"""s_lshl_b32 s96, s2, 3
    s_add_u32 s96, s96, s3
    s_lshl_b32 s96, s96, 8
    s_add_u32 s96, s96, {STAMPS + kern*(1 << 20)}""")
    srd(a, 44, WS, "s96", 256)
    a(f"""v_mbcnt_lo_u32_b32 v{tmp}, -1, 0
    v_mbcnt_hi_u32_b32 v{tmp}, -1, v{tmp}
    v_lshlrev_b32 v{tmp}, 2, v{tmp}
    buffer_store_dword v{reg}, v{tmp}, s[44:47], 0 offen""")
def lane63(a): a("s_mov_b32 exec_lo, 0\ns_mov_b32 exec_hi, 0x80000000")
def full(a): a("s_mov_b64 exec, -1")
def mfma(D, A, B, C): return f"v_mfma_f32_32x32x16_bf16 {vr(D,16)}, {vr(A,4)}, {vr(B,4)}, " + ("0" if C is None else vr(C, 16))


def k1(a):
    a("k1_kernel:")
    a(f"s_cmp_ge_u32 s2, {K1_GRID}\ns_cbranch_scc1 L1_exit2")
    if OPT.get("stamp"): a("v_mov_b32 v126, 0")
    stamp(a, 0, 126)
    ldargs(a)
    a(f"""v_and_b32 v1, 63, v0
    v_lshrrev_b32 v2, 6, v0
    s_nop 0
    v_readfirstlane_b32 s3, v2
    s_cmp_le_u32 s2, {NG+2}
    s_cbranch_scc1 L1_gemm
    s_sub_u32 s56, s2, {NG+3}""")
    HIST, START, MAXW = 24576, 25600, 26624
    if OPT.get("k1prio", 1) == 1: a("s_setprio 2")
    a(f"""v_lshlrev_b32 v2, 2, v0
    v_mov_b32 v3, 0
    ds_write_b32 v2, v3 offset:{HIST}
    ds_write_b32 v2, v3 offset:{MAXW}
    v_mov_b32 v60, 0
    v_mov_b32 v61, 1
    s_mul_i32 s26, s56, {CE*4}
    s_lshl_b32 s52, s26, 1
    v_lshlrev_b32 v3, 4, v0
    v_lshlrev_b32 v20, 5, v0
    v_cmp_gt_u32 vcc, {CE//4}, v0
    s_waitcnt lgkmcnt(0)""")
    wsshift(a)
    stamp(a, 5, 126)
    srd(a, 28, DST, None, E*4); srd(a, 32, SRC, None, E*4); srd(a, 36, EA_, None, E*8)
    a(f"""s_and_saveexec_b64 s[54:55], vcc
    s_mov_b64 s[54:55], exec
    s_cbranch_execz L1_p1
    buffer_load_dwordx4 v[4:7], v3, s[28:31], s26 offen{" nt" if OPT.get("nt") else ""}
    buffer_load_dwordx4 v[12:15], v3, s[32:35], s26 offen{" nt" if OPT.get("nt") else ""}
    buffer_load_dwordx4 v[24:27], v20, s[36:39], s52 offen{" nt" if OPT.get("nt") else ""}
    buffer_load_dwordx4 v[28:31], v20, s[36:39], s52 offen offset:16{" nt" if OPT.get("nt") else ""}
    L1_p1:
    s_mov_b64 exec, -1
    s_mul_i32 s26, s56, {CE*12}
    s_add_u32 s26, s26, {REC}""")
    srd(a, 40, WS, "s26", CE*12)
    srd(a, 44, WS, OFF, CH*1024)
    srd(a, 48, WS, MAXE, CH*4)
    if OPT.get("k1prio", 1) == 2: a("s_setprio 2")
    a("""s_barrier
    s_mov_b64 exec, s[54:55]
    s_cbranch_execz L1_p2
    s_waitcnt vmcnt(3)""")
    stamp(a, 1, 126)
    for k in range(4):
        a(f"""v_mul_u32_u24 v21, 10700, v{4+k}
        v_lshrrev_b32 v21, 19, v21
        v_lshlrev_b32 v{40+k}, 2, v21
        ds_add_rtn_u32 v{48+k}, v{40+k}, v61 offset:{HIST}
        v_mul_u32_u24 v21, {NPB}, v21
        v_sub_u32 v{4+k}, v{4+k}, v21""")
    a("L1_p2:")
    full(a)
    a(f"""v_lshlrev_b32 v2, 4, v1
    s_waitcnt lgkmcnt(0)
    s_barrier
    """)
    stamp(a, 3, 126)
    a(f"""ds_read_b128 v[32:35], v2 offset:{HIST}
    s_waitcnt lgkmcnt(0)
    v_add_u32 v8, v32, v33
    v_add_u32 v9, v8, v34
    v_add_u32 v10, v9, v35
    v_mov_b32 v11, v10""")
    dpp_red(a, "v_add_u32", 11)
    a(f"""v_sub_u32 v56, v11, v10
    v_add_u32 v57, v56, v32
    v_add_u32 v58, v56, v8
    v_add_u32 v59, v56, v9
    ds_write_b128 v2, v[56:59] offset:{START}
    s_waitcnt lgkmcnt(0)
    s_mov_b64 exec, s[54:55]
    s_cbranch_execz L1_p4""")
    for k in range(4): a(f"ds_read_b32 v{40+k}, v{40+k} offset:{START}")
    a("s_waitcnt vmcnt(0)")
    for k in range(4):
        a(f"""v_add_u32 v21, {16384-HALF}, v{12+k}
        v_lshl_or_b32 v{12+k}, v{4+k}, 17, v{12+k}
        v_lshrrev_b32 v21, 14, v21
        v_lshl_or_b32 v{12+k}, v21, 23, v{12+k}""")
    for k in range(4):
        a(f"""s_waitcnt lgkmcnt({3+k})
        v_add_u32 v{40+k}, v{40+k}, v{48+k}
        v_mul_u32_u24 v{40+k}, 12, v{40+k}
        ds_write2_b32 v{40+k}, v{24+2*k}, v{25+2*k} offset0:0 offset1:1
        ds_write_b32 v{40+k}, v{12+k} offset:8""")
    for k in range(4): a(f"v_dot2_f32_bf16 v{4+k}, v{24+2*k}, v{24+2*k}, 0")
    for k in range(4): a(f"v_dot2_f32_bf16 v{4+k}, v{25+2*k}, v{25+2*k}, v{4+k}")
    a("s_nop 2\nv_max3_u32 v60, v4, v5, v6\nv_max_u32 v60, v60, v7")
    a("L1_p4:")
    full(a)
    dpp_red(a, "v_max_u32", 60)
    a("v_mov_b32 v21, 0")
    lane63(a)
    a(f"ds_max_u32 v21, v60 offset:{MAXW}")
    full(a)
    stamp(a, 2, 126)
    a(f"""s_cmp_lg_u32 s3, 7
    s_cbranch_scc1 L1_p3
    v_lshl_or_b32 v32, v32, 16, v56
    v_lshl_or_b32 v33, v33, 16, v57
    v_lshl_or_b32 v34, v34, 16, v58
    v_lshl_or_b32 v35, v35, 16, v59
    v_mul_u32_u24 v2, {CH*16}, v1
    s_lshl_b32 s26, s56, 4
    buffer_store_dwordx4 v[32:35], v2, s[44:47], s26 offen sc1
    L1_p3:
    s_waitcnt lgkmcnt(0)
    s_barrier""")
    stamp(a, 4, 126)
    for i in range(3): a(f"ds_read_b128 {vr(4+4*i,4)}, v3 offset:{8192*i}")
    a(f"ds_read_b32 v24, v21 offset:{MAXW}")
    for i in range(3):
        a(f"s_mov_b32 s26, {8192*i}\ns_waitcnt lgkmcnt({3-i})\nbuffer_store_dwordx4 {vr(4+4*i,4)}, v3, s[40:43], s26 offen sc1")
    a(f"""s_lshl_b32 s26, s56, 2
    v_cmp_eq_u32 vcc, 0, v0
    s_and_saveexec_b64 s[54:55], vcc
    s_cbranch_execz L1_exit
    s_waitcnt lgkmcnt(0)
    buffer_store_dword v24, v21, s[48:51], s26 offen sc1
    s_branch L1_exit""")

    WOP = 56
    NTF = " nt" if OPT.get("ntx", 1) else ""
    a(f"""L1_gemm:
    s_cmp_eq_u32 s2, {NG+2}
    s_cbranch_scc1 L1_w2
    s_bfe_u32 s27, s2, 0x10003
    s_lshr_b32 s28, s2, 4
    s_lshl_b32 s28, s28, 3
    s_and_b32 s29, s2, 7
    s_add_u32 s28, s28, s29
    s_cmp_ge_u32 s2, {NG}
    s_cselect_b32 s27, s29, s27
    s_cbranch_scc1 L1_g1
    s_cmp_ge_u32 s28, 98
    s_cbranch_scc1 L1_exit2
    L1_g1:
    v_lshrrev_b32 v18, 4, v1
    v_and_b32 v19, 15, v1
    v_lshlrev_b32 v24, 2, v18
    v_xor_b32 v24, v24, v19
    v_lshlrev_b32 v24, 4, v24
    v_lshl_or_b32 v124, v18, 9, v24""")
    for ii in range(4):
        a(f"""v_add_u32 v20, {4*ii}, v18
        v_xor_b32 v20, v20, v19
        v_lshlrev_b32 v20, 4, v20
        v_lshl_or_b32 v{25+ii}, v18, 8, v20""")
    a(f"""v_mov_b32 v2, 0
    v_mov_b32 v3, 65536
    ds_write_b32 v3, v2
    s_lshl_b32 s43, s3, 13
    s_lshl_b32 s30, s27, 8
    s_add_u32 s43, s43, s30
    s_cmp_ge_u32 s2, {NG}
    s_cselect_b32 s31, {128*512}, 0
    s_add_u32 s43, s43, s31
    s_lshl_b32 s31, s3, 12
    s_lshl_b32 s29, s28, 15
    s_add_u32 s29, s29, s31
    s_add_u32 m0, s31, 32768
    s_and_b32 s40, s3, 1
    s_lshr_b32 s41, s3, 1
    v_and_b32 v7, 31, v1
    v_lshlrev_b32 v20, 1, v7
    s_lshl_b32 s42, s40, 7
    s_add_u32 s42, s42, s30
    s_waitcnt lgkmcnt(0)""")
    wsshift(a)
    stamp(a, 5, 126)
    srd(a, 32, W1, None, 260*512); srd(a, 36, X, None, N*256)
    for ii in range(4):
        a(f"buffer_load_dwordx4 v{25+ii}, s[36:39], s29 offen{NTF} lds")
        if ii < 3: a("s_add_u32 m0, m0, 1024\ns_add_u32 s29, s29, 1024")
    a("s_mov_b32 m0, s31\ns_nop 0")
    for ii in range(4):
        a(f"buffer_load_dwordx4 v124, s[32:35], s43 offen lds")
        a("s_add_u32 m0, m0, 1024\ns_add_u32 s43, s43, 2048")
    stamp(a, 6, 126)
    a(f"""v_bfe_u32 v18, v1, 2, 2
    v_lshrrev_b32 v6, 5, v1
    v_lshl_add_u32 v19, v6, 3, v18
    v_lshlrev_b32 v19, 8, v19
    v_bfe_u32 v20, v1, 4, 1
    v_lshlrev_b32 v20, 5, v20
    v_and_b32 v21, 3, v1
    v_lshl_add_u32 v20, v21, 3, v20
    v_add_u32 v19, v19, v20
    s_lshl_b32 s42, s40, 1
    v_xor_b32 v20, s42, v18
    v_lshl_add_u32 v120, v20, 6, v19
    v_xor_b32 v20, 1, v20
    v_lshl_add_u32 v121, v20, 6, v19
    s_lshl_b32 s42, s41, 5
    v_add_u32 v19, s42, v7
    v_lshlrev_b32 v19, 8, v19
    v_and_b32 v20, 15, v1
    v_xor_b32 v20, v20, v6
    v_lshl_add_u32 v10, v20, 4, v19
    v_add_u32 v10, 32768, v10""")
    for s in range(1, 8): a(f"v_xor_b32 v{10+s}, {32*s}, v10")
    srd(a, 44, WS, None, N*512)
    a(f"""s_lshl_b32 s42, s28, 2
    s_add_u32 s42, s42, s41
    s_lshl_b32 s42, s42, 14
    s_lshl_b32 s48, s27, 1
    s_add_u32 s48, s48, s40
    s_lshl_b32 s48, s48, 7
    s_add_u32 s48, s42, s48
    s_add_u32 s30, s31, 32768
    v_lshlrev_b32 v4, 9, v6
    v_lshl_add_u32 v4, v7, 2, v4
    v_add_u32 v4, s30, v4
    v_lshl_add_u32 v6, v1, 4, s30
    v_lshrrev_b32 v7, 3, v1
    v_lshlrev_b32 v7, 9, v7
    v_and_b32 v18, 7, v1
    v_lshl_add_u32 v7, v18, 4, v7
    s_mov_b32 s52, {NLOG2E}
    s_mov_b32 s53, {NLOG2E}
    s_mov_b32 s60, {NLOG2E ^ 0x80000000}
    s_mov_b32 s61, {NLOG2E ^ 0x80000000}
    v_mov_b32 v5, 0
    v_mov_b32 v125, 0x80008000""")
    a("s_waitcnt vmcnt(0)\ns_barrier")
    stamp(a, 1, 126)
    def wread(t):
        for s in range(8):
            for hf in range(2):
                a(f"ds_read_b64_tr_b16 {vr(WOP+32*t+4*s+2*hf,2)}, v{120+t} offset:{4096*s+1024*hf}")
    for s in range(8): a(f"ds_read_b128 {vr(24+4*s,4)}, v{10+s}")
    GD0, GD1, CV, RB = 8, WOP, 72, 88
    wread(0); wread(1)
    a(f"s_cmp_ge_u32 s2, {NG}\ns_cbranch_scc1 L1_w1b")
    a("s_waitcnt lgkmcnt(15)")
    for s in range(8): a(mfma(GD0, 24+4*s, WOP+4*s, None if s == 0 else GD0))
    a("s_waitcnt lgkmcnt(0)\ns_barrier")
    stamp(a, 3, 126)
    for s in range(8):
        a(mfma(GD1, 24+4*s, WOP+32+4*s, None if s == 0 else GD1))
        if s >= 2:
            for j in range((s-2)*3, min(16, (s-1)*3)): a(f"v_mul_f32 v{GD0+j}, s52, v{GD0+j}")
    for j in range(16):
        a(f"""v_mul_f32 v{GD1+j}, s52, v{GD1+j}
        v_cvt_pk_bf16_f32 v{CV+j}, v{GD0+j}, v{GD1+j}
        ds_write_b32 v4, v{CV+j} offset:{128*(8*(j//4)+j%4)}""")
    a("s_waitcnt lgkmcnt(0)")
    stamp(a, 4, 126)
    for i in range(4): a(f"ds_read_b128 {vr(RB+4*i,4)}, v6 offset:{1024*i}")
    for j in range(16): a(f"v_pk_max_i16 v5, v5, v{CV+j}")
    for i in range(4):
        a(f"s_waitcnt lgkmcnt({3-i})\nbuffer_store_dwordx4 {vr(RB+4*i,4)}, v7, s[44:47], s48 offen sc1\ns_add_u32 s48, s48, 4096")
    stamp(a, 2, 126)
    a("""v_lshlrev_b32 v6, 16, v5
    v_and_b32 v5, 0xffff0000, v5
    v_max_u32 v5, v5, v6""")
    dpp_red(a, "v_max_u32", 5)
    lane63(a)
    a("ds_max_u32 v3, v5")
    full(a)
    srd(a, 44, WS, MAXA, 196*4)
    a(f"""s_lshl_b32 s26, s28, 1
    s_add_u32 s26, s26, s27
    s_lshl_b32 s26, s26, 2
    s_waitcnt lgkmcnt(0)
    s_barrier
    v_cmp_eq_u32 vcc, 0, v0
    s_and_saveexec_b64 s[54:55], vcc
    s_cbranch_execz L1_exit
    ds_read_b32 v6, v3
    s_waitcnt lgkmcnt(0)
    buffer_store_dword v6, v2, s[44:47], s26 offen sc1
    s_branch L1_exit""")
    a(f"""L1_w1b:
    s_lshl_b32 s43, s27, 1
    s_add_u32 s43, s43, s40
    s_lshl_b32 s43, s43, 14
    v_lshlrev_b32 v2, 4, v1""")
    srd(a, 44, WS, W1BOP, 65536)
    a("s_cmp_lg_u32 s41, 0\ns_cbranch_scc1 L1_exit\ns_waitcnt lgkmcnt(0)")
    for q in range(16):
        a(f"buffer_store_dwordx4 {vr(WOP+4*q,4)}, v2, s[44:47], s43 offen sc1\ns_add_u32 s43, s43, 1024")
    a("s_branch L1_exit")
    a(f"""L1_w2:
    v_lshlrev_b32 v2, 4, v1
    s_lshl_b32 s29, s3, 13
    s_mov_b32 m0, s29
    s_waitcnt lgkmcnt(0)""")
    wsshift(a)
    srd(a, 32, W2, None, 65536)
    for ii in range(8):
        a("buffer_load_dwordx4 v2, s[32:35], s29 offen lds")
        if ii < 7: a("s_add_u32 s29, s29, 1024\ns_add_u32 m0, m0, 1024")
    a(f"""s_and_b32 s40, s3, 3
    s_lshr_b32 s41, s3, 2
    v_bfe_u32 v5, v1, 2, 1
    v_lshlrev_b32 v5, 5, v5
    v_bfe_u32 v6, v1, 3, 1
    v_add_u32 v5, v5, v6
    v_lshrrev_b32 v6, 5, v1
    v_lshl_add_u32 v5, v6, 2, v5
    v_lshlrev_b32 v5, 8, v5
    v_bfe_u32 v6, v1, 4, 1
    v_lshl_add_u32 v5, v6, 5, v5
    v_and_b32 v6, 3, v1
    v_lshl_add_u32 v5, v6, 3, v5
    s_lshl_b32 s42, s40, 6
    s_lshl_b32 s43, s41, 15
    s_add_u32 s42, s42, s43
    v_add_u32 v5, s42, v5
    s_lshl_b32 s43, s40, 14
    s_lshl_b32 s42, s41, 13
    s_add_u32 s43, s43, s42""")
    srd(a, 44, WS, W2OP, 65536)
    a("s_waitcnt vmcnt(0)\ns_barrier")
    for s in range(8):
        for hf in range(2):
            row = 64*(s//4) + 16*((s//2) % 2) + 8*(s % 2) + 2*hf
            a(f"ds_read_b64_tr_b16 {vr(WOP+4*s+2*hf,2)}, v5 offset:{256*row}")
    a("s_waitcnt lgkmcnt(0)")
    for s in range(8):
        a(f"buffer_store_dwordx4 {vr(WOP+4*s,4)}, v2, s[44:47], s43 offen sc1\ns_add_u32 s43, s43, 1024")
    a("L1_exit:")
    stamp_dump(a, 126, 127, 0)
    a("L1_exit2:\ns_endpgm")


CAPT = 60
L_IDX, L_QA, L_TBL, L_CNT, L_MISC, L_DEG, L_EA, L_P, L_BT, L_STG = 256, 8448, 10496, 11520, 12544, 12608, 13056, 28416, 59136, 88064
BTS = 576
L_NULL = L_BT + NPB*BTS
K2_LDS = L_STG + 65536
D0, D1, EE, TT, HQ0, HQ1, S0, S1 = 0, 16, 32, 48, 56, 60, 64, 80
ALO, AHI, ID0, ID1, A2, B2R, PP, IP = 96, (104, 112), 120, 124, (128, 132), (136, 140), 144, 148
QV, QST, RA, IB, EB, QB, PB = (156, 157), 158, 159, 163, 164, 165, 166
TID, LANE, DEG, VONE = 167, 168, 169, 170
RECR, OFR, W2R = 0, 240, 176
MASK = 56
S_BASE, S_LIM, S_IMASK, S_SLOW, S_N, S_T0, S_FIRST, S_K, S_MAXC, S_SAFE, S_PI, S_STG, S_BETA, S_NEG = range(80, 94)
S_R2 = 1
S_EARLY = 87
S_CG, S_GRP = 26, 27


def valu_half(D, hq, safe):
    L = [f"v_exp_f32 v{EE+j}, v{D+j}" for j in range(16)]
    p2 = lambda x: vr(x, 2)
    if not safe:
        for q in range(2): L.append(f"v_pk_add_f32 {p2(TT+4*q)}, {p2(EE+8*q)}, 1.0 op_sel_hi:[1,0]")
        for s in range(1, 4):
            for q in range(2):
                n = D+8*q if s == 1 else TT+4*q+2
                L.append(f"v_pk_fma_f32 {p2(TT+4*q+2)}, {p2(n)}, {p2(EE+8*q+2*s)}, {p2(n)}")
            for q in range(2):
                L.append(f"v_pk_fma_f32 {p2(TT+4*q+2)}, {p2(D+8*q+2*s)}, {p2(TT+4*q)}, {p2(TT+4*q+2)}")
            for q in range(2):
                L.append(f"v_pk_fma_f32 {p2(TT+4*q)}, {p2(TT+4*q)}, {p2(EE+8*q+2*s)}, {p2(TT+4*q)}")
        for q in range(2):
            for p in range(2): L.append(f"v_rcp_f32 v{TT+4*q+p}, v{TT+4*q+p}")
        for q in range(2): L.append(f"v_pk_mul_f32 {p2(TT+4*q+2)}, {p2(TT+4*q+2)}, {p2(TT+4*q)}")
    else:
        for j in range(0, 16, 2): L.append(f"v_pk_add_f32 {p2(EE+j)}, {p2(EE+j)}, 1.0 op_sel_hi:[1,0]")
        for j in range(16): L.append(f"v_rcp_f32 v{EE+j}, v{EE+j}")
        for q in range(2): L.append(f"v_pk_mul_f32 {p2(TT+4*q+2)}, {p2(D+8*q)}, {p2(EE+8*q)}")
        for s in range(1, 4):
            for q in range(2):
                L.append(f"v_pk_fma_f32 {p2(TT+4*q+2)}, {p2(D+8*q+2*s)}, {p2(EE+8*q+2*s)}, {p2(TT+4*q+2)}")
    for q in range(2): L.append(f"v_cvt_pk_bf16_f32 v{hq+q}, v{TT+4*q+2}, v{TT+4*q+3}")
    return L


def weave(V, M, pos):
    out = []
    for i, x in enumerate(V):
        out += [m for m, p in zip(M, pos) if p == i]
        out.append(x)
    return out


def block(a, par, safe):
    M1 = [mfma(D1, AHI[par], ID0, None), mfma(D1, AHI[par]+4, ID1, D1), mfma(D1, A2[par], B2R[1], D1)]
    if par == 0: M1.append(mfma(S1, HQ1, PP, S1))
    M2 = [mfma(D0, ALO, ID0, None), mfma(D0, ALO+4, ID1, D0), mfma(D0, A2[par ^ 1], B2R[0], D0)]
    if par == 1: M2.append(mfma(S0, HQ0, PP, S0))
    pos = [1, 4, 7, 10]
    X = OPT.get("x", 0)
    if X == 1:
        M1 = [mfma(D1, A2[par], B2R[1], None)] + M1[3:]; M2 = [mfma(D0, A2[par ^ 1], B2R[0], None)] + M2[3:]
    if X == 2: M1 = []; M2 = []
    h1 = weave(valu_half(D0, HQ0+2*par, safe), M1, pos)
    h2 = weave(valu_half(D1, HQ1+2*par, safe), M2, pos)
    extra = [f"v_add_u32 v{QV[par]}, v{QV[par]}, v{QST}"]
    if par == 0:
        extra += [f"v_add_u32 v{IB}, 256, v{IB}", f"v_add_u32 v{EB}, 512, v{EB}",
                  f"v_add_u32 v{QB}, 64, v{QB}", f"v_add_u32 v{PB}, 1024, v{PB}"]
    L = h1 + extra + h2
    if X == 3: L = [x for x in L if not x.startswith("v_pk_fma")]
    if X == 4: L = [x.replace("v_exp_f32", "v_cvt_f32_i32") if x.startswith("v_exp") else x for x in L]
    if X == 5: L = [x for x in L if not x.startswith("v_exp")]
    if OPT["prio"]:
        L.insert(OPT["prio_at"], "s_setprio 1"); L.append("s_setprio 0")
    a("\n".join(L))


def dma(a, par):
    a(f"s_add_u32 m0, s{S_STG}, {4096*par}")
    for u in range(4):
        a(f"buffer_load_dwordx4 {vr(IP+2*u,2)}, s[36:39], 0 idxen offen lds")
        if u < 3: a("s_add_u32 m0, m0, 1024")


def rd_idx(a, t):
    for u in range(4): a(f"ds_read_b32 v{IP+2*u}, v{IB} offset:{128*t+32*u}")


def rd_rows(a, par):
    for s in range(4):
        d = ALO+4*s if s < 2 else AHI[par]+4*(s-2)
        a(f"ds_read_b128 {vr(d,4)}, v{RA+s} offset:{4096*par}")


def w2chunk(a, k):
    a(f"s_lshl_b32 s96, s{S_CG}, 14\ns_add_u32 s96, s96, {4096*k}")
    for q in range(4): a(f"buffer_load_dwordx4 {vr(W2R+16*k+4*q,4)}, v174, s[44:47], s96 offen offset:{1024*q}")


def group(a, par, tag=None):
    a("s_waitcnt vmcnt(4)")
    rd_rows(a, par)
    a(f"ds_read_b64_tr_b16 {vr(B2R[1],2)}, v{QV[par^1]} offset:64")
    a(f"ds_read_b64_tr_b16 {vr(B2R[0],2)}, v{QV[par]}")
    a(f"ds_read2st64_b32 {vr(A2[par]+2,2)}, v{EB} offset0:{2+par} offset1:{2+par}")
    if par == 0: a(f"ds_read_b128 {vr(PP,4)}, v{PB}")
    a(f"s_cmp_gt_u32 s{S_N}, 3\ns_cselect_b32 s38, {0 if OPT.get('nodma') else AROWS}, 0")
    if tag: a(f"s_cmp_le_u32 s{S_N}, 4\ns_cbranch_scc1 L2_tl{tag}{par}\nL2_tr{tag}{par}:")
    a(f"s_waitcnt lgkmcnt({4 if par == 0 else 3})")
    dma(a, par)
    rd_idx(a, 5+par)
    a(f"ds_read_b32 v{QV[par^1]}, v{QB} offset:{32*(3+par)}")
    a("s_waitcnt lgkmcnt(0)")


def main_loop(a, safe, tag):
    a(f"L2_loop{tag}:")
    block(a, 0, safe)
    a(f"s_sub_u32 s{S_N}, s{S_N}, 1\ns_cmp_eq_u32 s{S_N}, 0\ns_cbranch_scc1 L2_end_odd")
    group(a, 0, tag)
    block(a, 1, safe)
    a(f"s_sub_u32 s{S_N}, s{S_N}, 1\ns_cmp_eq_u32 s{S_N}, 0\ns_cbranch_scc1 L2_end_even")
    group(a, 1, tag)
    a(f"s_branch L2_loop{tag}")
    for par in range(2):
        a(f"L2_tl{tag}{par}:")
        for k in range(4):
            if k < 3: a(f"s_cmp_lg_u32 s{S_N}, {4-k}\ns_cbranch_scc1 L2_tl{tag}{par}_{k}")
            w2chunk(a, k)
            a(f"s_branch L2_tr{tag}{par}")
            if k < 3: a(f"L2_tl{tag}{par}_{k}:")


def k2(a):
    a("k2_kernel:")
    a(f"s_cmp_ge_u32 s2, {NB}\ns_cbranch_scc1 L2_exit2")
    if OPT.get("stamp"): a("v_mov_b32 v253, 0")
    stamp(a, 0, 253)
    ldargs(a)
    a(f"""v_mov_b32 v{TID}, v0
    v_and_b32 v{LANE}, 63, v0
    v_lshrrev_b32 v2, 6, v0
    v_mov_b32 v{DEG}, 0
    v_readfirstlane_b32 s3, v2
    v_mov_b32 v{VONE}, 1
    s_mov_b32 s{S_BASE}, 0
    s_mov_b32 s{S_LIM}, 24
    s_mov_b32 s{S_IMASK}, 15
    s_mov_b32 s{S_SLOW}, 0
    s_mov_b32 s{S_FIRST}, 1
    s_mov_b32 s{S_BETA}, 0
    s_mov_b32 s{S_SAFE}, 2
    s_and_b32 s{S_CG}, s3, 3
    s_lshr_b32 s{S_GRP}, s3, 2
    s_lshl_b32 s{S_STG}, s3, 13
    s_add_u32 s{S_STG}, s{S_STG}, {L_STG}
    s_and_b32 s{S_K}, s2, 7
    s_lshl_b32 s{S_K}, s{S_K}, 5
    s_lshr_b32 s28, s2, 3
    s_add_u32 s{S_K}, s{S_K}, s28
    s_mul_i32 s{S_NEG}, s{S_K}, {NPB}""")
    L = LANE
    PF = OPT.get("pf", 0)
    a(f"""v_lshrrev_b32 v8, 3, v{TID}
    s_and_b32 s28, s{S_K}, 3
    s_lshl_b32 s28, s28, 2
    v_lshl_add_u32 v9, v8, 4, s28
    v_lshlrev_b32 v120, 4, v{L}
    v_and_b32 v11, 1, v{L}
    v_lshlrev_b32 v11, 5, v11
    v_bfe_u32 v12, v{L}, 1, 4
    v_add_u32 v11, v11, v12
    v_lshlrev_b32 v11, 1, v11
    v_lshrrev_b32 v12, 5, v{L}
    v_lshl_add_u32 v121, v12, 10, v11
    v_and_b32 v12, 31, v{L}
    v_lshlrev_b32 v122, 1, v12
    v_lshrrev_b32 v3, 4, v{L}
    v_and_b32 v4, 15, v{L}
    s_and_b32 s28, s3, 1
    s_lshl_b32 s28, s28, 3
    v_add_u32 v5, s28, v3
    v_xor_b32 v6, v5, v4
    v_lshlrev_b32 v6, 4, v6
    v_lshl_or_b32 v6, v3, 8, v6
    v_xor_b32 v7, 64, v6
    s_lshl_b32 s29, s3, 11
    s_add_u32 m0, s29, {L_BT}
    s_lshl_b32 s30, s{S_NEG}, 8
    s_add_u32 s94, s30, s29
    s_add_u32 s95, s94, 1024
    s_lshr_b32 s96, s{S_K}, 2
    s_mul_i32 s96, s96, {CH*16}
    s_add_u32 s96, s96, {OFF}
    s_waitcnt lgkmcnt(0)""")
    wsshift(a)
    stamp(a, 11, 253)
    srd(a, 28, WS, "s96", CH*16)
    for i in range(4): a(f"buffer_load_dword v{OFR+i}, v9, s[28:31], 0 offen offset:{1024*i}")
    srd(a, 40, X, None, N*256)
    a(f"""buffer_load_dwordx4 v6, s[40:43], s94 offen nt lds
    s_add_u32 m0, m0, 1024
    s_nop 0
    buffer_load_dwordx4 v7, s[40:43], s95 offen nt lds""")
    srd(a, 32, WS, REC, CH*CE*12); srd(a, 36, WS, None, AROWS, stride=512)
    a(f"""L2_batch:
    v_lshlrev_b32 v104, 4, v{TID}""")
    for j in range(4): a(f"v_mov_b32 v{96+j}, -1\nv_mov_b32 v{100+j}, 0")
    a(f"ds_write_b128 v104, v[96:99] offset:{L_IDX}")
    for i in range(5): a(f"ds_write_b128 v104, v[100:103] offset:{L_CNT + 8192*i}")
    a(f"""v_cmp_gt_u32 vcc, {(L_BT-L_CNT)//16 - 2560}, v{TID}
    s_and_b64 exec, exec, vcc
    ds_write_b128 v104, v[100:103] offset:{L_CNT + 8192*5}
    v_mov_b32 v96, {L_NULL}
    v_mov_b32 v97, {L_NULL}
    v_mov_b32 v98, {L_NULL}
    v_mov_b32 v99, {L_NULL}
    v_cmp_gt_u32 vcc, 128, v{TID}
    s_and_b64 exec, exec, vcc
    ds_write_b128 v104, v[96:99] offset:{L_QA}
    s_mov_b64 exec, -1
    s_cmp_eq_u32 s{S_FIRST}, 0
    s_cbranch_scc1 L2_b1""")
    stamp(a, 12, 253)
    a("s_waitcnt vmcnt(2)\nL2_b1:")
    stamp(a, 1, 253)
    a(f"""v_and_b32 v112, 7, v{L}
    v_add_u32 v112, s{S_BASE}, v112
    s_add_u32 s96, s{S_BASE}, s{S_LIM}
    v_lshrrev_b32 v113, 3, v{TID}
    v_mul_u32_u24 v113, {CE*12}, v113
    """)
    for i in range(4):
        a(f"""v_lshrrev_b32 v{104+i}, 16, v{OFR+i}
        v_min_u32 v{104+i}, s96, v{104+i}
        s_bitcmp1_b32 s{S_IMASK}, {i}
        s_cselect_b32 s98, -1, 0
        v_and_b32 v{104+i}, s98, v{104+i}
        v_and_b32 v114, 0xffff, v{OFR+i}
        v_add_u32 v114, v114, v112
        v_mad_u32_u24 v{108+i}, v114, 12, v113""")
        if i < 3: a(f"v_add_u32 v113, {64*CE*12}, v113")
    for rnd in range(3):
        if rnd: a("v_add_u32 v112, 8, v112")
        for i in range(4): a(f"v_cmp_lt_u32 {sr(MASK+2*(4*rnd+i),2)}, v112, v{104+i}")
        if rnd == 2:
            a(f"""s_or_b64 s[96:97], {sr(MASK+16,2)}, {sr(MASK+18,2)}
            s_or_b64 s[98:99], {sr(MASK+20,2)}, {sr(MASK+22,2)}
            s_or_b64 s[96:97], s[96:97], s[98:99]
            s_cselect_b32 s{S_R2}, 1, 0
            s_cbranch_scc0 L2_r11""")
        for i in range(4):
            k = 4*rnd + i
            a(f"""s_mov_b64 exec, {sr(MASK+2*k,2)}
            s_cbranch_execz L2_r{k}
            buffer_load_dwordx3 {vr(RECR+4*k,3)}, v{108+i}, s[32:35], 0 offen offset:{96*rnd}
            L2_r{k}:""")
        a("s_mov_b64 exec, -1")
    a(f"s_cmp_eq_u32 s{S_FIRST}, 0\ns_cbranch_scc1 L2_b2")
    srd(a, 44, WS, MAXA, 196*4); srd(a, 48, WS, MAXE, CH*4); srd(a, 52, W1, None, 260*512); srd(a, 28, B2, None, 256)
    a(f"""s_lshl_b32 s96, s{S_CG}, 7
    s_add_u32 s97, s96, {256*512}
    s_lshl_b32 s96, s{S_CG}, 6
    buffer_load_ushort v56, v121, s[52:55], s97 offen
    buffer_load_ushort v57, v121, s[52:55], s97 offen offset:512
    buffer_load_ushort v58, v121, s[52:55], s97 offen offset:32
    buffer_load_ushort v59, v121, s[52:55], s97 offen offset:544
    buffer_load_dwordx4 v[244:247], v120, s[44:47], 0 offen
    buffer_load_dwordx4 v[248:251], v120, s[48:51], 0 offen
    buffer_load_ushort v252, v122, s[28:31], s96 offen""")
    srd(a, 44, WS, W1BOP, 65536); srd(a, 48, B1, None, 512)
    a(f"""s_lshl_b32 s96, s{S_CG}, 7
    s_lshl_b32 s99, s3, 13
    s_mov_b32 m0, s{S_STG}
    buffer_load_ushort v174, v122, s[48:51], s96 offen
    buffer_load_ushort v175, v122, s[48:51], s96 offen offset:64""")
    for q in range(8):
        if q == 4: a("s_add_u32 m0, m0, 4096\ns_add_u32 s99, s99, 4096")
        a(f"buffer_load_dwordx4 v120, s[44:47], s99 offen offset:{1024*(q%4)} lds")
    a(f"""L2_b2:
    s_waitcnt lgkmcnt(0)
    s_barrier
    s_cmp_eq_u32 s{S_FIRST}, 0
    s_cbranch_scc1 L2_rank0""")
    a(f"""v_lshrrev_b32 v96, 16, v{OFR}
    v_lshrrev_b32 v97, 16, v{OFR+1}
    v_lshrrev_b32 v98, 16, v{OFR+2}
    v_lshrrev_b32 v99, 16, v{OFR+3}
    v_max3_u32 v96, v96, v97, v98
    v_max_u32 v96, v96, v99""")
    dpp_red(a, "v_max_u32", 96)
    a("v_mov_b32 v97, 0")
    lane63(a); a(f"ds_max_u32 v97, v96 offset:{L_MISC+4}"); full(a)
    stamp(a, 3, 253)
    n_, h_, one, t0, t1, t2, t3, t4, t5 = 96, 97, 98, 99, 100, 101, 102, 103, 104
    a(f"""v_and_b32 v{n_}, 31, v{L}
    v_lshrrev_b32 v{h_}, 5, v{L}
    v_and_b32 v{t0}, 1, v{L}
    v_lshlrev_b32 v{t0}, 4, v{t0}
    v_mov_b32 v{one}, 0x3f80
    v_lshlrev_b32 v{one}, v{t0}, v{one}
    v_lshrrev_b32 v{t0}, 1, v{n_}
    v_lshlrev_b32 v{t1}, 2, v{h_}
    v_sub_u32 v{t0}, v{t0}, v{t1}""")
    for q in range(8):
        a(f"v_cmp_eq_u32 {sr(94+2*(q%3),2)}, {8*(q//4) + q%4}, v{t0}")
        if q >= 1: a(f"v_cndmask_b32 v{ID0+q-1}, 0, v{one}, {sr(94+2*((q-1)%3),2)}")
    a(f"""v_bfe_u32 v{t1}, v{n_}, 2, 1
    v_cndmask_b32 v{ID0+7}, 0, v{one}, {sr(94+2*(7%3),2)}
    v_lshrrev_b32 v{t2}, 4, v{n_}
    v_xor_b32 v{t1}, v{t1}, v{h_}
    v_lshl_or_b32 v{t1}, v{t1}, 1, v{t2}
    v_cmp_eq_u32 s[94:95], 0, v{t1}
    v_cmp_eq_u32 s[96:97], 1, v{t1}
    s_mov_b32 s98, {NLOG2E}
    v_cndmask_b32 v{A2[0]}, 0, v{one}, s[94:95]
    v_cndmask_b32 v{A2[0]+1}, 0, v{one}, s[96:97]
    v_cndmask_b32 v{A2[1]}, 0, v{one}, s[94:95]
    v_cndmask_b32 v{A2[1]+1}, 0, v{one}, s[96:97]""")
    a(f"""v_bfe_u32 v{t1}, v{n_}, 2, 1
    v_lshlrev_b32 v{t1}, 4, v{t1}
    v_lshrrev_b32 v{t2}, 4, v{n_}
    v_lshl_or_b32 v{t1}, v{t2}, 3, v{t1}
    v_and_b32 v{t3}, 1, v{n_}
    v_lshl_or_b32 v{t1}, v{t3}, 2, v{t1}
    v_bfe_u32 v{t4}, v{n_}, 3, 1
    v_lshl_or_b32 v{t1}, v{t4}, 1, v{t1}
    v_bfe_u32 v{t5}, v{n_}, 1, 1
    v_or_b32 v{t1}, v{t1}, v{t5}
    v_lshl_or_b32 v{t3}, v{t4}, 1, v{t3}
    v_lshl_or_b32 v{t3}, v{t2}, 2, v{t3}
    v_xor_b32 v{t3}, v{t3}, v{h_}
    v_lshlrev_b32 v{t3}, 4, v{t3}
    v_lshl_add_u32 v{t3}, v{t1}, 7, v{t3}
    v_add_u32 v{RA}, s{S_STG}, v{t3}
    v_lshlrev_b32 v172, 3, v{t1}
    v_lshl_add_u32 v172, v{h_}, 2, v172""")
    for s in range(1, 4): a(f"v_xor_b32 v{RA+s}, {32*s}, v{RA}")
    a(f"""v_bfe_u32 v{t1}, v{L}, 4, 1
    v_lshlrev_b32 v{t2}, 1, v{t1}
    v_or_b32 v{t2}, v{t2}, v{h_}
    v_and_b32 v{t3}, 7, v{L}
    v_xor_b32 v{t2}, v{t2}, v{t3}
    s_lshl_b32 s96, s{S_CG}, 7
    v_lshl_add_u32 v{IP+1}, v{t2}, 4, s96
    v_xor_b32 v{IP+3}, 64, v{IP+1}
    v_mov_b32 v{IP+5}, v{IP+1}
    v_mov_b32 v{IP+7}, v{IP+3}
    v_lshlrev_b32 v{t1}, 5, v{t1}
    v_and_b32 v{t3}, 3, v{L}
    v_lshl_add_u32 v{t1}, v{t3}, 3, v{t1}
    v_add_u32 v{QST}, s96, v{t1}
    v_bfe_u32 v{t1}, v{L}, 2, 2
    v_lshl_add_u32 v173, v{h_}, 2, v{t1}
    v_lshlrev_b32 v173, 2, v173
    s_waitcnt vmcnt(17)
    s_branch L2_rank2
    L2_rank0:
    s_waitcnt vmcnt(0)
    L2_rank2:""")
    stamp(a, 5, 253)
    RK = 96
    for k in range(12):
        if k == 8: a(f"s_cmp_eq_u32 s{S_R2}, 0\ns_cbranch_scc1 L2_k12")
        a(f"""s_mov_b64 exec, {sr(MASK+2*k,2)}
        v_lshrrev_b32 v{RK+k}, 14, v{RECR+4*k+2}
        ds_add_rtn_u32 v{RECR+4*k+3}, v{RK+k}, v{VONE} offset:{L_CNT}""")
    a(f"""L2_k12:
    s_mov_b64 exec, -1
    s_cmp_eq_u32 s{S_FIRST}, 0
    s_cbranch_scc1 L2_k13""")
    if PF:
        srd(a, 44, WS, None, N*512)
        a(f"""s_lshr_b32 s96, s2, 3
        s_lshl_b32 s96, s96, 3
        s_add_u32 s96, s96, s3
        s_mul_i32 s96, s96, {PF*8192}
        v_lshlrev_b32 v48, 7, v{L}""")
        for q in range(PF):
            a(f"buffer_load_dword v255, v48, s[44:47], s96 offen")
            if q < PF-1: a("s_add_u32 s96, s96, 8192")
    a(f"""s_mov_b32 s95, {NLOG2E}
    s_waitcnt vmcnt({8+PF})""")
    for c in range(2):
        a(f"""v_lshlrev_b32 v48, 16, v{56+2*c}
        v_lshlrev_b32 v49, 16, v{57+2*c}
        v_mul_f32 v48, s95, v48
        v_mul_f32 v49, s95, v49
        v_cvt_pk_bf16_f32 v{B2R[c]+3}, v48, v49
        v_mul_f32 v{52+c}, v48, v48
        v_fmac_f32 v{52+c}, v49, v49
        v_lshlrev_b32 v50, 16, v{B2R[c]+3}
        v_and_b32 v51, 0xffff0000, v{B2R[c]+3}
        v_sub_f32 v48, v48, v50
        v_sub_f32 v49, v49, v51
        v_cvt_pk_bf16_f32 v{B2R[c]+2}, v48, v49""")
    a("""v_max_u32 v52, v52, v53
    v_max3_u32 v244, v244, v245, v246
    v_max3_u32 v248, v248, v249, v250
    v_max_u32 v244, v244, v247
    v_max_u32 v248, v248, v251""")
    for m in ("row_shr:1", "row_shr:2", "row_shr:4", "row_shr:8"):
        for v in (52, 244, 248): a(f"v_max_u32_dpp v{v}, v{v}, v{v} {m} row_mask:0xf bank_mask:0xf bound_ctrl:0")
    for v in (52, 244, 248): a(f"v_max_u32_dpp v{v}, v{v}, v{v} row_bcast:15 row_mask:0xa bank_mask:0xf")
    a("v_readlane_b32 s96, v52, 31")
    for v in (244, 248): a(f"v_max_u32_dpp v{v}, v{v}, v{v} row_bcast:31 row_mask:0xc bank_mask:0xf")
    a(f"""v_readlane_b32 s97, v52, 63
    v_readlane_b32 s99, v244, 63
    v_readlane_b32 s98, v248, 63
    v_mov_b32 v171, s96
    v_add_f32 v171, s97, v171
    v_mul_f32 v171, s98, v171
    v_sqrt_f32 v171, v171
    v_add_f32 v171, s99, v171
    s_waitcnt vmcnt({PF})""")
    CL, CU, C_, PC, Q1, Q2, I1, I2, BV = 48, 49, 50, 51, 52, 53, 54, 55, 55
    a(f"""L2_k13:
    v_lshlrev_b32 v62, 3, v{L}
    v_mov_b32 v63, 0
    s_waitcnt lgkmcnt(0)
    s_barrier
    ds_read_b32 v{CL}, v62 offset:{L_CNT}
    ds_read_b32 v{CU}, v62 offset:{L_CNT+512}
    ds_read_b32 v59, v63 offset:{L_MISC+4}
    s_cmp_eq_u32 s{S_FIRST}, 0
    s_cbranch_scc1 L2_o1
    v_and_b32 v54, 31, v{L}
    v_lshrrev_b32 v55, 5, v{L}
    v_and_b32 v56, 15, v{L}
    v_xor_b32 v56, v56, v55
    v_lshlrev_b32 v56, 4, v56
    v_lshl_add_u32 v56, v54, 8, v56
    s_lshl_b32 s96, s{S_GRP}, 13
    s_add_u32 s96, s96, {L_BT}
    v_add_u32 v56, s96, v56
    s_lshl_b32 s96, s{S_CG}, 14
    s_add_u32 s96, s96, {L_STG}
    v_lshl_add_u32 v57, v{L}, 4, s96
    s_waitcnt lgkmcnt(0)""")
    for s in range(8):
        a(f"ds_read_b128 {vr(64+4*s,4)}, v56")
        if s < 7: a(f"v_xor_b32 v56, {32*(s ^ (s+1))}, v56")
    for q in range(16): a(f"ds_read_b128 {vr(W2R+4*q,4)}, v57 offset:{1024*q}")
    a(f"""s_branch L2_o2
    L2_o1:
    s_waitcnt lgkmcnt(0)
    L2_o2:
    v_add_u32 v{C_}, v{CL}, v{CU}
    v_add_u32 v{PC}, 3, v{C_}
    v_and_b32 v{PC}, -4, v{PC}
    v_and_b32 v{Q1}, -4, v{CL}
    v_sub_u32 v{Q2}, v{PC}, v{Q1}
    v_mov_b32 v{I1}, v{Q1}
    v_mov_b32 v{I2}, v{Q2}""")
    for m in ("row_shr:1 row_mask:0xf bank_mask:0xf bound_ctrl:0", "row_shr:2 row_mask:0xf bank_mask:0xf bound_ctrl:0",
              "row_shr:4 row_mask:0xf bank_mask:0xf bound_ctrl:0", "row_shr:8 row_mask:0xf bank_mask:0xf bound_ctrl:0",
              "row_bcast:15 row_mask:0xa bank_mask:0xf", "row_bcast:31 row_mask:0xc bank_mask:0xf"):
        a(f"v_add_u32_dpp v{I1}, v{I1}, v{I1} {m}\nv_add_u32_dpp v{I2}, v{I2}, v{I2} {m}")
    ST1, ST2 = 60, 61
    a(f"""v_sub_u32 v{ST1}, v{I1}, v{Q1}
    v_sub_u32 v{ST2}, v{I2}, v{Q2}
    v_readlane_b32 s94, v{I1}, 63
    v_readlane_b32 s95, v{I2}, 63
    v_readlane_b32 s96, v{ST1}, {SPLIT}
    v_readlane_b32 s97, v{ST2}, {SPLIT}
    v_readlane_b32 s99, v{ST1}, 32
    s_cmp_eq_u32 s{S_FIRST}, 0
    s_cbranch_scc1 L2_s1
    v_readfirstlane_b32 s{S_MAXC}, v59
    L2_s1:
    s_add_u32 s99, s99, s97
    s_add_u32 s0, s94, s97
    s_add_u32 s95, s95, s94
    s_add_u32 s{S_PI}, s95, 64
    s_lshr_b32 s{S_PI}, s{S_PI}, 7
    s_add_u32 s98, s96, s97
    s_add_u32 s98, s98, 63
    s_lshr_b32 s98, s98, 6
    s_max_u32 s{S_PI}, s{S_PI}, s98
    s_add_u32 s98, s99, 63
    s_lshr_b32 s98, s98, 6
    s_min_u32 s{S_PI}, s{S_PI}, s98
    s_lshl_b32 s98, s{S_PI}, 6
    s_max_u32 s98, s98, s99
    s_sub_u32 s98, s98, s99
    s_add_u32 s0, s0, s98
    s_lshl_b32 s{S_EARLY}, s{S_PI}, 6
    s_add_u32 s{S_EARLY}, s{S_EARLY}, 64
    s_cmp_le_u32 s{S_EARLY}, s0
    s_cselect_b32 s{S_EARLY}, 64, -1
    s_cmp_le_u32 s{S_EARLY}, s96
    s_cselect_b32 s{S_EARLY}, 1, 0
    s_add_u32 s94, s94, s98
    s_sub_u32 s94, s94, s96
    v_add_u32 v{ST2}, s96, v{ST2}
    s_mov_b32 exec_lo, {(0xffffffff << SPLIT) & 0xffffffff}
    v_add_u32 v{ST1}, s97, v{ST1}
    v_add_u32 v{ST2}, s94, v{ST2}
    s_mov_b32 exec_lo, 0
    v_add_u32 v{ST1}, s98, v{ST1}
    s_mov_b64 exec, -1
    s_add_u32 s96, s95, s98
    s_add_u32 s96, s96, 31
    s_lshr_b32 s96, s96, 5
    v_sub_u32 v{BV}, v{ST2}, v{Q1}
    v_lshl_or_b32 v{ST2}, v{BV}, 16, v{Q1}
    v_add_lshl_u32 v57, v{BV}, v{CL}, 16
    ds_write_b64 v62, v[{ST1}:{ST2}] offset:{L_TBL}
    ds_write_b64 v62, v[56:57] offset:{L_TBL+512}
    s_cmp_lg_u32 s{S_SLOW}, 0
    s_cbranch_scc1 L2_s2
    s_cmp_gt_u32 s96, {CAPT}
    s_cselect_b32 s97, 1, 0
    s_cmp_gt_u32 s{S_MAXC}, 24
    s_cselect_b32 s97, 1, s97
    s_cmp_eq_u32 s97, 0
    s_cbranch_scc1 L2_s2
    s_mov_b32 s{S_SLOW}, 1
    s_mov_b32 s{S_LIM}, 8
    s_mov_b32 s{S_IMASK}, 3
    s_mov_b32 s{S_FIRST}, 0
    s_waitcnt lgkmcnt(0)
    s_barrier
    s_branch L2_batch
    L2_s2:""")
    stamp(a, 6, 253)
    TB = 104
    for k in range(8): a(f"s_mov_b64 exec, {sr(MASK+2*k,2)}\nds_read_b64 {vr(TB+2*k,2)}, v{RK+k} offset:{L_TBL}")
    a(f"""L2_m12:
    s_mov_b64 exec, -1
    v_add_u32 v{DEG}, v{DEG}, v{C_}
    s_lshl_b32 s97, s{S_PI}, 1
    s_min_u32 s98, s97, s96
    s_sub_u32 s99, s96, s98
    s_cmp_eq_u32 s{S_GRP}, 0
    s_cselect_b32 s{S_N}, s98, s99
    s_cselect_b32 s{S_T0}, 0, s97
    s_cmp_ge_u32 s3, 3
    s_cbranch_scc1 L2_pad
    v_add_u32 v54, s3, v{C_}
    v_cmp_lt_u32 vcc, v54, v{PC}
    s_add_u32 s96, s{S_NEG}, {N}
    s_and_b64 exec, exec, vcc
    v_add_u32 v56, s96, v{L}
    v_add_lshl_u32 v54, v54, v{BV}, 2
    ds_write_b32 v54, v56 offset:{L_IDX}
    s_mov_b64 exec, -1
    L2_pad:
    v_lshrrev_b32 v{PC}, 2, v{PC}
    v_lshrrev_b32 v{Q1}, 2, v{Q1}
    v_lshrrev_b32 v54, 2, v{ST1}
    v_lshrrev_b32 v{BV}, 2, v{BV}
    v_mul_u32_u24 v57, {BTS}, v{L}
    v_add_u32 v57, {L_BT}, v57
    v_mov_b32 v58, 0x3f80
    s_lshl_b32 s96, s{S_PI}, 4
    s_mov_b32 s97, s3
    L2_q:
    v_cmp_lt_u32 s[98:99], s97, v{Q1}
    v_cmp_lt_u32 vcc, s97, v{PC}
    s_and_b64 exec, exec, vcc
    s_cbranch_execz L2_qd
    v_cndmask_b32 v59, v{BV}, v54, s[98:99]
    v_add_u32 v59, s97, v59
    v_cmp_le_u32 vcc, s96, v59
    v_lshlrev_b32 v60, 2, v59
    ds_write_b32 v60, v57 offset:{L_QA}
    v_cndmask_b32_e64 v60, 0, 17, vcc
    v_sub_u32 v60, v{L}, v60
    v_lshlrev_b32 v60, 4, v60
    v_and_b32 v61, -16, v59
    v_lshl_add_u32 v60, v61, 6, v60
    v_and_b32 v61, 4, v59
    v_lshl_add_u32 v60, v61, 7, v60
    v_and_b32 v61, 8, v59
    v_add_u32 v60, v60, v61
    v_and_b32 v61, 3, v59
    v_lshl_add_u32 v60, v61, 1, v60
    ds_write_b16 v60, v58 offset:{L_P}
    s_add_u32 s97, s97, 8
    s_branch L2_q
    L2_qd:
    s_mov_b64 exec, -1
    s_waitcnt lgkmcnt(0)""")
    for k in range(12):
        kk = k % 8
        if k == 8:
            a(f"s_cmp_eq_u32 s{S_R2}, 0\ns_cbranch_scc1 L2_c12")
            for k2 in range(8, 12):
                a(f"""s_mov_b64 exec, {sr(MASK+2*k2,2)}
                v_lshrrev_b32 v{RK+k2-8}, 14, v{RECR+4*k2+2}
                ds_read_b64 {vr(TB+2*(k2-8),2)}, v{RK+k2-8} offset:{L_TBL}""")
            a("s_waitcnt lgkmcnt(0)")
        a(f"""s_mov_b64 exec, {sr(MASK+2*k,2)}
        v_cmp_lt_u32_sdwa vcc, v{RECR+4*k+3}, v{TB+2*kk+1} src0_sel:DWORD src1_sel:WORD_0
        v_and_b32 v{RECR+4*k+2}, {OPT.get('imask', 0x3fff)}, v{RECR+4*k+2}
        v_cndmask_b32_sdwa v{RK+kk}, v{TB+2*kk+1}, v{TB+2*kk}, vcc dst_sel:DWORD dst_unused:UNUSED_PAD src0_sel:WORD_1 src1_sel:DWORD
        v_add_lshl_u32 v{RK+kk}, v{RK+kk}, v{RECR+4*k+3}, 2
        v_lshlrev_b32 v{TB+2*kk}, 1, v{RK+kk}
        ds_write_b32 v{RK+kk}, v{RECR+4*k+2} offset:{L_IDX}
        ds_write_b64 v{TB+2*kk}, {vr(RECR+4*k,2)} offset:{L_EA}""")
    a(f"""L2_c12:
    s_mov_b64 exec, -1
    s_lshl_b32 s96, s{S_T0}, 7
    s_add_u32 s96, s96, {L_IDX-256}
    v_lshrrev_b32 v54, 3, v{L}
    v_lshl_add_u32 v{IB}, v54, 2, s96
    s_lshl_b32 s96, s{S_T0}, 8
    s_add_u32 s96, s96, {L_EA-512}
    v_add_u32 v{EB}, s96, v172
    s_lshl_b32 s96, s{S_T0}, 5
    s_add_u32 s96, s96, {L_QA-64}
    v_add_u32 v{QB}, s96, v173
    s_lshl_b32 s96, s{S_T0}, 9
    s_add_u32 s96, s96, {L_P-1024}
    v_lshl_add_u32 v{PB}, v{L}, 4, s96""")
    for j in range(8): a(f"v_mov_b32 v{HQ0+j}, 0")
    for j in range(4): a(f"v_mov_b32 v{PP+j}, 0")
    a(f"""s_mov_b32 s38, {AROWS}
    s_mov_b32 s{S_FIRST}, 0
    s_waitcnt lgkmcnt(0)
    s_barrier""")
    stamp(a, 7, 253)
    def prime01(tag):
        rd_idx(a, 2); a("s_waitcnt lgkmcnt(0)"); dma(a, 0)
        rd_idx(a, 3); a("s_waitcnt lgkmcnt(0)"); dma(a, 1)
    a(f"""s_cmp_lg_u32 s{S_SAFE}, 2
    s_cbranch_scc1 L2_p1
    s_cmp_eq_u32 s{S_EARLY}, 0
    s_cbranch_scc1 L2_p0""")
    prime01("a")
    a("L2_p0:")
    for s in range(8): a(mfma(0, 64+4*s, W2R+4*s, None if s == 0 else 0))
    a(f"""s_mov_b32 s94, {NLOG2E}
    v_and_b32 v48, 31, v{L}
    v_lshrrev_b32 v49, 5, v{L}
    s_lshl_b32 s96, s{S_CG}, 7
    v_lshl_add_u32 v50, v48, 2, s96
    v_mul_u32_u24 v51, {4*BTS}, v49
    v_add_u32 v51, v51, v50
    s_mul_i32 s96, s{S_GRP}, {32*BTS}
    s_add_u32 s96, s96, {L_BT}
    v_add_u32 v51, s96, v51
    v_lshl_add_u32 v50, v49, 11, v50
    v_mov_b32 v52, 0
    v_mov_b32 v53, 0
    v_lshlrev_b32 v174, 16, v174
    v_lshlrev_b32 v175, 16, v175
    v_mul_f32 v174, s94, v174
    v_mul_f32 v175, s94, v175
    s_add_u32 s96, s{S_NEG}, {N}
    s_lshl_b32 s96, s96, 9
    s_lshl_b32 s99, s{S_GRP}, 14""")
    srd(a, 44, WS, "s96", NPB*512)
    for s in range(8):
        a(mfma(16, 64+4*s, W2R+32+4*s, None if s == 0 else 16))
        for j in range(2*s, 2*s+2): a(f"v_fma_f32 v{j}, v{j}, s94, v174")
    for j in range(16): a(f"v_mov_b32 v{S0+j}, 0")
    for j in range(16):
        if j % 4 == 0 and j: a("s_add_u32 s99, s99, 4096")
        a(f"""v_fma_f32 v{16+j}, v{16+j}, s94, v175
        v_cvt_pk_bf16_f32 v{32+j}, v{j}, v{16+j}
        v_xor_b32 v{j}, 0x80008000, v{32+j}
        buffer_store_dword v{j}, v50, s[44:47], s99 offen offset:{512*(j%4)}""")
    for j in range(16):
        if j == 8: a(f"s_cmp_eq_u32 s{S_GRP}, 0\ns_cselect_b32 exec_hi, -1, 0")
        if j == 9: a("s_cbranch_scc0 L2_bz")
        a(f"ds_write_b32 v51, v{32+j} offset:{(8*(j//4) + j % 4)*BTS}")
    a(f"""s_branch L2_bw
    L2_bz:
    ds_write_b32 v51, v53 offset:{17*BTS}
    s_mov_b64 exec, -1
    L2_bw:""")
    for j in range(16): a(f"v_pk_max_i16 v52, v52, v{32+j}\nv_mov_b32 v{S1+j}, 0")
    a("""v_lshlrev_b32 v49, 16, v52
    v_and_b32 v52, 0xffff0000, v52
    v_max_u32 v52, v52, v49""")
    dpp_red(a, "v_max_u32", 52)
    lane63(a); a(f"ds_max_u32 v53, v52 offset:{L_MISC}"); full(a)
    a(f"""s_waitcnt vmcnt(0) lgkmcnt(0)
    s_barrier
    ds_read_b32 v52, v53 offset:{L_MISC}
    v_mov_b32 v54, 0x41f00000
    s_waitcnt lgkmcnt(0)
    v_add_f32 v171, v171, v52
    v_cmp_lt_f32 vcc, v171, v54
    s_cmp_eq_u64 vcc, 0
    s_cselect_b32 s{S_SAFE}, 1, 0
    s_cmp_lg_u32 s{S_EARLY}, 0
    s_cbranch_scc1 L2_p2
    L2_p1:""")
    prime01("b")
    a(f"""L2_p2:
    s_mov_b32 s0, s{S_N}
    s_cmp_eq_u32 s{S_N}, 0
    s_cbranch_scc1 L2_done""")
    srd(a, 44, WS, W2OP, 65536)
    a(f"v_lshlrev_b32 v174, 4, v{L}")
    rd_idx(a, 4)
    a(f"""ds_read_b32 v{QV[0]}, v{QB} offset:64
    ds_read_b32 v{QV[1]}, v{QB} offset:96
    ds_read2st64_b32 {vr(A2[0]+2,2)}, v{EB} offset0:2 offset1:2
    s_waitcnt lgkmcnt(0)
    v_add_u32 v{QV[0]}, v{QV[0]}, v{QST}
    v_add_u32 v{QV[1]}, v{QV[1]}, v{QST}
    s_waitcnt vmcnt(4)""")
    rd_rows(a, 0)
    a(f"ds_read_b64_tr_b16 {vr(B2R[0],2)}, v{QV[0]}\ns_waitcnt lgkmcnt(0)")
    dma(a, 0); rd_idx(a, 5)
    a(mfma(D0, ALO, ID0, None)); a(mfma(D0, ALO+4, ID1, D0)); a(mfma(D0, A2[0], B2R[0], D0))
    group(a, 1)
    stamp(a, 8, 253)
    if OPT.get("stamp"): a(f"v_writelane_b32 v253, s{S_N}, 30")
    a(f"s_cmp_lg_u32 s{S_SAFE}, 0\ns_cbranch_scc1 L2_loopS")
    main_loop(a, False, "F")
    main_loop(a, True, "S")
    a(f"""L2_end_odd:
    ds_read_b128 {vr(PP,4)}, v{PB}
    s_waitcnt lgkmcnt(0)""")
    a(mfma(S0, HQ0, PP, S0))
    a("L2_end_even:")
    a(mfma(S1, HQ1, PP, S1))
    a(f"""L2_done:
    s_waitcnt vmcnt(0)
    s_cmp_eq_u32 s{S_SLOW}, 0
    s_cbranch_scc1 L2_epi
    s_add_u32 s{S_BETA}, s{S_BETA}, 1
    s_lshr_b32 s{S_BASE}, s{S_BETA}, 1
    s_lshl_b32 s{S_BASE}, s{S_BASE}, 3
    s_xor_b32 s{S_IMASK}, s{S_IMASK}, 15
    s_cmp_ge_u32 s{S_BASE}, s{S_MAXC}
    s_cbranch_scc1 L2_epi
    s_barrier
    s_branch L2_batch""")
    a("L2_epi:\ns_cmp_gt_u32 s0, 4\ns_cbranch_scc1 L2_epi1")
    srd(a, 44, WS, W2OP, 65536)
    a(f"v_lshlrev_b32 v174, 4, v{L}")
    for k in range(4): w2chunk(a, k)
    a("s_waitcnt vmcnt(0)\nL2_epi1:")
    stamp(a, 9, 253)
    a(f"""v_and_b32 v2, 31, v{L}
    v_lshrrev_b32 v3, 5, v{L}
    s_mov_b32 s94, {NLN2}
    s_mov_b32 s95, {NLN2}
    v_bfe_u32 v5, v2, 1, 3
    v_lshlrev_b32 v5, 4, v5
    v_lshl_add_u32 v5, v2, 7, v5
    v_lshl_add_u32 v6, v3, 3, v5
    v_add_u32 v6, s{S_STG}, v6
    v_lshlrev_b32 v7, 4, v3
    v_xor_b32 v5, v5, v7
    s_lshl_b32 s97, s{S_GRP}, 15
    s_add_u32 s97, s97, {L_STG}
    v_add_u32 v241, s97, v5
    v_xor_b32 v242, 32, v241
    v_xor_b32 v243, 64, v241
    v_xor_b32 v244, 96, v241""")
    for j in range(0, 32, 2): a(f"v_pk_mul_f32 {vr(S0+j,2)}, {vr(S0+j,2)}, s[94:95]")
    for u in range(8):
        a(f"""v_cvt_pk_bf16_f32 v{16+2*u}, v{S0+4*u}, v{S0+4*u+1}
        v_cvt_pk_bf16_f32 v{17+2*u}, v{S0+4*u+2}, v{S0+4*u+3}
        v_xor_b32 v{32+u}, {16*u}, v6
        ds_write_b64 v{32+u}, {vr(16+2*u,2)}""")
    a(f"""s_cmp_lg_u32 s3, 0
    s_cbranch_scc1 L2_e1
    v_cvt_f32_u32 v8, v{DEG}
    v_lshlrev_b32 v9, 2, v{L}
    s_mov_b32 exec_hi, 0
    ds_write_b32 v9, v8 offset:{L_DEG}
    s_mov_b32 exec_lo, 0xfffe0000
    s_mov_b32 exec_hi, 0x1ffff
    ds_write_b32 v9, v8 offset:{L_DEG+128-68}
    s_mov_b64 exec, -1
    L2_e1:
    s_lshl_b32 s97, s{S_GRP}, 7
    v_lshl_add_u32 v245, v3, 4, s97
    s_lshl_b32 s96, s{S_CG}, 7
    s_add_u32 s96, s96, {L_P-512}
    v_lshlrev_b32 v246, 11, v3
    v_lshl_add_u32 v246, v2, 2, v246
    v_add_u32 v246, s96, v246
    s_mul_i32 s96, s{S_GRP}, {17*256}
    s_lshl_b32 s97, s{S_CG}, 6
    s_add_u32 s96, s96, s97
    v_lshlrev_b32 v247, 10, v3
    v_lshl_add_u32 v247, v2, 1, v247
    v_add_u32 v247, s96, v247
    s_sub_u32 s96, {N}, s{S_NEG}
    s_min_u32 s96, s96, {NPB}
    s_lshl_b32 s96, s96, 8
    s_lshl_b32 s97, s{S_NEG}, 8""")
    srd(a, 52, OUT, "s97", "s96")
    a("""s_mov_b32 s97, 4096
    s_waitcnt lgkmcnt(0)
    s_barrier""")
    for s in range(16): a(f"ds_read_b128 {vr(4*s,4)}, v{241+s%4} offset:{8192*(s//4)}")
    for jq in range(4): a(f"ds_read_b128 {vr(96+4*jq,4)}, v245 offset:{L_DEG+32*jq}")
    stamp(a, 10, 253)
    O = 64
    for s in range(16):
        a(f"s_waitcnt lgkmcnt({min(15, 19-s)})")
        a(mfma(O, 4*s, 176+4*s, None if s == 0 else O))
    a(f"""v_lshlrev_b32 v240, 16, v252
    s_cmp_eq_u32 s{S_GRP}, 0
    s_cbranch_scc1 L2_e2""")
    for j in range(8): a(f"ds_write_b32 v246, v{O+j} offset:{(8*(j//4)+j%4+1)*512}")
    a("""L2_e2:
    s_waitcnt lgkmcnt(0)
    s_barrier""")
    a(f"s_cmp_lg_u32 s{S_GRP}, 0\ns_cbranch_scc1 L2_e3")
    for j in range(8, 16): a(f"ds_read_b32 v{j}, v246 offset:{(8*(j//4)+j%4-16)*512}")
    a(f"""s_waitcnt lgkmcnt(0)
    s_mov_b32 exec_lo, 0
    v_add_f32 v{O+8}, v{O+8}, v8
    s_mov_b64 exec, -1""")
    for j in range(9, 16): a(f"v_add_f32 v{O+j}, v{O+j}, v{j}")
    a("L2_e3:")
    for j in range(16): a(f"v_fmac_f32 v{O+j}, v{96+j}, v240")
    for j in range(0, 16, 2): a(f"v_cvt_pk_bf16_f32 v{16+j//2}, v{O+j}, v{O+j+1}")
    def st(j):
        off = (8*(j//4) + j % 4)*256
        so = "0" if off < 4096 else "s97"
        return f"buffer_store_short{'_d16_hi' if j & 1 else ''} v{16+j//2}, v247, s[52:55], {so} offen offset:{off % 4096}"
    a(f"s_cmp_eq_u32 s{S_GRP}, 0\ns_cbranch_scc1 L2_e4\ns_mov_b32 exec_lo, 0")
    a(st(7)); a("s_mov_b64 exec, -1\ns_branch L2_e5\nL2_e4:")
    for j in range(8): a(st(j))
    a("L2_e5:")
    for j in range(8, 16): a(st(j))
    stamp_dump(a, 253, 0, 1)
    a("L2_exit2:\ns_endpgm")


HEAD = """; edge-featured MPNN: K1 = edge partition by dst bucket + A = x@W1a table + operand prep ; K2 = gather/silu/segment-sum/final GEMM
; @launch kernel=k1_kernel grid=({g1},1,1) block=(512,1,1) lds={l1}
; @launch kernel=k2_kernel grid=({g2},1,1) block=(512,1,1) lds={l2}
.amdgcn_target "amdgcn-amd-amdhsa--gfx950"
.text
"""
KD = """.amdhsa_kernel {name}
  .amdhsa_next_free_vgpr {v}
  .amdhsa_next_free_sgpr 102
  .amdhsa_accum_offset {v}
  .amdhsa_group_segment_fixed_size 0
  .amdhsa_kernarg_size 88
  .amdhsa_user_sgpr_count 2
  .amdhsa_user_sgpr_kernarg_segment_ptr 1
  .amdhsa_system_sgpr_workgroup_id_x 1
.end_amdhsa_kernel
"""


def build():
    out = HEAD.format(g1=K1_GRID, l1=K1_LDS, g2=NB, l2=K2_LDS)
    for name, fn in (("k1_kernel", k1), ("k2_kernel", k2)):
        a = Asm(); fn(a)
        out += f".globl {name}\n.p2align 8\n.type {name},@function\n" + a.text(verbose=OPT.get("v", 0))
    out += '.section .rodata,"a"\n.p2align 6\n' + KD.format(name="k1_kernel", v=128) + ".p2align 6\n" + KD.format(name="k2_kernel", v=256)
    return out


if __name__ == "__main__":
    open(sys.argv[1], "w").write(build())
```

```python
import sys, struct
from asmlib import Asm, vr, sr

OPT = dict(prio=1, prio_at=32, pf=1, ept=4)
for a_ in sys.argv[2:]:
    k_, v_ = a_.split("="); OPT[k_] = int(v_)

N, E = 12500, 400000
NPB, NB = 49, 256
EPT = OPT["ept"]
CE = 400*EPT; CH = E//CE
LPS = 2*EPT
LSH = {8: 3, 16: 4}[LPS]
SPLIT, HALF = 25, 6250
AROWS = 25088
REC = 13 << 20
OFF = 19 << 20
W2OP = 20 << 20
STAT = W2OP + 65536
MAXA = STAT + 4096
MAXE = MAXA + 1024
MAXW_G = MAXE + 1024
STAMPS = 24 << 20
NG = 208
K1_GRID = NG + 1 + CH
K1_LDS = 65536 + 64

def f2u(x): return struct.unpack("<I", struct.pack("<f", x))[0]
NLOG2E = f2u(-1.4426950408889634)
PLOG2E = NLOG2E ^ 0x80000000
NLN2 = f2u(-0.6931471805599453)
X, EA_, SRC, DST, W1, B1, W2, B2, OUT, DBG, WS = 4, 6, 8, 10, 12, 14, 16, 18, 20, 22, 24
SHR = ["row_shr:%d row_mask:0xf bank_mask:0xf bound_ctrl:0" % i for i in (1, 2, 4, 8)]
BC15, BC31 = "row_bcast:15 row_mask:0xa bank_mask:0xf", "row_bcast:31 row_mask:0xc bank_mask:0xf"


def srd(a, d, base, add, size, stride=0):
    if add is None:
        a(f"s_mov_b32 s{d}, s{base}\ns_mov_b32 s{d+1}, s{base+1}")
    else:
        a(f"s_add_u32 s{d}, s{base}, {add}\ns_addc_u32 s{d+1}, s{base+1}, 0")
    if stride: a(f"s_or_b32 s{d+1}, s{d+1}, {stride << 16}")
    a(f"s_mov_b32 s{d+2}, {size}\ns_mov_b32 s{d+3}, 0x00020000")


def ldargs(a):
    a("""s_load_dwordx16 s[4:19], s[0:1], 0
    s_load_dwordx4 s[20:23], s[0:1], 64
    s_load_dwordx2 s[24:25], s[0:1], 80""")


def dpp_red(a, op, vs, full=True):
    if isinstance(vs, int): vs = [vs]
    for m in SHR + [BC15] + ([BC31] if full else []):
        for v in vs: a(f"{op}_dpp v{v}, v{v}, v{v} {m}")


def stamp(a, k, reg):
    if not OPT.get("stamp"): return
    a(f"s_memrealtime s[100:101]\ns_waitcnt lgkmcnt(0)\nv_writelane_b32 v{reg}, s100, {k}")
    if k in (0, 7, 8, 9, 31): a(f"s_memtime s[100:101]\ns_waitcnt lgkmcnt(0)\nv_writelane_b32 v{reg}, s100, {32+k}")


def stamp_dump(a, reg, tmp, kern):
    if not OPT.get("stamp"): return
    a("s_mov_b64 exec, -1\ns_waitcnt vmcnt(0)")
    stamp(a, 31, reg)
    a(f"""s_lshl_b32 s96, s2, 3
    s_add_u32 s96, s96, s3
    s_lshl_b32 s96, s96, 8
    s_add_u32 s96, s96, {STAMPS + kern*(1 << 20)}""")
    srd(a, 44, WS, "s96", 256)
    a(f"""v_mbcnt_lo_u32_b32 v{tmp}, -1, 0
    v_mbcnt_hi_u32_b32 v{tmp}, -1, v{tmp}
    v_lshlrev_b32 v{tmp}, 2, v{tmp}
    buffer_store_dword v{reg}, v{tmp}, s[44:47], 0 offen""")


def lane63(a): a("s_mov_b32 exec_lo, 0\ns_mov_b32 exec_hi, 0x80000000")
def full(a): a("s_mov_b64 exec, -1")
def mfma(D, A, B, C): return f"v_mfma_f32_32x32x16_bf16 {vr(D,16)}, {vr(A,4)}, {vr(B,4)}, " + ("0" if C is None else vr(C, 16))


def k1(a):
    ST = 126
    a("k1_kernel:")
    a(f"s_cmp_ge_u32 s2, {K1_GRID}\ns_cbranch_scc1 L1_exit2")
    if OPT.get("stamp"): a(f"v_mov_b32 v{ST}, 0")
    stamp(a, 0, ST)
    ldargs(a)
    a(f"""v_and_b32 v1, 63, v0
    v_lshrrev_b32 v2, 6, v0
    s_nop 0
    v_readfirstlane_b32 s3, v2
    s_cmp_le_u32 s2, {NG}
    s_cbranch_scc1 L1_gemm
    s_sub_u32 s56, s2, {NG+1}""")
    G = EPT//4
    HIST, START, MAXW = 40960, 41984, 43008
    DV, SV, EV, AV, RV = 4, 12, 24, 40, 48
    a(f"""v_lshlrev_b32 v2, 2, v0
    v_mov_b32 v3, 0
    ds_write_b32 v2, v3 offset:{HIST}
    ds_write_b32 v2, v3 offset:{MAXW}
    v_mov_b32 v60, 0
    v_mov_b32 v61, 1
    s_mul_i32 s26, s56, {CE*4}
    s_add_u32 s27, s26, 6400
    s_lshl_b32 s52, s26, 1
    s_lshl_b32 s53, s27, 1
    v_lshlrev_b32 v3, 4, v0
    v_lshlrev_b32 v20, 5, v0
    v_cmp_gt_u32 vcc, 400, v0
    s_waitcnt lgkmcnt(0)""")
    stamp(a, 5, ST)
    srd(a, 28, DST, None, E*4); srd(a, 32, SRC, None, E*4); srd(a, 36, EA_, None, E*8)
    a("""s_and_saveexec_b64 s[54:55], vcc
    s_mov_b64 s[54:55], exec
    s_cbranch_execz L1_p1""")
    for g in range(G): a(f"buffer_load_dwordx4 {vr(DV+4*g,4)}, v3, s[28:31], s{26+g} offen nt")
    for g in range(G): a(f"buffer_load_dwordx4 {vr(SV+4*g,4)}, v3, s[32:35], s{26+g} offen nt")
    for g in range(G):
        a(f"buffer_load_dwordx4 {vr(EV+8*g,4)}, v20, s[36:39], s{52+g} offen nt")
        a(f"buffer_load_dwordx4 {vr(EV+8*g+4,4)}, v20, s[36:39], s{52+g} offen offset:16 nt")
    a(f"""L1_p1:
    s_mov_b64 exec, -1
    s_mul_i32 s26, s56, {CE*12}
    s_add_u32 s26, s26, {REC}""")
    srd(a, 40, WS, "s26", CE*12); srd(a, 44, WS, OFF, CH*1024); srd(a, 48, WS, MAXE, CH*4)
    a(f"""s_setprio 2
    s_barrier
    s_mov_b64 exec, s[54:55]
    s_cbranch_execz L1_p2
    s_waitcnt vmcnt({3*G})""")
    stamp(a, 1, ST)
    for k in range(EPT):
        a(f"""v_mul_u32_u24 v21, 10700, v{DV+k}
        v_lshrrev_b32 v21, 19, v21
        v_lshlrev_b32 v{AV+k}, 2, v21
        ds_add_rtn_u32 v{RV+k}, v{AV+k}, v61 offset:{HIST}
        v_mul_u32_u24 v21, {NPB}, v21
        v_sub_u32 v{DV+k}, v{DV+k}, v21""")
    a(f"s_waitcnt vmcnt({2*G})")
    for k in range(EPT):
        a(f"""v_add_u32 v21, {16384-HALF}, v{SV+k}
        v_lshl_or_b32 v{SV+k}, v{DV+k}, 17, v{SV+k}
        v_lshrrev_b32 v21, 14, v21
        v_lshl_or_b32 v{SV+k}, v21, 23, v{SV+k}""")
    a(f"""L1_p2:
    s_mov_b64 exec, -1
    v_lshlrev_b32 v2, 4, v1
    s_waitcnt lgkmcnt(0)
    s_barrier""")
    stamp(a, 3, ST)
    a(f"""ds_read_b128 v[64:67], v2 offset:{HIST}
    s_waitcnt lgkmcnt(0)
    v_add_u32 v8, v64, v65
    v_add_u32 v9, v8, v66
    v_add_u32 v10, v9, v67
    v_mov_b32 v11, v10""")
    dpp_red(a, "v_add_u32", 11)
    a(f"""v_sub_u32 v56, v11, v10
    v_add_u32 v57, v56, v64
    v_add_u32 v58, v56, v8
    v_add_u32 v59, v56, v9
    ds_write_b128 v2, v[56:59] offset:{START}
    s_mov_b64 exec, s[54:55]
    s_cbranch_execz L1_p4""")
    for k in range(EPT): a(f"ds_read_b32 v{AV+k}, v{AV+k} offset:{START}")
    a("s_waitcnt vmcnt(0)")
    for k in range(EPT):
        a(f"""s_waitcnt lgkmcnt({EPT-1+k})
        v_add_u32 v{AV+k}, v{AV+k}, v{RV+k}
        v_mul_u32_u24 v{AV+k}, 12, v{AV+k}
        ds_write2_b32 v{AV+k}, v{EV+2*k}, v{EV+2*k+1} offset0:0 offset1:1
        ds_write_b32 v{AV+k}, v{SV+k} offset:8""")
    for k in range(EPT): a(f"v_dot2_f32_bf16 v{DV+k}, v{EV+2*k}, v{EV+2*k}, 0")
    for k in range(EPT): a(f"v_dot2_f32_bf16 v{DV+k}, v{EV+2*k+1}, v{EV+2*k+1}, v{DV+k}")
    a("s_nop 2")
    for k in range(0, EPT, 2): a(f"v_max3_u32 v60, v60, v{DV+k}, v{DV+k+1}")
    a("L1_p4:")
    full(a)
    dpp_red(a, "v_max_u32", 60)
    a("v_mov_b32 v62, 0")
    lane63(a); a(f"ds_max_u32 v62, v60 offset:{MAXW}"); full(a)
    stamp(a, 2, ST)
    a(f"""s_cmp_lg_u32 s3, 7
    s_cbranch_scc1 L1_p3
    v_lshl_or_b32 v64, v64, 16, v56
    v_lshl_or_b32 v65, v65, 16, v57
    v_lshl_or_b32 v66, v66, 16, v58
    v_lshl_or_b32 v67, v67, 16, v59
    v_mul_u32_u24 v2, {CH*16}, v1
    s_lshl_b32 s26, s56, 4
    buffer_store_dwordx4 v[64:67], v2, s[44:47], s26 offen sc1
    L1_p3:
    s_waitcnt lgkmcnt(0)
    s_barrier""")
    stamp(a, 4, ST)
    NO = -(-CE*12//8192)
    for i in range(NO): a(f"ds_read_b128 {vr(4+4*i,4)}, v3 offset:{8192*i}")
    a(f"ds_read_b32 v30, v62 offset:{MAXW}")
    for i in range(NO):
        a(f"s_mov_b32 s26, {8192*i}\ns_waitcnt lgkmcnt({NO-i})\nbuffer_store_dwordx4 {vr(4+4*i,4)}, v3, s[40:43], s26 offen sc1")
    a(f"""s_lshl_b32 s26, s56, 2
    v_cmp_eq_u32 vcc, 0, v0
    s_and_saveexec_b64 s[54:55], vcc
    s_cbranch_execz L1_exit
    s_waitcnt lgkmcnt(0)
    buffer_store_dword v30, v62, s[48:51], s26 offen sc1
    s_branch L1_exit""")

    WOP = 56
    a(f"""L1_gemm:
    s_cmp_eq_u32 s2, {NG}
    s_cbranch_scc1 L1_w2
    s_bfe_u32 s27, s2, 0x10003
    s_lshr_b32 s28, s2, 4
    s_lshl_b32 s28, s28, 3
    s_and_b32 s29, s2, 7
    s_add_u32 s28, s28, s29
    s_cmp_ge_u32 s28, 98
    s_cbranch_scc1 L1_exit2
    v_lshrrev_b32 v18, 4, v1
    v_and_b32 v19, 15, v1
    v_lshlrev_b32 v24, 2, v18
    v_xor_b32 v24, v24, v19
    v_lshlrev_b32 v24, 4, v24
    v_lshl_or_b32 v124, v18, 9, v24""")
    for ii in range(4):
        a(f"""v_add_u32 v20, {4*ii}, v18
        v_xor_b32 v20, v20, v19
        v_lshlrev_b32 v20, 4, v20
        v_lshl_or_b32 v{25+ii}, v18, 8, v20""")
    a(f"""v_mov_b32 v2, 0
    v_mov_b32 v3, 65536
    ds_write_b32 v3, v2
    s_lshl_b32 s43, s3, 13
    s_lshl_b32 s30, s27, 8
    s_add_u32 s43, s43, s30
    s_lshl_b32 s31, s3, 12
    s_lshl_b32 s29, s28, 15
    s_add_u32 s29, s29, s31
    s_add_u32 m0, s31, 32768
    s_and_b32 s40, s3, 1
    s_lshr_b32 s41, s3, 1
    v_and_b32 v7, 31, v1
    v_lshlrev_b32 v20, 1, v7
    s_lshl_b32 s42, s40, 7
    s_add_u32 s42, s42, s30
    s_waitcnt lgkmcnt(0)""")
    stamp(a, 5, ST)
    srd(a, 36, X, None, N*256)
    for ii in range(4):
        a(f"buffer_load_dwordx4 v{25+ii}, s[36:39], s29 offen nt lds")
        if ii < 3: a("s_add_u32 m0, m0, 1024\ns_add_u32 s29, s29, 1024")
    a("s_mov_b32 m0, s31")
    srd(a, 32, W1, None, 260*512)
    for ii in range(4):
        a(f"buffer_load_dwordx4 v124, s[32:35], s43 offen lds")
        a("s_add_u32 m0, m0, 1024\ns_add_u32 s43, s43, 2048")
    srd(a, 44, B1, None, 512)
    a(f"""buffer_load_ushort v122, v20, s[44:47], s42 offen
    buffer_load_ushort v123, v20, s[44:47], s42 offen offset:64
    s_add_u32 s43, s43, {128*512 - 8192}""")
    stamp(a, 6, ST)
    a(f"""v_bfe_u32 v18, v1, 2, 2
    v_lshrrev_b32 v6, 5, v1
    v_lshl_add_u32 v19, v6, 3, v18
    v_lshlrev_b32 v19, 8, v19
    v_bfe_u32 v20, v1, 4, 1
    v_lshlrev_b32 v20, 5, v20
    v_and_b32 v21, 3, v1
    v_lshl_add_u32 v20, v21, 3, v20
    v_add_u32 v19, v19, v20
    s_lshl_b32 s42, s40, 1
    v_xor_b32 v20, s42, v18
    v_lshl_add_u32 v120, v20, 6, v19
    v_xor_b32 v20, 1, v20
    v_lshl_add_u32 v121, v20, 6, v19
    s_lshl_b32 s42, s41, 5
    v_add_u32 v19, s42, v7
    v_lshlrev_b32 v19, 8, v19
    v_and_b32 v20, 15, v1
    v_xor_b32 v20, v20, v6
    v_lshl_add_u32 v10, v20, 4, v19
    v_add_u32 v10, 32768, v10""")
    for s in range(1, 8): a(f"v_xor_b32 v{10+s}, {32*s}, v10")
    srd(a, 44, WS, None, N*512); srd(a, 56, WS, N*512, N*512)
    a(f"""s_lshl_b32 s42, s28, 2
    s_add_u32 s42, s42, s41
    s_lshl_b32 s42, s42, 14
    s_lshl_b32 s48, s27, 1
    s_add_u32 s48, s48, s40
    s_lshl_b32 s48, s48, 7
    s_add_u32 s48, s42, s48
    s_add_u32 s30, s31, 32768
    v_lshlrev_b32 v4, 9, v6
    v_lshl_add_u32 v4, v7, 2, v4
    v_add_u32 v4, s30, v4
    v_lshl_add_u32 v6, v1, 4, s30
    v_lshrrev_b32 v7, 3, v1
    v_lshlrev_b32 v7, 9, v7
    v_and_b32 v18, 7, v1
    v_lshl_add_u32 v7, v18, 4, v7
    s_mov_b32 s52, {NLOG2E}
    s_mov_b32 s60, {PLOG2E}
    v_mov_b32 v5, 0
    v_mov_b32 v125, 0x80008000
    s_waitcnt vmcnt(0)
    s_barrier""")
    stamp(a, 1, ST)
    def wread(t):
        for s in range(8):
            for hf in range(2):
                a(f"ds_read_b64_tr_b16 {vr(WOP+32*t+4*s+2*hf,2)}, v{120+t} offset:{4096*s+1024*hf}")
    for s in range(8): a(f"ds_read_b128 {vr(24+4*s,4)}, v{10+s}")
    GD0, GD1, CV, RB = 8, WOP, 72, 88
    for task in range(2):
        sc = (lambda r, b: f"v_mul_f32 v{r}, s52, v{r}") if task == 0 else (lambda r, b: f"v_fma_f32 v{r}, v{r}, s60, v{b}")
        wread(0); wread(1)
        if task == 1:
            a("""v_lshlrev_b32 v122, 16, v122
            v_lshlrev_b32 v123, 16, v123
            v_mul_f32 v122, s60, v122
            v_mul_f32 v123, s60, v123""")
        a("s_waitcnt lgkmcnt(15)")
        for s in range(8): a(mfma(GD0, 24+4*s, WOP+4*s, None if s == 0 else GD0))
        a("s_waitcnt lgkmcnt(0)")
        if task == 0:
            a("s_barrier\ns_mov_b32 m0, s31")
            stamp(a, 3, ST)
            for ii in range(4):
                a(f"buffer_load_dwordx4 v124, s[32:35], s43 offen lds")
                a("s_add_u32 m0, m0, 1024\ns_add_u32 s43, s43, 2048")
        for s in range(8):
            a(mfma(GD1, 24+4*s, WOP+32+4*s, None if s == 0 else GD1))
            if s >= 2:
                for j in range((s-2)*3, min(16, (s-1)*3)): a(sc(GD0+j, 122))
        for j in range(16):
            a(sc(GD1+j, 123))
            a(f"""v_cvt_pk_bf16_f32 v{CV+j}, v{GD0+j}, v{GD1+j}
            ds_write_b32 v4, v{CV+j} offset:{128*(8*(j//4)+j%4)}""")
        a("s_waitcnt lgkmcnt(0)")
        if task == 0: stamp(a, 4, ST)
        for i in range(4): a(f"ds_read_b128 {vr(RB+4*i,4)}, v6 offset:{1024*i}")
        for j in range(16): a(f"v_pk_max_i16 v5, v5, v{CV+j}" if task == 0 else f"v_pk_max_u16 v125, v125, v{CV+j}")
        for i in range(4):
            a(f"s_waitcnt lgkmcnt({3-i})\nbuffer_store_dwordx4 {vr(RB+4*i,4)}, v7, {sr(44 if task == 0 else 56, 4)}, s48 offen sc1")
            a("s_add_u32 s48, s48, 4096" if i < 3 else "s_sub_u32 s48, s48, 12288")
        if task == 0: a("s_waitcnt vmcnt(4)\ns_barrier")
    stamp(a, 2, ST)
    a("""v_and_b32 v125, 0x7fff7fff, v125
    v_pk_max_i16 v5, v5, v125
    v_lshlrev_b32 v6, 16, v5
    v_and_b32 v5, 0xffff0000, v5
    v_max_u32 v5, v5, v6""")
    dpp_red(a, "v_max_u32", 5)
    lane63(a); a("ds_max_u32 v3, v5"); full(a)
    srd(a, 44, WS, MAXA, 196*4)
    a(f"""s_lshl_b32 s26, s28, 1
    s_add_u32 s26, s26, s27
    s_lshl_b32 s26, s26, 2
    s_waitcnt lgkmcnt(0)
    s_barrier
    v_cmp_eq_u32 vcc, 0, v0
    s_and_saveexec_b64 s[54:55], vcc
    s_cbranch_execz L1_exit
    ds_read_b32 v6, v3
    s_waitcnt lgkmcnt(0)
    buffer_store_dword v6, v2, s[44:47], s26 offen sc1
    s_branch L1_exit""")
    a(f"""L1_w2:
    v_lshlrev_b32 v2, 4, v1
    s_lshl_b32 s29, s3, 13
    s_mov_b32 m0, s29
    v_mov_b32 v20, 0
    v_mov_b32 v21, 65536
    ds_write_b32 v21, v20
    v_and_b32 v11, 1, v1
    v_lshlrev_b32 v11, 5, v11
    v_bfe_u32 v12, v1, 1, 4
    v_add_u32 v11, v11, v12
    v_lshlrev_b32 v11, 1, v11
    v_lshrrev_b32 v12, 5, v1
    v_lshl_add_u32 v11, v12, 10, v11
    s_lshr_b32 s40, s3, 1
    s_lshl_b32 s40, s40, 7
    s_and_b32 s41, s3, 1
    s_lshl_b32 s41, s41, 5
    s_add_u32 s40, s40, s41
    s_add_u32 s40, s40, {256*512}
    s_waitcnt lgkmcnt(0)""")
    srd(a, 32, W2, None, 65536); srd(a, 36, W1, None, 260*512)
    a("""buffer_load_ushort v8, v11, s[36:39], s40 offen
    buffer_load_ushort v9, v11, s[36:39], s40 offen offset:512""")
    for ii in range(8):
        a("buffer_load_dwordx4 v2, s[32:35], s29 offen lds")
        if ii < 7: a("s_add_u32 m0, m0, 1024\ns_add_u32 s29, s29, 1024")
    a(f"""s_and_b32 s40, s3, 3
    s_lshr_b32 s41, s3, 2
    v_bfe_u32 v5, v1, 2, 1
    v_lshlrev_b32 v5, 5, v5
    v_bfe_u32 v6, v1, 3, 1
    v_add_u32 v5, v5, v6
    v_lshrrev_b32 v6, 5, v1
    v_lshl_add_u32 v5, v6, 2, v5
    v_lshlrev_b32 v5, 8, v5
    v_bfe_u32 v6, v1, 4, 1
    v_lshl_add_u32 v5, v6, 5, v5
    v_and_b32 v6, 3, v1
    v_lshl_add_u32 v5, v6, 3, v5
    s_lshl_b32 s42, s40, 6
    s_lshl_b32 s43, s41, 15
    s_add_u32 s42, s42, s43
    v_add_u32 v5, s42, v5
    s_lshl_b32 s43, s40, 14
    s_lshl_b32 s42, s41, 13
    s_add_u32 s43, s43, s42
    s_mov_b32 s52, {NLOG2E}
    s_lshl_b32 s42, s3, 9
    v_lshlrev_b32 v3, 3, v1""")
    srd(a, 44, WS, W2OP, 65536); srd(a, 48, WS, STAT, 4096); srd(a, 56, WS, MAXW_G, 4)
    a("""s_waitcnt vmcnt(8)
    v_lshlrev_b32 v8, 16, v8
    v_lshlrev_b32 v9, 16, v9
    v_mul_f32 v8, s52, v8
    v_mul_f32 v9, s52, v9
    v_cvt_pk_bf16_f32 v15, v8, v9
    v_mul_f32 v16, v8, v8
    v_fmac_f32 v16, v9, v9
    v_lshlrev_b32 v12, 16, v15
    v_and_b32 v13, 0xffff0000, v15
    v_sub_f32 v8, v8, v12
    v_sub_f32 v9, v9, v13
    v_cvt_pk_bf16_f32 v14, v8, v9
    buffer_store_dwordx2 v[14:15], v3, s[48:51], s42 offen sc1""")
    dpp_red(a, "v_max_u32", 16, full=False)
    a("""v_readlane_b32 s42, v16, 31
    v_add_f32 v16, s42, v16
    s_waitcnt vmcnt(0)
    s_barrier""")
    lane63(a); a("ds_max_u32 v21, v16"); full(a)
    for s in range(8):
        for hf in range(2):
            row = 64*(s//4) + 16*((s//2) % 2) + 8*(s % 2) + 2*hf
            a(f"ds_read_b64_tr_b16 {vr(WOP+4*s+2*hf,2)}, v5 offset:{256*row}")
    a("s_waitcnt lgkmcnt(0)\ns_barrier\nds_read_b32 v16, v21")
    for s in range(8):
        a(f"buffer_store_dwordx4 {vr(WOP+4*s,4)}, v2, s[44:47], s43 offen sc1\ns_add_u32 s43, s43, 1024")
    srd(a, 48, WS, MAXE + CH*4, 16)
    a("""v_lshlrev_b32 v17, 2, v1
    buffer_store_dword v20, v17, s[48:51], 0 offen sc1
    s_waitcnt lgkmcnt(0)
    buffer_store_dword v16, v3, s[56:59], 0 offen sc1
    L1_exit:""")
    stamp_dump(a, ST, 127, 0)
    a("L1_exit2:\ns_endpgm")


CAPT = 60
L_IDX, L_QA, L_TBL, L_CNT, L_MISC, L_DEG, L_EA, L_P = 256, 8448, 10496, 11520, 12544, 12608, 13056, 28416
L_BT = L_P + 31*1024
L_STG = 89088
BTP = 1152
L_NULL = L_BT + 24*BTP + 512
K2_LDS = L_STG + 65536
assert L_BT + 25*BTP <= L_STG
D0, D1, EE, TT, HQ0, HQ1, S0, S1 = 0, 16, 32, 48, 56, 60, 64, 80
ALO, AHI, ID0, ID1, A2, B2R, PP, IP = 96, (104, 112), 120, 124, (128, 132), (136, 140), 144, 148
QV, QST, RA, IB, EB, QB, PB = (156, 157), 158, 159, 163, 164, 165, 166
TID, LANE, DEG, VONE, ESIG, QOFF, L16 = 167, 168, 169, 170, 172, 173, 174
RECR, OFR, W2R, B2V = 0, 240, 176, 252
MASK = 56
S_BASE, S_LIM, S_IMASK, S_SLOW, S_N, S_T0, S_FIRST, S_BK, S_MAXC, S_SAFE, S_CUT, S_STG, S_BETA, S_NEG = range(80, 94)
S_CG, S_GRP, S_R2, S_N0 = 26, 27, 1, 0


def valu_half(D, hq, safe):
    L = [f"v_exp_f32 v{EE+j}, v{D+j}" for j in range(16)]
    p2 = lambda x: vr(x, 2)
    if not safe:
        for q in range(2): L.append(f"v_pk_add_f32 {p2(TT+4*q)}, {p2(EE+8*q)}, 1.0 op_sel_hi:[1,0]")
        for s in range(1, 4):
            for q in range(2):
                n = D+8*q if s == 1 else TT+4*q+2
                L.append(f"v_pk_fma_f32 {p2(TT+4*q+2)}, {p2(n)}, {p2(EE+8*q+2*s)}, {p2(n)}")
            for q in range(2):
                L.append(f"v_pk_fma_f32 {p2(TT+4*q+2)}, {p2(D+8*q+2*s)}, {p2(TT+4*q)}, {p2(TT+4*q+2)}")
            for q in range(2):
                L.append(f"v_pk_fma_f32 {p2(TT+4*q)}, {p2(TT+4*q)}, {p2(EE+8*q+2*s)}, {p2(TT+4*q)}")
        for q in range(2):
            for p in range(2): L.append(f"v_rcp_f32 v{TT+4*q+p}, v{TT+4*q+p}")
        for q in range(2): L.append(f"v_pk_mul_f32 {p2(TT+4*q+2)}, {p2(TT+4*q+2)}, {p2(TT+4*q)}")
    else:
        for j in range(0, 16, 2): L.append(f"v_pk_add_f32 {p2(EE+j)}, {p2(EE+j)}, 1.0 op_sel_hi:[1,0]")
        for j in range(16): L.append(f"v_rcp_f32 v{EE+j}, v{EE+j}")
        for q in range(2): L.append(f"v_pk_mul_f32 {p2(TT+4*q+2)}, {p2(D+8*q)}, {p2(EE+8*q)}")
        for s in range(1, 4):
            for q in range(2):
                L.append(f"v_pk_fma_f32 {p2(TT+4*q+2)}, {p2(D+8*q+2*s)}, {p2(EE+8*q+2*s)}, {p2(TT+4*q+2)}")
    for q in range(2): L.append(f"v_cvt_pk_bf16_f32 v{hq+q}, v{TT+4*q+2}, v{TT+4*q+3}")
    return L


def weave(V, M, pos):
    out = []
    for i, x in enumerate(V):
        out += [m for m, p in zip(M, pos) if p == i]
        out.append(x)
    return out


def block(a, par, safe):
    M1 = [mfma(D1, AHI[par], ID0, None), mfma(D1, AHI[par]+4, ID1, D1), mfma(D1, A2[par], B2R[1], D1)]
    if par == 0: M1.append(mfma(S1, HQ1, PP, S1))
    M2 = [mfma(D0, ALO, ID0, None), mfma(D0, ALO+4, ID1, D0), mfma(D0, A2[par ^ 1], B2R[0], D0)]
    if par == 1: M2.append(mfma(S0, HQ0, PP, S0))
    pos = [1, 4, 7, 10]
    h1 = weave(valu_half(D0, HQ0+2*par, safe), M1, pos)
    h2 = weave(valu_half(D1, HQ1+2*par, safe), M2, pos)
    extra = [f"v_add_u32 v{QV[par]}, v{QV[par]}, v{QST}"]
    if par == 0:
        extra += [f"v_add_u32 v{IB}, 256, v{IB}", f"v_add_u32 v{EB}, 512, v{EB}",
                  f"v_add_u32 v{QB}, 64, v{QB}", f"v_add_u32 v{PB}, 1024, v{PB}"]
    L = h1 + extra + h2
    if OPT["prio"]:
        L.insert(OPT["prio_at"], "s_setprio 1"); L.append("s_setprio 0")
    a("\n".join(L))


def dma(a, par):
    a(f"s_add_u32 m0, s{S_STG}, {4096*par}")
    for u in range(4):
        a(f"buffer_load_dwordx4 {vr(IP+2*u,2)}, s[36:39], 0 idxen offen lds")
        if u < 3: a("s_add_u32 m0, m0, 1024")


def rd_idx(a, t):
    for u in range(4): a(f"ds_read_b32 v{IP+2*u}, v{IB} offset:{128*t+32*u}")


def rd_rows(a, par):
    for s in range(4):
        d = ALO+4*s if s < 2 else AHI[par]+4*(s-2)
        a(f"ds_read_b128 {vr(d,4)}, v{RA+s} offset:{4096*par}")


def w2chunk(a, k):
    a(f"s_lshl_b32 s96, s{S_CG}, 14\ns_add_u32 s96, s96, {4096*k}")
    for q in range(4): a(f"buffer_load_dwordx4 {vr(W2R+16*k+4*q,4)}, v{L16}, s[44:47], s96 offen offset:{1024*q}")
    if k == 0: a(f"s_lshl_b32 s96, s{S_CG}, 6\nbuffer_load_ushort v{B2V}, v175, s[48:51], s96 offen")


def group(a, par, tag=None):
    a("s_waitcnt vmcnt(4)")
    rd_rows(a, par)
    a(f"ds_read_b64_tr_b16 {vr(B2R[1],2)}, v{QV[par^1]} offset:64")
    a(f"ds_read_b64_tr_b16 {vr(B2R[0],2)}, v{QV[par]}")
    a(f"ds_read2st64_b32 {vr(A2[par]+2,2)}, v{EB} offset0:{2+par} offset1:{2+par}")
    if par == 0: a(f"ds_read_b128 {vr(PP,4)}, v{PB}")
    a(f"s_cmp_gt_u32 s{S_N}, 3\ns_cselect_b32 s38, {0 if OPT.get('nodma') else AROWS}, 0")
    if tag: a(f"s_cmp_le_u32 s{S_N}, 4\ns_cbranch_scc1 L2_tl{tag}{par}\nL2_tr{tag}{par}:")
    a(f"s_waitcnt lgkmcnt({4 if par == 0 else 3})")
    dma(a, par)
    rd_idx(a, 5+par)
    a(f"ds_read_b32 v{QV[par^1]}, v{QB} offset:{32*(3+par)}")
    a("s_waitcnt lgkmcnt(0)")


def main_loop(a, safe, tag):
    a(f"L2_loop{tag}:")
    block(a, 0, safe)
    a(f"s_sub_u32 s{S_N}, s{S_N}, 1\ns_cmp_eq_u32 s{S_N}, 0\ns_cbranch_scc1 L2_end_odd")
    group(a, 0, tag)
    block(a, 1, safe)
    a(f"s_sub_u32 s{S_N}, s{S_N}, 1\ns_cmp_eq_u32 s{S_N}, 0\ns_cbranch_scc1 L2_end_even")
    group(a, 1, tag)
    a(f"s_branch L2_loop{tag}")
    for par in range(2):
        a(f"L2_tl{tag}{par}:")
        for k in range(4):
            if k < 3: a(f"s_cmp_lg_u32 s{S_N}, {4-k}\ns_cbranch_scc1 L2_tl{tag}{par}_{k}")
            w2chunk(a, k)
            a(f"s_branch L2_tr{tag}{par}")
            if k < 3: a(f"L2_tl{tag}{par}_{k}:")


def k2(a):
    ST = 253
    L = LANE
    PF = OPT["pf"]
    a("k2_kernel:")
    a(f"s_cmp_ge_u32 s2, {NB}\ns_cbranch_scc1 L2_exit2")
    if OPT.get("stamp"): a(f"v_mov_b32 v{ST}, 0")
    stamp(a, 0, ST)
    ldargs(a)
    a(f"""v_mov_b32 v{TID}, v0
    v_and_b32 v{L}, 63, v0
    v_lshrrev_b32 v2, 6, v0
    v_mov_b32 v{DEG}, 0
    v_readfirstlane_b32 s3, v2
    v_mov_b32 v{VONE}, 1
    s_and_b32 s{S_BK}, s2, 7
    s_lshl_b32 s{S_BK}, s{S_BK}, 5
    s_lshr_b32 s28, s2, 3
    s_add_u32 s{S_BK}, s{S_BK}, s28
    s_mul_i32 s{S_NEG}, s{S_BK}, {NPB}
    v_lshrrev_b32 v8, {LSH}, v0
    s_and_b32 s28, s{S_BK}, 3
    s_lshl_b32 s28, s28, 2
    v_lshl_add_u32 v9, v8, 4, s28
    s_lshr_b32 s96, s{S_BK}, 2
    s_mul_i32 s96, s96, {CH*16}
    s_add_u32 s96, s96, {OFF}
    s_mov_b32 s{S_BASE}, 0
    s_mov_b32 s{S_LIM}, {3*LPS}
    s_mov_b32 s{S_IMASK}, 15
    s_mov_b32 s{S_SLOW}, 0
    s_mov_b32 s{S_FIRST}, 1
    s_mov_b32 s{S_BETA}, 0
    s_and_b32 s{S_CG}, s3, 3
    s_lshr_b32 s{S_GRP}, s3, 2
    s_lshl_b32 s{S_STG}, s3, 13
    s_add_u32 s{S_STG}, s{S_STG}, {L_STG}
    v_lshlrev_b32 v{L16}, 4, v{L}
    s_waitcnt lgkmcnt(0)""")
    stamp(a, 11, ST)
    srd(a, 28, WS, "s96", CH*16)
    for i in range(4): a(f"buffer_load_dword v{OFR+i}, v9, s[28:31], 0 offen offset:{(8192 >> LSH)*i}")
    srd(a, 32, WS, REC, CH*CE*12); srd(a, 36, WS, None, AROWS, stride=512)
    NZ = (L_BT - L_CNT)//16
    a(f"L2_batch:\nv_lshlrev_b32 v104, 4, v{TID}")
    for j in range(4): a(f"v_mov_b32 v{96+j}, -1\nv_mov_b32 v{100+j}, 0")
    a(f"ds_write_b128 v104, v[96:99] offset:{L_IDX}")
    for i in range(5): a(f"ds_write_b128 v104, v[100:103] offset:{L_CNT + 8192*i}")
    a(f"""v_cmp_gt_u32 vcc, {NZ - 2560}, v{TID}
    v_mov_b32 v96, {L_NULL}
    v_mov_b32 v97, {L_NULL}
    s_and_b64 exec, exec, vcc
    ds_write_b128 v104, v[100:103] offset:{L_CNT + 8192*5}
    v_cmp_gt_u32 vcc, 128, v{TID}
    v_mov_b32 v98, {L_NULL}
    v_mov_b32 v99, {L_NULL}
    s_and_b64 exec, exec, vcc
    ds_write_b128 v104, v[96:99] offset:{L_QA}
    s_mov_b64 exec, -1
    v_and_b32 v112, {LPS-1}, v{L}
    v_add_u32 v112, s{S_BASE}, v112
    s_add_u32 s96, s{S_BASE}, s{S_LIM}
    v_lshrrev_b32 v113, {LSH}, v{TID}
    v_mul_u32_u24 v113, {CE*12}, v113""")
    stamp(a, 12, ST)
    a("s_waitcnt vmcnt(0)")
    stamp(a, 1, ST)
    for i in range(4):
        a(f"""v_lshrrev_b32 v{104+i}, 16, v{OFR+i}
        s_bitcmp1_b32 s{S_IMASK}, {i}
        s_cselect_b32 s98, s96, 0
        v_min_u32 v{104+i}, s98, v{104+i}
        v_and_b32 v114, 0xffff, v{OFR+i}
        v_add_u32 v114, v114, v112
        v_mad_u32_u24 v{108+i}, v114, 12, v113""")
        if i < 3: a(f"v_add_u32 v113, {(512 >> LSH)*CE*12}, v113")
    for rnd in range(3):
        if rnd: a(f"v_add_u32 v112, {LPS}, v112")
        for i in range(4): a(f"v_cmp_lt_u32 {sr(MASK+2*(4*rnd+i),2)}, v112, v{104+i}")
        if rnd == 2:
            a(f"""s_or_b64 s[96:97], {sr(MASK+16,2)}, {sr(MASK+18,2)}
            s_or_b64 s[98:99], {sr(MASK+20,2)}, {sr(MASK+22,2)}
            s_or_b64 s[96:97], s[96:97], s[98:99]
            s_cselect_b32 s{S_R2}, 1, 0
            s_cbranch_scc0 L2_r11""")
        for i in range(4):
            k = 4*rnd + i
            a(f"""s_mov_b64 exec, {sr(MASK+2*k,2)}
            s_cbranch_execz L2_r{k}
            buffer_load_dwordx3 {vr(RECR+4*k,3)}, v{108+i}, s[32:35], 0 offen offset:{12*LPS*rnd}
            L2_r{k}:""")
        full(a)
    a(f"s_cmp_eq_u32 s{S_FIRST}, 0\ns_cbranch_scc1 L2_b2")
    a(f"""s_add_u32 s95, s{S_NEG}, {N}
    s_lshl_b32 s95, s95, 9
    s_mul_i32 s96, s3, {BTP}
    s_add_u32 m0, s96, {L_BT}
    s_lshl_b32 s94, s3, 10
    s_lshl_b32 s96, s{S_CG}, 10
    v_lshlrev_b32 v120, 3, v{L}""")
    srd(a, 40, WS, "s95", NPB*512); srd(a, 44, WS, STAT, 4096)
    for q in range(3):
        a(f"buffer_load_dwordx4 v{L16}, s[40:43], s94 offen lds")
        a(f"s_add_u32 m0, m0, {8*BTP}\ns_add_u32 s94, s94, 8192")
    a(f"""buffer_load_dwordx2 {vr(B2R[0]+2,2)}, v120, s[44:47], s96 offen
    buffer_load_dwordx2 {vr(B2R[1]+2,2)}, v120, s[44:47], s96 offen offset:512
    s_cmp_eq_u32 s3, 0
    s_cbranch_scc0 L2_b3
    buffer_load_dwordx4 v{L16}, s[40:43], s94 offen lds
    L2_b3:
    s_cmp_eq_u32 s3, 7
    s_cbranch_scc0 L2_b2""")
    srd(a, 44, WS, MAXA, 196*4); srd(a, 48, WS, MAXE, (CH*4+15)//16*16); srd(a, 52, WS, MAXW_G, 4)
    a(f"""v_mov_b32 v120, 0
    buffer_load_dwordx4 v[244:247], v{L16}, s[44:47], 0 offen
    buffer_load_dwordx4 v[248:251], v{L16}, s[48:51], 0 offen
    buffer_load_dword v171, v120, s[52:55], 0 offen
    L2_b2:
    s_waitcnt lgkmcnt(0)
    s_barrier
    s_cmp_eq_u32 s{S_FIRST}, 0
    s_cbranch_scc1 L2_rank0""")
    stamp(a, 3, ST)
    a(f"""v_lshrrev_b32 v96, 16, v{OFR}
    v_lshrrev_b32 v97, 16, v{OFR+1}
    v_lshrrev_b32 v98, 16, v{OFR+2}
    v_lshrrev_b32 v99, 16, v{OFR+3}
    v_max3_u32 v96, v96, v97, v98
    v_max_u32 v105, v96, v99""")
    n_, h_, one, t0, t1, t2, t3, t4, t5 = 96, 97, 98, 99, 100, 101, 102, 103, 104
    zs = [f"v_mov_b32 v{S0+j}, 0" for j in range(32)]
    for i, m in enumerate(SHR + [BC15, BC31]):
        a("\n".join(zs[2*i:2*i+2])); a(f"v_max_u32_dpp v105, v105, v105 {m}")
    a("\n".join(zs[12:]))
    a("v_mov_b32 v106, 0")
    lane63(a); a(f"ds_max_u32 v106, v105 offset:{L_MISC+4}"); full(a)
    a(f"""v_and_b32 v{n_}, 31, v{L}
    v_lshrrev_b32 v{h_}, 5, v{L}
    v_and_b32 v{t0}, 1, v{L}
    v_lshlrev_b32 v{t0}, 4, v{t0}
    v_mov_b32 v{one}, 0x3f80
    v_lshlrev_b32 v{one}, v{t0}, v{one}
    v_lshrrev_b32 v{t0}, 1, v{n_}
    v_lshlrev_b32 v{t1}, 2, v{h_}
    v_sub_u32 v{t0}, v{t0}, v{t1}
    v_lshlrev_b32 v175, 1, v{n_}""")
    for q in range(8):
        a(f"v_cmp_eq_u32 {sr(94+2*(q%3),2)}, {8*(q//4) + q%4}, v{t0}")
        if q >= 1: a(f"v_cndmask_b32 v{ID0+q-1}, 0, v{one}, {sr(94+2*((q-1)%3),2)}")
    a(f"""v_bfe_u32 v{t1}, v{n_}, 2, 1
    v_cndmask_b32 v{ID0+7}, 0, v{one}, {sr(94+2*(7%3),2)}
    v_lshrrev_b32 v{t2}, 4, v{n_}
    v_and_b32 v{t3}, 1, v{n_}
    v_xor_b32 v{t4}, v{t1}, v{h_}
    v_lshl_or_b32 v{t4}, v{t4}, 1, v{t3}
    v_cmp_eq_u32 s[94:95], 0, v{t4}
    v_cmp_eq_u32 s[96:97], 1, v{t4}
    v_lshlrev_b32 v{t4}, 4, v{t2}
    v_mov_b32 v{one}, 0xbf80
    v_lshlrev_b32 v{one}, v{t4}, v{one}
    v_cndmask_b32 v{A2[0]}, 0, v{one}, s[94:95]
    v_cndmask_b32 v{A2[0]+1}, 0, v{one}, s[96:97]
    v_cndmask_b32 v{A2[1]}, 0, v{one}, s[94:95]
    v_cndmask_b32 v{A2[1]+1}, 0, v{one}, s[96:97]
    v_lshlrev_b32 v{t1}, 4, v{t1}
    v_lshl_or_b32 v{t1}, v{t3}, 3, v{t1}
    v_lshl_or_b32 v{t1}, v{t2}, 2, v{t1}
    v_bfe_u32 v{t4}, v{n_}, 3, 1
    v_lshl_or_b32 v{t1}, v{t4}, 1, v{t1}
    v_bfe_u32 v{t5}, v{n_}, 1, 1
    v_or_b32 v{t1}, v{t1}, v{t5}
    v_bfe_u32 v{t3}, v{t1}, 1, 3
    v_xor_b32 v{t3}, v{t3}, v{h_}
    v_lshlrev_b32 v{t3}, 4, v{t3}
    v_lshl_add_u32 v{t3}, v{t1}, 7, v{t3}
    v_add_u32 v{RA}, s{S_STG}, v{t3}
    v_lshlrev_b32 v{ESIG}, 3, v{t1}
    v_lshl_add_u32 v{ESIG}, v{h_}, 2, v{ESIG}""")
    for s in range(1, 4): a(f"v_xor_b32 v{RA+s}, {32*s}, v{RA}")
    a(f"""v_lshrrev_b32 v{t2}, 4, v{L}
    v_and_b32 v{t3}, 7, v{L}
    v_xor_b32 v{t2}, v{t2}, v{t3}
    s_lshl_b32 s96, s{S_CG}, 7
    v_lshl_add_u32 v{IP+1}, v{t2}, 4, s96
    v_xor_b32 v{IP+3}, 64, v{IP+1}
    v_mov_b32 v{IP+5}, v{IP+1}
    v_mov_b32 v{IP+7}, v{IP+3}
    v_bfe_u32 v{t1}, v{L}, 4, 1
    v_lshlrev_b32 v{t1}, 5, v{t1}
    v_and_b32 v{t3}, 3, v{L}
    v_lshl_add_u32 v{t1}, v{t3}, 3, v{t1}
    v_add_u32 v{QST}, s96, v{t1}
    v_bfe_u32 v{t1}, v{L}, 2, 2
    v_lshl_add_u32 v{QOFF}, v{h_}, 2, v{t1}
    v_lshlrev_b32 v{QOFF}, 2, v{QOFF}
    s_waitcnt vmcnt(8)
    s_cmp_eq_u32 s3, 7
    s_cbranch_scc1 L2_rank2
    s_waitcnt vmcnt(6)
    s_cmp_eq_u32 s3, 0
    s_cbranch_scc1 L2_rank2
    s_waitcnt vmcnt(5)
    s_branch L2_rank2
    L2_rank0:
    s_waitcnt vmcnt(0)
    L2_rank2:""")
    stamp(a, 5, ST)
    RK, TB = 96, 104
    for k in range(12):
        if k == 8: a(f"s_cmp_eq_u32 s{S_R2}, 0\ns_cbranch_scc1 L2_k12")
        a(f"""s_mov_b64 exec, {sr(MASK+2*k,2)}
        v_lshrrev_b32 v{RK+k}, 14, v{RECR+4*k+2}
        ds_add_rtn_u32 v{RECR+4*k+3}, v{RK+k}, v{VONE} offset:{L_CNT}""")
    a(f"""L2_k12:
    s_mov_b64 exec, -1
    v_lshlrev_b32 v62, 3, v{L}
    v_mov_b32 v63, 0
    s_cmp_eq_u32 s{S_FIRST}, 0
    s_cbranch_scc1 L2_k13
    s_cmp_eq_u32 s3, 7
    s_cbranch_scc0 L2_k14
    s_waitcnt vmcnt(0)
    v_max3_u32 v244, v244, v245, v246
    v_max3_u32 v248, v248, v249, v250
    v_max_u32 v244, v244, v247
    v_max_u32 v248, v248, v251""")
    dpp_red(a, "v_max_u32", [244, 248])
    a(f"""v_mul_f32 v171, v171, v248
    v_sqrt_f32 v171, v171
    v_mov_b32 v54, 0x41f00000
    v_fma_f32 v171, v244, 2.0, v171
    v_cmp_nlt_f32 vcc, v171, v54
    v_cndmask_b32 v171, 0, v{VONE}, vcc""")
    lane63(a); a(f"ds_write_b32 v63, v171 offset:{L_MISC}"); full(a)
    a("L2_k14:")
    if PF:
        srd(a, 44, WS, None, N*512)
        a(f"""s_lshr_b32 s96, s2, 3
        s_lshl_b32 s96, s96, 3
        s_add_u32 s96, s96, s3
        s_mul_i32 s96, s96, {PF*8192}
        v_lshlrev_b32 v48, 7, v{L}""")
        for q in range(PF):
            a(f"buffer_load_dword v255, v48, s[44:47], s96 offen")
            if q < PF-1: a("s_add_u32 s96, s96, 8192")
    CL, CU, C_, PC, Q1, Q2, I1, I2, BV, ST1, ST2 = 48, 49, 50, 51, 52, 53, 54, 55, 55, 60, 61
    a(f"""L2_k13:
    s_waitcnt lgkmcnt(0)
    s_barrier
    ds_read_b32 v{CL}, v62 offset:{L_CNT}
    ds_read_b32 v{CU}, v62 offset:{L_CNT+512}
    ds_read_b64 v[58:59], v63 offset:{L_MISC}
    s_waitcnt lgkmcnt(1)
    v_add_u32 v{C_}, v{CL}, v{CU}
    v_and_b32 v{Q1}, -4, v{CL}
    v_add_u32 v{PC}, 3, v{C_}
    v_mov_b32 v{I1}, v{Q1}
    v_and_b32 v{PC}, -4, v{PC}
    v_sub_u32 v{Q2}, v{PC}, v{Q1}
    v_mov_b32 v{I2}, v{Q2}""")
    dpp_red(a, "v_add_u32", [I1, I2])
    a(f"""v_sub_u32 v{ST1}, v{I1}, v{Q1}
    v_sub_u32 v{ST2}, v{I2}, v{Q2}
    v_readlane_b32 s94, v{I1}, 63
    v_readlane_b32 s95, v{I2}, 63
    v_readlane_b32 s96, v{ST1}, {SPLIT}
    v_readlane_b32 s97, v{ST2}, {SPLIT}
    v_readlane_b32 s98, v{ST2}, 17
    v_readlane_b32 s99, v{ST1}, 32
    s_cmp_eq_u32 s{S_FIRST}, 0
    s_cbranch_scc1 L2_s1
    s_waitcnt lgkmcnt(0)
    v_readfirstlane_b32 s{S_MAXC}, v59
    v_readfirstlane_b32 s{S_SAFE}, v58
    s_mov_b32 s{S_FIRST}, 0
    L2_s1:
    s_add_u32 s98, s98, s96
    s_add_u32 s99, s99, s97
    s_add_u32 s95, s95, s94
    s_add_u32 s{S_CUT}, s95, 63
    s_lshr_b32 s{S_CUT}, s{S_CUT}, 6
    s_add_u32 s98, s98, 31
    s_lshr_b32 s98, s98, 5
    s_max_u32 s{S_CUT}, s{S_CUT}, s98
    s_add_u32 s98, s99, 31
    s_lshr_b32 s98, s98, 5
    s_min_u32 s{S_CUT}, s{S_CUT}, s98
    s_lshl_b32 s98, s{S_CUT}, 5
    s_max_u32 s98, s98, s99
    s_sub_u32 s98, s98, s99
    s_add_u32 s94, s94, s98
    s_sub_u32 s94, s94, s96
    v_add_u32 v{ST2}, s96, v{ST2}
    s_mov_b32 exec_lo, {(0xffffffff << SPLIT) & 0xffffffff}
    v_add_u32 v{ST1}, s97, v{ST1}
    v_add_u32 v{ST2}, s94, v{ST2}
    s_mov_b32 exec_lo, 0
    v_add_u32 v{ST1}, s98, v{ST1}
    s_mov_b64 exec, -1
    v_sub_u32 v{BV}, v{ST2}, v{Q1}
    v_lshl_or_b32 v{ST2}, v{BV}, 16, v{Q1}
    v_add_lshl_u32 v57, v{BV}, v{CL}, 16
    ds_write_b64 v62, v[{ST1}:{ST2}] offset:{L_TBL}
    ds_write_b64 v62, v[56:57] offset:{L_TBL+512}
    s_add_u32 s96, s95, s98
    s_add_u32 s96, s96, 31
    s_lshr_b32 s96, s96, 5
    s_cmp_lg_u32 s{S_SLOW}, 0
    s_cbranch_scc1 L2_s2
    s_cmp_gt_u32 s96, {CAPT}
    s_cselect_b32 s97, 1, 0
    s_cmp_gt_u32 s{S_MAXC}, {3*LPS}
    s_cselect_b32 s97, 1, s97
    s_cmp_eq_u32 s97, 0
    s_cbranch_scc1 L2_s2
    s_mov_b32 s{S_SLOW}, 1
    s_mov_b32 s{S_LIM}, {LPS}
    s_mov_b32 s{S_IMASK}, 3
    s_waitcnt lgkmcnt(0)
    s_barrier
    s_branch L2_batch
    L2_s2:""")
    stamp(a, 6, ST)
    for k in range(8): a(f"s_mov_b64 exec, {sr(MASK+2*k,2)}\nds_read_b64 {vr(TB+2*k,2)}, v{RK+k} offset:{L_TBL}")
    a(f"""s_mov_b64 exec, -1
    v_add_u32 v{DEG}, v{DEG}, v{C_}
    s_min_u32 s98, s{S_CUT}, s96
    s_sub_u32 s99, s96, s98
    s_cmp_eq_u32 s{S_GRP}, 0
    s_cselect_b32 s{S_N}, s98, s99
    s_cselect_b32 s{S_T0}, 0, s{S_CUT}
    s_cmp_ge_u32 s3, 3
    s_cbranch_scc1 L2_pad
    v_add_u32 v54, s3, v{C_}
    v_cmp_lt_u32 vcc, v54, v{PC}
    s_add_u32 s96, s{S_NEG}, {N}
    s_and_b64 exec, exec, vcc
    v_add_u32 v56, s96, v{L}
    v_add_lshl_u32 v54, v54, v{BV}, 2
    ds_write_b32 v54, v56 offset:{L_IDX}
    s_mov_b64 exec, -1
    L2_pad:
    v_lshrrev_b32 v{PC}, 2, v{PC}
    v_lshrrev_b32 v{Q1}, 2, v{Q1}
    v_lshrrev_b32 v54, 2, v{ST1}
    v_lshrrev_b32 v{BV}, 2, v{BV}
    v_lshrrev_b32 v57, 1, v{L}
    v_mul_u32_u24 v57, {BTP}, v57
    v_and_b32 v58, 1, v{L}
    v_lshl_add_u32 v57, v58, 9, v57
    v_add_u32 v57, {L_BT}, v57
    v_mov_b32 v58, 0x3f80
    v_lshlrev_b32 v56, 4, v{L}
    v_subrev_u32 v53, {17*16}, v56
    s_lshl_b32 s96, s{S_CUT}, 3
    s_and_b32 s95, s96, 8
    s_mov_b32 s97, s3
    L2_q:
    v_cmp_lt_u32 s[98:99], s97, v{Q1}
    v_cmp_lt_u32 vcc, s97, v{PC}
    s_and_b64 exec, exec, vcc
    s_cbranch_execz L2_qd
    v_cndmask_b32 v59, v{BV}, v54, s[98:99]
    v_add_u32 v59, s97, v59
    v_cmp_le_u32 vcc, s96, v59
    v_lshlrev_b32 v60, 2, v59
    ds_write_b32 v60, v57 offset:{L_QA}
    v_add_u32 v61, s95, v59
    v_cndmask_b32 v60, v56, v53, vcc
    v_cndmask_b32 v59, v59, v61, vcc
    v_and_b32 v61, -16, v59
    v_lshl_add_u32 v60, v61, 6, v60
    v_and_b32 v61, 4, v59
    v_lshl_add_u32 v60, v61, 7, v60
    v_and_b32 v61, 1, v59
    v_lshl_add_u32 v60, v61, 2, v60
    v_and_b32 v61, 10, v59
    v_add_u32 v60, v60, v61
    ds_write_b16 v60, v58 offset:{L_P}
    s_add_u32 s97, s97, 8
    s_branch L2_q
    L2_qd:
    s_mov_b64 exec, -1
    s_waitcnt lgkmcnt(0)""")
    for k in range(12):
        kk = k % 8
        if k == 8:
            a(f"s_cmp_eq_u32 s{S_R2}, 0\ns_cbranch_scc1 L2_c12")
            for k2 in range(8, 12):
                a(f"""s_mov_b64 exec, {sr(MASK+2*k2,2)}
                v_lshrrev_b32 v{RK+k2-8}, 14, v{RECR+4*k2+2}
                ds_read_b64 {vr(TB+2*(k2-8),2)}, v{RK+k2-8} offset:{L_TBL}""")
            a("s_waitcnt lgkmcnt(0)")
        a(f"""s_mov_b64 exec, {sr(MASK+2*k,2)}
        v_cmp_lt_u32_sdwa vcc, v{RECR+4*k+3}, v{TB+2*kk+1} src0_sel:DWORD src1_sel:WORD_0
        v_and_b32 v{RECR+4*k+2}, {OPT.get('imask', 0x3fff)}, v{RECR+4*k+2}
        v_cndmask_b32_sdwa v{RK+kk}, v{TB+2*kk+1}, v{TB+2*kk}, vcc dst_sel:DWORD dst_unused:UNUSED_PAD src0_sel:WORD_1 src1_sel:DWORD
        v_add_lshl_u32 v{RK+kk}, v{RK+kk}, v{RECR+4*k+3}, 2
        v_lshlrev_b32 v{TB+2*kk}, 1, v{RK+kk}
        ds_write_b32 v{RK+kk}, v{RECR+4*k+2} offset:{L_IDX}
        ds_write_b64 v{TB+2*kk}, {vr(RECR+4*k,2)} offset:{L_EA}""")
    a(f"""L2_c12:
    s_mov_b64 exec, -1
    s_lshl_b32 s96, s{S_T0}, 7
    s_add_u32 s96, s96, {L_IDX-256}
    v_lshrrev_b32 v54, 3, v{L}
    v_lshl_add_u32 v{IB}, v54, 2, s96
    s_lshl_b32 s96, s{S_T0}, 8
    s_add_u32 s96, s96, {L_EA-512}
    v_add_u32 v{EB}, s96, v{ESIG}
    s_lshl_b32 s96, s{S_T0}, 5
    s_add_u32 s96, s96, {L_QA-64}
    v_add_u32 v{QB}, s96, v{QOFF}
    s_add_u32 s96, s{S_T0}, 1
    s_lshr_b32 s96, s96, 1
    s_lshl_b32 s96, s96, 10
    s_add_u32 s96, s96, {L_P-1024}
    v_add_u32 v{PB}, s96, v{L16}""")
    for j in range(8): a(f"v_mov_b32 v{HQ0+j}, 0")
    for j in range(4): a(f"v_mov_b32 v{PP+j}, 0")
    srd(a, 44, WS, W2OP, 65536); srd(a, 48, B2, None, 256)
    a(f"""s_mov_b32 s38, {AROWS}
    s_mov_b32 s{S_N0}, s{S_N}
    s_waitcnt vmcnt({PF}) lgkmcnt(0)
    s_barrier
    s_cmp_eq_u32 s{S_N}, 0
    s_cbranch_scc1 L2_done""")
    stamp(a, 7, ST)
    rd_idx(a, 2); a("s_waitcnt lgkmcnt(0)"); dma(a, 0)
    rd_idx(a, 3); a("s_waitcnt lgkmcnt(0)"); dma(a, 1)
    rd_idx(a, 4)
    a(f"""ds_read_b32 v{QV[0]}, v{QB} offset:64
    ds_read_b32 v{QV[1]}, v{QB} offset:96
    ds_read2st64_b32 {vr(A2[0]+2,2)}, v{EB} offset0:2 offset1:2
    s_waitcnt lgkmcnt(0)
    v_add_u32 v{QV[0]}, v{QV[0]}, v{QST}
    v_add_u32 v{QV[1]}, v{QV[1]}, v{QST}
    s_waitcnt vmcnt(4)""")
    rd_rows(a, 0)
    a(f"ds_read_b64_tr_b16 {vr(B2R[0],2)}, v{QV[0]}\ns_waitcnt lgkmcnt(0)")
    a(mfma(D0, ALO, ID0, None)); a(mfma(D0, ALO+4, ID1, D0)); a(mfma(D0, A2[0], B2R[0], D0))
    dma(a, 0); rd_idx(a, 5)
    group(a, 1)
    stamp(a, 8, ST)
    if OPT.get("stamp"): a(f"v_writelane_b32 v{ST}, s{S_N}, 30")
    a(f"s_cmp_lg_u32 s{S_SAFE}, 0\ns_cbranch_scc1 L2_loopS")
    main_loop(a, False, "F")
    main_loop(a, True, "S")
    a(f"""L2_end_odd:
    ds_read_b128 {vr(PP,4)}, v{PB}
    s_waitcnt lgkmcnt(0)""")
    a(mfma(S0, HQ0, PP, S0))
    a("L2_end_even:")
    a(mfma(S1, HQ1, PP, S1))
    a(f"""L2_done:
    s_waitcnt vmcnt(0)
    s_cmp_eq_u32 s{S_SLOW}, 0
    s_cbranch_scc1 L2_epi
    s_add_u32 s{S_BETA}, s{S_BETA}, 1
    s_lshr_b32 s{S_BASE}, s{S_BETA}, 1
    s_lshl_b32 s{S_BASE}, s{S_BASE}, {LSH}
    s_xor_b32 s{S_IMASK}, s{S_IMASK}, 15
    s_cmp_ge_u32 s{S_BASE}, s{S_MAXC}
    s_cbranch_scc1 L2_epi
    s_barrier
    s_branch L2_batch""")
    a(f"L2_epi:\ns_cmp_gt_u32 s{S_N0}, 4\ns_cbranch_scc1 L2_epi1")
    for k in range(4): w2chunk(a, k)
    a("s_waitcnt vmcnt(0)\nL2_epi1:")
    stamp(a, 9, ST)
    a(f"""v_and_b32 v2, 31, v{L}
    v_lshrrev_b32 v3, 5, v{L}
    s_mov_b32 s94, {NLN2}
    s_mov_b32 s95, {NLN2}
    v_bfe_u32 v5, v2, 1, 3
    v_lshlrev_b32 v5, 4, v5
    v_lshl_add_u32 v5, v2, 7, v5
    v_lshl_add_u32 v6, v3, 3, v5
    v_add_u32 v6, s{S_STG}, v6""")
    for u in range(8):
        a(f"""v_pk_mul_f32 {vr(S0+4*u,2)}, {vr(S0+4*u,2)}, s[94:95]
        v_pk_mul_f32 {vr(S0+4*u+2,2)}, {vr(S0+4*u+2,2)}, s[94:95]
        v_xor_b32 v{32+u}, {16*u}, v6
        v_cvt_pk_bf16_f32 v{16+2*u}, v{S0+4*u}, v{S0+4*u+1}
        v_cvt_pk_bf16_f32 v{17+2*u}, v{S0+4*u+2}, v{S0+4*u+3}
        ds_write_b64 v{32+u}, {vr(16+2*u,2)}""")
    a(f"""s_cmp_lg_u32 s3, 0
    s_cbranch_scc1 L2_e1
    v_cvt_f32_u32 v8, v{DEG}
    v_lshlrev_b32 v9, 2, v{L}
    s_mov_b32 exec_hi, 0
    ds_write_b32 v9, v8 offset:{L_DEG}
    s_mov_b32 exec_lo, 0xfffe0000
    s_mov_b32 exec_hi, 0x1ffff
    ds_write_b32 v9, v8 offset:{L_DEG+128-68}
    s_mov_b64 exec, -1
    L2_e1:
    v_lshlrev_b32 v7, 4, v3
    v_xor_b32 v5, v5, v7
    s_lshl_b32 s97, s{S_GRP}, 15
    s_add_u32 s97, s97, {L_STG}
    v_add_u32 v241, s97, v5
    v_xor_b32 v242, 32, v241
    v_xor_b32 v243, 64, v241
    v_xor_b32 v244, 96, v241
    s_lshl_b32 s97, s{S_GRP}, 7
    v_lshl_add_u32 v245, v3, 4, s97
    s_lshl_b32 s96, s{S_CG}, 7
    s_add_u32 s96, s96, {L_P-512}
    v_lshlrev_b32 v246, 11, v3
    v_lshl_add_u32 v246, v2, 2, v246
    v_add_u32 v246, s96, v246
    s_mul_i32 s96, s{S_GRP}, {17*256}
    s_lshl_b32 s97, s{S_CG}, 6
    s_add_u32 s96, s96, s97
    v_lshlrev_b32 v247, 10, v3
    v_lshl_add_u32 v247, v2, 1, v247
    v_add_u32 v247, s96, v247
    v_lshlrev_b32 v240, 16, v{B2V}
    s_sub_u32 s96, {N}, s{S_NEG}
    s_min_u32 s96, s96, {NPB}
    s_lshl_b32 s96, s96, 8
    s_lshl_b32 s97, s{S_NEG}, 8""")
    srd(a, 52, OUT, "s97", "s96")
    a("""s_mov_b32 s97, 4096
    s_waitcnt lgkmcnt(0)
    s_barrier""")
    for s in range(16): a(f"ds_read_b128 {vr(4*s,4)}, v{241+s%4} offset:{8192*(s//4)}")
    for jq in range(4): a(f"ds_read_b128 {vr(96+4*jq,4)}, v245 offset:{L_DEG+32*jq}")
    stamp(a, 10, ST)
    O = 64
    for s in range(16):
        a(f"s_waitcnt lgkmcnt({min(15, 19-s)})")
        a(mfma(O, 4*s, W2R+4*s, None if s == 0 else O))
    a(f"s_cmp_eq_u32 s{S_GRP}, 0\ns_cbranch_scc1 L2_e2")
    for j in range(8): a(f"ds_write_b32 v246, v{O+j} offset:{(8*(j//4)+j%4+1)*512}")
    a("""L2_e2:
    s_waitcnt lgkmcnt(0)
    s_barrier""")
    a(f"s_cmp_lg_u32 s{S_GRP}, 0\ns_cbranch_scc1 L2_e3")
    for j in range(8, 16): a(f"ds_read_b32 v{j}, v246 offset:{(8*(j//4)+j%4-16)*512}")
    a(f"""s_waitcnt lgkmcnt(0)
    s_mov_b32 exec_lo, 0
    v_add_f32 v{O+8}, v{O+8}, v8
    s_mov_b64 exec, -1""")
    for j in range(9, 16): a(f"v_add_f32 v{O+j}, v{O+j}, v{j}")
    a("L2_e3:")
    for j in range(16): a(f"v_fmac_f32 v{O+j}, v{96+j}, v240")
    for j in range(0, 16, 2): a(f"v_cvt_pk_bf16_f32 v{16+j//2}, v{O+j}, v{O+j+1}")
    def st(j):
        off = (8*(j//4) + j % 4)*256
        so = "0" if off < 4096 else "s97"
        return f"buffer_store_short{'_d16_hi' if j & 1 else ''} v{16+j//2}, v247, s[52:55], {so} offen offset:{off % 4096}"
    a(f"s_cmp_eq_u32 s{S_GRP}, 0\ns_cbranch_scc1 L2_e4\ns_mov_b32 exec_lo, 0")
    a(st(7)); a("s_mov_b64 exec, -1\ns_branch L2_e5\nL2_e4:")
    for j in range(8): a(st(j))
    a("L2_e5:")
    for j in range(8, 16): a(st(j))
    stamp_dump(a, ST, 0, 1)
    a("L2_exit2:\ns_endpgm")


HEAD = """; edge-featured MPNN: K1 = edge partition by dst bucket + node tables + operand prep ; K2 = gather / silu / segment-sum / final GEMM
; @launch kernel=k1_kernel grid=({g1},1,1) block=(512,1,1) lds={l1}
; @launch kernel=k2_kernel grid=({g2},1,1) block=(512,1,1) lds={l2}
.amdgcn_target "amdgcn-amd-amdhsa--gfx950"
.text
"""
KD = """.amdhsa_kernel {name}
  .amdhsa_next_free_vgpr {v}
  .amdhsa_next_free_sgpr 102
  .amdhsa_accum_offset {v}
  .amdhsa_group_segment_fixed_size 0
  .amdhsa_kernarg_size 88
  .amdhsa_user_sgpr_count 2
  .amdhsa_user_sgpr_kernarg_segment_ptr 1
  .amdhsa_system_sgpr_workgroup_id_x 1
.end_amdhsa_kernel
"""


def build():
    out = HEAD.format(g1=K1_GRID, l1=K1_LDS, g2=NB, l2=K2_LDS)
    for name, fn in (("k1_kernel", k1), ("k2_kernel", k2)):
        a = Asm(); fn(a)
        out += f".globl {name}\n.p2align 8\n.type {name},@function\n" + a.text(verbose=OPT.get("v", 0))
    out += '.section .rodata,"a"\n.p2align 6\n' + KD.format(name="k1_kernel", v=128) + ".p2align 6\n" + KD.format(name="k2_kernel", v=256)
    return out


if __name__ == "__main__":
    open(sys.argv[1], "w").write(build())
```

```python
import sys, struct
from asmlib import Asm, vr, sr

OPT = dict(prio=1, prio_at=32, pf=1, ept=4)
for a_ in sys.argv[2:]:
    k_, v_ = a_.split("="); OPT[k_] = int(v_)

N, E = 12500, 400000
NPB, NB = 49, 256
EPT = OPT["ept"]
CE = 400*EPT; CH = E//CE
LPS = 2*EPT
LSH = {8: 3, 16: 4}[LPS]
SPLIT, HALF = OPT.get('split', 23), 6250
AROWS = 25088
REC = 13 << 20
OFF = 19 << 20
W2OP = 20 << 20
STAT = W2OP + 65536
MAXA = STAT + 4096
MAXE = MAXA + 1024
MAXW_G = MAXE + 1024
STAMPS = 24 << 20
NG = 208
K1_GRID = NG + 1 + CH
K1_LDS = 65536 + 64

def f2u(x): return struct.unpack("<I", struct.pack("<f", x))[0]
NLOG2E = f2u(-1.4426950408889634)
PLOG2E = NLOG2E ^ 0x80000000
NLN2 = f2u(-0.6931471805599453)
X, EA_, SRC, DST, W1, B1, W2, B2, OUT, DBG, WS = 4, 6, 8, 10, 12, 14, 16, 18, 20, 22, 24
SHR = ["row_shr:%d row_mask:0xf bank_mask:0xf bound_ctrl:0" % i for i in (1, 2, 4, 8)]
BC15, BC31 = "row_bcast:15 row_mask:0xa bank_mask:0xf", "row_bcast:31 row_mask:0xc bank_mask:0xf"


def srd(a, d, base, add, size, stride=0):
    if add is None:
        a(f"s_mov_b32 s{d}, s{base}\ns_mov_b32 s{d+1}, s{base+1}")
    else:
        a(f"s_add_u32 s{d}, s{base}, {add}\ns_addc_u32 s{d+1}, s{base+1}, 0")
    if stride: a(f"s_or_b32 s{d+1}, s{d+1}, {stride << 16}")
    a(f"s_mov_b32 s{d+2}, {size}\ns_mov_b32 s{d+3}, 0x00020000")


def ldargs(a):
    a("""s_load_dwordx16 s[4:19], s[0:1], 0
    s_load_dwordx4 s[20:23], s[0:1], 64
    s_load_dwordx2 s[24:25], s[0:1], 80""")


def dpp_red(a, op, vs, full=True):
    if isinstance(vs, int): vs = [vs]
    for m in SHR + [BC15] + ([BC31] if full else []):
        for v in vs: a(f"{op}_dpp v{v}, v{v}, v{v} {m}")


def stamp(a, k, reg):
    if not OPT.get("stamp"): return
    a(f"s_memrealtime s[100:101]\ns_waitcnt lgkmcnt(0)\nv_writelane_b32 v{reg}, s100, {k}")
    if k in (0, 7, 8, 9, 31): a(f"s_memtime s[100:101]\ns_waitcnt lgkmcnt(0)\nv_writelane_b32 v{reg}, s100, {32+k}")


def stamp_dump(a, reg, tmp, kern):
    if not OPT.get("stamp"): return
    a("s_mov_b64 exec, -1\ns_waitcnt vmcnt(0)")
    stamp(a, 31, reg)
    a(f"""s_lshl_b32 s96, s2, 3
    s_add_u32 s96, s96, s3
    s_lshl_b32 s96, s96, 8
    s_add_u32 s96, s96, {STAMPS + kern*(1 << 20)}""")
    srd(a, 44, WS, "s96", 256)
    a(f"""v_mbcnt_lo_u32_b32 v{tmp}, -1, 0
    v_mbcnt_hi_u32_b32 v{tmp}, -1, v{tmp}
    v_lshlrev_b32 v{tmp}, 2, v{tmp}
    buffer_store_dword v{reg}, v{tmp}, s[44:47], 0 offen""")


def lane63(a): a("s_mov_b32 exec_lo, 0\ns_mov_b32 exec_hi, 0x80000000")
def full(a): a("s_mov_b64 exec, -1")
def mfma(D, A, B, C): return f"v_mfma_f32_32x32x16_bf16 {vr(D,16)}, {vr(A,4)}, {vr(B,4)}, " + ("0" if C is None else vr(C, 16))


def k1(a):
    ST = 126
    a("k1_kernel:")
    a(f"s_cmp_ge_u32 s2, {K1_GRID}\ns_cbranch_scc1 L1_exit2")
    if OPT.get("stamp"): a(f"v_mov_b32 v{ST}, 0")
    stamp(a, 0, ST)
    ldargs(a)
    a(f"""v_and_b32 v1, 63, v0
    v_lshrrev_b32 v2, 6, v0
    s_nop 0
    v_readfirstlane_b32 s3, v2
    s_cmp_le_u32 s2, {NG}
    s_cbranch_scc1 L1_gemm
    s_sub_u32 s56, s2, {NG+1}""")
    G = EPT//4
    HIST, START, MAXW = 40960, 41984, 43008
    DV, SV, EV, AV, RV = 4, 12, 24, 40, 48
    a(f"""v_lshlrev_b32 v2, 2, v0
    v_mov_b32 v3, 0
    ds_write_b32 v2, v3 offset:{HIST}
    ds_write_b32 v2, v3 offset:{MAXW}
    v_mov_b32 v60, 0
    v_mov_b32 v61, 1
    s_mul_i32 s26, s56, {CE*4}
    s_add_u32 s27, s26, 6400
    s_lshl_b32 s52, s26, 1
    s_lshl_b32 s53, s27, 1
    v_lshlrev_b32 v3, 4, v0
    v_lshlrev_b32 v20, 5, v0
    v_cmp_gt_u32 vcc, 400, v0
    s_waitcnt lgkmcnt(0)""")
    stamp(a, 5, ST)
    srd(a, 28, DST, None, E*4); srd(a, 32, SRC, None, E*4); srd(a, 36, EA_, None, E*8)
    a("""s_and_saveexec_b64 s[54:55], vcc
    s_mov_b64 s[54:55], exec
    s_cbranch_execz L1_p1""")
    for g in range(G): a(f"buffer_load_dwordx4 {vr(DV+4*g,4)}, v3, s[28:31], s{26+g} offen nt")
    for g in range(G): a(f"buffer_load_dwordx4 {vr(SV+4*g,4)}, v3, s[32:35], s{26+g} offen nt")
    for g in range(G):
        a(f"buffer_load_dwordx4 {vr(EV+8*g,4)}, v20, s[36:39], s{52+g} offen nt")
        a(f"buffer_load_dwordx4 {vr(EV+8*g+4,4)}, v20, s[36:39], s{52+g} offen offset:16 nt")
    a(f"""L1_p1:
    s_mov_b64 exec, -1
    s_mul_i32 s26, s56, {CE*12}
    s_add_u32 s26, s26, {REC}""")
    srd(a, 40, WS, "s26", CE*12); srd(a, 44, WS, OFF, CH*1024); srd(a, 48, WS, MAXE, CH*4)
    a(f"""s_setprio 2
    s_barrier
    s_mov_b64 exec, s[54:55]
    s_cbranch_execz L1_p2
    s_waitcnt vmcnt({3*G})""")
    stamp(a, 1, ST)
    for k in range(EPT):
        a(f"""v_mul_u32_u24 v21, 10700, v{DV+k}
        v_lshrrev_b32 v21, 19, v21
        v_lshlrev_b32 v{AV+k}, 2, v21
        ds_add_rtn_u32 v{RV+k}, v{AV+k}, v61 offset:{HIST}
        v_mul_u32_u24 v21, {NPB}, v21
        v_sub_u32 v{DV+k}, v{DV+k}, v21""")
    a(f"s_waitcnt vmcnt({2*G})")
    for k in range(EPT):
        a(f"""v_add_u32 v21, {16384-HALF}, v{SV+k}
        v_lshl_or_b32 v{SV+k}, v{DV+k}, 18, v{SV+k}
        v_lshrrev_b32 v21, 14, v21
        v_lshl_or_b32 v{SV+k}, v21, 24, v{SV+k}""")
    a(f"""L1_p2:
    s_mov_b64 exec, -1
    v_lshlrev_b32 v2, 4, v1
    s_waitcnt lgkmcnt(0)
    s_barrier""")
    stamp(a, 3, ST)
    a(f"""ds_read_b128 v[64:67], v2 offset:{HIST}
    s_waitcnt lgkmcnt(0)
    v_add_u32 v8, v64, v65
    v_add_u32 v9, v8, v66
    v_add_u32 v10, v9, v67
    v_mov_b32 v11, v10""")
    dpp_red(a, "v_add_u32", 11)
    a(f"""v_sub_u32 v56, v11, v10
    v_add_u32 v57, v56, v64
    v_add_u32 v58, v56, v8
    v_add_u32 v59, v56, v9
    ds_write_b128 v2, v[56:59] offset:{START}
    s_mov_b64 exec, s[54:55]
    s_cbranch_execz L1_p4""")
    for k in range(EPT): a(f"ds_read_b32 v{AV+k}, v{AV+k} offset:{START}")
    a("s_waitcnt vmcnt(0)")
    for k in range(EPT):
        a(f"""s_waitcnt lgkmcnt({EPT-1+k})
        v_add_u32 v{AV+k}, v{AV+k}, v{RV+k}
        v_mul_u32_u24 v{AV+k}, 12, v{AV+k}
        ds_write2_b32 v{AV+k}, v{EV+2*k}, v{EV+2*k+1} offset0:0 offset1:1
        ds_write_b32 v{AV+k}, v{SV+k} offset:8""")
    for k in range(EPT): a(f"v_dot2_f32_bf16 v{DV+k}, v{EV+2*k}, v{EV+2*k}, 0")
    for k in range(EPT): a(f"v_dot2_f32_bf16 v{DV+k}, v{EV+2*k+1}, v{EV+2*k+1}, v{DV+k}")
    a("s_nop 2")
    for k in range(0, EPT, 2): a(f"v_max3_u32 v60, v60, v{DV+k}, v{DV+k+1}")
    a("L1_p4:")
    full(a)
    dpp_red(a, "v_max_u32", 60)
    a("v_mov_b32 v62, 0")
    lane63(a); a(f"ds_max_u32 v62, v60 offset:{MAXW}"); full(a)
    stamp(a, 2, ST)
    a(f"""s_cmp_lg_u32 s3, 7
    s_cbranch_scc1 L1_p3
    v_lshl_or_b32 v64, v64, 16, v56
    v_lshl_or_b32 v65, v65, 16, v57
    v_lshl_or_b32 v66, v66, 16, v58
    v_lshl_or_b32 v67, v67, 16, v59
    v_mul_u32_u24 v2, {CH*16}, v1
    s_lshl_b32 s26, s56, 4
    buffer_store_dwordx4 v[64:67], v2, s[44:47], s26 offen sc1
    L1_p3:
    s_waitcnt lgkmcnt(0)
    s_barrier""")
    stamp(a, 4, ST)
    NO = -(-CE*12//8192)
    for i in range(NO): a(f"ds_read_b128 {vr(4+4*i,4)}, v3 offset:{8192*i}")
    a(f"ds_read_b32 v30, v62 offset:{MAXW}")
    for i in range(NO):
        a(f"s_mov_b32 s26, {8192*i}\ns_waitcnt lgkmcnt({NO-i})\nbuffer_store_dwordx4 {vr(4+4*i,4)}, v3, s[40:43], s26 offen sc1")
    a(f"""s_lshl_b32 s26, s56, 2
    v_cmp_eq_u32 vcc, 0, v0
    s_and_saveexec_b64 s[54:55], vcc
    s_cbranch_execz L1_exit
    s_waitcnt lgkmcnt(0)
    buffer_store_dword v30, v62, s[48:51], s26 offen sc1
    s_branch L1_exit""")

    WOP = 56
    a(f"""L1_gemm:
    s_cmp_eq_u32 s2, {NG}
    s_cbranch_scc1 L1_w2
    s_bfe_u32 s27, s2, 0x10003
    s_lshr_b32 s28, s2, 4
    s_lshl_b32 s28, s28, 3
    s_and_b32 s29, s2, 7
    s_add_u32 s28, s28, s29
    s_cmp_ge_u32 s28, 98
    s_cbranch_scc1 L1_exit2
    v_lshrrev_b32 v18, 4, v1
    v_and_b32 v19, 15, v1
    v_lshlrev_b32 v24, 2, v18
    v_xor_b32 v24, v24, v19
    v_lshlrev_b32 v24, 4, v24
    v_lshl_or_b32 v124, v18, 9, v24""")
    for ii in range(4):
        a(f"""v_add_u32 v20, {4*ii}, v18
        v_xor_b32 v20, v20, v19
        v_lshlrev_b32 v20, 4, v20
        v_lshl_or_b32 v{25+ii}, v18, 8, v20""")
    a(f"""v_mov_b32 v2, 0
    v_mov_b32 v3, 65536
    ds_write_b32 v3, v2
    s_lshl_b32 s43, s3, 13
    s_lshl_b32 s30, s27, 8
    s_add_u32 s43, s43, s30
    s_lshl_b32 s31, s3, 12
    s_lshl_b32 s29, s28, 15
    s_add_u32 s29, s29, s31
    s_add_u32 m0, s31, 32768
    s_and_b32 s40, s3, 1
    s_lshr_b32 s41, s3, 1
    v_and_b32 v7, 31, v1
    v_lshlrev_b32 v20, 1, v7
    s_lshl_b32 s42, s40, 7
    s_add_u32 s42, s42, s30
    s_waitcnt lgkmcnt(0)""")
    stamp(a, 5, ST)
    srd(a, 36, X, None, N*256)
    for ii in range(4):
        a(f"buffer_load_dwordx4 v{25+ii}, s[36:39], s29 offen nt lds")
        if ii < 3: a("s_add_u32 m0, m0, 1024\ns_add_u32 s29, s29, 1024")
    a("s_mov_b32 m0, s31")
    srd(a, 32, W1, None, 260*512)
    for ii in range(4):
        a(f"buffer_load_dwordx4 v124, s[32:35], s43 offen lds")
        a("s_add_u32 m0, m0, 1024\ns_add_u32 s43, s43, 2048")
    srd(a, 44, B1, None, 512)
    a(f"""buffer_load_ushort v122, v20, s[44:47], s42 offen
    buffer_load_ushort v123, v20, s[44:47], s42 offen offset:64
    s_add_u32 s43, s43, {128*512 - 8192}""")
    stamp(a, 6, ST)
    a(f"""v_bfe_u32 v18, v1, 2, 2
    v_lshrrev_b32 v6, 5, v1
    v_lshl_add_u32 v19, v6, 3, v18
    v_lshlrev_b32 v19, 8, v19
    v_bfe_u32 v20, v1, 4, 1
    v_lshlrev_b32 v20, 5, v20
    v_and_b32 v21, 3, v1
    v_lshl_add_u32 v20, v21, 3, v20
    v_add_u32 v19, v19, v20
    s_lshl_b32 s42, s40, 1
    v_xor_b32 v20, s42, v18
    v_lshl_add_u32 v120, v20, 6, v19
    v_xor_b32 v20, 1, v20
    v_lshl_add_u32 v121, v20, 6, v19
    s_lshl_b32 s42, s41, 5
    v_add_u32 v19, s42, v7
    v_lshlrev_b32 v19, 8, v19
    v_and_b32 v20, 15, v1
    v_xor_b32 v20, v20, v6
    v_lshl_add_u32 v10, v20, 4, v19
    v_add_u32 v10, 32768, v10""")
    for s in range(1, 8): a(f"v_xor_b32 v{10+s}, {32*s}, v10")
    srd(a, 44, WS, None, N*512); srd(a, 56, WS, N*512, N*512)
    a(f"""s_lshl_b32 s42, s28, 2
    s_add_u32 s42, s42, s41
    s_lshl_b32 s42, s42, 14
    s_lshl_b32 s48, s27, 1
    s_add_u32 s48, s48, s40
    s_lshl_b32 s48, s48, 7
    s_add_u32 s48, s42, s48
    s_add_u32 s30, s31, 32768
    v_lshlrev_b32 v4, 9, v6
    v_lshl_add_u32 v4, v7, 2, v4
    v_add_u32 v4, s30, v4
    v_lshl_add_u32 v6, v1, 4, s30
    v_lshrrev_b32 v7, 3, v1
    v_lshlrev_b32 v7, 9, v7
    v_and_b32 v18, 7, v1
    v_lshl_add_u32 v7, v18, 4, v7
    s_mov_b32 s52, {NLOG2E}
    s_mov_b32 s60, {PLOG2E}
    v_mov_b32 v5, 0
    v_mov_b32 v125, 0x80008000
    s_waitcnt vmcnt(0)
    s_barrier""")
    stamp(a, 1, ST)
    def wread(t):
        for s in range(8):
            for hf in range(2):
                a(f"ds_read_b64_tr_b16 {vr(WOP+32*t+4*s+2*hf,2)}, v{120+t} offset:{4096*s+1024*hf}")
    for s in range(8): a(f"ds_read_b128 {vr(24+4*s,4)}, v{10+s}")
    GD0, GD1, CV, RB = 8, WOP, 72, 88
    for task in range(2):
        sc = (lambda r, b: f"v_mul_f32 v{r}, s52, v{r}") if task == 0 else (lambda r, b: f"v_fma_f32 v{r}, v{r}, s60, v{b}")
        wread(0); wread(1)
        if task == 1:
            a("""v_lshlrev_b32 v122, 16, v122
            v_lshlrev_b32 v123, 16, v123
            v_mul_f32 v122, s60, v122
            v_mul_f32 v123, s60, v123""")
        a("s_waitcnt lgkmcnt(15)")
        for s in range(8): a(mfma(GD0, 24+4*s, WOP+4*s, None if s == 0 else GD0))
        a("s_waitcnt lgkmcnt(0)")
        if task == 0:
            a("s_barrier\ns_mov_b32 m0, s31")
            stamp(a, 3, ST)
            for ii in range(4):
                a(f"buffer_load_dwordx4 v124, s[32:35], s43 offen lds")
                a("s_add_u32 m0, m0, 1024\ns_add_u32 s43, s43, 2048")
        for s in range(8):
            a(mfma(GD1, 24+4*s, WOP+32+4*s, None if s == 0 else GD1))
            if s >= 2:
                for j in range((s-2)*3, min(16, (s-1)*3)): a(sc(GD0+j, 122))
        for j in range(16):
            a(sc(GD1+j, 123))
            a(f"""v_cvt_pk_bf16_f32 v{CV+j}, v{GD0+j}, v{GD1+j}
            ds_write_b32 v4, v{CV+j} offset:{128*(8*(j//4)+j%4)}""")
        a("s_waitcnt lgkmcnt(0)")
        if task == 0: stamp(a, 4, ST)
        for i in range(4): a(f"ds_read_b128 {vr(RB+4*i,4)}, v6 offset:{1024*i}")
        for j in range(16): a(f"v_pk_max_i16 v5, v5, v{CV+j}" if task == 0 else f"v_pk_max_u16 v125, v125, v{CV+j}")
        for i in range(4):
            a(f"s_waitcnt lgkmcnt({3-i})\nbuffer_store_dwordx4 {vr(RB+4*i,4)}, v7, {sr(44 if task == 0 else 56, 4)}, s48 offen sc1")
            a("s_add_u32 s48, s48, 4096" if i < 3 else "s_sub_u32 s48, s48, 12288")
        if task == 0: a("s_waitcnt vmcnt(4)\ns_barrier")
    stamp(a, 2, ST)
    a("""v_and_b32 v125, 0x7fff7fff, v125
    v_pk_max_i16 v5, v5, v125
    v_lshlrev_b32 v6, 16, v5
    v_and_b32 v5, 0xffff0000, v5
    v_max_u32 v5, v5, v6""")
    dpp_red(a, "v_max_u32", 5)
    lane63(a); a("ds_max_u32 v3, v5"); full(a)
    srd(a, 44, WS, MAXA, 196*4)
    a(f"""s_lshl_b32 s26, s28, 1
    s_add_u32 s26, s26, s27
    s_lshl_b32 s26, s26, 2
    s_waitcnt lgkmcnt(0)
    s_barrier
    v_cmp_eq_u32 vcc, 0, v0
    s_and_saveexec_b64 s[54:55], vcc
    s_cbranch_execz L1_exit
    ds_read_b32 v6, v3
    s_waitcnt lgkmcnt(0)
    buffer_store_dword v6, v2, s[44:47], s26 offen sc1
    s_branch L1_exit""")
    a(f"""L1_w2:
    v_lshlrev_b32 v2, 4, v1
    s_lshl_b32 s29, s3, 13
    s_mov_b32 m0, s29
    v_mov_b32 v20, 0
    v_mov_b32 v21, 65536
    ds_write_b32 v21, v20
    v_and_b32 v11, 1, v1
    v_lshlrev_b32 v11, 5, v11
    v_bfe_u32 v12, v1, 1, 4
    v_add_u32 v11, v11, v12
    v_lshlrev_b32 v11, 1, v11
    v_lshrrev_b32 v12, 5, v1
    v_lshl_add_u32 v11, v12, 10, v11
    s_lshr_b32 s40, s3, 1
    s_lshl_b32 s40, s40, 7
    s_and_b32 s41, s3, 1
    s_lshl_b32 s41, s41, 5
    s_add_u32 s40, s40, s41
    s_add_u32 s40, s40, {256*512}
    s_waitcnt lgkmcnt(0)""")
    srd(a, 32, W2, None, 65536); srd(a, 36, W1, None, 260*512)
    a("""buffer_load_ushort v8, v11, s[36:39], s40 offen
    buffer_load_ushort v9, v11, s[36:39], s40 offen offset:512""")
    for ii in range(8):
        a("buffer_load_dwordx4 v2, s[32:35], s29 offen lds")
        if ii < 7: a("s_add_u32 m0, m0, 1024\ns_add_u32 s29, s29, 1024")
    a(f"""s_and_b32 s40, s3, 3
    s_lshr_b32 s41, s3, 2
    v_bfe_u32 v5, v1, 2, 1
    v_lshlrev_b32 v5, 5, v5
    v_bfe_u32 v6, v1, 3, 1
    v_add_u32 v5, v5, v6
    v_lshrrev_b32 v6, 5, v1
    v_lshl_add_u32 v5, v6, 2, v5
    v_lshlrev_b32 v5, 8, v5
    v_bfe_u32 v6, v1, 4, 1
    v_lshl_add_u32 v5, v6, 5, v5
    v_and_b32 v6, 3, v1
    v_lshl_add_u32 v5, v6, 3, v5
    s_lshl_b32 s42, s40, 6
    s_lshl_b32 s43, s41, 15
    s_add_u32 s42, s42, s43
    v_add_u32 v5, s42, v5
    s_lshl_b32 s43, s40, 14
    s_lshl_b32 s42, s41, 13
    s_add_u32 s43, s43, s42
    s_mov_b32 s52, {NLOG2E}
    s_lshl_b32 s42, s3, 9
    v_lshlrev_b32 v3, 3, v1""")
    srd(a, 44, WS, W2OP, 65536); srd(a, 48, WS, STAT, 4096); srd(a, 56, WS, MAXW_G, 4)
    a("""s_waitcnt vmcnt(8)
    v_lshlrev_b32 v8, 16, v8
    v_lshlrev_b32 v9, 16, v9
    v_mul_f32 v8, s52, v8
    v_mul_f32 v9, s52, v9
    v_cvt_pk_bf16_f32 v15, v8, v9
    v_mul_f32 v16, v8, v8
    v_fmac_f32 v16, v9, v9
    v_lshlrev_b32 v12, 16, v15
    v_and_b32 v13, 0xffff0000, v15
    v_sub_f32 v8, v8, v12
    v_sub_f32 v9, v9, v13
    v_cvt_pk_bf16_f32 v14, v8, v9
    buffer_store_dwordx2 v[14:15], v3, s[48:51], s42 offen sc1""")
    dpp_red(a, "v_max_u32", 16, full=False)
    a("""v_readlane_b32 s42, v16, 31
    v_add_f32 v16, s42, v16
    s_waitcnt vmcnt(0)
    s_barrier""")
    lane63(a); a("ds_max_u32 v21, v16"); full(a)
    for s in range(8):
        for hf in range(2):
            row = 64*(s//4) + 16*((s//2) % 2) + 8*(s % 2) + 2*hf
            a(f"ds_read_b64_tr_b16 {vr(WOP+4*s+2*hf,2)}, v5 offset:{256*row}")
    a("s_waitcnt lgkmcnt(0)\ns_barrier\nds_read_b32 v16, v21")
    for s in range(8):
        a(f"buffer_store_dwordx4 {vr(WOP+4*s,4)}, v2, s[44:47], s43 offen sc1\ns_add_u32 s43, s43, 1024")
    srd(a, 48, WS, MAXE + CH*4, 16)
    a("""v_lshlrev_b32 v17, 2, v1
    buffer_store_dword v20, v17, s[48:51], 0 offen sc1
    s_waitcnt lgkmcnt(0)
    buffer_store_dword v16, v3, s[56:59], 0 offen sc1
    L1_exit:""")
    stamp_dump(a, ST, 127, 0)
    a("L1_exit2:\ns_endpgm")


CAPT = 60
L_IDX, L_QA, L_TBL, L_CNT, L_MISC, L_DEG, L_EA, L_P = 256, 8448, 10496, 12544, 14592, 14656, 15104, 30464
L_BT = L_P + 31*1024
L_STG = 91136
BTP = 1152
L_NULL = L_BT + 24*BTP + 512
K2_LDS = L_STG + 65536
assert L_BT + 25*BTP <= L_STG
D0, D1, EE, TT, HQ0, HQ1, S0, S1 = 0, 16, 32, 48, 56, 60, 64, 80
ALO, AHI, ID0, ID1, A2, B2R, PP, IP = 96, (104, 112), 120, 124, (128, 132), (136, 140), 144, 148
QV, QST, RA, IB, EB, QB, PB = (156, 157), 158, 159, 163, 164, 165, 166
TID, LANE, DEG, VONE, ESIG, QOFF, L16 = 167, 168, 169, 170, 172, 173, 174
RECR, OFR, W2R, B2V = 0, 240, 176, 252
MASK = 56
S_BASE, S_LIM, S_IMASK, S_SLOW, S_N, S_T0, S_FIRST, S_BK, S_MAXC, S_SAFE, S_CUT, S_STG, S_BETA, S_NEG = range(80, 94)
S_CG, S_GRP, S_R2, S_N0, S_NO = 26, 27, 1, 0, 87


def valu_half(D, hq, mode, fill):
    L = [f"v_exp_f32 v{EE+j}, v{D+j}" for j in range(16)]
    p2 = lambda x: vr(x, 2)
    if mode == "o":
        L.insert(15, None)
        L[15] = f"v_pk_add_f32 {p2(TT)}, {p2(EE)}, 1.0 op_sel_hi:[1,0]"
        L[15], L[16] = L[16], L[15]
        for s in range(1, 8):
            n = D if s == 1 else TT+2
            L.append(f"v_pk_fma_f32 {p2(TT+2)}, {p2(n)}, {p2(EE+2*s)}, {p2(n)}")
            L.append(f"v_pk_fma_f32 {p2(TT+2)}, {p2(D+2*s)}, {p2(TT)}, {p2(TT+2)}")
            L.append(f"v_pk_fma_f32 {p2(TT)}, {p2(TT)}, {p2(EE+2*s)}, {p2(TT)}")
        u, nn, dd = L[-3:]
        L[-3:] = [f"v_pk_fma_f32 {p2(TT+4)}, {p2(TT)}, {p2(EE+14)}, {p2(TT)}", f"v_rcp_f32 v{TT+4}, v{TT+4}", f"v_rcp_f32 v{TT+5}, v{TT+5}", u, nn]
        L.append(f"v_pk_mul_f32 {p2(TT+2)}, {p2(TT+2)}, {p2(TT+4)}")
        L.append(f"v_cvt_pk_bf16_f32 v{hq}, v{TT+2}, v{TT+3}")
        return L + fill
    if mode == "q":
        for q in range(2): L.append(f"v_pk_add_f32 {p2(TT+4*q)}, {p2(EE+8*q)}, 1.0 op_sel_hi:[1,0]")
        for s in range(1, 4):
            for q in range(2):
                n = D+8*q if s == 1 else TT+4*q+2
                L.append(f"v_pk_fma_f32 {p2(TT+4*q+2)}, {p2(n)}, {p2(EE+8*q+2*s)}, {p2(n)}")
            for q in range(2):
                L.append(f"v_pk_fma_f32 {p2(TT+4*q+2)}, {p2(D+8*q+2*s)}, {p2(TT+4*q)}, {p2(TT+4*q+2)}")
            for q in range(2):
                L.append(f"v_pk_fma_f32 {p2(TT+4*q)}, {p2(TT+4*q)}, {p2(EE+8*q+2*s)}, {p2(TT+4*q)}")
        for q in range(2):
            for p in range(2): L.append(f"v_rcp_f32 v{TT+4*q+p}, v{TT+4*q+p}")
        for q in range(2): L.append(f"v_pk_mul_f32 {p2(TT+4*q+2)}, {p2(TT+4*q+2)}, {p2(TT+4*q)}")
    else:
        for j in range(0, 16, 2): L.append(f"v_pk_add_f32 {p2(EE+j)}, {p2(EE+j)}, 1.0 op_sel_hi:[1,0]")
        for j in range(16): L.append(f"v_rcp_f32 v{EE+j}, v{EE+j}")
        for q in range(2): L.append(f"v_pk_mul_f32 {p2(TT+4*q+2)}, {p2(D+8*q)}, {p2(EE+8*q)}")
        for s in range(1, 4):
            for q in range(2):
                L.append(f"v_pk_fma_f32 {p2(TT+4*q+2)}, {p2(D+8*q+2*s)}, {p2(EE+8*q+2*s)}, {p2(TT+4*q+2)}")
    for q in range(2): L.append(f"v_cvt_pk_bf16_f32 v{hq+q}, v{TT+4*q+2}, v{TT+4*q+3}")
    return L + fill


def weave(V, M, pos):
    out = []
    for i, x in enumerate(V):
        out += [m for m, p in zip(M, pos) if p == i]
        out.append(x)
    return out


def incs(k): return [f"v_add_u32 v{IB}, {128*k}, v{IB}", f"v_add_u32 v{EB}, {256*k}, v{EB}", f"v_add_u32 v{QB}, {32*k}, v{QB}"]


def block(a, t, mode):
    par = t & 1
    last = 3 if mode == "o" else 1
    M1 = [mfma(D1, AHI[par], ID0, None), mfma(D1, AHI[par]+4, ID1, D1), mfma(D1, A2[par], B2R[1], D1)]
    if t == 0: M1.append(mfma(S1, HQ1, PP, S1))
    M2 = [mfma(D0, ALO, ID0, None), mfma(D0, ALO+4, ID1, D0), mfma(D0, A2[par ^ 1], B2R[0], D0)]
    if t == last: M2.append(mfma(S0, HQ0, PP, S0))
    pos = [1, 4, 7, 10]
    extra = [f"v_add_u32 v{QV[par]}, v{QV[par]}, v{QST}"]
    if t == 0: extra.append(f"v_add_u32 v{PB}, 1024, v{PB}")
    if mode == "o" and t == 2: extra += incs(4)
    if mode != "o" and t == 0: extra += incs(2)
    k = t if mode == "o" else 2*t
    L = weave(valu_half(D0, HQ0+k, mode, extra), M1, pos) + weave(valu_half(D1, HQ1+k, mode, []), M2, pos)
    if OPT["prio"]:
        L.insert(OPT["prio_at"], "s_setprio 1"); L.append("s_setprio 0")
    a("\n".join(L))


def dma(a, par):
    a(f"s_add_u32 m0, s{S_STG}, {4096*par}")
    for u in range(4):
        a(f"buffer_load_dwordx4 {vr(IP+2*u,2)}, s[36:39], 0 idxen offen lds")
        if u < 3: a("s_add_u32 m0, m0, 1024")


def rd_idx(a, t):
    for u in range(4): a(f"ds_read_b32 v{IP+2*u}, v{IB} offset:{128*t+32*u}")


def rd_rows(a, par):
    for s in range(4):
        d = ALO+4*s if s < 2 else AHI[par]+4*(s-2)
        a(f"ds_read_b128 {vr(d,4)}, v{RA+s} offset:{4096*par}")


def w2chunk(a, k):
    a(f"s_lshl_b32 s96, s{S_CG}, 14\ns_add_u32 s96, s96, {4096*k}")
    for q in range(4): a(f"buffer_load_dwordx4 {vr(W2R+16*k+4*q,4)}, v{L16}, s[44:47], s96 offen offset:{1024*q}")
    if k == 0: a(f"s_lshl_b32 s96, s{S_CG}, 6\nbuffer_load_ushort v{B2V}, v175, s[48:51], s96 offen")


def group(a, par, sh=0, rdp=False, tail=True):
    a("s_waitcnt vmcnt(4)")
    rd_rows(a, par)
    a(f"ds_read_b64_tr_b16 {vr(B2R[1],2)}, v{QV[par^1]} offset:64")
    a(f"ds_read_b64_tr_b16 {vr(B2R[0],2)}, v{QV[par]}")
    a(f"ds_read2st64_b32 {vr(A2[par]+2,2)}, v{EB} offset0:{2+par+sh} offset1:{2+par+sh}")
    if rdp: a(f"ds_read_b128 {vr(PP,4)}, v{PB}")
    a(f"s_cmp_gt_u32 s{S_N}, 3\ns_cselect_b32 s38, {0 if OPT.get('nodma') else AROWS}, 0")
    if tail:
        group.n += 1
        a(f"s_cmp_gt_u32 s{S_N}, 4\ns_cbranch_scc1 L2_tr{group.n}\ns_call_b64 s[98:99], L2_w2stub\nL2_tr{group.n}:")
    a(f"s_waitcnt lgkmcnt({4 if rdp else 3})")
    dma(a, par)
    rd_idx(a, 5+par+sh)
    a(f"ds_read_b32 v{QV[par^1]}, v{QB} offset:{32*(3+par+sh)}")
    a("s_waitcnt lgkmcnt(0)")
group.n = 0


def dec(a, tgt): a(f"s_sub_u32 s{S_N}, s{S_N}, 1\ns_cmp_eq_u32 s{S_N}, 0\ns_cbranch_scc1 {tgt}")


def main_loops(a):
    a("L2_loopO:")
    block(a, 0, "o"); a(f"s_sub_u32 s{S_N}, s{S_N}, 1"); group(a, 0, 2, True)
    block(a, 1, "o"); dec(a, "L2_end_odd"); group(a, 1, 2)
    a(f"s_cmp_eq_u32 s{S_NO}, 2\ns_cbranch_scc1 L2_half")
    block(a, 2, "o"); a(f"s_sub_u32 s{S_N}, s{S_N}, 1"); group(a, 0)
    block(a, 3, "o"); dec(a, "L2_end_even"); group(a, 1)
    a(f"s_sub_u32 s{S_NO}, s{S_NO}, 4\ns_cmp_lg_u32 s{S_NO}, 0\ns_cbranch_scc1 L2_loopO\ns_branch L2_loopF\nL2_half:")
    a(mfma(S0, HQ0, PP, S0)); a("\n".join(incs(2)))
    for tag, mode in (("F", "q"), ("S", "s")):
        a(f"L2_loop{tag}:")
        block(a, 0, mode); dec(a, "L2_end_odd"); group(a, 0, 0, True)
        block(a, 1, mode); dec(a, "L2_end_even"); group(a, 1)
        a(f"s_branch L2_loop{tag}")
    a("L2_w2stub:")
    for k in range(4):
        if k < 3: a(f"s_cmp_lg_u32 s{S_N}, {4-k}\ns_cbranch_scc1 L2_st{k}")
        w2chunk(a, k)
        a("s_setpc_b64 s[98:99]")
        if k < 3: a(f"L2_st{k}:")


def k2(a):
    ST = 253
    L = LANE
    PF = OPT["pf"]
    a("k2_kernel:")
    a(f"s_cmp_ge_u32 s2, {NB}\ns_cbranch_scc1 L2_exit2")
    if OPT.get("stamp"): a(f"v_mov_b32 v{ST}, 0")
    stamp(a, 0, ST)
    ldargs(a)
    a(f"""v_mov_b32 v{TID}, v0
    v_and_b32 v{L}, 63, v0
    v_lshrrev_b32 v2, 6, v0
    v_mov_b32 v{DEG}, 0
    v_readfirstlane_b32 s3, v2
    v_mov_b32 v{VONE}, 1
    s_and_b32 s{S_BK}, s2, 7
    s_lshl_b32 s{S_BK}, s{S_BK}, 5
    s_lshr_b32 s28, s2, 3
    s_add_u32 s{S_BK}, s{S_BK}, s28
    s_mul_i32 s{S_NEG}, s{S_BK}, {NPB}
    v_lshrrev_b32 v8, {LSH}, v0
    s_and_b32 s28, s{S_BK}, 3
    s_lshl_b32 s28, s28, 2
    v_lshl_add_u32 v9, v8, 4, s28
    s_lshr_b32 s96, s{S_BK}, 2
    s_mul_i32 s96, s96, {CH*16}
    s_add_u32 s96, s96, {OFF}
    s_mov_b32 s{S_BASE}, 0
    s_mov_b32 s{S_LIM}, {3*LPS}
    s_mov_b32 s{S_IMASK}, 15
    s_mov_b32 s{S_SLOW}, 0
    s_mov_b32 s{S_FIRST}, 1
    s_mov_b32 s{S_BETA}, 0
    s_and_b32 s{S_CG}, s3, 3
    s_lshr_b32 s{S_GRP}, s3, 2
    s_lshl_b32 s{S_STG}, s3, 13
    s_add_u32 s{S_STG}, s{S_STG}, {L_STG}
    v_lshlrev_b32 v{L16}, 4, v{L}
    s_waitcnt lgkmcnt(0)""")
    stamp(a, 11, ST)
    srd(a, 28, WS, "s96", CH*16)
    for i in range(4): a(f"buffer_load_dword v{OFR+i}, v9, s[28:31], 0 offen offset:{(8192 >> LSH)*i}")
    srd(a, 32, WS, REC, CH*CE*12); srd(a, 36, WS, None, AROWS, stride=512)
    NZ = (L_BT - L_CNT)//16
    a(f"L2_batch:\nv_lshlrev_b32 v104, 4, v{TID}")
    for j in range(4): a(f"v_mov_b32 v{96+j}, -1\nv_mov_b32 v{100+j}, 0")
    a(f"ds_write_b128 v104, v[96:99] offset:{L_IDX}")
    for i in range(6): a(f"ds_write_b128 v104, v[100:103] offset:{L_CNT + 8192*i}")
    a(f"""v_cmp_gt_u32 vcc, {NZ - 3072}, v{TID}
    v_mov_b32 v96, {L_NULL}
    v_mov_b32 v97, {L_NULL}
    s_and_b64 exec, exec, vcc
    ds_write_b128 v104, v[100:103] offset:{L_CNT + 8192*6}
    s_mov_b64 exec, -1
    v_cmp_gt_u32 vcc, 128, v{TID}
    v_mov_b32 v98, {L_NULL}
    v_mov_b32 v99, {L_NULL}
    s_and_b64 exec, exec, vcc
    ds_write_b128 v104, v[96:99] offset:{L_QA}
    s_mov_b64 exec, -1
    v_and_b32 v112, {LPS-1}, v{L}
    v_add_u32 v112, s{S_BASE}, v112
    s_add_u32 s96, s{S_BASE}, s{S_LIM}
    v_lshrrev_b32 v113, {LSH}, v{TID}
    v_mul_u32_u24 v113, {CE*12}, v113""")
    stamp(a, 12, ST)
    a("s_waitcnt vmcnt(0)")
    stamp(a, 1, ST)
    for i in range(4):
        a(f"""v_lshrrev_b32 v{104+i}, 16, v{OFR+i}
        s_bitcmp1_b32 s{S_IMASK}, {i}
        s_cselect_b32 s98, s96, 0
        v_min_u32 v{104+i}, s98, v{104+i}
        v_and_b32 v114, 0xffff, v{OFR+i}
        v_add_u32 v114, v114, v112
        v_mad_u32_u24 v{108+i}, v114, 12, v113""")
        if i < 3: a(f"v_add_u32 v113, {(512 >> LSH)*CE*12}, v113")
    for rnd in range(3):
        if rnd: a(f"v_add_u32 v112, {LPS}, v112")
        for i in range(4): a(f"v_cmp_lt_u32 {sr(MASK+2*(4*rnd+i),2)}, v112, v{104+i}")
        if rnd == 2:
            a(f"""s_or_b64 s[96:97], {sr(MASK+16,2)}, {sr(MASK+18,2)}
            s_or_b64 s[98:99], {sr(MASK+20,2)}, {sr(MASK+22,2)}
            s_or_b64 s[96:97], s[96:97], s[98:99]
            s_cselect_b32 s{S_R2}, 1, 0
            s_cbranch_scc0 L2_r11""")
        for i in range(4):
            k = 4*rnd + i
            a(f"""s_mov_b64 exec, {sr(MASK+2*k,2)}
            s_cbranch_execz L2_r{k}
            buffer_load_dwordx3 {vr(RECR+4*k,3)}, v{108+i}, s[32:35], 0 offen offset:{12*LPS*rnd}
            L2_r{k}:""")
        full(a)
    a(f"s_cmp_eq_u32 s{S_FIRST}, 0\ns_cbranch_scc1 L2_b2")
    a(f"""s_add_u32 s95, s{S_NEG}, {N}
    s_lshl_b32 s95, s95, 9
    s_mul_i32 s96, s3, {BTP}
    s_add_u32 m0, s96, {L_BT}
    s_lshl_b32 s94, s3, 10
    s_lshl_b32 s96, s{S_CG}, 10
    v_lshlrev_b32 v120, 3, v{L}""")
    srd(a, 40, WS, "s95", NPB*512); srd(a, 44, WS, STAT, 4096)
    for q in range(3):
        a(f"buffer_load_dwordx4 v{L16}, s[40:43], s94 offen lds")
        a(f"s_add_u32 m0, m0, {8*BTP}\ns_add_u32 s94, s94, 8192")
    a(f"""buffer_load_dwordx2 {vr(B2R[0]+2,2)}, v120, s[44:47], s96 offen
    buffer_load_dwordx2 {vr(B2R[1]+2,2)}, v120, s[44:47], s96 offen offset:512
    s_cmp_eq_u32 s3, 0
    s_cbranch_scc0 L2_b3
    buffer_load_dwordx4 v{L16}, s[40:43], s94 offen lds
    L2_b3:
    s_cmp_eq_u32 s3, 7
    s_cbranch_scc0 L2_b2""")
    srd(a, 44, WS, MAXA, 196*4); srd(a, 48, WS, MAXE, (CH*4+15)//16*16); srd(a, 52, WS, MAXW_G, 4)
    a(f"""v_mov_b32 v120, 0
    buffer_load_dwordx4 v[244:247], v{L16}, s[44:47], 0 offen
    buffer_load_dwordx4 v[248:251], v{L16}, s[48:51], 0 offen
    buffer_load_dword v171, v120, s[52:55], 0 offen
    L2_b2:
    s_waitcnt lgkmcnt(0)
    s_barrier
    s_cmp_eq_u32 s{S_FIRST}, 0
    s_cbranch_scc1 L2_rank0""")
    stamp(a, 3, ST)
    a(f"""v_lshrrev_b32 v96, 16, v{OFR}
    v_lshrrev_b32 v97, 16, v{OFR+1}
    v_lshrrev_b32 v98, 16, v{OFR+2}
    v_lshrrev_b32 v99, 16, v{OFR+3}
    v_max3_u32 v96, v96, v97, v98
    v_max_u32 v105, v96, v99""")
    n_, h_, one, t0, t1, t2, t3, t4, t5 = 96, 97, 98, 99, 100, 101, 102, 103, 104
    zs = [f"v_mov_b32 v{S0+j}, 0" for j in range(32)]
    for i, m in enumerate(SHR + [BC15, BC31]):
        a("\n".join(zs[2*i:2*i+2])); a(f"v_max_u32_dpp v105, v105, v105 {m}")
    a("\n".join(zs[12:]))
    a("v_mov_b32 v106, 0")
    lane63(a); a(f"ds_max_u32 v106, v105 offset:{L_MISC+4}"); full(a)
    a(f"""v_and_b32 v{n_}, 31, v{L}
    v_lshrrev_b32 v{h_}, 5, v{L}
    v_and_b32 v{t0}, 1, v{L}
    v_lshlrev_b32 v{t0}, 4, v{t0}
    v_mov_b32 v{one}, 0x3f80
    v_lshlrev_b32 v{one}, v{t0}, v{one}
    v_lshrrev_b32 v{t0}, 1, v{n_}
    v_lshlrev_b32 v{t1}, 2, v{h_}
    v_sub_u32 v{t0}, v{t0}, v{t1}
    v_lshlrev_b32 v175, 1, v{n_}""")
    for q in range(8):
        a(f"v_cmp_eq_u32 {sr(94+2*(q%3),2)}, {8*(q//4) + q%4}, v{t0}")
        if q >= 1: a(f"v_cndmask_b32 v{ID0+q-1}, 0, v{one}, {sr(94+2*((q-1)%3),2)}")
    a(f"""v_bfe_u32 v{t1}, v{n_}, 2, 1
    v_cndmask_b32 v{ID0+7}, 0, v{one}, {sr(94+2*(7%3),2)}
    v_lshrrev_b32 v{t2}, 4, v{n_}
    v_and_b32 v{t3}, 1, v{n_}
    v_xor_b32 v{t4}, v{t1}, v{h_}
    v_lshl_or_b32 v{t4}, v{t4}, 1, v{t3}
    v_cmp_eq_u32 s[94:95], 0, v{t4}
    v_cmp_eq_u32 s[96:97], 1, v{t4}
    v_lshlrev_b32 v{t4}, 4, v{t2}
    v_mov_b32 v{one}, 0xbf80
    v_lshlrev_b32 v{one}, v{t4}, v{one}
    v_cndmask_b32 v{A2[0]}, 0, v{one}, s[94:95]
    v_cndmask_b32 v{A2[0]+1}, 0, v{one}, s[96:97]
    v_cndmask_b32 v{A2[1]}, 0, v{one}, s[94:95]
    v_cndmask_b32 v{A2[1]+1}, 0, v{one}, s[96:97]
    v_lshlrev_b32 v{t1}, 4, v{t1}
    v_lshl_or_b32 v{t1}, v{t3}, 3, v{t1}
    v_lshl_or_b32 v{t1}, v{t2}, 2, v{t1}
    v_bfe_u32 v{t4}, v{n_}, 3, 1
    v_lshl_or_b32 v{t1}, v{t4}, 1, v{t1}
    v_bfe_u32 v{t5}, v{n_}, 1, 1
    v_or_b32 v{t1}, v{t1}, v{t5}
    v_bfe_u32 v{t3}, v{t1}, 1, 3
    v_xor_b32 v{t3}, v{t3}, v{h_}
    v_lshlrev_b32 v{t3}, 4, v{t3}
    v_lshl_add_u32 v{t3}, v{t1}, 7, v{t3}
    v_add_u32 v{RA}, s{S_STG}, v{t3}
    v_lshlrev_b32 v{ESIG}, 3, v{t1}
    v_lshl_add_u32 v{ESIG}, v{h_}, 2, v{ESIG}""")
    for s in range(1, 4): a(f"v_xor_b32 v{RA+s}, {32*s}, v{RA}")
    a(f"""v_lshrrev_b32 v{t2}, 4, v{L}
    v_and_b32 v{t3}, 7, v{L}
    v_xor_b32 v{t2}, v{t2}, v{t3}
    s_lshl_b32 s96, s{S_CG}, 7
    v_lshl_add_u32 v{IP+1}, v{t2}, 4, s96
    v_xor_b32 v{IP+3}, 64, v{IP+1}
    v_mov_b32 v{IP+5}, v{IP+1}
    v_mov_b32 v{IP+7}, v{IP+3}
    v_bfe_u32 v{t1}, v{L}, 4, 1
    v_lshlrev_b32 v{t1}, 5, v{t1}
    v_and_b32 v{t3}, 3, v{L}
    v_lshl_add_u32 v{t1}, v{t3}, 3, v{t1}
    v_add_u32 v{QST}, s96, v{t1}
    v_bfe_u32 v{t1}, v{L}, 2, 2
    v_lshl_add_u32 v{QOFF}, v{h_}, 2, v{t1}
    v_lshlrev_b32 v{QOFF}, 2, v{QOFF}
    s_waitcnt vmcnt(8)
    s_cmp_eq_u32 s3, 7
    s_cbranch_scc1 L2_rank2
    s_waitcnt vmcnt(6)
    s_cmp_eq_u32 s3, 0
    s_cbranch_scc1 L2_rank2
    s_waitcnt vmcnt(5)
    s_branch L2_rank2
    L2_rank0:
    s_waitcnt vmcnt(0)
    L2_rank2:""")
    stamp(a, 5, ST)
    RK = 96
    for k in range(12):
        if k == 8: a(f"s_cmp_eq_u32 s{S_R2}, 0\ns_cbranch_scc1 L2_k12")
        a(f"""s_mov_b64 exec, {sr(MASK+2*k,2)}
        v_lshrrev_b32 v{RK+k}, 14, v{RECR+4*k+2}
        ds_add_rtn_u32 v{RECR+4*k+3}, v{RK+k}, v{VONE} offset:{L_CNT}""")
    a(f"""L2_k12:
    s_mov_b64 exec, -1
    v_mov_b32 v63, 0
    s_cmp_eq_u32 s{S_FIRST}, 0
    s_cbranch_scc1 L2_k13
    s_cmp_eq_u32 s3, 7
    s_cbranch_scc0 L2_k14
    s_waitcnt vmcnt(0)
    v_max3_u32 v244, v244, v245, v246
    v_max3_u32 v248, v248, v249, v250
    v_max_u32 v244, v244, v247
    v_max_u32 v248, v248, v251""")
    dpp_red(a, "v_max_u32", [244, 248])
    a(f"""v_mul_f32 v171, v171, v248
    v_sqrt_f32 v171, v171
    v_mov_b32 v54, 0x41f00000
    v_fma_f32 v171, v244, 2.0, v171
    v_mov_b32 v55, 0x41780000
    v_cmp_nlt_f32 vcc, v171, v54
    v_cmp_nlt_f32 s[94:95], v171, v55
    v_cndmask_b32 v54, 0, v{VONE}, vcc
    v_cndmask_b32 v55, 0, v{VONE}, s[94:95]
    v_add_u32 v171, v54, v55""")
    lane63(a); a(f"ds_write_b32 v63, v171 offset:{L_MISC}"); full(a)
    a("L2_k14:")
    if PF:
        srd(a, 44, WS, None, N*512)
        a(f"""s_lshr_b32 s96, s2, 3
        s_lshl_b32 s96, s96, 3
        s_add_u32 s96, s96, s3
        s_mul_i32 s96, s96, {PF*8192}
        v_lshlrev_b32 v48, 7, v{L}""")
        for q in range(PF):
            a(f"buffer_load_dword v255, v48, s[44:47], s96 offen")
            if q < PF-1: a("s_add_u32 s96, s96, 8192")
    CL, CU, C_, PC, O1, O2, R3 = 48, 49, 50, 51, 52, 53, 54
    I1, I2, I3 = 56, 57, 58
    TL, TH = 108, 112
    HM = (0xffffffff << SPLIT) & 0xffffffff
    a(f"""L2_k13:
    s_waitcnt lgkmcnt(0)
    s_barrier
    ds_read_b32 v{CL}, v{L16} offset:{L_CNT}
    ds_read_b32 v{CU}, v{L16} offset:{L_CNT+1024}
    ds_read_b64 v[60:61], v63 offset:{L_MISC}
    s_waitcnt lgkmcnt(1)
    v_add_u32 v{C_}, v{CL}, v{CU}
    v_and_b32 v{O1}, -8, v{CL}
    v_add_u32 v{PC}, 3, v{C_}
    v_mov_b32 v{I1}, v{O1}
    v_and_b32 v{PC}, -4, v{PC}
    v_sub_u32 v{R3}, v{PC}, v{O1}
    v_and_b32 v{O2}, -8, v{R3}
    v_and_b32 v{R3}, 4, v{R3}
    v_mov_b32 v{I2}, v{O2}
    v_mov_b32 v{I3}, v{R3}""")
    dpp_red(a, "v_add_u32", [I1, I2, I3])
    a(f"""v_readlane_b32 s94, v{I1}, 63
    v_readlane_b32 s95, v{I2}, 63
    v_readlane_b32 s96, v{I3}, 63
    v_readlane_b32 s97, v{I1}, {SPLIT-1}
    v_readlane_b32 s98, v{I2}, {SPLIT-1}
    v_readlane_b32 s99, v{I3}, {SPLIT-1}
    v_readlane_b32 s28, v{I1}, 31
    v_sub_u32 v{I1}, v{I1}, v{O1}
    v_sub_u32 v{I2}, v{I2}, v{O2}
    v_sub_u32 v{I3}, v{I3}, v{R3}
    s_cmp_eq_u32 s{S_FIRST}, 0
    s_cbranch_scc1 L2_s1
    s_waitcnt lgkmcnt(0)
    v_readfirstlane_b32 s{S_MAXC}, v61
    v_readfirstlane_b32 s{S_SAFE}, v60
    s_mov_b32 s{S_FIRST}, 0
    L2_s1:
    s_sub_u32 s94, s94, s97
    s_sub_u32 s95, s95, s98
    s_sub_u32 s96, s96, s99
    s_add_u32 s29, s97, s98
    s_add_u32 s30, s29, s99
    s_add_u32 s30, s30, 7
    s_and_b32 s30, s30, -8
    s_sub_u32 s31, s30, s97
    s_add_u32 s28, s28, s31
    s_add_u32 s40, s30, s94
    s_add_u32 s41, s40, s95
    s_add_u32 s42, s41, s96
    s_add_u32 s{S_CUT}, s42, 63
    s_lshr_b32 s{S_CUT}, s{S_CUT}, 6
    s_add_u32 s43, s30, 31
    s_lshr_b32 s43, s43, 5
    s_max_u32 s{S_CUT}, s{S_CUT}, s43
    s_add_u32 s43, s28, 31
    s_lshr_b32 s43, s43, 5
    s_min_u32 s{S_CUT}, s{S_CUT}, s43
    s_lshl_b32 s43, s{S_CUT}, 5
    s_max_u32 s43, s43, s28
    s_sub_u32 s43, s43, s28
    s_add_u32 s40, s40, s43
    s_add_u32 s41, s41, s43
    s_add_u32 s42, s42, s43
    s_sub_u32 s40, s40, s98
    s_sub_u32 s52, s41, s99
    s_mov_b32 exec_lo, {HM ^ 0xffffffff}
    s_mov_b32 exec_hi, 0
    v_add_u32 v{I2}, s97, v{I2}
    v_add_u32 v{I3}, s29, v{I3}
    s_mov_b32 exec_lo, {HM}
    s_mov_b32 exec_hi, -1
    v_add_u32 v{I1}, s31, v{I1}
    v_add_u32 v{I2}, s40, v{I2}
    v_add_u32 v{I3}, s52, v{I3}
    s_mov_b32 exec_lo, 0
    v_add_u32 v{I1}, s43, v{I1}
    s_mov_b64 exec, -1
    v_add_u32 v{O2}, v{O1}, v{O2}
    v_sub_u32 v{I2}, v{I2}, v{O1}
    v_sub_u32 v{I3}, v{I3}, v{O2}
    v_lshl_or_b32 v{TL}, v{I1}, 16, v{O1}
    v_lshl_or_b32 v{TL+1}, v{I2}, 16, v{O2}
    v_mov_b32 v{TL+2}, v{I3}
    v_mov_b32 v{TH}, 0
    v_max_u32 v55, v{O2}, v{CL}
    v_sub_u32 v55, v55, v{CL}
    v_add_u32 v{TH+1}, v{I2}, v{CL}
    v_lshl_or_b32 v{TH+1}, v{TH+1}, 16, v55
    v_add_u32 v{TH+2}, v{I3}, v{CL}
    ds_write_b96 v{L16}, {vr(TL,3)} offset:{L_TBL}
    ds_write_b96 v{L16}, {vr(TH,3)} offset:{L_TBL+1024}
    s_add_u32 s96, s42, 31
    s_lshr_b32 s96, s96, 5
    s_cmp_lg_u32 s{S_SLOW}, 0
    s_cbranch_scc1 L2_s2
    s_cmp_gt_u32 s96, {CAPT}
    s_cselect_b32 s97, 1, 0
    s_cmp_gt_u32 s{S_MAXC}, {3*LPS}
    s_cselect_b32 s97, 1, s97
    s_cmp_eq_u32 s97, 0
    s_cbranch_scc1 L2_s2
    s_mov_b32 s{S_SLOW}, 1
    s_mov_b32 s{S_LIM}, {LPS}
    s_mov_b32 s{S_IMASK}, 3
    s_waitcnt lgkmcnt(0)
    s_barrier
    s_branch L2_batch
    L2_s2:""")
    stamp(a, 6, ST)
    TB = W2R
    for k in range(8): a(f"s_mov_b64 exec, {sr(MASK+2*k,2)}\nds_read_b96 {vr(TB+4*k,3)}, v{RK+k} offset:{L_TBL}")
    a(f"""s_mov_b64 exec, -1
    v_add_u32 v{DEG}, v{DEG}, v{C_}
    s_lshr_b32 s29, s29, 6
    s_lshl_b32 s29, s29, 1
    s_lshr_b32 s41, s41, 5
    s_max_u32 s41, s41, s{S_CUT}
    s_sub_u32 s41, s41, s{S_CUT}
    s_and_b32 s41, s41, -2
    s_cmp_eq_u32 s{S_SAFE}, 0
    s_cselect_b32 s29, s29, 0
    s_cselect_b32 s41, s41, 0
    s_add_u32 s30, s29, 3
    s_lshr_b32 s30, s30, 2
    s_sub_u32 s31, s{S_CUT}, s29
    s_add_u32 s31, s31, 1
    s_lshr_b32 s31, s31, 1
    s_add_u32 s31, s31, s30
    s_add_u32 s40, s41, 3
    s_lshr_b32 s40, s40, 2
    s_add_u32 s40, s40, s31
    s_min_u32 s98, s{S_CUT}, s96
    s_sub_u32 s99, s96, s98
    s_cmp_eq_u32 s{S_GRP}, 0
    s_cselect_b32 s{S_N}, s98, s99
    s_cselect_b32 s{S_T0}, 0, s{S_CUT}
    s_cselect_b32 s{S_NO}, s29, s41
    s_cselect_b32 s53, 0, s31
    s_add_u32 s41, s41, s{S_CUT}
    s_lshl_b32 s30, s30, 1
    s_sub_u32 s30, s30, s29
    s_lshl_b32 s31, s31, 2
    s_sub_u32 s31, s31, s{S_CUT}
    s_lshl_b32 s40, s40, 1
    s_sub_u32 s40, s40, s41
    v_cmp_eq_u32 vcc, 0, v{R3}
    s_cmp_ge_u32 s3, 3
    s_cbranch_scc1 L2_pad
    v_add_u32 v55, s3, v{C_}
    v_cndmask_b32 v59, v{I3}, v{I2}, vcc
    v_cmp_lt_u32 vcc, v55, v{PC}
    s_add_u32 s96, s{S_NEG}, {N}
    s_and_b64 exec, exec, vcc
    v_add_u32 v60, s96, v{L}
    v_add_lshl_u32 v55, v55, v59, 2
    ds_write_b32 v55, v60 offset:{L_IDX}
    s_mov_b64 exec, -1
    L2_pad:""")
    for r in (PC, O1, O2, I1, I2, I3): a(f"v_lshrrev_b32 v{r}, 2, v{r}")
    QA_, ONE, NC1, Q, T, U, V = 48, 49, 50, 54, 55, 59, 60
    a(f"""v_lshrrev_b32 v{QA_}, 1, v{L}
    v_mul_u32_u24 v{QA_}, {BTP}, v{QA_}
    v_and_b32 v{ONE}, 1, v{L}
    v_lshl_add_u32 v{QA_}, v{ONE}, 9, v{QA_}
    v_add_u32 v{QA_}, {L_BT}, v{QA_}
    v_mov_b32 v{ONE}, 0x3f80
    v_subrev_u32 v{NC1}, {17*16}, v{L16}
    v_mov_b32 v61, s30
    v_mov_b32 v62, s40
    s_mov_b32 s97, s3
    L2_q:
    v_cmp_lt_u32 s[94:95], s97, v{O2}
    v_cmp_lt_u32 s[98:99], s97, v{O1}
    v_cmp_lt_u32 vcc, s97, v{PC}
    v_cndmask_b32 v{Q}, v{I3}, v{I2}, s[94:95]
    s_and_b64 exec, exec, vcc
    s_cbranch_execz L2_qd
    v_cndmask_b32 v{Q}, v{Q}, v{I1}, s[98:99]
    v_add_u32 v{Q}, s97, v{Q}
    v_lshrrev_b32 v{T}, 3, v{Q}
    v_lshlrev_b32 v{U}, 2, v{Q}
    ds_write_b32 v{U}, v{QA_} offset:{L_QA}
    v_cmp_le_u32 vcc, s{S_CUT}, v{T}
    v_cmp_gt_u32 s[94:95], s29, v{T}
    v_cmp_gt_u32 s[98:99], s41, v{T}
    v_and_b32 v{V}, 4, v{Q}
    v_cndmask_b32 v{U}, v{L16}, v{NC1}, vcc
    v_lshl_add_u32 v{U}, v{V}, 7, v{U}
    v_and_b32 v{V}, 2, v{Q}
    v_add_u32 v{U}, v{U}, v{V}
    s_and_b64 s[98:99], s[98:99], vcc
    s_or_b64 s[94:95], s[94:95], s[98:99]
    v_cndmask_b32 v{V}, v61, v62, vcc
    v_add_u32 v{V}, v{V}, v{T}
    v_and_b32 v{Q}, 1, v{Q}
    v_lshl_or_b32 v{Q}, v{V}, 1, v{Q}
    v_mov_b32 v{V}, s31
    v_cndmask_b32 v{V}, 0, v{V}, vcc
    v_add_u32 v{V}, v{V}, v{T}
    v_cndmask_b32 v{Q}, v{Q}, v{V}, s[94:95]
    v_and_b32 v{V}, -4, v{Q}
    v_lshl_add_u32 v{U}, v{V}, 8, v{U}
    v_and_b32 v{V}, 3, v{Q}
    v_lshl_add_u32 v{U}, v{V}, 2, v{U}
    ds_write_b16 v{U}, v{ONE} offset:{L_P}
    s_add_u32 s97, s97, 8
    s_branch L2_q
    L2_qd:
    s_mov_b64 exec, -1
    s_waitcnt lgkmcnt(0)""")
    for k in range(12):
        kk = k % 8
        r, m, tb = RECR+4*k+3, RECR+4*k+2, TB+4*kk
        if k == 8:
            a(f"s_cmp_eq_u32 s{S_R2}, 0\ns_cbranch_scc1 L2_c12")
            for k2 in range(8, 12):
                a(f"""s_mov_b64 exec, {sr(MASK+2*k2,2)}
                v_lshrrev_b32 v{RK+k2-8}, 14, v{RECR+4*k2+2}
                ds_read_b96 {vr(TB+4*(k2-8),3)}, v{RK+k2-8} offset:{L_TBL}""")
            a("s_mov_b64 exec, -1\ns_waitcnt lgkmcnt(0)")
        a(f"""v_cmp_ge_u32_sdwa vcc, v{r}, v{tb+1} src0_sel:DWORD src1_sel:WORD_0
        s_mov_b64 exec, {sr(MASK+2*k,2)}
        v_and_b32 v{m}, {OPT.get('imask', 0x3fff)}, v{m}
        v_cndmask_b32_sdwa v{tb+2}, v{tb+1}, v{tb+2}, vcc dst_sel:DWORD dst_unused:UNUSED_PAD src0_sel:WORD_1 src1_sel:DWORD
        v_cmp_ge_u32_sdwa vcc, v{r}, v{tb} src0_sel:DWORD src1_sel:WORD_0
        v_cndmask_b32_sdwa v{tb+2}, v{tb}, v{tb+2}, vcc dst_sel:DWORD dst_unused:UNUSED_PAD src0_sel:WORD_1 src1_sel:DWORD
        v_add_lshl_u32 v{tb+2}, v{tb+2}, v{r}, 2
        v_lshlrev_b32 v{tb}, 1, v{tb+2}
        ds_write_b32 v{tb+2}, v{m} offset:{L_IDX}
        ds_write_b64 v{tb}, {vr(RECR+4*k,2)} offset:{L_EA}
        s_mov_b64 exec, -1""")
    a(f"""L2_c12:
    s_mov_b64 exec, -1
    s_lshl_b32 s96, s{S_T0}, 7
    s_add_u32 s96, s96, {L_IDX-256}
    v_lshrrev_b32 v54, 3, v{L}
    v_lshl_add_u32 v{IB}, v54, 2, s96
    s_lshl_b32 s96, s{S_T0}, 8
    s_add_u32 s96, s96, {L_EA-512}
    v_add_u32 v{EB}, s96, v{ESIG}
    s_lshl_b32 s96, s{S_T0}, 5
    s_add_u32 s96, s96, {L_QA-64}
    v_add_u32 v{QB}, s96, v{QOFF}
    s_lshl_b32 s96, s53, 10
    s_add_u32 s96, s96, {L_P-1024}
    v_add_u32 v{PB}, s96, v{L16}""")
    for j in range(8): a(f"v_mov_b32 v{HQ0+j}, 0")
    for j in range(4): a(f"v_mov_b32 v{PP+j}, 0")
    srd(a, 44, WS, W2OP, 65536); srd(a, 48, B2, None, 256)
    a(f"""s_mov_b32 s38, {AROWS}
    s_mov_b32 s{S_N0}, s{S_N}
    s_waitcnt vmcnt({PF}) lgkmcnt(0)
    s_barrier
    s_cmp_eq_u32 s{S_N}, 0
    s_cbranch_scc1 L2_done""")
    stamp(a, 7, ST)
    rd_idx(a, 2); a("s_waitcnt lgkmcnt(0)"); dma(a, 0)
    rd_idx(a, 3); a("s_waitcnt lgkmcnt(0)"); dma(a, 1)
    rd_idx(a, 4)
    a(f"""ds_read_b32 v{QV[0]}, v{QB} offset:64
    ds_read_b32 v{QV[1]}, v{QB} offset:96
    ds_read2st64_b32 {vr(A2[0]+2,2)}, v{EB} offset0:2 offset1:2
    s_waitcnt lgkmcnt(0)
    v_add_u32 v{QV[0]}, v{QV[0]}, v{QST}
    v_add_u32 v{QV[1]}, v{QV[1]}, v{QST}
    s_waitcnt vmcnt(4)""")
    rd_rows(a, 0)
    a(f"ds_read_b64_tr_b16 {vr(B2R[0],2)}, v{QV[0]}\ns_waitcnt lgkmcnt(0)")
    a(mfma(D0, ALO, ID0, None)); a(mfma(D0, ALO+4, ID1, D0)); a(mfma(D0, A2[0], B2R[0], D0))
    dma(a, 0); rd_idx(a, 5)
    group(a, 1, tail=False)
    stamp(a, 8, ST)
    if OPT.get("stamp"): a(f"v_writelane_b32 v{ST}, s{S_N}, 30")
    a(f"s_cmp_eq_u32 s{S_SAFE}, 2\ns_cbranch_scc1 L2_loopS\ns_cmp_eq_u32 s{S_NO}, 0\ns_cbranch_scc1 L2_loopF")
    main_loops(a)
    a(f"""L2_end_odd:
    ds_read_b128 {vr(PP,4)}, v{PB}
    s_waitcnt lgkmcnt(0)""")
    a(mfma(S0, HQ0, PP, S0))
    a("L2_end_even:")
    a(mfma(S1, HQ1, PP, S1))
    a(f"""L2_done:
    s_waitcnt vmcnt(0)
    s_cmp_eq_u32 s{S_SLOW}, 0
    s_cbranch_scc1 L2_epi
    s_add_u32 s{S_BETA}, s{S_BETA}, 1
    s_lshr_b32 s{S_BASE}, s{S_BETA}, 1
    s_lshl_b32 s{S_BASE}, s{S_BASE}, {LSH}
    s_xor_b32 s{S_IMASK}, s{S_IMASK}, 15
    s_cmp_ge_u32 s{S_BASE}, s{S_MAXC}
    s_cbranch_scc1 L2_epi
    s_barrier
    s_branch L2_batch""")
    a(f"L2_epi:\ns_cmp_gt_u32 s{S_N0}, 4\ns_cbranch_scc1 L2_epi1")
    for k in range(4): w2chunk(a, k)
    a("s_waitcnt vmcnt(0)\nL2_epi1:")
    stamp(a, 9, ST)
    a(f"""v_and_b32 v2, 31, v{L}
    v_lshrrev_b32 v3, 5, v{L}
    s_mov_b32 s94, {NLN2}
    s_mov_b32 s95, {NLN2}
    v_bfe_u32 v5, v2, 1, 3
    v_lshlrev_b32 v5, 4, v5
    v_lshl_add_u32 v5, v2, 7, v5
    v_lshl_add_u32 v6, v3, 3, v5
    v_add_u32 v6, s{S_STG}, v6""")
    for u in range(8):
        a(f"""v_pk_mul_f32 {vr(S0+4*u,2)}, {vr(S0+4*u,2)}, s[94:95]
        v_pk_mul_f32 {vr(S0+4*u+2,2)}, {vr(S0+4*u+2,2)}, s[94:95]
        v_xor_b32 v{32+u}, {16*u}, v6
        v_cvt_pk_bf16_f32 v{16+2*u}, v{S0+4*u}, v{S0+4*u+1}
        v_cvt_pk_bf16_f32 v{17+2*u}, v{S0+4*u+2}, v{S0+4*u+3}
        ds_write_b64 v{32+u}, {vr(16+2*u,2)}""")
    a(f"""s_cmp_lg_u32 s3, 0
    s_cbranch_scc1 L2_e1
    v_cvt_f32_u32 v8, v{DEG}
    v_lshlrev_b32 v9, 2, v{L}
    s_mov_b32 exec_hi, 0
    ds_write_b32 v9, v8 offset:{L_DEG}
    s_mov_b32 exec_lo, 0xfffe0000
    s_mov_b32 exec_hi, 0x1ffff
    ds_write_b32 v9, v8 offset:{L_DEG+128-68}
    s_mov_b64 exec, -1
    L2_e1:
    v_lshlrev_b32 v7, 4, v3
    v_xor_b32 v5, v5, v7
    s_lshl_b32 s97, s{S_GRP}, 15
    s_add_u32 s97, s97, {L_STG}
    v_add_u32 v241, s97, v5
    v_xor_b32 v242, 32, v241
    v_xor_b32 v243, 64, v241
    v_xor_b32 v244, 96, v241
    s_lshl_b32 s97, s{S_GRP}, 7
    v_lshl_add_u32 v245, v3, 4, s97
    s_lshl_b32 s96, s{S_CG}, 7
    s_add_u32 s96, s96, {L_P-512}
    v_lshlrev_b32 v246, 11, v3
    v_lshl_add_u32 v246, v2, 2, v246
    v_add_u32 v246, s96, v246
    s_mul_i32 s96, s{S_GRP}, {17*256}
    s_lshl_b32 s97, s{S_CG}, 6
    s_add_u32 s96, s96, s97
    v_lshlrev_b32 v247, 10, v3
    v_lshl_add_u32 v247, v2, 1, v247
    v_add_u32 v247, s96, v247
    v_lshlrev_b32 v240, 16, v{B2V}
    s_sub_u32 s96, {N}, s{S_NEG}
    s_min_u32 s96, s96, {NPB}
    s_lshl_b32 s96, s96, 8
    s_lshl_b32 s97, s{S_NEG}, 8""")
    srd(a, 52, OUT, "s97", "s96")
    a("""s_mov_b32 s97, 4096
    s_waitcnt lgkmcnt(0)
    s_barrier""")
    for s in range(16): a(f"ds_read_b128 {vr(4*s,4)}, v{241+s%4} offset:{8192*(s//4)}")
    for jq in range(4): a(f"ds_read_b128 {vr(96+4*jq,4)}, v245 offset:{L_DEG+32*jq}")
    stamp(a, 10, ST)
    O = 64
    for s in range(16):
        a(f"s_waitcnt lgkmcnt({min(15, 19-s)})")
        a(mfma(O, 4*s, W2R+4*s, None if s == 0 else O))
    a(f"s_cmp_eq_u32 s{S_GRP}, 0\ns_cbranch_scc1 L2_e2")
    for j in range(8): a(f"ds_write_b32 v246, v{O+j} offset:{(8*(j//4)+j%4+1)*512}")
    a("""L2_e2:
    s_waitcnt lgkmcnt(0)
    s_barrier""")
    a(f"s_cmp_lg_u32 s{S_GRP}, 0\ns_cbranch_scc1 L2_e3")
    for j in range(8, 16): a(f"ds_read_b32 v{j}, v246 offset:{(8*(j//4)+j%4-16)*512}")
    a(f"""s_waitcnt lgkmcnt(0)
    s_mov_b32 exec_lo, 0
    v_add_f32 v{O+8}, v{O+8}, v8
    s_mov_b64 exec, -1""")
    for j in range(9, 16): a(f"v_add_f32 v{O+j}, v{O+j}, v{j}")
    a("L2_e3:")
    for j in range(16): a(f"v_fmac_f32 v{O+j}, v{96+j}, v240")
    for j in range(0, 16, 2): a(f"v_cvt_pk_bf16_f32 v{16+j//2}, v{O+j}, v{O+j+1}")
    def st(j):
        off = (8*(j//4) + j % 4)*256
        so = "0" if off < 4096 else "s97"
        return f"buffer_store_short{'_d16_hi' if j & 1 else ''} v{16+j//2}, v247, s[52:55], {so} offen offset:{off % 4096}"
    a(f"s_cmp_eq_u32 s{S_GRP}, 0\ns_cbranch_scc1 L2_e4\ns_mov_b32 exec_lo, 0")
    a(st(7)); a("s_mov_b64 exec, -1\ns_branch L2_e5\nL2_e4:")
    for j in range(8): a(st(j))
    a("L2_e5:")
    for j in range(8, 16): a(st(j))
    stamp_dump(a, ST, 0, 1)
    a("L2_exit2:\ns_endpgm")


HEAD = """; edge-featured MPNN: K1 = edge partition by dst bucket + node tables + operand prep ; K2 = gather / silu / segment-sum / final GEMM
; @launch kernel=k1_kernel grid=({g1},1,1) block=(512,1,1) lds={l1}
; @launch kernel=k2_kernel grid=({g2},1,1) block=(512,1,1) lds={l2}
.amdgcn_target "amdgcn-amd-amdhsa--gfx950"
.text
"""
KD = """.amdhsa_kernel {name}
  .amdhsa_next_free_vgpr {v}
  .amdhsa_next_free_sgpr 102
  .amdhsa_accum_offset {v}
  .amdhsa_group_segment_fixed_size 0
  .amdhsa_kernarg_size 88
  .amdhsa_user_sgpr_count 2
  .amdhsa_user_sgpr_kernarg_segment_ptr 1
  .amdhsa_system_sgpr_workgroup_id_x 1
.end_amdhsa_kernel
"""


def build():
    out = HEAD.format(g1=K1_GRID, l1=K1_LDS, g2=NB, l2=K2_LDS)
    for name, fn in (("k1_kernel", k1), ("k2_kernel", k2)):
        a = Asm(); fn(a)
        out += f".globl {name}\n.p2align 8\n.type {name},@function\n" + a.text(verbose=OPT.get("v", 0))
    out += '.section .rodata,"a"\n.p2align 6\n' + KD.format(name="k1_kernel", v=128) + ".p2align 6\n" + KD.format(name="k2_kernel", v=256)
    return out


if __name__ == "__main__":
    open(sys.argv[1], "w").write(build())
```

```python
import sys, struct
from asmlib import Asm, vr, sr

OPT = dict(prio=1, prio_at=32, pf=1, ept=4)
for a_ in sys.argv[2:]:
    k_, v_ = a_.split("="); OPT[k_] = int(v_)

N, E = 12500, 400000
NPB, NB = 49, 256
EPT = OPT["ept"]
CE = 400*EPT; CH = E//CE
LPS = 2*EPT
LSH = {8: 3, 16: 4}[LPS]
SPLIT, HALF = OPT.get('split', 23), 6250
AROWS = 25088
REC = 13 << 20
OFF = 19 << 20
W2OP = 20 << 20
STAT = W2OP + 65536
MAXA = STAT + 4096
MAXE = MAXA + 1024
MAXW_G = MAXE + 1024
STAMPS = 24 << 20
NG = 208
K1_GRID = NG + 1 + CH
K1_LDS = 65536 + 64

def f2u(x): return struct.unpack("<I", struct.pack("<f", x))[0]
NLOG2E = f2u(-1.4426950408889634)
PLOG2E = NLOG2E ^ 0x80000000
NLN2 = f2u(-0.6931471805599453)
X, EA_, SRC, DST, W1, B1, W2, B2, OUT, DBG, WS = 4, 6, 8, 10, 12, 14, 16, 18, 20, 22, 24
SHR = ["row_shr:%d row_mask:0xf bank_mask:0xf bound_ctrl:0" % i for i in (1, 2, 4, 8)]
BC15, BC31 = "row_bcast:15 row_mask:0xa bank_mask:0xf", "row_bcast:31 row_mask:0xc bank_mask:0xf"


def srd(a, d, base, add, size, stride=0):
    if add is None:
        a(f"s_mov_b32 s{d}, s{base}\ns_mov_b32 s{d+1}, s{base+1}")
    else:
        a(f"s_add_u32 s{d}, s{base}, {add}\ns_addc_u32 s{d+1}, s{base+1}, 0")
    if stride: a(f"s_or_b32 s{d+1}, s{d+1}, {stride << 16}")
    a(f"s_mov_b32 s{d+2}, {size}\ns_mov_b32 s{d+3}, 0x00020000")


def ldargs(a):
    a("""s_load_dwordx16 s[4:19], s[0:1], 0
    s_load_dwordx4 s[20:23], s[0:1], 64
    s_load_dwordx2 s[24:25], s[0:1], 80""")


def dpp_red(a, op, vs, full=True):
    if isinstance(vs, int): vs = [vs]
    for m in SHR + [BC15] + ([BC31] if full else []):
        for v in vs: a(f"{op}_dpp v{v}, v{v}, v{v} {m}")


def stamp(a, k, reg):
    if not OPT.get("stamp"): return
    a(f"s_memrealtime s[100:101]\ns_waitcnt lgkmcnt(0)\nv_writelane_b32 v{reg}, s100, {k}")
    if k in (0, 7, 8, 9, 31): a(f"s_memtime s[100:101]\ns_waitcnt lgkmcnt(0)\nv_writelane_b32 v{reg}, s100, {32+k}")


def stamp_dump(a, reg, tmp, kern):
    if not OPT.get("stamp"): return
    a("s_mov_b64 exec, -1\ns_waitcnt vmcnt(0)")
    stamp(a, 31, reg)
    a(f"""s_lshl_b32 s96, s2, 3
    s_add_u32 s96, s96, s3
    s_lshl_b32 s96, s96, 8
    s_add_u32 s96, s96, {STAMPS + kern*(1 << 20)}""")
    srd(a, 44, WS, "s96", 256)
    a(f"""v_mbcnt_lo_u32_b32 v{tmp}, -1, 0
    v_mbcnt_hi_u32_b32 v{tmp}, -1, v{tmp}
    v_lshlrev_b32 v{tmp}, 2, v{tmp}
    buffer_store_dword v{reg}, v{tmp}, s[44:47], 0 offen""")


def lane63(a): a("s_mov_b32 exec_lo, 0\ns_mov_b32 exec_hi, 0x80000000")
def full(a): a("s_mov_b64 exec, -1")
def mfma(D, A, B, C): return f"v_mfma_f32_32x32x16_bf16 {vr(D,16)}, {vr(A,4)}, {vr(B,4)}, " + ("0" if C is None else vr(C, 16))


def k1(a):
    ST = 126
    a("k1_kernel:")
    a(f"s_cmp_ge_u32 s2, {K1_GRID}\ns_cbranch_scc1 L1_exit2")
    if OPT.get("stamp"): a(f"v_mov_b32 v{ST}, 0")
    stamp(a, 0, ST)
    ldargs(a)
    a(f"""v_and_b32 v1, 63, v0
    v_lshrrev_b32 v2, 6, v0
    s_nop 0
    v_readfirstlane_b32 s3, v2
    s_cmp_le_u32 s2, {NG}
    s_cbranch_scc1 L1_gemm
    s_sub_u32 s56, s2, {NG+1}""")
    G = EPT//4
    HIST, START, MAXW = 40960, 41984, 43008
    DV, SV, EV, AV, RV = 4, 12, 24, 40, 48
    a(f"""v_lshlrev_b32 v2, 2, v0
    v_mov_b32 v3, 0
    ds_write_b32 v2, v3 offset:{HIST}
    ds_write_b32 v2, v3 offset:{MAXW}
    v_mov_b32 v60, 0
    v_mov_b32 v61, 1
    s_mul_i32 s26, s56, {CE*4}
    s_add_u32 s27, s26, 6400
    s_mov_b32 s58, s26
    s_mov_b32 s59, s27
    s_lshl_b32 s52, s26, 1
    s_lshl_b32 s53, s27, 1
    v_lshlrev_b32 v3, 4, v0
    v_lshlrev_b32 v20, 5, v0
    v_cmp_gt_u32 vcc, 400, v0
    s_waitcnt lgkmcnt(0)""")
    stamp(a, 5, ST)
    srd(a, 28, DST, None, E*4); srd(a, 32, SRC, None, E*4); srd(a, 36, EA_, None, E*8)
    a("""s_and_saveexec_b64 s[54:55], vcc
    s_mov_b64 s[54:55], exec
    s_cbranch_execz L1_p1""")
    for g in range(G): a(f"buffer_load_dwordx4 {vr(DV+4*g,4)}, v3, s[28:31], s{26+g} offen nt")
    def late_loads():
        for g in range(G): a(f"buffer_load_dwordx4 {vr(SV+4*g,4)}, v3, s[32:35], s{58+g} offen nt")
        for g in range(G):
            a(f"buffer_load_dwordx4 {vr(EV+8*g,4)}, v20, s[36:39], s{52+g} offen nt")
            a(f"buffer_load_dwordx4 {vr(EV+8*g+4,4)}, v20, s[36:39], s{52+g} offen offset:16 nt")
    if not OPT.get("late", 1): late_loads()
    a(f"""L1_p1:
    s_mov_b64 exec, -1
    s_mul_i32 s26, s56, {CE*12}
    s_add_u32 s26, s26, {REC}""")
    srd(a, 40, WS, "s26", CE*12); srd(a, 44, WS, OFF, CH*1024); srd(a, 48, WS, MAXE, CH*4)
    a(f"""s_setprio 2
    s_barrier
    s_mov_b64 exec, s[54:55]
    s_cbranch_execz L1_p2
    s_waitcnt vmcnt({0 if OPT.get("late", 1) else 3*G})""")
    if OPT.get("late", 1): late_loads()
    stamp(a, 1, ST)
    for k in range(EPT):
        a(f"""v_mul_u32_u24 v21, 10700, v{DV+k}
        v_lshrrev_b32 v21, 19, v21
        v_lshlrev_b32 v{AV+k}, 2, v21
        ds_add_rtn_u32 v{RV+k}, v{AV+k}, v61 offset:{HIST}
        v_mul_u32_u24 v21, {NPB}, v21
        v_sub_u32 v{DV+k}, v{DV+k}, v21""")
    a(f"""L1_p2:
    s_mov_b64 exec, -1
    v_lshlrev_b32 v2, 4, v1
    s_waitcnt lgkmcnt(0)
    s_barrier""")
    stamp(a, 3, ST)
    a(f"""ds_read_b128 v[64:67], v2 offset:{HIST}
    s_waitcnt lgkmcnt(0)
    v_add_u32 v68, v64, v65
    v_add_u32 v69, v68, v66
    v_add_u32 v70, v69, v67
    v_mov_b32 v71, v70""")
    dpp_red(a, "v_add_u32", 71)
    a(f"""v_sub_u32 v56, v71, v70
    v_add_u32 v57, v56, v64
    v_add_u32 v58, v56, v68
    v_add_u32 v59, v56, v69
    ds_write_b128 v2, v[56:59] offset:{START}
    s_mov_b64 exec, s[54:55]
    s_cbranch_execz L1_p4""")
    for k in range(EPT): a(f"ds_read_b32 v{AV+k}, v{AV+k} offset:{START}")
    a(f"s_waitcnt vmcnt({2*G})")
    for k in range(EPT):
        a(f"""v_add_u32 v21, {16384-HALF}, v{SV+k}
        v_lshl_or_b32 v{SV+k}, v{DV+k}, 18, v{SV+k}
        v_lshrrev_b32 v21, 14, v21
        v_lshl_or_b32 v{SV+k}, v21, 24, v{SV+k}""")
    a("s_waitcnt vmcnt(0)")
    for k in range(EPT):
        a(f"""s_waitcnt lgkmcnt({EPT-1+k})
        v_add_u32 v{AV+k}, v{AV+k}, v{RV+k}
        v_mul_u32_u24 v{AV+k}, 12, v{AV+k}
        ds_write2_b32 v{AV+k}, v{EV+2*k}, v{EV+2*k+1} offset0:0 offset1:1
        ds_write_b32 v{AV+k}, v{SV+k} offset:8""")
    for k in range(EPT): a(f"v_dot2_f32_bf16 v{DV+k}, v{EV+2*k}, v{EV+2*k}, 0")
    for k in range(EPT): a(f"v_dot2_f32_bf16 v{DV+k}, v{EV+2*k+1}, v{EV+2*k+1}, v{DV+k}")
    a("s_nop 2")
    for k in range(0, EPT, 2): a(f"v_max3_u32 v60, v60, v{DV+k}, v{DV+k+1}")
    a("L1_p4:")
    full(a)
    dpp_red(a, "v_max_u32", 60)
    a("v_mov_b32 v62, 0")
    lane63(a); a(f"ds_max_u32 v62, v60 offset:{MAXW}"); full(a)
    stamp(a, 2, ST)
    a(f"""s_cmp_lg_u32 s3, 7
    s_cbranch_scc1 L1_p3
    v_lshl_or_b32 v64, v64, 16, v56
    v_lshl_or_b32 v65, v65, 16, v57
    v_lshl_or_b32 v66, v66, 16, v58
    v_lshl_or_b32 v67, v67, 16, v59
    v_mul_u32_u24 v2, {CH*16}, v1
    s_lshl_b32 s26, s56, 4
    buffer_store_dwordx4 v[64:67], v2, s[44:47], s26 offen sc1
    L1_p3:
    s_waitcnt lgkmcnt(0)
    s_barrier""")
    stamp(a, 4, ST)
    NO = -(-CE*12//8192)
    for i in range(NO): a(f"ds_read_b128 {vr(4+4*i,4)}, v3 offset:{8192*i}")
    a(f"ds_read_b32 v30, v62 offset:{MAXW}")
    for i in range(NO):
        a(f"s_mov_b32 s26, {8192*i}\ns_waitcnt lgkmcnt({NO-i})\nbuffer_store_dwordx4 {vr(4+4*i,4)}, v3, s[40:43], s26 offen sc1")
    a(f"""s_lshl_b32 s26, s56, 2
    v_cmp_eq_u32 vcc, 0, v0
    s_and_saveexec_b64 s[54:55], vcc
    s_cbranch_execz L1_exit
    s_waitcnt lgkmcnt(0)
    buffer_store_dword v30, v62, s[48:51], s26 offen sc1
    s_branch L1_exit""")

    WOP = 56
    a(f"""L1_gemm:
    s_cmp_eq_u32 s2, {NG}
    s_cbranch_scc1 L1_w2
    s_bfe_u32 s27, s2, 0x10003
    s_lshr_b32 s28, s2, 4
    s_lshl_b32 s28, s28, 3
    s_and_b32 s29, s2, 7
    s_add_u32 s28, s28, s29
    s_cmp_ge_u32 s28, 98
    s_cbranch_scc1 L1_exit2
    v_lshrrev_b32 v18, 4, v1
    v_and_b32 v19, 15, v1
    v_lshlrev_b32 v24, 2, v18
    v_xor_b32 v24, v24, v19
    v_lshlrev_b32 v24, 4, v24
    v_lshl_or_b32 v124, v18, 9, v24""")
    for ii in range(4):
        a(f"""v_add_u32 v20, {4*ii}, v18
        v_xor_b32 v20, v20, v19
        v_lshlrev_b32 v20, 4, v20
        v_lshl_or_b32 v{25+ii}, v18, 8, v20""")
    a(f"""v_mov_b32 v2, 0
    v_mov_b32 v3, 65536
    ds_write_b32 v3, v2
    s_lshl_b32 s43, s3, 13
    s_lshl_b32 s30, s27, 8
    s_add_u32 s43, s43, s30
    s_lshl_b32 s31, s3, 12
    s_lshl_b32 s29, s28, 15
    s_add_u32 s29, s29, s31
    s_add_u32 m0, s31, 32768
    s_and_b32 s40, s3, 1
    s_lshr_b32 s41, s3, 1
    v_and_b32 v7, 31, v1
    v_lshlrev_b32 v20, 1, v7
    s_lshl_b32 s42, s40, 7
    s_add_u32 s42, s42, s30
    s_waitcnt lgkmcnt(0)""")
    stamp(a, 5, ST)
    srd(a, 36, X, None, N*256)
    for ii in range(4):
        a(f"buffer_load_dwordx4 v{25+ii}, s[36:39], s29 offen nt lds")
        if ii < 3: a("s_add_u32 m0, m0, 1024\ns_add_u32 s29, s29, 1024")
    a("s_mov_b32 m0, s31")
    srd(a, 32, W1, None, 260*512)
    for ii in range(4):
        a(f"buffer_load_dwordx4 v124, s[32:35], s43 offen lds")
        a("s_add_u32 m0, m0, 1024\ns_add_u32 s43, s43, 2048")
    srd(a, 44, B1, None, 512)
    a(f"""buffer_load_ushort v122, v20, s[44:47], s42 offen
    buffer_load_ushort v123, v20, s[44:47], s42 offen offset:64
    s_add_u32 s43, s43, {128*512 - 8192}""")
    stamp(a, 6, ST)
    a(f"""v_bfe_u32 v18, v1, 2, 2
    v_lshrrev_b32 v6, 5, v1
    v_lshl_add_u32 v19, v6, 3, v18
    v_lshlrev_b32 v19, 8, v19
    v_bfe_u32 v20, v1, 4, 1
    v_lshlrev_b32 v20, 5, v20
    v_and_b32 v21, 3, v1
    v_lshl_add_u32 v20, v21, 3, v20
    v_add_u32 v19, v19, v20
    s_lshl_b32 s42, s40, 1
    v_xor_b32 v20, s42, v18
    v_lshl_add_u32 v120, v20, 6, v19
    v_xor_b32 v20, 1, v20
    v_lshl_add_u32 v121, v20, 6, v19
    s_lshl_b32 s42, s41, 5
    v_add_u32 v19, s42, v7
    v_lshlrev_b32 v19, 8, v19
    v_and_b32 v20, 15, v1
    v_xor_b32 v20, v20, v6
    v_lshl_add_u32 v104, v20, 4, v19
    v_add_u32 v104, 32768, v104""")
    for s in range(1, 8): a(f"v_xor_b32 v{104+s}, {32*s}, v104")
    srd(a, 44, WS, None, N*512); srd(a, 56, WS, N*512, N*512)
    a(f"""s_lshl_b32 s42, s28, 2
    s_add_u32 s42, s42, s41
    s_lshl_b32 s42, s42, 14
    s_lshl_b32 s48, s27, 1
    s_add_u32 s48, s48, s40
    s_lshl_b32 s48, s48, 7
    s_add_u32 s48, s42, s48
    s_add_u32 s30, s31, 32768
    v_lshlrev_b32 v4, 9, v6
    v_lshl_add_u32 v4, v7, 2, v4
    v_add_u32 v4, s30, v4
    v_lshl_add_u32 v6, v1, 4, s30
    v_lshrrev_b32 v7, 3, v1
    v_lshlrev_b32 v7, 9, v7
    v_and_b32 v18, 7, v1
    v_lshl_add_u32 v7, v18, 4, v7
    s_mov_b32 s52, {NLOG2E}
    s_mov_b32 s60, {PLOG2E}
    v_mov_b32 v5, 0
    v_mov_b32 v125, 0x80008000
    s_waitcnt vmcnt(0)
    s_barrier""")
    stamp(a, 1, ST)
    def wr(t, s):
        for hf in range(2):
            a(f"ds_read_b64_tr_b16 {vr(WOP+32*t+4*s+2*hf,2)}, v{120+t} offset:{4096*s+1024*hf}")
    GD0, GD1, CV, RB = 8, WOP, 72, 88
    for task in range(2):
        sc = (lambda r, b: f"v_mul_f32 v{r}, s52, v{r}") if task == 0 else (lambda r, b: f"v_fma_f32 v{r}, v{r}, s60, v{b}")
        per = 3 if task == 0 else 2
        ahead = 5 if task == 0 else 7
        def rd(s):
            if s < 8:
                if task == 0: a(f"ds_read_b128 {vr(24+4*s,4)}, v{104+s}")
                wr(0, s)
            else: wr(1, s-8)
        for s in range(ahead): rd(s)
        if task == 1:
            a("""v_lshlrev_b32 v122, 16, v122
            v_lshlrev_b32 v123, 16, v123
            v_mul_f32 v122, s60, v122
            v_mul_f32 v123, s60, v123""")
        cnt = lambda lo, hi: sum(per if q < 8 else 2 for q in range(lo, hi))
        for s in range(8):
            a(f"s_waitcnt lgkmcnt({cnt(s+1, s+ahead)})")
            a(mfma(GD0, 24+4*s, WOP+4*s, None if s == 0 else GD0))
            rd(s+ahead)
        for s in range(8+ahead, 16): rd(s)
        a("s_waitcnt lgkmcnt(0)")
        if task == 0:
            a("s_barrier\ns_mov_b32 m0, s31")
            stamp(a, 3, ST)
            for ii in range(4):
                a(f"buffer_load_dwordx4 v124, s[32:35], s43 offen lds")
                a("s_add_u32 m0, m0, 1024\ns_add_u32 s43, s43, 2048")
        for s in range(8):
            a(mfma(GD1, 24+4*s, WOP+32+4*s, None if s == 0 else GD1))
            if s >= 2:
                for j in range((s-2)*3, min(16, (s-1)*3)): a(sc(GD0+j, 122))
        for j in range(16):
            a(sc(GD1+j, 123))
            a(f"""v_cvt_pk_bf16_f32 v{CV+j}, v{GD0+j}, v{GD1+j}
            ds_write_b32 v4, v{CV+j} offset:{128*(8*(j//4)+j%4)}""")
        a("s_waitcnt lgkmcnt(0)")
        if task == 0: stamp(a, 4, ST)
        for i in range(4): a(f"ds_read_b128 {vr(RB+4*i,4)}, v6 offset:{1024*i}")
        for j in range(16): a(f"v_pk_max_i16 v5, v5, v{CV+j}" if task == 0 else f"v_pk_max_u16 v125, v125, v{CV+j}")
        for i in range(4):
            a(f"s_waitcnt lgkmcnt({3-i})\nbuffer_store_dwordx4 {vr(RB+4*i,4)}, v7, {sr(44 if task == 0 else 56, 4)}, s48 offen sc1")
            a("s_add_u32 s48, s48, 4096" if i < 3 else "s_sub_u32 s48, s48, 12288")
        if task == 0: a("s_waitcnt vmcnt(4)\ns_barrier")
    stamp(a, 2, ST)
    a("""v_and_b32 v125, 0x7fff7fff, v125
    v_pk_max_i16 v5, v5, v125
    v_lshlrev_b32 v6, 16, v5
    v_and_b32 v5, 0xffff0000, v5
    v_max_u32 v5, v5, v6""")
    dpp_red(a, "v_max_u32", 5)
    lane63(a); a("ds_max_u32 v3, v5"); full(a)
    srd(a, 44, WS, MAXA, 196*4)
    a(f"""s_lshl_b32 s26, s28, 1
    s_add_u32 s26, s26, s27
    s_lshl_b32 s26, s26, 2
    s_waitcnt lgkmcnt(0)
    s_barrier
    v_cmp_eq_u32 vcc, 0, v0
    s_and_saveexec_b64 s[54:55], vcc
    s_cbranch_execz L1_exit
    ds_read_b32 v6, v3
    s_waitcnt lgkmcnt(0)
    buffer_store_dword v6, v2, s[44:47], s26 offen sc1
    s_branch L1_exit""")
    a(f"""L1_w2:
    v_lshlrev_b32 v2, 4, v1
    s_lshl_b32 s29, s3, 13
    s_mov_b32 m0, s29
    v_mov_b32 v20, 0
    v_mov_b32 v21, 65536
    ds_write_b32 v21, v20
    v_and_b32 v11, 1, v1
    v_lshlrev_b32 v11, 5, v11
    v_bfe_u32 v12, v1, 1, 4
    v_add_u32 v11, v11, v12
    v_lshlrev_b32 v11, 1, v11
    v_lshrrev_b32 v12, 5, v1
    v_lshl_add_u32 v11, v12, 10, v11
    s_lshr_b32 s40, s3, 1
    s_lshl_b32 s40, s40, 7
    s_and_b32 s41, s3, 1
    s_lshl_b32 s41, s41, 5
    s_add_u32 s40, s40, s41
    s_add_u32 s40, s40, {256*512}
    s_waitcnt lgkmcnt(0)""")
    srd(a, 32, W2, None, 65536); srd(a, 36, W1, None, 260*512)
    a("""buffer_load_ushort v8, v11, s[36:39], s40 offen
    buffer_load_ushort v9, v11, s[36:39], s40 offen offset:512""")
    for ii in range(8):
        a("buffer_load_dwordx4 v2, s[32:35], s29 offen lds")
        if ii < 7: a("s_add_u32 m0, m0, 1024\ns_add_u32 s29, s29, 1024")
    a(f"""s_and_b32 s40, s3, 3
    s_lshr_b32 s41, s3, 2
    v_bfe_u32 v5, v1, 2, 1
    v_lshlrev_b32 v5, 5, v5
    v_bfe_u32 v6, v1, 3, 1
    v_add_u32 v5, v5, v6
    v_lshrrev_b32 v6, 5, v1
    v_lshl_add_u32 v5, v6, 2, v5
    v_lshlrev_b32 v5, 8, v5
    v_bfe_u32 v6, v1, 4, 1
    v_lshl_add_u32 v5, v6, 5, v5
    v_and_b32 v6, 3, v1
    v_lshl_add_u32 v5, v6, 3, v5
    s_lshl_b32 s42, s40, 6
    s_lshl_b32 s43, s41, 15
    s_add_u32 s42, s42, s43
    v_add_u32 v5, s42, v5
    s_lshl_b32 s43, s40, 14
    s_lshl_b32 s42, s41, 13
    s_add_u32 s43, s43, s42
    s_mov_b32 s52, {NLOG2E}
    s_lshl_b32 s42, s3, 9
    v_lshlrev_b32 v3, 3, v1""")
    srd(a, 44, WS, W2OP, 65536); srd(a, 48, WS, STAT, 4096); srd(a, 56, WS, MAXW_G, 4)
    a("""s_waitcnt vmcnt(8)
    v_lshlrev_b32 v8, 16, v8
    v_lshlrev_b32 v9, 16, v9
    v_mul_f32 v8, s52, v8
    v_mul_f32 v9, s52, v9
    v_cvt_pk_bf16_f32 v15, v8, v9
    v_mul_f32 v16, v8, v8
    v_fmac_f32 v16, v9, v9
    v_lshlrev_b32 v12, 16, v15
    v_and_b32 v13, 0xffff0000, v15
    v_sub_f32 v8, v8, v12
    v_sub_f32 v9, v9, v13
    v_cvt_pk_bf16_f32 v14, v8, v9
    buffer_store_dwordx2 v[14:15], v3, s[48:51], s42 offen sc1""")
    dpp_red(a, "v_max_u32", 16, full=False)
    a("""v_readlane_b32 s42, v16, 31
    v_add_f32 v16, s42, v16
    s_waitcnt vmcnt(0)
    s_barrier""")
    lane63(a); a("ds_max_u32 v21, v16"); full(a)
    for s in range(8):
        for hf in range(2):
            row = 64*(s//4) + 16*((s//2) % 2) + 8*(s % 2) + 2*hf
            a(f"ds_read_b64_tr_b16 {vr(WOP+4*s+2*hf,2)}, v5 offset:{256*row}")
    a("s_waitcnt lgkmcnt(0)\ns_barrier\nds_read_b32 v16, v21")
    for s in range(8):
        a(f"buffer_store_dwordx4 {vr(WOP+4*s,4)}, v2, s[44:47], s43 offen sc1\ns_add_u32 s43, s43, 1024")
    srd(a, 48, WS, MAXE + CH*4, 16)
    a("""v_lshlrev_b32 v17, 2, v1
    buffer_store_dword v20, v17, s[48:51], 0 offen sc1
    s_waitcnt lgkmcnt(0)
    buffer_store_dword v16, v3, s[56:59], 0 offen sc1
    L1_exit:""")
    stamp_dump(a, ST, 127, 0)
    a("L1_exit2:\ns_endpgm")


CAPT = 60
L_IDX, L_QA, L_TBL, L_CNT, L_MISC, L_DEG, L_EA, L_P = 256, 8448, 10496, 12544, 14592, 14656, 15104, 30464
L_BT = L_P + 31*1024
L_STG = 91136
BTP = 1152
L_NULL = L_BT + 24*BTP + 512
K2_LDS = L_STG + 65536
assert L_BT + 25*BTP <= L_STG
D0, D1, EE, TT, HQ0, HQ1, S0, S1 = 0, 16, 32, 48, 56, 60, 64, 80
ALO, AHI, ID0, ID1, A2, B2R, PP, IP = 96, (104, 112), 120, 124, (128, 132), (136, 140), 144, 148
QV, QST, RA, IB, EB, QB, PB = (156, 157), 158, 159, 163, 164, 165, 166
TID, LANE, DEG, VONE, ESIG, QOFF, L16 = 167, 168, 169, 170, 172, 173, 174
RECR, OFR, W2R, B2V = 0, 240, 176, 252
MASK = 56
S_BASE, S_LIM, S_IMASK, S_SLOW, S_N, S_T0, S_FIRST, S_BK, S_MAXC, S_SAFE, S_CUT, S_STG, S_BETA, S_NEG = range(80, 94)
S_CG, S_GRP, S_R2, S_N0, S_NO = 26, 27, 1, 0, 87


def valu_half(D, hq, mode, fill):
    L = [f"v_exp_f32 v{EE+j}, v{D+j}" for j in range(16)]
    p2 = lambda x: vr(x, 2)
    if mode == "o":
        L.insert(15, None)
        L[15] = f"v_pk_add_f32 {p2(TT)}, {p2(EE)}, 1.0 op_sel_hi:[1,0]"
        L[15], L[16] = L[16], L[15]
        for s in range(1, 8):
            n = D if s == 1 else TT+2
            L.append(f"v_pk_fma_f32 {p2(TT+2)}, {p2(n)}, {p2(EE+2*s)}, {p2(n)}")
            L.append(f"v_pk_fma_f32 {p2(TT+2)}, {p2(D+2*s)}, {p2(TT)}, {p2(TT+2)}")
            L.append(f"v_pk_fma_f32 {p2(TT)}, {p2(TT)}, {p2(EE+2*s)}, {p2(TT)}")
        u, nn, dd = L[-3:]
        L[-3:] = [f"v_pk_fma_f32 {p2(TT+4)}, {p2(TT)}, {p2(EE+14)}, {p2(TT)}", f"v_rcp_f32 v{TT+4}, v{TT+4}", f"v_rcp_f32 v{TT+5}, v{TT+5}", u, nn]
        L.append(f"v_pk_mul_f32 {p2(TT+2)}, {p2(TT+2)}, {p2(TT+4)}")
        L.append(f"v_cvt_pk_bf16_f32 v{hq}, v{TT+2}, v{TT+3}")
        return L + fill
    if mode == "q":
        for q in range(2): L.append(f"v_pk_add_f32 {p2(TT+4*q)}, {p2(EE+8*q)}, 1.0 op_sel_hi:[1,0]")
        for s in range(1, 4):
            for q in range(2):
                n = D+8*q if s == 1 else TT+4*q+2
                L.append(f"v_pk_fma_f32 {p2(TT+4*q+2)}, {p2(n)}, {p2(EE+8*q+2*s)}, {p2(n)}")
            for q in range(2):
                L.append(f"v_pk_fma_f32 {p2(TT+4*q+2)}, {p2(D+8*q+2*s)}, {p2(TT+4*q)}, {p2(TT+4*q+2)}")
            for q in range(2):
                L.append(f"v_pk_fma_f32 {p2(TT+4*q)}, {p2(TT+4*q)}, {p2(EE+8*q+2*s)}, {p2(TT+4*q)}")
        for q in range(2):
            for p in range(2): L.append(f"v_rcp_f32 v{TT+4*q+p}, v{TT+4*q+p}")
        for q in range(2): L.append(f"v_pk_mul_f32 {p2(TT+4*q+2)}, {p2(TT+4*q+2)}, {p2(TT+4*q)}")
    else:
        for j in range(0, 16, 2): L.append(f"v_pk_add_f32 {p2(EE+j)}, {p2(EE+j)}, 1.0 op_sel_hi:[1,0]")
        for j in range(16): L.append(f"v_rcp_f32 v{EE+j}, v{EE+j}")
        for q in range(2): L.append(f"v_pk_mul_f32 {p2(TT+4*q+2)}, {p2(D+8*q)}, {p2(EE+8*q)}")
        for s in range(1, 4):
            for q in range(2):
                L.append(f"v_pk_fma_f32 {p2(TT+4*q+2)}, {p2(D+8*q+2*s)}, {p2(EE+8*q+2*s)}, {p2(TT+4*q+2)}")
    for q in range(2): L.append(f"v_cvt_pk_bf16_f32 v{hq+q}, v{TT+4*q+2}, v{TT+4*q+3}")
    return L + fill


def weave(V, M, pos):
    out = []
    for i, x in enumerate(V):
        out += [m for m, p in zip(M, pos) if p == i]
        out.append(x)
    return out


def incs(k): return [f"v_add_u32 v{IB}, {128*k}, v{IB}", f"v_add_u32 v{EB}, {256*k}, v{EB}", f"v_add_u32 v{QB}, {32*k}, v{QB}"]


def block(a, t, mode):
    par = t & 1
    last = 3 if mode == "o" else 1
    M1 = [mfma(D1, AHI[par], ID0, None), mfma(D1, AHI[par]+4, ID1, D1), mfma(D1, A2[par], B2R[1], D1)]
    if t == 0: M1.append(mfma(S1, HQ1, PP, S1))
    M2 = [mfma(D0, ALO, ID0, None), mfma(D0, ALO+4, ID1, D0), mfma(D0, A2[par ^ 1], B2R[0], D0)]
    if t == last: M2.append(mfma(S0, HQ0, PP, S0))
    pos = [1, 4, 7, 10]
    extra = [f"v_add_u32 v{QV[par]}, v{QV[par]}, v{QST}"]
    if t == 0: extra.append(f"v_add_u32 v{PB}, 1024, v{PB}")
    if mode == "o" and t == 2: extra += incs(4)
    if mode != "o" and t == 0: extra += incs(2)
    k = t if mode == "o" else 2*t
    L = weave(valu_half(D0, HQ0+k, mode, extra), M1, pos) + weave(valu_half(D1, HQ1+k, mode, []), M2, pos)
    if OPT["prio"]:
        L.insert(OPT["prio_at"], "s_setprio 1"); L.append("s_setprio 0")
    a("\n".join(L))


def dma(a, par):
    a(f"s_add_u32 m0, s{S_STG}, {4096*par}")
    for u in range(4):
        a(f"buffer_load_dwordx4 {vr(IP+2*u,2)}, s[36:39], 0 idxen offen lds")
        if u < 3: a("s_add_u32 m0, m0, 1024")


def rd_idx(a, t):
    for u in range(4): a(f"ds_read_b32 v{IP+2*u}, v{IB} offset:{128*t+32*u}")


def rd_rows(a, par):
    for s in range(4):
        d = ALO+4*s if s < 2 else AHI[par]+4*(s-2)
        a(f"ds_read_b128 {vr(d,4)}, v{RA+s} offset:{4096*par}")


def w2chunk(a, k):
    a(f"s_lshl_b32 s96, s{S_CG}, 14\ns_add_u32 s96, s96, {4096*k}")
    for q in range(4): a(f"buffer_load_dwordx4 {vr(W2R+16*k+4*q,4)}, v{L16}, s[44:47], s96 offen offset:{1024*q}")
    if k == 0: a(f"s_lshl_b32 s96, s{S_CG}, 6\nbuffer_load_ushort v{B2V}, v175, s[48:51], s96 offen")


def group(a, par, sh=0, rdp=False, tail=True):
    a("s_waitcnt vmcnt(4)")
    rd_rows(a, par)
    a(f"ds_read_b64_tr_b16 {vr(B2R[1],2)}, v{QV[par^1]} offset:64")
    a(f"ds_read_b64_tr_b16 {vr(B2R[0],2)}, v{QV[par]}")
    a(f"ds_read2st64_b32 {vr(A2[par]+2,2)}, v{EB} offset0:{2+par+sh} offset1:{2+par+sh}")
    if rdp: a(f"ds_read_b128 {vr(PP,4)}, v{PB}")
    a(f"s_cmp_gt_u32 s{S_N}, 3\ns_cselect_b32 s38, {0 if OPT.get('nodma') else AROWS}, 0")
    if tail:
        group.n += 1
        a(f"s_cmp_gt_u32 s{S_N}, 4\ns_cbranch_scc1 L2_tr{group.n}\ns_call_b64 s[98:99], L2_w2stub\nL2_tr{group.n}:")
    a(f"s_waitcnt lgkmcnt({4 if rdp else 3})")
    dma(a, par)
    rd_idx(a, 5+par+sh)
    a(f"ds_read_b32 v{QV[par^1]}, v{QB} offset:{32*(3+par+sh)}")
    a("s_waitcnt lgkmcnt(0)")
group.n = 0


def dec(a, tgt): a(f"s_sub_u32 s{S_N}, s{S_N}, 1\ns_cmp_eq_u32 s{S_N}, 0\ns_cbranch_scc1 {tgt}")


def main_loops(a):
    a("L2_loopO:")
    block(a, 0, "o"); a(f"s_sub_u32 s{S_N}, s{S_N}, 1"); group(a, 0, 2, True)
    block(a, 1, "o"); dec(a, "L2_end_odd"); group(a, 1, 2)
    a(f"s_cmp_eq_u32 s{S_NO}, 2\ns_cbranch_scc1 L2_half")
    block(a, 2, "o"); a(f"s_sub_u32 s{S_N}, s{S_N}, 1"); group(a, 0)
    block(a, 3, "o"); dec(a, "L2_end_even"); group(a, 1)
    a(f"s_sub_u32 s{S_NO}, s{S_NO}, 4\ns_cmp_lg_u32 s{S_NO}, 0\ns_cbranch_scc1 L2_loopO\ns_branch L2_loopF\nL2_half:")
    a(mfma(S0, HQ0, PP, S0)); a("\n".join(incs(2)))
    for tag, mode in (("F", "q"), ("S", "s")):
        a(f"L2_loop{tag}:")
        block(a, 0, mode); dec(a, "L2_end_odd"); group(a, 0, 0, True)
        block(a, 1, mode); dec(a, "L2_end_even"); group(a, 1)
        a(f"s_branch L2_loop{tag}")
    a("L2_w2stub:")
    for k in range(4):
        if k < 3: a(f"s_cmp_lg_u32 s{S_N}, {4-k}\ns_cbranch_scc1 L2_st{k}")
        w2chunk(a, k)
        a("s_setpc_b64 s[98:99]")
        if k < 3: a(f"L2_st{k}:")


def k2(a):
    ST = 253
    L = LANE
    PF = OPT["pf"]
    a("k2_kernel:")
    a(f"s_cmp_ge_u32 s2, {NB}\ns_cbranch_scc1 L2_exit2")
    if OPT.get("stamp"): a(f"v_mov_b32 v{ST}, 0")
    stamp(a, 0, ST)
    ldargs(a)
    a(f"""v_mov_b32 v{TID}, v0
    v_and_b32 v{L}, 63, v0
    v_lshrrev_b32 v2, 6, v0
    v_mov_b32 v{DEG}, 0
    v_readfirstlane_b32 s3, v2
    v_mov_b32 v{VONE}, 1
    s_and_b32 s{S_BK}, s2, 7
    s_lshl_b32 s{S_BK}, s{S_BK}, 5
    s_lshr_b32 s28, s2, 3
    s_add_u32 s{S_BK}, s{S_BK}, s28
    s_mul_i32 s{S_NEG}, s{S_BK}, {NPB}
    v_lshrrev_b32 v8, {LSH}, v0
    s_and_b32 s28, s{S_BK}, 3
    s_lshl_b32 s28, s28, 2
    v_lshl_add_u32 v9, v8, 4, s28
    s_lshr_b32 s96, s{S_BK}, 2
    s_mul_i32 s96, s96, {CH*16}
    s_add_u32 s96, s96, {OFF}
    s_mov_b32 s{S_BASE}, 0
    s_mov_b32 s{S_LIM}, {3*LPS}
    s_mov_b32 s{S_IMASK}, 15
    s_mov_b32 s{S_SLOW}, 0
    s_mov_b32 s{S_FIRST}, 1
    s_mov_b32 s{S_BETA}, 0
    s_and_b32 s{S_CG}, s3, 3
    s_lshr_b32 s{S_GRP}, s3, 2
    s_lshl_b32 s{S_STG}, s3, 13
    s_add_u32 s{S_STG}, s{S_STG}, {L_STG}
    v_lshlrev_b32 v{L16}, 4, v{L}
    s_waitcnt lgkmcnt(0)""")
    stamp(a, 11, ST)
    srd(a, 28, WS, "s96", CH*16)
    for i in range(4): a(f"buffer_load_dword v{OFR+i}, v9, s[28:31], 0 offen offset:{(8192 >> LSH)*i}")
    srd(a, 32, WS, REC, CH*CE*12); srd(a, 36, WS, None, AROWS, stride=512)
    NZ = (L_BT - L_CNT)//16
    a(f"""L2_batch:
    v_and_b32 v112, {LPS-1}, v{L}
    v_add_u32 v112, s{S_BASE}, v112
    s_add_u32 s96, s{S_BASE}, s{S_LIM}
    v_lshrrev_b32 v113, {LSH}, v{TID}
    v_mul_u32_u24 v113, {CE*12}, v113""")
    stamp(a, 12, ST)
    a("s_waitcnt vmcnt(0)")
    stamp(a, 1, ST)
    for i in range(4):
        a(f"""v_lshrrev_b32 v{104+i}, 16, v{OFR+i}
        s_bitcmp1_b32 s{S_IMASK}, {i}
        s_cselect_b32 s98, s96, 0
        v_min_u32 v{104+i}, s98, v{104+i}
        v_and_b32 v114, 0xffff, v{OFR+i}
        v_add_u32 v114, v114, v112
        v_mad_u32_u24 v{108+i}, v114, 12, v113""")
        if i < 3: a(f"v_add_u32 v113, {(512 >> LSH)*CE*12}, v113")
    for rnd in range(3):
        if rnd: a(f"v_add_u32 v112, {LPS}, v112")
        for i in range(4): a(f"v_cmp_lt_u32 {sr(MASK+2*(4*rnd+i),2)}, v112, v{104+i}")
        if rnd == 2:
            a(f"""s_or_b64 s[96:97], {sr(MASK+16,2)}, {sr(MASK+18,2)}
            s_or_b64 s[98:99], {sr(MASK+20,2)}, {sr(MASK+22,2)}
            s_or_b64 s[96:97], s[96:97], s[98:99]
            s_cselect_b32 s{S_R2}, 1, 0
            s_cbranch_scc0 L2_r11""")
        for i in range(4):
            k = 4*rnd + i
            a(f"""s_mov_b64 exec, {sr(MASK+2*k,2)}
            s_cbranch_execz L2_r{k}
            buffer_load_dwordx3 {vr(RECR+4*k,3)}, v{108+i}, s[32:35], 0 offen offset:{12*LPS*rnd}
            L2_r{k}:""")
        full(a)
    a(f"s_cmp_eq_u32 s{S_FIRST}, 0\ns_cbranch_scc1 L2_b2")
    a(f"""s_add_u32 s95, s{S_NEG}, {N}
    s_lshl_b32 s95, s95, 9
    s_mul_i32 s96, s3, {BTP}
    s_add_u32 m0, s96, {L_BT}
    s_lshl_b32 s94, s3, 10
    s_lshl_b32 s96, s{S_CG}, 10
    v_lshlrev_b32 v120, 3, v{L}""")
    srd(a, 40, WS, "s95", NPB*512); srd(a, 44, WS, STAT, 4096)
    for q in range(3):
        a(f"buffer_load_dwordx4 v{L16}, s[40:43], s94 offen lds")
        a(f"s_add_u32 m0, m0, {8*BTP}\ns_add_u32 s94, s94, 8192")
    a(f"""buffer_load_dwordx2 {vr(B2R[0]+2,2)}, v120, s[44:47], s96 offen
    buffer_load_dwordx2 {vr(B2R[1]+2,2)}, v120, s[44:47], s96 offen offset:512
    s_cmp_eq_u32 s3, 0
    s_cbranch_scc0 L2_b3
    buffer_load_dwordx4 v{L16}, s[40:43], s94 offen lds
    L2_b3:
    s_cmp_eq_u32 s3, 7
    s_cbranch_scc0 L2_b2""")
    srd(a, 44, WS, MAXA, 196*4); srd(a, 48, WS, MAXE, (CH*4+15)//16*16); srd(a, 52, WS, MAXW_G, 4)
    a(f"""v_mov_b32 v120, 0
    buffer_load_dwordx4 v[244:247], v{L16}, s[44:47], 0 offen
    buffer_load_dwordx4 v[248:251], v{L16}, s[48:51], 0 offen
    buffer_load_dword v171, v120, s[52:55], 0 offen
    L2_b2:""")
    a(f"v_lshlrev_b32 v104, 4, v{TID}")
    for j in range(4): a(f"v_mov_b32 v{96+j}, -1\nv_mov_b32 v{100+j}, 0")
    a(f"ds_write_b128 v104, v[96:99] offset:{L_IDX}")
    for i in range(6): a(f"ds_write_b128 v104, v[100:103] offset:{L_CNT + 8192*i}")
    a(f"""v_cmp_gt_u32 vcc, {NZ - 3072}, v{TID}
    v_mov_b32 v96, {L_NULL}
    v_mov_b32 v97, {L_NULL}
    s_and_b64 exec, exec, vcc
    ds_write_b128 v104, v[100:103] offset:{L_CNT + 8192*6}
    s_mov_b64 exec, -1
    v_cmp_gt_u32 vcc, 128, v{TID}
    v_mov_b32 v98, {L_NULL}
    v_mov_b32 v99, {L_NULL}
    s_and_b64 exec, exec, vcc
    ds_write_b128 v104, v[96:99] offset:{L_QA}
    s_mov_b64 exec, -1
""")
    a(f"""s_waitcnt lgkmcnt(0)
    s_barrier
    s_cmp_eq_u32 s{S_FIRST}, 0
    s_cbranch_scc1 L2_rank0""")
    stamp(a, 3, ST)
    a(f"""v_lshrrev_b32 v96, 16, v{OFR}
    v_lshrrev_b32 v97, 16, v{OFR+1}
    v_lshrrev_b32 v98, 16, v{OFR+2}
    v_lshrrev_b32 v99, 16, v{OFR+3}
    v_max3_u32 v96, v96, v97, v98
    v_max_u32 v105, v96, v99""")
    n_, h_, one, t0, t1, t2, t3, t4, t5 = 96, 97, 98, 99, 100, 101, 102, 103, 104
    zs = [f"v_mov_b32 v{S0+j}, 0" for j in range(32)]
    for i, m in enumerate(SHR + [BC15, BC31]):
        a("\n".join(zs[2*i:2*i+2])); a(f"v_max_u32_dpp v105, v105, v105 {m}")
    a("\n".join(zs[12:]))
    a("v_mov_b32 v106, 0")
    lane63(a); a(f"ds_max_u32 v106, v105 offset:{L_MISC+4}"); full(a)
    a(f"""v_and_b32 v{n_}, 31, v{L}
    v_lshrrev_b32 v{h_}, 5, v{L}
    v_and_b32 v{t0}, 1, v{L}
    v_lshlrev_b32 v{t0}, 4, v{t0}
    v_mov_b32 v{one}, 0x3f80
    v_lshlrev_b32 v{one}, v{t0}, v{one}
    v_lshrrev_b32 v{t0}, 1, v{n_}
    v_lshlrev_b32 v{t1}, 2, v{h_}
    v_sub_u32 v{t0}, v{t0}, v{t1}
    v_lshlrev_b32 v175, 1, v{n_}""")
    for q in range(8):
        a(f"v_cmp_eq_u32 {sr(94+2*(q%3),2)}, {8*(q//4) + q%4}, v{t0}")
        if q >= 1: a(f"v_cndmask_b32 v{ID0+q-1}, 0, v{one}, {sr(94+2*((q-1)%3),2)}")
    a(f"""v_bfe_u32 v{t1}, v{n_}, 2, 1
    v_cndmask_b32 v{ID0+7}, 0, v{one}, {sr(94+2*(7%3),2)}
    v_lshrrev_b32 v{t2}, 4, v{n_}
    v_and_b32 v{t3}, 1, v{n_}
    v_xor_b32 v{t4}, v{t1}, v{h_}
    v_lshl_or_b32 v{t4}, v{t4}, 1, v{t3}
    v_cmp_eq_u32 s[94:95], 0, v{t4}
    v_cmp_eq_u32 s[96:97], 1, v{t4}
    v_lshlrev_b32 v{t4}, 4, v{t2}
    v_mov_b32 v{one}, 0xbf80
    v_lshlrev_b32 v{one}, v{t4}, v{one}
    v_cndmask_b32 v{A2[0]}, 0, v{one}, s[94:95]
    v_cndmask_b32 v{A2[0]+1}, 0, v{one}, s[96:97]
    v_cndmask_b32 v{A2[1]}, 0, v{one}, s[94:95]
    v_cndmask_b32 v{A2[1]+1}, 0, v{one}, s[96:97]
    v_lshlrev_b32 v{t1}, 4, v{t1}
    v_lshl_or_b32 v{t1}, v{t3}, 3, v{t1}
    v_lshl_or_b32 v{t1}, v{t2}, 2, v{t1}
    v_bfe_u32 v{t4}, v{n_}, 3, 1
    v_lshl_or_b32 v{t1}, v{t4}, 1, v{t1}
    v_bfe_u32 v{t5}, v{n_}, 1, 1
    v_or_b32 v{t1}, v{t1}, v{t5}
    v_bfe_u32 v{t3}, v{t1}, 1, 3
    v_xor_b32 v{t3}, v{t3}, v{h_}
    v_lshlrev_b32 v{t3}, 4, v{t3}
    v_lshl_add_u32 v{t3}, v{t1}, 7, v{t3}
    v_add_u32 v{RA}, s{S_STG}, v{t3}
    v_lshlrev_b32 v{ESIG}, 3, v{t1}
    v_lshl_add_u32 v{ESIG}, v{h_}, 2, v{ESIG}""")
    for s in range(1, 4): a(f"v_xor_b32 v{RA+s}, {32*s}, v{RA}")
    a(f"""v_lshrrev_b32 v{t2}, 4, v{L}
    v_and_b32 v{t3}, 7, v{L}
    v_xor_b32 v{t2}, v{t2}, v{t3}
    s_lshl_b32 s96, s{S_CG}, 7
    v_lshl_add_u32 v{IP+1}, v{t2}, 4, s96
    v_xor_b32 v{IP+3}, 64, v{IP+1}
    v_mov_b32 v{IP+5}, v{IP+1}
    v_mov_b32 v{IP+7}, v{IP+3}
    v_bfe_u32 v{t1}, v{L}, 4, 1
    v_lshlrev_b32 v{t1}, 5, v{t1}
    v_and_b32 v{t3}, 3, v{L}
    v_lshl_add_u32 v{t1}, v{t3}, 3, v{t1}
    v_add_u32 v{QST}, s96, v{t1}
    v_bfe_u32 v{t1}, v{L}, 2, 2
    v_lshl_add_u32 v{QOFF}, v{h_}, 2, v{t1}
    v_lshlrev_b32 v{QOFF}, 2, v{QOFF}
    s_waitcnt vmcnt(8)
    s_cmp_eq_u32 s3, 7
    s_cbranch_scc1 L2_rank2
    s_waitcnt vmcnt(6)
    s_cmp_eq_u32 s3, 0
    s_cbranch_scc1 L2_rank2
    s_waitcnt vmcnt(5)
    s_branch L2_rank2
    L2_rank0:
    s_waitcnt vmcnt(0)
    L2_rank2:""")
    stamp(a, 5, ST)
    RK = 96
    for k in range(12):
        if k == 8: a(f"s_cmp_eq_u32 s{S_R2}, 0\ns_cbranch_scc1 L2_k12")
        a(f"""s_mov_b64 exec, {sr(MASK+2*k,2)}
        v_lshrrev_b32 v{RK+k}, 14, v{RECR+4*k+2}
        ds_add_rtn_u32 v{RECR+4*k+3}, v{RK+k}, v{VONE} offset:{L_CNT}""")
    a(f"""L2_k12:
    s_mov_b64 exec, -1
    v_mov_b32 v63, 0
    s_cmp_eq_u32 s{S_FIRST}, 0
    s_cbranch_scc1 L2_k13
    s_cmp_eq_u32 s3, 7
    s_cbranch_scc0 L2_k14
    s_waitcnt vmcnt(0)
    v_max3_u32 v244, v244, v245, v246
    v_max3_u32 v248, v248, v249, v250
    v_max_u32 v244, v244, v247
    v_max_u32 v248, v248, v251""")
    dpp_red(a, "v_max_u32", [244, 248])
    a(f"""v_mul_f32 v171, v171, v248
    v_sqrt_f32 v171, v171
    v_mov_b32 v54, 0x41f00000
    v_fma_f32 v171, v244, 2.0, v171
    v_mov_b32 v55, 0x41780000
    v_cmp_nlt_f32 vcc, v171, v54
    v_cmp_nlt_f32 s[94:95], v171, v55
    v_cndmask_b32 v54, 0, v{VONE}, vcc
    v_cndmask_b32 v55, 0, v{VONE}, s[94:95]
    v_add_u32 v171, v54, v55""")
    lane63(a); a(f"ds_write_b32 v63, v171 offset:{L_MISC}"); full(a)
    a("L2_k14:")
    if PF:
        srd(a, 44, WS, None, N*512)
        a(f"""s_lshr_b32 s96, s2, 3
        s_lshl_b32 s96, s96, 3
        s_add_u32 s96, s96, s3
        s_mul_i32 s96, s96, {PF*8192}
        v_lshlrev_b32 v48, 7, v{L}""")
        for q in range(PF):
            a(f"buffer_load_dword v255, v48, s[44:47], s96 offen")
            if q < PF-1: a("s_add_u32 s96, s96, 8192")
    CL, CU, C_, PC, O1, O2, R3 = 48, 49, 50, 51, 52, 53, 54
    I1, I2, I3 = 56, 57, 58
    TL, TH = 108, 112
    HM = (0xffffffff << SPLIT) & 0xffffffff
    a(f"""L2_k13:
    s_waitcnt lgkmcnt(0)
    s_barrier
    ds_read_b32 v{CL}, v{L16} offset:{L_CNT}
    ds_read_b32 v{CU}, v{L16} offset:{L_CNT+1024}
    ds_read_b64 v[60:61], v63 offset:{L_MISC}
    s_waitcnt lgkmcnt(1)
    v_add_u32 v{C_}, v{CL}, v{CU}
    v_and_b32 v{O1}, -8, v{CL}
    v_add_u32 v{PC}, 3, v{C_}
    v_mov_b32 v{I1}, v{O1}
    v_and_b32 v{PC}, -4, v{PC}
    v_sub_u32 v{R3}, v{PC}, v{O1}
    v_and_b32 v{O2}, -8, v{R3}
    v_and_b32 v{R3}, 4, v{R3}
    v_mov_b32 v{I2}, v{O2}
    v_mov_b32 v{I3}, v{R3}""")
    dpp_red(a, "v_add_u32", [I1, I2, I3])
    a(f"""v_readlane_b32 s94, v{I1}, 63
    v_readlane_b32 s95, v{I2}, 63
    v_readlane_b32 s96, v{I3}, 63
    v_readlane_b32 s97, v{I1}, {SPLIT-1}
    v_readlane_b32 s98, v{I2}, {SPLIT-1}
    v_readlane_b32 s99, v{I3}, {SPLIT-1}
    v_readlane_b32 s28, v{I1}, 31
    v_sub_u32 v{I1}, v{I1}, v{O1}
    v_sub_u32 v{I2}, v{I2}, v{O2}
    v_sub_u32 v{I3}, v{I3}, v{R3}
    s_cmp_eq_u32 s{S_FIRST}, 0
    s_cbranch_scc1 L2_s1
    s_waitcnt lgkmcnt(0)
    v_readfirstlane_b32 s{S_MAXC}, v61
    v_readfirstlane_b32 s{S_SAFE}, v60
    s_mov_b32 s{S_FIRST}, 0
    L2_s1:
    s_sub_u32 s94, s94, s97
    s_sub_u32 s95, s95, s98
    s_sub_u32 s96, s96, s99
    s_add_u32 s29, s97, s98
    s_add_u32 s30, s29, s99
    s_add_u32 s30, s30, 7
    s_and_b32 s30, s30, -8
    s_sub_u32 s31, s30, s97
    s_add_u32 s28, s28, s31
    s_add_u32 s40, s30, s94
    s_add_u32 s41, s40, s95
    s_add_u32 s42, s41, s96
    s_add_u32 s{S_CUT}, s42, 63
    s_lshr_b32 s{S_CUT}, s{S_CUT}, 6
    s_add_u32 s43, s30, 31
    s_lshr_b32 s43, s43, 5
    s_max_u32 s{S_CUT}, s{S_CUT}, s43
    s_add_u32 s43, s28, 31
    s_lshr_b32 s43, s43, 5
    s_min_u32 s{S_CUT}, s{S_CUT}, s43
    s_lshl_b32 s43, s{S_CUT}, 5
    s_max_u32 s43, s43, s28
    s_sub_u32 s43, s43, s28
    s_add_u32 s40, s40, s43
    s_add_u32 s41, s41, s43
    s_add_u32 s42, s42, s43
    s_sub_u32 s40, s40, s98
    s_sub_u32 s52, s41, s99
    s_mov_b32 exec_lo, {HM ^ 0xffffffff}
    s_mov_b32 exec_hi, 0
    v_add_u32 v{I2}, s97, v{I2}
    v_add_u32 v{I3}, s29, v{I3}
    s_mov_b32 exec_lo, {HM}
    s_mov_b32 exec_hi, -1
    v_add_u32 v{I1}, s31, v{I1}
    v_add_u32 v{I2}, s40, v{I2}
    v_add_u32 v{I3}, s52, v{I3}
    s_mov_b32 exec_lo, 0
    v_add_u32 v{I1}, s43, v{I1}
    s_mov_b64 exec, -1
    v_add_u32 v{O2}, v{O1}, v{O2}
    v_sub_u32 v{I2}, v{I2}, v{O1}
    v_sub_u32 v{I3}, v{I3}, v{O2}
    v_lshl_or_b32 v{TL}, v{I1}, 16, v{O1}
    v_lshl_or_b32 v{TL+1}, v{I2}, 16, v{O2}
    v_mov_b32 v{TL+2}, v{I3}
    v_mov_b32 v{TH}, 0
    v_max_u32 v55, v{O2}, v{CL}
    v_sub_u32 v55, v55, v{CL}
    v_add_u32 v{TH+1}, v{I2}, v{CL}
    v_lshl_or_b32 v{TH+1}, v{TH+1}, 16, v55
    v_add_u32 v{TH+2}, v{I3}, v{CL}
    ds_write_b96 v{L16}, {vr(TL,3)} offset:{L_TBL}
    ds_write_b96 v{L16}, {vr(TH,3)} offset:{L_TBL+1024}
    s_add_u32 s96, s42, 31
    s_lshr_b32 s96, s96, 5
    s_cmp_lg_u32 s{S_SLOW}, 0
    s_cbranch_scc1 L2_s2
    s_cmp_gt_u32 s96, {CAPT}
    s_cselect_b32 s97, 1, 0
    s_cmp_gt_u32 s{S_MAXC}, {3*LPS}
    s_cselect_b32 s97, 1, s97
    s_cmp_eq_u32 s97, 0
    s_cbranch_scc1 L2_s2
    s_mov_b32 s{S_SLOW}, 1
    s_mov_b32 s{S_LIM}, {LPS}
    s_mov_b32 s{S_IMASK}, 3
    s_waitcnt lgkmcnt(0)
    s_barrier
    s_branch L2_batch
    L2_s2:""")
    stamp(a, 6, ST)
    TB = W2R
    for k in range(8): a(f"s_mov_b64 exec, {sr(MASK+2*k,2)}\nds_read_b96 {vr(TB+4*k,3)}, v{RK+k} offset:{L_TBL}")
    a(f"""s_mov_b64 exec, -1
    v_add_u32 v{DEG}, v{DEG}, v{C_}
    s_lshr_b32 s29, s29, 6
    s_lshl_b32 s29, s29, 1
    s_lshr_b32 s41, s41, 5
    s_max_u32 s41, s41, s{S_CUT}
    s_sub_u32 s41, s41, s{S_CUT}
    s_and_b32 s41, s41, -2
    s_cmp_eq_u32 s{S_SAFE}, 0
    s_cselect_b32 s29, s29, 0
    s_cselect_b32 s41, s41, 0
    s_add_u32 s30, s29, 3
    s_lshr_b32 s30, s30, 2
    s_sub_u32 s31, s{S_CUT}, s29
    s_add_u32 s31, s31, 1
    s_lshr_b32 s31, s31, 1
    s_add_u32 s31, s31, s30
    s_add_u32 s40, s41, 3
    s_lshr_b32 s40, s40, 2
    s_add_u32 s40, s40, s31
    s_min_u32 s98, s{S_CUT}, s96
    s_sub_u32 s99, s96, s98
    s_cmp_eq_u32 s{S_GRP}, 0
    s_cselect_b32 s{S_N}, s98, s99
    s_cselect_b32 s{S_T0}, 0, s{S_CUT}
    s_cselect_b32 s{S_NO}, s29, s41
    s_cselect_b32 s53, 0, s31
    s_add_u32 s41, s41, s{S_CUT}
    s_lshl_b32 s30, s30, 1
    s_sub_u32 s30, s30, s29
    s_lshl_b32 s31, s31, 2
    s_sub_u32 s31, s31, s{S_CUT}
    s_lshl_b32 s40, s40, 1
    s_sub_u32 s40, s40, s41
    v_cmp_eq_u32 vcc, 0, v{R3}
    s_cmp_ge_u32 s3, 3
    s_cbranch_scc1 L2_pad
    v_add_u32 v55, s3, v{C_}
    v_cndmask_b32 v59, v{I3}, v{I2}, vcc
    v_cmp_lt_u32 vcc, v55, v{PC}
    s_add_u32 s96, s{S_NEG}, {N}
    s_and_b64 exec, exec, vcc
    v_add_u32 v60, s96, v{L}
    v_add_lshl_u32 v55, v55, v59, 2
    ds_write_b32 v55, v60 offset:{L_IDX}
    s_mov_b64 exec, -1
    L2_pad:""")
    for r in (PC, O1, O2, I1, I2, I3): a(f"v_lshrrev_b32 v{r}, 2, v{r}")
    QA_, ONE, NC1, Q, T, U, V = 48, 49, 50, 54, 55, 59, 60
    a(f"""v_lshrrev_b32 v{QA_}, 1, v{L}
    v_mul_u32_u24 v{QA_}, {BTP}, v{QA_}
    v_and_b32 v{ONE}, 1, v{L}
    v_lshl_add_u32 v{QA_}, v{ONE}, 9, v{QA_}
    v_add_u32 v{QA_}, {L_BT}, v{QA_}
    v_mov_b32 v{ONE}, 0x3f80
    v_subrev_u32 v{NC1}, {17*16}, v{L16}
    v_mov_b32 v61, s30
    v_mov_b32 v62, s40
    s_mov_b32 s97, s3
    L2_q:
    v_cmp_lt_u32 s[94:95], s97, v{O2}
    v_cmp_lt_u32 s[98:99], s97, v{O1}
    v_cmp_lt_u32 vcc, s97, v{PC}
    v_cndmask_b32 v{Q}, v{I3}, v{I2}, s[94:95]
    s_and_b64 exec, exec, vcc
    s_cbranch_execz L2_qd
    v_cndmask_b32 v{Q}, v{Q}, v{I1}, s[98:99]
    v_add_u32 v{Q}, s97, v{Q}
    v_lshrrev_b32 v{T}, 3, v{Q}
    v_lshlrev_b32 v{U}, 2, v{Q}
    ds_write_b32 v{U}, v{QA_} offset:{L_QA}
    v_cmp_le_u32 vcc, s{S_CUT}, v{T}
    v_cmp_gt_u32 s[94:95], s29, v{T}
    v_cmp_gt_u32 s[98:99], s41, v{T}
    v_and_b32 v{V}, 4, v{Q}
    v_cndmask_b32 v{U}, v{L16}, v{NC1}, vcc
    v_lshl_add_u32 v{U}, v{V}, 7, v{U}
    v_and_b32 v{V}, 2, v{Q}
    v_add_u32 v{U}, v{U}, v{V}
    s_and_b64 s[98:99], s[98:99], vcc
    s_or_b64 s[94:95], s[94:95], s[98:99]
    v_cndmask_b32 v{V}, v61, v62, vcc
    v_add_u32 v{V}, v{V}, v{T}
    v_and_b32 v{Q}, 1, v{Q}
    v_lshl_or_b32 v{Q}, v{V}, 1, v{Q}
    v_mov_b32 v{V}, s31
    v_cndmask_b32 v{V}, 0, v{V}, vcc
    v_add_u32 v{V}, v{V}, v{T}
    v_cndmask_b32 v{Q}, v{Q}, v{V}, s[94:95]
    v_and_b32 v{V}, -4, v{Q}
    v_lshl_add_u32 v{U}, v{V}, 8, v{U}
    v_and_b32 v{V}, 3, v{Q}
    v_lshl_add_u32 v{U}, v{V}, 2, v{U}
    ds_write_b16 v{U}, v{ONE} offset:{L_P}
    s_add_u32 s97, s97, 8
    s_branch L2_q
    L2_qd:
    s_mov_b64 exec, -1
    s_waitcnt lgkmcnt(0)""")
    for k in range(12):
        kk = k % 8
        r, m, tb = RECR+4*k+3, RECR+4*k+2, TB+4*kk
        if k == 8:
            a(f"s_cmp_eq_u32 s{S_R2}, 0\ns_cbranch_scc1 L2_c12")
            for k2 in range(8, 12):
                a(f"""s_mov_b64 exec, {sr(MASK+2*k2,2)}
                v_lshrrev_b32 v{RK+k2-8}, 14, v{RECR+4*k2+2}
                ds_read_b96 {vr(TB+4*(k2-8),3)}, v{RK+k2-8} offset:{L_TBL}""")
            a("s_mov_b64 exec, -1\ns_waitcnt lgkmcnt(0)")
        a(f"""v_cmp_ge_u32_sdwa vcc, v{r}, v{tb+1} src0_sel:DWORD src1_sel:WORD_0
        s_mov_b64 exec, {sr(MASK+2*k,2)}
        v_and_b32 v{m}, {OPT.get('imask', 0x3fff)}, v{m}
        v_cndmask_b32_sdwa v{tb+2}, v{tb+1}, v{tb+2}, vcc dst_sel:DWORD dst_unused:UNUSED_PAD src0_sel:WORD_1 src1_sel:DWORD
        v_cmp_ge_u32_sdwa vcc, v{r}, v{tb} src0_sel:DWORD src1_sel:WORD_0
        v_cndmask_b32_sdwa v{tb+2}, v{tb}, v{tb+2}, vcc dst_sel:DWORD dst_unused:UNUSED_PAD src0_sel:WORD_1 src1_sel:DWORD
        v_add_lshl_u32 v{tb+2}, v{tb+2}, v{r}, 2
        v_lshlrev_b32 v{tb}, 1, v{tb+2}
        ds_write_b32 v{tb+2}, v{m} offset:{L_IDX}
        ds_write_b64 v{tb}, {vr(RECR+4*k,2)} offset:{L_EA}
        s_mov_b64 exec, -1""")
    a(f"""L2_c12:
    s_mov_b64 exec, -1
    s_lshl_b32 s96, s{S_T0}, 7
    s_add_u32 s96, s96, {L_IDX-256}
    v_lshrrev_b32 v54, 3, v{L}
    v_lshl_add_u32 v{IB}, v54, 2, s96
    s_lshl_b32 s96, s{S_T0}, 8
    s_add_u32 s96, s96, {L_EA-512}
    v_add_u32 v{EB}, s96, v{ESIG}
    s_lshl_b32 s96, s{S_T0}, 5
    s_add_u32 s96, s96, {L_QA-64}
    v_add_u32 v{QB}, s96, v{QOFF}
    s_lshl_b32 s96, s53, 10
    s_add_u32 s96, s96, {L_P-1024}
    v_add_u32 v{PB}, s96, v{L16}""")
    for j in range(8): a(f"v_mov_b32 v{HQ0+j}, 0")
    for j in range(4): a(f"v_mov_b32 v{PP+j}, 0")
    srd(a, 44, WS, W2OP, 65536); srd(a, 48, B2, None, 256)
    a(f"""s_mov_b32 s38, {AROWS}
    s_mov_b32 s{S_N0}, s{S_N}
    s_waitcnt vmcnt({PF}) lgkmcnt(0)
    s_barrier
    s_cmp_eq_u32 s{S_N}, 0
    s_cbranch_scc1 L2_done""")
    stamp(a, 7, ST)
    rd_idx(a, 2); a("s_waitcnt lgkmcnt(0)"); dma(a, 0)
    rd_idx(a, 3); a("s_waitcnt lgkmcnt(0)"); dma(a, 1)
    rd_idx(a, 4)
    a(f"""ds_read_b32 v{QV[0]}, v{QB} offset:64
    ds_read_b32 v{QV[1]}, v{QB} offset:96
    ds_read2st64_b32 {vr(A2[0]+2,2)}, v{EB} offset0:2 offset1:2
    s_waitcnt lgkmcnt(0)
    v_add_u32 v{QV[0]}, v{QV[0]}, v{QST}
    v_add_u32 v{QV[1]}, v{QV[1]}, v{QST}
    s_waitcnt vmcnt(4)""")
    rd_rows(a, 0)
    a(f"ds_read_b64_tr_b16 {vr(B2R[0],2)}, v{QV[0]}\ns_waitcnt lgkmcnt(0)")
    a(mfma(D0, ALO, ID0, None)); a(mfma(D0, ALO+4, ID1, D0)); a(mfma(D0, A2[0], B2R[0], D0))
    dma(a, 0); rd_idx(a, 5)
    group(a, 1, tail=False)
    stamp(a, 8, ST)
    if OPT.get("stamp"): a(f"v_writelane_b32 v{ST}, s{S_N}, 30")
    a(f"s_cmp_eq_u32 s{S_SAFE}, 2\ns_cbranch_scc1 L2_loopS\ns_cmp_eq_u32 s{S_NO}, 0\ns_cbranch_scc1 L2_loopF")
    main_loops(a)
    a(f"""L2_end_odd:
    ds_read_b128 {vr(PP,4)}, v{PB}
    s_waitcnt lgkmcnt(0)""")
    a(mfma(S0, HQ0, PP, S0))
    a("L2_end_even:")
    a(mfma(S1, HQ1, PP, S1))
    a(f"""L2_done:
    s_waitcnt vmcnt(0)
    s_cmp_eq_u32 s{S_SLOW}, 0
    s_cbranch_scc1 L2_epi
    s_add_u32 s{S_BETA}, s{S_BETA}, 1
    s_lshr_b32 s{S_BASE}, s{S_BETA}, 1
    s_lshl_b32 s{S_BASE}, s{S_BASE}, {LSH}
    s_xor_b32 s{S_IMASK}, s{S_IMASK}, 15
    s_cmp_ge_u32 s{S_BASE}, s{S_MAXC}
    s_cbranch_scc1 L2_epi
    s_barrier
    s_branch L2_batch""")
    a(f"L2_epi:\ns_cmp_gt_u32 s{S_N0}, 4\ns_cbranch_scc1 L2_epi1")
    for k in range(4): w2chunk(a, k)
    a("s_waitcnt vmcnt(0)\nL2_epi1:")
    stamp(a, 9, ST)
    a(f"""v_and_b32 v2, 31, v{L}
    v_lshrrev_b32 v3, 5, v{L}
    s_mov_b32 s94, {NLN2}
    s_mov_b32 s95, {NLN2}
    v_bfe_u32 v5, v2, 1, 3
    v_lshlrev_b32 v5, 4, v5
    v_lshl_add_u32 v5, v2, 7, v5
    v_lshl_add_u32 v6, v3, 3, v5
    v_add_u32 v6, s{S_STG}, v6""")
    for u in range(8):
        a(f"""v_pk_mul_f32 {vr(S0+4*u,2)}, {vr(S0+4*u,2)}, s[94:95]
        v_pk_mul_f32 {vr(S0+4*u+2,2)}, {vr(S0+4*u+2,2)}, s[94:95]
        v_xor_b32 v{32+u}, {16*u}, v6
        v_cvt_pk_bf16_f32 v{16+2*u}, v{S0+4*u}, v{S0+4*u+1}
        v_cvt_pk_bf16_f32 v{17+2*u}, v{S0+4*u+2}, v{S0+4*u+3}
        ds_write_b64 v{32+u}, {vr(16+2*u,2)}""")
    a(f"""s_cmp_lg_u32 s3, 0
    s_cbranch_scc1 L2_e1
    v_cvt_f32_u32 v8, v{DEG}
    v_lshlrev_b32 v9, 2, v{L}
    s_mov_b32 exec_hi, 0
    ds_write_b32 v9, v8 offset:{L_DEG}
    s_mov_b32 exec_lo, 0xfffe0000
    s_mov_b32 exec_hi, 0x1ffff
    ds_write_b32 v9, v8 offset:{L_DEG+128-68}
    s_mov_b64 exec, -1
    L2_e1:
    v_lshlrev_b32 v7, 4, v3
    v_xor_b32 v5, v5, v7
    s_lshl_b32 s97, s{S_GRP}, 15
    s_add_u32 s97, s97, {L_STG}
    v_add_u32 v241, s97, v5
    v_xor_b32 v242, 32, v241
    v_xor_b32 v243, 64, v241
    v_xor_b32 v244, 96, v241
    s_lshl_b32 s97, s{S_GRP}, 7
    v_lshl_add_u32 v245, v3, 4, s97
    s_lshl_b32 s96, s{S_CG}, 7
    s_add_u32 s96, s96, {L_P-512}
    v_lshlrev_b32 v246, 11, v3
    v_lshl_add_u32 v246, v2, 2, v246
    v_add_u32 v246, s96, v246
    s_mul_i32 s96, s{S_GRP}, {17*256}
    s_lshl_b32 s97, s{S_CG}, 6
    s_add_u32 s96, s96, s97
    v_lshlrev_b32 v247, 10, v3
    v_lshl_add_u32 v247, v2, 1, v247
    v_add_u32 v247, s96, v247
    v_lshlrev_b32 v240, 16, v{B2V}
    s_sub_u32 s96, {N}, s{S_NEG}
    s_min_u32 s96, s96, {NPB}
    s_lshl_b32 s96, s96, 8
    s_lshl_b32 s97, s{S_NEG}, 8""")
    srd(a, 52, OUT, "s97", "s96")
    a("""s_mov_b32 s97, 4096
    s_waitcnt lgkmcnt(0)
    s_barrier""")
    for s in range(16): a(f"ds_read_b128 {vr(4*s,4)}, v{241+s%4} offset:{8192*(s//4)}")
    for jq in range(4): a(f"ds_read_b128 {vr(96+4*jq,4)}, v245 offset:{L_DEG+32*jq}")
    stamp(a, 10, ST)
    O = 64
    for s in range(16):
        a(f"s_waitcnt lgkmcnt({min(15, 19-s)})")
        a(mfma(O, 4*s, W2R+4*s, None if s == 0 else O))
    a(f"s_cmp_eq_u32 s{S_GRP}, 0\ns_cbranch_scc1 L2_e2")
    for j in range(8): a(f"ds_write_b32 v246, v{O+j} offset:{(8*(j//4)+j%4+1)*512}")
    a("""L2_e2:
    s_waitcnt lgkmcnt(0)
    s_barrier""")
    a(f"s_cmp_lg_u32 s{S_GRP}, 0\ns_cbranch_scc1 L2_e3")
    for j in range(8, 16): a(f"ds_read_b32 v{j}, v246 offset:{(8*(j//4)+j%4-16)*512}")
    a(f"""s_waitcnt lgkmcnt(0)
    s_mov_b32 exec_lo, 0
    v_add_f32 v{O+8}, v{O+8}, v8
    s_mov_b64 exec, -1""")
    for j in range(9, 16): a(f"v_add_f32 v{O+j}, v{O+j}, v{j}")
    a("L2_e3:")
    for j in range(16): a(f"v_fmac_f32 v{O+j}, v{96+j}, v240")
    for j in range(0, 16, 2): a(f"v_cvt_pk_bf16_f32 v{16+j//2}, v{O+j}, v{O+j+1}")
    def st(j):
        off = (8*(j//4) + j % 4)*256
        so = "0" if off < 4096 else "s97"
        return f"buffer_store_short{'_d16_hi' if j & 1 else ''} v{16+j//2}, v247, s[52:55], {so} offen offset:{off % 4096}"
    a(f"s_cmp_eq_u32 s{S_GRP}, 0\ns_cbranch_scc1 L2_e4\ns_mov_b32 exec_lo, 0")
    a(st(7)); a("s_mov_b64 exec, -1\ns_branch L2_e5\nL2_e4:")
    for j in range(8): a(st(j))
    a("L2_e5:")
    for j in range(8, 16): a(st(j))
    stamp_dump(a, ST, 0, 1)
    a("L2_exit2:\ns_endpgm")


HEAD = """; edge-featured MPNN: K1 = edge partition by dst bucket + node tables + operand prep ; K2 = gather / silu / segment-sum / final GEMM
; @launch kernel=k1_kernel grid=({g1},1,1) block=(512,1,1) lds={l1}
; @launch kernel=k2_kernel grid=({g2},1,1) block=(512,1,1) lds={l2}
.amdgcn_target "amdgcn-amd-amdhsa--gfx950"
.text
"""
KD = """.amdhsa_kernel {name}
  .amdhsa_next_free_vgpr {v}
  .amdhsa_next_free_sgpr 102
  .amdhsa_accum_offset {v}
  .amdhsa_group_segment_fixed_size 0
  .amdhsa_kernarg_size 88
  .amdhsa_user_sgpr_count 2
  .amdhsa_user_sgpr_kernarg_segment_ptr 1
  .amdhsa_system_sgpr_workgroup_id_x 1
.end_amdhsa_kernel
"""


def build():
    out = HEAD.format(g1=K1_GRID, l1=K1_LDS, g2=NB, l2=K2_LDS)
    for name, fn in (("k1_kernel", k1), ("k2_kernel", k2)):
        a = Asm(); fn(a)
        out += f".globl {name}\n.p2align 8\n.type {name},@function\n" + a.text(verbose=OPT.get("v", 0))
    out += '.section .rodata,"a"\n.p2align 6\n' + KD.format(name="k1_kernel", v=128) + ".p2align 6\n" + KD.format(name="k2_kernel", v=256)
    return out


if __name__ == "__main__":
    open(sys.argv[1], "w").write(build())
```

```python
import sys, struct
from asmlib import Asm, vr, sr

OPT = dict(prio=1, prio_at=32, pf=1, ept=4, smf=1)
for a_ in sys.argv[2:]:
    k_, v_ = a_.split("="); OPT[k_] = int(v_)

N, E = 12500, 400000
NPB, NB = 49, 256
EPT = OPT["ept"]
CE = 400*EPT; CH = E//CE
LPS = 2*EPT
LSH = {8: 3, 16: 4}[LPS]
SPLIT, HALF = OPT.get('split', 23), 6250
AROWS = 25088
REC = 13 << 20
OFF = 19 << 20
W2OP = 20 << 20
STAT = W2OP + 65536
MAXA = STAT + 4096
MAXE = MAXA + 1024
MAXW_G = MAXE + 1024
STAMPS = 24 << 20
NG = 208
K1_GRID = NG + 1 + CH
K1_LDS = 65536 + 64

def f2u(x): return struct.unpack("<I", struct.pack("<f", x))[0]
NLOG2E = f2u(-1.4426950408889634)
PLOG2E = NLOG2E ^ 0x80000000
NLN2 = f2u(-0.6931471805599453)
X, EA_, SRC, DST, W1, B1, W2, B2, OUT, DBG, WS = 4, 6, 8, 10, 12, 14, 16, 18, 20, 22, 24
SHR = ["row_shr:%d row_mask:0xf bank_mask:0xf bound_ctrl:0" % i for i in (1, 2, 4, 8)]
BC15, BC31 = "row_bcast:15 row_mask:0xa bank_mask:0xf", "row_bcast:31 row_mask:0xc bank_mask:0xf"


def srd(a, d, base, add, size, stride=0):
    if add is None:
        a(f"s_mov_b32 s{d}, s{base}\ns_mov_b32 s{d+1}, s{base+1}")
    else:
        a(f"s_add_u32 s{d}, s{base}, {add}\ns_addc_u32 s{d+1}, s{base+1}, 0")
    if stride: a(f"s_or_b32 s{d+1}, s{d+1}, {stride << 16}")
    a(f"s_mov_b32 s{d+2}, {size}\ns_mov_b32 s{d+3}, 0x00020000")


def ldargs(a):
    a("""s_load_dwordx16 s[4:19], s[0:1], 0
    s_load_dwordx4 s[20:23], s[0:1], 64
    s_load_dwordx2 s[24:25], s[0:1], 80""")


def dpp_red(a, op, vs, full=True):
    if isinstance(vs, int): vs = [vs]
    for m in SHR + [BC15] + ([BC31] if full else []):
        for v in vs: a(f"{op}_dpp v{v}, v{v}, v{v} {m}")


def stamp(a, k, reg):
    if not OPT.get("stamp"): return
    a(f"s_memrealtime s[100:101]\ns_waitcnt lgkmcnt(0)\nv_writelane_b32 v{reg}, s100, {k}")
    if k in (0, 7, 8, 9, 31): a(f"s_memtime s[100:101]\ns_waitcnt lgkmcnt(0)\nv_writelane_b32 v{reg}, s100, {32+k}")


def stamp_dump(a, reg, tmp, kern):
    if not OPT.get("stamp"): return
    a("s_mov_b64 exec, -1\ns_waitcnt vmcnt(0)")
    stamp(a, 31, reg)
    a(f"""s_lshl_b32 s96, s2, 3
    s_add_u32 s96, s96, s3
    s_lshl_b32 s96, s96, 8
    s_add_u32 s96, s96, {STAMPS + kern*(1 << 20)}""")
    srd(a, 44, WS, "s96", 256)
    a(f"""v_mbcnt_lo_u32_b32 v{tmp}, -1, 0
    v_mbcnt_hi_u32_b32 v{tmp}, -1, v{tmp}
    v_lshlrev_b32 v{tmp}, 2, v{tmp}
    buffer_store_dword v{reg}, v{tmp}, s[44:47], 0 offen""")


def smf(D, B): return f"v_smfmac_f32_32x32x32_bf16 {vr(D,16)}, {vr(ID0,4)}, {vr(B,8)}, v{ID1}"
def tmf(D, rows, a2, b2):
    if OPT["smf"]: return [mfma(D, a2, b2, None), smf(D, rows)]
    return [mfma(D, rows, ID0, None), mfma(D, rows+4, ID1, D), mfma(D, a2, b2, D)]
def code_pf(a, label, size, lane, tmp, junk, sr0):
    if not OPT.get("cpf", 1): return
    code_pf.n += 1
    a(f"""s_getpc_b64 s[{sr0}:{sr0+1}]
    L_pc{code_pf.n}:
    s_sub_u32 s{sr0}, s{sr0}, L_pc{code_pf.n}-{label}
    s_subb_u32 s{sr0+1}, s{sr0+1}, 0
    s_mov_b32 s{sr0+2}, {size}
    s_mov_b32 s{sr0+3}, 0x00020000
    s_lshl_b32 s99, s3, 11
    v_lshlrev_b32 v{tmp}, 7, v{lane}
    s_mov_b64 exec, 0xffff
    buffer_load_dword v{junk}, v{tmp}, s[{sr0}:{sr0+3}], s99 offen
    s_mov_b64 exec, -1""")
code_pf.n = 0
def lane63(a): a("s_mov_b32 exec_lo, 0\ns_mov_b32 exec_hi, 0x80000000")
def full(a): a("s_mov_b64 exec, -1")
def mfma(D, A, B, C): return f"v_mfma_f32_32x32x16_bf16 {vr(D,16)}, {vr(A,4)}, {vr(B,4)}, " + ("0" if C is None else vr(C, 16))


def k1(a):
    ST = 126
    a("k1_kernel:")
    a(f"s_cmp_ge_u32 s2, {K1_GRID}\ns_cbranch_scc1 L1_exit2")
    if OPT.get("stamp"): a(f"v_mov_b32 v{ST}, 0")
    stamp(a, 0, ST)
    ldargs(a)
    a(f"""v_and_b32 v1, 63, v0
    v_lshrrev_b32 v2, 6, v0
    s_nop 0
    v_readfirstlane_b32 s3, v2
    s_cmp_le_u32 s2, {NG}
    s_cbranch_scc1 L1_gemm
    s_sub_u32 s56, s2, {NG+1}""")
    G = EPT//4
    HIST, START, MAXW = 40960, 41984, 43008
    DV, SV, EV, AV, RV = 4, 12, 24, 40, 48
    a(f"""v_lshlrev_b32 v2, 2, v0
    v_mov_b32 v3, 0
    ds_write_b32 v2, v3 offset:{HIST}
    ds_write_b32 v2, v3 offset:{MAXW}
    v_mov_b32 v60, 0
    v_mov_b32 v61, 1
    s_mul_i32 s26, s56, {CE*4}
    s_add_u32 s27, s26, 6400
    s_mov_b32 s58, s26
    s_mov_b32 s59, s27
    s_lshl_b32 s52, s26, 1
    s_lshl_b32 s53, s27, 1
    v_lshlrev_b32 v3, 4, v0
    v_lshlrev_b32 v20, 5, v0
    v_cmp_gt_u32 vcc, 400, v0
    s_waitcnt lgkmcnt(0)""")
    stamp(a, 5, ST)
    srd(a, 28, DST, None, E*4); srd(a, 32, SRC, None, E*4); srd(a, 36, EA_, None, E*8)
    a("""s_and_saveexec_b64 s[54:55], vcc
    s_mov_b64 s[54:55], exec
    s_cbranch_execz L1_p1""")
    for g in range(G): a(f"buffer_load_dwordx4 {vr(DV+4*g,4)}, v3, s[28:31], s{26+g} offen nt")
    def late_loads():
        for g in range(G): a(f"buffer_load_dwordx4 {vr(SV+4*g,4)}, v3, s[32:35], s{58+g} offen nt")
        for g in range(G):
            a(f"buffer_load_dwordx4 {vr(EV+8*g,4)}, v20, s[36:39], s{52+g} offen nt")
            a(f"buffer_load_dwordx4 {vr(EV+8*g+4,4)}, v20, s[36:39], s{52+g} offen offset:16 nt")
    if not OPT.get("late", 1): late_loads()
    a(f"""L1_p1:
    s_mov_b64 exec, -1
    s_mul_i32 s26, s56, {CE*12}
    s_add_u32 s26, s26, {REC}""")
    srd(a, 40, WS, "s26", CE*12); srd(a, 44, WS, OFF, CH*1024); srd(a, 48, WS, MAXE, CH*4)
    a(f"""s_setprio 2
    s_barrier
    s_mov_b64 exec, s[54:55]
    s_cbranch_execz L1_p2
    s_waitcnt vmcnt({0 if OPT.get("late", 1) else 3*G})""")
    if OPT.get("late", 1): late_loads()
    stamp(a, 1, ST)
    for k in range(EPT):
        a(f"""v_mul_u32_u24 v21, 10700, v{DV+k}
        v_lshrrev_b32 v21, 19, v21
        v_lshlrev_b32 v{AV+k}, 2, v21
        ds_add_rtn_u32 v{RV+k}, v{AV+k}, v61 offset:{HIST}
        v_mul_u32_u24 v21, {NPB}, v21
        v_sub_u32 v{DV+k}, v{DV+k}, v21""")
    a(f"""L1_p2:
    s_mov_b64 exec, -1
    v_lshlrev_b32 v2, 4, v1
    s_waitcnt lgkmcnt(0)
    s_barrier""")
    stamp(a, 3, ST)
    a(f"""ds_read_b128 v[64:67], v2 offset:{HIST}
    s_waitcnt lgkmcnt(0)
    v_add_u32 v68, v64, v65
    v_add_u32 v69, v68, v66
    v_add_u32 v70, v69, v67
    v_mov_b32 v71, v70""")
    dpp_red(a, "v_add_u32", 71)
    a(f"""v_sub_u32 v56, v71, v70
    v_add_u32 v57, v56, v64
    v_add_u32 v58, v56, v68
    v_add_u32 v59, v56, v69
    ds_write_b128 v2, v[56:59] offset:{START}
    s_mov_b64 exec, s[54:55]
    s_cbranch_execz L1_p4""")
    for k in range(EPT): a(f"ds_read_b32 v{AV+k}, v{AV+k} offset:{START}")
    a(f"s_waitcnt vmcnt({2*G})")
    for k in range(EPT):
        a(f"""v_add_u32 v21, {16384-HALF}, v{SV+k}
        v_lshl_or_b32 v{SV+k}, v{DV+k}, 18, v{SV+k}
        v_lshrrev_b32 v21, 14, v21
        v_lshl_or_b32 v{SV+k}, v21, 24, v{SV+k}""")
    a("s_waitcnt vmcnt(0)")
    for k in range(EPT):
        a(f"""s_waitcnt lgkmcnt({EPT-1+k})
        v_add_u32 v{AV+k}, v{AV+k}, v{RV+k}
        v_mul_u32_u24 v{AV+k}, 12, v{AV+k}
        ds_write2_b32 v{AV+k}, v{EV+2*k}, v{EV+2*k+1} offset0:0 offset1:1
        ds_write_b32 v{AV+k}, v{SV+k} offset:8""")
    for k in range(EPT): a(f"v_dot2_f32_bf16 v{DV+k}, v{EV+2*k}, v{EV+2*k}, 0")
    for k in range(EPT): a(f"v_dot2_f32_bf16 v{DV+k}, v{EV+2*k+1}, v{EV+2*k+1}, v{DV+k}")
    a("s_nop 2")
    for k in range(0, EPT, 2): a(f"v_max3_u32 v60, v60, v{DV+k}, v{DV+k+1}")
    a("L1_p4:")
    full(a)
    dpp_red(a, "v_max_u32", 60)
    a("v_mov_b32 v62, 0")
    lane63(a); a(f"ds_max_u32 v62, v60 offset:{MAXW}"); full(a)
    stamp(a, 2, ST)
    a(f"""s_cmp_lg_u32 s3, 7
    s_cbranch_scc1 L1_p3
    v_lshl_or_b32 v64, v64, 16, v56
    v_lshl_or_b32 v65, v65, 16, v57
    v_lshl_or_b32 v66, v66, 16, v58
    v_lshl_or_b32 v67, v67, 16, v59
    v_mul_u32_u24 v2, {CH*16}, v1
    s_lshl_b32 s26, s56, 4
    buffer_store_dwordx4 v[64:67], v2, s[44:47], s26 offen sc1
    L1_p3:
    s_waitcnt lgkmcnt(0)
    s_barrier""")
    stamp(a, 4, ST)
    NO = -(-CE*12//8192)
    for i in range(NO): a(f"ds_read_b128 {vr(4+4*i,4)}, v3 offset:{8192*i}")
    a(f"ds_read_b32 v30, v62 offset:{MAXW}")
    for i in range(NO):
        a(f"s_mov_b32 s26, {8192*i}\ns_waitcnt lgkmcnt({NO-i})\nbuffer_store_dwordx4 {vr(4+4*i,4)}, v3, s[40:43], s26 offen sc1")
    a(f"""s_lshl_b32 s26, s56, 2
    v_cmp_eq_u32 vcc, 0, v0
    s_and_saveexec_b64 s[54:55], vcc
    s_cbranch_execz L1_exit
    s_waitcnt lgkmcnt(0)
    buffer_store_dword v30, v62, s[48:51], s26 offen sc1
    s_branch L1_exit""")

    WOP = 56
    a(f"""L1_gemm:
    s_cmp_eq_u32 s2, {NG}
    s_cbranch_scc1 L1_w2
    s_bfe_u32 s27, s2, 0x10003
    s_lshr_b32 s28, s2, 4
    s_lshl_b32 s28, s28, 3
    s_and_b32 s29, s2, 7
    s_add_u32 s28, s28, s29
    s_cmp_ge_u32 s28, 98
    s_cbranch_scc1 L1_exit2
    v_lshrrev_b32 v18, 4, v1
    v_and_b32 v19, 15, v1
    v_lshlrev_b32 v24, 2, v18
    v_xor_b32 v24, v24, v19
    v_lshlrev_b32 v24, 4, v24
    v_lshl_or_b32 v124, v18, 9, v24""")
    for ii in range(4):
        a(f"""v_add_u32 v20, {4*ii}, v18
        v_xor_b32 v20, v20, v19
        v_lshlrev_b32 v20, 4, v20
        v_lshl_or_b32 v{25+ii}, v18, 8, v20""")
    a(f"""v_mov_b32 v2, 0
    v_mov_b32 v3, 65536
    ds_write_b32 v3, v2
    s_lshl_b32 s43, s3, 13
    s_lshl_b32 s30, s27, 8
    s_add_u32 s43, s43, s30
    s_lshl_b32 s31, s3, 12
    s_lshl_b32 s29, s28, 15
    s_add_u32 s29, s29, s31
    s_add_u32 m0, s31, 32768
    s_and_b32 s40, s3, 1
    s_lshr_b32 s41, s3, 1
    v_and_b32 v7, 31, v1
    v_lshlrev_b32 v20, 1, v7
    s_lshl_b32 s42, s40, 7
    s_add_u32 s42, s42, s30
    s_waitcnt lgkmcnt(0)""")
    stamp(a, 5, ST)
    srd(a, 36, X, None, N*256)
    for ii in range(4):
        a(f"buffer_load_dwordx4 v{25+ii}, s[36:39], s29 offen nt lds")
        if ii < 3: a("s_add_u32 m0, m0, 1024\ns_add_u32 s29, s29, 1024")
    a("s_mov_b32 m0, s31")
    srd(a, 32, W1, None, 260*512)
    for ii in range(4):
        a(f"buffer_load_dwordx4 v124, s[32:35], s43 offen lds")
        a("s_add_u32 m0, m0, 1024\ns_add_u32 s43, s43, 2048")
    srd(a, 44, B1, None, 512)
    a(f"""buffer_load_ushort v122, v20, s[44:47], s42 offen
    buffer_load_ushort v123, v20, s[44:47], s42 offen offset:64
    s_add_u32 s43, s43, {128*512 - 8192}""")
    code_pf(a, "k1_kernel", "L1_exit2-k1_kernel", 1, 21, 22, 64)
    stamp(a, 6, ST)
    a(f"""v_bfe_u32 v18, v1, 2, 2
    v_lshrrev_b32 v6, 5, v1
    v_lshl_add_u32 v19, v6, 3, v18
    v_lshlrev_b32 v19, 8, v19
    v_bfe_u32 v20, v1, 4, 1
    v_lshlrev_b32 v20, 5, v20
    v_and_b32 v21, 3, v1
    v_lshl_add_u32 v20, v21, 3, v20
    v_add_u32 v19, v19, v20
    s_lshl_b32 s42, s40, 1
    v_xor_b32 v20, s42, v18
    v_lshl_add_u32 v120, v20, 6, v19
    v_xor_b32 v20, 1, v20
    v_lshl_add_u32 v121, v20, 6, v19
    s_lshl_b32 s42, s41, 5
    v_add_u32 v19, s42, v7
    v_lshlrev_b32 v19, 8, v19
    v_and_b32 v20, 15, v1
    v_xor_b32 v20, v20, v6
    v_lshl_add_u32 v104, v20, 4, v19
    v_add_u32 v104, 32768, v104""")
    for s in range(1, 8): a(f"v_xor_b32 v{104+s}, {32*s}, v104")
    srd(a, 44, WS, None, N*512); srd(a, 56, WS, N*512, N*512)
    a(f"""s_lshl_b32 s42, s28, 2
    s_add_u32 s42, s42, s41
    s_lshl_b32 s42, s42, 14
    s_lshl_b32 s48, s27, 1
    s_add_u32 s48, s48, s40
    s_lshl_b32 s48, s48, 7
    s_add_u32 s48, s42, s48
    s_add_u32 s30, s31, 32768
    v_lshlrev_b32 v4, 9, v6
    v_lshl_add_u32 v4, v7, 2, v4
    v_add_u32 v4, s30, v4
    v_lshl_add_u32 v6, v1, 4, s30
    v_lshrrev_b32 v7, 3, v1
    v_lshlrev_b32 v7, 9, v7
    v_and_b32 v18, 7, v1
    v_lshl_add_u32 v7, v18, 4, v7
    s_mov_b32 s52, {NLOG2E}
    s_mov_b32 s60, {PLOG2E}
    v_mov_b32 v5, 0
    v_mov_b32 v125, 0x80008000
    s_waitcnt vmcnt(0)
    s_barrier""")
    stamp(a, 1, ST)
    def wr(t, s):
        for hf in range(2):
            a(f"ds_read_b64_tr_b16 {vr(WOP+32*t+4*s+2*hf,2)}, v{120+t} offset:{4096*s+1024*hf}")
    GD0, GD1, CV, RB = 8, WOP, 72, 88
    for task in range(2):
        sc = (lambda r, b: f"v_mul_f32 v{r}, s52, v{r}") if task == 0 else (lambda r, b: f"v_fma_f32 v{r}, v{r}, s60, v{b}")
        per = 3 if task == 0 else 2
        ahead = 5 if task == 0 else 7
        def rd(s):
            if s < 8:
                if task == 0: a(f"ds_read_b128 {vr(24+4*s,4)}, v{104+s}")
                wr(0, s)
            else: wr(1, s-8)
        for s in range(ahead): rd(s)
        if task == 1:
            a("""v_lshlrev_b32 v122, 16, v122
            v_lshlrev_b32 v123, 16, v123
            v_mul_f32 v122, s60, v122
            v_mul_f32 v123, s60, v123""")
        cnt = lambda lo, hi: sum(per if q < 8 else 2 for q in range(lo, hi))
        for s in range(8):
            a(f"s_waitcnt lgkmcnt({cnt(s+1, s+ahead)})")
            a(mfma(GD0, 24+4*s, WOP+4*s, None if s == 0 else GD0))
            rd(s+ahead)
        for s in range(8+ahead, 16): rd(s)
        a("s_waitcnt lgkmcnt(0)")
        if task == 0:
            a("s_barrier\ns_mov_b32 m0, s31")
            stamp(a, 3, ST)
            for ii in range(4):
                a(f"buffer_load_dwordx4 v124, s[32:35], s43 offen lds")
                a("s_add_u32 m0, m0, 1024\ns_add_u32 s43, s43, 2048")
        for s in range(8):
            a(mfma(GD1, 24+4*s, WOP+32+4*s, None if s == 0 else GD1))
            if s >= 2:
                for j in range((s-2)*3, min(16, (s-1)*3)): a(sc(GD0+j, 122))
        for j in range(16):
            a(sc(GD1+j, 123))
            a(f"""v_cvt_pk_bf16_f32 v{CV+j}, v{GD0+j}, v{GD1+j}
            ds_write_b32 v4, v{CV+j} offset:{128*(8*(j//4)+j%4)}""")
        a("s_waitcnt lgkmcnt(0)")
        if task == 0: stamp(a, 4, ST)
        for i in range(4): a(f"ds_read_b128 {vr(RB+4*i,4)}, v6 offset:{1024*i}")
        for j in range(16): a(f"v_pk_max_i16 v5, v5, v{CV+j}" if task == 0 else f"v_pk_max_u16 v125, v125, v{CV+j}")
        for i in range(4):
            a(f"s_waitcnt lgkmcnt({3-i})\nbuffer_store_dwordx4 {vr(RB+4*i,4)}, v7, {sr(44 if task == 0 else 56, 4)}, s48 offen sc1")
            a("s_add_u32 s48, s48, 4096" if i < 3 else "s_sub_u32 s48, s48, 12288")
        if task == 0: a("s_waitcnt vmcnt(4)\ns_barrier")
    stamp(a, 2, ST)
    a("""v_and_b32 v125, 0x7fff7fff, v125
    v_pk_max_i16 v5, v5, v125
    v_lshlrev_b32 v6, 16, v5
    v_and_b32 v5, 0xffff0000, v5
    v_max_u32 v5, v5, v6""")
    dpp_red(a, "v_max_u32", 5)
    lane63(a); a("ds_max_u32 v3, v5"); full(a)
    srd(a, 44, WS, MAXA, 196*4)
    a(f"""s_lshl_b32 s26, s28, 1
    s_add_u32 s26, s26, s27
    s_lshl_b32 s26, s26, 2
    s_waitcnt lgkmcnt(0)
    s_barrier
    v_cmp_eq_u32 vcc, 0, v0
    s_and_saveexec_b64 s[54:55], vcc
    s_cbranch_execz L1_exit
    ds_read_b32 v6, v3
    s_waitcnt lgkmcnt(0)
    buffer_store_dword v6, v2, s[44:47], s26 offen sc1
    s_branch L1_exit""")
    a(f"""L1_w2:
    v_lshlrev_b32 v2, 4, v1
    s_lshl_b32 s29, s3, 13
    s_mov_b32 m0, s29
    v_mov_b32 v20, 0
    v_mov_b32 v21, 65536
    ds_write_b32 v21, v20
    v_and_b32 v11, 1, v1
    v_lshlrev_b32 v11, 5, v11
    v_bfe_u32 v12, v1, 1, 4
    v_add_u32 v11, v11, v12
    v_lshlrev_b32 v11, 1, v11
    v_lshrrev_b32 v12, 5, v1
    v_lshl_add_u32 v11, v12, 10, v11
    s_lshr_b32 s40, s3, 1
    s_lshl_b32 s40, s40, 7
    s_and_b32 s41, s3, 1
    s_lshl_b32 s41, s41, 5
    s_add_u32 s40, s40, s41
    s_add_u32 s40, s40, {256*512}
    s_waitcnt lgkmcnt(0)""")
    srd(a, 32, W2, None, 65536); srd(a, 36, W1, None, 260*512)
    a("""buffer_load_ushort v8, v11, s[36:39], s40 offen
    buffer_load_ushort v9, v11, s[36:39], s40 offen offset:512""")
    for ii in range(8):
        a("buffer_load_dwordx4 v2, s[32:35], s29 offen lds")
        if ii < 7: a("s_add_u32 m0, m0, 1024\ns_add_u32 s29, s29, 1024")
    a(f"""s_and_b32 s40, s3, 3
    s_lshr_b32 s41, s3, 2
    v_bfe_u32 v5, v1, 2, 1
    v_lshlrev_b32 v5, 5, v5
    v_bfe_u32 v6, v1, 3, 1
    v_add_u32 v5, v5, v6
    v_lshrrev_b32 v6, 5, v1
    v_lshl_add_u32 v5, v6, 2, v5
    v_lshlrev_b32 v5, 8, v5
    v_bfe_u32 v6, v1, 4, 1
    v_lshl_add_u32 v5, v6, 5, v5
    v_and_b32 v6, 3, v1
    v_lshl_add_u32 v5, v6, 3, v5
    s_lshl_b32 s42, s40, 6
    s_lshl_b32 s43, s41, 15
    s_add_u32 s42, s42, s43
    v_add_u32 v5, s42, v5
    s_lshl_b32 s43, s40, 14
    s_lshl_b32 s42, s41, 13
    s_add_u32 s43, s43, s42
    s_mov_b32 s52, {NLOG2E}
    s_lshl_b32 s42, s3, 9
    v_lshlrev_b32 v3, 3, v1""")
    srd(a, 44, WS, W2OP, 65536); srd(a, 48, WS, STAT, 4096); srd(a, 56, WS, MAXW_G, 4)
    a("""s_waitcnt vmcnt(8)
    v_lshlrev_b32 v8, 16, v8
    v_lshlrev_b32 v9, 16, v9
    v_mul_f32 v8, s52, v8
    v_mul_f32 v9, s52, v9
    v_cvt_pk_bf16_f32 v15, v8, v9
    v_mul_f32 v16, v8, v8
    v_fmac_f32 v16, v9, v9
    v_lshlrev_b32 v12, 16, v15
    v_and_b32 v13, 0xffff0000, v15
    v_sub_f32 v8, v8, v12
    v_sub_f32 v9, v9, v13
    v_cvt_pk_bf16_f32 v14, v8, v9
    buffer_store_dwordx2 v[14:15], v3, s[48:51], s42 offen sc1""")
    dpp_red(a, "v_max_u32", 16, full=False)
    a("""v_readlane_b32 s42, v16, 31
    v_add_f32 v16, s42, v16
    s_waitcnt vmcnt(0)
    s_barrier""")
    lane63(a); a("ds_max_u32 v21, v16"); full(a)
    for s in range(8):
        for hf in range(2):
            row = 64*(s//4) + 16*((s//2) % 2) + 8*(s % 2) + 2*hf
            a(f"ds_read_b64_tr_b16 {vr(WOP+4*s+2*hf,2)}, v5 offset:{256*row}")
    a("s_waitcnt lgkmcnt(0)\ns_barrier\nds_read_b32 v16, v21")
    for s in range(8):
        a(f"buffer_store_dwordx4 {vr(WOP+4*s,4)}, v2, s[44:47], s43 offen sc1\ns_add_u32 s43, s43, 1024")
    srd(a, 48, WS, MAXE + CH*4, 16)
    a("""v_lshlrev_b32 v17, 2, v1
    buffer_store_dword v20, v17, s[48:51], 0 offen sc1
    s_waitcnt lgkmcnt(0)
    buffer_store_dword v16, v3, s[56:59], 0 offen sc1
    L1_exit:""")
    stamp_dump(a, ST, 127, 0)
    a("L1_exit2:\ns_endpgm")


CAPT = 60
L_IDX, L_QA, L_TBL, L_CNT, L_MISC, L_DEG, L_EA, L_P = 256, 8448, 10496, 12544, 14592, 14656, 15104, 30464
L_BT = L_P + 31*1024
L_STG = 91136
BTP = 1152
L_NULL = L_BT + 24*BTP + 512
K2_LDS = L_STG + 65536
assert L_BT + 25*BTP <= L_STG
D0, D1, EE, TT, HQ0, HQ1, S0, S1 = 0, 16, 32, 48, 56, 60, 64, 80
ALO, AHI, ID0, ID1, A2, B2R, PP, IP = 96, (104, 112), 120, 124, (128, 132), (136, 140), 144, 148
QV, QST, RA, IB, EB, QB, PB = (156, 157), 158, 159, 163, 164, 165, 166
TID, LANE, DEG, VONE, ESIG, QOFF, L16 = 167, 168, 169, 170, 172, 173, 174
RECR, OFR, W2R, B2V = 0, 240, 176, 252
MASK = 56
S_BASE, S_LIM, S_IMASK, S_SLOW, S_N, S_T0, S_FIRST, S_BK, S_MAXC, S_SAFE, S_CUT, S_STG, S_BETA, S_NEG = range(80, 94)
S_CG, S_GRP, S_R2, S_N0, S_NO = 26, 27, 1, 0, 87


def valu_half(D, hq, mode, fill):
    L = [f"v_exp_f32 v{EE+j}, v{D+j}" for j in range(16)]
    p2 = lambda x: vr(x, 2)
    if mode == "o":
        L.insert(15, None)
        L[15] = f"v_pk_add_f32 {p2(TT)}, {p2(EE)}, 1.0 op_sel_hi:[1,0]"
        L[15], L[16] = L[16], L[15]
        for s in range(1, 8):
            n = D if s == 1 else TT+2
            L.append(f"v_pk_fma_f32 {p2(TT+2)}, {p2(n)}, {p2(EE+2*s)}, {p2(n)}")
            L.append(f"v_pk_fma_f32 {p2(TT+2)}, {p2(D+2*s)}, {p2(TT)}, {p2(TT+2)}")
            L.append(f"v_pk_fma_f32 {p2(TT)}, {p2(TT)}, {p2(EE+2*s)}, {p2(TT)}")
        u, nn, dd = L[-3:]
        L[-3:] = [f"v_pk_fma_f32 {p2(TT+4)}, {p2(TT)}, {p2(EE+14)}, {p2(TT)}", f"v_rcp_f32 v{TT+4}, v{TT+4}", f"v_rcp_f32 v{TT+5}, v{TT+5}", u, nn]
        L.append(f"v_pk_mul_f32 {p2(TT+2)}, {p2(TT+2)}, {p2(TT+4)}")
        L.append(f"v_cvt_pk_bf16_f32 v{hq}, v{TT+2}, v{TT+3}")
        return L + fill
    if mode == "q":
        for q in range(2): L.append(f"v_pk_add_f32 {p2(TT+4*q)}, {p2(EE+8*q)}, 1.0 op_sel_hi:[1,0]")
        for s in range(1, 4):
            for q in range(2):
                n = D+8*q if s == 1 else TT+4*q+2
                L.append(f"v_pk_fma_f32 {p2(TT+4*q+2)}, {p2(n)}, {p2(EE+8*q+2*s)}, {p2(n)}")
            for q in range(2):
                L.append(f"v_pk_fma_f32 {p2(TT+4*q+2)}, {p2(D+8*q+2*s)}, {p2(TT+4*q)}, {p2(TT+4*q+2)}")
            for q in range(2):
                L.append(f"v_pk_fma_f32 {p2(TT+4*q)}, {p2(TT+4*q)}, {p2(EE+8*q+2*s)}, {p2(TT+4*q)}")
        for q in range(2):
            for p in range(2): L.append(f"v_rcp_f32 v{TT+4*q+p}, v{TT+4*q+p}")
        for q in range(2): L.append(f"v_pk_mul_f32 {p2(TT+4*q+2)}, {p2(TT+4*q+2)}, {p2(TT+4*q)}")
    else:
        for j in range(0, 16, 2): L.append(f"v_pk_add_f32 {p2(EE+j)}, {p2(EE+j)}, 1.0 op_sel_hi:[1,0]")
        for j in range(16): L.append(f"v_rcp_f32 v{EE+j}, v{EE+j}")
        for q in range(2): L.append(f"v_pk_mul_f32 {p2(TT+4*q+2)}, {p2(D+8*q)}, {p2(EE+8*q)}")
        for s in range(1, 4):
            for q in range(2):
                L.append(f"v_pk_fma_f32 {p2(TT+4*q+2)}, {p2(D+8*q+2*s)}, {p2(EE+8*q+2*s)}, {p2(TT+4*q+2)}")
    for q in range(2): L.append(f"v_cvt_pk_bf16_f32 v{hq+q}, v{TT+4*q+2}, v{TT+4*q+3}")
    return L + fill


def weave(V, M, pos):
    out = []
    for i, x in enumerate(V):
        out += [m for m, p in zip(M, pos) if p == i]
        out.append(x)
    return out


def incs(k): return [f"v_add_u32 v{IB}, {128*k}, v{IB}", f"v_add_u32 v{EB}, {256*k}, v{EB}", f"v_add_u32 v{QB}, {32*k}, v{QB}"]


def block(a, t, mode):
    par = t & 1
    last = 3 if mode == "o" else 1
    M1 = tmf(D1, AHI[par], A2[par], B2R[1])
    if t == 0: M1.append(mfma(S1, HQ1, PP, S1))
    M2 = tmf(D0, ALO, A2[par ^ 1], B2R[0])
    if t == last: M2.append(mfma(S0, HQ0, PP, S0))
    pos = [1, 4, 7, 10]
    extra = [f"v_add_u32 v{QV[par]}, v{QV[par]}, v{QST}"]
    if t == 0: extra.append(f"v_add_u32 v{PB}, 1024, v{PB}")
    if mode == "o" and t == 2: extra += incs(4)
    if mode != "o" and t == 0: extra += incs(2)
    k = t if mode == "o" else 2*t
    L = weave(valu_half(D0, HQ0+k, mode, extra), M1, pos) + weave(valu_half(D1, HQ1+k, mode, []), M2, pos)
    if OPT["prio"]:
        L.insert(OPT["prio_at"], "s_setprio 1"); L.append("s_setprio 0")
    a("\n".join(L))


def dma(a, par):
    a(f"s_add_u32 m0, s{S_STG}, {4096*par}")
    for u in range(4):
        a(f"buffer_load_dwordx4 {vr(IP+2*u,2)}, s[36:39], 0 idxen offen lds")
        if u < 3: a("s_add_u32 m0, m0, 1024")


def rd_idx(a, t):
    for u in range(4): a(f"ds_read_b32 v{IP+2*u}, v{IB} offset:{128*t+32*u}")


def rd_rows(a, par):
    if OPT["smf"]:
        for c in range(2):
            for gi in range(4):
                a(f"ds_read_b64_tr_b16 {vr((ALO, AHI[par])[c]+2*gi,2)}, v{RA+c} offset:{4096*par+512*gi}")
        return
    for s in range(4):
        d = ALO+4*s if s < 2 else AHI[par]+4*(s-2)
        a(f"ds_read_b128 {vr(d,4)}, v{RA+s} offset:{4096*par}")


def w2chunk(a, k):
    a(f"s_lshl_b32 s96, s{S_CG}, 14\ns_add_u32 s96, s96, {4096*k}")
    for q in range(4): a(f"buffer_load_dwordx4 {vr(W2R+16*k+4*q,4)}, v{L16}, s[44:47], s96 offen offset:{1024*q}")
    if k == 0: a(f"s_lshl_b32 s96, s{S_CG}, 6\nbuffer_load_ushort v{B2V}, v175, s[48:51], s96 offen")


def group(a, par, sh=0, rdp=False, tail=True):
    a("s_waitcnt vmcnt(4)")
    rd_rows(a, par)
    a(f"ds_read_b64_tr_b16 {vr(B2R[1],2)}, v{QV[par^1]} offset:64")
    a(f"ds_read_b64_tr_b16 {vr(B2R[0],2)}, v{QV[par]}")
    a(f"ds_read2st64_b32 {vr(A2[par]+2,2)}, v{EB} offset0:{2+par+sh} offset1:{2+par+sh}")
    if rdp: a(f"ds_read_b128 {vr(PP,4)}, v{PB}")
    a(f"s_cmp_gt_u32 s{S_N}, 3\ns_cselect_b32 s38, {0 if OPT.get('nodma') else AROWS}, 0")
    if tail:
        group.n += 1
        a(f"s_cmp_gt_u32 s{S_N}, 4\ns_cbranch_scc1 L2_tr{group.n}\ns_call_b64 s[98:99], L2_w2stub\nL2_tr{group.n}:")
    a(f"s_waitcnt lgkmcnt({4 if rdp else 3})")
    dma(a, par)
    rd_idx(a, 5+par+sh)
    a(f"ds_read_b32 v{QV[par^1]}, v{QB} offset:{32*(3+par+sh)}")
    a("s_waitcnt lgkmcnt(0)")
group.n = 0


def dec(a, tgt): a(f"s_sub_u32 s{S_N}, s{S_N}, 1\ns_cmp_eq_u32 s{S_N}, 0\ns_cbranch_scc1 {tgt}")


def main_loops(a):
    a("L2_loopO:")
    block(a, 0, "o"); a(f"s_sub_u32 s{S_N}, s{S_N}, 1"); group(a, 0, 2, True)
    block(a, 1, "o"); dec(a, "L2_end_odd"); group(a, 1, 2)
    a(f"s_cmp_eq_u32 s{S_NO}, 2\ns_cbranch_scc1 L2_half")
    block(a, 2, "o"); a(f"s_sub_u32 s{S_N}, s{S_N}, 1"); group(a, 0)
    block(a, 3, "o"); dec(a, "L2_end_even"); group(a, 1)
    a(f"s_sub_u32 s{S_NO}, s{S_NO}, 4\ns_cmp_lg_u32 s{S_NO}, 0\ns_cbranch_scc1 L2_loopO\ns_branch L2_loopF\nL2_half:")
    a(mfma(S0, HQ0, PP, S0)); a("\n".join(incs(2)))
    for tag, mode in (("F", "q"), ("S", "s")):
        a(f"L2_loop{tag}:")
        block(a, 0, mode); dec(a, "L2_end_odd"); group(a, 0, 0, True)
        block(a, 1, mode); dec(a, "L2_end_even"); group(a, 1)
        a(f"s_branch L2_loop{tag}")
    a("L2_w2stub:")
    for k in range(4):
        if k < 3: a(f"s_cmp_lg_u32 s{S_N}, {4-k}\ns_cbranch_scc1 L2_st{k}")
        w2chunk(a, k)
        a("s_setpc_b64 s[98:99]")
        if k < 3: a(f"L2_st{k}:")


def k2(a):
    ST = 253
    L = LANE
    PF = OPT["pf"]
    a("k2_kernel:")
    a(f"s_cmp_ge_u32 s2, {NB}\ns_cbranch_scc1 L2_exit2")
    if OPT.get("stamp"): a(f"v_mov_b32 v{ST}, 0")
    stamp(a, 0, ST)
    ldargs(a)
    a(f"""v_mov_b32 v{TID}, v0
    v_and_b32 v{L}, 63, v0
    v_lshrrev_b32 v2, 6, v0
    v_mov_b32 v{DEG}, 0
    v_readfirstlane_b32 s3, v2
    v_mov_b32 v{VONE}, 1
    s_and_b32 s{S_BK}, s2, 7
    s_lshl_b32 s{S_BK}, s{S_BK}, 5
    s_lshr_b32 s28, s2, 3
    s_add_u32 s{S_BK}, s{S_BK}, s28
    s_mul_i32 s{S_NEG}, s{S_BK}, {NPB}
    v_lshrrev_b32 v8, {LSH}, v0
    s_and_b32 s28, s{S_BK}, 3
    s_lshl_b32 s28, s28, 2
    v_lshl_add_u32 v9, v8, 4, s28
    s_lshr_b32 s96, s{S_BK}, 2
    s_mul_i32 s96, s96, {CH*16}
    s_add_u32 s96, s96, {OFF}
    s_mov_b32 s{S_BASE}, 0
    s_mov_b32 s{S_LIM}, {3*LPS}
    s_mov_b32 s{S_IMASK}, 15
    s_mov_b32 s{S_SLOW}, 0
    s_mov_b32 s{S_FIRST}, 1
    s_mov_b32 s{S_BETA}, 0
    s_and_b32 s{S_CG}, s3, 3
    s_lshr_b32 s{S_GRP}, s3, 2
    s_lshl_b32 s{S_STG}, s3, 13
    s_add_u32 s{S_STG}, s{S_STG}, {L_STG}
    v_lshlrev_b32 v{L16}, 4, v{L}
    v_mov_b32 v{IP+1}, 0
    v_mov_b32 v{IP+3}, 0
    v_mov_b32 v{IP+5}, 0
    v_mov_b32 v{IP+7}, 0
    v_mov_b32 v175, 0
    s_waitcnt lgkmcnt(0)""")
    stamp(a, 11, ST)
    srd(a, 28, WS, "s96", CH*16)
    for i in range(4): a(f"buffer_load_dword v{OFR+i}, v9, s[28:31], 0 offen offset:{(8192 >> LSH)*i}")
    code_pf(a, "k2_kernel", "L2_exit2-k2_kernel", L, 10, 255, 40)
    srd(a, 32, WS, REC, CH*CE*12); srd(a, 36, WS, None, AROWS, stride=512)
    NZ = (L_BT - L_CNT)//16
    a(f"""s_cmp_lg_u32 s{S_GRP}, 0
    s_cbranch_scc1 L2_b2
    L2_batch:
    v_and_b32 v112, {LPS-1}, v{L}
    v_add_u32 v112, s{S_BASE}, v112
    s_add_u32 s96, s{S_BASE}, s{S_LIM}
    v_lshrrev_b32 v113, {LSH}, v{TID}
    v_mul_u32_u24 v113, {CE*12}, v113""")
    stamp(a, 12, ST)
    a(f"s_waitcnt vmcnt({1 if OPT.get('cpf', 1) else 0})")
    stamp(a, 1, ST)
    for i in range(4):
        a(f"""v_lshrrev_b32 v{104+i}, 16, v{OFR+i}
        s_bitcmp1_b32 s{S_IMASK}, {i}
        s_cselect_b32 s98, s96, 0
        v_min_u32 v{104+i}, s98, v{104+i}
        v_and_b32 v114, 0xffff, v{OFR+i}
        v_add_u32 v114, v114, v112
        v_mad_u32_u24 v{108+i}, v114, 12, v113""")
        if i < 3: a(f"v_add_u32 v113, {(512 >> LSH)*CE*12}, v113")
    for rnd in range(3):
        if rnd: a(f"v_add_u32 v112, {LPS}, v112")
        for i in range(4): a(f"v_cmp_lt_u32 {sr(MASK+2*(4*rnd+i),2)}, v112, v{104+i}")
        if rnd == 2:
            a(f"""s_or_b64 s[96:97], {sr(MASK+16,2)}, {sr(MASK+18,2)}
            s_or_b64 s[98:99], {sr(MASK+20,2)}, {sr(MASK+22,2)}
            s_or_b64 s[96:97], s[96:97], s[98:99]
            s_cselect_b32 s{S_R2}, 1, 0
            s_cbranch_scc0 L2_r11""")
        for i in range(4):
            k = 4*rnd + i
            a(f"""s_mov_b64 exec, {sr(MASK+2*k,2)}
            s_cbranch_execz L2_r{k}
            buffer_load_dwordx3 {vr(RECR+4*k,3)}, v{108+i}, s[32:35], 0 offen offset:{12*LPS*rnd}
            L2_r{k}:""")
        full(a)
    a(f"s_cmp_eq_u32 s{S_FIRST}, 0\ns_cbranch_scc1 L2_b2")
    a(f"""v_lshrrev_b32 v104, 16, v{OFR}
    v_lshrrev_b32 v105, 16, v{OFR+1}
    v_lshrrev_b32 v106, 16, v{OFR+2}
    v_lshrrev_b32 v107, 16, v{OFR+3}
    v_max3_u32 v104, v104, v105, v106
    v_max_u32 v254, v104, v107""")
    a(f"""s_add_u32 s95, s{S_NEG}, {N}
    s_lshl_b32 s95, s95, 9
    s_mul_i32 s96, s3, {BTP}
    s_add_u32 m0, s96, {L_BT}
    s_lshl_b32 s94, s3, 10
    s_lshl_b32 s96, s{S_CG}, 10
    v_lshlrev_b32 v115, 3, v{L}""")
    srd(a, 40, WS, "s95", NPB*512); srd(a, 44, WS, STAT, 4096)
    for q in range(3):
        a(f"buffer_load_dwordx4 v{L16}, s[40:43], s94 offen lds")
        a(f"s_add_u32 m0, m0, {8*BTP}\ns_add_u32 s94, s94, 8192")
    a(f"""buffer_load_dwordx2 {vr(B2R[0]+2,2)}, v115, s[44:47], s96 offen
    buffer_load_dwordx2 {vr(B2R[1]+2,2)}, v115, s[44:47], s96 offen offset:512
    s_cmp_eq_u32 s3, 0
    s_cbranch_scc0 L2_b3
    buffer_load_dwordx4 v{L16}, s[40:43], s94 offen lds
    L2_b3:
    s_cmp_eq_u32 s3, 7
    s_cbranch_scc0 L2_b4""")
    srd(a, 44, WS, MAXA, 196*4); srd(a, 48, WS, MAXE, (CH*4+15)//16*16); srd(a, 52, WS, MAXW_G, 4)
    a(f"""v_mov_b32 v116, 0
    buffer_load_dwordx4 v[244:247], v{L16}, s[44:47], 0 offen
    buffer_load_dwordx4 v[248:251], v{L16}, s[48:51], 0 offen
    buffer_load_dword v171, v116, s[52:55], 0 offen
    L2_b4:
    s_cmp_eq_u32 s{S_GRP}, 0
    s_cbranch_scc1 L2_b2""")
    PFE = OPT.get("pfe", 0)
    if PFE:
        srd(a, 44, WS, None, N*512)
        a(f"""s_lshr_b32 s96, s2, 3
        s_lshl_b32 s96, s96, 2
        s_add_u32 s96, s96, s{S_CG}
        s_mul_i32 s96, s96, {PFE*8192}
        v_lshlrev_b32 v116, 7, v{L}""")
        for q in range(PFE):
            a(f"buffer_load_dword v255, v116, s[44:47], s96 offen")
            if q < PFE-1: a("s_add_u32 s96, s96, 8192")
    a("""s_branch L2_wrec
    L2_b2:""")
    a(f"v_lshlrev_b32 v104, 4, v{TID}")
    for j in range(4): a(f"v_mov_b32 v{96+j}, -1\nv_mov_b32 v{100+j}, 0")
    a(f"ds_write_b128 v104, v[96:99] offset:{L_IDX}")
    for i in range(6): a(f"ds_write_b128 v104, v[100:103] offset:{L_CNT + 8192*i}")
    a(f"""v_cmp_gt_u32 vcc, {NZ - 3072}, v{TID}
    v_mov_b32 v96, {L_NULL}
    v_mov_b32 v97, {L_NULL}
    s_and_b64 exec, exec, vcc
    ds_write_b128 v104, v[100:103] offset:{L_CNT + 8192*6}
    s_mov_b64 exec, -1
    v_cmp_gt_u32 vcc, 128, v{TID}
    v_mov_b32 v98, {L_NULL}
    v_mov_b32 v99, {L_NULL}
    s_and_b64 exec, exec, vcc
    ds_write_b128 v104, v[96:99] offset:{L_QA}
    s_mov_b64 exec, -1
""")
    a(f"""s_cmp_eq_u32 s{S_FIRST}, 0
    s_cbranch_scc1 L2_rank0""")
    n_, h_, one, t0, t1, t2, t3, t4, t5 = 96, 97, 98, 99, 100, 101, 102, 103, 104
    for j in range(32): a(f"v_mov_b32 v{S0+j}, 0")
    a(f"""v_and_b32 v{n_}, 31, v{L}
    v_lshrrev_b32 v{h_}, 5, v{L}
    v_and_b32 v{t0}, 1, v{L}
    v_lshlrev_b32 v{t0}, 4, v{t0}
    v_mov_b32 v{one}, 0x3f80
    v_lshlrev_b32 v{one}, v{t0}, v{one}
    v_lshrrev_b32 v{t0}, 1, v{n_}
    v_lshlrev_b32 v{t1}, 2, v{h_}
    v_sub_u32 v{t0}, v{t0}, v{t1}
    v_lshlrev_b32 v175, 1, v{n_}""")
    if not OPT['smf']:
        for q in range(8):
            a(f"v_cmp_eq_u32 {sr(94+2*(q%3),2)}, {8*(q//4) + q%4}, v{t0}")
            if q >= 1: a(f"v_cndmask_b32 v{ID0+q-1}, 0, v{one}, {sr(94+2*((q-1)%3),2)}")
        a(f"v_cndmask_b32 v{ID0+7}, 0, v{one}, {sr(94+2*(7%3),2)}")
    a(f"""v_bfe_u32 v{t1}, v{n_}, 2, 1
    v_lshrrev_b32 v{t2}, 4, v{n_}
    v_and_b32 v{t3}, 1, v{n_}
    v_xor_b32 v{t4}, v{t1}, v{h_}
    v_lshl_or_b32 v{t4}, v{t4}, 1, v{t3}
    v_cmp_eq_u32 s[94:95], 0, v{t4}
    v_cmp_eq_u32 s[96:97], 1, v{t4}
    v_lshlrev_b32 v{t4}, 4, v{t2}
    v_mov_b32 v{one}, 0xbf80
    v_lshlrev_b32 v{one}, v{t4}, v{one}
    v_cndmask_b32 v{A2[0]}, 0, v{one}, s[94:95]
    v_cndmask_b32 v{A2[0]+1}, 0, v{one}, s[96:97]
    v_cndmask_b32 v{A2[1]}, 0, v{one}, s[94:95]
    v_cndmask_b32 v{A2[1]+1}, 0, v{one}, s[96:97]
    v_lshlrev_b32 v{t1}, 4, v{t1}
    v_lshl_or_b32 v{t1}, v{t3}, 3, v{t1}
    v_lshl_or_b32 v{t1}, v{t2}, 2, v{t1}
    v_bfe_u32 v{t4}, v{n_}, 3, 1
    v_lshl_or_b32 v{t1}, v{t4}, 1, v{t1}
    v_bfe_u32 v{t5}, v{n_}, 1, 1
    v_or_b32 v{t1}, v{t1}, v{t5}
    v_lshlrev_b32 v{ESIG}, 3, v{t1}
    v_lshl_add_u32 v{ESIG}, v{h_}, 2, v{ESIG}""")
    if OPT["smf"]:
        a(f"""v_lshrrev_b32 v{t2}, 4, v{t1}
        v_bfe_u32 v{t3}, v{t1}, 2, 1
        v_lshl_or_b32 v{t2}, v{t2}, 1, v{t3}
        v_and_b32 v{t3}, 3, v{t1}
        v_lshlrev_b32 v{t4}, 2, v{t2}
        v_lshlrev_b32 v{ID1}, v{t4}, v{t3}
        v_bfe_u32 v{t3}, v{t1}, 3, 1
        v_xor_b32 v{t3}, v{t3}, v{h_}
        v_lshl_or_b32 v{t2}, v{t3}, 2, v{t2}
        v_mov_b32 v{one}, 0x3f80""")
        for q in range(4): a(f"v_cmp_eq_u32 {sr(56+0,2) if False else sr(94+2*(q%3),2)}, {q}, v{t2}" + (f"\nv_cndmask_b32 v{ID0+q-1}, 0, v{one}, {sr(94+2*((q-1)%3),2)}" if q else "\ns_nop 0"))
        a(f"""v_bfe_u32 v{t1}, v{L}, 2, 2
        v_cndmask_b32 v{ID0+3}, 0, v{one}, {sr(94,2)}
        v_lshl_add_u32 v{t2}, v{h_}, 4, v{t1}
        v_lshlrev_b32 v{t2}, 7, v{t2}
        v_lshrrev_b32 v{t1}, 1, v{t1}
        v_lshl_add_u32 v{t2}, v{t1}, 6, v{t2}
        v_bfe_u32 v{t1}, v{L}, 4, 1
        v_lshl_add_u32 v{t2}, v{t1}, 5, v{t2}
        v_and_b32 v{t3}, 3, v{L}
        v_lshl_add_u32 v{t2}, v{t3}, 3, v{t2}
        v_add_u32 v{RA}, s{S_STG}, v{t2}
        v_xor_b32 v{RA+1}, 64, v{RA}
        v_lshlrev_b32 v{t2}, 2, v{t1}""")
    else:
        a(f"""v_bfe_u32 v{t3}, v{t1}, 1, 3
        v_xor_b32 v{t3}, v{t3}, v{h_}
        v_lshlrev_b32 v{t3}, 4, v{t3}
        v_lshl_add_u32 v{t3}, v{t1}, 7, v{t3}
        v_add_u32 v{RA}, s{S_STG}, v{t3}""")
        for s in range(1, 4): a(f"v_xor_b32 v{RA+s}, {32*s}, v{RA}")
        a(f"v_lshrrev_b32 v{t2}, 4, v{L}")
    a(f"""v_and_b32 v{t3}, 7, v{L}
    v_xor_b32 v{t2}, v{t2}, v{t3}
    s_lshl_b32 s96, s{S_CG}, 7
    v_lshl_add_u32 v{IP+1}, v{t2}, 4, s96
    v_xor_b32 v{IP+3}, {0 if OPT['smf'] else 64}, v{IP+1}
    v_mov_b32 v{IP+5}, v{IP+1}
    v_mov_b32 v{IP+7}, v{IP+3}
    v_bfe_u32 v{t1}, v{L}, 4, 1
    v_lshlrev_b32 v{t1}, 5, v{t1}
    v_and_b32 v{t3}, 3, v{L}
    v_lshl_add_u32 v{t1}, v{t3}, 3, v{t1}
    v_add_u32 v{QST}, s96, v{t1}
    v_bfe_u32 v{t1}, v{L}, 2, 2
    v_lshl_add_u32 v{QOFF}, v{h_}, 2, v{t1}
    v_lshlrev_b32 v{QOFF}, 2, v{QOFF}
    s_cmp_lg_u32 s{S_GRP}, 0
    s_cbranch_scc1 L2_batch
    L2_wrec:""")
    dpp_red(a, "v_max_u32", 254)
    stamp(a, 3, ST)
    a(f"""s_waitcnt vmcnt({8+PFE})
    s_cmp_eq_u32 s3, 7
    s_cbranch_scc1 L2_rank2
    s_waitcnt vmcnt({max(6, 5+PFE)})
    s_cmp_eq_u32 s3, 0
    s_cbranch_scc1 L2_rk6
    s_waitcnt vmcnt({5+PFE})
    s_cmp_lg_u32 s{S_GRP}, 0
    s_cbranch_scc1 L2_rank2
    s_waitcnt vmcnt(5)
    s_branch L2_rank2
    L2_rk6:
    s_waitcnt vmcnt(6)
    s_branch L2_rank2
    L2_rank0:
    s_waitcnt vmcnt(0)
    L2_rank2:
    s_waitcnt lgkmcnt(0)
    s_barrier""")
    stamp(a, 5, ST)
    RK = 96
    for k in range(12):
        if k == 8: a(f"s_cmp_eq_u32 s{S_R2}, 0\ns_cbranch_scc1 L2_k12")
        a(f"""s_mov_b64 exec, {sr(MASK+2*k,2)}
        v_lshrrev_b32 v{RK+k}, 14, v{RECR+4*k+2}
        ds_add_rtn_u32 v{RECR+4*k+3}, v{RK+k}, v{VONE} offset:{L_CNT}""")
    a(f"""L2_k12:
    s_mov_b64 exec, -1
    v_mov_b32 v63, 0
    s_cmp_eq_u32 s{S_FIRST}, 0
    s_cbranch_scc1 L2_k13
    s_mov_b32 exec_lo, 0
    s_mov_b32 exec_hi, 0x80000000
    ds_max_u32 v63, v254 offset:{L_MISC+4}
    s_mov_b64 exec, -1
    s_cmp_eq_u32 s3, 7
    s_cbranch_scc0 L2_k14
    s_waitcnt vmcnt({PFE})
    v_max3_u32 v244, v244, v245, v246
    v_max3_u32 v248, v248, v249, v250
    v_max_u32 v244, v244, v247
    v_max_u32 v248, v248, v251""")
    dpp_red(a, "v_max_u32", [244, 248])
    a(f"""v_mul_f32 v171, v171, v248
    v_sqrt_f32 v171, v171
    v_mov_b32 v54, 0x41f00000
    v_fma_f32 v171, v244, 2.0, v171
    v_mov_b32 v55, 0x41780000
    v_cmp_nlt_f32 vcc, v171, v54
    v_cmp_nlt_f32 s[94:95], v171, v55
    v_cndmask_b32 v54, 0, v{VONE}, vcc
    v_cndmask_b32 v55, 0, v{VONE}, s[94:95]
    v_add_u32 v171, v54, v55""")
    lane63(a); a(f"ds_write_b32 v63, v171 offset:{L_MISC}"); full(a)
    a("L2_k14:")
    if PF:
        srd(a, 44, WS, None, N*512)
        a(f"""s_lshr_b32 s96, s2, 3
        s_lshl_b32 s96, s96, 3
        s_add_u32 s96, s96, s3
        s_mul_i32 s96, s96, {PF*8192}
        v_lshlrev_b32 v48, 7, v{L}""")
        for q in range(PF):
            a(f"buffer_load_dword v255, v48, s[44:47], s96 offen")
            if q < PF-1: a("s_add_u32 s96, s96, 8192")
    CL, CU, C_, PC, O1, O2, R3 = 48, 49, 50, 51, 52, 53, 54
    I1, I2, I3 = 56, 57, 58
    TL, TH = 108, 112
    HM = (0xffffffff << SPLIT) & 0xffffffff
    a(f"""L2_k13:
    s_waitcnt lgkmcnt(0)
    s_barrier
    ds_read_b32 v{CL}, v{L16} offset:{L_CNT}
    ds_read_b32 v{CU}, v{L16} offset:{L_CNT+1024}
    ds_read_b64 v[60:61], v63 offset:{L_MISC}
    s_waitcnt lgkmcnt(1)
    v_add_u32 v{C_}, v{CL}, v{CU}
    v_and_b32 v{O1}, -8, v{CL}
    v_add_u32 v{PC}, 3, v{C_}
    v_mov_b32 v{I1}, v{O1}
    v_and_b32 v{PC}, -4, v{PC}
    v_sub_u32 v{R3}, v{PC}, v{O1}
    v_and_b32 v{O2}, -8, v{R3}
    v_and_b32 v{R3}, 4, v{R3}
    v_mov_b32 v{I2}, v{O2}
    v_mov_b32 v{I3}, v{R3}""")
    dpp_red(a, "v_add_u32", [I1, I2, I3])
    a(f"""v_readlane_b32 s94, v{I1}, 63
    v_readlane_b32 s95, v{I2}, 63
    v_readlane_b32 s96, v{I3}, 63
    v_readlane_b32 s97, v{I1}, {SPLIT-1}
    v_readlane_b32 s98, v{I2}, {SPLIT-1}
    v_readlane_b32 s99, v{I3}, {SPLIT-1}
    v_readlane_b32 s28, v{I1}, 31
    v_sub_u32 v{I1}, v{I1}, v{O1}
    v_sub_u32 v{I2}, v{I2}, v{O2}
    v_sub_u32 v{I3}, v{I3}, v{R3}
    s_cmp_eq_u32 s{S_FIRST}, 0
    s_cbranch_scc1 L2_s1
    s_waitcnt lgkmcnt(0)
    v_readfirstlane_b32 s{S_MAXC}, v61
    v_readfirstlane_b32 s{S_SAFE}, v60
    s_mov_b32 s{S_FIRST}, 0
    L2_s1:
    s_sub_u32 s94, s94, s97
    s_sub_u32 s95, s95, s98
    s_sub_u32 s96, s96, s99
    s_add_u32 s29, s97, s98
    s_add_u32 s30, s29, s99
    s_add_u32 s30, s30, 7
    s_and_b32 s30, s30, -8
    s_sub_u32 s31, s30, s97
    s_add_u32 s28, s28, s31
    s_add_u32 s40, s30, s94
    s_add_u32 s41, s40, s95
    s_add_u32 s42, s41, s96
    s_add_u32 s{S_CUT}, s42, 63
    s_lshr_b32 s{S_CUT}, s{S_CUT}, 6
    s_add_u32 s43, s30, 31
    s_lshr_b32 s43, s43, 5
    s_max_u32 s{S_CUT}, s{S_CUT}, s43
    s_add_u32 s43, s28, 31
    s_lshr_b32 s43, s43, 5
    s_min_u32 s{S_CUT}, s{S_CUT}, s43
    s_lshl_b32 s43, s{S_CUT}, 5
    s_max_u32 s43, s43, s28
    s_sub_u32 s43, s43, s28
    s_add_u32 s40, s40, s43
    s_add_u32 s41, s41, s43
    s_add_u32 s42, s42, s43
    s_sub_u32 s40, s40, s98
    s_sub_u32 s52, s41, s99
    s_mov_b32 exec_lo, {HM ^ 0xffffffff}
    s_mov_b32 exec_hi, 0
    v_add_u32 v{I2}, s97, v{I2}
    v_add_u32 v{I3}, s29, v{I3}
    s_mov_b32 exec_lo, {HM}
    s_mov_b32 exec_hi, -1
    v_add_u32 v{I1}, s31, v{I1}
    v_add_u32 v{I2}, s40, v{I2}
    v_add_u32 v{I3}, s52, v{I3}
    s_mov_b32 exec_lo, 0
    v_add_u32 v{I1}, s43, v{I1}
    s_mov_b64 exec, -1
    v_add_u32 v{O2}, v{O1}, v{O2}
    v_sub_u32 v{I2}, v{I2}, v{O1}
    v_sub_u32 v{I3}, v{I3}, v{O2}
    v_lshl_or_b32 v{TL}, v{O2}, 16, v{O1}
    v_mov_b32 v{TL+1}, v{I1}
    v_mov_b32 v{TL+2}, v{I2}
    v_mov_b32 v{TL+3}, v{I3}
    v_max_u32 v55, v{O2}, v{CL}
    v_sub_u32 v55, v55, v{CL}
    v_lshlrev_b32 v{TH}, 16, v55
    v_add_u32 v{TH+2}, v{I2}, v{CL}
    v_add_u32 v{TH+3}, v{I3}, v{CL}
    ds_write_b128 v{L16}, {vr(TL,4)} offset:{L_TBL}
    ds_write_b128 v{L16}, {vr(TH,4)} offset:{L_TBL+1024}
    s_add_u32 s96, s42, 31
    s_lshr_b32 s96, s96, 5
    s_cmp_lg_u32 s{S_SLOW}, 0
    s_cbranch_scc1 L2_s2
    s_cmp_gt_u32 s96, {CAPT}
    s_cselect_b32 s97, 1, 0
    s_cmp_gt_u32 s{S_MAXC}, {3*LPS}
    s_cselect_b32 s97, 1, s97
    s_cmp_eq_u32 s97, 0
    s_cbranch_scc1 L2_s2
    s_mov_b32 s{S_SLOW}, 1
    s_mov_b32 s{S_LIM}, {LPS}
    s_mov_b32 s{S_IMASK}, 3
    s_waitcnt lgkmcnt(0)
    s_barrier
    s_branch L2_batch
    L2_s2:""")
    stamp(a, 6, ST)
    TB = W2R
    for k in range(8): a(f"s_mov_b64 exec, {sr(MASK+2*k,2)}\nds_read_b128 {vr(TB+4*k,4)}, v{RK+k} offset:{L_TBL}")
    a(f"""s_mov_b64 exec, -1
    v_add_u32 v{DEG}, v{DEG}, v{C_}
    s_lshr_b32 s29, s29, 6
    s_lshl_b32 s29, s29, 1
    s_lshr_b32 s41, s41, 5
    s_max_u32 s41, s41, s{S_CUT}
    s_sub_u32 s41, s41, s{S_CUT}
    s_and_b32 s41, s41, -2
    s_cmp_eq_u32 s{S_SAFE}, 0
    s_cselect_b32 s29, s29, 0
    s_cselect_b32 s41, s41, 0
    s_add_u32 s30, s29, 3
    s_lshr_b32 s30, s30, 2
    s_sub_u32 s31, s{S_CUT}, s29
    s_add_u32 s31, s31, 1
    s_lshr_b32 s31, s31, 1
    s_add_u32 s31, s31, s30
    s_add_u32 s40, s41, 3
    s_lshr_b32 s40, s40, 2
    s_add_u32 s40, s40, s31
    s_min_u32 s98, s{S_CUT}, s96
    s_sub_u32 s99, s96, s98
    s_cmp_eq_u32 s{S_GRP}, 0
    s_cselect_b32 s{S_N}, s98, s99
    s_cselect_b32 s{S_T0}, 0, s{S_CUT}
    s_cselect_b32 s{S_NO}, s29, s41
    s_cselect_b32 s53, 0, s31
    s_add_u32 s41, s41, s{S_CUT}
    s_lshl_b32 s30, s30, 1
    s_sub_u32 s30, s30, s29
    s_lshl_b32 s31, s31, 2
    s_sub_u32 s31, s31, s{S_CUT}
    s_lshl_b32 s40, s40, 1
    s_sub_u32 s40, s40, s41
    v_cmp_eq_u32 vcc, 0, v{R3}
    s_cmp_ge_u32 s3, 3
    s_cbranch_scc1 L2_pad
    v_add_u32 v55, s3, v{C_}
    v_cndmask_b32 v59, v{I3}, v{I2}, vcc
    v_cmp_lt_u32 vcc, v55, v{PC}
    s_add_u32 s96, s{S_NEG}, {N}
    s_and_b64 exec, exec, vcc
    v_add_u32 v60, s96, v{L}
    v_add_lshl_u32 v55, v55, v59, 2
    ds_write_b32 v55, v60 offset:{L_IDX}
    s_mov_b64 exec, -1
    L2_pad:""")
    for r in (PC, O1, O2, I1, I2, I3): a(f"v_lshrrev_b32 v{r}, 2, v{r}")
    QA_, ONE, NC1, Q, T, U, V = 48, 49, 50, 54, 55, 59, 60
    a(f"""v_lshrrev_b32 v{QA_}, 1, v{L}
    v_mul_u32_u24 v{QA_}, {BTP}, v{QA_}
    v_and_b32 v{ONE}, 1, v{L}
    v_lshl_add_u32 v{QA_}, v{ONE}, 9, v{QA_}
    v_add_u32 v{QA_}, {L_BT}, v{QA_}
    v_mov_b32 v{ONE}, 0x3f80
    v_subrev_u32 v{NC1}, {17*16}, v{L16}
    v_mov_b32 v61, s30
    v_mov_b32 v62, s40
    s_mov_b32 s97, s3
    L2_q:
    v_cmp_lt_u32 s[94:95], s97, v{O2}
    v_cmp_lt_u32 s[98:99], s97, v{O1}
    v_cmp_lt_u32 vcc, s97, v{PC}
    v_cndmask_b32 v{Q}, v{I3}, v{I2}, s[94:95]
    s_and_b64 exec, exec, vcc
    s_cbranch_execz L2_qd
    v_cndmask_b32 v{Q}, v{Q}, v{I1}, s[98:99]
    v_add_u32 v{Q}, s97, v{Q}
    v_lshrrev_b32 v{T}, 3, v{Q}
    v_lshlrev_b32 v{U}, 2, v{Q}
    ds_write_b32 v{U}, v{QA_} offset:{L_QA}
    v_cmp_le_u32 vcc, s{S_CUT}, v{T}
    v_cmp_gt_u32 s[94:95], s29, v{T}
    v_cmp_gt_u32 s[98:99], s41, v{T}
    v_and_b32 v{V}, 4, v{Q}
    v_cndmask_b32 v{U}, v{L16}, v{NC1}, vcc
    v_lshl_add_u32 v{U}, v{V}, 7, v{U}
    v_and_b32 v{V}, 2, v{Q}
    v_add_u32 v{U}, v{U}, v{V}
    s_and_b64 s[98:99], s[98:99], vcc
    s_or_b64 s[94:95], s[94:95], s[98:99]
    v_cndmask_b32 v{V}, v61, v62, vcc
    v_add_u32 v{V}, v{V}, v{T}
    v_and_b32 v{Q}, 1, v{Q}
    v_lshl_or_b32 v{Q}, v{V}, 1, v{Q}
    v_mov_b32 v{V}, s31
    v_cndmask_b32 v{V}, 0, v{V}, vcc
    v_add_u32 v{V}, v{V}, v{T}
    v_cndmask_b32 v{Q}, v{Q}, v{V}, s[94:95]
    v_and_b32 v{V}, -4, v{Q}
    v_lshl_add_u32 v{U}, v{V}, 8, v{U}
    v_and_b32 v{V}, 3, v{Q}
    v_lshl_add_u32 v{U}, v{V}, 2, v{U}
    ds_write_b16 v{U}, v{ONE} offset:{L_P}
    s_add_u32 s97, s97, 8
    s_branch L2_q
    L2_qd:
    s_mov_b64 exec, -1
    s_waitcnt lgkmcnt(0)""")
    def scatter(ks):
        P = ((94, 96), (28, 30), (40, 42))
        def st1(k):
            r, tb = RECR+4*k+3, TB+4*(k % 8)
            a(f"""v_cmp_lt_u32_sdwa {sr(P[k%3][0],2)}, v{r}, v{tb} src0_sel:DWORD src1_sel:WORD_1
            v_cmp_lt_u32_sdwa {sr(P[k%3][1],2)}, v{r}, v{tb} src0_sel:DWORD src1_sel:WORD_0""")
        def st2(k):
            r, m, tb = RECR+4*k+3, RECR+4*k+2, TB+4*(k % 8)
            a(f"""v_cndmask_b32 v{tb+3}, v{tb+3}, v{tb+2}, {sr(P[k%3][0],2)}
            v_cndmask_b32 v{tb+3}, v{tb+3}, v{tb+1}, {sr(P[k%3][1],2)}
            v_and_b32 v{m}, {OPT.get('imask', 0x3fff)}, v{m}
            v_add_lshl_u32 v{tb+3}, v{tb+3}, v{r}, 2
            v_lshlrev_b32 v{tb}, 1, v{tb+3}""")
        st1(ks[0])
        for i, k in enumerate(ks):
            if i + 1 < len(ks): st1(ks[i+1])
            st2(k)
        for k in ks:
            tb = TB+4*(k % 8)
            a(f"""s_mov_b64 exec, {sr(MASK+2*k,2)}
            ds_write_b32 v{tb+3}, v{RECR+4*k+2} offset:{L_IDX}
            ds_write_b64 v{tb}, {vr(RECR+4*k,2)} offset:{L_EA}""")
    scatter(list(range(8)))
    a(f"s_cmp_eq_u32 s{S_R2}, 0\ns_cbranch_scc1 L2_c12")
    for k2 in range(8, 12):
        a(f"""s_mov_b64 exec, {sr(MASK+2*k2,2)}
        v_lshrrev_b32 v{RK+k2-8}, 14, v{RECR+4*k2+2}
        ds_read_b128 {vr(TB+4*(k2-8),4)}, v{RK+k2-8} offset:{L_TBL}""")
    a("s_mov_b64 exec, -1\ns_waitcnt lgkmcnt(0)")
    scatter(list(range(8, 12)))
    a(f"""L2_c12:
    s_mov_b64 exec, -1
    s_lshl_b32 s96, s{S_T0}, 7
    s_add_u32 s96, s96, {L_IDX-256}
    v_lshrrev_b32 v54, 3, v{L}
    v_lshl_add_u32 v{IB}, v54, 2, s96
    s_lshl_b32 s96, s{S_T0}, 8
    s_add_u32 s96, s96, {L_EA-512}
    v_add_u32 v{EB}, s96, v{ESIG}
    s_lshl_b32 s96, s{S_T0}, 5
    s_add_u32 s96, s96, {L_QA-64}
    v_add_u32 v{QB}, s96, v{QOFF}
    s_lshl_b32 s96, s53, 10
    s_add_u32 s96, s96, {L_P-1024}
    v_add_u32 v{PB}, s96, v{L16}""")
    for j in range(8): a(f"v_mov_b32 v{HQ0+j}, 0")
    for j in range(4): a(f"v_mov_b32 v{PP+j}, 0\nv_mov_b32 v{EE+2*j+1}, v{IP+2*j+1}")
    srd(a, 44, WS, W2OP, 65536); srd(a, 48, B2, None, 256)
    a(f"""s_mov_b32 s38, {AROWS}
    s_mov_b32 s{S_N0}, s{S_N}
    s_waitcnt vmcnt({PF+PFE})
    s_cmp_lg_u32 s{S_GRP}, 0
    s_cbranch_scc1 L2_b5
    s_waitcnt vmcnt({PF})
    L2_b5:
    s_waitcnt lgkmcnt(0)
    s_barrier
    s_cmp_eq_u32 s{S_N}, 0
    s_cbranch_scc1 L2_done""")
    stamp(a, 7, ST)
    rd_idx(a, 2)
    for u in range(4): a(f"ds_read_b32 v{EE+2*u}, v{IB} offset:{128*3+32*u}")
    a("s_waitcnt lgkmcnt(4)"); dma(a, 0)
    rd_idx(a, 4)
    a(f"s_add_u32 m0, s{S_STG}, 4096\ns_waitcnt lgkmcnt(4)")
    for u in range(4):
        a(f"buffer_load_dwordx4 {vr(EE+2*u,2)}, s[36:39], 0 idxen offen lds")
        if u < 3: a("s_add_u32 m0, m0, 1024")
    a(f"""ds_read_b32 v{QV[0]}, v{QB} offset:64
    ds_read_b32 v{QV[1]}, v{QB} offset:96
    ds_read2st64_b32 {vr(A2[0]+2,2)}, v{EB} offset0:2 offset1:2
    s_waitcnt lgkmcnt(0)
    v_add_u32 v{QV[0]}, v{QV[0]}, v{QST}
    v_add_u32 v{QV[1]}, v{QV[1]}, v{QST}
    s_waitcnt vmcnt(4)""")
    rd_rows(a, 0)
    a(f"ds_read_b64_tr_b16 {vr(B2R[0],2)}, v{QV[0]}\ns_waitcnt lgkmcnt(0)")
    for m in tmf(D0, ALO, A2[0], B2R[0]): a(m)
    dma(a, 0); rd_idx(a, 5)
    group(a, 1, tail=False)
    stamp(a, 8, ST)
    if OPT.get("stamp"): a(f"v_writelane_b32 v{ST}, s{S_N}, 30")
    a(f"s_cmp_eq_u32 s{S_SAFE}, 2\ns_cbranch_scc1 L2_loopS\ns_cmp_eq_u32 s{S_NO}, 0\ns_cbranch_scc1 L2_loopF")
    main_loops(a)
    a(f"""L2_end_odd:
    ds_read_b128 {vr(PP,4)}, v{PB}
    s_waitcnt lgkmcnt(0)""")
    a(mfma(S0, HQ0, PP, S0))
    a("L2_end_even:")
    a(mfma(S1, HQ1, PP, S1))
    a(f"""L2_done:
    s_waitcnt vmcnt(0)
    s_cmp_eq_u32 s{S_SLOW}, 0
    s_cbranch_scc1 L2_epi
    s_add_u32 s{S_BETA}, s{S_BETA}, 1
    s_lshr_b32 s{S_BASE}, s{S_BETA}, 1
    s_lshl_b32 s{S_BASE}, s{S_BASE}, {LSH}
    s_xor_b32 s{S_IMASK}, s{S_IMASK}, 15
    s_cmp_ge_u32 s{S_BASE}, s{S_MAXC}
    s_cbranch_scc1 L2_epi
    s_barrier
    s_branch L2_batch""")
    a(f"L2_epi:\ns_cmp_gt_u32 s{S_N0}, 4\ns_cbranch_scc1 L2_epi1")
    for k in range(4): w2chunk(a, k)
    a("s_waitcnt vmcnt(0)\nL2_epi1:")
    stamp(a, 9, ST)
    a(f"""v_and_b32 v2, 31, v{L}
    v_lshrrev_b32 v3, 5, v{L}
    s_mov_b32 s94, {NLN2}
    s_mov_b32 s95, {NLN2}
    v_bfe_u32 v5, v2, 1, 3
    v_lshlrev_b32 v5, 4, v5
    v_lshl_add_u32 v5, v2, 7, v5
    v_lshl_add_u32 v6, v3, 3, v5
    v_add_u32 v6, s{S_STG}, v6""")
    for u in range(8):
        a(f"""v_xor_b32 v{32+u}, {16*u}, v6
        v_cvt_pk_bf16_f32 v{16+2*u}, v{S0+4*u}, v{S0+4*u+1}
        v_cvt_pk_bf16_f32 v{17+2*u}, v{S0+4*u+2}, v{S0+4*u+3}
        ds_write_b64 v{32+u}, {vr(16+2*u,2)}""")
    a(f"""s_cmp_lg_u32 s3, 0
    s_cbranch_scc1 L2_e1
    v_cvt_f32_u32 v8, v{DEG}
    v_lshlrev_b32 v9, 2, v{L}
    s_mov_b32 exec_hi, 0
    ds_write_b32 v9, v8 offset:{L_DEG}
    s_mov_b32 exec_lo, 0xfffe0000
    s_mov_b32 exec_hi, 0x1ffff
    ds_write_b32 v9, v8 offset:{L_DEG+128-68}
    s_mov_b64 exec, -1
    L2_e1:
    v_lshlrev_b32 v7, 4, v3
    v_xor_b32 v5, v5, v7
    s_lshl_b32 s97, s{S_GRP}, 15
    s_add_u32 s97, s97, {L_STG}
    v_add_u32 v241, s97, v5
    v_xor_b32 v242, 32, v241
    v_xor_b32 v243, 64, v241
    v_xor_b32 v244, 96, v241
    s_lshl_b32 s97, s{S_GRP}, 7
    v_lshl_add_u32 v245, v3, 4, s97
    s_lshl_b32 s96, s{S_CG}, 7
    s_add_u32 s96, s96, {L_P-512}
    v_lshlrev_b32 v246, 11, v3
    v_lshl_add_u32 v246, v2, 2, v246
    v_add_u32 v246, s96, v246
    s_mul_i32 s96, s{S_GRP}, {17*256}
    s_lshl_b32 s97, s{S_CG}, 6
    s_add_u32 s96, s96, s97
    v_lshlrev_b32 v247, 10, v3
    v_and_b32 v7, 1, v2
    v_lshl_add_u32 v247, v7, 8, v247
    v_and_b32 v8, 30, v2
    v_lshl_add_u32 v247, v8, 1, v247
    v_cmp_eq_u32 vcc, 0, v7
    v_mov_b32 v8, 0x07060302
    v_mov_b32 v9, 0x01000504
    v_cndmask_b32 v248, v8, v9, vcc
    v_add_u32 v247, s96, v247
    v_lshlrev_b32 v240, 16, v{B2V}
    s_sub_u32 s96, {N}, s{S_NEG}
    s_min_u32 s96, s96, {NPB}
    s_lshl_b32 s96, s96, 8
    s_lshl_b32 s97, s{S_NEG}, 8""")
    srd(a, 52, OUT, "s97", "s96")
    a("""s_mov_b32 s97, 4096
    s_waitcnt lgkmcnt(0)
    s_barrier""")
    for s in range(16): a(f"ds_read_b128 {vr(4*s,4)}, v{241+s%4} offset:{8192*(s//4)}")
    for jq in range(4): a(f"ds_read_b128 {vr(96+4*jq,4)}, v245 offset:{L_DEG+32*jq}")
    stamp(a, 10, ST)
    O = 64
    for s in range(16):
        a(f"s_waitcnt lgkmcnt({min(15, 19-s)})")
        a(mfma(O, 4*s, W2R+4*s, None if s == 0 else O))
    a("s_waitcnt lgkmcnt(0)")
    for j in range(16): a(f"v_mul_f32 v{96+j}, v{96+j}, v240")
    a(f"s_cmp_eq_u32 s{S_GRP}, 0\ns_cbranch_scc1 L2_e2")
    for j in range(8): a(f"ds_write_b32 v246, v{O+j} offset:{(8*(j//4)+j%4+1)*512}")
    a("""L2_e2:
    s_waitcnt lgkmcnt(0)
    s_barrier""")
    def fin(js):
        for j in js: a(f"v_fma_f32 v{O+j}, v{O+j}, s94, v{96+j}")
        for j in js[::2]: a(f"v_cvt_pk_bf16_f32 v{16+j//2}, v{O+j}, v{O+j+1}")
        for j in js[::2]: a(f"v_mov_b32_dpp v{24+j//2}, v{16+j//2} quad_perm:[1,0,3,2] row_mask:0xf bank_mask:0xf")
        for j in js[::2]: a(f"v_perm_b32 v{16+j//2}, v{16+j//2}, v{24+j//2}, v248")
    def st(j):
        off = (8*(j//4) + j % 4)*256
        return f"buffer_store_dword v{16+j//2}, v247, s[52:55], {'0' if off < 4096 else 's97'} offen offset:{off % 4096}"
    a(f"s_cmp_lg_u32 s{S_GRP}, 0\ns_cbranch_scc1 L2_e3")
    for j in range(8, 16): a(f"ds_read_b32 v{j}, v246 offset:{(8*(j//4)+j%4-16)*512}")
    fin(list(range(8)))
    for j in range(0, 8, 2): a(st(j))
    a(f"""s_waitcnt lgkmcnt(0)
    s_mov_b32 exec_lo, 0
    v_add_f32 v{O+8}, v{O+8}, v8
    s_mov_b64 exec, -1""")
    for j in range(9, 16): a(f"v_add_f32 v{O+j}, v{O+j}, v{j}")
    a("s_branch L2_e5\nL2_e3:")
    fin([6, 7])
    a("s_mov_b32 exec_lo, 0\ns_mov_b32 exec_hi, 0xaaaaaaaa")
    a(st(6)); a("s_mov_b64 exec, -1\nL2_e5:")
    fin(list(range(8, 16)))
    for j in range(8, 16, 2): a(st(j))
    stamp_dump(a, ST, 0, 1)
    a("L2_exit2:\ns_endpgm")


HEAD = """; edge-featured MPNN: K1 = edge partition by dst bucket + node tables + operand prep ; K2 = gather / silu / segment-sum / final GEMM
; @launch kernel=k1_kernel grid=({g1},1,1) block=(512,1,1) lds={l1}
; @launch kernel=k2_kernel grid=({g2},1,1) block=(512,1,1) lds={l2}
.amdgcn_target "amdgcn-amd-amdhsa--gfx950"
.text
"""
KD = """.amdhsa_kernel {name}
  .amdhsa_next_free_vgpr {v}
  .amdhsa_next_free_sgpr 102
  .amdhsa_accum_offset {v}
  .amdhsa_group_segment_fixed_size 0
  .amdhsa_kernarg_size 88
  .amdhsa_user_sgpr_count 2
  .amdhsa_user_sgpr_kernarg_segment_ptr 1
  .amdhsa_system_sgpr_workgroup_id_x 1
.end_amdhsa_kernel
"""


def build():
    out = HEAD.format(g1=K1_GRID, l1=K1_LDS, g2=NB, l2=K2_LDS)
    for name, fn in (("k1_kernel", k1), ("k2_kernel", k2)):
        a = Asm(); fn(a)
        out += f".globl {name}\n.p2align 8\n.type {name},@function\n" + a.text(verbose=OPT.get("v", 0))
    out += '.section .rodata,"a"\n.p2align 6\n' + KD.format(name="k1_kernel", v=128) + ".p2align 6\n" + KD.format(name="k2_kernel", v=256)
    return out


if __name__ == "__main__":
    open(sys.argv[1], "w").write(build())
```

```python
import sys, struct
from asmlib import Asm, vr, sr

OPT = dict(prio=1, prio_at=32, pf=1, ept=4, smf=1)
for a_ in sys.argv[2:]:
    k_, v_ = a_.split("="); OPT[k_] = int(v_)

N, E = 12500, 400000
NPB, NB = 49, 256
EPT = OPT["ept"]
CE = 400*EPT; CH = E//CE
LPS = 2*EPT
LSH = {8: 3, 16: 4}[LPS]
SPLIT, HALF = OPT.get('split', 23), 6250
AROWS = 25088
REC = 13 << 20
OFF = 19 << 20
W2OP = 20 << 20
STAT = W2OP + 65536
MAXA = STAT + 4096
MAXE = MAXA + 1024
MAXW_G = MAXE + 1024
STAMPS = 24 << 20
NG = 208
K1_GRID = NG + 1 + CH
K1_LDS = 65536 + 64

def f2u(x): return struct.unpack("<I", struct.pack("<f", x))[0]
NLOG2E = f2u(-1.4426950408889634)
PLOG2E = NLOG2E ^ 0x80000000
NLN2 = f2u(-0.6931471805599453)
X, EA_, SRC, DST, W1, B1, W2, B2, OUT, DBG, WS = 4, 6, 8, 10, 12, 14, 16, 18, 20, 22, 24
SHR = ["row_shr:%d row_mask:0xf bank_mask:0xf bound_ctrl:0" % i for i in (1, 2, 4, 8)]
BC15, BC31 = "row_bcast:15 row_mask:0xa bank_mask:0xf", "row_bcast:31 row_mask:0xc bank_mask:0xf"


def srd(a, d, base, add, size, stride=0):
    if add is None:
        a(f"s_mov_b32 s{d}, s{base}\ns_mov_b32 s{d+1}, s{base+1}")
    else:
        a(f"s_add_u32 s{d}, s{base}, {add}\ns_addc_u32 s{d+1}, s{base+1}, 0")
    if stride: a(f"s_or_b32 s{d+1}, s{d+1}, {stride << 16}")
    a(f"s_mov_b32 s{d+2}, {size}\ns_mov_b32 s{d+3}, 0x00020000")


def ldargs(a):
    a("""s_load_dwordx16 s[4:19], s[0:1], 0
    s_load_dwordx4 s[20:23], s[0:1], 64
    s_load_dwordx2 s[24:25], s[0:1], 80""")


def dpp_red(a, op, vs, full=True):
    if isinstance(vs, int): vs = [vs]
    for m in SHR + [BC15] + ([BC31] if full else []):
        for v in vs: a(f"{op}_dpp v{v}, v{v}, v{v} {m}")


def stamp(a, k, reg):
    if not OPT.get("stamp"): return
    a(f"s_memrealtime s[100:101]\ns_waitcnt lgkmcnt(0)\nv_writelane_b32 v{reg}, s100, {k}")
    if k in (0, 7, 8, 9, 31): a(f"s_memtime s[100:101]\ns_waitcnt lgkmcnt(0)\nv_writelane_b32 v{reg}, s100, {32+k}")


def stamp_dump(a, reg, tmp, kern):
    if not OPT.get("stamp"): return
    a("s_mov_b64 exec, -1\ns_waitcnt vmcnt(0)")
    stamp(a, 31, reg)
    a(f"""s_lshl_b32 s96, s2, 3
    s_add_u32 s96, s96, s3
    s_lshl_b32 s96, s96, 8
    s_add_u32 s96, s96, {STAMPS + kern*(1 << 20)}""")
    srd(a, 44, WS, "s96", 256)
    a(f"""v_mbcnt_lo_u32_b32 v{tmp}, -1, 0
    v_mbcnt_hi_u32_b32 v{tmp}, -1, v{tmp}
    v_lshlrev_b32 v{tmp}, 2, v{tmp}
    buffer_store_dword v{reg}, v{tmp}, s[44:47], 0 offen""")


def smf(D, B): return f"v_smfmac_f32_32x32x32_bf16 {vr(D,16)}, {vr(ID0,4)}, {vr(B,8)}, v{ID1}"
def tmf(D, rows, a2, b2):
    if OPT["smf"]: return [mfma(D, a2, b2, None), smf(D, rows)]
    return [mfma(D, rows, ID0, None), mfma(D, rows+4, ID1, D), mfma(D, a2, b2, D)]
def code_pf(a, label, size, lane, tmp, junk, sr0, lanes=16):
    if not OPT.get("cpf", 2): return
    code_pf.n += 1
    a(f"""s_getpc_b64 s[{sr0}:{sr0+1}]
    L_pc{code_pf.n}:
    s_sub_u32 s{sr0}, s{sr0}, L_pc{code_pf.n}-{label}
    s_subb_u32 s{sr0+1}, s{sr0+1}, 0
    s_mov_b32 s{sr0+2}, {size}
    s_mov_b32 s{sr0+3}, 0x00020000
    s_mul_i32 s99, s3, {128*lanes}
    v_lshlrev_b32 v{tmp}, 7, v{lane}
    s_mov_b64 exec, {(1 << lanes) - 1}
    buffer_load_dword v{junk}, v{tmp}, s[{sr0}:{sr0+3}], s99 offen
    s_mov_b64 exec, -1""")
code_pf.n = 0
def lane63(a): a("s_mov_b32 exec_lo, 0\ns_mov_b32 exec_hi, 0x80000000")
def full(a): a("s_mov_b64 exec, -1")
def mfma(D, A, B, C): return f"v_mfma_f32_32x32x16_bf16 {vr(D,16)}, {vr(A,4)}, {vr(B,4)}, " + ("0" if C is None else vr(C, 16))


def k1(a):
    ST = 126
    a("k1_kernel:")
    a(f"s_cmp_ge_u32 s2, {K1_GRID}\ns_cbranch_scc1 L1_exit2")
    if OPT.get("stamp"): a(f"v_mov_b32 v{ST}, 0")
    stamp(a, 0, ST)
    ldargs(a)
    a(f"""v_and_b32 v1, 63, v0
    v_lshrrev_b32 v2, 6, v0
    s_nop 0
    v_readfirstlane_b32 s3, v2""")
    if OPT.get("cpf", 2) >= 2: code_pf(a, "k1_kernel", "L2_exit2-k1_kernel", 1, 63, 63, 64, 20)
    a(f"""s_cmp_le_u32 s2, {NG}
    s_cbranch_scc1 L1_gemm
    s_sub_u32 s56, s2, {NG+1}""")
    G = EPT//4
    HIST, START, MAXW = 40960, 41984, 43008
    DV, SV, EV, AV, RV = 4, 12, 24, 40, 48
    a(f"""v_lshlrev_b32 v2, 2, v0
    v_mov_b32 v3, 0
    ds_write_b32 v2, v3 offset:{HIST}
    ds_write_b32 v2, v3 offset:{MAXW}
    v_mov_b32 v60, 0
    v_mov_b32 v61, 1
    s_mul_i32 s26, s56, {CE*4}
    s_add_u32 s27, s26, 6400
    s_mov_b32 s58, s26
    s_mov_b32 s59, s27
    s_lshl_b32 s52, s26, 1
    s_lshl_b32 s53, s27, 1
    v_lshlrev_b32 v3, 4, v0
    v_lshlrev_b32 v20, 5, v0
    v_cmp_gt_u32 vcc, 400, v0
    s_waitcnt lgkmcnt(0)""")
    stamp(a, 5, ST)
    srd(a, 28, DST, None, E*4); srd(a, 32, SRC, None, E*4); srd(a, 36, EA_, None, E*8)
    a("""s_and_saveexec_b64 s[54:55], vcc
    s_mov_b64 s[54:55], exec
    s_cbranch_execz L1_p1""")
    for g in range(G): a(f"buffer_load_dwordx4 {vr(DV+4*g,4)}, v3, s[28:31], s{26+g} offen nt")
    def late_loads():
        for g in range(G): a(f"buffer_load_dwordx4 {vr(SV+4*g,4)}, v3, s[32:35], s{58+g} offen nt")
        for g in range(G):
            a(f"buffer_load_dwordx4 {vr(EV+8*g,4)}, v20, s[36:39], s{52+g} offen nt")
            a(f"buffer_load_dwordx4 {vr(EV+8*g+4,4)}, v20, s[36:39], s{52+g} offen offset:16 nt")
    if not OPT.get("late", 1): late_loads()
    a(f"""L1_p1:
    s_mov_b64 exec, -1
    s_mul_i32 s26, s56, {CE*12}
    s_add_u32 s26, s26, {REC}""")
    srd(a, 40, WS, "s26", CE*12); srd(a, 44, WS, OFF, CH*1024); srd(a, 48, WS, MAXE, CH*4)
    a(f"""s_setprio 2
    s_barrier
    s_mov_b64 exec, s[54:55]
    s_cbranch_execz L1_p2
    s_waitcnt vmcnt({0 if OPT.get("late", 1) else 3*G})""")
    if OPT.get("late", 1): late_loads()
    stamp(a, 1, ST)
    for k in range(EPT):
        a(f"""v_mul_u32_u24 v21, 10700, v{DV+k}
        v_lshrrev_b32 v21, 19, v21
        v_lshlrev_b32 v{AV+k}, 2, v21
        ds_add_rtn_u32 v{RV+k}, v{AV+k}, v61 offset:{HIST}
        v_mul_u32_u24 v21, {NPB}, v21
        v_sub_u32 v{DV+k}, v{DV+k}, v21""")
    a(f"""L1_p2:
    s_mov_b64 exec, -1
    v_lshlrev_b32 v2, 4, v1
    s_waitcnt lgkmcnt(0)
    s_barrier""")
    stamp(a, 3, ST)
    a(f"""ds_read_b128 v[64:67], v2 offset:{HIST}
    s_waitcnt lgkmcnt(0)
    v_add_u32 v68, v64, v65
    v_add_u32 v69, v68, v66
    v_add_u32 v70, v69, v67
    v_mov_b32 v71, v70""")
    dpp_red(a, "v_add_u32", 71)
    a(f"""v_sub_u32 v56, v71, v70
    v_add_u32 v57, v56, v64
    v_add_u32 v58, v56, v68
    v_add_u32 v59, v56, v69
    ds_write_b128 v2, v[56:59] offset:{START}
    s_mov_b64 exec, s[54:55]
    s_cbranch_execz L1_p4""")
    for k in range(EPT): a(f"ds_read_b32 v{AV+k}, v{AV+k} offset:{START}")
    a(f"s_waitcnt vmcnt({2*G})")
    for k in range(EPT):
        a(f"""v_add_u32 v21, {16384-HALF}, v{SV+k}
        v_lshl_or_b32 v{SV+k}, v{DV+k}, 18, v{SV+k}
        v_lshrrev_b32 v21, 14, v21
        v_lshl_or_b32 v{SV+k}, v21, 24, v{SV+k}""")
    a("s_waitcnt vmcnt(0)")
    for k in range(EPT):
        a(f"""s_waitcnt lgkmcnt({EPT-1+k})
        v_add_u32 v{AV+k}, v{AV+k}, v{RV+k}
        v_mul_u32_u24 v{AV+k}, 12, v{AV+k}
        ds_write2_b32 v{AV+k}, v{EV+2*k}, v{EV+2*k+1} offset0:0 offset1:1
        ds_write_b32 v{AV+k}, v{SV+k} offset:8""")
    for k in range(EPT): a(f"v_dot2_f32_bf16 v{DV+k}, v{EV+2*k}, v{EV+2*k}, 0")
    for k in range(EPT): a(f"v_dot2_f32_bf16 v{DV+k}, v{EV+2*k+1}, v{EV+2*k+1}, v{DV+k}")
    a("s_nop 2")
    for k in range(0, EPT, 2): a(f"v_max3_u32 v60, v60, v{DV+k}, v{DV+k+1}")
    a("L1_p4:")
    full(a)
    dpp_red(a, "v_max_u32", 60)
    a("v_mov_b32 v62, 0")
    lane63(a); a(f"ds_max_u32 v62, v60 offset:{MAXW}"); full(a)
    stamp(a, 2, ST)
    a(f"""s_cmp_lg_u32 s3, 7
    s_cbranch_scc1 L1_p3
    v_lshl_or_b32 v64, v64, 16, v56
    v_lshl_or_b32 v65, v65, 16, v57
    v_lshl_or_b32 v66, v66, 16, v58
    v_lshl_or_b32 v67, v67, 16, v59
    v_mul_u32_u24 v2, {CH*16}, v1
    s_lshl_b32 s26, s56, 4
    buffer_store_dwordx4 v[64:67], v2, s[44:47], s26 offen sc1
    L1_p3:
    s_waitcnt lgkmcnt(0)
    s_barrier""")
    stamp(a, 4, ST)
    NO = -(-CE*12//8192)
    for i in range(NO): a(f"ds_read_b128 {vr(4+4*i,4)}, v3 offset:{8192*i}")
    a(f"ds_read_b32 v30, v62 offset:{MAXW}")
    for i in range(NO):
        a(f"s_mov_b32 s26, {8192*i}\ns_waitcnt lgkmcnt({NO-i})\nbuffer_store_dwordx4 {vr(4+4*i,4)}, v3, s[40:43], s26 offen sc1")
    a(f"""s_lshl_b32 s26, s56, 2
    v_cmp_eq_u32 vcc, 0, v0
    s_and_saveexec_b64 s[54:55], vcc
    s_cbranch_execz L1_exit
    s_waitcnt lgkmcnt(0)
    buffer_store_dword v30, v62, s[48:51], s26 offen sc1
    s_branch L1_exit""")

    WOP = 56
    a(f"""L1_gemm:
    s_cmp_eq_u32 s2, {NG}
    s_cbranch_scc1 L1_w2
    s_bfe_u32 s27, s2, 0x10003
    s_lshr_b32 s28, s2, 4
    s_lshl_b32 s28, s28, 3
    s_and_b32 s29, s2, 7
    s_add_u32 s28, s28, s29
    s_cmp_ge_u32 s28, 98
    s_cbranch_scc1 L1_exit2
    v_lshrrev_b32 v18, 4, v1
    v_and_b32 v19, 15, v1
    v_lshlrev_b32 v24, 2, v18
    v_xor_b32 v24, v24, v19
    v_lshlrev_b32 v24, 4, v24
    v_lshl_or_b32 v124, v18, 9, v24""")
    for ii in range(4):
        a(f"""v_add_u32 v20, {4*ii}, v18
        v_xor_b32 v20, v20, v19
        v_lshlrev_b32 v20, 4, v20
        v_lshl_or_b32 v{25+ii}, v18, 8, v20""")
    a(f"""v_mov_b32 v2, 0
    v_mov_b32 v3, 65536
    ds_write_b32 v3, v2
    s_lshl_b32 s43, s3, 13
    s_lshl_b32 s30, s27, 8
    s_add_u32 s43, s43, s30
    s_lshl_b32 s31, s3, 12
    s_lshl_b32 s29, s28, 15
    s_add_u32 s29, s29, s31
    s_add_u32 m0, s31, 32768
    s_and_b32 s40, s3, 1
    s_lshr_b32 s41, s3, 1
    v_and_b32 v7, 31, v1
    v_lshlrev_b32 v20, 1, v7
    s_lshl_b32 s42, s40, 7
    s_add_u32 s42, s42, s30
    s_waitcnt lgkmcnt(0)""")
    stamp(a, 5, ST)
    srd(a, 36, X, None, N*256)
    for ii in range(4):
        a(f"buffer_load_dwordx4 v{25+ii}, s[36:39], s29 offen nt lds")
        if ii < 3: a("s_add_u32 m0, m0, 1024\ns_add_u32 s29, s29, 1024")
    a("s_mov_b32 m0, s31")
    srd(a, 32, W1, None, 260*512)
    for ii in range(4):
        a(f"buffer_load_dwordx4 v124, s[32:35], s43 offen lds")
        a("s_add_u32 m0, m0, 1024\ns_add_u32 s43, s43, 2048")
    srd(a, 44, B1, None, 512)
    a(f"""buffer_load_ushort v122, v20, s[44:47], s42 offen
    buffer_load_ushort v123, v20, s[44:47], s42 offen offset:64
    s_add_u32 s43, s43, {128*512 - 8192}""")
    if OPT.get("cpf", 2) == 1: code_pf(a, "k1_kernel", "L1_exit2-k1_kernel", 1, 21, 22, 64)
    stamp(a, 6, ST)
    a(f"""v_bfe_u32 v18, v1, 2, 2
    v_lshrrev_b32 v6, 5, v1
    v_lshl_add_u32 v19, v6, 3, v18
    v_lshlrev_b32 v19, 8, v19
    v_bfe_u32 v20, v1, 4, 1
    v_lshlrev_b32 v20, 5, v20
    v_and_b32 v21, 3, v1
    v_lshl_add_u32 v20, v21, 3, v20
    v_add_u32 v19, v19, v20
    s_lshl_b32 s42, s40, 1
    v_xor_b32 v20, s42, v18
    v_lshl_add_u32 v120, v20, 6, v19
    v_xor_b32 v20, 1, v20
    v_lshl_add_u32 v121, v20, 6, v19
    s_lshl_b32 s42, s41, 5
    v_add_u32 v19, s42, v7
    v_lshlrev_b32 v19, 8, v19
    v_and_b32 v20, 15, v1
    v_xor_b32 v20, v20, v6
    v_lshl_add_u32 v104, v20, 4, v19
    v_add_u32 v104, 32768, v104""")
    for s in range(1, 8): a(f"v_xor_b32 v{104+s}, {32*s}, v104")
    srd(a, 44, WS, None, N*512); srd(a, 56, WS, N*512, N*512)
    a(f"""s_lshl_b32 s42, s28, 2
    s_add_u32 s42, s42, s41
    s_lshl_b32 s42, s42, 14
    s_lshl_b32 s48, s27, 1
    s_add_u32 s48, s48, s40
    s_lshl_b32 s48, s48, 7
    s_add_u32 s48, s42, s48
    s_add_u32 s30, s31, 32768
    v_lshlrev_b32 v4, 9, v6
    v_lshl_add_u32 v4, v7, 2, v4
    v_add_u32 v4, s30, v4
    v_lshl_add_u32 v6, v1, 4, s30
    v_lshrrev_b32 v7, 3, v1
    v_lshlrev_b32 v7, 9, v7
    v_and_b32 v18, 7, v1
    v_lshl_add_u32 v7, v18, 4, v7
    s_mov_b32 s52, {NLOG2E}
    s_mov_b32 s60, {PLOG2E}
    v_mov_b32 v5, 0
    v_mov_b32 v125, 0x80008000
    s_waitcnt vmcnt(0)
    s_barrier""")
    stamp(a, 1, ST)
    def wr(t, s):
        for hf in range(2):
            a(f"ds_read_b64_tr_b16 {vr(WOP+32*t+4*s+2*hf,2)}, v{120+t} offset:{4096*s+1024*hf}")
    GD0, GD1, CV, RB = 8, WOP, 72, 88
    for task in range(2):
        sc = (lambda r, b: f"v_mul_f32 v{r}, s52, v{r}") if task == 0 else (lambda r, b: f"v_fma_f32 v{r}, v{r}, s60, v{b}")
        per = 3 if task == 0 else 2
        ahead = 5 if task == 0 else 7
        def rd(s):
            if s < 8:
                if task == 0: a(f"ds_read_b128 {vr(24+4*s,4)}, v{104+s}")
                wr(0, s)
            else: wr(1, s-8)
        for s in range(ahead): rd(s)
        if task == 1:
            a("""v_lshlrev_b32 v122, 16, v122
            v_lshlrev_b32 v123, 16, v123
            v_mul_f32 v122, s60, v122
            v_mul_f32 v123, s60, v123""")
        cnt = lambda lo, hi: sum(per if q < 8 else 2 for q in range(lo, hi))
        for s in range(8):
            a(f"s_waitcnt lgkmcnt({cnt(s+1, s+ahead)})")
            a(mfma(GD0, 24+4*s, WOP+4*s, None if s == 0 else GD0))
            rd(s+ahead)
        for s in range(8+ahead, 16): rd(s)
        a("s_waitcnt lgkmcnt(0)")
        if task == 0:
            a("s_barrier\ns_mov_b32 m0, s31")
            stamp(a, 3, ST)
            for ii in range(4):
                a(f"buffer_load_dwordx4 v124, s[32:35], s43 offen lds")
                a("s_add_u32 m0, m0, 1024\ns_add_u32 s43, s43, 2048")
        for s in range(8):
            a(mfma(GD1, 24+4*s, WOP+32+4*s, None if s == 0 else GD1))
            if s >= 2:
                for j in range((s-2)*3, min(16, (s-1)*3)): a(sc(GD0+j, 122))
        for j in range(16):
            a(sc(GD1+j, 123))
            a(f"""v_cvt_pk_bf16_f32 v{CV+j}, v{GD0+j}, v{GD1+j}
            ds_write_b32 v4, v{CV+j} offset:{128*(8*(j//4)+j%4)}""")
        a("s_waitcnt lgkmcnt(0)")
        if task == 0: stamp(a, 4, ST)
        for i in range(4): a(f"ds_read_b128 {vr(RB+4*i,4)}, v6 offset:{1024*i}")
        for j in range(16): a(f"v_pk_max_i16 v5, v5, v{CV+j}" if task == 0 else f"v_pk_max_u16 v125, v125, v{CV+j}")
        for i in range(4):
            a(f"s_waitcnt lgkmcnt({3-i})\nbuffer_store_dwordx4 {vr(RB+4*i,4)}, v7, {sr(44 if task == 0 else 56, 4)}, s48 offen sc1")
            a("s_add_u32 s48, s48, 4096" if i < 3 else "s_sub_u32 s48, s48, 12288")
        if task == 0: a("s_waitcnt vmcnt(4)\ns_barrier")
    stamp(a, 2, ST)
    a("""v_and_b32 v125, 0x7fff7fff, v125
    v_pk_max_i16 v5, v5, v125
    v_lshlrev_b32 v6, 16, v5
    v_and_b32 v5, 0xffff0000, v5
    v_max_u32 v5, v5, v6""")
    dpp_red(a, "v_max_u32", 5)
    lane63(a); a("ds_max_u32 v3, v5"); full(a)
    srd(a, 44, WS, MAXA, 196*4)
    a(f"""s_lshl_b32 s26, s28, 1
    s_add_u32 s26, s26, s27
    s_lshl_b32 s26, s26, 2
    s_waitcnt lgkmcnt(0)
    s_barrier
    v_cmp_eq_u32 vcc, 0, v0
    s_and_saveexec_b64 s[54:55], vcc
    s_cbranch_execz L1_exit
    ds_read_b32 v6, v3
    s_waitcnt lgkmcnt(0)
    buffer_store_dword v6, v2, s[44:47], s26 offen sc1
    s_branch L1_exit""")
    a(f"""L1_w2:
    v_lshlrev_b32 v2, 4, v1
    s_lshl_b32 s29, s3, 13
    s_mov_b32 m0, s29
    v_mov_b32 v20, 0
    v_mov_b32 v21, 65536
    ds_write_b32 v21, v20
    v_and_b32 v11, 1, v1
    v_lshlrev_b32 v11, 5, v11
    v_bfe_u32 v12, v1, 1, 4
    v_add_u32 v11, v11, v12
    v_lshlrev_b32 v11, 1, v11
    v_lshrrev_b32 v12, 5, v1
    v_lshl_add_u32 v11, v12, 10, v11
    s_lshr_b32 s40, s3, 1
    s_lshl_b32 s40, s40, 7
    s_and_b32 s41, s3, 1
    s_lshl_b32 s41, s41, 5
    s_add_u32 s40, s40, s41
    s_add_u32 s40, s40, {256*512}
    s_waitcnt lgkmcnt(0)""")
    srd(a, 32, W2, None, 65536); srd(a, 36, W1, None, 260*512)
    a("""buffer_load_ushort v8, v11, s[36:39], s40 offen
    buffer_load_ushort v9, v11, s[36:39], s40 offen offset:512""")
    for ii in range(8):
        a("buffer_load_dwordx4 v2, s[32:35], s29 offen lds")
        if ii < 7: a("s_add_u32 m0, m0, 1024\ns_add_u32 s29, s29, 1024")
    a(f"""s_and_b32 s40, s3, 3
    s_lshr_b32 s41, s3, 2
    v_bfe_u32 v5, v1, 2, 1
    v_lshlrev_b32 v5, 5, v5
    v_bfe_u32 v6, v1, 3, 1
    v_add_u32 v5, v5, v6
    v_lshrrev_b32 v6, 5, v1
    v_lshl_add_u32 v5, v6, 2, v5
    v_lshlrev_b32 v5, 8, v5
    v_bfe_u32 v6, v1, 4, 1
    v_lshl_add_u32 v5, v6, 5, v5
    v_and_b32 v6, 3, v1
    v_lshl_add_u32 v5, v6, 3, v5
    s_lshl_b32 s42, s40, 6
    s_lshl_b32 s43, s41, 15
    s_add_u32 s42, s42, s43
    v_add_u32 v5, s42, v5
    s_lshl_b32 s43, s40, 14
    s_lshl_b32 s42, s41, 13
    s_add_u32 s43, s43, s42
    s_mov_b32 s52, {NLOG2E}
    s_lshl_b32 s42, s3, 9
    v_lshlrev_b32 v3, 3, v1""")
    srd(a, 44, WS, W2OP, 65536); srd(a, 48, WS, STAT, 4096); srd(a, 56, WS, MAXW_G, 4)
    a("""s_waitcnt vmcnt(8)
    v_lshlrev_b32 v8, 16, v8
    v_lshlrev_b32 v9, 16, v9
    v_mul_f32 v8, s52, v8
    v_mul_f32 v9, s52, v9
    v_cvt_pk_bf16_f32 v15, v8, v9
    v_mul_f32 v16, v8, v8
    v_fmac_f32 v16, v9, v9
    v_lshlrev_b32 v12, 16, v15
    v_and_b32 v13, 0xffff0000, v15
    v_sub_f32 v8, v8, v12
    v_sub_f32 v9, v9, v13
    v_cvt_pk_bf16_f32 v14, v8, v9
    buffer_store_dwordx2 v[14:15], v3, s[48:51], s42 offen sc1""")
    dpp_red(a, "v_max_u32", 16, full=False)
    a("""v_readlane_b32 s42, v16, 31
    v_add_f32 v16, s42, v16
    s_waitcnt vmcnt(0)
    s_barrier""")
    lane63(a); a("ds_max_u32 v21, v16"); full(a)
    for s in range(8):
        for hf in range(2):
            row = 64*(s//4) + 16*((s//2) % 2) + 8*(s % 2) + 2*hf
            a(f"ds_read_b64_tr_b16 {vr(WOP+4*s+2*hf,2)}, v5 offset:{256*row}")
    a("s_waitcnt lgkmcnt(0)\ns_barrier\nds_read_b32 v16, v21")
    for s in range(8):
        a(f"buffer_store_dwordx4 {vr(WOP+4*s,4)}, v2, s[44:47], s43 offen sc1\ns_add_u32 s43, s43, 1024")
    srd(a, 48, WS, MAXE + CH*4, 16)
    a("""v_lshlrev_b32 v17, 2, v1
    buffer_store_dword v20, v17, s[48:51], 0 offen sc1
    s_waitcnt lgkmcnt(0)
    buffer_store_dword v16, v3, s[56:59], 0 offen sc1
    L1_exit:""")
    stamp_dump(a, ST, 127, 0)
    a("L1_exit2:\ns_endpgm")


CAPT = 60
L_IDX, L_QA, L_TBL, L_CNT, L_MISC, L_DEG, L_EA, L_P = 256, 8448, 10496, 12544, 14592, 14656, 15104, 30464
L_BT = L_P + 31*1024
L_STG = 91136
BTP = 1152
L_NULL = L_BT + 24*BTP + 512
K2_LDS = L_STG + 65536
assert L_BT + 25*BTP <= L_STG
D0, D1, EE, TT, HQ0, HQ1, S0, S1 = 0, 16, 32, 48, 56, 60, 64, 80
ALO, AHI, ID0, ID1, A2, B2R, PP, IP = 96, (104, 112), 120, 124, (128, 132), (136, 140), 144, 148
QV, QST, RA, IB, EB, QB, PB = (156, 157), 158, 159, 163, 164, 165, 166
TID, LANE, DEG, VONE, ESIG, QOFF, L16 = 167, 168, 169, 170, 172, 173, 174
RECR, OFR, W2R, B2V = 0, 240, 176, 252
MASK = 56
S_BASE, S_LIM, S_IMASK, S_SLOW, S_N, S_T0, S_FIRST, S_BK, S_MAXC, S_SAFE, S_CUT, S_STG, S_BETA, S_NEG = range(80, 94)
S_CG, S_GRP, S_R2, S_N0, S_NO = 26, 27, 1, 0, 87


def valu_half(D, hq, mode, fill):
    L = [f"v_exp_f32 v{EE+j}, v{D+j}" for j in range(16)]
    p2 = lambda x: vr(x, 2)
    if mode == "o":
        L.insert(15, None)
        L[15] = f"v_pk_add_f32 {p2(TT)}, {p2(EE)}, 1.0 op_sel_hi:[1,0]"
        L[15], L[16] = L[16], L[15]
        for s in range(1, 8):
            n = D if s == 1 else TT+2
            L.append(f"v_pk_fma_f32 {p2(TT+2)}, {p2(n)}, {p2(EE+2*s)}, {p2(n)}")
            L.append(f"v_pk_fma_f32 {p2(TT+2)}, {p2(D+2*s)}, {p2(TT)}, {p2(TT+2)}")
            L.append(f"v_pk_fma_f32 {p2(TT)}, {p2(TT)}, {p2(EE+2*s)}, {p2(TT)}")
        u, nn, dd = L[-3:]
        L[-3:] = [f"v_pk_fma_f32 {p2(TT+4)}, {p2(TT)}, {p2(EE+14)}, {p2(TT)}", f"v_rcp_f32 v{TT+4}, v{TT+4}", f"v_rcp_f32 v{TT+5}, v{TT+5}", u, nn]
        L.append(f"v_pk_mul_f32 {p2(TT+2)}, {p2(TT+2)}, {p2(TT+4)}")
        L.append(f"v_cvt_pk_bf16_f32 v{hq}, v{TT+2}, v{TT+3}")
        return L + fill
    if mode == "q":
        for q in range(2): L.append(f"v_pk_add_f32 {p2(TT+4*q)}, {p2(EE+8*q)}, 1.0 op_sel_hi:[1,0]")
        for s in range(1, 4):
            for q in range(2):
                n = D+8*q if s == 1 else TT+4*q+2
                L.append(f"v_pk_fma_f32 {p2(TT+4*q+2)}, {p2(n)}, {p2(EE+8*q+2*s)}, {p2(n)}")
            for q in range(2):
                L.append(f"v_pk_fma_f32 {p2(TT+4*q+2)}, {p2(D+8*q+2*s)}, {p2(TT+4*q)}, {p2(TT+4*q+2)}")
            for q in range(2):
                L.append(f"v_pk_fma_f32 {p2(TT+4*q)}, {p2(TT+4*q)}, {p2(EE+8*q+2*s)}, {p2(TT+4*q)}")
        for q in range(2):
            for p in range(2): L.append(f"v_rcp_f32 v{TT+4*q+p}, v{TT+4*q+p}")
        for q in range(2): L.append(f"v_pk_mul_f32 {p2(TT+4*q+2)}, {p2(TT+4*q+2)}, {p2(TT+4*q)}")
    else:
        for j in range(0, 16, 2): L.append(f"v_pk_add_f32 {p2(EE+j)}, {p2(EE+j)}, 1.0 op_sel_hi:[1,0]")
        for j in range(16): L.append(f"v_rcp_f32 v{EE+j}, v{EE+j}")
        for q in range(2): L.append(f"v_pk_mul_f32 {p2(TT+4*q+2)}, {p2(D+8*q)}, {p2(EE+8*q)}")
        for s in range(1, 4):
            for q in range(2):
                L.append(f"v_pk_fma_f32 {p2(TT+4*q+2)}, {p2(D+8*q+2*s)}, {p2(EE+8*q+2*s)}, {p2(TT+4*q+2)}")
    for q in range(2): L.append(f"v_cvt_pk_bf16_f32 v{hq+q}, v{TT+4*q+2}, v{TT+4*q+3}")
    return L + fill


def weave(V, M, pos):
    out = []
    for i, x in enumerate(V):
        out += [m for m, p in zip(M, pos) if p == i]
        out.append(x)
    return out


def incs(k): return [f"v_add_u32 v{IB}, {128*k}, v{IB}", f"v_add_u32 v{EB}, {256*k}, v{EB}", f"v_add_u32 v{QB}, {32*k}, v{QB}"]


def block(a, t, mode):
    par = t & 1
    last = 3 if mode == "o" else 1
    M1 = tmf(D1, AHI[par], A2[par], B2R[1])
    if t == 0: M1.append(mfma(S1, HQ1, PP, S1))
    M2 = tmf(D0, ALO, A2[par ^ 1], B2R[0])
    if t == last: M2.append(mfma(S0, HQ0, PP, S0))
    pos = [1, 4, 7, 10]
    extra = [f"v_add_u32 v{QV[par]}, v{QV[par]}, v{QST}"]
    if t == 0: extra.append(f"v_add_u32 v{PB}, 1024, v{PB}")
    if mode == "o" and t == 2: extra += incs(4)
    if mode != "o" and t == 0: extra += incs(2)
    k = t if mode == "o" else 2*t
    L = weave(valu_half(D0, HQ0+k, mode, extra), M1, pos) + weave(valu_half(D1, HQ1+k, mode, []), M2, pos)
    if OPT["prio"]:
        L.insert(OPT["prio_at"], "s_setprio 1"); L.append("s_setprio 0")
    a("\n".join(L))


def dma(a, par):
    a(f"s_add_u32 m0, s{S_STG}, {4096*par}")
    for u in range(4):
        a(f"buffer_load_dwordx4 {vr(IP+2*u,2)}, s[36:39], 0 idxen offen lds")
        if u < 3: a("s_add_u32 m0, m0, 1024")


def rd_idx(a, t):
    for u in range(4): a(f"ds_read_b32 v{IP+2*u}, v{IB} offset:{128*t+32*u}")


def rd_rows(a, par):
    if OPT["smf"]:
        for c in range(2):
            for gi in range(4):
                a(f"ds_read_b64_tr_b16 {vr((ALO, AHI[par])[c]+2*gi,2)}, v{RA+c} offset:{4096*par+512*gi}")
        return
    for s in range(4):
        d = ALO+4*s if s < 2 else AHI[par]+4*(s-2)
        a(f"ds_read_b128 {vr(d,4)}, v{RA+s} offset:{4096*par}")


def w2chunk(a, k):
    a(f"s_lshl_b32 s96, s{S_CG}, 14\ns_add_u32 s96, s96, {4096*k}")
    for q in range(4): a(f"buffer_load_dwordx4 {vr(W2R+16*k+4*q,4)}, v{L16}, s[44:47], s96 offen offset:{1024*q}")
    if k == 0: a(f"s_lshl_b32 s96, s{S_CG}, 6\nbuffer_load_ushort v{B2V}, v175, s[48:51], s96 offen")


def group(a, par, sh=0, rdp=False, tail=True):
    a("s_waitcnt vmcnt(4)")
    rd_rows(a, par)
    a(f"ds_read_b64_tr_b16 {vr(B2R[1],2)}, v{QV[par^1]} offset:64")
    a(f"ds_read_b64_tr_b16 {vr(B2R[0],2)}, v{QV[par]}")
    a(f"ds_read2st64_b32 {vr(A2[par]+2,2)}, v{EB} offset0:{2+par+sh} offset1:{2+par+sh}")
    if rdp: a(f"ds_read_b128 {vr(PP,4)}, v{PB}")
    a(f"s_cmp_gt_u32 s{S_N}, 3\ns_cselect_b32 s38, {0 if OPT.get('nodma') else AROWS}, 0")
    if tail:
        group.n += 1
        a(f"s_cmp_gt_u32 s{S_N}, 4\ns_cbranch_scc1 L2_tr{group.n}\ns_call_b64 s[98:99], L2_w2stub\nL2_tr{group.n}:")
    a(f"s_waitcnt lgkmcnt({4 if rdp else 3})")
    dma(a, par)
    rd_idx(a, 5+par+sh)
    a(f"ds_read_b32 v{QV[par^1]}, v{QB} offset:{32*(3+par+sh)}")
    a("s_waitcnt lgkmcnt(0)")
group.n = 0


def dec(a, tgt): a(f"s_sub_u32 s{S_N}, s{S_N}, 1\ns_cmp_eq_u32 s{S_N}, 0\ns_cbranch_scc1 {tgt}")


def main_loops(a):
    a("L2_loopO:")
    block(a, 0, "o"); a(f"s_sub_u32 s{S_N}, s{S_N}, 1"); group(a, 0, 2, True)
    block(a, 1, "o"); dec(a, "L2_end_odd"); group(a, 1, 2)
    a(f"s_cmp_eq_u32 s{S_NO}, 2\ns_cbranch_scc1 L2_half")
    block(a, 2, "o"); a(f"s_sub_u32 s{S_N}, s{S_N}, 1"); group(a, 0)
    block(a, 3, "o"); dec(a, "L2_end_even"); group(a, 1)
    a(f"s_sub_u32 s{S_NO}, s{S_NO}, 4\ns_cmp_lg_u32 s{S_NO}, 0\ns_cbranch_scc1 L2_loopO\ns_branch L2_loopF\nL2_half:")
    a(mfma(S0, HQ0, PP, S0)); a("\n".join(incs(2)))
    for tag, mode in (("F", "q"), ("S", "s")):
        a(f"L2_loop{tag}:")
        block(a, 0, mode); dec(a, "L2_end_odd"); group(a, 0, 0, True)
        block(a, 1, mode); dec(a, "L2_end_even"); group(a, 1)
        a(f"s_branch L2_loop{tag}")
    a("L2_w2stub:")
    for k in range(4):
        if k < 3: a(f"s_cmp_lg_u32 s{S_N}, {4-k}\ns_cbranch_scc1 L2_st{k}")
        w2chunk(a, k)
        a("s_setpc_b64 s[98:99]")
        if k < 3: a(f"L2_st{k}:")


def k2(a):
    ST = 253
    L = LANE
    PF = OPT["pf"]
    a("k2_kernel:")
    a(f"s_cmp_ge_u32 s2, {NB}\ns_cbranch_scc1 L2_exit2")
    if OPT.get("stamp"): a(f"v_mov_b32 v{ST}, 0")
    stamp(a, 0, ST)
    ldargs(a)
    a(f"""v_mov_b32 v{TID}, v0
    v_and_b32 v{L}, 63, v0
    v_lshrrev_b32 v2, 6, v0
    v_mov_b32 v{DEG}, 0
    v_readfirstlane_b32 s3, v2""")
    if OPT.get("cpf", 2) == 2: code_pf(a, "k2_kernel", "L2_exit2-k2_kernel", L, 10, 255, 40)
    a(f"""v_mov_b32 v{VONE}, 1
    s_and_b32 s{S_BK}, s2, 7
    s_lshl_b32 s{S_BK}, s{S_BK}, 5
    s_lshr_b32 s28, s2, 3
    s_add_u32 s{S_BK}, s{S_BK}, s28
    s_mul_i32 s{S_NEG}, s{S_BK}, {NPB}
    v_lshrrev_b32 v8, {LSH}, v0
    s_and_b32 s28, s{S_BK}, 3
    s_lshl_b32 s28, s28, 2
    v_lshl_add_u32 v9, v8, 4, s28
    s_lshr_b32 s96, s{S_BK}, 2
    s_mul_i32 s96, s96, {CH*16}
    s_add_u32 s96, s96, {OFF}
    s_mov_b32 s{S_BASE}, 0
    s_mov_b32 s{S_LIM}, {3*LPS}
    s_mov_b32 s{S_IMASK}, 15
    s_mov_b32 s{S_SLOW}, 0
    s_mov_b32 s{S_FIRST}, 1
    s_mov_b32 s{S_BETA}, 0
    s_and_b32 s{S_CG}, s3, 3
    s_lshr_b32 s{S_GRP}, s3, 2
    s_lshl_b32 s{S_STG}, s3, 13
    s_add_u32 s{S_STG}, s{S_STG}, {L_STG}
    v_lshlrev_b32 v{L16}, 4, v{L}
    v_mov_b32 v{IP+1}, 0
    v_mov_b32 v{IP+3}, 0
    v_mov_b32 v{IP+5}, 0
    v_mov_b32 v{IP+7}, 0
    v_mov_b32 v175, 0
    s_waitcnt lgkmcnt(0)""")
    stamp(a, 11, ST)
    srd(a, 28, WS, "s96", CH*16)
    for i in range(4): a(f"buffer_load_dword v{OFR+i}, v9, s[28:31], 0 offen offset:{(8192 >> LSH)*i}")
    if OPT.get("cpf", 2) in (1, 3): code_pf(a, "k2_kernel", "L2_exit2-k2_kernel", L, 10, 255, 40)
    srd(a, 32, WS, REC, CH*CE*12); srd(a, 36, WS, None, AROWS, stride=512)
    NZ = (L_BT - L_CNT)//16
    a(f"""s_cmp_lg_u32 s{S_GRP}, 0
    s_cbranch_scc1 L2_b2
    L2_batch:
    v_and_b32 v112, {LPS-1}, v{L}
    v_add_u32 v112, s{S_BASE}, v112
    s_add_u32 s96, s{S_BASE}, s{S_LIM}
    v_lshrrev_b32 v113, {LSH}, v{TID}
    v_mul_u32_u24 v113, {CE*12}, v113""")
    stamp(a, 12, ST)
    a(f"s_waitcnt vmcnt({1 if OPT.get('cpf', 2) in (1, 3) else 0})")
    stamp(a, 1, ST)
    for i in range(4):
        a(f"""v_lshrrev_b32 v{104+i}, 16, v{OFR+i}
        s_bitcmp1_b32 s{S_IMASK}, {i}
        s_cselect_b32 s98, s96, 0
        v_min_u32 v{104+i}, s98, v{104+i}
        v_and_b32 v114, 0xffff, v{OFR+i}
        v_add_u32 v114, v114, v112
        v_mad_u32_u24 v{108+i}, v114, 12, v113""")
        if i < 3: a(f"v_add_u32 v113, {(512 >> LSH)*CE*12}, v113")
    for rnd in range(3):
        if rnd: a(f"v_add_u32 v112, {LPS}, v112")
        for i in range(4): a(f"v_cmp_lt_u32 {sr(MASK+2*(4*rnd+i),2)}, v112, v{104+i}")
        if rnd == 2:
            a(f"""s_or_b64 s[96:97], {sr(MASK+16,2)}, {sr(MASK+18,2)}
            s_or_b64 s[98:99], {sr(MASK+20,2)}, {sr(MASK+22,2)}
            s_or_b64 s[96:97], s[96:97], s[98:99]
            s_cselect_b32 s{S_R2}, 1, 0
            s_cbranch_scc0 L2_r11""")
        for i in range(4):
            k = 4*rnd + i
            a(f"""s_mov_b64 exec, {sr(MASK+2*k,2)}
            s_cbranch_execz L2_r{k}
            buffer_load_dwordx3 {vr(RECR+4*k,3)}, v{108+i}, s[32:35], 0 offen offset:{12*LPS*rnd}
            L2_r{k}:""")
        full(a)
    a(f"s_cmp_eq_u32 s{S_FIRST}, 0\ns_cbranch_scc1 L2_b2")
    a(f"""v_lshrrev_b32 v104, 16, v{OFR}
    v_lshrrev_b32 v105, 16, v{OFR+1}
    v_lshrrev_b32 v106, 16, v{OFR+2}
    v_lshrrev_b32 v107, 16, v{OFR+3}
    v_max3_u32 v104, v104, v105, v106
    v_max_u32 v254, v104, v107""")
    a(f"""s_add_u32 s95, s{S_NEG}, {N}
    s_lshl_b32 s95, s95, 9
    s_mul_i32 s96, s3, {BTP}
    s_add_u32 m0, s96, {L_BT}
    s_lshl_b32 s94, s3, 10
    s_lshl_b32 s96, s{S_CG}, 10
    v_lshlrev_b32 v115, 3, v{L}""")
    srd(a, 40, WS, "s95", NPB*512); srd(a, 44, WS, STAT, 4096)
    for q in range(3):
        a(f"buffer_load_dwordx4 v{L16}, s[40:43], s94 offen lds")
        a(f"s_add_u32 m0, m0, {8*BTP}\ns_add_u32 s94, s94, 8192")
    a(f"""buffer_load_dwordx2 {vr(B2R[0]+2,2)}, v115, s[44:47], s96 offen
    buffer_load_dwordx2 {vr(B2R[1]+2,2)}, v115, s[44:47], s96 offen offset:512
    s_cmp_eq_u32 s3, 0
    s_cbranch_scc0 L2_b3
    buffer_load_dwordx4 v{L16}, s[40:43], s94 offen lds
    L2_b3:
    s_cmp_eq_u32 s3, 7
    s_cbranch_scc0 L2_b4""")
    srd(a, 44, WS, MAXA, 196*4); srd(a, 48, WS, MAXE, (CH*4+15)//16*16); srd(a, 52, WS, MAXW_G, 4)
    a(f"""v_mov_b32 v116, 0
    buffer_load_dwordx4 v[244:247], v{L16}, s[44:47], 0 offen
    buffer_load_dwordx4 v[248:251], v{L16}, s[48:51], 0 offen
    buffer_load_dword v171, v116, s[52:55], 0 offen
    L2_b4:
    s_cmp_eq_u32 s{S_GRP}, 0
    s_cbranch_scc1 L2_b2""")
    PFE = OPT.get("pfe", 0)
    if PFE:
        srd(a, 44, WS, None, N*512)
        a(f"""s_lshr_b32 s96, s2, 3
        s_lshl_b32 s96, s96, 2
        s_add_u32 s96, s96, s{S_CG}
        s_mul_i32 s96, s96, {PFE*8192}
        v_lshlrev_b32 v116, 7, v{L}""")
        for q in range(PFE):
            a(f"buffer_load_dword v255, v116, s[44:47], s96 offen")
            if q < PFE-1: a("s_add_u32 s96, s96, 8192")
    a("""s_branch L2_wrec
    L2_b2:""")
    a(f"v_lshlrev_b32 v104, 4, v{TID}")
    for j in range(4): a(f"v_mov_b32 v{96+j}, -1\nv_mov_b32 v{100+j}, 0")
    a(f"ds_write_b128 v104, v[96:99] offset:{L_IDX}")
    for i in range(6): a(f"ds_write_b128 v104, v[100:103] offset:{L_CNT + 8192*i}")
    a(f"""v_cmp_gt_u32 vcc, {NZ - 3072}, v{TID}
    v_mov_b32 v96, {L_NULL}
    v_mov_b32 v97, {L_NULL}
    s_and_b64 exec, exec, vcc
    ds_write_b128 v104, v[100:103] offset:{L_CNT + 8192*6}
    s_mov_b64 exec, -1
    v_cmp_gt_u32 vcc, 128, v{TID}
    v_mov_b32 v98, {L_NULL}
    v_mov_b32 v99, {L_NULL}
    s_and_b64 exec, exec, vcc
    ds_write_b128 v104, v[96:99] offset:{L_QA}
    s_mov_b64 exec, -1
""")
    a(f"""s_cmp_eq_u32 s{S_FIRST}, 0
    s_cbranch_scc1 L2_rank0""")
    n_, h_, one, t0, t1, t2, t3, t4, t5 = 96, 97, 98, 99, 100, 101, 102, 103, 104
    for j in range(32): a(f"v_mov_b32 v{S0+j}, 0")
    a(f"""v_and_b32 v{n_}, 31, v{L}
    v_lshrrev_b32 v{h_}, 5, v{L}
    v_and_b32 v{t0}, 1, v{L}
    v_lshlrev_b32 v{t0}, 4, v{t0}
    v_mov_b32 v{one}, 0x3f80
    v_lshlrev_b32 v{one}, v{t0}, v{one}
    v_lshrrev_b32 v{t0}, 1, v{n_}
    v_lshlrev_b32 v{t1}, 2, v{h_}
    v_sub_u32 v{t0}, v{t0}, v{t1}
    v_lshlrev_b32 v175, 1, v{n_}""")
    if not OPT['smf']:
        for q in range(8):
            a(f"v_cmp_eq_u32 {sr(94+2*(q%3),2)}, {8*(q//4) + q%4}, v{t0}")
            if q >= 1: a(f"v_cndmask_b32 v{ID0+q-1}, 0, v{one}, {sr(94+2*((q-1)%3),2)}")
        a(f"v_cndmask_b32 v{ID0+7}, 0, v{one}, {sr(94+2*(7%3),2)}")
    a(f"""v_bfe_u32 v{t1}, v{n_}, 2, 1
    v_lshrrev_b32 v{t2}, 4, v{n_}
    v_and_b32 v{t3}, 1, v{n_}
    v_xor_b32 v{t4}, v{t1}, v{h_}
    v_lshl_or_b32 v{t4}, v{t4}, 1, v{t3}
    v_cmp_eq_u32 s[94:95], 0, v{t4}
    v_cmp_eq_u32 s[96:97], 1, v{t4}
    v_lshlrev_b32 v{t4}, 4, v{t2}
    v_mov_b32 v{one}, 0xbf80
    v_lshlrev_b32 v{one}, v{t4}, v{one}
    v_cndmask_b32 v{A2[0]}, 0, v{one}, s[94:95]
    v_cndmask_b32 v{A2[0]+1}, 0, v{one}, s[96:97]
    v_cndmask_b32 v{A2[1]}, 0, v{one}, s[94:95]
    v_cndmask_b32 v{A2[1]+1}, 0, v{one}, s[96:97]
    v_lshlrev_b32 v{t1}, 4, v{t1}
    v_lshl_or_b32 v{t1}, v{t3}, 3, v{t1}
    v_lshl_or_b32 v{t1}, v{t2}, 2, v{t1}
    v_bfe_u32 v{t4}, v{n_}, 3, 1
    v_lshl_or_b32 v{t1}, v{t4}, 1, v{t1}
    v_bfe_u32 v{t5}, v{n_}, 1, 1
    v_or_b32 v{t1}, v{t1}, v{t5}
    v_lshlrev_b32 v{ESIG}, 3, v{t1}
    v_lshl_add_u32 v{ESIG}, v{h_}, 2, v{ESIG}""")
    if OPT["smf"]:
        a(f"""v_lshrrev_b32 v{t2}, 4, v{t1}
        v_bfe_u32 v{t3}, v{t1}, 2, 1
        v_lshl_or_b32 v{t2}, v{t2}, 1, v{t3}
        v_and_b32 v{t3}, 3, v{t1}
        v_lshlrev_b32 v{t4}, 2, v{t2}
        v_lshlrev_b32 v{ID1}, v{t4}, v{t3}
        v_bfe_u32 v{t3}, v{t1}, 3, 1
        v_xor_b32 v{t3}, v{t3}, v{h_}
        v_lshl_or_b32 v{t2}, v{t3}, 2, v{t2}
        v_mov_b32 v{one}, 0x3f80""")
        for q in range(4): a(f"v_cmp_eq_u32 {sr(56+0,2) if False else sr(94+2*(q%3),2)}, {q}, v{t2}" + (f"\nv_cndmask_b32 v{ID0+q-1}, 0, v{one}, {sr(94+2*((q-1)%3),2)}" if q else "\ns_nop 0"))
        a(f"""v_bfe_u32 v{t1}, v{L}, 2, 2
        v_cndmask_b32 v{ID0+3}, 0, v{one}, {sr(94,2)}
        v_lshl_add_u32 v{t2}, v{h_}, 4, v{t1}
        v_lshlrev_b32 v{t2}, 7, v{t2}
        v_lshrrev_b32 v{t1}, 1, v{t1}
        v_lshl_add_u32 v{t2}, v{t1}, 6, v{t2}
        v_bfe_u32 v{t1}, v{L}, 4, 1
        v_lshl_add_u32 v{t2}, v{t1}, 5, v{t2}
        v_and_b32 v{t3}, 3, v{L}
        v_lshl_add_u32 v{t2}, v{t3}, 3, v{t2}
        v_add_u32 v{RA}, s{S_STG}, v{t2}
        v_xor_b32 v{RA+1}, 64, v{RA}
        v_lshlrev_b32 v{t2}, 2, v{t1}""")
    else:
        a(f"""v_bfe_u32 v{t3}, v{t1}, 1, 3
        v_xor_b32 v{t3}, v{t3}, v{h_}
        v_lshlrev_b32 v{t3}, 4, v{t3}
        v_lshl_add_u32 v{t3}, v{t1}, 7, v{t3}
        v_add_u32 v{RA}, s{S_STG}, v{t3}""")
        for s in range(1, 4): a(f"v_xor_b32 v{RA+s}, {32*s}, v{RA}")
        a(f"v_lshrrev_b32 v{t2}, 4, v{L}")
    a(f"""v_and_b32 v{t3}, 7, v{L}
    v_xor_b32 v{t2}, v{t2}, v{t3}
    s_lshl_b32 s96, s{S_CG}, 7
    v_lshl_add_u32 v{IP+1}, v{t2}, 4, s96
    v_xor_b32 v{IP+3}, {0 if OPT['smf'] else 64}, v{IP+1}
    v_mov_b32 v{IP+5}, v{IP+1}
    v_mov_b32 v{IP+7}, v{IP+3}
    v_bfe_u32 v{t1}, v{L}, 4, 1
    v_lshlrev_b32 v{t1}, 5, v{t1}
    v_and_b32 v{t3}, 3, v{L}
    v_lshl_add_u32 v{t1}, v{t3}, 3, v{t1}
    v_add_u32 v{QST}, s96, v{t1}
    v_bfe_u32 v{t1}, v{L}, 2, 2
    v_lshl_add_u32 v{QOFF}, v{h_}, 2, v{t1}
    v_lshlrev_b32 v{QOFF}, 2, v{QOFF}
    s_cmp_lg_u32 s{S_GRP}, 0
    s_cbranch_scc1 L2_batch
    L2_wrec:""")
    dpp_red(a, "v_max_u32", 254)
    stamp(a, 3, ST)
    a(f"""s_waitcnt vmcnt({8+PFE})
    s_cmp_eq_u32 s3, 7
    s_cbranch_scc1 L2_rank2
    s_waitcnt vmcnt({max(6, 5+PFE)})
    s_cmp_eq_u32 s3, 0
    s_cbranch_scc1 L2_rk6
    s_waitcnt vmcnt({5+PFE})
    s_cmp_lg_u32 s{S_GRP}, 0
    s_cbranch_scc1 L2_rank2
    s_waitcnt vmcnt(5)
    s_branch L2_rank2
    L2_rk6:
    s_waitcnt vmcnt(6)
    s_branch L2_rank2
    L2_rank0:
    s_waitcnt vmcnt(0)
    L2_rank2:
    s_waitcnt lgkmcnt(0)
    s_barrier""")
    stamp(a, 5, ST)
    RK = 96
    for k in range(12):
        if k == 8: a(f"s_cmp_eq_u32 s{S_R2}, 0\ns_cbranch_scc1 L2_k12")
        a(f"""s_mov_b64 exec, {sr(MASK+2*k,2)}
        v_lshrrev_b32 v{RK+k}, 14, v{RECR+4*k+2}
        ds_add_rtn_u32 v{RECR+4*k+3}, v{RK+k}, v{VONE} offset:{L_CNT}""")
    a(f"""L2_k12:
    s_mov_b64 exec, -1
    v_mov_b32 v63, 0
    s_cmp_eq_u32 s{S_FIRST}, 0
    s_cbranch_scc1 L2_k13
    s_mov_b32 exec_lo, 0
    s_mov_b32 exec_hi, 0x80000000
    ds_max_u32 v63, v254 offset:{L_MISC+4}
    s_mov_b64 exec, -1
    s_cmp_eq_u32 s3, 7
    s_cbranch_scc0 L2_k14
    s_waitcnt vmcnt({PFE})
    v_max3_u32 v244, v244, v245, v246
    v_max3_u32 v248, v248, v249, v250
    v_max_u32 v244, v244, v247
    v_max_u32 v248, v248, v251""")
    dpp_red(a, "v_max_u32", [244, 248])
    a(f"""v_mul_f32 v171, v171, v248
    v_sqrt_f32 v171, v171
    v_mov_b32 v54, 0x41f00000
    v_fma_f32 v171, v244, 2.0, v171
    v_mov_b32 v55, 0x41780000
    v_cmp_nlt_f32 vcc, v171, v54
    v_cmp_nlt_f32 s[94:95], v171, v55
    v_cndmask_b32 v54, 0, v{VONE}, vcc
    v_cndmask_b32 v55, 0, v{VONE}, s[94:95]
    v_add_u32 v171, v54, v55""")
    lane63(a); a(f"ds_write_b32 v63, v171 offset:{L_MISC}"); full(a)
    a("L2_k14:")
    if PF:
        srd(a, 44, WS, None, N*512)
        a(f"""s_lshr_b32 s96, s2, 3
        s_lshl_b32 s96, s96, 3
        s_add_u32 s96, s96, s3
        s_mul_i32 s96, s96, {PF*8192}
        v_lshlrev_b32 v48, 7, v{L}""")
        for q in range(PF):
            a(f"buffer_load_dword v255, v48, s[44:47], s96 offen")
            if q < PF-1: a("s_add_u32 s96, s96, 8192")
    CL, CU, C_, PC, O1, O2, R3 = 48, 49, 50, 51, 52, 53, 54
    I1, I2, I3 = 56, 57, 58
    TL, TH = 108, 112
    HM = (0xffffffff << SPLIT) & 0xffffffff
    a(f"""L2_k13:
    s_waitcnt lgkmcnt(0)
    s_barrier
    ds_read_b32 v{CL}, v{L16} offset:{L_CNT}
    ds_read_b32 v{CU}, v{L16} offset:{L_CNT+1024}
    ds_read_b64 v[60:61], v63 offset:{L_MISC}
    s_waitcnt lgkmcnt(1)
    v_add_u32 v{C_}, v{CL}, v{CU}
    v_and_b32 v{O1}, -8, v{CL}
    v_add_u32 v{PC}, 3, v{C_}
    v_mov_b32 v{I1}, v{O1}
    v_and_b32 v{PC}, -4, v{PC}
    v_sub_u32 v{R3}, v{PC}, v{O1}
    v_and_b32 v{O2}, -8, v{R3}
    v_and_b32 v{R3}, 4, v{R3}
    v_mov_b32 v{I2}, v{O2}
    v_mov_b32 v{I3}, v{R3}""")
    dpp_red(a, "v_add_u32", [I1, I2, I3])
    a(f"""v_readlane_b32 s94, v{I1}, 63
    v_readlane_b32 s95, v{I2}, 63
    v_readlane_b32 s96, v{I3}, 63
    v_readlane_b32 s97, v{I1}, {SPLIT-1}
    v_readlane_b32 s98, v{I2}, {SPLIT-1}
    v_readlane_b32 s99, v{I3}, {SPLIT-1}
    v_readlane_b32 s28, v{I1}, 31
    v_sub_u32 v{I1}, v{I1}, v{O1}
    v_sub_u32 v{I2}, v{I2}, v{O2}
    v_sub_u32 v{I3}, v{I3}, v{R3}
    s_cmp_eq_u32 s{S_FIRST}, 0
    s_cbranch_scc1 L2_s1
    s_waitcnt lgkmcnt(0)
    v_readfirstlane_b32 s{S_MAXC}, v61
    v_readfirstlane_b32 s{S_SAFE}, v60
    s_mov_b32 s{S_FIRST}, 0
    L2_s1:
    s_sub_u32 s94, s94, s97
    s_sub_u32 s95, s95, s98
    s_sub_u32 s96, s96, s99
    s_add_u32 s29, s97, s98
    s_add_u32 s30, s29, s99
    s_add_u32 s30, s30, 7
    s_and_b32 s30, s30, -8
    s_sub_u32 s31, s30, s97
    s_add_u32 s28, s28, s31
    s_add_u32 s40, s30, s94
    s_add_u32 s41, s40, s95
    s_add_u32 s42, s41, s96
    s_add_u32 s{S_CUT}, s42, 63
    s_lshr_b32 s{S_CUT}, s{S_CUT}, 6
    s_add_u32 s43, s30, 31
    s_lshr_b32 s43, s43, 5
    s_max_u32 s{S_CUT}, s{S_CUT}, s43
    s_add_u32 s43, s28, 31
    s_lshr_b32 s43, s43, 5
    s_min_u32 s{S_CUT}, s{S_CUT}, s43
    s_lshl_b32 s43, s{S_CUT}, 5
    s_max_u32 s43, s43, s28
    s_sub_u32 s43, s43, s28
    s_add_u32 s40, s40, s43
    s_add_u32 s41, s41, s43
    s_add_u32 s42, s42, s43
    s_sub_u32 s40, s40, s98
    s_sub_u32 s52, s41, s99
    s_mov_b32 exec_lo, {HM ^ 0xffffffff}
    s_mov_b32 exec_hi, 0
    v_add_u32 v{I2}, s97, v{I2}
    v_add_u32 v{I3}, s29, v{I3}
    s_mov_b32 exec_lo, {HM}
    s_mov_b32 exec_hi, -1
    v_add_u32 v{I1}, s31, v{I1}
    v_add_u32 v{I2}, s40, v{I2}
    v_add_u32 v{I3}, s52, v{I3}
    s_mov_b32 exec_lo, 0
    v_add_u32 v{I1}, s43, v{I1}
    s_mov_b64 exec, -1
    v_add_u32 v{O2}, v{O1}, v{O2}
    v_sub_u32 v{I2}, v{I2}, v{O1}
    v_sub_u32 v{I3}, v{I3}, v{O2}
    v_lshl_or_b32 v{TL}, v{O2}, 16, v{O1}
    v_mov_b32 v{TL+1}, v{I1}
    v_mov_b32 v{TL+2}, v{I2}
    v_mov_b32 v{TL+3}, v{I3}
    v_max_u32 v55, v{O2}, v{CL}
    v_sub_u32 v55, v55, v{CL}
    v_lshlrev_b32 v{TH}, 16, v55
    v_add_u32 v{TH+2}, v{I2}, v{CL}
    v_add_u32 v{TH+3}, v{I3}, v{CL}
    ds_write_b128 v{L16}, {vr(TL,4)} offset:{L_TBL}
    ds_write_b128 v{L16}, {vr(TH,4)} offset:{L_TBL+1024}
    s_add_u32 s96, s42, 31
    s_lshr_b32 s96, s96, 5
    s_cmp_lg_u32 s{S_SLOW}, 0
    s_cbranch_scc1 L2_s2
    s_cmp_gt_u32 s96, {CAPT}
    s_cselect_b32 s97, 1, 0
    s_cmp_gt_u32 s{S_MAXC}, {3*LPS}
    s_cselect_b32 s97, 1, s97
    s_cmp_eq_u32 s97, 0
    s_cbranch_scc1 L2_s2
    s_mov_b32 s{S_SLOW}, 1
    s_mov_b32 s{S_LIM}, {LPS}
    s_mov_b32 s{S_IMASK}, 3
    s_waitcnt lgkmcnt(0)
    s_barrier
    s_branch L2_batch
    L2_s2:""")
    stamp(a, 6, ST)
    TB = W2R
    for k in range(8): a(f"s_mov_b64 exec, {sr(MASK+2*k,2)}\nds_read_b128 {vr(TB+4*k,4)}, v{RK+k} offset:{L_TBL}")
    a(f"""s_mov_b64 exec, -1
    v_add_u32 v{DEG}, v{DEG}, v{C_}
    s_lshr_b32 s29, s29, 6
    s_lshl_b32 s29, s29, 1
    s_lshr_b32 s41, s41, 5
    s_max_u32 s41, s41, s{S_CUT}
    s_sub_u32 s41, s41, s{S_CUT}
    s_and_b32 s41, s41, -2
    s_cmp_eq_u32 s{S_SAFE}, 0
    s_cselect_b32 s29, s29, 0
    s_cselect_b32 s41, s41, 0
    s_add_u32 s30, s29, 3
    s_lshr_b32 s30, s30, 2
    s_sub_u32 s31, s{S_CUT}, s29
    s_add_u32 s31, s31, 1
    s_lshr_b32 s31, s31, 1
    s_add_u32 s31, s31, s30
    s_add_u32 s40, s41, 3
    s_lshr_b32 s40, s40, 2
    s_add_u32 s40, s40, s31
    s_min_u32 s98, s{S_CUT}, s96
    s_sub_u32 s99, s96, s98
    s_cmp_eq_u32 s{S_GRP}, 0
    s_cselect_b32 s{S_N}, s98, s99
    s_cselect_b32 s{S_T0}, 0, s{S_CUT}
    s_cselect_b32 s{S_NO}, s29, s41
    s_cselect_b32 s53, 0, s31
    s_add_u32 s41, s41, s{S_CUT}
    s_lshl_b32 s30, s30, 1
    s_sub_u32 s30, s30, s29
    s_lshl_b32 s31, s31, 2
    s_sub_u32 s31, s31, s{S_CUT}
    s_lshl_b32 s40, s40, 1
    s_sub_u32 s40, s40, s41
    v_cmp_eq_u32 vcc, 0, v{R3}
    s_cmp_ge_u32 s3, 3
    s_cbranch_scc1 L2_pad
    v_add_u32 v55, s3, v{C_}
    v_cndmask_b32 v59, v{I3}, v{I2}, vcc
    v_cmp_lt_u32 vcc, v55, v{PC}
    s_add_u32 s96, s{S_NEG}, {N}
    s_and_b64 exec, exec, vcc
    v_add_u32 v60, s96, v{L}
    v_add_lshl_u32 v55, v55, v59, 2
    ds_write_b32 v55, v60 offset:{L_IDX}
    s_mov_b64 exec, -1
    L2_pad:""")
    for r in (PC, O1, O2, I1, I2, I3): a(f"v_lshrrev_b32 v{r}, 2, v{r}")
    QA_, ONE, NC1, Q, T, U, V = 48, 49, 50, 54, 55, 59, 60
    a(f"""v_lshrrev_b32 v{QA_}, 1, v{L}
    v_mul_u32_u24 v{QA_}, {BTP}, v{QA_}
    v_and_b32 v{ONE}, 1, v{L}
    v_lshl_add_u32 v{QA_}, v{ONE}, 9, v{QA_}
    v_add_u32 v{QA_}, {L_BT}, v{QA_}
    v_mov_b32 v{ONE}, 0x3f80
    v_subrev_u32 v{NC1}, {17*16}, v{L16}
    v_mov_b32 v61, s30
    v_mov_b32 v62, s40
    s_mov_b32 s97, s3
    L2_q:
    v_cmp_lt_u32 s[94:95], s97, v{O2}
    v_cmp_lt_u32 s[98:99], s97, v{O1}
    v_cmp_lt_u32 vcc, s97, v{PC}
    v_cndmask_b32 v{Q}, v{I3}, v{I2}, s[94:95]
    s_and_b64 exec, exec, vcc
    s_cbranch_execz L2_qd
    v_cndmask_b32 v{Q}, v{Q}, v{I1}, s[98:99]
    v_add_u32 v{Q}, s97, v{Q}
    v_lshrrev_b32 v{T}, 3, v{Q}
    v_lshlrev_b32 v{U}, 2, v{Q}
    ds_write_b32 v{U}, v{QA_} offset:{L_QA}
    v_cmp_le_u32 vcc, s{S_CUT}, v{T}
    v_cmp_gt_u32 s[94:95], s29, v{T}
    v_cmp_gt_u32 s[98:99], s41, v{T}
    v_and_b32 v{V}, 4, v{Q}
    v_cndmask_b32 v{U}, v{L16}, v{NC1}, vcc
    v_lshl_add_u32 v{U}, v{V}, 7, v{U}
    v_and_b32 v{V}, 2, v{Q}
    v_add_u32 v{U}, v{U}, v{V}
    s_and_b64 s[98:99], s[98:99], vcc
    s_or_b64 s[94:95], s[94:95], s[98:99]
    v_cndmask_b32 v{V}, v61, v62, vcc
    v_add_u32 v{V}, v{V}, v{T}
    v_and_b32 v{Q}, 1, v{Q}
    v_lshl_or_b32 v{Q}, v{V}, 1, v{Q}
    v_mov_b32 v{V}, s31
    v_cndmask_b32 v{V}, 0, v{V}, vcc
    v_add_u32 v{V}, v{V}, v{T}
    v_cndmask_b32 v{Q}, v{Q}, v{V}, s[94:95]
    v_and_b32 v{V}, -4, v{Q}
    v_lshl_add_u32 v{U}, v{V}, 8, v{U}
    v_and_b32 v{V}, 3, v{Q}
    v_lshl_add_u32 v{U}, v{V}, 2, v{U}
    ds_write_b16 v{U}, v{ONE} offset:{L_P}
    s_add_u32 s97, s97, 8
    s_branch L2_q
    L2_qd:
    s_mov_b64 exec, -1
    s_waitcnt lgkmcnt(0)""")
    def scatter(ks):
        P = ((94, 96), (28, 30), (40, 42))
        def st1(k):
            r, tb = RECR+4*k+3, TB+4*(k % 8)
            a(f"""v_cmp_lt_u32_sdwa {sr(P[k%3][0],2)}, v{r}, v{tb} src0_sel:DWORD src1_sel:WORD_1
            v_cmp_lt_u32_sdwa {sr(P[k%3][1],2)}, v{r}, v{tb} src0_sel:DWORD src1_sel:WORD_0""")
        def st2(k):
            r, m, tb = RECR+4*k+3, RECR+4*k+2, TB+4*(k % 8)
            a(f"""v_cndmask_b32 v{tb+3}, v{tb+3}, v{tb+2}, {sr(P[k%3][0],2)}
            v_cndmask_b32 v{tb+3}, v{tb+3}, v{tb+1}, {sr(P[k%3][1],2)}
            v_and_b32 v{m}, {OPT.get('imask', 0x3fff)}, v{m}
            v_add_lshl_u32 v{tb+3}, v{tb+3}, v{r}, 2
            v_lshlrev_b32 v{tb}, 1, v{tb+3}""")
        st1(ks[0])
        for i, k in enumerate(ks):
            if i + 1 < len(ks): st1(ks[i+1])
            st2(k)
        for k in ks:
            tb = TB+4*(k % 8)
            a(f"""s_mov_b64 exec, {sr(MASK+2*k,2)}
            ds_write_b32 v{tb+3}, v{RECR+4*k+2} offset:{L_IDX}
            ds_write_b64 v{tb}, {vr(RECR+4*k,2)} offset:{L_EA}""")
    scatter(list(range(8)))
    a(f"s_cmp_eq_u32 s{S_R2}, 0\ns_cbranch_scc1 L2_c12")
    for k2 in range(8, 12):
        a(f"""s_mov_b64 exec, {sr(MASK+2*k2,2)}
        v_lshrrev_b32 v{RK+k2-8}, 14, v{RECR+4*k2+2}
        ds_read_b128 {vr(TB+4*(k2-8),4)}, v{RK+k2-8} offset:{L_TBL}""")
    a("s_mov_b64 exec, -1\ns_waitcnt lgkmcnt(0)")
    scatter(list(range(8, 12)))
    a(f"""L2_c12:
    s_mov_b64 exec, -1
    s_lshl_b32 s96, s{S_T0}, 7
    s_add_u32 s96, s96, {L_IDX-256}
    v_lshrrev_b32 v54, 3, v{L}
    v_lshl_add_u32 v{IB}, v54, 2, s96
    s_lshl_b32 s96, s{S_T0}, 8
    s_add_u32 s96, s96, {L_EA-512}
    v_add_u32 v{EB}, s96, v{ESIG}
    s_lshl_b32 s96, s{S_T0}, 5
    s_add_u32 s96, s96, {L_QA-64}
    v_add_u32 v{QB}, s96, v{QOFF}
    s_lshl_b32 s96, s53, 10
    s_add_u32 s96, s96, {L_P-1024}
    v_add_u32 v{PB}, s96, v{L16}""")
    for j in range(8): a(f"v_mov_b32 v{HQ0+j}, 0")
    for j in range(4): a(f"v_mov_b32 v{PP+j}, 0\nv_mov_b32 v{EE+2*j+1}, v{IP+2*j+1}")
    srd(a, 44, WS, W2OP, 65536); srd(a, 48, B2, None, 256)
    a(f"""s_mov_b32 s38, {AROWS}
    s_mov_b32 s{S_N0}, s{S_N}
    s_waitcnt vmcnt({PF+PFE})
    s_cmp_lg_u32 s{S_GRP}, 0
    s_cbranch_scc1 L2_b5
    s_waitcnt vmcnt({PF})
    L2_b5:
    s_waitcnt lgkmcnt(0)
    s_barrier
    s_cmp_eq_u32 s{S_N}, 0
    s_cbranch_scc1 L2_done""")
    stamp(a, 7, ST)
    rd_idx(a, 2)
    for u in range(4): a(f"ds_read_b32 v{EE+2*u}, v{IB} offset:{128*3+32*u}")
    a("s_waitcnt lgkmcnt(4)"); dma(a, 0)
    rd_idx(a, 4)
    a(f"s_add_u32 m0, s{S_STG}, 4096\ns_waitcnt lgkmcnt(4)")
    for u in range(4):
        a(f"buffer_load_dwordx4 {vr(EE+2*u,2)}, s[36:39], 0 idxen offen lds")
        if u < 3: a("s_add_u32 m0, m0, 1024")
    a(f"""ds_read_b32 v{QV[0]}, v{QB} offset:64
    ds_read_b32 v{QV[1]}, v{QB} offset:96
    ds_read2st64_b32 {vr(A2[0]+2,2)}, v{EB} offset0:2 offset1:2
    s_waitcnt lgkmcnt(0)
    v_add_u32 v{QV[0]}, v{QV[0]}, v{QST}
    v_add_u32 v{QV[1]}, v{QV[1]}, v{QST}
    s_waitcnt vmcnt(4)""")
    rd_rows(a, 0)
    a(f"ds_read_b64_tr_b16 {vr(B2R[0],2)}, v{QV[0]}\ns_waitcnt lgkmcnt(0)")
    for m in tmf(D0, ALO, A2[0], B2R[0]): a(m)
    dma(a, 0); rd_idx(a, 5)
    group(a, 1, tail=False)
    stamp(a, 8, ST)
    if OPT.get("stamp"): a(f"v_writelane_b32 v{ST}, s{S_N}, 30")
    a(f"s_cmp_eq_u32 s{S_SAFE}, 2\ns_cbranch_scc1 L2_loopS\ns_cmp_eq_u32 s{S_NO}, 0\ns_cbranch_scc1 L2_loopF")
    main_loops(a)
    a(f"""L2_end_odd:
    ds_read_b128 {vr(PP,4)}, v{PB}
    s_waitcnt lgkmcnt(0)""")
    a(mfma(S0, HQ0, PP, S0))
    a("L2_end_even:")
    a(mfma(S1, HQ1, PP, S1))
    a(f"""L2_done:
    s_waitcnt vmcnt(0)
    s_cmp_eq_u32 s{S_SLOW}, 0
    s_cbranch_scc1 L2_epi
    s_add_u32 s{S_BETA}, s{S_BETA}, 1
    s_lshr_b32 s{S_BASE}, s{S_BETA}, 1
    s_lshl_b32 s{S_BASE}, s{S_BASE}, {LSH}
    s_xor_b32 s{S_IMASK}, s{S_IMASK}, 15
    s_cmp_ge_u32 s{S_BASE}, s{S_MAXC}
    s_cbranch_scc1 L2_epi
    s_barrier
    s_branch L2_batch""")
    a(f"L2_epi:\ns_cmp_gt_u32 s{S_N0}, 4\ns_cbranch_scc1 L2_epi1")
    for k in range(4): w2chunk(a, k)
    a("s_waitcnt vmcnt(0)\nL2_epi1:")
    stamp(a, 9, ST)
    a(f"""v_and_b32 v2, 31, v{L}
    v_lshrrev_b32 v3, 5, v{L}
    s_mov_b32 s94, {NLN2}
    s_mov_b32 s95, {NLN2}
    v_bfe_u32 v5, v2, 1, 3
    v_lshlrev_b32 v5, 4, v5
    v_lshl_add_u32 v5, v2, 7, v5
    v_lshl_add_u32 v6, v3, 3, v5
    v_add_u32 v6, s{S_STG}, v6""")
    for u in range(8):
        a(f"""v_xor_b32 v{32+u}, {16*u}, v6
        v_cvt_pk_bf16_f32 v{16+2*u}, v{S0+4*u}, v{S0+4*u+1}
        v_cvt_pk_bf16_f32 v{17+2*u}, v{S0+4*u+2}, v{S0+4*u+3}
        ds_write_b64 v{32+u}, {vr(16+2*u,2)}""")
    a(f"""s_cmp_lg_u32 s3, 0
    s_cbranch_scc1 L2_e1
    v_cvt_f32_u32 v8, v{DEG}
    v_lshlrev_b32 v9, 2, v{L}
    s_mov_b32 exec_hi, 0
    ds_write_b32 v9, v8 offset:{L_DEG}
    s_mov_b32 exec_lo, 0xfffe0000
    s_mov_b32 exec_hi, 0x1ffff
    ds_write_b32 v9, v8 offset:{L_DEG+128-68}
    s_mov_b64 exec, -1
    L2_e1:
    v_lshlrev_b32 v7, 4, v3
    v_xor_b32 v5, v5, v7
    s_lshl_b32 s97, s{S_GRP}, 15
    s_add_u32 s97, s97, {L_STG}
    v_add_u32 v241, s97, v5
    v_xor_b32 v242, 32, v241
    v_xor_b32 v243, 64, v241
    v_xor_b32 v244, 96, v241
    s_lshl_b32 s97, s{S_GRP}, 7
    v_lshl_add_u32 v245, v3, 4, s97
    s_lshl_b32 s96, s{S_CG}, 7
    s_add_u32 s96, s96, {L_P-512}
    v_lshlrev_b32 v246, 11, v3
    v_lshl_add_u32 v246, v2, 2, v246
    v_add_u32 v246, s96, v246
    s_mul_i32 s96, s{S_GRP}, {17*256}
    s_lshl_b32 s97, s{S_CG}, 6
    s_add_u32 s96, s96, s97
    v_lshlrev_b32 v247, 10, v3
    v_and_b32 v7, 1, v2
    v_lshl_add_u32 v247, v7, 8, v247
    v_and_b32 v8, 30, v2
    v_lshl_add_u32 v247, v8, 1, v247
    v_cmp_eq_u32 vcc, 0, v7
    v_mov_b32 v8, 0x07060302
    v_mov_b32 v9, 0x01000504
    v_cndmask_b32 v248, v8, v9, vcc
    v_add_u32 v247, s96, v247
    v_lshlrev_b32 v240, 16, v{B2V}
    s_sub_u32 s96, {N}, s{S_NEG}
    s_min_u32 s96, s96, {NPB}
    s_lshl_b32 s96, s96, 8
    s_lshl_b32 s97, s{S_NEG}, 8""")
    srd(a, 52, OUT, "s97", "s96")
    a("""s_mov_b32 s97, 4096
    s_waitcnt lgkmcnt(0)
    s_barrier""")
    for s in range(16): a(f"ds_read_b128 {vr(4*s,4)}, v{241+s%4} offset:{8192*(s//4)}")
    for jq in range(4): a(f"ds_read_b128 {vr(96+4*jq,4)}, v245 offset:{L_DEG+32*jq}")
    stamp(a, 10, ST)
    O = 64
    for s in range(16):
        a(f"s_waitcnt lgkmcnt({min(15, 19-s)})")
        a(mfma(O, 4*s, W2R+4*s, None if s == 0 else O))
    a("s_waitcnt lgkmcnt(0)")
    for j in range(16): a(f"v_mul_f32 v{96+j}, v{96+j}, v240")
    a(f"s_cmp_eq_u32 s{S_GRP}, 0\ns_cbranch_scc1 L2_e2")
    for j in range(8): a(f"ds_write_b32 v246, v{O+j} offset:{(8*(j//4)+j%4+1)*512}")
    a("""L2_e2:
    s_waitcnt lgkmcnt(0)
    s_barrier""")
    def fin(js):
        for j in js: a(f"v_fma_f32 v{O+j}, v{O+j}, s94, v{96+j}")
        for j in js[::2]: a(f"v_cvt_pk_bf16_f32 v{16+j//2}, v{O+j}, v{O+j+1}")
        for j in js[::2]: a(f"v_mov_b32_dpp v{24+j//2}, v{16+j//2} quad_perm:[1,0,3,2] row_mask:0xf bank_mask:0xf")
        for j in js[::2]: a(f"v_perm_b32 v{16+j//2}, v{16+j//2}, v{24+j//2}, v248")
    def st(j):
        off = (8*(j//4) + j % 4)*256
        return f"buffer_store_dword v{16+j//2}, v247, s[52:55], {'0' if off < 4096 else 's97'} offen offset:{off % 4096}"
    a(f"s_cmp_lg_u32 s{S_GRP}, 0\ns_cbranch_scc1 L2_e3")
    for j in range(8, 16): a(f"ds_read_b32 v{j}, v246 offset:{(8*(j//4)+j%4-16)*512}")
    fin(list(range(8)))
    for j in range(0, 8, 2): a(st(j))
    a(f"""s_waitcnt lgkmcnt(0)
    s_mov_b32 exec_lo, 0
    v_add_f32 v{O+8}, v{O+8}, v8
    s_mov_b64 exec, -1""")
    for j in range(9, 16): a(f"v_add_f32 v{O+j}, v{O+j}, v{j}")
    a("s_branch L2_e5\nL2_e3:")
    fin([6, 7])
    a("s_mov_b32 exec_lo, 0\ns_mov_b32 exec_hi, 0xaaaaaaaa")
    a(st(6)); a("s_mov_b64 exec, -1\nL2_e5:")
    fin(list(range(8, 16)))
    for j in range(8, 16, 2): a(st(j))
    stamp_dump(a, ST, 0, 1)
    a("L2_exit2:\ns_endpgm")


HEAD = """; edge-featured MPNN: K1 = edge partition by dst bucket + node tables + operand prep ; K2 = gather / silu / segment-sum / final GEMM
; @launch kernel=k1_kernel grid=({g1},1,1) block=(512,1,1) lds={l1}
; @launch kernel=k2_kernel grid=({g2},1,1) block=(512,1,1) lds={l2}
.amdgcn_target "amdgcn-amd-amdhsa--gfx950"
.text
"""
KD = """.amdhsa_kernel {name}
  .amdhsa_next_free_vgpr {v}
  .amdhsa_next_free_sgpr 102
  .amdhsa_accum_offset {v}
  .amdhsa_group_segment_fixed_size 0
  .amdhsa_kernarg_size 88
  .amdhsa_user_sgpr_count 2
  .amdhsa_user_sgpr_kernarg_segment_ptr 1
  .amdhsa_system_sgpr_workgroup_id_x 1
.end_amdhsa_kernel
"""


def build():
    out = HEAD.format(g1=K1_GRID, l1=K1_LDS, g2=NB, l2=K2_LDS)
    for name, fn in (("k1_kernel", k1), ("k2_kernel", k2)):
        a = Asm(); fn(a)
        out += f".globl {name}\n.p2align 8\n.type {name},@function\n" + a.text(verbose=OPT.get("v", 0))
    out += '.section .rodata,"a"\n.p2align 6\n' + KD.format(name="k1_kernel", v=128) + ".p2align 6\n" + KD.format(name="k2_kernel", v=256)
    return out


if __name__ == "__main__":
    open(sys.argv[1], "w").write(build())
```

```python
import sys, struct
from asmlib import Asm, vr, sr

OPT = dict(prio=1, prio_at=32, pf=1, ept=4, smf=1, gp=0, split=25, cb=95)
for a_ in sys.argv[2:]:
    k_, v_ = a_.split("="); OPT[k_] = int(v_)

N, E = 12500, 400000
NPB, NB = 49, 256
EPT = OPT["ept"]
CE = 400*EPT; CH = E//CE
LPS = 2*EPT
LSH = {8: 3, 16: 4}[LPS]
SPLIT, HALF = OPT.get('split', 23), 6250
AROWS = N + 2
REC = 13 << 20
OFF = 19 << 20
W2OP = 20 << 20
STAT = W2OP + 65536
BIAS = STAT + 4096
W1BOP = STAT + 8192
MAXA = W1BOP + 65536
MAXE = MAXA + 1024
MAXW_G = MAXE + 1024
STAMPS = 24 << 20
NG = 208
K1_GRID = NG + 3 + CH
K1_LDS = 65536 + 64

def f2u(x): return struct.unpack("<I", struct.pack("<f", x))[0]
NLOG2E = f2u(-1.4426950408889634)
PLOG2E = NLOG2E ^ 0x80000000
NLN2 = f2u(-0.6931471805599453)
X, EA_, SRC, DST, W1, B1, W2, B2, OUT, DBG, WS = 4, 6, 8, 10, 12, 14, 16, 18, 20, 22, 24
SHR = ["row_shr:%d row_mask:0xf bank_mask:0xf bound_ctrl:0" % i for i in (1, 2, 4, 8)]
BC15, BC31 = "row_bcast:15 row_mask:0xa bank_mask:0xf", "row_bcast:31 row_mask:0xc bank_mask:0xf"


def srd(a, d, base, add, size, stride=0):
    if add is None:
        a(f"s_mov_b32 s{d}, s{base}\ns_mov_b32 s{d+1}, s{base+1}")
    else:
        a(f"s_add_u32 s{d}, s{base}, {add}\ns_addc_u32 s{d+1}, s{base+1}, 0")
    if stride: a(f"s_or_b32 s{d+1}, s{d+1}, {stride << 16}")
    a(f"s_mov_b32 s{d+2}, {size}\ns_mov_b32 s{d+3}, 0x00020000")


def ldargs(a):
    a("""s_load_dwordx16 s[4:19], s[0:1], 0
    s_load_dwordx4 s[20:23], s[0:1], 64
    s_load_dwordx2 s[24:25], s[0:1], 80""")


def dpp_red(a, op, vs, full=True):
    if isinstance(vs, int): vs = [vs]
    for m in SHR + [BC15] + ([BC31] if full else []):
        for v in vs: a(f"{op}_dpp v{v}, v{v}, v{v} {m}")


def stamp(a, k, reg):
    if not OPT.get("stamp"): return
    a(f"s_memrealtime s[100:101]\ns_waitcnt lgkmcnt(0)\nv_writelane_b32 v{reg}, s100, {k}")
    if k in (0, 7, 8, 9, 31): a(f"s_memtime s[100:101]\ns_waitcnt lgkmcnt(0)\nv_writelane_b32 v{reg}, s100, {32+k}")


def stamp_dump(a, reg, tmp, kern):
    if not OPT.get("stamp"): return
    a("s_mov_b64 exec, -1\ns_waitcnt vmcnt(0)")
    stamp(a, 31, reg)
    a(f"""s_lshl_b32 s96, s2, 3
    s_add_u32 s96, s96, s3
    s_lshl_b32 s96, s96, 8
    s_add_u32 s96, s96, {STAMPS + kern*(1 << 20)}""")
    srd(a, 44, WS, "s96", 256)
    a(f"""v_mbcnt_lo_u32_b32 v{tmp}, -1, 0
    v_mbcnt_hi_u32_b32 v{tmp}, -1, v{tmp}
    v_lshlrev_b32 v{tmp}, 2, v{tmp}
    buffer_store_dword v{reg}, v{tmp}, s[44:47], 0 offen""")


def smf(D, B): return f"v_smfmac_f32_32x32x32_bf16 {vr(D,16)}, {vr(ID0,4)}, {vr(B,8)}, v{ID1}"
def tmf(D, rows, a2, b2):
    if OPT["smf"]: return [mfma(D, a2, b2, None), smf(D, rows)]
    return [mfma(D, rows, ID0, None), mfma(D, rows+4, ID1, D), mfma(D, a2, b2, D)]
def code_pf(a, label, size, lane, tmp, junk, sr0, lanes=16):
    if not OPT.get("cpf", 2): return
    code_pf.n += 1
    a(f"""s_getpc_b64 s[{sr0}:{sr0+1}]
    L_pc{code_pf.n}:
    s_sub_u32 s{sr0}, s{sr0}, L_pc{code_pf.n}-{label}
    s_subb_u32 s{sr0+1}, s{sr0+1}, 0
    s_cmp_lt_u32 s2, {OPT.get("cpn", 16)}
    s_cselect_b32 s{sr0+2}, {size}, 0
    s_mov_b32 s{sr0+3}, 0x00020000
    s_mul_i32 s99, s3, {128*lanes}
    v_lshlrev_b32 v{tmp}, 7, v{lane}
    s_mov_b64 exec, {(1 << lanes) - 1}
    buffer_load_dword v{junk}, v{tmp}, s[{sr0}:{sr0+3}], s99 offen
    s_mov_b64 exec, -1""")
code_pf.n = 0
def lane63(a): a("s_mov_b32 exec_lo, 0\ns_mov_b32 exec_hi, 0x80000000")
def full(a): a("s_mov_b64 exec, -1")
def mfma(D, A, B, C): return f"v_mfma_f32_32x32x16_bf16 {vr(D,16)}, {vr(A,4)}, {vr(B,4)}, " + ("0" if C is None else vr(C, 16))


def k1(a):
    ST = 126
    a("k1_kernel:")
    a(f"s_cmp_ge_u32 s2, {K1_GRID}\ns_cbranch_scc1 L1_exit2")
    if OPT.get("stamp"): a(f"v_mov_b32 v{ST}, 0")
    stamp(a, 0, ST)
    ldargs(a)
    a(f"""v_and_b32 v1, 63, v0
    v_lshrrev_b32 v2, 6, v0
    s_nop 0
    v_readfirstlane_b32 s3, v2""")
    if OPT.get("cpf", 2) >= 2: code_pf(a, "k1_kernel", "L2_exit2-k1_kernel", 1, 63, 63, 64, 22)
    a(f"s_cmp_gt_u32 s2, {NG+2}\ns_cbranch_scc1 L1_part" if OPT.get("gfirst", 1) else f"s_cmp_le_u32 s2, {NG+2}\ns_cbranch_scc1 L1_gemm")
    WOP = 56
    def gemm_role():
        WOP = 56
        a(f"""    s_cmp_eq_u32 s2, {NG+2}
        s_cbranch_scc1 L1_w2
        s_bfe_u32 s27, s2, 0x10003
        s_lshr_b32 s28, s2, 4
        s_lshl_b32 s28, s28, 3
        s_and_b32 s29, s2, 7
        s_add_u32 s28, s28, s29
        s_cmp_ge_u32 s2, {NG}
        s_cselect_b32 s27, s29, s27
        s_cselect_b32 s61, {128*512}, 0
        s_cbranch_scc1 L1_g1
        s_cmp_ge_u32 s28, 98
        s_cbranch_scc1 L1_exit2
        L1_g1:
        v_lshrrev_b32 v18, 4, v1
        v_and_b32 v19, 15, v1
        v_lshlrev_b32 v24, 2, v18
        v_xor_b32 v24, v24, v19
        v_lshlrev_b32 v24, 4, v24
        v_lshl_or_b32 v124, v18, 9, v24""")
        for ii in range(4):
            a(f"""v_add_u32 v20, {4*ii}, v18
            v_xor_b32 v20, v20, v19
            v_lshlrev_b32 v20, 4, v20
            v_lshl_or_b32 v{25+ii}, v18, 8, v20""")
        a(f"""v_mov_b32 v2, 0
        v_mov_b32 v3, 65536
        ds_write_b32 v3, v2
        s_lshl_b32 s43, s3, 13
        s_lshl_b32 s30, s27, 8
        s_add_u32 s43, s43, s30
        s_add_u32 s43, s43, s61
        s_lshl_b32 s31, s3, 12
        s_lshl_b32 s29, s28, 15
        s_add_u32 s29, s29, s31
        s_add_u32 m0, s31, 32768
        s_and_b32 s40, s3, 1
        s_lshr_b32 s41, s3, 1
        v_and_b32 v7, 31, v1
        v_lshlrev_b32 v20, 1, v7
        s_lshl_b32 s42, s40, 7
        s_add_u32 s42, s42, s30
        s_waitcnt lgkmcnt(0)""")
        stamp(a, 5, ST)
        srd(a, 36, X, None, N*256)
        for ii in range(4):
            a(f"buffer_load_dwordx4 v{25+ii}, s[36:39], s29 offen nt lds")
            if ii < 3: a("s_add_u32 m0, m0, 1024\ns_add_u32 s29, s29, 1024")
        a("s_mov_b32 m0, s31")
        srd(a, 32, W1, None, 260*512)
        for ii in range(4):
            a(f"buffer_load_dwordx4 v124, s[32:35], s43 offen lds")
            a("s_add_u32 m0, m0, 1024\ns_add_u32 s43, s43, 2048")
        if OPT.get("cpf", 2) == 1: code_pf(a, "k1_kernel", "L1_exit2-k1_kernel", 1, 21, 22, 64)
        stamp(a, 6, ST)
        a(f"""v_bfe_u32 v18, v1, 2, 2
        v_lshrrev_b32 v6, 5, v1
        v_lshl_add_u32 v19, v6, 3, v18
        v_lshlrev_b32 v19, 8, v19
        v_bfe_u32 v20, v1, 4, 1
        v_lshlrev_b32 v20, 5, v20
        v_and_b32 v21, 3, v1
        v_lshl_add_u32 v20, v21, 3, v20
        v_add_u32 v19, v19, v20
        s_lshl_b32 s42, s40, 1
        v_xor_b32 v20, s42, v18
        v_lshl_add_u32 v120, v20, 6, v19
        v_xor_b32 v20, 1, v20
        v_lshl_add_u32 v121, v20, 6, v19
        s_lshl_b32 s42, s41, 5
        v_add_u32 v19, s42, v7
        v_lshlrev_b32 v19, 8, v19
        v_and_b32 v20, 15, v1
        v_xor_b32 v20, v20, v6
        v_lshl_add_u32 v104, v20, 4, v19
        v_add_u32 v104, 32768, v104""")
        for s in range(1, 8): a(f"v_xor_b32 v{104+s}, {32*s}, v104")
        srd(a, 44, WS, None, N*512)
        a(f"""s_lshl_b32 s42, s28, 2
        s_add_u32 s42, s42, s41
        s_lshl_b32 s42, s42, 14
        s_lshl_b32 s48, s27, 1
        s_add_u32 s48, s48, s40
        s_lshl_b32 s48, s48, 7
        s_add_u32 s48, s42, s48
        s_add_u32 s30, s31, 32768
        v_lshlrev_b32 v4, 9, v6
        v_lshl_add_u32 v4, v7, 2, v4
        v_add_u32 v4, s30, v4
        v_lshl_add_u32 v6, v1, 4, s30
        v_lshrrev_b32 v7, 3, v1
        v_lshlrev_b32 v7, 9, v7
        v_and_b32 v18, 7, v1
        v_lshl_add_u32 v7, v18, 4, v7
        s_mov_b32 s52, {NLOG2E}
        s_mov_b32 s60, {PLOG2E}
        v_mov_b32 v5, 0
        v_mov_b32 v125, 0x80008000
        s_setprio {OPT.get("gp", 0)}
        s_waitcnt vmcnt(0)
        s_barrier""")
        stamp(a, 1, ST)
        def wr(t, s):
            for hf in range(2):
                a(f"ds_read_b64_tr_b16 {vr(WOP+32*t+4*s+2*hf,2)}, v{120+t} offset:{4096*s+1024*hf}")
        GD0, GD1, CV, RB = 8, WOP, 72, 88
        for task in range(1):
            sc = (lambda r, b: f"v_mul_f32 v{r}, s52, v{r}") if task == 0 else (lambda r, b: f"v_fma_f32 v{r}, v{r}, s60, v{b}")
            per = 3 if task == 0 else 2
            ahead = 5 if task == 0 else 7
            def rd(s):
                if s < 8:
                    if task == 0: a(f"ds_read_b128 {vr(24+4*s,4)}, v{104+s}")
                    wr(0, s)
                else: wr(1, s-8)
            a(f"s_cmp_ge_u32 s2, {NG}\ns_cbranch_scc1 L1_w1b")
            for s in range(ahead): rd(s)
            if task == 1:
                a("""v_lshlrev_b32 v122, 16, v122
                v_lshlrev_b32 v123, 16, v123
                v_mul_f32 v122, s60, v122
                v_mul_f32 v123, s60, v123""")
            cnt = lambda lo, hi: sum(per if q < 8 else 2 for q in range(lo, hi))
            for s in range(8):
                a(f"s_waitcnt lgkmcnt({cnt(s+1, s+ahead)})")
                a(mfma(GD0, 24+4*s, WOP+4*s, None if s == 0 else GD0))
                rd(s+ahead)
            for s in range(8+ahead, 16): rd(s)
            a("s_waitcnt lgkmcnt(0)")
            if task == 0:
                a("s_barrier")
                stamp(a, 3, ST)
            for s in range(8):
                a(mfma(GD1, 24+4*s, WOP+32+4*s, None if s == 0 else GD1))
                if s >= 2:
                    for j in range((s-2)*3, min(16, (s-1)*3)): a(sc(GD0+j, 122))
            for j in range(16):
                a(sc(GD1+j, 123))
                a(f"""v_cvt_pk_bf16_f32 v{CV+j}, v{GD0+j}, v{GD1+j}
                ds_write_b32 v4, v{CV+j} offset:{128*(8*(j//4)+j%4)}""")
            a("s_waitcnt lgkmcnt(0)")
            if task == 0: stamp(a, 4, ST)
            for i in range(4): a(f"ds_read_b128 {vr(RB+4*i,4)}, v6 offset:{1024*i}")
            for j in range(16): a(f"v_and_b32 v{CV+j}, 0x7fff7fff, v{CV+j}\nv_pk_max_u16 v5, v5, v{CV+j}")
            for i in range(4):
                a(f"s_waitcnt lgkmcnt({3-i})\nbuffer_store_dwordx4 {vr(RB+4*i,4)}, v7, {sr(44 if task == 0 else 56, 4)}, s48 offen sc1")
                a("s_add_u32 s48, s48, 4096" if i < 3 else "s_sub_u32 s48, s48, 12288")
        stamp(a, 2, ST)
        a("""v_lshlrev_b32 v6, 16, v5
        v_and_b32 v5, 0xffff0000, v5
        v_max_u32 v5, v5, v6""")
        dpp_red(a, "v_max_u32", 5)
        lane63(a); a("ds_max_u32 v3, v5"); full(a)
        srd(a, 44, WS, MAXA, 196*4)
        a(f"""s_lshl_b32 s26, s28, 1
        s_add_u32 s26, s26, s27
        s_lshl_b32 s26, s26, 2
        s_waitcnt lgkmcnt(0)
        s_barrier
        v_cmp_eq_u32 vcc, 0, v0
        s_and_saveexec_b64 s[54:55], vcc
        s_cbranch_execz L1_exit
        ds_read_b32 v6, v3
        s_waitcnt lgkmcnt(0)
        buffer_store_dword v6, v2, s[44:47], s26 offen sc1
        s_branch L1_exit""")
        a(f"""L1_w1b:
        s_lshl_b32 s43, s27, 1
        s_add_u32 s43, s43, s40
        s_lshl_b32 s43, s43, 14
        v_lshlrev_b32 v2, 4, v1
        s_cmp_lg_u32 s41, 0
        s_cbranch_scc1 L1_exit""")
        for t in range(2):
            for s in range(8): wr(t, s)
        srd(a, 44, WS, W1BOP, 65536)
        a("s_waitcnt lgkmcnt(0)")
        for q in range(16):
            a(f"buffer_store_dwordx4 {vr(WOP+4*q,4)}, v2, s[44:47], s43 offen sc1\ns_add_u32 s43, s43, 1024")
        a("s_branch L1_exit")
    def part_role():
        a(f"L1_part:\ns_sub_u32 s56, s2, {NG+3}")
        G = EPT//4
        HIST, START, MAXW = 40960, 41984, 43008
        DV, SV, EV, AV, RV = 4, 12, 24, 40, 48
        a(f"""v_lshlrev_b32 v2, 2, v0
        v_mov_b32 v3, 0
        ds_write_b32 v2, v3 offset:{HIST}
        ds_write_b32 v2, v3 offset:{MAXW}
        v_mov_b32 v60, 0
        v_mov_b32 v61, 1
        s_mul_i32 s26, s56, {CE*4}
        s_add_u32 s27, s26, 6400
        s_mov_b32 s58, s26
        s_mov_b32 s59, s27
        s_lshl_b32 s52, s26, 1
        s_lshl_b32 s53, s27, 1
        v_lshlrev_b32 v3, 4, v0
        v_lshlrev_b32 v20, 5, v0
        v_cmp_gt_u32 vcc, 400, v0
        s_waitcnt lgkmcnt(0)""")
        stamp(a, 5, ST)
        srd(a, 28, DST, None, E*4); srd(a, 32, SRC, None, E*4); srd(a, 36, EA_, None, E*8)
        a("""s_and_saveexec_b64 s[54:55], vcc
        s_mov_b64 s[54:55], exec
        s_cbranch_execz L1_p1""")
        for g in range(G): a(f"buffer_load_dwordx4 {vr(DV+4*g,4)}, v3, s[28:31], s{26+g} offen nt")
        def late_loads():
            for g in range(G): a(f"buffer_load_dwordx4 {vr(SV+4*g,4)}, v3, s[32:35], s{58+g} offen nt")
            for g in range(G):
                a(f"buffer_load_dwordx4 {vr(EV+8*g,4)}, v20, s[36:39], s{52+g} offen nt")
                a(f"buffer_load_dwordx4 {vr(EV+8*g+4,4)}, v20, s[36:39], s{52+g} offen offset:16 nt")
        if not OPT.get("late", 1): late_loads()
        a(f"""L1_p1:
        s_mov_b64 exec, -1
        s_mul_i32 s26, s56, {CE*12}
        s_add_u32 s26, s26, {REC}""")
        srd(a, 40, WS, "s26", CE*12); srd(a, 44, WS, OFF, CH*1024); srd(a, 48, WS, MAXE, CH*4)
        a(f"""s_setprio {OPT.get("pp", 2)}
        s_barrier
        s_mov_b64 exec, s[54:55]
        s_cbranch_execz L1_p2
        s_waitcnt vmcnt({0 if OPT.get("late", 1) else 3*G})""")
        if OPT.get("late", 1): late_loads()
        stamp(a, 1, ST)
        for k in range(EPT):
            a(f"""v_mul_u32_u24 v21, 10700, v{DV+k}
            v_lshrrev_b32 v21, 19, v21
            v_lshlrev_b32 v{AV+k}, 2, v21
            ds_add_rtn_u32 v{RV+k}, v{AV+k}, v61 offset:{HIST}
            v_mul_u32_u24 v21, {NPB}, v21
            v_sub_u32 v{DV+k}, v{DV+k}, v21""")
        a(f"""L1_p2:
        s_mov_b64 exec, -1
        v_lshlrev_b32 v2, 4, v1
        s_waitcnt lgkmcnt(0)
        s_barrier""")
        stamp(a, 3, ST)
        a(f"""ds_read_b128 v[64:67], v2 offset:{HIST}
        s_waitcnt lgkmcnt(0)
        v_add_u32 v68, v64, v65
        v_add_u32 v69, v68, v66
        v_add_u32 v70, v69, v67
        v_mov_b32 v71, v70""")
        dpp_red(a, "v_add_u32", 71)
        a(f"""v_sub_u32 v56, v71, v70
        v_add_u32 v57, v56, v64
        v_add_u32 v58, v56, v68
        v_add_u32 v59, v56, v69
        ds_write_b128 v2, v[56:59] offset:{START}
        s_mov_b64 exec, s[54:55]
        s_cbranch_execz L1_p4""")
        for k in range(EPT): a(f"ds_read_b32 v{AV+k}, v{AV+k} offset:{START}")
        a(f"s_waitcnt vmcnt({2*G})")
        for k in range(EPT):
            a(f"""v_add_u32 v21, {16384-HALF}, v{SV+k}
            v_lshl_or_b32 v{SV+k}, v{DV+k}, 18, v{SV+k}
            v_lshrrev_b32 v21, 14, v21
            v_lshl_or_b32 v{SV+k}, v21, 24, v{SV+k}""")
        a("s_waitcnt vmcnt(0)")
        for k in range(EPT):
            a(f"""s_waitcnt lgkmcnt({EPT-1+k})
            v_add_u32 v{AV+k}, v{AV+k}, v{RV+k}
            v_mul_u32_u24 v{AV+k}, 12, v{AV+k}
            ds_write2_b32 v{AV+k}, v{EV+2*k}, v{EV+2*k+1} offset0:0 offset1:1
            ds_write_b32 v{AV+k}, v{SV+k} offset:8""")
        for k in range(EPT): a(f"v_dot2_f32_bf16 v{DV+k}, v{EV+2*k}, v{EV+2*k}, 0")
        for k in range(EPT): a(f"v_dot2_f32_bf16 v{DV+k}, v{EV+2*k+1}, v{EV+2*k+1}, v{DV+k}")
        a("s_nop 2")
        for k in range(0, EPT, 2): a(f"v_max3_u32 v60, v60, v{DV+k}, v{DV+k+1}")
        a("L1_p4:")
        full(a)
        dpp_red(a, "v_max_u32", 60)
        a("v_mov_b32 v62, 0")
        lane63(a); a(f"ds_max_u32 v62, v60 offset:{MAXW}"); full(a)
        stamp(a, 2, ST)
        a(f"""s_cmp_lg_u32 s3, 7
        s_cbranch_scc1 L1_p3
        v_lshl_or_b32 v64, v64, 16, v56
        v_lshl_or_b32 v65, v65, 16, v57
        v_lshl_or_b32 v66, v66, 16, v58
        v_lshl_or_b32 v67, v67, 16, v59
        v_mul_u32_u24 v2, {CH*16}, v1
        s_lshl_b32 s26, s56, 4
        buffer_store_dwordx4 v[64:67], v2, s[44:47], s26 offen sc1
        L1_p3:
        s_waitcnt lgkmcnt(0)
        s_barrier""")
        stamp(a, 4, ST)
        NO = -(-CE*12//8192)
        for i in range(NO): a(f"ds_read_b128 {vr(4+4*i,4)}, v3 offset:{8192*i}")
        a(f"ds_read_b32 v30, v62 offset:{MAXW}")
        for i in range(NO):
            a(f"s_mov_b32 s26, {8192*i}\ns_waitcnt lgkmcnt({NO-i})\nbuffer_store_dwordx4 {vr(4+4*i,4)}, v3, s[40:43], s26 offen sc1")
        a(f"""s_lshl_b32 s26, s56, 2
        v_cmp_eq_u32 vcc, 0, v0
        s_and_saveexec_b64 s[54:55], vcc
        s_cbranch_execz L1_exit
        s_waitcnt lgkmcnt(0)
        buffer_store_dword v30, v62, s[48:51], s26 offen sc1
        s_branch L1_exit""")
    if OPT.get("gfirst", 1):
        gemm_role(); part_role()
    else:
        part_role(); a("L1_gemm:"); gemm_role()
    a(f"""L1_w2:
    v_lshlrev_b32 v2, 4, v1
    s_lshl_b32 s29, s3, 13
    s_mov_b32 m0, s29
    v_mov_b32 v20, 0
    v_mov_b32 v21, 65536
    ds_write_b32 v21, v20
    v_and_b32 v11, 1, v1
    v_lshlrev_b32 v11, 5, v11
    v_bfe_u32 v12, v1, 1, 4
    v_add_u32 v11, v11, v12
    v_lshlrev_b32 v11, 1, v11
    v_lshrrev_b32 v12, 5, v1
    v_lshl_add_u32 v11, v12, 10, v11
    s_lshr_b32 s40, s3, 1
    s_lshl_b32 s40, s40, 7
    s_and_b32 s41, s3, 1
    s_lshl_b32 s41, s41, 5
    s_add_u32 s40, s40, s41
    s_add_u32 s40, s40, {256*512}
    s_waitcnt lgkmcnt(0)""")
    srd(a, 32, W2, None, 65536); srd(a, 36, W1, None, 260*512)
    srd(a, 60, B1, None, 512)
    a("""v_and_b32 v17, 31, v1
    v_lshlrev_b32 v17, 1, v17
    s_lshl_b32 s41, s3, 7
    buffer_load_ushort v18, v17, s[60:63], s41 offen
    buffer_load_ushort v19, v17, s[60:63], s41 offen offset:64
    buffer_load_ushort v8, v11, s[36:39], s40 offen
    buffer_load_ushort v9, v11, s[36:39], s40 offen offset:512""")
    for ii in range(8):
        a("buffer_load_dwordx4 v2, s[32:35], s29 offen lds")
        if ii < 7: a("s_add_u32 m0, m0, 1024\ns_add_u32 s29, s29, 1024")
    a(f"""s_and_b32 s40, s3, 3
    s_lshr_b32 s41, s3, 2
    v_bfe_u32 v5, v1, 2, 1
    v_lshlrev_b32 v5, 5, v5
    v_bfe_u32 v6, v1, 3, 1
    v_add_u32 v5, v5, v6
    v_lshrrev_b32 v6, 5, v1
    v_lshl_add_u32 v5, v6, 2, v5
    v_lshlrev_b32 v5, 8, v5
    v_bfe_u32 v6, v1, 4, 1
    v_lshl_add_u32 v5, v6, 5, v5
    v_and_b32 v6, 3, v1
    v_lshl_add_u32 v5, v6, 3, v5
    s_lshl_b32 s42, s40, 6
    s_lshl_b32 s43, s41, 15
    s_add_u32 s42, s42, s43
    v_add_u32 v5, s42, v5
    s_lshl_b32 s43, s40, 14
    s_lshl_b32 s42, s41, 13
    s_add_u32 s43, s43, s42
    s_mov_b32 s52, {NLOG2E}
    s_lshl_b32 s42, s3, 9
    v_lshlrev_b32 v3, 3, v1""")
    srd(a, 44, WS, W2OP, 65536); srd(a, 48, WS, STAT, 4096); srd(a, 56, WS, MAXW_G, 4)
    a("""s_waitcnt vmcnt(8)
    v_lshlrev_b32 v8, 16, v8
    v_lshlrev_b32 v9, 16, v9
    v_mul_f32 v8, s52, v8
    v_mul_f32 v9, s52, v9
    v_cvt_pk_bf16_f32 v15, v8, v9
    v_mul_f32 v16, v8, v8
    v_fmac_f32 v16, v9, v9
    v_lshlrev_b32 v12, 16, v15
    v_and_b32 v13, 0xffff0000, v15
    v_sub_f32 v8, v8, v12
    v_sub_f32 v9, v9, v13
    v_cvt_pk_bf16_f32 v14, v8, v9
    buffer_store_dwordx2 v[14:15], v3, s[48:51], s42 offen sc1
    v_lshlrev_b32 v18, 16, v18
    v_lshlrev_b32 v19, 16, v19
    v_mul_f32 v18, s52, v18
    v_mul_f32 v19, s52, v19
    v_lshlrev_b32 v17, 2, v17
    s_lshl_b32 s41, s3, 8""")
    srd(a, 60, WS, BIAS, 1024); srd(a, 64, WS, N*512, 1024)
    a("""buffer_store_dwordx2 v[18:19], v17, s[60:63], s41 offen sc1
    v_mov_b32 v22, 0x41c041c0
    v_mov_b32 v23, 0x7f7f7f7f
    v_cmp_gt_u32 vcc, 128, v0
    v_lshlrev_b32 v24, 2, v0
    v_cndmask_b32 v22, v23, v22, vcc
    buffer_store_dword v22, v24, s[64:67], 0 offen sc1""")
    a("v_mov_b32 v12, v16\nv_permlane32_swap_b32 v12, v16\nv_add_f32 v16, v12, v16")
    dpp_red(a, "v_max_u32", 16)
    a("""    s_waitcnt vmcnt(0)
    s_barrier""")
    lane63(a); a("ds_max_u32 v21, v16"); full(a)
    for s in range(8):
        for hf in range(2):
            row = 64*(s//4) + 16*((s//2) % 2) + 8*(s % 2) + 2*hf
            a(f"ds_read_b64_tr_b16 {vr(WOP+4*s+2*hf,2)}, v5 offset:{256*row}")
    a("s_waitcnt lgkmcnt(0)\ns_barrier\nds_read_b32 v16, v21")
    for s in range(8):
        a(f"buffer_store_dwordx4 {vr(WOP+4*s,4)}, v2, s[44:47], s43 offen sc1\ns_add_u32 s43, s43, 1024")
    srd(a, 48, WS, MAXE + CH*4, 16)
    a("""v_lshlrev_b32 v17, 2, v1
    buffer_store_dword v20, v17, s[48:51], 0 offen sc1
    s_waitcnt lgkmcnt(0)
    buffer_store_dword v16, v3, s[56:59], 0 offen sc1
    L1_exit:""")
    stamp_dump(a, ST, 127, 0)
    a("L1_exit2:\ns_endpgm")


CAPT = 60
L_IDX, L_QA, L_TBL, L_CNT, L_MISC, L_DEG, L_EA, L_P = 256, 8448, 10496, 12544, 14592, 14656, 15104, 30464
L_BT = L_P + 31*1024
L_STG = 91136
BTS = 576
L_NULL = L_BT + NPB*BTS
K2_LDS = L_STG + 65536
assert L_BT + 50*BTS <= L_STG and L_BT % 256 == 0
D0, D1, EE, TT, HQ0, HQ1, S0, S1 = 0, 16, 32, 48, 56, 60, 64, 80
ALO, AHI, ID0, ID1, A2, B2R, PP, IP = 96, (104, 112), 120, 124, (128, 132), (136, 140), 144, 148
QV, QST, RA, IB, EB, QB, PB = (156, 157), 158, 159, 163, 164, 165, 166
TID, LANE, DEG, VONE, ESIG, QOFF, L16 = 167, 168, 169, 170, 172, 173, 174
RECR, OFR, W2R, B2V = 0, 240, 176, 252
MASK = 56
S_BASE, S_LIM, S_IMASK, S_SLOW, S_N, S_T0, S_FIRST, S_BK, S_MAXC, S_SAFE, S_CUT, S_STG, S_BETA, S_NEG = range(80, 94)
S_BDONE = 23
S_CG, S_GRP, S_R2, S_N0, S_NO = 26, 27, 1, 0, 87


def valu_half(D, hq, mode, fill):
    L = [f"v_exp_f32 v{EE+j}, v{D+j}" for j in range(16)]
    p2 = lambda x: vr(x, 2)
    if mode == "o":
        L.insert(15, None)
        L[15] = f"v_pk_add_f32 {p2(TT)}, {p2(EE)}, 1.0 op_sel_hi:[1,0]"
        L[15], L[16] = L[16], L[15]
        for s in range(1, 8):
            n = D if s == 1 else TT+2
            L.append(f"v_pk_fma_f32 {p2(TT+2)}, {p2(n)}, {p2(EE+2*s)}, {p2(n)}")
            L.append(f"v_pk_fma_f32 {p2(TT+2)}, {p2(D+2*s)}, {p2(TT)}, {p2(TT+2)}")
            L.append(f"v_pk_fma_f32 {p2(TT)}, {p2(TT)}, {p2(EE+2*s)}, {p2(TT)}")
        u, nn, dd = L[-3:]
        L[-3:] = [f"v_pk_fma_f32 {p2(TT+4)}, {p2(TT)}, {p2(EE+14)}, {p2(TT)}", f"v_rcp_f32 v{TT+4}, v{TT+4}", f"v_rcp_f32 v{TT+5}, v{TT+5}", u, nn]
        L.append(f"v_pk_mul_f32 {p2(TT+2)}, {p2(TT+2)}, {p2(TT+4)}")
        L.append(f"v_cvt_pk_bf16_f32 v{hq}, v{TT+2}, v{TT+3}")
        return L + fill
    if mode == "q":
        for q in range(2): L.append(f"v_pk_add_f32 {p2(TT+4*q)}, {p2(EE+8*q)}, 1.0 op_sel_hi:[1,0]")
        for s in range(1, 4):
            for q in range(2):
                n = D+8*q if s == 1 else TT+4*q+2
                L.append(f"v_pk_fma_f32 {p2(TT+4*q+2)}, {p2(n)}, {p2(EE+8*q+2*s)}, {p2(n)}")
            for q in range(2):
                L.append(f"v_pk_fma_f32 {p2(TT+4*q+2)}, {p2(D+8*q+2*s)}, {p2(TT+4*q)}, {p2(TT+4*q+2)}")
            for q in range(2):
                L.append(f"v_pk_fma_f32 {p2(TT+4*q)}, {p2(TT+4*q)}, {p2(EE+8*q+2*s)}, {p2(TT+4*q)}")
        for q in range(2):
            for p in range(2): L.append(f"v_rcp_f32 v{TT+4*q+p}, v{TT+4*q+p}")
        for q in range(2): L.append(f"v_pk_mul_f32 {p2(TT+4*q+2)}, {p2(TT+4*q+2)}, {p2(TT+4*q)}")
    else:
        for j in range(0, 16, 2): L.append(f"v_pk_add_f32 {p2(EE+j)}, {p2(EE+j)}, 1.0 op_sel_hi:[1,0]")
        for j in range(16): L.append(f"v_rcp_f32 v{EE+j}, v{EE+j}")
        for q in range(2): L.append(f"v_pk_mul_f32 {p2(TT+4*q+2)}, {p2(D+8*q)}, {p2(EE+8*q)}")
        for s in range(1, 4):
            for q in range(2):
                L.append(f"v_pk_fma_f32 {p2(TT+4*q+2)}, {p2(D+8*q+2*s)}, {p2(EE+8*q+2*s)}, {p2(TT+4*q+2)}")
    for q in range(2): L.append(f"v_cvt_pk_bf16_f32 v{hq+q}, v{TT+4*q+2}, v{TT+4*q+3}")
    return L + fill


def weave(V, M, pos):
    out = []
    for i, x in enumerate(V):
        out += [m for m, p in zip(M, pos) if p == i]
        out.append(x)
    return out


def incs(k): return [f"v_add_u32 v{IB}, {128*k}, v{IB}", f"v_add_u32 v{EB}, {256*k}, v{EB}", f"v_add_u32 v{QB}, {32*k}, v{QB}"]


def block(a, t, mode):
    par = t & 1
    last = 3 if mode == "o" else 1
    M1 = tmf(D1, AHI[par], A2[par], B2R[1])
    if t == 0: M1.append(mfma(S1, HQ1, PP, S1))
    M2 = tmf(D0, ALO, A2[par ^ 1], B2R[0])
    if t == last: M2.append(mfma(S0, HQ0, PP, S0))
    pos = [1, 4, 7, 10]
    extra = (["s_waitcnt lgkmcnt(0)"] if OPT.get('gw', 1) else []) + [f"v_add_u32 v{QV[par]}, v{QV[par]}, v{QST}"]
    if t == 0: extra.append(f"v_add_u32 v{PB}, 1024, v{PB}")
    if mode == "o" and t == 2: extra += incs(4)
    if mode != "o" and t == 0: extra += incs(2)
    k = t if mode == "o" else 2*t
    L = weave(valu_half(D0, HQ0+k, mode, extra), M1, pos) + weave(valu_half(D1, HQ1+k, mode, []), M2, pos)
    if OPT["prio"]:
        L.insert(OPT["prio_at"], "s_setprio 1"); L.append("s_setprio 0")
    a("\n".join(L))


def dma(a, par):
    a(f"s_add_u32 m0, s{S_STG}, {4096*par}")
    for u in range(4):
        a(f"buffer_load_dwordx4 {vr(IP+2*u,2)}, s[36:39], 0 idxen offen lds")
        if u < 3: a("s_add_u32 m0, m0, 1024")


def rd_idx(a, t):
    for u in range(4): a(f"ds_read_b32 v{IP+2*u}, v{IB} offset:{128*t+32*u}")


def rd_rows(a, par):
    if OPT["smf"]:
        for c in range(2):
            for gi in range(4):
                a(f"ds_read_b64_tr_b16 {vr((ALO, AHI[par])[c]+2*gi,2)}, v{RA+c} offset:{4096*par+512*gi}")
        return
    for s in range(4):
        d = ALO+4*s if s < 2 else AHI[par]+4*(s-2)
        a(f"ds_read_b128 {vr(d,4)}, v{RA+s} offset:{4096*par}")


def w2chunk(a, k):
    a(f"s_lshl_b32 s96, s{S_CG}, 14\ns_add_u32 s96, s96, {4096*k}")
    for q in range(4): a(f"buffer_load_dwordx4 {vr(W2R+16*k+4*q,4)}, v{L16}, s[44:47], s96 offen offset:{1024*q}")
    if k == 0: a(f"s_lshl_b32 s96, s{S_CG}, 6\nbuffer_load_ushort v{B2V}, v175, s[48:51], s96 offen")


def group(a, par, sh=0, rdp=False, tail=True):
    a("s_waitcnt vmcnt(4)")
    rd_rows(a, par)
    a(f"ds_read_b64_tr_b16 {vr(B2R[1],2)}, v{QV[par^1]} offset:64")
    a(f"ds_read_b64_tr_b16 {vr(B2R[0],2)}, v{QV[par]}")
    a(f"ds_read2st64_b32 {vr(A2[par]+2,2)}, v{EB} offset0:{2+par+sh} offset1:{2+par+sh}")
    if rdp: a(f"ds_read_b128 {vr(PP,4)}, v{PB}")
    a(f"s_cmp_gt_u32 s{S_N}, 3\ns_cselect_b32 s38, {0 if OPT.get('nodma') else AROWS}, 0")
    if tail:
        group.n += 1
        a(f"s_cmp_gt_u32 s{S_N}, 4\ns_cbranch_scc1 L2_tr{group.n}\ns_call_b64 s[98:99], L2_w2stub\nL2_tr{group.n}:")
    a(f"s_waitcnt lgkmcnt({4 if rdp else 3})")
    dma(a, par)
    rd_idx(a, 5+par+sh)
    a(f"ds_read_b32 v{QV[par^1]}, v{QB} offset:{32*(3+par+sh)}")
    a(f"s_waitcnt lgkmcnt({5 if OPT.get('gw', 1) else 0})")
group.n = 0


def dec(a, tgt): a(f"s_sub_u32 s{S_N}, s{S_N}, 1\ns_cmp_eq_u32 s{S_N}, 0\ns_cbranch_scc1 {tgt}")


def main_loops(a):
    a("L2_loopO:")
    block(a, 0, "o"); a(f"s_sub_u32 s{S_N}, s{S_N}, 1"); group(a, 0, 2, True)
    block(a, 1, "o"); dec(a, "L2_end_odd"); group(a, 1, 2)
    a(f"s_cmp_eq_u32 s{S_NO}, 2\ns_cbranch_scc1 L2_half")
    block(a, 2, "o"); a(f"s_sub_u32 s{S_N}, s{S_N}, 1"); group(a, 0)
    block(a, 3, "o"); dec(a, "L2_end_even"); group(a, 1)
    a(f"s_sub_u32 s{S_NO}, s{S_NO}, 4\ns_cmp_lg_u32 s{S_NO}, 0\ns_cbranch_scc1 L2_loopO\ns_branch L2_loopF\nL2_half:")
    a(mfma(S0, HQ0, PP, S0)); a("\n".join(incs(2)))
    for tag, mode in (("F", "q"), ("S", "s")):
        a(f"L2_loop{tag}:")
        block(a, 0, mode); dec(a, "L2_end_odd"); group(a, 0, 0, True)
        block(a, 1, mode); dec(a, "L2_end_even"); group(a, 1)
        a(f"s_branch L2_loop{tag}")
    a("L2_w2stub:")
    for k in range(4):
        if k < 3: a(f"s_cmp_lg_u32 s{S_N}, {4-k}\ns_cbranch_scc1 L2_st{k}")
        w2chunk(a, k)
        a("s_setpc_b64 s[98:99]")
        if k < 3: a(f"L2_st{k}:")


def k2(a):
    ST = 253
    L = LANE
    PF = OPT["pf"]
    a("k2_kernel:")
    a(f"s_cmp_ge_u32 s2, {NB}\ns_cbranch_scc1 L2_exit2")
    if OPT.get("stamp"): a(f"v_mov_b32 v{ST}, 0")
    stamp(a, 0, ST)
    ldargs(a)
    a(f"""v_mov_b32 v{TID}, v0
    v_and_b32 v{L}, 63, v0
    v_lshrrev_b32 v2, 6, v0
    v_mov_b32 v{DEG}, 0
    v_readfirstlane_b32 s3, v2""")
    if OPT.get("cpf", 2) == 2: code_pf(a, "k2_kernel", "L2_exit2-k2_kernel", L, 10, 255, 40)
    a(f"""v_mov_b32 v{VONE}, 1
    s_and_b32 s{S_BK}, s2, 7
    s_lshl_b32 s{S_BK}, s{S_BK}, 5
    s_lshr_b32 s28, s2, 3
    s_add_u32 s{S_BK}, s{S_BK}, s28
    s_mul_i32 s{S_NEG}, s{S_BK}, {NPB}
    v_lshrrev_b32 v8, {LSH}, v0
    s_and_b32 s28, s{S_BK}, 3
    s_lshl_b32 s28, s28, 2
    v_lshl_add_u32 v9, v8, 4, s28
    s_lshr_b32 s96, s{S_BK}, 2
    s_mul_i32 s96, s96, {CH*16}
    s_add_u32 s96, s96, {OFF}
    s_mov_b32 s{S_BASE}, 0
    s_mov_b32 s{S_LIM}, {3*LPS}
    s_mov_b32 s{S_IMASK}, 15
    s_mov_b32 s{S_SLOW}, 0
    s_mov_b32 s{S_FIRST}, 1
    s_mov_b32 s{S_BETA}, 0
    s_and_b32 s{S_CG}, s3, 3
    s_lshr_b32 s{S_GRP}, s3, 2
    s_lshl_b32 s{S_STG}, s3, 13
    s_add_u32 s{S_STG}, s{S_STG}, {L_STG}
    v_lshlrev_b32 v{L16}, 4, v{L}
    v_mov_b32 v{IP+1}, 0
    v_mov_b32 v{IP+3}, 0
    v_mov_b32 v{IP+5}, 0
    v_mov_b32 v{IP+7}, 0
    v_mov_b32 v175, 0
    v_lshrrev_b32 v3, 4, v{L}
    v_and_b32 v4, 15, v{L}
    v_xor_b32 v6, v3, v4
    v_lshlrev_b32 v6, 4, v6
    v_lshl_or_b32 v117, v3, 8, v6
    v_xor_b32 v118, 64, v117
    s_waitcnt lgkmcnt(0)""")
    stamp(a, 11, ST)
    srd(a, 28, WS, "s96", CH*16)
    for i in range(4): a(f"buffer_load_dword v{OFR+i}, v9, s[28:31], 0 offen offset:{(8192 >> LSH)*i}")
    if OPT.get("cpf", 2) in (1, 3): code_pf(a, "k2_kernel", "L2_exit2-k2_kernel", L, 10, 255, 40)
    srd(a, 40, X, None, N*256); srd(a, 52, WS, W1BOP, 65536)
    a(f"s_mov_b32 s{S_BDONE}, 0")
    WE = 0
    srd(a, 32, WS, REC, CH*CE*12); srd(a, 36, WS, None, AROWS, stride=512)
    NZ = (L_BT - L_CNT)//16
    a(f"""s_cmp_lg_u32 s{S_GRP}, 0
    s_cbranch_scc1 L2_b2
    L2_batch:
    v_and_b32 v112, {LPS-1}, v{L}
    v_add_u32 v112, s{S_BASE}, v112
    s_add_u32 s96, s{S_BASE}, s{S_LIM}
    v_lshrrev_b32 v113, {LSH}, v{TID}
    v_mul_u32_u24 v113, {CE*12}, v113""")
    stamp(a, 12, ST)
    a("s_waitcnt vmcnt(0)")
    stamp(a, 1, ST)
    for i in range(4):
        a(f"""v_lshrrev_b32 v{104+i}, 16, v{OFR+i}
        s_bitcmp1_b32 s{S_IMASK}, {i}
        s_cselect_b32 s98, s96, 0
        v_min_u32 v{104+i}, s98, v{104+i}
        v_and_b32 v114, 0xffff, v{OFR+i}
        v_add_u32 v114, v114, v112
        v_mad_u32_u24 v{108+i}, v114, 12, v113""")
        if i < 3: a(f"v_add_u32 v113, {(512 >> LSH)*CE*12}, v113")
    for rnd in range(3):
        if rnd: a(f"v_add_u32 v112, {LPS}, v112")
        for i in range(4): a(f"v_cmp_lt_u32 {sr(MASK+2*(4*rnd+i),2)}, v112, v{104+i}")
        if rnd == 2:
            a(f"""s_or_b64 s[96:97], {sr(MASK+16,2)}, {sr(MASK+18,2)}
            s_or_b64 s[98:99], {sr(MASK+20,2)}, {sr(MASK+22,2)}
            s_or_b64 s[96:97], s[96:97], s[98:99]
            s_cselect_b32 s{S_R2}, 1, 0
            s_cbranch_scc0 L2_r11""")
        for i in range(4):
            k = 4*rnd + i
            a(f"""s_mov_b64 exec, {sr(MASK+2*k,2)}
            s_cbranch_execz L2_r{k}
            buffer_load_dwordx3 {vr(RECR+4*k,3)}, v{108+i}, s[32:35], 0 offen offset:{12*LPS*rnd}
            L2_r{k}:""")
        full(a)
    a(f"s_cmp_eq_u32 s{S_FIRST}, 0\ns_cbranch_scc1 L2_b2")
    a(f"""v_lshrrev_b32 v104, 16, v{OFR}
    v_lshrrev_b32 v105, 16, v{OFR+1}
    v_lshrrev_b32 v106, 16, v{OFR+2}
    v_lshrrev_b32 v107, 16, v{OFR+3}
    v_max3_u32 v104, v104, v105, v106
    v_max_u32 v254, v104, v107""")
    a(f"""    s_lshl_b32 s96, s{S_CG}, 10
    s_lshl_b32 s97, s{S_CG}, 8
    s_add_u32 s97, s97, 4096
    v_lshlrev_b32 v115, 3, v{L}
    v_and_b32 v116, 0xf8, v115""")
    srd(a, 44, WS, STAT, 8192)
    a(f"""buffer_load_dwordx2 {vr(B2R[0]+2,2)}, v115, s[44:47], s96 offen
    buffer_load_dwordx2 {vr(B2R[1]+2,2)}, v115, s[44:47], s96 offen offset:512
    buffer_load_dwordx2 v[126:127], v116, s[44:47], s97 offen""")
    a(f"""s_cmp_eq_u32 s{S_GRP}, 0
    s_cbranch_scc1 L2_b2
    s_lshl_b32 s97, s{S_CG}, 12
    s_add_u32 m0, s97, {L_BT}
    s_lshl_b32 s96, s{S_NEG}, 8
    s_add_u32 s96, s96, s97""")
    for q in range(4):
        a(f"buffer_load_dwordx4 v{117+q%2}, s[40:43], s96 offen nt lds")
        if q == 1: a("v_xor_b32 v117, 128, v117\nv_xor_b32 v118, 128, v118")
        if q < 3: a("s_add_u32 m0, m0, 1024\ns_add_u32 s96, s96, 1024")
    a(f"s_lshl_b32 s99, s{S_CG}, 14\ns_add_u32 m0, s99, {L_STG}")
    for q in range(16):
        if q % 4 == 0 and q: a("s_add_u32 m0, m0, 4096\ns_add_u32 s99, s99, 4096")
        a(f"buffer_load_dwordx4 v{L16}, s[52:55], s99 offen offset:{1024*(q%4)} lds")
    a(f"""    s_cmp_eq_u32 s3, 7
    s_cbranch_scc0 L2_b4""")
    srd(a, 44, WS, MAXA, 196*4); srd(a, 48, WS, MAXE, (CH*4+15)//16*16); srd(a, 52, WS, MAXW_G, 4)
    a(f"""v_mov_b32 v116, 0
    buffer_load_dwordx4 v[244:247], v{L16}, s[44:47], 0 offen
    buffer_load_dwordx4 v[248:251], v{L16}, s[48:51], 0 offen
    buffer_load_dword v171, v116, s[52:55], 0 offen
    L2_b4:
    s_cmp_eq_u32 s{S_GRP}, 0
    s_cbranch_scc1 L2_b2""")
    PFE = OPT.get("pfe", 0)
    if PFE:
        srd(a, 44, WS, None, N*512)
        a(f"""s_lshr_b32 s96, s2, 3
        s_lshl_b32 s96, s96, 2
        s_add_u32 s96, s96, s{S_CG}
        s_mul_i32 s96, s96, {PFE*8192}
        v_lshlrev_b32 v116, 7, v{L}""")
        for q in range(PFE):
            a(f"buffer_load_dword v255, v116, s[44:47], s96 offen")
            if q < PFE-1: a("s_add_u32 s96, s96, 8192")
    a("""s_branch L2_wrec
    L2_b2:""")
    a(f"v_lshlrev_b32 v104, 4, v{TID}")
    for j in range(4): a(f"v_mov_b32 v{96+j}, -1\nv_mov_b32 v{100+j}, 0")
    a(f"ds_write_b128 v104, v[96:99] offset:{L_IDX}")
    for i in range(6): a(f"ds_write_b128 v104, v[100:103] offset:{L_CNT + 8192*i}")
    a(f"""v_cmp_gt_u32 vcc, {NZ - 3072}, v{TID}
    v_mov_b32 v96, {L_NULL}
    v_mov_b32 v97, {L_NULL}
    s_and_b64 exec, exec, vcc
    ds_write_b128 v104, v[100:103] offset:{L_CNT + 8192*6}
    s_mov_b64 exec, -1
    v_cmp_gt_u32 vcc, 128, v{TID}
    v_mov_b32 v98, {L_NULL}
    v_mov_b32 v99, {L_NULL}
    s_and_b64 exec, exec, vcc
    ds_write_b128 v104, v[96:99] offset:{L_QA}
    s_mov_b64 exec, -1
""")
    a(f"""s_cmp_eq_u32 s{S_FIRST}, 0
    s_cbranch_scc1 L2_rank0""")
    n_, h_, one, t0, t1, t2, t3, t4, t5 = 96, 97, 98, 99, 100, 101, 102, 103, 104
    a(f"""v_and_b32 v{n_}, 31, v{L}
    v_lshrrev_b32 v{h_}, 5, v{L}
    v_and_b32 v{t0}, 1, v{L}
    v_lshlrev_b32 v{t0}, 4, v{t0}
    v_mov_b32 v{one}, 0x3f80
    v_lshlrev_b32 v{one}, v{t0}, v{one}
    v_lshrrev_b32 v{t0}, 1, v{n_}
    v_lshlrev_b32 v{t1}, 2, v{h_}
    v_sub_u32 v{t0}, v{t0}, v{t1}
    v_lshlrev_b32 v175, 1, v{n_}""")
    if not OPT['smf']:
        for q in range(8):
            a(f"v_cmp_eq_u32 {sr(94+2*(q%3),2)}, {8*(q//4) + q%4}, v{t0}")
            if q >= 1: a(f"v_cndmask_b32 v{ID0+q-1}, 0, v{one}, {sr(94+2*((q-1)%3),2)}")
        a(f"v_cndmask_b32 v{ID0+7}, 0, v{one}, {sr(94+2*(7%3),2)}")
    a(f"""v_bfe_u32 v{t1}, v{n_}, 2, 1
    v_lshrrev_b32 v{t2}, 4, v{n_}
    v_and_b32 v{t3}, 1, v{n_}
    v_xor_b32 v{t4}, v{t1}, v{h_}
    v_lshl_or_b32 v{t4}, v{t4}, 1, v{t3}
    v_cmp_eq_u32 s[94:95], 0, v{t4}
    v_cmp_eq_u32 s[96:97], 1, v{t4}
    v_lshlrev_b32 v{t4}, 4, v{t2}
    v_mov_b32 v{one}, 0x3f80
    v_lshlrev_b32 v{one}, v{t4}, v{one}
    v_cndmask_b32 v{A2[0]}, 0, v{one}, s[94:95]
    v_cndmask_b32 v{A2[0]+1}, 0, v{one}, s[96:97]
    v_cndmask_b32 v{A2[1]}, 0, v{one}, s[94:95]
    v_cndmask_b32 v{A2[1]+1}, 0, v{one}, s[96:97]
    v_lshlrev_b32 v{t1}, 4, v{t1}
    v_lshl_or_b32 v{t1}, v{t3}, 3, v{t1}
    v_lshl_or_b32 v{t1}, v{t2}, 2, v{t1}
    v_bfe_u32 v{t4}, v{n_}, 3, 1
    v_lshl_or_b32 v{t1}, v{t4}, 1, v{t1}
    v_bfe_u32 v{t5}, v{n_}, 1, 1
    v_or_b32 v{t1}, v{t1}, v{t5}
    v_lshlrev_b32 v{ESIG}, 3, v{t1}
    v_lshl_add_u32 v{ESIG}, v{h_}, 2, v{ESIG}""")
    if OPT["smf"]:
        a(f"""v_lshrrev_b32 v{t2}, 4, v{t1}
        v_bfe_u32 v{t3}, v{t1}, 2, 1
        v_lshl_or_b32 v{t2}, v{t2}, 1, v{t3}
        v_and_b32 v{t3}, 3, v{t1}
        v_lshlrev_b32 v{t4}, 2, v{t2}
        v_lshlrev_b32 v{ID1}, v{t4}, v{t3}
        v_bfe_u32 v{t3}, v{t1}, 3, 1
        v_xor_b32 v{t3}, v{t3}, v{h_}
        v_lshl_or_b32 v{t2}, v{t3}, 2, v{t2}
        v_mov_b32 v{one}, 0x3f80""")
        for q in range(4): a(f"v_cmp_eq_u32 {sr(56+0,2) if False else sr(94+2*(q%3),2)}, {q}, v{t2}" + (f"\nv_cndmask_b32 v{ID0+q-1}, 0, v{one}, {sr(94+2*((q-1)%3),2)}" if q else "\ns_nop 0"))
        a(f"""v_bfe_u32 v{t1}, v{L}, 2, 2
        v_cndmask_b32 v{ID0+3}, 0, v{one}, {sr(94,2)}
        v_lshl_add_u32 v{t2}, v{h_}, 4, v{t1}
        v_lshlrev_b32 v{t2}, 7, v{t2}
        v_lshrrev_b32 v{t1}, 1, v{t1}
        v_lshl_add_u32 v{t2}, v{t1}, 6, v{t2}
        v_bfe_u32 v{t1}, v{L}, 4, 1
        v_lshl_add_u32 v{t2}, v{t1}, 5, v{t2}
        v_and_b32 v{t3}, 3, v{L}
        v_lshl_add_u32 v{t2}, v{t3}, 3, v{t2}
        v_add_u32 v{RA}, s{S_STG}, v{t2}
        v_xor_b32 v{RA+1}, 64, v{RA}
        v_lshlrev_b32 v{t2}, 2, v{t1}""")
    else:
        a(f"""v_bfe_u32 v{t3}, v{t1}, 1, 3
        v_xor_b32 v{t3}, v{t3}, v{h_}
        v_lshlrev_b32 v{t3}, 4, v{t3}
        v_lshl_add_u32 v{t3}, v{t1}, 7, v{t3}
        v_add_u32 v{RA}, s{S_STG}, v{t3}""")
        for s in range(1, 4): a(f"v_xor_b32 v{RA+s}, {32*s}, v{RA}")
        a(f"v_lshrrev_b32 v{t2}, 4, v{L}")
    a(f"""v_and_b32 v{t3}, 7, v{L}
    v_xor_b32 v{t2}, v{t2}, v{t3}
    s_lshl_b32 s96, s{S_CG}, 7
    v_lshl_add_u32 v{IP+1}, v{t2}, 4, s96
    v_xor_b32 v{IP+3}, {0 if OPT['smf'] else 64}, v{IP+1}
    v_mov_b32 v{IP+5}, v{IP+1}
    v_mov_b32 v{IP+7}, v{IP+3}
    v_bfe_u32 v{t1}, v{L}, 4, 1
    v_lshlrev_b32 v{t1}, 5, v{t1}
    v_and_b32 v{t3}, 3, v{L}
    v_lshl_add_u32 v{t1}, v{t3}, 3, v{t1}
    v_add_u32 v{QST}, s96, v{t1}
    v_bfe_u32 v{t1}, v{L}, 2, 2
    v_lshl_add_u32 v{QOFF}, v{h_}, 2, v{t1}
    v_lshlrev_b32 v{QOFF}, 2, v{QOFF}
    s_cmp_lg_u32 s{S_GRP}, 0
    s_cbranch_scc1 L2_batch
    L2_wrec:""")
    dpp_red(a, "v_max_u32", 254)
    stamp(a, 3, ST)
    a(f"""s_waitcnt vmcnt(26)
    s_cmp_eq_u32 s3, 7
    s_cbranch_scc1 L2_rank2
    s_waitcnt vmcnt(23)
    s_cmp_lg_u32 s{S_GRP}, 0
    s_cbranch_scc1 L2_rank2
    s_waitcnt vmcnt(3)
    s_branch L2_rank2
    L2_rank0:
    s_waitcnt vmcnt(0)
    L2_rank2:
    s_waitcnt lgkmcnt(0)
    s_barrier""")
    stamp(a, 5, ST)
    RK = 96
    for k in range(12):
        if k == 8: a(f"s_cmp_eq_u32 s{S_R2}, 0\ns_cbranch_scc1 L2_k12")
        a(f"""s_mov_b64 exec, {sr(MASK+2*k,2)}
        v_lshrrev_b32 v{RK+k}, 14, v{RECR+4*k+2}
        ds_add_rtn_u32 v{RECR+4*k+3}, v{RK+k}, v{VONE} offset:{L_CNT}""")
    a(f"""L2_k12:
    s_mov_b64 exec, -1
    v_mov_b32 v63, 0
    s_cmp_eq_u32 s{S_FIRST}, 0
    s_cbranch_scc1 L2_k13
    s_mov_b32 exec_lo, 0
    s_mov_b32 exec_hi, 0x80000000
    ds_max_u32 v63, v254 offset:{L_MISC+4}
    s_mov_b64 exec, -1
    s_cmp_eq_u32 s3, 7
    s_cbranch_scc0 L2_k14
    s_waitcnt vmcnt({PFE})
    v_max3_u32 v244, v244, v245, v246
    v_max3_u32 v248, v248, v249, v250
    v_max_u32 v244, v244, v247
    v_max_u32 v248, v248, v251""")
    dpp_red(a, "v_max_u32", [244, 248])
    a(f"""v_mul_f32 v171, v171, v248
    v_sqrt_f32 v171, v171
    v_mov_b32 v54, {f2u(28.0)}
    v_add_f32 v171, v244, v171
    v_mov_b32 v55, {f2u(8.0)}
    v_cmp_nlt_f32 vcc, v171, v54
    v_cmp_nlt_f32 s[94:95], v171, v55
    v_cndmask_b32 v54, 0, v{VONE}, vcc
    v_cndmask_b32 v55, 0, v{VONE}, s[94:95]
    v_add_u32 v171, v54, v55""")
    lane63(a); a(f"ds_write_b32 v63, v171 offset:{L_MISC}"); full(a)
    a("L2_k14:")
    if PF:
        srd(a, 44, WS, None, N*512)
        a(f"""s_lshr_b32 s96, s2, 3
        s_lshl_b32 s96, s96, 3
        s_add_u32 s96, s96, s3
        s_mul_i32 s96, s96, {PF*8192}
        v_lshlrev_b32 v48, 7, v{L}""")
        for q in range(PF):
            a(f"buffer_load_dword v255, v48, s[44:47], s96 offen")
            if q < PF-1: a("s_add_u32 s96, s96, 8192")
    CL, CU, C_, PC, O1, O2, R3 = 48, 49, 50, 51, 52, 53, 54
    I1, I2, I3 = 56, 57, 58
    TL, TH = 108, 112
    HM = (0xffffffff << SPLIT) & 0xffffffff
    a(f"""s_waitcnt vmcnt({PF})
    L2_k13:
    s_waitcnt lgkmcnt(0)
    s_barrier
    ds_read_b32 v{CL}, v{L16} offset:{L_CNT}
    ds_read_b32 v{CU}, v{L16} offset:{L_CNT+1024}
    ds_read_b64 v[60:61], v63 offset:{L_MISC}
    s_cmp_eq_u32 s{S_FIRST}, 0
    s_cbranch_scc1 L2_o1
    v_and_b32 v54, 31, v{L}
    v_lshrrev_b32 v55, 5, v{L}
    v_and_b32 v56, 15, v{L}
    v_xor_b32 v56, v56, v55
    v_lshlrev_b32 v56, 4, v56
    v_lshl_add_u32 v56, v54, 8, v56
    s_lshl_b32 s96, s{S_GRP}, 13
    s_add_u32 s96, s96, {L_BT}
    v_add_u32 v56, s96, v56
    s_lshl_b32 s96, s{S_CG}, 14
    s_add_u32 s96, s96, {L_STG}
    v_add_u32 v125, s96, v{L16}
    s_waitcnt lgkmcnt(0)""")
    for s in range(8):
        a(f"ds_read_b128 {vr(64+4*s,4)}, v56")
        if s < 7: a(f"v_xor_b32 v56, {32*(s ^ (s+1))}, v56")
    for q in range(8, 16): a(f"ds_read_b128 {vr(W2R+4*q,4)}, v125 offset:{1024*q}")
    a(f"""s_branch L2_o2
    L2_o1:
    s_waitcnt lgkmcnt(0)
    L2_o2:
    v_add_u32 v{C_}, v{CL}, v{CU}
    v_and_b32 v{O1}, -8, v{CL}
    v_add_u32 v{PC}, 3, v{C_}
    v_mov_b32 v{I1}, v{O1}
    v_and_b32 v{PC}, -4, v{PC}
    v_sub_u32 v{R3}, v{PC}, v{O1}
    v_and_b32 v{O2}, -8, v{R3}
    v_and_b32 v{R3}, 4, v{R3}
    v_mov_b32 v{I2}, v{O2}
    v_mov_b32 v{I3}, v{R3}""")
    dpp_red(a, "v_add_u32", [I1, I2, I3])
    a(f"""v_readlane_b32 s94, v{I1}, 63
    v_readlane_b32 s95, v{I2}, 63
    v_readlane_b32 s96, v{I3}, 63
    v_readlane_b32 s97, v{I1}, {SPLIT-1}
    v_readlane_b32 s98, v{I2}, {SPLIT-1}
    v_readlane_b32 s99, v{I3}, {SPLIT-1}
    v_readlane_b32 s28, v{I1}, 31
    v_sub_u32 v{I1}, v{I1}, v{O1}
    v_sub_u32 v{I2}, v{I2}, v{O2}
    v_sub_u32 v{I3}, v{I3}, v{R3}
    s_cmp_eq_u32 s{S_FIRST}, 0
    s_cbranch_scc1 L2_s1
    v_readfirstlane_b32 s{S_MAXC}, v61
    v_readfirstlane_b32 s{S_SAFE}, v60
    s_mov_b32 s{S_FIRST}, 0
    L2_s1:
    s_sub_u32 s94, s94, s97
    s_sub_u32 s95, s95, s98
    s_sub_u32 s96, s96, s99
    s_add_u32 s29, s97, s98
    s_add_u32 s30, s29, s99
    s_add_u32 s30, s30, 7
    s_and_b32 s30, s30, -8
    s_sub_u32 s31, s30, s97
    s_add_u32 s28, s28, s31
    s_add_u32 s40, s30, s94
    s_add_u32 s41, s40, s95
    s_add_u32 s42, s41, s96
    s_add_u32 s{S_CUT}, s42, {OPT.get('cb', 63)}
    s_lshr_b32 s{S_CUT}, s{S_CUT}, 6
    s_add_u32 s43, s30, 31
    s_lshr_b32 s43, s43, 5
    s_max_u32 s{S_CUT}, s{S_CUT}, s43
    s_add_u32 s43, s28, 31
    s_lshr_b32 s43, s43, 5
    s_min_u32 s{S_CUT}, s{S_CUT}, s43
    s_lshl_b32 s43, s{S_CUT}, 5
    s_max_u32 s43, s43, s28
    s_sub_u32 s43, s43, s28
    s_add_u32 s40, s40, s43
    s_add_u32 s41, s41, s43
    s_add_u32 s42, s42, s43
    s_sub_u32 s40, s40, s98
    s_sub_u32 s52, s41, s99
    s_mov_b32 exec_lo, {HM ^ 0xffffffff}
    s_mov_b32 exec_hi, 0
    v_add_u32 v{I2}, s97, v{I2}
    v_add_u32 v{I3}, s29, v{I3}
    s_mov_b32 exec_lo, {HM}
    s_mov_b32 exec_hi, -1
    v_add_u32 v{I1}, s31, v{I1}
    v_add_u32 v{I2}, s40, v{I2}
    v_add_u32 v{I3}, s52, v{I3}
    s_mov_b32 exec_lo, 0
    v_add_u32 v{I1}, s43, v{I1}
    s_mov_b64 exec, -1
    v_add_u32 v{O2}, v{O1}, v{O2}
    v_sub_u32 v{I2}, v{I2}, v{O1}
    v_sub_u32 v{I3}, v{I3}, v{O2}
    v_lshl_or_b32 v{TL}, v{O2}, 16, v{O1}
    v_mov_b32 v{TL+1}, v{I1}
    v_mov_b32 v{TL+2}, v{I2}
    v_mov_b32 v{TL+3}, v{I3}
    v_max_u32 v55, v{O2}, v{CL}
    v_sub_u32 v55, v55, v{CL}
    v_lshlrev_b32 v{TH}, 16, v55
    v_add_u32 v{TH+2}, v{I2}, v{CL}
    v_add_u32 v{TH+3}, v{I3}, v{CL}
    ds_write_b128 v{L16}, {vr(TL,4)} offset:{L_TBL}
    ds_write_b128 v{L16}, {vr(TH,4)} offset:{L_TBL+1024}
    s_add_u32 s96, s42, 31
    s_lshr_b32 s96, s96, 5
    s_cmp_lg_u32 s{S_SLOW}, 0
    s_cbranch_scc1 L2_s2
    s_cmp_gt_u32 s96, {CAPT}
    s_cselect_b32 s97, 1, 0
    s_cmp_gt_u32 s{S_MAXC}, {3*LPS}
    s_cselect_b32 s97, 1, s97
    s_cmp_eq_u32 s97, 0
    s_cbranch_scc1 L2_s2
    s_mov_b32 s{S_SLOW}, 1
    s_mov_b32 s{S_LIM}, {LPS}
    s_mov_b32 s{S_IMASK}, 3
    s_waitcnt lgkmcnt(0)
    s_barrier
    s_branch L2_batch
    L2_s2:""")
    stamp(a, 6, ST)
    TB = W2R
    for k in range(8): a(f"s_mov_b64 exec, {sr(MASK+2*k,2)}\nds_read_b128 {vr(TB+4*k,4)}, v{RK+k} offset:{L_TBL}")
    a(f"""s_mov_b64 exec, -1
    v_add_u32 v{DEG}, v{DEG}, v{C_}
    s_lshr_b32 s29, s29, 6
    s_lshl_b32 s29, s29, 1
    s_lshr_b32 s41, s41, 5
    s_max_u32 s41, s41, s{S_CUT}
    s_sub_u32 s41, s41, s{S_CUT}
    s_and_b32 s41, s41, -2
    s_cmp_eq_u32 s{S_SAFE}, 0
    s_cselect_b32 s29, s29, 0
    s_cselect_b32 s41, s41, 0
    s_add_u32 s30, s29, 3
    s_lshr_b32 s30, s30, 2
    s_sub_u32 s31, s{S_CUT}, s29
    s_add_u32 s31, s31, 1
    s_lshr_b32 s31, s31, 1
    s_add_u32 s31, s31, s30
    s_add_u32 s40, s41, 3
    s_lshr_b32 s40, s40, 2
    s_add_u32 s40, s40, s31
    s_min_u32 s98, s{S_CUT}, s96
    s_sub_u32 s99, s96, s98
    s_cmp_eq_u32 s{S_GRP}, 0
    s_cselect_b32 s{S_N}, s98, s99
    s_cselect_b32 s{S_T0}, 0, s{S_CUT}
    s_cselect_b32 s{S_NO}, s29, s41
    s_cselect_b32 s53, 0, s31
    s_add_u32 s41, s41, s{S_CUT}
    s_lshl_b32 s30, s30, 1
    s_sub_u32 s30, s30, s29
    s_lshl_b32 s31, s31, 2
    s_sub_u32 s31, s31, s{S_CUT}
    s_lshl_b32 s40, s40, 1
    s_sub_u32 s40, s40, s41
    v_cmp_eq_u32 vcc, 0, v{R3}
    s_cmp_ge_u32 s3, 3
    s_cbranch_scc1 L2_pad
    v_add_u32 v55, s3, v{C_}
    v_cndmask_b32 v59, v{I3}, v{I2}, vcc
    v_cmp_lt_u32 vcc, v55, v{PC}
    s_lshr_b32 s96, s{S_SAFE}, 1
    s_add_u32 s96, s96, {N}
    s_and_b64 exec, exec, vcc
    v_mov_b32 v60, s96
    v_add_lshl_u32 v55, v55, v59, 2
    ds_write_b32 v55, v60 offset:{L_IDX}
    s_mov_b64 exec, -1
    L2_pad:""")
    for r in (PC, O1, O2, I1, I2, I3): a(f"v_lshrrev_b32 v{r}, 2, v{r}")
    QA_, ONE, NC1, Q, T, U, V = 48, 49, 50, 54, 55, 59, 60
    a(f"""v_mul_u32_u24 v{QA_}, {BTS}, v{L}
    v_add_u32 v{QA_}, {L_BT}, v{QA_}
    v_mov_b32 v{ONE}, 0x3f80
    v_subrev_u32 v{NC1}, {17*16}, v{L16}
    v_mov_b32 v61, s30
    v_mov_b32 v62, s40
    s_mov_b32 s97, s3
    L2_q:
    v_cmp_lt_u32 s[94:95], s97, v{O2}
    v_cmp_lt_u32 s[98:99], s97, v{O1}
    v_cmp_lt_u32 vcc, s97, v{PC}
    v_cndmask_b32 v{Q}, v{I3}, v{I2}, s[94:95]
    s_and_b64 exec, exec, vcc
    s_cbranch_execz L2_qd
    v_cndmask_b32 v{Q}, v{Q}, v{I1}, s[98:99]
    v_add_u32 v{Q}, s97, v{Q}
    v_lshrrev_b32 v{T}, 3, v{Q}
    v_lshlrev_b32 v{U}, 2, v{Q}
    ds_write_b32 v{U}, v{QA_} offset:{L_QA}
    v_cmp_le_u32 vcc, s{S_CUT}, v{T}
    v_cmp_gt_u32 s[94:95], s29, v{T}
    v_cmp_gt_u32 s[98:99], s41, v{T}
    v_and_b32 v{V}, 4, v{Q}
    v_cndmask_b32 v{U}, v{L16}, v{NC1}, vcc
    v_lshl_add_u32 v{U}, v{V}, 7, v{U}
    v_and_b32 v{V}, 2, v{Q}
    v_add_u32 v{U}, v{U}, v{V}
    s_and_b64 s[98:99], s[98:99], vcc
    s_or_b64 s[94:95], s[94:95], s[98:99]
    v_cndmask_b32 v{V}, v61, v62, vcc
    v_add_u32 v{V}, v{V}, v{T}
    v_and_b32 v{Q}, 1, v{Q}
    v_lshl_or_b32 v{Q}, v{V}, 1, v{Q}
    v_mov_b32 v{V}, s31
    v_cndmask_b32 v{V}, 0, v{V}, vcc
    v_add_u32 v{V}, v{V}, v{T}
    v_cndmask_b32 v{Q}, v{Q}, v{V}, s[94:95]
    v_and_b32 v{V}, -4, v{Q}
    v_lshl_add_u32 v{U}, v{V}, 8, v{U}
    v_and_b32 v{V}, 3, v{Q}
    v_lshl_add_u32 v{U}, v{V}, 2, v{U}
    ds_write_b16 v{U}, v{ONE} offset:{L_P}
    s_add_u32 s97, s97, 8
    s_branch L2_q
    L2_qd:
    s_mov_b64 exec, -1
    s_waitcnt lgkmcnt(0)""")
    def scatter(ks):
        P = ((94, 96), (28, 30), (40, 42))
        def st1(k):
            r, tb = RECR+4*k+3, TB+4*(k % 8)
            a(f"""v_cmp_lt_u32_sdwa {sr(P[k%3][0],2)}, v{r}, v{tb} src0_sel:DWORD src1_sel:WORD_1
            v_cmp_lt_u32_sdwa {sr(P[k%3][1],2)}, v{r}, v{tb} src0_sel:DWORD src1_sel:WORD_0""")
        def st2(k):
            r, m, tb = RECR+4*k+3, RECR+4*k+2, TB+4*(k % 8)
            a(f"""v_cndmask_b32 v{tb+3}, v{tb+3}, v{tb+2}, {sr(P[k%3][0],2)}
            v_cndmask_b32 v{tb+3}, v{tb+3}, v{tb+1}, {sr(P[k%3][1],2)}
            v_and_b32 v{m}, {OPT.get('imask', 0x3fff)}, v{m}
            v_add_lshl_u32 v{tb+3}, v{tb+3}, v{r}, 2
            v_lshlrev_b32 v{tb}, 1, v{tb+3}""")
        st1(ks[0])
        for i, k in enumerate(ks):
            if i + 1 < len(ks): st1(ks[i+1])
            st2(k)
        for k in ks:
            tb = TB+4*(k % 8)
            a(f"""s_mov_b64 exec, {sr(MASK+2*k,2)}
            ds_write_b32 v{tb+3}, v{RECR+4*k+2} offset:{L_IDX}
            ds_write_b64 v{tb}, {vr(RECR+4*k,2)} offset:{L_EA}""")
    scatter(list(range(8)))
    a(f"s_cmp_eq_u32 s{S_R2}, 0\ns_cbranch_scc1 L2_c12")
    for k2 in range(8, 12):
        a(f"""s_mov_b64 exec, {sr(MASK+2*k2,2)}
        v_lshrrev_b32 v{RK+k2-8}, 14, v{RECR+4*k2+2}
        ds_read_b128 {vr(TB+4*(k2-8),4)}, v{RK+k2-8} offset:{L_TBL}""")
    a("s_mov_b64 exec, -1\ns_waitcnt lgkmcnt(0)")
    scatter(list(range(8, 12)))
    a(f"""L2_c12:
    s_mov_b64 exec, -1
    s_cmp_lg_u32 s{S_BDONE}, 0
    s_cbranch_scc1 L2_c13""")
    for q in range(8): a(f"ds_read_b128 {vr(W2R+4*q,4)}, v125 offset:{1024*q}")
    a(f"""L2_c13:
    s_lshl_b32 s96, s{S_T0}, 7
    s_add_u32 s96, s96, {L_IDX-256}
    v_lshrrev_b32 v54, 3, v{L}
    v_lshl_add_u32 v{IB}, v54, 2, s96
    s_lshl_b32 s96, s{S_T0}, 8
    s_add_u32 s96, s96, {L_EA-512}
    v_add_u32 v{EB}, s96, v{ESIG}
    s_lshl_b32 s96, s{S_T0}, 5
    s_add_u32 s96, s96, {L_QA-64}
    v_add_u32 v{QB}, s96, v{QOFF}
    s_lshl_b32 s96, s53, 10
    s_add_u32 s96, s96, {L_P-1024}
    v_add_u32 v{PB}, s96, v{L16}""")
    for j in range(8): a(f"v_mov_b32 v{HQ0+j}, 0")
    for j in range(4): a(f"v_mov_b32 v{PP+j}, 0\nv_mov_b32 v{EE+2*j+1}, v{IP+2*j+1}")
    srd(a, 44, WS, W2OP, 65536); srd(a, 48, B2, None, 256)
    a(f"""s_mov_b32 s38, {AROWS}
    s_mov_b32 s{S_N0}, s{S_N}
    s_waitcnt lgkmcnt(0)
    s_barrier""")
    stamp(a, 7, ST)
    rd_idx(a, 2)
    for u in range(4): a(f"ds_read_b32 v{EE+2*u}, v{IB} offset:{128*3+32*u}")
    a("s_waitcnt lgkmcnt(4)"); dma(a, 0)
    rd_idx(a, 4)
    a(f"s_add_u32 m0, s{S_STG}, 4096\ns_waitcnt lgkmcnt(4)")
    for u in range(4):
        a(f"buffer_load_dwordx4 {vr(EE+2*u,2)}, s[36:39], 0 idxen offen lds")
        if u < 3: a("s_add_u32 m0, m0, 1024")
    a(f"""ds_read_b32 v{QV[0]}, v{QB} offset:64
    ds_read_b32 v{QV[1]}, v{QB} offset:96
    ds_read2st64_b32 {vr(A2[0]+2,2)}, v{EB} offset0:2 offset1:2
    v_mov_b32 v53, 0
    s_cmp_lg_u32 s{S_BDONE}, 0
    s_cbranch_scc1 L2_p2""")
    for s in range(8): a(mfma(0, 64+4*s, W2R+4*s, None if s == 0 else 0))
    a(f"""s_mov_b32 s94, {NLOG2E}
    s_mov_b32 s{S_BDONE}, 1
    v_lshrrev_b32 v49, 5, v{L}
    s_lshl_b32 s96, s{S_CG}, 7
    v_lshl_add_u32 v50, v175, 1, s96
    v_mul_u32_u24 v51, {4*BTS}, v49
    s_mul_i32 s96, s{S_GRP}, {32*BTS}
    s_add_u32 s96, s96, {L_BT}
    v_add3_u32 v51, v51, v50, s96
    v_mov_b32 v52, 1.0
    s_nop 1""")
    for s in range(8):
        a(mfma(16, 64+4*s, W2R+32+4*s, None if s == 0 else 16))
        for j in range(2*s, 2*s+2): a(f"v_fma_f32 v{j}, v{j}, s94, v126")
        a(f"v_max3_f32 v52, |v{2*s}|, |v{2*s+1}|, v52")
    a(mfma(S0, HQ0, PP, None)); a(mfma(S1, HQ0, PP, None))
    for j in range(16):
        if j == 8: a(f"s_cmp_eq_u32 s{S_GRP}, 0\ns_cselect_b32 exec_hi, -1, 0")
        if j == 9: a("s_cbranch_scc0 L2_bz")
        a(f"""v_fma_f32 v{16+j}, v{16+j}, s94, v127
        v_cvt_pk_bf16_f32 v{j}, v{j}, v{16+j}
        ds_write_b32 v51, v{j} offset:{(8*(j//4) + j % 4)*BTS}""")
        if j & 1: a(f"v_max3_f32 v52, |v{15+j}|, |v{16+j}|, v52")
        if j == 8: a(f"v_max_f32 v52, |v{16+j}|, v52")
    a(f"""s_branch L2_bw
    L2_bz:
    ds_write_b32 v51, v53 offset:{17*BTS}
    s_mov_b64 exec, -1
    L2_bw:
    v_cmp_neq_f32 vcc, 1.0, v52
    s_cmp_eq_u64 vcc, 0
    s_cbranch_scc1 L2_bx
    ds_write_b32 v53, v{VONE} offset:{L_MISC+8}
    L2_bx:
    s_waitcnt lgkmcnt(0)
    s_barrier
    L2_p2:
    ds_read_b32 v171, v53 offset:{L_MISC+8}
    s_waitcnt lgkmcnt(1)
    v_add_u32 v{QV[0]}, v{QV[0]}, v{QST}
    v_add_u32 v{QV[1]}, v{QV[1]}, v{QST}
    s_waitcnt vmcnt(4)""")
    rd_rows(a, 0)
    a(f"ds_read_b64_tr_b16 {vr(B2R[0],2)}, v{QV[0]}\ns_waitcnt lgkmcnt(0)")
    for m in tmf(D0, ALO, A2[0], B2R[0]): a(m)
    dma(a, 0); rd_idx(a, 5)
    group(a, 1, tail=False)
    a(f"""v_readfirstlane_b32 s96, v171
    s_cmp_eq_u32 s{S_SAFE}, 2
    s_cselect_b32 s96, 0, s96
    s_cmp_lg_u32 s96, 0
    s_cbranch_scc1 L2_redo
    s_cmp_eq_u32 s{S_N}, 0
    s_cbranch_scc1 L2_done""")
    stamp(a, 8, ST)
    if OPT.get("stamp"): a(f"v_writelane_b32 v{ST}, s{S_N}, 30")
    a(f"s_cmp_eq_u32 s{S_SAFE}, 2\ns_cbranch_scc1 L2_loopS\ns_cmp_eq_u32 s{S_NO}, 0\ns_cbranch_scc1 L2_loopF")
    main_loops(a)
    a(f"""L2_redo:
    s_mov_b32 s{S_SAFE}, 2
    v_mov_b32 v{DEG}, 0
    s_waitcnt vmcnt(0) lgkmcnt(0)
    s_barrier
    s_branch L2_batch
    L2_end_odd:
    ds_read_b128 {vr(PP,4)}, v{PB}
    s_waitcnt lgkmcnt(0)""")
    a(mfma(S0, HQ0, PP, S0))
    a("L2_end_even:")
    a(mfma(S1, HQ1, PP, S1))
    a(f"""L2_done:
    s_waitcnt vmcnt(0)
    s_cmp_eq_u32 s{S_SLOW}, 0
    s_cbranch_scc1 L2_epi
    s_add_u32 s{S_BETA}, s{S_BETA}, 1
    s_lshr_b32 s{S_BASE}, s{S_BETA}, 1
    s_lshl_b32 s{S_BASE}, s{S_BASE}, {LSH}
    s_xor_b32 s{S_IMASK}, s{S_IMASK}, 15
    s_cmp_ge_u32 s{S_BASE}, s{S_MAXC}
    s_cbranch_scc1 L2_epi
    s_barrier
    s_branch L2_batch""")
    a(f"L2_epi:\ns_cmp_gt_u32 s{S_N0}, 4\ns_cbranch_scc1 L2_epi1")
    for k in range(4): w2chunk(a, k)
    a("s_waitcnt vmcnt(0)\nL2_epi1:")
    stamp(a, 9, ST)
    a(f"""v_and_b32 v2, 31, v{L}
    v_lshrrev_b32 v3, 5, v{L}
    s_mov_b32 s94, {NLN2}
    s_mov_b32 s95, {NLN2}
    v_bfe_u32 v5, v2, 1, 3
    v_lshlrev_b32 v5, 4, v5
    v_lshl_add_u32 v5, v2, 7, v5
    v_lshl_add_u32 v6, v3, 3, v5
    v_add_u32 v6, s{S_STG}, v6""")
    for u in range(8):
        a(f"""v_xor_b32 v{32+u}, {16*u}, v6
        v_cvt_pk_bf16_f32 v{16+2*u}, v{S0+4*u}, v{S0+4*u+1}
        v_cvt_pk_bf16_f32 v{17+2*u}, v{S0+4*u+2}, v{S0+4*u+3}
        ds_write_b64 v{32+u}, {vr(16+2*u,2)}""")
    a(f"""s_cmp_lg_u32 s3, 0
    s_cbranch_scc1 L2_e1
    v_cvt_f32_u32 v8, v{DEG}
    v_lshlrev_b32 v9, 2, v{L}
    s_mov_b32 exec_hi, 0
    ds_write_b32 v9, v8 offset:{L_DEG}
    s_mov_b32 exec_lo, 0xfffe0000
    s_mov_b32 exec_hi, 0x1ffff
    ds_write_b32 v9, v8 offset:{L_DEG+128-68}
    s_mov_b64 exec, -1
    L2_e1:
    v_lshlrev_b32 v7, 4, v3
    v_xor_b32 v5, v5, v7
    s_lshl_b32 s97, s{S_GRP}, 15
    s_add_u32 s97, s97, {L_STG}
    v_add_u32 v241, s97, v5
    v_xor_b32 v242, 32, v241
    v_xor_b32 v243, 64, v241
    v_xor_b32 v244, 96, v241
    s_lshl_b32 s97, s{S_GRP}, 7
    v_lshl_add_u32 v245, v3, 4, s97
    s_lshl_b32 s96, s{S_CG}, 7
    s_add_u32 s96, s96, {L_P-512}
    v_lshlrev_b32 v246, 11, v3
    v_lshl_add_u32 v246, v2, 2, v246
    v_add_u32 v246, s96, v246
    s_mul_i32 s96, s{S_GRP}, {17*256}
    s_lshl_b32 s97, s{S_CG}, 6
    s_add_u32 s96, s96, s97
    v_lshlrev_b32 v247, 10, v3
    v_and_b32 v7, 1, v2
    v_lshl_add_u32 v247, v7, 8, v247
    v_and_b32 v8, 30, v2
    v_lshl_add_u32 v247, v8, 1, v247
    v_cmp_eq_u32 vcc, 0, v7
    v_mov_b32 v8, 0x07060302
    v_mov_b32 v9, 0x01000504
    v_cndmask_b32 v248, v8, v9, vcc
    v_add_u32 v247, s96, v247
    v_lshlrev_b32 v240, 16, v{B2V}
    s_sub_u32 s96, {N}, s{S_NEG}
    s_min_u32 s96, s96, {NPB}
    s_lshl_b32 s96, s96, 8
    s_lshl_b32 s97, s{S_NEG}, 8""")
    srd(a, 52, OUT, "s97", "s96")
    a("""s_mov_b32 s97, 4096
    s_waitcnt lgkmcnt(0)
    s_barrier""")
    for s in range(16): a(f"ds_read_b128 {vr(4*s,4)}, v{241+s%4} offset:{8192*(s//4)}")
    for jq in range(4): a(f"ds_read_b128 {vr(96+4*jq,4)}, v245 offset:{L_DEG+32*jq}")
    stamp(a, 10, ST)
    O = 64
    for s in range(16):
        a(f"s_waitcnt lgkmcnt({min(15, 19-s)})")
        a(mfma(O, 4*s, W2R+4*s, None if s == 0 else O))
    a("s_waitcnt lgkmcnt(0)")
    for j in range(16): a(f"v_mul_f32 v{96+j}, v{96+j}, v240")
    a(f"s_cmp_eq_u32 s{S_GRP}, 0\ns_cbranch_scc1 L2_e2")
    for j in range(8): a(f"ds_write_b32 v246, v{O+j} offset:{(8*(j//4)+j%4+1)*512}")
    a("""L2_e2:
    s_waitcnt lgkmcnt(0)
    s_barrier""")
    def fin(js):
        for j in js: a(f"v_fma_f32 v{O+j}, v{O+j}, s94, v{96+j}")
        for j in js[::2]: a(f"v_cvt_pk_bf16_f32 v{16+j//2}, v{O+j}, v{O+j+1}")
        for j in js[::2]: a(f"v_mov_b32_dpp v{24+j//2}, v{16+j//2} quad_perm:[1,0,3,2] row_mask:0xf bank_mask:0xf")
        for j in js[::2]: a(f"v_perm_b32 v{16+j//2}, v{16+j//2}, v{24+j//2}, v248")
    def st(j):
        off = (8*(j//4) + j % 4)*256
        return f"buffer_store_dword v{16+j//2}, v247, s[52:55], {'0' if off < 4096 else 's97'} offen offset:{off % 4096}"
    a(f"s_cmp_lg_u32 s{S_GRP}, 0\ns_cbranch_scc1 L2_e3")
    for j in range(8, 16): a(f"ds_read_b32 v{j}, v246 offset:{(8*(j//4)+j%4-16)*512}")
    fin(list(range(8)))
    for j in range(0, 8, 2): a(st(j))
    a(f"""s_waitcnt lgkmcnt(0)
    s_mov_b32 exec_lo, 0
    v_add_f32 v{O+8}, v{O+8}, v8
    s_mov_b64 exec, -1""")
    for j in range(9, 16): a(f"v_add_f32 v{O+j}, v{O+j}, v{j}")
    a("s_branch L2_e5\nL2_e3:")
    fin([6, 7])
    a("s_mov_b32 exec_lo, 0\ns_mov_b32 exec_hi, 0xaaaaaaaa")
    a(st(6)); a("s_mov_b64 exec, -1\nL2_e5:")
    fin(list(range(8, 16)))
    for j in range(8, 16, 2): a(st(j))
    stamp_dump(a, ST, 0, 1)
    a("L2_exit2:\ns_endpgm")


HEAD = """; edge-featured MPNN: K1 = edge partition by dst bucket + node tables + operand prep ; K2 = gather / silu / segment-sum / final GEMM
; @launch kernel=k1_kernel grid=({g1},1,1) block=(512,1,1) lds={l1}
; @launch kernel=k2_kernel grid=({g2},1,1) block=(512,1,1) lds={l2}
.amdgcn_target "amdgcn-amd-amdhsa--gfx950"
.text
"""
KD = """.amdhsa_kernel {name}
  .amdhsa_next_free_vgpr {v}
  .amdhsa_next_free_sgpr 102
  .amdhsa_accum_offset {v}
  .amdhsa_group_segment_fixed_size 0
  .amdhsa_kernarg_size 88
  .amdhsa_user_sgpr_count 2
  .amdhsa_user_sgpr_kernarg_segment_ptr 1
  .amdhsa_system_sgpr_workgroup_id_x 1
.end_amdhsa_kernel
"""


def build():
    out = HEAD.format(g1=K1_GRID, l1=K1_LDS, g2=NB, l2=K2_LDS)
    for name, fn in (("k1_kernel", k1), ("k2_kernel", k2)):
        a = Asm(); fn(a)
        out += f".globl {name}\n.p2align 8\n.type {name},@function\n" + a.text(verbose=OPT.get("v", 0))
    out += '.section .rodata,"a"\n.p2align 6\n' + KD.format(name="k1_kernel", v=128) + ".p2align 6\n" + KD.format(name="k2_kernel", v=256)
    return out


if __name__ == "__main__":
    open(sys.argv[1], "w").write(build())
```

```python
import sys, struct
from asmlib import Asm, vr, sr

OPT = dict(prio=1, prio_at=32, pf=1, ept=4, smf=1, gp=0, split=25, cb=95)
for a_ in sys.argv[2:]:
    k_, v_ = a_.split("="); OPT[k_] = int(v_)

N, E = 12500, 400000
NPB, NB = 49, 256
EPT = OPT["ept"]
CE = 400*EPT; CH = E//CE
LPS = 2*EPT
LSH = {8: 3, 16: 4}[LPS]
SPLIT, HALF = OPT.get('split', 23), 6250
AROWS = N + 2
REC = 13 << 20
OFF = 19 << 20
W2OP = 20 << 20
STAT = W2OP + 65536
BIAS = STAT + 4096
W1BOP = STAT + 8192
MAXA = W1BOP + 65536
MAXE = MAXA + 1024
MAXW_G = MAXE + 1024
STAMPS = 24 << 20
NG = 208
K1_GRID = NG + 3 + CH
K1_LDS = 65536 + 64

def f2u(x): return struct.unpack("<I", struct.pack("<f", x))[0]
NLOG2E = f2u(-1.4426950408889634)
PLOG2E = NLOG2E ^ 0x80000000
NLN2 = f2u(-0.6931471805599453)
X, EA_, SRC, DST, W1, B1, W2, B2, OUT, DBG, WS = 4, 6, 8, 10, 12, 14, 16, 18, 20, 22, 24
SHR = ["row_shr:%d row_mask:0xf bank_mask:0xf bound_ctrl:0" % i for i in (1, 2, 4, 8)]
BC15, BC31 = "row_bcast:15 row_mask:0xa bank_mask:0xf", "row_bcast:31 row_mask:0xc bank_mask:0xf"


def srd(a, d, base, add, size, stride=0):
    if add is None:
        a(f"s_mov_b32 s{d}, s{base}\ns_mov_b32 s{d+1}, s{base+1}")
    else:
        a(f"s_add_u32 s{d}, s{base}, {add}\ns_addc_u32 s{d+1}, s{base+1}, 0")
    if stride: a(f"s_or_b32 s{d+1}, s{d+1}, {stride << 16}")
    a(f"s_mov_b32 s{d+2}, {size}\ns_mov_b32 s{d+3}, 0x00020000")


def ldargs(a):
    a("""s_load_dwordx16 s[4:19], s[0:1], 0
    s_load_dwordx4 s[20:23], s[0:1], 64
    s_load_dwordx2 s[24:25], s[0:1], 80""")


def dpp_red(a, op, vs, full=True):
    if isinstance(vs, int): vs = [vs]
    for m in SHR + [BC15] + ([BC31] if full else []):
        for v in vs: a(f"{op}_dpp v{v}, v{v}, v{v} {m}")


def stamp(a, k, reg):
    if not OPT.get("stamp"): return
    a(f"s_memrealtime s[100:101]\ns_waitcnt lgkmcnt(0)\nv_writelane_b32 v{reg}, s100, {k}")
    if k in (0, 7, 8, 9, 31): a(f"s_memtime s[100:101]\ns_waitcnt lgkmcnt(0)\nv_writelane_b32 v{reg}, s100, {32+k}")


def stamp_dump(a, reg, tmp, kern):
    if not OPT.get("stamp"): return
    a("s_mov_b64 exec, -1\ns_waitcnt vmcnt(0)")
    stamp(a, 31, reg)
    a(f"""s_lshl_b32 s96, s2, 3
    s_add_u32 s96, s96, s3
    s_lshl_b32 s96, s96, 8
    s_add_u32 s96, s96, {STAMPS + kern*(1 << 20)}""")
    srd(a, 44, WS, "s96", 256)
    a(f"""v_mbcnt_lo_u32_b32 v{tmp}, -1, 0
    v_mbcnt_hi_u32_b32 v{tmp}, -1, v{tmp}
    v_lshlrev_b32 v{tmp}, 2, v{tmp}
    buffer_store_dword v{reg}, v{tmp}, s[44:47], 0 offen""")


def smf(D, B): return f"v_smfmac_f32_32x32x32_bf16 {vr(D,16)}, {vr(ID0,4)}, {vr(B,8)}, v{ID1}"
def tmf(D, rows, a2, b2):
    if OPT["smf"]: return [mfma(D, a2, b2, None), smf(D, rows)]
    return [mfma(D, rows, ID0, None), mfma(D, rows+4, ID1, D), mfma(D, a2, b2, D)]
def code_pf(a, label, size, lane, tmp, junk, sr0, lanes=16):
    if not OPT.get("cpf", 2): return
    code_pf.n += 1
    a(f"""s_getpc_b64 s[{sr0}:{sr0+1}]
    L_pc{code_pf.n}:
    s_sub_u32 s{sr0}, s{sr0}, L_pc{code_pf.n}-{label}
    s_subb_u32 s{sr0+1}, s{sr0+1}, 0
    s_cmp_lt_u32 s2, {OPT.get("cpn", 16)}
    s_cselect_b32 s{sr0+2}, {size}, 0
    s_mov_b32 s{sr0+3}, 0x00020000
    s_mul_i32 s99, s3, {128*lanes}
    v_lshlrev_b32 v{tmp}, 7, v{lane}
    s_mov_b64 exec, {(1 << lanes) - 1}
    buffer_load_dword v{junk}, v{tmp}, s[{sr0}:{sr0+3}], s99 offen
    s_mov_b64 exec, -1""")
code_pf.n = 0
def lane63(a): a("s_mov_b32 exec_lo, 0\ns_mov_b32 exec_hi, 0x80000000")
def full(a): a("s_mov_b64 exec, -1")
def mfma(D, A, B, C): return f"v_mfma_f32_32x32x16_bf16 {vr(D,16)}, {vr(A,4)}, {vr(B,4)}, " + ("0" if C is None else vr(C, 16))


def k1(a):
    ST = 126
    a("k1_kernel:")
    a(f"s_cmp_ge_u32 s2, {K1_GRID}\ns_cbranch_scc1 L1_exit2")
    if OPT.get("stamp"): a(f"v_mov_b32 v{ST}, 0")
    stamp(a, 0, ST)
    ldargs(a)
    a(f"""v_and_b32 v1, 63, v0
    v_lshrrev_b32 v2, 6, v0
    s_nop 0
    v_readfirstlane_b32 s3, v2""")
    if OPT.get("cpf", 2) >= 2: code_pf(a, "k1_kernel", "L2_exit2-k1_kernel", 1, 63, 63, 64, 22)
    a(f"s_cmp_gt_u32 s2, {NG+2}\ns_cbranch_scc1 L1_part" if OPT.get("gfirst", 1) else f"s_cmp_le_u32 s2, {NG+2}\ns_cbranch_scc1 L1_gemm")
    WOP = 56
    def gemm_role():
        WOP = 56
        a(f"""    s_cmp_eq_u32 s2, {NG+2}
        s_cbranch_scc1 L1_w2
        s_bfe_u32 s27, s2, 0x10003
        s_lshr_b32 s28, s2, 4
        s_lshl_b32 s28, s28, 3
        s_and_b32 s29, s2, 7
        s_add_u32 s28, s28, s29
        s_cmp_ge_u32 s2, {NG}
        s_cselect_b32 s27, s29, s27
        s_cselect_b32 s61, {128*512}, 0
        s_cbranch_scc1 L1_g1
        s_cmp_ge_u32 s28, 98
        s_cbranch_scc1 L1_exit2
        L1_g1:
        v_lshrrev_b32 v18, 4, v1
        v_and_b32 v19, 15, v1
        v_lshlrev_b32 v24, 2, v18
        v_xor_b32 v24, v24, v19
        v_lshlrev_b32 v24, 4, v24
        v_lshl_or_b32 v124, v18, 9, v24""")
        for ii in range(4):
            a(f"""v_add_u32 v20, {4*ii}, v18
            v_xor_b32 v20, v20, v19
            v_lshlrev_b32 v20, 4, v20
            v_lshl_or_b32 v{25+ii}, v18, 8, v20""")
        a(f"""v_mov_b32 v2, 0
        v_mov_b32 v3, 65536
        ds_write_b32 v3, v2
        s_lshl_b32 s43, s3, 13
        s_lshl_b32 s30, s27, 8
        s_add_u32 s43, s43, s30
        s_add_u32 s43, s43, s61
        s_lshl_b32 s31, s3, 12
        s_lshl_b32 s29, s28, 15
        s_add_u32 s29, s29, s31
        s_add_u32 m0, s31, 32768
        s_and_b32 s40, s3, 1
        s_lshr_b32 s41, s3, 1
        v_and_b32 v7, 31, v1
        v_lshlrev_b32 v20, 1, v7
        s_lshl_b32 s42, s40, 7
        s_add_u32 s42, s42, s30
        s_waitcnt lgkmcnt(0)""")
        stamp(a, 5, ST)
        srd(a, 36, X, None, N*256)
        for ii in range(4):
            a(f"buffer_load_dwordx4 v{25+ii}, s[36:39], s29 offen nt lds")
            if ii < 3: a("s_add_u32 m0, m0, 1024\ns_add_u32 s29, s29, 1024")
        a("s_mov_b32 m0, s31")
        srd(a, 32, W1, None, 260*512)
        for ii in range(4):
            a(f"buffer_load_dwordx4 v124, s[32:35], s43 offen lds")
            a("s_add_u32 m0, m0, 1024\ns_add_u32 s43, s43, 2048")
        if OPT.get("cpf", 2) == 1: code_pf(a, "k1_kernel", "L1_exit2-k1_kernel", 1, 21, 22, 64)
        stamp(a, 6, ST)
        a(f"""v_bfe_u32 v18, v1, 2, 2
        v_lshrrev_b32 v6, 5, v1
        v_lshl_add_u32 v19, v6, 3, v18
        v_lshlrev_b32 v19, 8, v19
        v_bfe_u32 v20, v1, 4, 1
        v_lshlrev_b32 v20, 5, v20
        v_and_b32 v21, 3, v1
        v_lshl_add_u32 v20, v21, 3, v20
        v_add_u32 v19, v19, v20
        s_lshl_b32 s42, s40, 1
        v_xor_b32 v20, s42, v18
        v_lshl_add_u32 v120, v20, 6, v19
        v_xor_b32 v20, 1, v20
        v_lshl_add_u32 v121, v20, 6, v19
        s_lshl_b32 s42, s41, 5
        v_add_u32 v19, s42, v7
        v_lshlrev_b32 v19, 8, v19
        v_and_b32 v20, 15, v1
        v_xor_b32 v20, v20, v6
        v_lshl_add_u32 v104, v20, 4, v19
        v_add_u32 v104, 32768, v104""")
        for s in range(1, 8): a(f"v_xor_b32 v{104+s}, {32*s}, v104")
        srd(a, 44, WS, None, N*512)
        a(f"""s_lshl_b32 s42, s28, 2
        s_add_u32 s42, s42, s41
        s_lshl_b32 s42, s42, 14
        s_lshl_b32 s48, s27, 1
        s_add_u32 s48, s48, s40
        s_lshl_b32 s48, s48, 7
        s_add_u32 s48, s42, s48
        s_add_u32 s30, s31, 32768
        v_lshlrev_b32 v4, 9, v6
        v_lshl_add_u32 v4, v7, 2, v4
        v_add_u32 v4, s30, v4
        v_lshl_add_u32 v6, v1, 4, s30
        v_lshrrev_b32 v7, 3, v1
        v_lshlrev_b32 v7, 9, v7
        v_and_b32 v18, 7, v1
        v_lshl_add_u32 v7, v18, 4, v7
        s_mov_b32 s52, {NLOG2E}
        s_mov_b32 s60, {PLOG2E}
        v_mov_b32 v5, 0
        v_mov_b32 v125, 0x80008000
        s_setprio {OPT.get("gp", 0)}
        s_waitcnt vmcnt(0)
        s_barrier""")
        stamp(a, 1, ST)
        def wr(t, s):
            for hf in range(2):
                a(f"ds_read_b64_tr_b16 {vr(WOP+32*t+4*s+2*hf,2)}, v{120+t} offset:{4096*s+1024*hf}")
        GD0, GD1, CV, RB = 8, WOP, 72, 88
        for task in range(1):
            sc = (lambda r, b: f"v_mul_f32 v{r}, s52, v{r}") if task == 0 else (lambda r, b: f"v_fma_f32 v{r}, v{r}, s60, v{b}")
            per = 3 if task == 0 else 2
            ahead = 5 if task == 0 else 7
            def rd(s):
                if s < 8:
                    if task == 0: a(f"ds_read_b128 {vr(24+4*s,4)}, v{104+s}")
                    wr(0, s)
                else: wr(1, s-8)
            a(f"s_cmp_ge_u32 s2, {NG}\ns_cbranch_scc1 L1_w1b")
            for s in range(ahead): rd(s)
            if task == 1:
                a("""v_lshlrev_b32 v122, 16, v122
                v_lshlrev_b32 v123, 16, v123
                v_mul_f32 v122, s60, v122
                v_mul_f32 v123, s60, v123""")
            cnt = lambda lo, hi: sum(per if q < 8 else 2 for q in range(lo, hi))
            for s in range(8):
                a(f"s_waitcnt lgkmcnt({cnt(s+1, s+ahead)})")
                a(mfma(GD0, 24+4*s, WOP+4*s, None if s == 0 else GD0))
                rd(s+ahead)
            for s in range(8+ahead, 16): rd(s)
            a("s_waitcnt lgkmcnt(0)")
            if task == 0:
                a("s_barrier")
                stamp(a, 3, ST)
            for s in range(8):
                a(mfma(GD1, 24+4*s, WOP+32+4*s, None if s == 0 else GD1))
                if s >= 2:
                    for j in range((s-2)*3, min(16, (s-1)*3)): a(sc(GD0+j, 122))
            for j in range(16):
                a(sc(GD1+j, 123))
                a(f"""v_cvt_pk_bf16_f32 v{CV+j}, v{GD0+j}, v{GD1+j}
                ds_write_b32 v4, v{CV+j} offset:{128*(8*(j//4)+j%4)}""")
            a("s_waitcnt lgkmcnt(0)")
            if task == 0: stamp(a, 4, ST)
            for i in range(4): a(f"ds_read_b128 {vr(RB+4*i,4)}, v6 offset:{1024*i}")
            for j in range(16): a(f"v_and_b32 v{CV+j}, 0x7fff7fff, v{CV+j}\nv_pk_max_u16 v5, v5, v{CV+j}")
            for i in range(4):
                a(f"s_waitcnt lgkmcnt({3-i})\nbuffer_store_dwordx4 {vr(RB+4*i,4)}, v7, {sr(44 if task == 0 else 56, 4)}, s48 offen sc1")
                a("s_add_u32 s48, s48, 4096" if i < 3 else "s_sub_u32 s48, s48, 12288")
        stamp(a, 2, ST)
        a("""v_lshlrev_b32 v6, 16, v5
        v_and_b32 v5, 0xffff0000, v5
        v_max_u32 v5, v5, v6""")
        dpp_red(a, "v_max_u32", 5)
        lane63(a); a("ds_max_u32 v3, v5"); full(a)
        srd(a, 44, WS, MAXA, 196*4)
        a(f"""s_lshl_b32 s26, s28, 1
        s_add_u32 s26, s26, s27
        s_lshl_b32 s26, s26, 2
        s_waitcnt lgkmcnt(0)
        s_barrier
        v_cmp_eq_u32 vcc, 0, v0
        s_and_saveexec_b64 s[54:55], vcc
        s_cbranch_execz L1_exit
        ds_read_b32 v6, v3
        s_waitcnt lgkmcnt(0)
        buffer_store_dword v6, v2, s[44:47], s26 offen sc1
        s_branch L1_exit""")
        a(f"""L1_w1b:
        s_lshl_b32 s43, s27, 1
        s_add_u32 s43, s43, s40
        s_lshl_b32 s43, s43, 14
        v_lshlrev_b32 v2, 4, v1
        s_cmp_lg_u32 s41, 0
        s_cbranch_scc1 L1_exit""")
        for t in range(2):
            for s in range(8): wr(t, s)
        srd(a, 44, WS, W1BOP, 65536)
        a("s_waitcnt lgkmcnt(0)")
        for q in range(16):
            a(f"buffer_store_dwordx4 {vr(WOP+4*q,4)}, v2, s[44:47], s43 offen sc1\ns_add_u32 s43, s43, 1024")
        a("s_branch L1_exit")
    def part_role():
        a(f"L1_part:\ns_sub_u32 s56, s2, {NG+3}")
        G = EPT//4
        HIST, START, MAXW = 40960, 41984, 43008
        DV, SV, EV, AV, RV = 4, 12, 24, 40, 48
        a(f"""v_lshlrev_b32 v2, 2, v0
        v_mov_b32 v3, 0
        ds_write_b32 v2, v3 offset:{HIST}
        ds_write_b32 v2, v3 offset:{MAXW}
        v_mov_b32 v60, 0
        v_mov_b32 v61, 1
        s_mul_i32 s26, s56, {CE*4}
        s_add_u32 s27, s26, 6400
        s_mov_b32 s58, s26
        s_mov_b32 s59, s27
        s_lshl_b32 s52, s26, 1
        s_lshl_b32 s53, s27, 1
        v_lshlrev_b32 v3, 4, v0
        v_lshlrev_b32 v20, 5, v0
        v_cmp_gt_u32 vcc, 400, v0
        s_waitcnt lgkmcnt(0)""")
        stamp(a, 5, ST)
        srd(a, 28, DST, None, E*4); srd(a, 32, SRC, None, E*4); srd(a, 36, EA_, None, E*8)
        a("""s_and_saveexec_b64 s[54:55], vcc
        s_mov_b64 s[54:55], exec
        s_cbranch_execz L1_p1""")
        for g in range(G): a(f"buffer_load_dwordx4 {vr(DV+4*g,4)}, v3, s[28:31], s{26+g} offen nt")
        def late_loads():
            for g in range(G): a(f"buffer_load_dwordx4 {vr(SV+4*g,4)}, v3, s[32:35], s{58+g} offen nt")
            for g in range(G):
                a(f"buffer_load_dwordx4 {vr(EV+8*g,4)}, v20, s[36:39], s{52+g} offen nt")
                a(f"buffer_load_dwordx4 {vr(EV+8*g+4,4)}, v20, s[36:39], s{52+g} offen offset:16 nt")
        if not OPT.get("late", 1): late_loads()
        a(f"""L1_p1:
        s_mov_b64 exec, -1
        s_mul_i32 s26, s56, {CE*12}
        s_add_u32 s26, s26, {REC}""")
        srd(a, 40, WS, "s26", CE*12); srd(a, 44, WS, OFF, CH*1024); srd(a, 48, WS, MAXE, CH*4)
        a(f"""s_setprio {OPT.get("pp", 2)}
        s_barrier
        s_mov_b64 exec, s[54:55]
        s_cbranch_execz L1_p2
        s_waitcnt vmcnt({0 if OPT.get("late", 1) else 3*G})""")
        if OPT.get("late", 1): late_loads()
        stamp(a, 1, ST)
        for k in range(EPT):
            a(f"""v_mul_u32_u24 v21, 10700, v{DV+k}
            v_lshrrev_b32 v21, 19, v21
            v_lshlrev_b32 v{AV+k}, 2, v21
            ds_add_rtn_u32 v{RV+k}, v{AV+k}, v61 offset:{HIST}
            v_mul_u32_u24 v21, {NPB}, v21
            v_sub_u32 v{DV+k}, v{DV+k}, v21""")
        a(f"""L1_p2:
        s_mov_b64 exec, -1
        v_lshlrev_b32 v2, 4, v1
        s_waitcnt lgkmcnt(0)
        s_barrier""")
        stamp(a, 3, ST)
        a(f"""ds_read_b128 v[64:67], v2 offset:{HIST}
        s_waitcnt lgkmcnt(0)
        v_add_u32 v68, v64, v65
        v_add_u32 v69, v68, v66
        v_add_u32 v70, v69, v67
        v_mov_b32 v71, v70""")
        dpp_red(a, "v_add_u32", 71)
        a(f"""v_sub_u32 v56, v71, v70
        v_add_u32 v57, v56, v64
        v_add_u32 v58, v56, v68
        v_add_u32 v59, v56, v69
        ds_write_b128 v2, v[56:59] offset:{START}
        s_mov_b64 exec, s[54:55]
        s_cbranch_execz L1_p4""")
        for k in range(EPT): a(f"ds_read_b32 v{AV+k}, v{AV+k} offset:{START}")
        a(f"s_waitcnt vmcnt({2*G})")
        for k in range(EPT):
            a(f"""v_add_u32 v21, {16384-HALF}, v{SV+k}
            v_lshl_or_b32 v{SV+k}, v{DV+k}, 18, v{SV+k}
            v_lshrrev_b32 v21, 14, v21
            v_lshl_or_b32 v{SV+k}, v21, 24, v{SV+k}""")
        a("s_waitcnt vmcnt(0)")
        for k in range(EPT):
            a(f"""s_waitcnt lgkmcnt({EPT-1+k})
            v_add_u32 v{AV+k}, v{AV+k}, v{RV+k}
            v_mul_u32_u24 v{AV+k}, 12, v{AV+k}
            ds_write2_b32 v{AV+k}, v{EV+2*k}, v{EV+2*k+1} offset0:0 offset1:1
            ds_write_b32 v{AV+k}, v{SV+k} offset:8""")
        for k in range(EPT): a(f"v_dot2_f32_bf16 v{DV+k}, v{EV+2*k}, v{EV+2*k}, 0")
        for k in range(EPT): a(f"v_dot2_f32_bf16 v{DV+k}, v{EV+2*k+1}, v{EV+2*k+1}, v{DV+k}")
        a("s_nop 2")
        for k in range(0, EPT, 2): a(f"v_max3_u32 v60, v60, v{DV+k}, v{DV+k+1}")
        a("L1_p4:")
        full(a)
        dpp_red(a, "v_max_u32", 60)
        a("v_mov_b32 v62, 0")
        lane63(a); a(f"ds_max_u32 v62, v60 offset:{MAXW}"); full(a)
        stamp(a, 2, ST)
        a(f"""s_cmp_lg_u32 s3, 7
        s_cbranch_scc1 L1_p3
        v_lshl_or_b32 v64, v64, 16, v56
        v_lshl_or_b32 v65, v65, 16, v57
        v_lshl_or_b32 v66, v66, 16, v58
        v_lshl_or_b32 v67, v67, 16, v59
        v_mul_u32_u24 v2, {CH*16}, v1
        s_lshl_b32 s26, s56, 4
        buffer_store_dwordx4 v[64:67], v2, s[44:47], s26 offen sc1
        L1_p3:
        s_waitcnt lgkmcnt(0)
        s_barrier""")
        stamp(a, 4, ST)
        NO = -(-CE*12//8192)
        for i in range(NO): a(f"ds_read_b128 {vr(4+4*i,4)}, v3 offset:{8192*i}")
        a(f"ds_read_b32 v30, v62 offset:{MAXW}")
        for i in range(NO):
            a(f"s_mov_b32 s26, {8192*i}\ns_waitcnt lgkmcnt({NO-i})\nbuffer_store_dwordx4 {vr(4+4*i,4)}, v3, s[40:43], s26 offen sc1")
        a(f"""s_lshl_b32 s26, s56, 2
        v_cmp_eq_u32 vcc, 0, v0
        s_and_saveexec_b64 s[54:55], vcc
        s_cbranch_execz L1_exit
        s_waitcnt lgkmcnt(0)
        buffer_store_dword v30, v62, s[48:51], s26 offen sc1
        s_branch L1_exit""")
    if OPT.get("gfirst", 1):
        gemm_role(); part_role()
    else:
        part_role(); a("L1_gemm:"); gemm_role()
    a(f"""L1_w2:
    v_lshlrev_b32 v2, 4, v1
    s_lshl_b32 s29, s3, 13
    s_mov_b32 m0, s29
    v_mov_b32 v20, 0
    v_mov_b32 v21, 65536
    ds_write_b32 v21, v20
    v_and_b32 v11, 1, v1
    v_lshlrev_b32 v11, 5, v11
    v_bfe_u32 v12, v1, 1, 4
    v_add_u32 v11, v11, v12
    v_lshlrev_b32 v11, 1, v11
    v_lshrrev_b32 v12, 5, v1
    v_lshl_add_u32 v11, v12, 10, v11
    s_lshr_b32 s40, s3, 1
    s_lshl_b32 s40, s40, 7
    s_and_b32 s41, s3, 1
    s_lshl_b32 s41, s41, 5
    s_add_u32 s40, s40, s41
    s_add_u32 s40, s40, {256*512}
    s_waitcnt lgkmcnt(0)""")
    srd(a, 32, W2, None, 65536); srd(a, 36, W1, None, 260*512)
    srd(a, 60, B1, None, 512)
    a("""v_and_b32 v17, 31, v1
    v_lshlrev_b32 v17, 1, v17
    s_lshl_b32 s41, s3, 7
    buffer_load_ushort v18, v17, s[60:63], s41 offen
    buffer_load_ushort v19, v17, s[60:63], s41 offen offset:64
    buffer_load_ushort v8, v11, s[36:39], s40 offen
    buffer_load_ushort v9, v11, s[36:39], s40 offen offset:512""")
    for ii in range(8):
        a("buffer_load_dwordx4 v2, s[32:35], s29 offen lds")
        if ii < 7: a("s_add_u32 m0, m0, 1024\ns_add_u32 s29, s29, 1024")
    a(f"""s_and_b32 s40, s3, 3
    s_lshr_b32 s41, s3, 2
    v_bfe_u32 v5, v1, 2, 1
    v_lshlrev_b32 v5, 5, v5
    v_bfe_u32 v6, v1, 3, 1
    v_add_u32 v5, v5, v6
    v_lshrrev_b32 v6, 5, v1
    v_lshl_add_u32 v5, v6, 2, v5
    v_lshlrev_b32 v5, 8, v5
    v_bfe_u32 v6, v1, 4, 1
    v_lshl_add_u32 v5, v6, 5, v5
    v_and_b32 v6, 3, v1
    v_lshl_add_u32 v5, v6, 3, v5
    s_lshl_b32 s42, s40, 6
    s_lshl_b32 s43, s41, 15
    s_add_u32 s42, s42, s43
    v_add_u32 v5, s42, v5
    s_lshl_b32 s43, s40, 14
    s_lshl_b32 s42, s41, 13
    s_add_u32 s43, s43, s42
    s_mov_b32 s52, {NLOG2E}
    s_lshl_b32 s42, s3, 9
    v_lshlrev_b32 v3, 3, v1""")
    srd(a, 44, WS, W2OP, 65536); srd(a, 48, WS, STAT, 4096); srd(a, 56, WS, MAXW_G, 4)
    a("""s_waitcnt vmcnt(8)
    v_lshlrev_b32 v8, 16, v8
    v_lshlrev_b32 v9, 16, v9
    v_mul_f32 v8, s52, v8
    v_mul_f32 v9, s52, v9
    v_cvt_pk_bf16_f32 v15, v8, v9
    v_mul_f32 v16, v8, v8
    v_fmac_f32 v16, v9, v9
    v_lshlrev_b32 v12, 16, v15
    v_and_b32 v13, 0xffff0000, v15
    v_sub_f32 v8, v8, v12
    v_sub_f32 v9, v9, v13
    v_cvt_pk_bf16_f32 v14, v8, v9
    buffer_store_dwordx2 v[14:15], v3, s[48:51], s42 offen sc1
    v_lshlrev_b32 v18, 16, v18
    v_lshlrev_b32 v19, 16, v19
    v_mul_f32 v18, s52, v18
    v_mul_f32 v19, s52, v19
    v_lshlrev_b32 v17, 2, v17
    s_lshl_b32 s41, s3, 8""")
    srd(a, 60, WS, BIAS, 1024); srd(a, 64, WS, N*512, 1024)
    a("""buffer_store_dwordx2 v[18:19], v17, s[60:63], s41 offen sc1
    v_mov_b32 v22, 0x41c041c0
    v_mov_b32 v23, 0x7f7f7f7f
    v_cmp_gt_u32 vcc, 128, v0
    v_lshlrev_b32 v24, 2, v0
    v_cndmask_b32 v22, v23, v22, vcc
    buffer_store_dword v22, v24, s[64:67], 0 offen sc1""")
    a("v_mov_b32 v12, v16\nv_permlane32_swap_b32 v12, v16\nv_add_f32 v16, v12, v16")
    dpp_red(a, "v_max_u32", 16)
    a("""    s_waitcnt vmcnt(0)
    s_barrier""")
    lane63(a); a("ds_max_u32 v21, v16"); full(a)
    for s in range(8):
        for hf in range(2):
            row = 64*(s//4) + 16*((s//2) % 2) + 8*(s % 2) + 2*hf
            a(f"ds_read_b64_tr_b16 {vr(WOP+4*s+2*hf,2)}, v5 offset:{256*row}")
    a("s_waitcnt lgkmcnt(0)\ns_barrier\nds_read_b32 v16, v21")
    for s in range(8):
        a(f"buffer_store_dwordx4 {vr(WOP+4*s,4)}, v2, s[44:47], s43 offen sc1\ns_add_u32 s43, s43, 1024")
    srd(a, 48, WS, MAXE + CH*4, 16)
    a("""v_lshlrev_b32 v17, 2, v1
    buffer_store_dword v20, v17, s[48:51], 0 offen sc1
    s_waitcnt lgkmcnt(0)
    buffer_store_dword v16, v3, s[56:59], 0 offen sc1
    L1_exit:""")
    stamp_dump(a, ST, 127, 0)
    a("L1_exit2:\ns_endpgm")


CAPT = 60
L_IDX, L_QA, L_TBL, L_CNT, L_MISC, L_DEG, L_EA, L_P = 256, 8448, 10496, 12544, 14592, 14656, 15104, 30464
L_BT = L_P + 31*1024
L_STG = 91136
BTS = 576
L_NULL = L_BT + NPB*BTS
K2_LDS = L_STG + 65536
assert L_BT + 50*BTS <= L_STG and L_BT % 256 == 0
D0, D1, EE, TT, HQ0, HQ1, S0, S1 = 0, 16, 32, 48, 56, 60, 64, 80
ALO, AHI, ID0, ID1, A2, B2R, PP, IP = 96, (104, 112), 120, 124, (128, 132), (136, 140), 144, 148
QV, QST, RA, IB, EB, QB, PB = (156, 157), 158, 159, 163, 164, 165, 166
TID, LANE, DEG, VONE, ESIG, QOFF, L16 = 167, 168, 169, 170, 172, 173, 174
RECR, OFR, W2R, B2V = 0, 240, 176, 252
MASK = 56
S_BASE, S_LIM, S_IMASK, S_SLOW, S_N, S_T0, S_FIRST, S_BK, S_MAXC, S_SAFE, S_CUT, S_STG, S_BETA, S_NEG = range(80, 94)
S_BDONE = 23
S_CG, S_GRP, S_R2, S_N0, S_NO = 26, 27, 1, 0, 87


def valu_half(D, hq, mode, fill):
    L = [f"v_exp_f32 v{EE+j}, v{D+j}" for j in range(16)]
    p2 = lambda x: vr(x, 2)
    if mode == "o":
        L.insert(15, None)
        L[15] = f"v_pk_add_f32 {p2(TT)}, {p2(EE)}, 1.0 op_sel_hi:[1,0]"
        L[15], L[16] = L[16], L[15]
        for s in range(1, 8):
            n = D if s == 1 else TT+2
            L.append(f"v_pk_fma_f32 {p2(TT+2)}, {p2(n)}, {p2(EE+2*s)}, {p2(n)}")
            L.append(f"v_pk_fma_f32 {p2(TT+2)}, {p2(D+2*s)}, {p2(TT)}, {p2(TT+2)}")
            L.append(f"v_pk_fma_f32 {p2(TT)}, {p2(TT)}, {p2(EE+2*s)}, {p2(TT)}")
        u, nn, dd = L[-3:]
        L[-3:] = [f"v_pk_fma_f32 {p2(TT+4)}, {p2(TT)}, {p2(EE+14)}, {p2(TT)}", f"v_rcp_f32 v{TT+4}, v{TT+4}", f"v_rcp_f32 v{TT+5}, v{TT+5}", u, nn]
        L.append(f"v_pk_mul_f32 {p2(TT+2)}, {p2(TT+2)}, {p2(TT+4)}")
        L.append(f"v_cvt_pk_bf16_f32 v{hq}, v{TT+2}, v{TT+3}")
        return L + fill
    if mode == "q":
        for q in range(2): L.append(f"v_pk_add_f32 {p2(TT+4*q)}, {p2(EE+8*q)}, 1.0 op_sel_hi:[1,0]")
        for s in range(1, 4):
            for q in range(2):
                n = D+8*q if s == 1 else TT+4*q+2
                L.append(f"v_pk_fma_f32 {p2(TT+4*q+2)}, {p2(n)}, {p2(EE+8*q+2*s)}, {p2(n)}")
            for q in range(2):
                L.append(f"v_pk_fma_f32 {p2(TT+4*q+2)}, {p2(D+8*q+2*s)}, {p2(TT+4*q)}, {p2(TT+4*q+2)}")
            for q in range(2):
                L.append(f"v_pk_fma_f32 {p2(TT+4*q)}, {p2(TT+4*q)}, {p2(EE+8*q+2*s)}, {p2(TT+4*q)}")
        for q in range(2):
            for p in range(2): L.append(f"v_rcp_f32 v{TT+4*q+p}, v{TT+4*q+p}")
        for q in range(2): L.append(f"v_pk_mul_f32 {p2(TT+4*q+2)}, {p2(TT+4*q+2)}, {p2(TT+4*q)}")
    else:
        for j in range(0, 16, 2): L.append(f"v_pk_add_f32 {p2(EE+j)}, {p2(EE+j)}, 1.0 op_sel_hi:[1,0]")
        for j in range(16): L.append(f"v_rcp_f32 v{EE+j}, v{EE+j}")
        for q in range(2): L.append(f"v_pk_mul_f32 {p2(TT+4*q+2)}, {p2(D+8*q)}, {p2(EE+8*q)}")
        for s in range(1, 4):
            for q in range(2):
                L.append(f"v_pk_fma_f32 {p2(TT+4*q+2)}, {p2(D+8*q+2*s)}, {p2(EE+8*q+2*s)}, {p2(TT+4*q+2)}")
    for q in range(2): L.append(f"v_cvt_pk_bf16_f32 v{hq+q}, v{TT+4*q+2}, v{TT+4*q+3}")
    return L + fill


def weave(V, M, pos):
    out = []
    for i, x in enumerate(V):
        out += [m for m, p in zip(M, pos) if p == i]
        out.append(x)
    return out


def incs(k): return [f"v_add_u32 v{IB}, {128*k}, v{IB}", f"v_add_u32 v{EB}, {256*k}, v{EB}", f"v_add_u32 v{QB}, {32*k}, v{QB}"]


def block(a, t, mode):
    par = t & 1
    last = 3 if mode == "o" else 1
    M1 = tmf(D1, AHI[par], A2[par], B2R[1])
    if t == 0: M1.append(mfma(S1, HQ1, PP, S1))
    M2 = tmf(D0, ALO, A2[par ^ 1], B2R[0])
    if t == last: M2.append(mfma(S0, HQ0, PP, S0))
    pos = [1, 4, 7, 10]
    extra = (["s_waitcnt lgkmcnt(0)"] if OPT.get('gw', 1) else []) + [f"v_add_u32 v{QV[par]}, v{QV[par]}, v{QST}"]
    if t == 0: extra.append(f"v_add_u32 v{PB}, 1024, v{PB}")
    if mode == "o" and t == 2: extra += incs(4)
    if mode != "o" and t == 0: extra += incs(2)
    k = t if mode == "o" else 2*t
    L = weave(valu_half(D0, HQ0+k, mode, extra), M1, pos) + weave(valu_half(D1, HQ1+k, mode, []), M2, pos)
    if OPT["prio"]:
        L.insert(OPT["prio_at"], "s_setprio 1"); L.append("s_setprio 0")
    a("\n".join(L))


def dma(a, par):
    a(f"s_add_u32 m0, s{S_STG}, {4096*par}")
    for u in range(4):
        a(f"buffer_load_dwordx4 {vr(IP+2*u,2)}, s[36:39], 0 idxen offen lds")
        if u < 3: a("s_add_u32 m0, m0, 1024")


def rd_idx(a, t):
    for u in range(4): a(f"ds_read_b32 v{IP+2*u}, v{IB} offset:{128*t+32*u}")


def rd_rows(a, par):
    if OPT["smf"]:
        for c in range(2):
            for gi in range(4):
                a(f"ds_read_b64_tr_b16 {vr((ALO, AHI[par])[c]+2*gi,2)}, v{RA+c} offset:{4096*par+512*gi}")
        return
    for s in range(4):
        d = ALO+4*s if s < 2 else AHI[par]+4*(s-2)
        a(f"ds_read_b128 {vr(d,4)}, v{RA+s} offset:{4096*par}")


def w2chunk(a, k):
    a(f"s_lshl_b32 s96, s{S_CG}, 14\ns_add_u32 s96, s96, {4096*k}")
    for q in range(4): a(f"buffer_load_dwordx4 {vr(W2R+16*k+4*q,4)}, v{L16}, s[44:47], s96 offen offset:{1024*q}")
    if k == 0: a(f"s_lshl_b32 s96, s{S_CG}, 6\nbuffer_load_ushort v{B2V}, v175, s[48:51], s96 offen")


def group(a, par, sh=0, rdp=False, tail=True):
    a("s_waitcnt vmcnt(4)")
    rd_rows(a, par)
    a(f"ds_read_b64_tr_b16 {vr(B2R[1],2)}, v{QV[par^1]} offset:64")
    a(f"ds_read_b64_tr_b16 {vr(B2R[0],2)}, v{QV[par]}")
    a(f"ds_read2st64_b32 {vr(A2[par]+2,2)}, v{EB} offset0:{2+par+sh} offset1:{2+par+sh}")
    if rdp: a(f"ds_read_b128 {vr(PP,4)}, v{PB}")
    a(f"s_cmp_gt_u32 s{S_N}, 3\ns_cselect_b32 s38, {0 if OPT.get('nodma') else AROWS}, 0")
    if tail:
        group.n += 1
        a(f"s_cmp_gt_u32 s{S_N}, 4\ns_cbranch_scc1 L2_tr{group.n}\ns_call_b64 s[98:99], L2_w2stub\nL2_tr{group.n}:")
    a(f"s_waitcnt lgkmcnt({4 if rdp else 3})")
    dma(a, par)
    rd_idx(a, 5+par+sh)
    a(f"ds_read_b32 v{QV[par^1]}, v{QB} offset:{32*(3+par+sh)}")
    a(f"s_waitcnt lgkmcnt({5 if OPT.get('gw', 1) else 0})")
group.n = 0


def dec(a, tgt): a(f"s_sub_u32 s{S_N}, s{S_N}, 1\ns_cmp_eq_u32 s{S_N}, 0\ns_cbranch_scc1 {tgt}")


def main_loops(a):
    a("L2_loopO:")
    block(a, 0, "o"); a(f"s_sub_u32 s{S_N}, s{S_N}, 1"); group(a, 0, 2, True)
    block(a, 1, "o"); dec(a, "L2_end_odd"); group(a, 1, 2)
    a(f"s_cmp_eq_u32 s{S_NO}, 2\ns_cbranch_scc1 L2_half")
    block(a, 2, "o"); a(f"s_sub_u32 s{S_N}, s{S_N}, 1"); group(a, 0)
    block(a, 3, "o"); dec(a, "L2_end_even"); group(a, 1)
    a(f"s_sub_u32 s{S_NO}, s{S_NO}, 4\ns_cmp_lg_u32 s{S_NO}, 0\ns_cbranch_scc1 L2_loopO\ns_branch L2_loopF\nL2_half:")
    a(mfma(S0, HQ0, PP, S0)); a("\n".join(incs(2)))
    for tag, mode in (("F", "q"), ("S", "s")):
        a(f"L2_loop{tag}:")
        block(a, 0, mode); dec(a, "L2_end_odd"); group(a, 0, 0, True)
        block(a, 1, mode); dec(a, "L2_end_even"); group(a, 1)
        a(f"s_branch L2_loop{tag}")
    a("L2_w2stub:")
    for k in range(4):
        if k < 3: a(f"s_cmp_lg_u32 s{S_N}, {4-k}\ns_cbranch_scc1 L2_st{k}")
        w2chunk(a, k)
        a("s_setpc_b64 s[98:99]")
        if k < 3: a(f"L2_st{k}:")


def k2(a):
    ST = 253
    L = LANE
    PF = OPT["pf"]
    a("k2_kernel:")
    a(f"s_cmp_ge_u32 s2, {NB}\ns_cbranch_scc1 L2_exit2")
    if OPT.get("stamp"): a(f"v_mov_b32 v{ST}, 0")
    stamp(a, 0, ST)
    ldargs(a)
    a(f"""v_mov_b32 v{TID}, v0
    v_and_b32 v{L}, 63, v0
    v_lshrrev_b32 v2, 6, v0
    v_mov_b32 v{DEG}, 0
    v_readfirstlane_b32 s3, v2""")
    if OPT.get("cpf", 2) == 2: code_pf(a, "k2_kernel", "L2_exit2-k2_kernel", L, 10, 255, 40)
    a(f"""v_mov_b32 v{VONE}, 1
    s_and_b32 s{S_BK}, s2, 7
    s_lshl_b32 s{S_BK}, s{S_BK}, 5
    s_lshr_b32 s28, s2, 3
    s_add_u32 s{S_BK}, s{S_BK}, s28
    s_mul_i32 s{S_NEG}, s{S_BK}, {NPB}
    v_lshrrev_b32 v8, {LSH}, v0
    s_and_b32 s28, s{S_BK}, 3
    s_lshl_b32 s28, s28, 2
    v_lshl_add_u32 v9, v8, 4, s28
    s_lshr_b32 s96, s{S_BK}, 2
    s_mul_i32 s96, s96, {CH*16}
    s_add_u32 s96, s96, {OFF}
    s_mov_b32 s{S_BASE}, 0
    s_mov_b32 s{S_LIM}, {3*LPS}
    s_mov_b32 s{S_IMASK}, 15
    s_mov_b32 s{S_SLOW}, 0
    s_mov_b32 s{S_FIRST}, 1
    s_mov_b32 s{S_BETA}, 0
    s_and_b32 s{S_CG}, s3, 3
    s_lshr_b32 s{S_GRP}, s3, 2
    s_lshl_b32 s{S_STG}, s3, 13
    s_add_u32 s{S_STG}, s{S_STG}, {L_STG}
    v_lshlrev_b32 v{L16}, 4, v{L}
    v_mov_b32 v{IP+1}, 0
    v_mov_b32 v{IP+3}, 0
    v_mov_b32 v{IP+5}, 0
    v_mov_b32 v{IP+7}, 0
    v_mov_b32 v175, 0
    v_lshrrev_b32 v3, 4, v{L}
    v_and_b32 v4, 15, v{L}
    v_xor_b32 v6, v3, v4
    v_lshlrev_b32 v6, 4, v6
    v_lshl_or_b32 v117, v3, 8, v6
    v_xor_b32 v118, 64, v117
    s_waitcnt lgkmcnt(0)""")
    stamp(a, 11, ST)
    srd(a, 28, WS, "s96", CH*16)
    for i in range(4): a(f"buffer_load_dword v{OFR+i}, v9, s[28:31], 0 offen offset:{(8192 >> LSH)*i}")
    if OPT.get("cpf", 2) in (1, 3): code_pf(a, "k2_kernel", "L2_exit2-k2_kernel", L, 10, 255, 40)
    srd(a, 40, X, None, N*256); srd(a, 52, WS, W1BOP, 65536)
    a(f"s_mov_b32 s{S_BDONE}, 0")
    WE = 0
    srd(a, 32, WS, REC, CH*CE*12); srd(a, 36, WS, None, AROWS, stride=512)
    NZ = (L_BT - L_CNT)//16
    a(f"""s_cmp_lg_u32 s{S_GRP}, 0
    s_cbranch_scc1 L2_b2
    L2_batch:
    v_and_b32 v112, {LPS-1}, v{L}
    v_add_u32 v112, s{S_BASE}, v112
    s_add_u32 s96, s{S_BASE}, s{S_LIM}
    v_lshrrev_b32 v113, {LSH}, v{TID}
    v_mul_u32_u24 v113, {CE*12}, v113""")
    stamp(a, 12, ST)
    a("s_waitcnt vmcnt(0)")
    stamp(a, 1, ST)
    for i in range(4):
        a(f"""v_lshrrev_b32 v{104+i}, 16, v{OFR+i}
        s_bitcmp1_b32 s{S_IMASK}, {i}
        s_cselect_b32 s98, s96, 0
        v_min_u32 v{104+i}, s98, v{104+i}
        v_and_b32 v114, 0xffff, v{OFR+i}
        v_add_u32 v114, v114, v112
        v_mad_u32_u24 v{108+i}, v114, 12, v113""")
        if i < 3: a(f"v_add_u32 v113, {(512 >> LSH)*CE*12}, v113")
    for rnd in range(3):
        if rnd: a(f"v_add_u32 v112, {LPS}, v112")
        for i in range(4): a(f"v_cmp_lt_u32 {sr(MASK+2*(4*rnd+i),2)}, v112, v{104+i}")
        if rnd == 2:
            a(f"""s_or_b64 s[96:97], {sr(MASK+16,2)}, {sr(MASK+18,2)}
            s_or_b64 s[98:99], {sr(MASK+20,2)}, {sr(MASK+22,2)}
            s_or_b64 s[96:97], s[96:97], s[98:99]
            s_cselect_b32 s{S_R2}, 1, 0
            s_cbranch_scc0 L2_r11""")
        for i in range(4):
            k = 4*rnd + i
            a(f"""s_mov_b64 exec, {sr(MASK+2*k,2)}
            s_cbranch_execz L2_r{k}
            buffer_load_dwordx3 {vr(RECR+4*k,3)}, v{108+i}, s[32:35], 0 offen offset:{12*LPS*rnd}
            L2_r{k}:""")
        full(a)
    a(f"s_cmp_eq_u32 s{S_FIRST}, 0\ns_cbranch_scc1 L2_b2")
    a(f"""v_lshrrev_b32 v104, 16, v{OFR}
    v_lshrrev_b32 v105, 16, v{OFR+1}
    v_lshrrev_b32 v106, 16, v{OFR+2}
    v_lshrrev_b32 v107, 16, v{OFR+3}
    v_max3_u32 v104, v104, v105, v106
    v_max_u32 v254, v104, v107""")
    a(f"""    s_lshl_b32 s96, s{S_CG}, 10
    s_lshl_b32 s97, s{S_CG}, 8
    s_add_u32 s97, s97, 4096
    v_lshlrev_b32 v115, 3, v{L}
    v_and_b32 v116, 0xf8, v115""")
    srd(a, 44, WS, STAT, 8192)
    a(f"""buffer_load_dwordx2 {vr(B2R[0]+2,2)}, v115, s[44:47], s96 offen
    buffer_load_dwordx2 {vr(B2R[1]+2,2)}, v115, s[44:47], s96 offen offset:512
    buffer_load_dwordx2 v[126:127], v116, s[44:47], s97 offen""")
    a(f"""    s_cmp_eq_u32 s3, 3
    s_cbranch_scc0 L2_b4""")
    srd(a, 44, WS, MAXA, 196*4); srd(a, 48, WS, MAXE, (CH*4+15)//16*16); srd(a, 28, WS, MAXW_G, 4)
    a(f"""v_mov_b32 v116, 0
    buffer_load_dwordx4 v[244:247], v{L16}, s[44:47], 0 offen
    buffer_load_dwordx4 v[248:251], v{L16}, s[48:51], 0 offen
    buffer_load_dword v171, v116, s[28:31], 0 offen
    L2_b4:""")
    a(f"""s_cmp_eq_u32 s{S_GRP}, 0
    s_cbranch_scc1 L2_b2
    s_lshl_b32 s97, s{S_CG}, 12
    s_add_u32 m0, s97, {L_BT}
    s_lshl_b32 s96, s{S_NEG}, 8
    s_add_u32 s96, s96, s97""")
    for q in range(4):
        a(f"buffer_load_dwordx4 v{117+q%2}, s[40:43], s96 offen nt lds")
        if q == 1: a("v_xor_b32 v117, 128, v117\nv_xor_b32 v118, 128, v118")
        if q < 3: a("s_add_u32 m0, m0, 1024\ns_add_u32 s96, s96, 1024")
    a(f"""    s_cmp_eq_u32 s{S_GRP}, 0
    s_cbranch_scc1 L2_b2""")
    PFE = OPT.get("pfe", 0)
    if PFE:
        srd(a, 44, WS, None, N*512)
        a(f"""s_lshr_b32 s96, s2, 3
        s_lshl_b32 s96, s96, 2
        s_add_u32 s96, s96, s{S_CG}
        s_mul_i32 s96, s96, {PFE*8192}
        v_lshlrev_b32 v116, 7, v{L}""")
        for q in range(PFE):
            a(f"buffer_load_dword v255, v116, s[44:47], s96 offen")
            if q < PFE-1: a("s_add_u32 s96, s96, 8192")
    a("""s_branch L2_wrec
    L2_b2:""")
    a(f"v_lshlrev_b32 v104, 4, v{TID}")
    for j in range(4): a(f"v_mov_b32 v{96+j}, -1\nv_mov_b32 v{100+j}, 0")
    a(f"ds_write_b128 v104, v[96:99] offset:{L_IDX}")
    for i in range(6): a(f"ds_write_b128 v104, v[100:103] offset:{L_CNT + 8192*i}")
    a(f"""v_cmp_gt_u32 vcc, {NZ - 3072}, v{TID}
    v_mov_b32 v96, {L_NULL}
    v_mov_b32 v97, {L_NULL}
    s_and_b64 exec, exec, vcc
    ds_write_b128 v104, v[100:103] offset:{L_CNT + 8192*6}
    s_mov_b64 exec, -1
    v_cmp_gt_u32 vcc, 128, v{TID}
    v_mov_b32 v98, {L_NULL}
    v_mov_b32 v99, {L_NULL}
    s_and_b64 exec, exec, vcc
    ds_write_b128 v104, v[96:99] offset:{L_QA}
    s_mov_b64 exec, -1
""")
    a(f"""s_cmp_eq_u32 s{S_FIRST}, 0
    s_cbranch_scc1 L2_rank0""")
    n_, h_, one, t0, t1, t2, t3, t4, t5 = 96, 97, 98, 99, 100, 101, 102, 103, 104
    a(f"""v_and_b32 v{n_}, 31, v{L}
    v_lshrrev_b32 v{h_}, 5, v{L}
    v_and_b32 v{t0}, 1, v{L}
    v_lshlrev_b32 v{t0}, 4, v{t0}
    v_mov_b32 v{one}, 0x3f80
    v_lshlrev_b32 v{one}, v{t0}, v{one}
    v_lshrrev_b32 v{t0}, 1, v{n_}
    v_lshlrev_b32 v{t1}, 2, v{h_}
    v_sub_u32 v{t0}, v{t0}, v{t1}
    v_lshlrev_b32 v175, 1, v{n_}""")
    if not OPT['smf']:
        for q in range(8):
            a(f"v_cmp_eq_u32 {sr(94+2*(q%3),2)}, {8*(q//4) + q%4}, v{t0}")
            if q >= 1: a(f"v_cndmask_b32 v{ID0+q-1}, 0, v{one}, {sr(94+2*((q-1)%3),2)}")
        a(f"v_cndmask_b32 v{ID0+7}, 0, v{one}, {sr(94+2*(7%3),2)}")
    a(f"""v_bfe_u32 v{t1}, v{n_}, 2, 1
    v_lshrrev_b32 v{t2}, 4, v{n_}
    v_and_b32 v{t3}, 1, v{n_}
    v_xor_b32 v{t4}, v{t1}, v{h_}
    v_lshl_or_b32 v{t4}, v{t4}, 1, v{t3}
    v_cmp_eq_u32 s[94:95], 0, v{t4}
    v_cmp_eq_u32 s[96:97], 1, v{t4}
    v_lshlrev_b32 v{t4}, 4, v{t2}
    v_mov_b32 v{one}, 0x3f80
    v_lshlrev_b32 v{one}, v{t4}, v{one}
    v_cndmask_b32 v{A2[0]}, 0, v{one}, s[94:95]
    v_cndmask_b32 v{A2[0]+1}, 0, v{one}, s[96:97]
    v_cndmask_b32 v{A2[1]}, 0, v{one}, s[94:95]
    v_cndmask_b32 v{A2[1]+1}, 0, v{one}, s[96:97]
    v_lshlrev_b32 v{t1}, 4, v{t1}
    v_lshl_or_b32 v{t1}, v{t3}, 3, v{t1}
    v_lshl_or_b32 v{t1}, v{t2}, 2, v{t1}
    v_bfe_u32 v{t4}, v{n_}, 3, 1
    v_lshl_or_b32 v{t1}, v{t4}, 1, v{t1}
    v_bfe_u32 v{t5}, v{n_}, 1, 1
    v_or_b32 v{t1}, v{t1}, v{t5}
    v_lshlrev_b32 v{ESIG}, 3, v{t1}
    v_lshl_add_u32 v{ESIG}, v{h_}, 2, v{ESIG}""")
    if OPT["smf"]:
        a(f"""v_lshrrev_b32 v{t2}, 4, v{t1}
        v_bfe_u32 v{t3}, v{t1}, 2, 1
        v_lshl_or_b32 v{t2}, v{t2}, 1, v{t3}
        v_and_b32 v{t3}, 3, v{t1}
        v_lshlrev_b32 v{t4}, 2, v{t2}
        v_lshlrev_b32 v{ID1}, v{t4}, v{t3}
        v_bfe_u32 v{t3}, v{t1}, 3, 1
        v_xor_b32 v{t3}, v{t3}, v{h_}
        v_lshl_or_b32 v{t2}, v{t3}, 2, v{t2}
        v_mov_b32 v{one}, 0x3f80""")
        for q in range(4): a(f"v_cmp_eq_u32 {sr(56+0,2) if False else sr(94+2*(q%3),2)}, {q}, v{t2}" + (f"\nv_cndmask_b32 v{ID0+q-1}, 0, v{one}, {sr(94+2*((q-1)%3),2)}" if q else "\ns_nop 0"))
        a(f"""v_bfe_u32 v{t1}, v{L}, 2, 2
        v_cndmask_b32 v{ID0+3}, 0, v{one}, {sr(94,2)}
        v_lshl_add_u32 v{t2}, v{h_}, 4, v{t1}
        v_lshlrev_b32 v{t2}, 7, v{t2}
        v_lshrrev_b32 v{t1}, 1, v{t1}
        v_lshl_add_u32 v{t2}, v{t1}, 6, v{t2}
        v_bfe_u32 v{t1}, v{L}, 4, 1
        v_lshl_add_u32 v{t2}, v{t1}, 5, v{t2}
        v_and_b32 v{t3}, 3, v{L}
        v_lshl_add_u32 v{t2}, v{t3}, 3, v{t2}
        v_add_u32 v{RA}, s{S_STG}, v{t2}
        v_xor_b32 v{RA+1}, 64, v{RA}
        v_lshlrev_b32 v{t2}, 2, v{t1}""")
    else:
        a(f"""v_bfe_u32 v{t3}, v{t1}, 1, 3
        v_xor_b32 v{t3}, v{t3}, v{h_}
        v_lshlrev_b32 v{t3}, 4, v{t3}
        v_lshl_add_u32 v{t3}, v{t1}, 7, v{t3}
        v_add_u32 v{RA}, s{S_STG}, v{t3}""")
        for s in range(1, 4): a(f"v_xor_b32 v{RA+s}, {32*s}, v{RA}")
        a(f"v_lshrrev_b32 v{t2}, 4, v{L}")
    a(f"""v_and_b32 v{t3}, 7, v{L}
    v_xor_b32 v{t2}, v{t2}, v{t3}
    s_lshl_b32 s96, s{S_CG}, 7
    v_lshl_add_u32 v{IP+1}, v{t2}, 4, s96
    v_xor_b32 v{IP+3}, {0 if OPT['smf'] else 64}, v{IP+1}
    v_mov_b32 v{IP+5}, v{IP+1}
    v_mov_b32 v{IP+7}, v{IP+3}
    v_bfe_u32 v{t1}, v{L}, 4, 1
    v_lshlrev_b32 v{t1}, 5, v{t1}
    v_and_b32 v{t3}, 3, v{L}
    v_lshl_add_u32 v{t1}, v{t3}, 3, v{t1}
    v_add_u32 v{QST}, s96, v{t1}
    v_bfe_u32 v{t1}, v{L}, 2, 2
    v_lshl_add_u32 v{QOFF}, v{h_}, 2, v{t1}
    v_lshlrev_b32 v{QOFF}, 2, v{QOFF}
    s_cmp_lg_u32 s{S_GRP}, 0
    s_cbranch_scc1 L2_batch
    L2_wrec:""")
    dpp_red(a, "v_max_u32", 254)
    stamp(a, 3, ST)
    WE0 = OPT.get('we0', 0)
    WL = 8 - WE0//2
    a(f"""s_cmp_lg_u32 s{S_GRP}, 0
    s_cbranch_scc1 L2_rk1
    s_mul_i32 s99, s{S_CG}, {1024*WE0}
    s_add_u32 m0, s99, {L_STG}""")
    for q in range(WE0):
        if q % 4 == 0 and q: a("s_add_u32 m0, m0, 4096\ns_add_u32 s99, s99, 4096")
        a(f"buffer_load_dwordx4 v{L16}, s[52:55], s99 offen offset:{1024*(q%4)} lds")
    a(f"""s_waitcnt vmcnt({6+WE0})
    s_cmp_eq_u32 s3, 3
    s_cbranch_scc1 L2_rank2
    s_waitcnt vmcnt({3+WE0})
    s_branch L2_rank2
    L2_rk1:
    s_waitcnt vmcnt(7)
    s_branch L2_rank2
    L2_rank0:
    s_waitcnt vmcnt(0)
    L2_rank2:
    s_waitcnt lgkmcnt(0)
    s_barrier""")
    stamp(a, 5, ST)
    RK = 96
    for k in range(12):
        if k == 8: a(f"s_cmp_eq_u32 s{S_R2}, 0\ns_cbranch_scc1 L2_k12")
        a(f"""s_mov_b64 exec, {sr(MASK+2*k,2)}
        v_lshrrev_b32 v{RK+k}, 14, v{RECR+4*k+2}
        ds_add_rtn_u32 v{RECR+4*k+3}, v{RK+k}, v{VONE} offset:{L_CNT}""")
    a(f"""L2_k12:
    s_mov_b64 exec, -1
    v_mov_b32 v63, 0
    s_cmp_eq_u32 s{S_FIRST}, 0
    s_cbranch_scc1 L2_k13
    s_mov_b32 exec_lo, 0
    s_mov_b32 exec_hi, 0x80000000
    ds_max_u32 v63, v254 offset:{L_MISC+4}
    s_mov_b64 exec, -1""")
    if WL:
        a(f"s_mul_i32 s99, s3, {1024*WL}\ns_add_u32 s99, s99, {4096*WE0}\ns_add_u32 m0, s99, {L_STG}")
        for q in range(WL):
            if q == 4: a("s_add_u32 m0, m0, 4096\ns_add_u32 s99, s99, 4096")
            a(f"buffer_load_dwordx4 v{L16}, s[52:55], s99 offen offset:{1024*(q%4)} lds")
    a(f"""s_cmp_eq_u32 s3, 3
    s_cbranch_scc0 L2_k14
    s_waitcnt vmcnt({WE0+WL})
    v_max3_u32 v244, v244, v245, v246
    v_max3_u32 v248, v248, v249, v250
    v_max_u32 v244, v244, v247
    v_max_u32 v248, v248, v251""")
    dpp_red(a, "v_max_u32", [244, 248])
    a(f"""v_mul_f32 v171, v171, v248
    v_sqrt_f32 v171, v171
    v_mov_b32 v54, {f2u(28.0)}
    v_add_f32 v171, v244, v171
    v_mov_b32 v55, {f2u(8.0)}
    v_cmp_nlt_f32 vcc, v171, v54
    v_cmp_nlt_f32 s[94:95], v171, v55
    v_cndmask_b32 v54, 0, v{VONE}, vcc
    v_cndmask_b32 v55, 0, v{VONE}, s[94:95]
    v_add_u32 v171, v54, v55""")
    lane63(a); a(f"ds_write_b32 v63, v171 offset:{L_MISC}"); full(a)
    a("L2_k14:")
    CL, CU, C_, PC, O1, O2, R3 = 48, 49, 50, 51, 52, 53, 54
    I1, I2, I3 = 56, 57, 58
    TL, TH = 108, 112
    HM = (0xffffffff << SPLIT) & 0xffffffff
    a(f"""L2_k13:
    s_waitcnt lgkmcnt(0)
    s_barrier
    ds_read_b32 v{CL}, v{L16} offset:{L_CNT}
    ds_read_b32 v{CU}, v{L16} offset:{L_CNT+1024}
    ds_read_b64 v[60:61], v63 offset:{L_MISC}
    s_waitcnt lgkmcnt(1)
    v_add_u32 v{C_}, v{CL}, v{CU}
    v_and_b32 v{O1}, -8, v{CL}
    v_add_u32 v{PC}, 3, v{C_}
    v_mov_b32 v{I1}, v{O1}
    v_and_b32 v{PC}, -4, v{PC}
    v_sub_u32 v{R3}, v{PC}, v{O1}
    v_and_b32 v{O2}, -8, v{R3}
    v_and_b32 v{R3}, 4, v{R3}
    v_mov_b32 v{I2}, v{O2}
    v_mov_b32 v{I3}, v{R3}""")
    dpp_red(a, "v_add_u32", [I1, I2, I3])
    a(f"""v_readlane_b32 s94, v{I1}, 63
    v_readlane_b32 s95, v{I2}, 63
    v_readlane_b32 s96, v{I3}, 63
    v_readlane_b32 s97, v{I1}, {SPLIT-1}
    v_readlane_b32 s98, v{I2}, {SPLIT-1}
    v_readlane_b32 s99, v{I3}, {SPLIT-1}
    v_readlane_b32 s28, v{I1}, 31
    v_sub_u32 v{I1}, v{I1}, v{O1}
    v_sub_u32 v{I2}, v{I2}, v{O2}
    v_sub_u32 v{I3}, v{I3}, v{R3}
    s_cmp_eq_u32 s{S_FIRST}, 0
    s_cbranch_scc1 L2_s1
    s_waitcnt lgkmcnt(0)
    v_readfirstlane_b32 s{S_MAXC}, v61
    v_readfirstlane_b32 s{S_SAFE}, v60
    s_mov_b32 s{S_FIRST}, 0""")
    if PF:
        srd(a, 44, WS, None, N*512)
        a(f"""s_lshr_b32 s43, s2, 3
        s_lshl_b32 s43, s43, 3
        s_add_u32 s43, s43, s3
        s_mul_i32 s43, s43, {PF*8192}
        v_lshlrev_b32 v55, 7, v{L}""")
        for q in range(PF):
            a(f"buffer_load_dword v255, v55, s[44:47], s43 offen")
            if q < PF-1: a("s_add_u32 s43, s43, 8192")
    a(f"""L2_s1:
    s_sub_u32 s94, s94, s97
    s_sub_u32 s95, s95, s98
    s_sub_u32 s96, s96, s99
    s_add_u32 s29, s97, s98
    s_add_u32 s30, s29, s99
    s_add_u32 s30, s30, 7
    s_and_b32 s30, s30, -8
    s_sub_u32 s31, s30, s97
    s_add_u32 s28, s28, s31
    s_add_u32 s40, s30, s94
    s_add_u32 s41, s40, s95
    s_add_u32 s42, s41, s96
    s_add_u32 s{S_CUT}, s42, {OPT.get('cb', 63)}
    s_lshr_b32 s{S_CUT}, s{S_CUT}, 6
    s_add_u32 s43, s30, 31
    s_lshr_b32 s43, s43, 5
    s_max_u32 s{S_CUT}, s{S_CUT}, s43
    s_add_u32 s43, s28, 31
    s_lshr_b32 s43, s43, 5
    s_min_u32 s{S_CUT}, s{S_CUT}, s43
    s_lshl_b32 s43, s{S_CUT}, 5
    s_max_u32 s43, s43, s28
    s_sub_u32 s43, s43, s28
    s_add_u32 s40, s40, s43
    s_add_u32 s41, s41, s43
    s_add_u32 s42, s42, s43
    s_sub_u32 s40, s40, s98
    s_sub_u32 s52, s41, s99
    s_mov_b32 exec_lo, {HM ^ 0xffffffff}
    s_mov_b32 exec_hi, 0
    v_add_u32 v{I2}, s97, v{I2}
    v_add_u32 v{I3}, s29, v{I3}
    s_mov_b32 exec_lo, {HM}
    s_mov_b32 exec_hi, -1
    v_add_u32 v{I1}, s31, v{I1}
    v_add_u32 v{I2}, s40, v{I2}
    v_add_u32 v{I3}, s52, v{I3}
    s_mov_b32 exec_lo, 0
    v_add_u32 v{I1}, s43, v{I1}
    s_mov_b64 exec, -1
    v_add_u32 v{O2}, v{O1}, v{O2}
    v_sub_u32 v{I2}, v{I2}, v{O1}
    v_sub_u32 v{I3}, v{I3}, v{O2}
    v_lshl_or_b32 v{TL}, v{O2}, 16, v{O1}
    v_mov_b32 v{TL+1}, v{I1}
    v_mov_b32 v{TL+2}, v{I2}
    v_mov_b32 v{TL+3}, v{I3}
    v_max_u32 v55, v{O2}, v{CL}
    v_sub_u32 v55, v55, v{CL}
    v_lshlrev_b32 v{TH}, 16, v55
    v_add_u32 v{TH+2}, v{I2}, v{CL}
    v_add_u32 v{TH+3}, v{I3}, v{CL}
    ds_write_b128 v{L16}, {vr(TL,4)} offset:{L_TBL}
    ds_write_b128 v{L16}, {vr(TH,4)} offset:{L_TBL+1024}
    s_add_u32 s96, s42, 31
    s_lshr_b32 s96, s96, 5
    s_cmp_lg_u32 s{S_SLOW}, 0
    s_cbranch_scc1 L2_s2
    s_cmp_gt_u32 s96, {CAPT}
    s_cselect_b32 s97, 1, 0
    s_cmp_gt_u32 s{S_MAXC}, {3*LPS}
    s_cselect_b32 s97, 1, s97
    s_cmp_eq_u32 s97, 0
    s_cbranch_scc1 L2_s2
    s_mov_b32 s{S_SLOW}, 1
    s_mov_b32 s{S_LIM}, {LPS}
    s_mov_b32 s{S_IMASK}, 3
    s_waitcnt lgkmcnt(0)
    s_barrier
    s_branch L2_batch
    L2_s2:""")
    stamp(a, 6, ST)
    TB = W2R
    for k in range(8): a(f"s_mov_b64 exec, {sr(MASK+2*k,2)}\nds_read_b128 {vr(TB+4*k,4)}, v{RK+k} offset:{L_TBL}")
    a(f"""s_mov_b64 exec, -1
    v_add_u32 v{DEG}, v{DEG}, v{C_}
    s_lshr_b32 s29, s29, 6
    s_lshl_b32 s29, s29, 1
    s_lshr_b32 s41, s41, 5
    s_max_u32 s41, s41, s{S_CUT}
    s_sub_u32 s41, s41, s{S_CUT}
    s_and_b32 s41, s41, -2
    s_cmp_eq_u32 s{S_SAFE}, 0
    s_cselect_b32 s29, s29, 0
    s_cselect_b32 s41, s41, 0
    s_add_u32 s30, s29, 3
    s_lshr_b32 s30, s30, 2
    s_sub_u32 s31, s{S_CUT}, s29
    s_add_u32 s31, s31, 1
    s_lshr_b32 s31, s31, 1
    s_add_u32 s31, s31, s30
    s_add_u32 s40, s41, 3
    s_lshr_b32 s40, s40, 2
    s_add_u32 s40, s40, s31
    s_min_u32 s98, s{S_CUT}, s96
    s_sub_u32 s99, s96, s98
    s_cmp_eq_u32 s{S_GRP}, 0
    s_cselect_b32 s{S_N}, s98, s99
    s_cselect_b32 s{S_T0}, 0, s{S_CUT}
    s_cselect_b32 s{S_NO}, s29, s41
    s_cselect_b32 s53, 0, s31
    s_add_u32 s41, s41, s{S_CUT}
    s_lshl_b32 s30, s30, 1
    s_sub_u32 s30, s30, s29
    s_lshl_b32 s31, s31, 2
    s_sub_u32 s31, s31, s{S_CUT}
    s_lshl_b32 s40, s40, 1
    s_sub_u32 s40, s40, s41
    v_cmp_eq_u32 vcc, 0, v{R3}
    s_cmp_ge_u32 s3, 3
    s_cbranch_scc1 L2_pad
    v_add_u32 v55, s3, v{C_}
    v_cndmask_b32 v59, v{I3}, v{I2}, vcc
    v_cmp_lt_u32 vcc, v55, v{PC}
    s_lshr_b32 s96, s{S_SAFE}, 1
    s_add_u32 s96, s96, {N}
    s_and_b64 exec, exec, vcc
    v_mov_b32 v60, s96
    v_add_lshl_u32 v55, v55, v59, 2
    ds_write_b32 v55, v60 offset:{L_IDX}
    s_mov_b64 exec, -1
    L2_pad:""")
    for r in (PC, O1, O2, I1, I2, I3): a(f"v_lshrrev_b32 v{r}, 2, v{r}")
    QA_, ONE, NC1, Q, T, U, V = 48, 49, 50, 54, 55, 59, 60
    a(f"""v_mul_u32_u24 v{QA_}, {BTS}, v{L}
    v_add_u32 v{QA_}, {L_BT}, v{QA_}
    v_mov_b32 v{ONE}, 0x3f80
    v_subrev_u32 v{NC1}, {17*16}, v{L16}
    v_mov_b32 v61, s30
    v_mov_b32 v62, s40
    s_mov_b32 s97, s3
    L2_q:
    v_cmp_lt_u32 s[94:95], s97, v{O2}
    v_cmp_lt_u32 s[98:99], s97, v{O1}
    v_cmp_lt_u32 vcc, s97, v{PC}
    v_cndmask_b32 v{Q}, v{I3}, v{I2}, s[94:95]
    s_and_b64 exec, exec, vcc
    s_cbranch_execz L2_qd
    v_cndmask_b32 v{Q}, v{Q}, v{I1}, s[98:99]
    v_add_u32 v{Q}, s97, v{Q}
    v_lshrrev_b32 v{T}, 3, v{Q}
    v_lshlrev_b32 v{U}, 2, v{Q}
    ds_write_b32 v{U}, v{QA_} offset:{L_QA}
    v_cmp_le_u32 vcc, s{S_CUT}, v{T}
    v_cmp_gt_u32 s[94:95], s29, v{T}
    v_cmp_gt_u32 s[98:99], s41, v{T}
    v_and_b32 v{V}, 4, v{Q}
    v_cndmask_b32 v{U}, v{L16}, v{NC1}, vcc
    v_lshl_add_u32 v{U}, v{V}, 7, v{U}
    v_and_b32 v{V}, 2, v{Q}
    v_add_u32 v{U}, v{U}, v{V}
    s_and_b64 s[98:99], s[98:99], vcc
    s_or_b64 s[94:95], s[94:95], s[98:99]
    v_cndmask_b32 v{V}, v61, v62, vcc
    v_add_u32 v{V}, v{V}, v{T}
    v_and_b32 v{Q}, 1, v{Q}
    v_lshl_or_b32 v{Q}, v{V}, 1, v{Q}
    v_mov_b32 v{V}, s31
    v_cndmask_b32 v{V}, 0, v{V}, vcc
    v_add_u32 v{V}, v{V}, v{T}
    v_cndmask_b32 v{Q}, v{Q}, v{V}, s[94:95]
    v_and_b32 v{V}, -4, v{Q}
    v_lshl_add_u32 v{U}, v{V}, 8, v{U}
    v_and_b32 v{V}, 3, v{Q}
    v_lshl_add_u32 v{U}, v{V}, 2, v{U}
    ds_write_b16 v{U}, v{ONE} offset:{L_P}
    s_add_u32 s97, s97, 8
    s_branch L2_q
    L2_qd:
    s_mov_b64 exec, -1
    s_cmp_lg_u32 s{S_BDONE}, 0
    s_cbranch_scc1 L2_o1
    v_and_b32 v54, 31, v{L}
    v_lshrrev_b32 v55, 5, v{L}
    v_and_b32 v56, 15, v{L}
    v_xor_b32 v56, v56, v55
    v_lshlrev_b32 v56, 4, v56
    v_lshl_add_u32 v56, v54, 8, v56
    s_lshl_b32 s96, s{S_GRP}, 13
    s_add_u32 s96, s96, {L_BT}
    v_add_u32 v56, s96, v56
    s_lshl_b32 s96, s{S_CG}, 14
    s_add_u32 s96, s96, {L_STG}
    v_add_u32 v125, s96, v{L16}
    s_waitcnt vmcnt({PF}) lgkmcnt(0)
    s_barrier""")
    for s in range(8):
        a(f"ds_read_b128 {vr(64+4*s,4)}, v56")
        if s < 7: a(f"v_xor_b32 v56, {32*(s ^ (s+1))}, v56")
    for q in range(8, 16): a(f"ds_read_b128 {vr(W2R+4*q,4)}, v125 offset:{1024*q}")
    a(f"""s_branch L2_o2
    L2_o1:
    s_waitcnt lgkmcnt(0)
    L2_o2:""")
    def scatter(ks):
        P = ((94, 96), (28, 30), (40, 42))
        def st1(k):
            r, tb = RECR+4*k+3, TB+4*(k % 8)
            a(f"""v_cmp_lt_u32_sdwa {sr(P[k%3][0],2)}, v{r}, v{tb} src0_sel:DWORD src1_sel:WORD_1
            v_cmp_lt_u32_sdwa {sr(P[k%3][1],2)}, v{r}, v{tb} src0_sel:DWORD src1_sel:WORD_0""")
        def st2(k):
            r, m, tb = RECR+4*k+3, RECR+4*k+2, TB+4*(k % 8)
            a(f"""v_cndmask_b32 v{tb+3}, v{tb+3}, v{tb+2}, {sr(P[k%3][0],2)}
            v_cndmask_b32 v{tb+3}, v{tb+3}, v{tb+1}, {sr(P[k%3][1],2)}
            v_and_b32 v{m}, {OPT.get('imask', 0x3fff)}, v{m}
            v_add_lshl_u32 v{tb+3}, v{tb+3}, v{r}, 2
            v_lshlrev_b32 v{tb}, 1, v{tb+3}""")
        st1(ks[0])
        for i, k in enumerate(ks):
            if i + 1 < len(ks): st1(ks[i+1])
            st2(k)
        for k in ks:
            tb = TB+4*(k % 8)
            a(f"""s_mov_b64 exec, {sr(MASK+2*k,2)}
            ds_write_b32 v{tb+3}, v{RECR+4*k+2} offset:{L_IDX}
            ds_write_b64 v{tb}, {vr(RECR+4*k,2)} offset:{L_EA}""")
    scatter(list(range(8)))
    a(f"s_cmp_eq_u32 s{S_R2}, 0\ns_cbranch_scc1 L2_c12")
    for k2 in range(8, 12):
        a(f"""s_mov_b64 exec, {sr(MASK+2*k2,2)}
        v_lshrrev_b32 v{RK+k2-8}, 14, v{RECR+4*k2+2}
        ds_read_b128 {vr(TB+4*(k2-8),4)}, v{RK+k2-8} offset:{L_TBL}""")
    a("s_mov_b64 exec, -1\ns_waitcnt lgkmcnt(0)")
    scatter(list(range(8, 12)))
    a(f"""L2_c12:
    s_mov_b64 exec, -1
    s_cmp_lg_u32 s{S_BDONE}, 0
    s_cbranch_scc1 L2_c13""")
    for q in range(8): a(f"ds_read_b128 {vr(W2R+4*q,4)}, v125 offset:{1024*q}")
    a(f"""L2_c13:
    s_lshl_b32 s96, s{S_T0}, 7
    s_add_u32 s96, s96, {L_IDX-256}
    v_lshrrev_b32 v54, 3, v{L}
    v_lshl_add_u32 v{IB}, v54, 2, s96
    s_lshl_b32 s96, s{S_T0}, 8
    s_add_u32 s96, s96, {L_EA-512}
    v_add_u32 v{EB}, s96, v{ESIG}
    s_lshl_b32 s96, s{S_T0}, 5
    s_add_u32 s96, s96, {L_QA-64}
    v_add_u32 v{QB}, s96, v{QOFF}
    s_lshl_b32 s96, s53, 10
    s_add_u32 s96, s96, {L_P-1024}
    v_add_u32 v{PB}, s96, v{L16}""")
    for j in range(8): a(f"v_mov_b32 v{HQ0+j}, 0")
    for j in range(4): a(f"v_mov_b32 v{PP+j}, 0\nv_mov_b32 v{EE+2*j+1}, v{IP+2*j+1}")
    srd(a, 44, WS, W2OP, 65536); srd(a, 48, B2, None, 256)
    a(f"""s_mov_b32 s38, {AROWS}
    s_mov_b32 s{S_N0}, s{S_N}
    s_waitcnt lgkmcnt(0)
    s_barrier""")
    stamp(a, 7, ST)
    rd_idx(a, 2)
    for u in range(4): a(f"ds_read_b32 v{EE+2*u}, v{IB} offset:{128*3+32*u}")
    a("s_waitcnt lgkmcnt(4)"); dma(a, 0)
    rd_idx(a, 4)
    a(f"s_add_u32 m0, s{S_STG}, 4096\ns_waitcnt lgkmcnt(4)")
    for u in range(4):
        a(f"buffer_load_dwordx4 {vr(EE+2*u,2)}, s[36:39], 0 idxen offen lds")
        if u < 3: a("s_add_u32 m0, m0, 1024")
    a(f"""ds_read_b32 v{QV[0]}, v{QB} offset:64
    ds_read_b32 v{QV[1]}, v{QB} offset:96
    ds_read2st64_b32 {vr(A2[0]+2,2)}, v{EB} offset0:2 offset1:2
    v_mov_b32 v53, 0
    s_cmp_lg_u32 s{S_BDONE}, 0
    s_cbranch_scc1 L2_p2""")
    for s in range(8): a(mfma(0, 64+4*s, W2R+4*s, None if s == 0 else 0))
    a(f"""s_mov_b32 s94, {NLOG2E}
    s_mov_b32 s{S_BDONE}, 1
    v_lshrrev_b32 v49, 5, v{L}
    s_lshl_b32 s96, s{S_CG}, 7
    v_lshl_add_u32 v50, v175, 1, s96
    v_mul_u32_u24 v51, {4*BTS}, v49
    s_mul_i32 s96, s{S_GRP}, {32*BTS}
    s_add_u32 s96, s96, {L_BT}
    v_add3_u32 v51, v51, v50, s96
    v_mov_b32 v52, 1.0
    s_nop 1""")
    for s in range(8):
        a(mfma(16, 64+4*s, W2R+32+4*s, None if s == 0 else 16))
        for j in range(2*s, 2*s+2): a(f"v_fma_f32 v{j}, v{j}, s94, v126")
        a(f"v_max3_f32 v52, |v{2*s}|, |v{2*s+1}|, v52")
    a(mfma(S0, HQ0, PP, None)); a(mfma(S1, HQ0, PP, None))
    for j in range(16):
        if j == 8: a(f"s_cmp_eq_u32 s{S_GRP}, 0\ns_cselect_b32 exec_hi, -1, 0")
        if j == 9: a("s_cbranch_scc0 L2_bz")
        a(f"""v_fma_f32 v{16+j}, v{16+j}, s94, v127
        v_cvt_pk_bf16_f32 v{j}, v{j}, v{16+j}
        ds_write_b32 v51, v{j} offset:{(8*(j//4) + j % 4)*BTS}""")
        if j & 1: a(f"v_max3_f32 v52, |v{15+j}|, |v{16+j}|, v52")
        if j == 8: a(f"v_max_f32 v52, |v{16+j}|, v52")
    a(f"""s_branch L2_bw
    L2_bz:
    ds_write_b32 v51, v53 offset:{17*BTS}
    s_mov_b64 exec, -1
    L2_bw:
    v_cmp_neq_f32 vcc, 1.0, v52
    s_cmp_eq_u64 vcc, 0
    s_cbranch_scc1 L2_bx
    ds_write_b32 v53, v{VONE} offset:{L_MISC+8}
    L2_bx:
    s_waitcnt lgkmcnt(0)
    s_barrier
    L2_p2:
    ds_read_b32 v171, v53 offset:{L_MISC+8}
    s_waitcnt lgkmcnt(1)
    v_add_u32 v{QV[0]}, v{QV[0]}, v{QST}
    v_add_u32 v{QV[1]}, v{QV[1]}, v{QST}
    s_waitcnt vmcnt(4)""")
    rd_rows(a, 0)
    a(f"ds_read_b64_tr_b16 {vr(B2R[0],2)}, v{QV[0]}\ns_waitcnt lgkmcnt(0)")
    for m in tmf(D0, ALO, A2[0], B2R[0]): a(m)
    dma(a, 0); rd_idx(a, 5)
    group(a, 1, tail=False)
    a(f"""v_readfirstlane_b32 s96, v171
    s_cmp_eq_u32 s{S_SAFE}, 2
    s_cselect_b32 s96, 0, s96
    s_cmp_lg_u32 s96, 0
    s_cbranch_scc1 L2_redo
    s_cmp_eq_u32 s{S_N}, 0
    s_cbranch_scc1 L2_done""")
    stamp(a, 8, ST)
    if OPT.get("stamp"): a(f"v_writelane_b32 v{ST}, s{S_N}, 30")
    a(f"s_cmp_eq_u32 s{S_SAFE}, 2\ns_cbranch_scc1 L2_loopS\ns_cmp_eq_u32 s{S_NO}, 0\ns_cbranch_scc1 L2_loopF")
    main_loops(a)
    a(f"""L2_redo:
    s_mov_b32 s{S_SAFE}, 2
    v_mov_b32 v{DEG}, 0
    s_waitcnt vmcnt(0) lgkmcnt(0)
    s_barrier
    s_branch L2_batch
    L2_end_odd:
    ds_read_b128 {vr(PP,4)}, v{PB}
    s_waitcnt lgkmcnt(0)""")
    a(mfma(S0, HQ0, PP, S0))
    a("L2_end_even:")
    a(mfma(S1, HQ1, PP, S1))
    a(f"""L2_done:
    s_waitcnt vmcnt(0)
    s_cmp_eq_u32 s{S_SLOW}, 0
    s_cbranch_scc1 L2_epi
    s_add_u32 s{S_BETA}, s{S_BETA}, 1
    s_lshr_b32 s{S_BASE}, s{S_BETA}, 1
    s_lshl_b32 s{S_BASE}, s{S_BASE}, {LSH}
    s_xor_b32 s{S_IMASK}, s{S_IMASK}, 15
    s_cmp_ge_u32 s{S_BASE}, s{S_MAXC}
    s_cbranch_scc1 L2_epi
    s_barrier
    s_branch L2_batch""")
    a(f"L2_epi:\ns_cmp_gt_u32 s{S_N0}, 4\ns_cbranch_scc1 L2_epi1")
    for k in range(4): w2chunk(a, k)
    a("s_waitcnt vmcnt(0)\nL2_epi1:")
    stamp(a, 9, ST)
    a(f"""v_and_b32 v2, 31, v{L}
    v_lshrrev_b32 v3, 5, v{L}
    s_mov_b32 s94, {NLN2}
    s_mov_b32 s95, {NLN2}
    v_bfe_u32 v5, v2, 1, 3
    v_lshlrev_b32 v5, 4, v5
    v_lshl_add_u32 v5, v2, 7, v5
    v_lshl_add_u32 v6, v3, 3, v5
    v_add_u32 v6, s{S_STG}, v6""")
    for u in range(8):
        a(f"""v_xor_b32 v{32+u}, {16*u}, v6
        v_cvt_pk_bf16_f32 v{16+2*u}, v{S0+4*u}, v{S0+4*u+1}
        v_cvt_pk_bf16_f32 v{17+2*u}, v{S0+4*u+2}, v{S0+4*u+3}
        ds_write_b64 v{32+u}, {vr(16+2*u,2)}""")
    a(f"""s_cmp_lg_u32 s3, 0
    s_cbranch_scc1 L2_e1
    v_cvt_f32_u32 v8, v{DEG}
    v_lshlrev_b32 v9, 2, v{L}
    s_mov_b32 exec_hi, 0
    ds_write_b32 v9, v8 offset:{L_DEG}
    s_mov_b32 exec_lo, 0xfffe0000
    s_mov_b32 exec_hi, 0x1ffff
    ds_write_b32 v9, v8 offset:{L_DEG+128-68}
    s_mov_b64 exec, -1
    L2_e1:
    v_lshlrev_b32 v7, 4, v3
    v_xor_b32 v5, v5, v7
    s_lshl_b32 s97, s{S_GRP}, 15
    s_add_u32 s97, s97, {L_STG}
    v_add_u32 v241, s97, v5
    v_xor_b32 v242, 32, v241
    v_xor_b32 v243, 64, v241
    v_xor_b32 v244, 96, v241
    s_lshl_b32 s97, s{S_GRP}, 7
    v_lshl_add_u32 v245, v3, 4, s97
    s_lshl_b32 s96, s{S_CG}, 7
    s_add_u32 s96, s96, {L_P-512}
    v_lshlrev_b32 v246, 11, v3
    v_lshl_add_u32 v246, v2, 2, v246
    v_add_u32 v246, s96, v246
    s_mul_i32 s96, s{S_GRP}, {17*256}
    s_lshl_b32 s97, s{S_CG}, 6
    s_add_u32 s96, s96, s97
    v_lshlrev_b32 v247, 10, v3
    v_and_b32 v7, 1, v2
    v_lshl_add_u32 v247, v7, 8, v247
    v_and_b32 v8, 30, v2
    v_lshl_add_u32 v247, v8, 1, v247
    v_cmp_eq_u32 vcc, 0, v7
    v_mov_b32 v8, 0x07060302
    v_mov_b32 v9, 0x01000504
    v_cndmask_b32 v248, v8, v9, vcc
    v_add_u32 v247, s96, v247
    v_lshlrev_b32 v240, 16, v{B2V}
    s_sub_u32 s96, {N}, s{S_NEG}
    s_min_u32 s96, s96, {NPB}
    s_lshl_b32 s96, s96, 8
    s_lshl_b32 s97, s{S_NEG}, 8""")
    srd(a, 52, OUT, "s97", "s96")
    a("""s_mov_b32 s97, 4096
    s_waitcnt lgkmcnt(0)
    s_barrier""")
    for s in range(16): a(f"ds_read_b128 {vr(4*s,4)}, v{241+s%4} offset:{8192*(s//4)}")
    for jq in range(4): a(f"ds_read_b128 {vr(96+4*jq,4)}, v245 offset:{L_DEG+32*jq}")
    stamp(a, 10, ST)
    O = 64
    for s in range(16):
        a(f"s_waitcnt lgkmcnt({min(15, 19-s)})")
        a(mfma(O, 4*s, W2R+4*s, None if s == 0 else O))
    a("s_waitcnt lgkmcnt(0)")
    for j in range(16): a(f"v_mul_f32 v{96+j}, v{96+j}, v240")
    a(f"s_cmp_eq_u32 s{S_GRP}, 0\ns_cbranch_scc1 L2_e2")
    for j in range(8): a(f"ds_write_b32 v246, v{O+j} offset:{(8*(j//4)+j%4+1)*512}")
    a("""L2_e2:
    s_waitcnt lgkmcnt(0)
    s_barrier""")
    def fin(js):
        for j in js: a(f"v_fma_f32 v{O+j}, v{O+j}, s94, v{96+j}")
        for j in js[::2]: a(f"v_cvt_pk_bf16_f32 v{16+j//2}, v{O+j}, v{O+j+1}")
        for j in js[::2]: a(f"v_mov_b32_dpp v{24+j//2}, v{16+j//2} quad_perm:[1,0,3,2] row_mask:0xf bank_mask:0xf")
        for j in js[::2]: a(f"v_perm_b32 v{16+j//2}, v{16+j//2}, v{24+j//2}, v248")
    def st(j):
        off = (8*(j//4) + j % 4)*256
        return f"buffer_store_dword v{16+j//2}, v247, s[52:55], {'0' if off < 4096 else 's97'} offen offset:{off % 4096}"
    a(f"s_cmp_lg_u32 s{S_GRP}, 0\ns_cbranch_scc1 L2_e3")
    for j in range(8, 16): a(f"ds_read_b32 v{j}, v246 offset:{(8*(j//4)+j%4-16)*512}")
    fin(list(range(8)))
    for j in range(0, 8, 2): a(st(j))
    a(f"""s_waitcnt lgkmcnt(0)
    s_mov_b32 exec_lo, 0
    v_add_f32 v{O+8}, v{O+8}, v8
    s_mov_b64 exec, -1""")
    for j in range(9, 16): a(f"v_add_f32 v{O+j}, v{O+j}, v{j}")
    a("s_branch L2_e5\nL2_e3:")
    fin([6, 7])
    a("s_mov_b32 exec_lo, 0\ns_mov_b32 exec_hi, 0xaaaaaaaa")
    a(st(6)); a("s_mov_b64 exec, -1\nL2_e5:")
    fin(list(range(8, 16)))
    for j in range(8, 16, 2): a(st(j))
    stamp_dump(a, ST, 0, 1)
    a("L2_exit2:\ns_endpgm")


HEAD = """; edge-featured MPNN: K1 = edge partition by dst bucket + node tables + operand prep ; K2 = gather / silu / segment-sum / final GEMM
; @launch kernel=k1_kernel grid=({g1},1,1) block=(512,1,1) lds={l1}
; @launch kernel=k2_kernel grid=({g2},1,1) block=(512,1,1) lds={l2}
.amdgcn_target "amdgcn-amd-amdhsa--gfx950"
.text
"""
KD = """.amdhsa_kernel {name}
  .amdhsa_next_free_vgpr {v}
  .amdhsa_next_free_sgpr 102
  .amdhsa_accum_offset {v}
  .amdhsa_group_segment_fixed_size 0
  .amdhsa_kernarg_size 88
  .amdhsa_user_sgpr_count 2
  .amdhsa_user_sgpr_kernarg_segment_ptr 1
  .amdhsa_system_sgpr_workgroup_id_x 1
.end_amdhsa_kernel
"""


def build():
    out = HEAD.format(g1=K1_GRID, l1=K1_LDS, g2=NB, l2=K2_LDS)
    for name, fn in (("k1_kernel", k1), ("k2_kernel", k2)):
        a = Asm(); fn(a)
        out += f".globl {name}\n.p2align 8\n.type {name},@function\n" + a.text(verbose=OPT.get("v", 0))
    out += '.section .rodata,"a"\n.p2align 6\n' + KD.format(name="k1_kernel", v=128) + ".p2align 6\n" + KD.format(name="k2_kernel", v=256)
    return out


if __name__ == "__main__":
    open(sys.argv[1], "w").write(build())
```

```python
import sys, struct
from asmlib import Asm, vr, sr

OPT = dict(prio=1, prio_at=32, pf=1, ept=4, smf=1, gp=0, split=25, cb=95)
for a_ in sys.argv[2:]:
    k_, v_ = a_.split("="); OPT[k_] = int(v_)

N, E = 12500, 400000
NPB, NB = 49, 256
EPT = OPT["ept"]
CE = 400*EPT; CH = E//CE
LPS = 2*EPT
LSH = {8: 3, 16: 4}[LPS]
SPLIT, HALF = OPT.get('split', 23), 6250
AROWS = N + 2
REC = 13 << 20
OFF = 19 << 20
W2OP = 20 << 20
STAT = W2OP + 65536
BIAS = STAT + 4096
W1BOP = STAT + 8192
MAXA = W1BOP + 65536
MAXE = MAXA + 1024
MAXW_G = MAXE + 1024
STAMPS = 24 << 20
NG = 208
K1_GRID = NG + 3 + CH
K1_LDS = 65536 + 64

def f2u(x): return struct.unpack("<I", struct.pack("<f", x))[0]
NLOG2E = f2u(-1.4426950408889634)
PLOG2E = NLOG2E ^ 0x80000000
NLN2 = f2u(-0.6931471805599453)
X, EA_, SRC, DST, W1, B1, W2, B2, OUT, DBG, WS = 4, 6, 8, 10, 12, 14, 16, 18, 20, 22, 24
SHR = ["row_shr:%d row_mask:0xf bank_mask:0xf bound_ctrl:0" % i for i in (1, 2, 4, 8)]
BC15, BC31 = "row_bcast:15 row_mask:0xa bank_mask:0xf", "row_bcast:31 row_mask:0xc bank_mask:0xf"


def srd(a, d, base, add, size, stride=0):
    if add is None:
        a(f"s_mov_b32 s{d}, s{base}\ns_mov_b32 s{d+1}, s{base+1}")
    else:
        a(f"s_add_u32 s{d}, s{base}, {add}\ns_addc_u32 s{d+1}, s{base+1}, 0")
    if stride: a(f"s_or_b32 s{d+1}, s{d+1}, {stride << 16}")
    a(f"s_mov_b32 s{d+2}, {size}\ns_mov_b32 s{d+3}, 0x00020000")


def ldargs(a):
    a("""s_load_dwordx16 s[4:19], s[0:1], 0
    s_load_dwordx4 s[20:23], s[0:1], 64
    s_load_dwordx2 s[24:25], s[0:1], 80""")


def dpp_red(a, op, vs, full=True):
    if isinstance(vs, int): vs = [vs]
    for m in SHR + [BC15] + ([BC31] if full else []):
        for v in vs: a(f"{op}_dpp v{v}, v{v}, v{v} {m}")


def stamp(a, k, reg):
    if not OPT.get("stamp"): return
    a(f"s_memrealtime s[100:101]\ns_waitcnt lgkmcnt(0)\nv_writelane_b32 v{reg}, s100, {k}")
    if k in (0, 7, 8, 9, 31): a(f"s_memtime s[100:101]\ns_waitcnt lgkmcnt(0)\nv_writelane_b32 v{reg}, s100, {32+k}")


def stamp_dump(a, reg, tmp, kern):
    if not OPT.get("stamp"): return
    a("s_mov_b64 exec, -1\ns_waitcnt vmcnt(0)")
    stamp(a, 31, reg)
    a(f"""s_lshl_b32 s96, s2, 3
    s_add_u32 s96, s96, s3
    s_lshl_b32 s96, s96, 8
    s_add_u32 s96, s96, {STAMPS + kern*(1 << 20)}""")
    srd(a, 44, WS, "s96", 256)
    a(f"""v_mbcnt_lo_u32_b32 v{tmp}, -1, 0
    v_mbcnt_hi_u32_b32 v{tmp}, -1, v{tmp}
    v_lshlrev_b32 v{tmp}, 2, v{tmp}
    buffer_store_dword v{reg}, v{tmp}, s[44:47], 0 offen""")


def smf(D, B): return f"v_smfmac_f32_32x32x32_bf16 {vr(D,16)}, {vr(ID0,4)}, {vr(B,8)}, v{ID1}"
def tmf(D, rows, a2, b2):
    if OPT["smf"]: return [mfma(D, a2, b2, None), smf(D, rows)]
    return [mfma(D, rows, ID0, None), mfma(D, rows+4, ID1, D), mfma(D, a2, b2, D)]
def code_pf(a, label, size, lane, tmp, junk, sr0, lanes=16):
    if not OPT.get("cpf", 2): return
    code_pf.n += 1
    a(f"""s_getpc_b64 s[{sr0}:{sr0+1}]
    L_pc{code_pf.n}:
    s_sub_u32 s{sr0}, s{sr0}, L_pc{code_pf.n}-{label}
    s_subb_u32 s{sr0+1}, s{sr0+1}, 0
    s_cmp_lt_u32 s2, {OPT.get("cpn", 16)}
    s_cselect_b32 s{sr0+2}, {size}, 0
    s_mov_b32 s{sr0+3}, 0x00020000
    s_mul_i32 s99, s3, {128*lanes}
    v_lshlrev_b32 v{tmp}, 7, v{lane}
    s_mov_b64 exec, {(1 << lanes) - 1}
    buffer_load_dword v{junk}, v{tmp}, s[{sr0}:{sr0+3}], s99 offen
    s_mov_b64 exec, -1""")
code_pf.n = 0
def lane63(a): a("s_mov_b32 exec_lo, 0\ns_mov_b32 exec_hi, 0x80000000")
def full(a): a("s_mov_b64 exec, -1")
def mfma(D, A, B, C): return f"v_mfma_f32_32x32x16_bf16 {vr(D,16)}, {vr(A,4)}, {vr(B,4)}, " + ("0" if C is None else vr(C, 16))


def k1(a):
    ST = 126
    a("k1_kernel:")
    a(f"s_cmp_ge_u32 s2, {K1_GRID}\ns_cbranch_scc1 L1_exit2")
    if OPT.get("stamp"): a(f"v_mov_b32 v{ST}, 0")
    stamp(a, 0, ST)
    ldargs(a)
    a(f"""v_and_b32 v1, 63, v0
    v_lshrrev_b32 v2, 6, v0
    s_nop 0
    v_readfirstlane_b32 s3, v2""")
    if OPT.get("cpf", 2) >= 2: code_pf(a, "k1_kernel", "L2_exit2-k1_kernel", 1, 63, 63, 64, 22)
    a(f"s_cmp_gt_u32 s2, {NG+2}\ns_cbranch_scc1 L1_part" if OPT.get("gfirst", 1) else f"s_cmp_le_u32 s2, {NG+2}\ns_cbranch_scc1 L1_gemm")
    WOP = 56
    def gemm_role():
        WOP = 56
        a(f"""    s_cmp_eq_u32 s2, {NG+2}
        s_cbranch_scc1 L1_w2
        s_bfe_u32 s27, s2, 0x10003
        s_lshr_b32 s28, s2, 4
        s_lshl_b32 s28, s28, 3
        s_and_b32 s29, s2, 7
        s_add_u32 s28, s28, s29
        s_cmp_ge_u32 s2, {NG}
        s_cselect_b32 s27, s29, s27
        s_cselect_b32 s61, {128*512}, 0
        s_cbranch_scc1 L1_g1
        s_cmp_ge_u32 s28, 98
        s_cbranch_scc1 L1_exit2
        L1_g1:
        v_lshrrev_b32 v18, 4, v1
        v_and_b32 v19, 15, v1
        v_lshlrev_b32 v24, 2, v18
        v_xor_b32 v24, v24, v19
        v_lshlrev_b32 v24, 4, v24
        v_lshl_or_b32 v124, v18, 9, v24""")
        for ii in range(4):
            a(f"""v_add_u32 v20, {4*ii}, v18
            v_xor_b32 v20, v20, v19
            v_lshlrev_b32 v20, 4, v20
            v_lshl_or_b32 v{25+ii}, v18, 8, v20""")
        a(f"""v_mov_b32 v2, 0
        v_mov_b32 v3, 65536
        ds_write_b32 v3, v2
        s_lshl_b32 s43, s3, 13
        s_lshl_b32 s30, s27, 8
        s_add_u32 s43, s43, s30
        s_add_u32 s43, s43, s61
        s_lshl_b32 s31, s3, 12
        s_lshl_b32 s29, s28, 15
        s_add_u32 s29, s29, s31
        s_add_u32 m0, s31, 32768
        s_and_b32 s40, s3, 1
        s_lshr_b32 s41, s3, 1
        v_and_b32 v7, 31, v1
        v_lshlrev_b32 v20, 1, v7
        s_lshl_b32 s42, s40, 7
        s_add_u32 s42, s42, s30
        s_waitcnt lgkmcnt(0)""")
        stamp(a, 5, ST)
        srd(a, 36, X, None, N*256)
        for ii in range(4):
            a(f"buffer_load_dwordx4 v{25+ii}, s[36:39], s29 offen nt lds")
            if ii < 3: a("s_add_u32 m0, m0, 1024\ns_add_u32 s29, s29, 1024")
        a("s_mov_b32 m0, s31")
        srd(a, 32, W1, None, 260*512)
        for ii in range(4):
            a(f"buffer_load_dwordx4 v124, s[32:35], s43 offen lds")
            a("s_add_u32 m0, m0, 1024\ns_add_u32 s43, s43, 2048")
        if OPT.get("cpf", 2) == 1: code_pf(a, "k1_kernel", "L1_exit2-k1_kernel", 1, 21, 22, 64)
        stamp(a, 6, ST)
        a(f"""v_bfe_u32 v18, v1, 2, 2
        v_lshrrev_b32 v6, 5, v1
        v_lshl_add_u32 v19, v6, 3, v18
        v_lshlrev_b32 v19, 8, v19
        v_bfe_u32 v20, v1, 4, 1
        v_lshlrev_b32 v20, 5, v20
        v_and_b32 v21, 3, v1
        v_lshl_add_u32 v20, v21, 3, v20
        v_add_u32 v19, v19, v20
        s_lshl_b32 s42, s40, 1
        v_xor_b32 v20, s42, v18
        v_lshl_add_u32 v120, v20, 6, v19
        v_xor_b32 v20, 1, v20
        v_lshl_add_u32 v121, v20, 6, v19
        s_lshl_b32 s42, s41, 5
        v_add_u32 v19, s42, v7
        v_lshlrev_b32 v19, 8, v19
        v_and_b32 v20, 15, v1
        v_xor_b32 v20, v20, v6
        v_lshl_add_u32 v104, v20, 4, v19
        v_add_u32 v104, 32768, v104""")
        for s in range(1, 8): a(f"v_xor_b32 v{104+s}, {32*s}, v104")
        srd(a, 44, WS, None, N*512)
        a(f"""s_lshl_b32 s42, s28, 2
        s_add_u32 s42, s42, s41
        s_lshl_b32 s42, s42, 14
        s_lshl_b32 s48, s27, 1
        s_add_u32 s48, s48, s40
        s_lshl_b32 s48, s48, 7
        s_add_u32 s48, s42, s48
        s_add_u32 s30, s31, 32768
        v_lshlrev_b32 v4, 9, v6
        v_lshl_add_u32 v4, v7, 2, v4
        v_add_u32 v4, s30, v4
        v_lshl_add_u32 v6, v1, 4, s30
        v_lshrrev_b32 v7, 3, v1
        v_lshlrev_b32 v7, 9, v7
        v_and_b32 v18, 7, v1
        v_lshl_add_u32 v7, v18, 4, v7
        s_mov_b32 s52, {NLOG2E}
        s_mov_b32 s60, {PLOG2E}
        v_mov_b32 v5, 0
        v_mov_b32 v125, 0x80008000
        s_setprio {OPT.get("gp", 0)}
        s_waitcnt vmcnt(0)
        s_barrier""")
        stamp(a, 1, ST)
        def wr(t, s):
            for hf in range(2):
                a(f"ds_read_b64_tr_b16 {vr(WOP+32*t+4*s+2*hf,2)}, v{120+t} offset:{4096*s+1024*hf}")
        GD0, GD1, CV, RB = 8, WOP, 72, 88
        for task in range(1):
            sc = (lambda r, b: f"v_mul_f32 v{r}, s52, v{r}") if task == 0 else (lambda r, b: f"v_fma_f32 v{r}, v{r}, s60, v{b}")
            per = 3 if task == 0 else 2
            ahead = 5 if task == 0 else 7
            def rd(s):
                if s < 8:
                    if task == 0: a(f"ds_read_b128 {vr(24+4*s,4)}, v{104+s}")
                    wr(0, s)
                else: wr(1, s-8)
            a(f"s_cmp_ge_u32 s2, {NG}\ns_cbranch_scc1 L1_w1b")
            for s in range(ahead): rd(s)
            if task == 1:
                a("""v_lshlrev_b32 v122, 16, v122
                v_lshlrev_b32 v123, 16, v123
                v_mul_f32 v122, s60, v122
                v_mul_f32 v123, s60, v123""")
            cnt = lambda lo, hi: sum(per if q < 8 else 2 for q in range(lo, hi))
            for s in range(8):
                a(f"s_waitcnt lgkmcnt({cnt(s+1, s+ahead)})")
                a(mfma(GD0, 24+4*s, WOP+4*s, None if s == 0 else GD0))
                rd(s+ahead)
            for s in range(8+ahead, 16): rd(s)
            a("s_waitcnt lgkmcnt(0)")
            if task == 0:
                a("s_barrier")
                stamp(a, 3, ST)
            for s in range(8):
                a(mfma(GD1, 24+4*s, WOP+32+4*s, None if s == 0 else GD1))
                if s >= 2:
                    for j in range((s-2)*3, min(16, (s-1)*3)): a(sc(GD0+j, 122))
            for j in range(16):
                a(sc(GD1+j, 123))
                a(f"""v_cvt_pk_bf16_f32 v{CV+j}, v{GD0+j}, v{GD1+j}
                ds_write_b32 v4, v{CV+j} offset:{128*(8*(j//4)+j%4)}""")
            a("s_waitcnt lgkmcnt(0)")
            if task == 0: stamp(a, 4, ST)
            for i in range(4): a(f"ds_read_b128 {vr(RB+4*i,4)}, v6 offset:{1024*i}")
            for j in range(16): a(f"v_and_b32 v{CV+j}, 0x7fff7fff, v{CV+j}\nv_pk_max_u16 v5, v5, v{CV+j}")
            for i in range(4):
                a(f"s_waitcnt lgkmcnt({3-i})\nbuffer_store_dwordx4 {vr(RB+4*i,4)}, v7, {sr(44 if task == 0 else 56, 4)}, s48 offen sc1")
                a("s_add_u32 s48, s48, 4096" if i < 3 else "s_sub_u32 s48, s48, 12288")
        stamp(a, 2, ST)
        a("""v_lshlrev_b32 v6, 16, v5
        v_and_b32 v5, 0xffff0000, v5
        v_max_u32 v5, v5, v6""")
        dpp_red(a, "v_max_u32", 5)
        lane63(a); a("ds_max_u32 v3, v5"); full(a)
        srd(a, 44, WS, MAXA, 196*4)
        a(f"""s_lshl_b32 s26, s28, 1
        s_add_u32 s26, s26, s27
        s_lshl_b32 s26, s26, 2
        s_waitcnt lgkmcnt(0)
        s_barrier
        v_cmp_eq_u32 vcc, 0, v0
        s_and_saveexec_b64 s[54:55], vcc
        s_cbranch_execz L1_exit
        ds_read_b32 v6, v3
        s_waitcnt lgkmcnt(0)
        buffer_store_dword v6, v2, s[44:47], s26 offen sc1
        s_branch L1_exit""")
        a(f"""L1_w1b:
        s_lshl_b32 s43, s27, 1
        s_add_u32 s43, s43, s40
        s_lshl_b32 s43, s43, 14
        v_lshlrev_b32 v2, 4, v1
        s_cmp_lg_u32 s41, 0
        s_cbranch_scc1 L1_exit""")
        for t in range(2):
            for s in range(8): wr(t, s)
        srd(a, 44, WS, W1BOP, 65536)
        a("s_waitcnt lgkmcnt(0)")
        for q in range(16):
            a(f"buffer_store_dwordx4 {vr(WOP+4*q,4)}, v2, s[44:47], s43 offen sc1\ns_add_u32 s43, s43, 1024")
        a("s_branch L1_exit")
    def part_role():
        a(f"L1_part:\ns_sub_u32 s56, s2, {NG+3}")
        G = EPT//4
        HIST, START, MAXW = 40960, 41984, 43008
        DV, SV, EV, AV, RV = 4, 12, 24, 40, 48
        a(f"""v_lshlrev_b32 v2, 2, v0
        v_mov_b32 v3, 0
        ds_write_b32 v2, v3 offset:{HIST}
        ds_write_b32 v2, v3 offset:{MAXW}
        v_mov_b32 v60, 0
        v_mov_b32 v61, 1
        s_mul_i32 s26, s56, {CE*4}
        s_add_u32 s27, s26, 6400
        s_mov_b32 s58, s26
        s_mov_b32 s59, s27
        s_lshl_b32 s52, s26, 1
        s_lshl_b32 s53, s27, 1
        v_lshlrev_b32 v3, 4, v0
        v_lshlrev_b32 v20, 5, v0
        v_cmp_gt_u32 vcc, 400, v0
        s_waitcnt lgkmcnt(0)""")
        stamp(a, 5, ST)
        srd(a, 28, DST, None, E*4); srd(a, 32, SRC, None, E*4); srd(a, 36, EA_, None, E*8)
        a("""s_and_saveexec_b64 s[54:55], vcc
        s_mov_b64 s[54:55], exec
        s_cbranch_execz L1_p1""")
        for g in range(G): a(f"buffer_load_dwordx4 {vr(DV+4*g,4)}, v3, s[28:31], s{26+g} offen nt")
        def late_loads():
            for g in range(G): a(f"buffer_load_dwordx4 {vr(SV+4*g,4)}, v3, s[32:35], s{58+g} offen nt")
            for g in range(G):
                a(f"buffer_load_dwordx4 {vr(EV+8*g,4)}, v20, s[36:39], s{52+g} offen nt")
                a(f"buffer_load_dwordx4 {vr(EV+8*g+4,4)}, v20, s[36:39], s{52+g} offen offset:16 nt")
        if not OPT.get("late", 1): late_loads()
        a(f"""L1_p1:
        s_mov_b64 exec, -1
        s_mul_i32 s26, s56, {CE*12}
        s_add_u32 s26, s26, {REC}""")
        srd(a, 40, WS, "s26", CE*12); srd(a, 44, WS, OFF, CH*1024); srd(a, 48, WS, MAXE, CH*4)
        a(f"""s_setprio {OPT.get("pp", 2)}
        s_barrier
        s_mov_b64 exec, s[54:55]
        s_cbranch_execz L1_p2
        s_waitcnt vmcnt({0 if OPT.get("late", 1) else 3*G})""")
        if OPT.get("late", 1): late_loads()
        stamp(a, 1, ST)
        for k in range(EPT):
            a(f"""v_mul_u32_u24 v21, 10700, v{DV+k}
            v_lshrrev_b32 v21, 19, v21
            v_lshlrev_b32 v{AV+k}, 2, v21
            ds_add_rtn_u32 v{RV+k}, v{AV+k}, v61 offset:{HIST}
            v_mul_u32_u24 v21, {NPB}, v21
            v_sub_u32 v{DV+k}, v{DV+k}, v21""")
        a(f"""L1_p2:
        s_mov_b64 exec, -1
        v_lshlrev_b32 v2, 4, v1
        s_waitcnt lgkmcnt(0)
        s_barrier""")
        stamp(a, 3, ST)
        a(f"""ds_read_b128 v[64:67], v2 offset:{HIST}
        s_waitcnt lgkmcnt(0)
        v_add_u32 v68, v64, v65
        v_add_u32 v69, v68, v66
        v_add_u32 v70, v69, v67
        v_mov_b32 v71, v70""")
        dpp_red(a, "v_add_u32", 71)
        a(f"""v_sub_u32 v56, v71, v70
        v_add_u32 v57, v56, v64
        v_add_u32 v58, v56, v68
        v_add_u32 v59, v56, v69
        ds_write_b128 v2, v[56:59] offset:{START}
        s_mov_b64 exec, s[54:55]
        s_cbranch_execz L1_p4""")
        for k in range(EPT): a(f"ds_read_b32 v{AV+k}, v{AV+k} offset:{START}")
        a(f"s_waitcnt vmcnt({2*G})")
        for k in range(EPT):
            a(f"""v_add_u32 v21, {16384-HALF}, v{SV+k}
            v_lshl_or_b32 v{SV+k}, v{DV+k}, 18, v{SV+k}
            v_lshrrev_b32 v21, 14, v21
            v_lshl_or_b32 v{SV+k}, v21, 24, v{SV+k}""")
        a("s_waitcnt vmcnt(0)")
        for k in range(EPT):
            a(f"""s_waitcnt lgkmcnt({EPT-1+k})
            v_add_u32 v{AV+k}, v{AV+k}, v{RV+k}
            v_mul_u32_u24 v{AV+k}, 12, v{AV+k}
            ds_write2_b32 v{AV+k}, v{EV+2*k}, v{EV+2*k+1} offset0:0 offset1:1
            ds_write_b32 v{AV+k}, v{SV+k} offset:8""")
        for k in range(EPT): a(f"v_dot2_f32_bf16 v{DV+k}, v{EV+2*k}, v{EV+2*k}, 0")
        for k in range(EPT): a(f"v_dot2_f32_bf16 v{DV+k}, v{EV+2*k+1}, v{EV+2*k+1}, v{DV+k}")
        a("s_nop 2")
        for k in range(0, EPT, 2): a(f"v_max3_u32 v60, v60, v{DV+k}, v{DV+k+1}")
        a("L1_p4:")
        full(a)
        dpp_red(a, "v_max_u32", 60)
        a("v_mov_b32 v62, 0")
        lane63(a); a(f"ds_max_u32 v62, v60 offset:{MAXW}"); full(a)
        stamp(a, 2, ST)
        a(f"""s_cmp_lg_u32 s3, 7
        s_cbranch_scc1 L1_p3
        v_lshl_or_b32 v64, v64, 16, v56
        v_lshl_or_b32 v65, v65, 16, v57
        v_lshl_or_b32 v66, v66, 16, v58
        v_lshl_or_b32 v67, v67, 16, v59
        v_mul_u32_u24 v2, {CH*16}, v1
        s_lshl_b32 s26, s56, 4
        buffer_store_dwordx4 v[64:67], v2, s[44:47], s26 offen sc1
        L1_p3:
        s_waitcnt lgkmcnt(0)
        s_barrier""")
        stamp(a, 4, ST)
        NO = -(-CE*12//8192)
        for i in range(NO): a(f"ds_read_b128 {vr(4+4*i,4)}, v3 offset:{8192*i}")
        a(f"ds_read_b32 v30, v62 offset:{MAXW}")
        for i in range(NO):
            a(f"s_mov_b32 s26, {8192*i}\ns_waitcnt lgkmcnt({NO-i})\nbuffer_store_dwordx4 {vr(4+4*i,4)}, v3, s[40:43], s26 offen sc1")
        a(f"""s_lshl_b32 s26, s56, 2
        v_cmp_eq_u32 vcc, 0, v0
        s_and_saveexec_b64 s[54:55], vcc
        s_cbranch_execz L1_exit
        s_waitcnt lgkmcnt(0)
        buffer_store_dword v30, v62, s[48:51], s26 offen sc1
        s_branch L1_exit""")
    if OPT.get("gfirst", 1):
        gemm_role(); part_role()
    else:
        part_role(); a("L1_gemm:"); gemm_role()
    a(f"""L1_w2:
    v_lshlrev_b32 v2, 4, v1
    s_lshl_b32 s29, s3, 13
    s_mov_b32 m0, s29
    v_mov_b32 v20, 0
    v_mov_b32 v21, 65536
    ds_write_b32 v21, v20
    v_and_b32 v11, 1, v1
    v_lshlrev_b32 v11, 5, v11
    v_bfe_u32 v12, v1, 1, 4
    v_add_u32 v11, v11, v12
    v_lshlrev_b32 v11, 1, v11
    v_lshrrev_b32 v12, 5, v1
    v_lshl_add_u32 v11, v12, 10, v11
    s_lshr_b32 s40, s3, 1
    s_lshl_b32 s40, s40, 7
    s_and_b32 s41, s3, 1
    s_lshl_b32 s41, s41, 5
    s_add_u32 s40, s40, s41
    s_add_u32 s40, s40, {256*512}
    s_waitcnt lgkmcnt(0)""")
    srd(a, 32, W2, None, 65536); srd(a, 36, W1, None, 260*512)
    srd(a, 60, B1, None, 512)
    a("""v_and_b32 v17, 31, v1
    v_lshlrev_b32 v17, 1, v17
    s_lshl_b32 s41, s3, 7
    buffer_load_ushort v18, v17, s[60:63], s41 offen
    buffer_load_ushort v19, v17, s[60:63], s41 offen offset:64
    buffer_load_ushort v8, v11, s[36:39], s40 offen
    buffer_load_ushort v9, v11, s[36:39], s40 offen offset:512""")
    for ii in range(8):
        a("buffer_load_dwordx4 v2, s[32:35], s29 offen lds")
        if ii < 7: a("s_add_u32 m0, m0, 1024\ns_add_u32 s29, s29, 1024")
    a(f"""s_and_b32 s40, s3, 3
    s_lshr_b32 s41, s3, 2
    v_bfe_u32 v5, v1, 2, 1
    v_lshlrev_b32 v5, 5, v5
    v_bfe_u32 v6, v1, 3, 1
    v_add_u32 v5, v5, v6
    v_lshrrev_b32 v6, 5, v1
    v_lshl_add_u32 v5, v6, 2, v5
    v_lshlrev_b32 v5, 8, v5
    v_bfe_u32 v6, v1, 4, 1
    v_lshl_add_u32 v5, v6, 5, v5
    v_and_b32 v6, 3, v1
    v_lshl_add_u32 v5, v6, 3, v5
    s_lshl_b32 s42, s40, 6
    s_lshl_b32 s43, s41, 15
    s_add_u32 s42, s42, s43
    v_add_u32 v5, s42, v5
    s_lshl_b32 s43, s40, 14
    s_lshl_b32 s42, s41, 13
    s_add_u32 s43, s43, s42
    s_mov_b32 s52, {NLOG2E}
    s_lshl_b32 s42, s3, 9
    v_lshlrev_b32 v3, 3, v1""")
    srd(a, 44, WS, W2OP, 65536); srd(a, 48, WS, STAT, 4096); srd(a, 56, WS, MAXW_G, 4)
    a("""s_waitcnt vmcnt(8)
    v_lshlrev_b32 v8, 16, v8
    v_lshlrev_b32 v9, 16, v9
    v_mul_f32 v8, s52, v8
    v_mul_f32 v9, s52, v9
    v_cvt_pk_bf16_f32 v15, v8, v9
    v_mul_f32 v16, v8, v8
    v_fmac_f32 v16, v9, v9
    v_lshlrev_b32 v12, 16, v15
    v_and_b32 v13, 0xffff0000, v15
    v_sub_f32 v8, v8, v12
    v_sub_f32 v9, v9, v13
    v_cvt_pk_bf16_f32 v14, v8, v9
    buffer_store_dwordx2 v[14:15], v3, s[48:51], s42 offen sc1
    v_lshlrev_b32 v18, 16, v18
    v_lshlrev_b32 v19, 16, v19
    v_mul_f32 v18, s52, v18
    v_mul_f32 v19, s52, v19
    v_lshlrev_b32 v17, 2, v17
    s_lshl_b32 s41, s3, 8""")
    srd(a, 60, WS, BIAS, 1024); srd(a, 64, WS, N*512, 1024)
    a("""buffer_store_dwordx2 v[18:19], v17, s[60:63], s41 offen sc1
    v_mov_b32 v22, 0x41c041c0
    v_mov_b32 v23, 0x7f7f7f7f
    v_cmp_gt_u32 vcc, 128, v0
    v_lshlrev_b32 v24, 2, v0
    v_cndmask_b32 v22, v23, v22, vcc
    buffer_store_dword v22, v24, s[64:67], 0 offen sc1""")
    a("v_mov_b32 v12, v16\nv_permlane32_swap_b32 v12, v16\nv_add_f32 v16, v12, v16")
    dpp_red(a, "v_max_u32", 16)
    a("""    s_waitcnt vmcnt(0)
    s_barrier""")
    lane63(a); a("ds_max_u32 v21, v16"); full(a)
    for s in range(8):
        for hf in range(2):
            row = 64*(s//4) + 16*((s//2) % 2) + 8*(s % 2) + 2*hf
            a(f"ds_read_b64_tr_b16 {vr(WOP+4*s+2*hf,2)}, v5 offset:{256*row}")
    a("s_waitcnt lgkmcnt(0)\ns_barrier\nds_read_b32 v16, v21")
    for s in range(8):
        a(f"buffer_store_dwordx4 {vr(WOP+4*s,4)}, v2, s[44:47], s43 offen sc1\ns_add_u32 s43, s43, 1024")
    srd(a, 48, WS, MAXE + CH*4, 16)
    a("""v_lshlrev_b32 v17, 2, v1
    buffer_store_dword v20, v17, s[48:51], 0 offen sc1
    s_waitcnt lgkmcnt(0)
    buffer_store_dword v16, v3, s[56:59], 0 offen sc1
    L1_exit:""")
    stamp_dump(a, ST, 127, 0)
    a("L1_exit2:\ns_endpgm")


CAPT = 60
L_IDX, L_QA, L_TBL, L_CNT, L_MISC, L_DEG, L_EA, L_P = 256, 8448, 10496, 12544, 14592, 14656, 15104, 30464
L_BT = L_P + 31*1024
L_STG = 91136
BTS = 576
L_NULL = L_BT + NPB*BTS
K2_LDS = L_STG + 65536
assert L_BT + 50*BTS <= L_STG and L_BT % 256 == 0
D0, D1, EE, TT, HQ0, HQ1, S0, S1 = 0, 16, 32, 48, 56, 60, 64, 80
ALO, AHI, ID0, ID1, A2, B2R, PP, IP = 96, (104, 112), 120, 124, (128, 132), (136, 140), 144, 148
QV, QST, RA, IB, EB, QB, PB = (156, 157), 158, 159, 163, 164, 165, 166
TID, LANE, DEG, VONE, ESIG, QOFF, L16 = 167, 168, 169, 170, 172, 173, 174
RECR, OFR, W2R, B2V = 0, 240, 176, 252
MASK = 56
S_BASE, S_LIM, S_IMASK, S_SLOW, S_N, S_T0, S_FIRST, S_BK, S_MAXC, S_SAFE, S_CUT, S_STG, S_BETA, S_NEG = range(80, 94)
S_BDONE = 23
S_CG, S_GRP, S_R2, S_N0, S_NO = 26, 27, 1, 0, 87


def valu_half(D, hq, mode, fill):
    L = [f"v_exp_f32 v{EE+j}, v{D+j}" for j in range(16)]
    p2 = lambda x: vr(x, 2)
    if mode == "o":
        L.insert(15, None)
        L[15] = f"v_pk_add_f32 {p2(TT)}, {p2(EE)}, 1.0 op_sel_hi:[1,0]"
        L[15], L[16] = L[16], L[15]
        for s in range(1, 8):
            n = D if s == 1 else TT+2
            L.append(f"v_pk_fma_f32 {p2(TT+2)}, {p2(n)}, {p2(EE+2*s)}, {p2(n)}")
            L.append(f"v_pk_fma_f32 {p2(TT+2)}, {p2(D+2*s)}, {p2(TT)}, {p2(TT+2)}")
            L.append(f"v_pk_fma_f32 {p2(TT)}, {p2(TT)}, {p2(EE+2*s)}, {p2(TT)}")
        u, nn, dd = L[-3:]
        L[-3:] = [f"v_pk_fma_f32 {p2(TT+4)}, {p2(TT)}, {p2(EE+14)}, {p2(TT)}", f"v_rcp_f32 v{TT+4}, v{TT+4}", f"v_rcp_f32 v{TT+5}, v{TT+5}", u, nn]
        L.append(f"v_pk_mul_f32 {p2(TT+2)}, {p2(TT+2)}, {p2(TT+4)}")
        L.append(f"v_cvt_pk_bf16_f32 v{hq}, v{TT+2}, v{TT+3}")
        return L + fill
    if mode == "q":
        for q in range(2): L.append(f"v_pk_add_f32 {p2(TT+4*q)}, {p2(EE+8*q)}, 1.0 op_sel_hi:[1,0]")
        for s in range(1, 4):
            for q in range(2):
                n = D+8*q if s == 1 else TT+4*q+2
                L.append(f"v_pk_fma_f32 {p2(TT+4*q+2)}, {p2(n)}, {p2(EE+8*q+2*s)}, {p2(n)}")
            for q in range(2):
                L.append(f"v_pk_fma_f32 {p2(TT+4*q+2)}, {p2(D+8*q+2*s)}, {p2(TT+4*q)}, {p2(TT+4*q+2)}")
            for q in range(2):
                L.append(f"v_pk_fma_f32 {p2(TT+4*q)}, {p2(TT+4*q)}, {p2(EE+8*q+2*s)}, {p2(TT+4*q)}")
        for q in range(2):
            for p in range(2): L.append(f"v_rcp_f32 v{TT+4*q+p}, v{TT+4*q+p}")
        for q in range(2): L.append(f"v_pk_mul_f32 {p2(TT+4*q+2)}, {p2(TT+4*q+2)}, {p2(TT+4*q)}")
    else:
        for j in range(0, 16, 2): L.append(f"v_pk_add_f32 {p2(EE+j)}, {p2(EE+j)}, 1.0 op_sel_hi:[1,0]")
        for j in range(16): L.append(f"v_rcp_f32 v{EE+j}, v{EE+j}")
        for q in range(2): L.append(f"v_pk_mul_f32 {p2(TT+4*q+2)}, {p2(D+8*q)}, {p2(EE+8*q)}")
        for s in range(1, 4):
            for q in range(2):
                L.append(f"v_pk_fma_f32 {p2(TT+4*q+2)}, {p2(D+8*q+2*s)}, {p2(EE+8*q+2*s)}, {p2(TT+4*q+2)}")
    for q in range(2): L.append(f"v_cvt_pk_bf16_f32 v{hq+q}, v{TT+4*q+2}, v{TT+4*q+3}")
    return L + fill


def weave(V, M, pos):
    out = []
    for i, x in enumerate(V):
        out += [m for m, p in zip(M, pos) if p == i]
        out.append(x)
    return out


def incs(k): return [f"v_add_u32 v{IB}, {128*k}, v{IB}", f"v_add_u32 v{EB}, {256*k}, v{EB}", f"v_add_u32 v{QB}, {32*k}, v{QB}"]


def block(a, t, mode):
    par = t & 1
    last = 3 if mode == "o" else 1
    M1 = tmf(D1, AHI[par], A2[par], B2R[1])
    if t == 0: M1.append(mfma(S1, HQ1, PP, S1))
    M2 = tmf(D0, ALO, A2[par ^ 1], B2R[0])
    if t == last: M2.append(mfma(S0, HQ0, PP, S0))
    pos = [1, 4, 7, 10]
    extra = (["s_waitcnt lgkmcnt(0)"] if OPT.get('gw', 1) else []) + [f"v_add_u32 v{QV[par]}, v{QV[par]}, v{QST}"]
    if t == 0: extra.append(f"v_add_u32 v{PB}, 1024, v{PB}")
    if mode == "o" and t == 2: extra += incs(4)
    if mode != "o" and t == 0: extra += incs(2)
    k = t if mode == "o" else 2*t
    L = weave(valu_half(D0, HQ0+k, mode, extra), M1, pos) + weave(valu_half(D1, HQ1+k, mode, []), M2, pos)
    if OPT["prio"]:
        L.insert(OPT["prio_at"], "s_setprio 1"); L.append("s_setprio 0")
    a("\n".join(L))


def dma(a, par):
    a(f"s_add_u32 m0, s{S_STG}, {4096*par}")
    for u in range(4):
        a(f"buffer_load_dwordx4 {vr(IP+2*u,2)}, s[36:39], 0 idxen offen lds")
        if u < 3: a("s_add_u32 m0, m0, 1024")


def rd_idx(a, t):
    for u in range(4): a(f"ds_read_b32 v{IP+2*u}, v{IB} offset:{128*t+32*u}")


def rd_rows(a, par):
    if OPT["smf"]:
        for c in range(2):
            for gi in range(4):
                a(f"ds_read_b64_tr_b16 {vr((ALO, AHI[par])[c]+2*gi,2)}, v{RA+c} offset:{4096*par+512*gi}")
        return
    for s in range(4):
        d = ALO+4*s if s < 2 else AHI[par]+4*(s-2)
        a(f"ds_read_b128 {vr(d,4)}, v{RA+s} offset:{4096*par}")


def w2chunk(a, k):
    a(f"s_lshl_b32 s96, s{S_CG}, 14\ns_add_u32 s96, s96, {4096*k}")
    for q in range(4): a(f"buffer_load_dwordx4 {vr(W2R+16*k+4*q,4)}, v{L16}, s[44:47], s96 offen offset:{1024*q}")
    if k == 0: a(f"s_lshl_b32 s96, s{S_CG}, 6\nbuffer_load_ushort v{B2V}, v175, s[48:51], s96 offen")


def group(a, par, sh=0, rdp=False, tail=True):
    a("s_waitcnt vmcnt(4)")
    rd_rows(a, par)
    a(f"ds_read_b64_tr_b16 {vr(B2R[1],2)}, v{QV[par^1]} offset:64")
    a(f"ds_read_b64_tr_b16 {vr(B2R[0],2)}, v{QV[par]}")
    a(f"ds_read2st64_b32 {vr(A2[par]+2,2)}, v{EB} offset0:{2+par+sh} offset1:{2+par+sh}")
    if rdp: a(f"ds_read_b128 {vr(PP,4)}, v{PB}")
    a(f"s_cmp_gt_u32 s{S_N}, 3\ns_cselect_b32 s38, {0 if OPT.get('nodma') else AROWS}, 0")
    if tail:
        group.n += 1
        a(f"s_cmp_gt_u32 s{S_N}, 4\ns_cbranch_scc1 L2_tr{group.n}\ns_call_b64 s[98:99], L2_w2stub\nL2_tr{group.n}:")
    a(f"s_waitcnt lgkmcnt({4 if rdp else 3})")
    dma(a, par)
    rd_idx(a, 5+par+sh)
    a(f"ds_read_b32 v{QV[par^1]}, v{QB} offset:{32*(3+par+sh)}")
    a(f"s_waitcnt lgkmcnt({5 if OPT.get('gw', 1) else 0})")
group.n = 0


def dec(a, tgt): a(f"s_sub_u32 s{S_N}, s{S_N}, 1\ns_cmp_eq_u32 s{S_N}, 0\ns_cbranch_scc1 {tgt}")


def main_loops(a):
    a("L2_loopO:")
    block(a, 0, "o"); a(f"s_sub_u32 s{S_N}, s{S_N}, 1"); group(a, 0, 2, True)
    block(a, 1, "o"); dec(a, "L2_end_odd"); group(a, 1, 2)
    a(f"s_cmp_eq_u32 s{S_NO}, 2\ns_cbranch_scc1 L2_half")
    block(a, 2, "o"); a(f"s_sub_u32 s{S_N}, s{S_N}, 1"); group(a, 0)
    block(a, 3, "o"); dec(a, "L2_end_even"); group(a, 1)
    a(f"s_sub_u32 s{S_NO}, s{S_NO}, 4\ns_cmp_lg_u32 s{S_NO}, 0\ns_cbranch_scc1 L2_loopO\ns_branch L2_loopF\nL2_half:")
    a(mfma(S0, HQ0, PP, S0)); a("\n".join(incs(2)))
    for tag, mode in (("F", "q"), ("S", "s")):
        a(f"L2_loop{tag}:")
        block(a, 0, mode); dec(a, "L2_end_odd"); group(a, 0, 0, True)
        block(a, 1, mode); dec(a, "L2_end_even"); group(a, 1)
        a(f"s_branch L2_loop{tag}")
    a("L2_w2stub:")
    for k in range(4):
        if k < 3: a(f"s_cmp_lg_u32 s{S_N}, {4-k}\ns_cbranch_scc1 L2_st{k}")
        w2chunk(a, k)
        a("s_setpc_b64 s[98:99]")
        if k < 3: a(f"L2_st{k}:")


def k2(a):
    ST = 253
    L = LANE
    PF = OPT["pf"]
    a("k2_kernel:")
    a(f"s_cmp_ge_u32 s2, {NB}\ns_cbranch_scc1 L2_exit2")
    if OPT.get("stamp"): a(f"v_mov_b32 v{ST}, 0")
    stamp(a, 0, ST)
    ldargs(a)
    a(f"""v_mov_b32 v{TID}, v0
    v_and_b32 v{L}, 63, v0
    v_lshrrev_b32 v2, 6, v0
    v_mov_b32 v{DEG}, 0
    v_readfirstlane_b32 s3, v2""")
    if OPT.get("cpf", 2) == 2: code_pf(a, "k2_kernel", "L2_exit2-k2_kernel", L, 10, 255, 40)
    a(f"""v_mov_b32 v{VONE}, 1
    s_and_b32 s{S_BK}, s2, 7
    s_lshl_b32 s{S_BK}, s{S_BK}, 5
    s_lshr_b32 s28, s2, 3
    s_add_u32 s{S_BK}, s{S_BK}, s28
    s_mul_i32 s{S_NEG}, s{S_BK}, {NPB}
    v_lshrrev_b32 v8, {LSH}, v0
    s_and_b32 s28, s{S_BK}, 3
    s_lshl_b32 s28, s28, 2
    v_lshl_add_u32 v9, v8, 4, s28
    s_lshr_b32 s96, s{S_BK}, 2
    s_mul_i32 s96, s96, {CH*16}
    s_add_u32 s96, s96, {OFF}
    s_mov_b32 s{S_BASE}, 0
    s_mov_b32 s{S_LIM}, {3*LPS}
    s_mov_b32 s{S_IMASK}, 15
    s_mov_b32 s{S_SLOW}, 0
    s_mov_b32 s{S_FIRST}, 1
    s_mov_b32 s{S_BETA}, 0
    s_and_b32 s{S_CG}, s3, 3
    s_lshr_b32 s{S_GRP}, s3, 2
    s_lshl_b32 s{S_STG}, s3, 13
    s_add_u32 s{S_STG}, s{S_STG}, {L_STG}
    v_lshlrev_b32 v{L16}, 4, v{L}
    v_mov_b32 v{IP}, -1
    v_mov_b32 v{IP+2}, -1
    v_mov_b32 v{IP+4}, -1
    v_mov_b32 v{IP+6}, -1
    v_mov_b32 v{IP+1}, 0
    v_mov_b32 v{IP+3}, 0
    v_mov_b32 v{IP+5}, 0
    v_mov_b32 v{IP+7}, 0
    v_mov_b32 v175, 0
    v_lshrrev_b32 v3, 4, v{L}
    v_and_b32 v4, 15, v{L}
    v_xor_b32 v6, v3, v4
    v_lshlrev_b32 v6, 4, v6
    v_lshl_or_b32 v117, v3, 8, v6
    v_xor_b32 v118, 64, v117
    s_waitcnt lgkmcnt(0)""")
    stamp(a, 11, ST)
    srd(a, 28, WS, "s96", CH*16)
    for i in range(4): a(f"buffer_load_dword v{OFR+i}, v9, s[28:31], 0 offen offset:{(8192 >> LSH)*i}")
    if OPT.get("cpf", 2) in (1, 3): code_pf(a, "k2_kernel", "L2_exit2-k2_kernel", L, 10, 255, 40)
    srd(a, 40, X, None, N*256); srd(a, 52, WS, W1BOP, 65536)
    a(f"s_mov_b32 s{S_BDONE}, 0")
    WE = 0
    srd(a, 32, WS, REC, CH*CE*12); srd(a, 36, WS, None, AROWS, stride=512)
    NZ = (L_BT - L_CNT)//16
    a(f"""s_cmp_lg_u32 s{S_GRP}, 0
    s_cbranch_scc1 L2_b2
    L2_batch:
    v_and_b32 v112, {LPS-1}, v{L}
    v_add_u32 v112, s{S_BASE}, v112
    s_add_u32 s96, s{S_BASE}, s{S_LIM}
    v_lshrrev_b32 v113, {LSH}, v{TID}
    v_mul_u32_u24 v113, {CE*12}, v113""")
    stamp(a, 12, ST)
    a("s_waitcnt vmcnt(0)")
    stamp(a, 1, ST)
    for i in range(4):
        a(f"""v_lshrrev_b32 v{104+i}, 16, v{OFR+i}
        s_bitcmp1_b32 s{S_IMASK}, {i}
        s_cselect_b32 s98, s96, 0
        v_min_u32 v{104+i}, s98, v{104+i}
        v_and_b32 v114, 0xffff, v{OFR+i}
        v_add_u32 v114, v114, v112
        v_mad_u32_u24 v{108+i}, v114, 12, v113""")
        if i < 3: a(f"v_add_u32 v113, {(512 >> LSH)*CE*12}, v113")
    for rnd in range(3):
        if rnd: a(f"v_add_u32 v112, {LPS}, v112")
        for i in range(4): a(f"v_cmp_lt_u32 {sr(MASK+2*(4*rnd+i),2)}, v112, v{104+i}")
        if rnd == 2:
            a(f"""s_or_b64 s[96:97], {sr(MASK+16,2)}, {sr(MASK+18,2)}
            s_or_b64 s[98:99], {sr(MASK+20,2)}, {sr(MASK+22,2)}
            s_or_b64 s[96:97], s[96:97], s[98:99]
            s_cselect_b32 s{S_R2}, 1, 0
            s_cbranch_scc0 L2_r11""")
        for i in range(4):
            k = 4*rnd + i
            a(f"""s_mov_b64 exec, {sr(MASK+2*k,2)}
            s_cbranch_execz L2_r{k}
            buffer_load_dwordx3 {vr(RECR+4*k,3)}, v{108+i}, s[32:35], 0 offen offset:{12*LPS*rnd}
            L2_r{k}:""")
        full(a)
    a(f"s_cmp_eq_u32 s{S_FIRST}, 0\ns_cbranch_scc1 L2_b2")
    a(f"""v_lshrrev_b32 v104, 16, v{OFR}
    v_lshrrev_b32 v105, 16, v{OFR+1}
    v_lshrrev_b32 v106, 16, v{OFR+2}
    v_lshrrev_b32 v107, 16, v{OFR+3}
    v_max3_u32 v104, v104, v105, v106
    v_max_u32 v254, v104, v107""")
    a(f"""    s_lshl_b32 s96, s{S_CG}, 10
    s_lshl_b32 s97, s{S_CG}, 8
    s_add_u32 s97, s97, 4096
    v_lshlrev_b32 v115, 3, v{L}
    v_and_b32 v116, 0xf8, v115""")
    srd(a, 44, WS, STAT, 8192)
    a(f"""buffer_load_dwordx2 {vr(B2R[0]+2,2)}, v115, s[44:47], s96 offen
    buffer_load_dwordx2 {vr(B2R[1]+2,2)}, v115, s[44:47], s96 offen offset:512
    buffer_load_dwordx2 v[126:127], v116, s[44:47], s97 offen""")
    a(f"""    s_cmp_eq_u32 s3, 3
    s_cbranch_scc0 L2_b4""")
    srd(a, 44, WS, MAXA, 196*4); srd(a, 48, WS, MAXE, (CH*4+15)//16*16); srd(a, 28, WS, MAXW_G, 4)
    a(f"""v_mov_b32 v116, 0
    buffer_load_dwordx4 v[244:247], v{L16}, s[44:47], 0 offen
    buffer_load_dwordx4 v[248:251], v{L16}, s[48:51], 0 offen
    buffer_load_dword v171, v116, s[28:31], 0 offen
    L2_b4:""")
    a(f"""s_cmp_eq_u32 s{S_GRP}, 0
    s_cbranch_scc1 L2_b2
    s_lshl_b32 s97, s{S_CG}, 12
    s_add_u32 m0, s97, {L_BT}
    s_lshl_b32 s96, s{S_NEG}, 8
    s_add_u32 s96, s96, s97""")
    for q in range(4):
        a(f"buffer_load_dwordx4 v{117+q%2}, s[40:43], s96 offen nt lds")
        if q == 1: a("v_xor_b32 v117, 128, v117\nv_xor_b32 v118, 128, v118")
        if q < 3: a("s_add_u32 m0, m0, 1024\ns_add_u32 s96, s96, 1024")
    a(f"""    s_cmp_eq_u32 s{S_GRP}, 0
    s_cbranch_scc1 L2_b2""")
    PFE = OPT.get("pfe", 0)
    if PFE:
        srd(a, 44, WS, None, N*512)
        a(f"""s_lshr_b32 s96, s2, 3
        s_lshl_b32 s96, s96, 2
        s_add_u32 s96, s96, s{S_CG}
        s_mul_i32 s96, s96, {PFE*8192}
        v_lshlrev_b32 v116, 7, v{L}""")
        for q in range(PFE):
            a(f"buffer_load_dword v255, v116, s[44:47], s96 offen")
            if q < PFE-1: a("s_add_u32 s96, s96, 8192")
    a("""s_branch L2_wrec
    L2_b2:""")
    a(f"v_lshlrev_b32 v104, 4, v{TID}")
    for j in range(4): a(f"v_mov_b32 v{96+j}, -1\nv_mov_b32 v{100+j}, 0")
    a(f"ds_write_b128 v104, v[96:99] offset:{L_IDX}")
    for i in range(6): a(f"ds_write_b128 v104, v[100:103] offset:{L_CNT + 8192*i}")
    a(f"""v_cmp_gt_u32 vcc, {NZ - 3072}, v{TID}
    v_mov_b32 v96, {L_NULL}
    v_mov_b32 v97, {L_NULL}
    s_and_b64 exec, exec, vcc
    ds_write_b128 v104, v[100:103] offset:{L_CNT + 8192*6}
    s_mov_b64 exec, -1
    v_cmp_gt_u32 vcc, 128, v{TID}
    v_mov_b32 v98, {L_NULL}
    v_mov_b32 v99, {L_NULL}
    s_and_b64 exec, exec, vcc
    ds_write_b128 v104, v[96:99] offset:{L_QA}
    s_mov_b64 exec, -1
""")
    a(f"""s_cmp_eq_u32 s{S_FIRST}, 0
    s_cbranch_scc1 L2_rank0""")
    n_, h_, one, t0, t1, t2, t3, t4, t5 = 96, 97, 98, 99, 100, 101, 102, 103, 104
    a(f"""v_and_b32 v{n_}, 31, v{L}
    v_lshrrev_b32 v{h_}, 5, v{L}
    v_and_b32 v{t0}, 1, v{L}
    v_lshlrev_b32 v{t0}, 4, v{t0}
    v_mov_b32 v{one}, 0x3f80
    v_lshlrev_b32 v{one}, v{t0}, v{one}
    v_lshrrev_b32 v{t0}, 1, v{n_}
    v_lshlrev_b32 v{t1}, 2, v{h_}
    v_sub_u32 v{t0}, v{t0}, v{t1}
    v_lshlrev_b32 v175, 1, v{n_}""")
    if not OPT['smf']:
        for q in range(8):
            a(f"v_cmp_eq_u32 {sr(94+2*(q%3),2)}, {8*(q//4) + q%4}, v{t0}")
            if q >= 1: a(f"v_cndmask_b32 v{ID0+q-1}, 0, v{one}, {sr(94+2*((q-1)%3),2)}")
        a(f"v_cndmask_b32 v{ID0+7}, 0, v{one}, {sr(94+2*(7%3),2)}")
    a(f"""v_bfe_u32 v{t1}, v{n_}, 2, 1
    v_lshrrev_b32 v{t2}, 4, v{n_}
    v_and_b32 v{t3}, 1, v{n_}
    v_xor_b32 v{t4}, v{t1}, v{h_}
    v_lshl_or_b32 v{t4}, v{t4}, 1, v{t3}
    v_cmp_eq_u32 s[94:95], 0, v{t4}
    v_cmp_eq_u32 s[96:97], 1, v{t4}
    v_lshlrev_b32 v{t4}, 4, v{t2}
    v_mov_b32 v{one}, 0x3f80
    v_lshlrev_b32 v{one}, v{t4}, v{one}
    v_cndmask_b32 v{A2[0]}, 0, v{one}, s[94:95]
    v_cndmask_b32 v{A2[0]+1}, 0, v{one}, s[96:97]
    v_cndmask_b32 v{A2[1]}, 0, v{one}, s[94:95]
    v_cndmask_b32 v{A2[1]+1}, 0, v{one}, s[96:97]
    v_lshlrev_b32 v{t1}, 4, v{t1}
    v_lshl_or_b32 v{t1}, v{t3}, 3, v{t1}
    v_lshl_or_b32 v{t1}, v{t2}, 2, v{t1}
    v_bfe_u32 v{t4}, v{n_}, 3, 1
    v_lshl_or_b32 v{t1}, v{t4}, 1, v{t1}
    v_bfe_u32 v{t5}, v{n_}, 1, 1
    v_or_b32 v{t1}, v{t1}, v{t5}
    v_lshlrev_b32 v{ESIG}, 3, v{t1}
    v_lshl_add_u32 v{ESIG}, v{h_}, 2, v{ESIG}""")
    if OPT["smf"]:
        a(f"""v_lshrrev_b32 v{t2}, 4, v{t1}
        v_bfe_u32 v{t3}, v{t1}, 2, 1
        v_lshl_or_b32 v{t2}, v{t2}, 1, v{t3}
        v_and_b32 v{t3}, 3, v{t1}
        v_lshlrev_b32 v{t4}, 2, v{t2}
        v_lshlrev_b32 v{ID1}, v{t4}, v{t3}
        v_bfe_u32 v{t3}, v{t1}, 3, 1
        v_xor_b32 v{t3}, v{t3}, v{h_}
        v_lshl_or_b32 v{t2}, v{t3}, 2, v{t2}
        v_mov_b32 v{one}, 0x3f80""")
        for q in range(4): a(f"v_cmp_eq_u32 {sr(56+0,2) if False else sr(94+2*(q%3),2)}, {q}, v{t2}" + (f"\nv_cndmask_b32 v{ID0+q-1}, 0, v{one}, {sr(94+2*((q-1)%3),2)}" if q else "\ns_nop 0"))
        a(f"""v_bfe_u32 v{t1}, v{L}, 2, 2
        v_cndmask_b32 v{ID0+3}, 0, v{one}, {sr(94,2)}
        v_lshl_add_u32 v{t2}, v{h_}, 4, v{t1}
        v_lshlrev_b32 v{t2}, 7, v{t2}
        v_lshrrev_b32 v{t1}, 1, v{t1}
        v_lshl_add_u32 v{t2}, v{t1}, 6, v{t2}
        v_bfe_u32 v{t1}, v{L}, 4, 1
        v_lshl_add_u32 v{t2}, v{t1}, 5, v{t2}
        v_and_b32 v{t3}, 3, v{L}
        v_lshl_add_u32 v{t2}, v{t3}, 3, v{t2}
        v_add_u32 v{RA}, s{S_STG}, v{t2}
        v_xor_b32 v{RA+1}, 64, v{RA}
        v_lshlrev_b32 v{t2}, 2, v{t1}""")
    else:
        a(f"""v_bfe_u32 v{t3}, v{t1}, 1, 3
        v_xor_b32 v{t3}, v{t3}, v{h_}
        v_lshlrev_b32 v{t3}, 4, v{t3}
        v_lshl_add_u32 v{t3}, v{t1}, 7, v{t3}
        v_add_u32 v{RA}, s{S_STG}, v{t3}""")
        for s in range(1, 4): a(f"v_xor_b32 v{RA+s}, {32*s}, v{RA}")
        a(f"v_lshrrev_b32 v{t2}, 4, v{L}")
    a(f"""v_and_b32 v{t3}, 7, v{L}
    v_xor_b32 v{t2}, v{t2}, v{t3}
    s_lshl_b32 s96, s{S_CG}, 7
    v_lshl_add_u32 v{IP+1}, v{t2}, 4, s96
    v_xor_b32 v{IP+3}, {0 if OPT['smf'] else 64}, v{IP+1}
    v_mov_b32 v{IP+5}, v{IP+1}
    v_mov_b32 v{IP+7}, v{IP+3}
    v_bfe_u32 v{t1}, v{L}, 4, 1
    v_lshlrev_b32 v{t1}, 5, v{t1}
    v_and_b32 v{t3}, 3, v{L}
    v_lshl_add_u32 v{t1}, v{t3}, 3, v{t1}
    v_add_u32 v{QST}, s96, v{t1}
    v_bfe_u32 v{t1}, v{L}, 2, 2
    v_lshl_add_u32 v{QOFF}, v{h_}, 2, v{t1}
    v_lshlrev_b32 v{QOFF}, 2, v{QOFF}
    s_cmp_lg_u32 s{S_GRP}, 0
    s_cbranch_scc1 L2_batch
    L2_wrec:""")
    dpp_red(a, "v_max_u32", 254)
    stamp(a, 3, ST)
    WE0 = OPT.get('we0', 0)
    WL = 8 - WE0//2
    a(f"""s_cmp_lg_u32 s{S_GRP}, 0
    s_cbranch_scc1 L2_rk1
    s_mul_i32 s99, s{S_CG}, {1024*WE0}
    s_add_u32 m0, s99, {L_STG}""")
    for q in range(WE0):
        if q % 4 == 0 and q: a("s_add_u32 m0, m0, 4096\ns_add_u32 s99, s99, 4096")
        a(f"buffer_load_dwordx4 v{L16}, s[52:55], s99 offen offset:{1024*(q%4)} lds")
    a(f"""s_waitcnt vmcnt({6+WE0})
    s_cmp_eq_u32 s3, 3
    s_cbranch_scc1 L2_rank2
    s_waitcnt vmcnt({3+WE0})
    s_branch L2_rank2
    L2_rk1:
    s_waitcnt vmcnt(7)
    s_branch L2_rank2
    L2_rank0:
    s_waitcnt vmcnt(0)
    L2_rank2:
    s_waitcnt lgkmcnt(0)
    s_barrier""")
    stamp(a, 5, ST)
    RK = 96
    for k in range(12):
        if k == 8: a(f"s_cmp_eq_u32 s{S_R2}, 0\ns_cbranch_scc1 L2_k12")
        a(f"""s_mov_b64 exec, {sr(MASK+2*k,2)}
        v_lshrrev_b32 v{RK+k}, 14, v{RECR+4*k+2}
        ds_add_rtn_u32 v{RECR+4*k+3}, v{RK+k}, v{VONE} offset:{L_CNT}""")
    a(f"""L2_k12:
    s_mov_b64 exec, -1
    v_mov_b32 v63, 0
    s_cmp_eq_u32 s{S_FIRST}, 0
    s_cbranch_scc1 L2_k13
    s_mov_b32 exec_lo, 0
    s_mov_b32 exec_hi, 0x80000000
    ds_max_u32 v63, v254 offset:{L_MISC+4}
    s_mov_b64 exec, -1""")
    if WL:
        a(f"s_mul_i32 s99, s3, {1024*WL}\ns_add_u32 s99, s99, {4096*WE0}\ns_add_u32 m0, s99, {L_STG}")
        for q in range(WL):
            if q == 4: a("s_add_u32 m0, m0, 4096\ns_add_u32 s99, s99, 4096")
            a(f"buffer_load_dwordx4 v{L16}, s[52:55], s99 offen offset:{1024*(q%4)} lds")
    a(f"""s_cmp_eq_u32 s3, 3
    s_cbranch_scc0 L2_k14
    s_waitcnt vmcnt({WE0+WL})
    v_max3_u32 v244, v244, v245, v246
    v_max3_u32 v248, v248, v249, v250
    v_max_u32 v244, v244, v247
    v_max_u32 v248, v248, v251""")
    dpp_red(a, "v_max_u32", [244, 248])
    a(f"""v_mul_f32 v171, v171, v248
    v_sqrt_f32 v171, v171
    v_mov_b32 v54, {f2u(28.0)}
    v_add_f32 v171, v244, v171
    v_mov_b32 v55, {f2u(8.0)}
    v_cmp_nlt_f32 vcc, v171, v54
    v_cmp_nlt_f32 s[94:95], v171, v55
    v_cndmask_b32 v54, 0, v{VONE}, vcc
    v_cndmask_b32 v55, 0, v{VONE}, s[94:95]
    v_add_u32 v171, v54, v55""")
    lane63(a); a(f"ds_write_b32 v63, v171 offset:{L_MISC}"); full(a)
    a("L2_k14:")
    CL, CU, C_, PC, O1, O2, R3 = 48, 49, 50, 51, 52, 53, 54
    I1, I2, I3 = 56, 57, 58
    TL, TH = 108, 112
    HM = (0xffffffff << SPLIT) & 0xffffffff
    a(f"""L2_k13:
    s_waitcnt lgkmcnt(0)
    s_barrier
    ds_read_b32 v{CL}, v{L16} offset:{L_CNT}
    ds_read_b32 v{CU}, v{L16} offset:{L_CNT+1024}
    ds_read_b64 v[60:61], v63 offset:{L_MISC}
    s_waitcnt lgkmcnt(1)
    v_add_u32 v{C_}, v{CL}, v{CU}
    v_and_b32 v{O1}, -8, v{CL}
    v_add_u32 v{PC}, 3, v{C_}
    v_mov_b32 v{I1}, v{O1}
    v_and_b32 v{PC}, -4, v{PC}
    v_sub_u32 v{R3}, v{PC}, v{O1}
    v_and_b32 v{O2}, -8, v{R3}
    v_and_b32 v{R3}, 4, v{R3}
    v_mov_b32 v{I2}, v{O2}
    v_mov_b32 v{I3}, v{R3}""")
    dpp_red(a, "v_add_u32", [I1, I2, I3])
    a(f"""v_readlane_b32 s94, v{I1}, 63
    v_readlane_b32 s95, v{I2}, 63
    v_readlane_b32 s96, v{I3}, 63
    v_readlane_b32 s97, v{I1}, {SPLIT-1}
    v_readlane_b32 s98, v{I2}, {SPLIT-1}
    v_readlane_b32 s99, v{I3}, {SPLIT-1}
    v_readlane_b32 s28, v{I1}, 31
    v_sub_u32 v{I1}, v{I1}, v{O1}
    v_sub_u32 v{I2}, v{I2}, v{O2}
    v_sub_u32 v{I3}, v{I3}, v{R3}
    s_cmp_eq_u32 s{S_FIRST}, 0
    s_cbranch_scc1 L2_s1
    s_waitcnt lgkmcnt(0)
    v_readfirstlane_b32 s{S_MAXC}, v61
    v_readfirstlane_b32 s{S_SAFE}, v60
    s_mov_b32 s{S_FIRST}, 0""")
    if PF:
        srd(a, 44, WS, None, N*512)
        a(f"""s_lshr_b32 s43, s2, 3
        s_lshl_b32 s43, s43, 3
        s_add_u32 s43, s43, s3
        s_mul_i32 s43, s43, {PF*8192}
        v_lshlrev_b32 v55, 7, v{L}""")
        for q in range(PF):
            a(f"buffer_load_dword v255, v55, s[44:47], s43 offen")
            if q < PF-1: a("s_add_u32 s43, s43, 8192")
    a(f"""L2_s1:
    s_sub_u32 s94, s94, s97
    s_sub_u32 s95, s95, s98
    s_sub_u32 s96, s96, s99
    s_add_u32 s29, s97, s98
    s_add_u32 s30, s29, s99
    s_add_u32 s30, s30, 7
    s_and_b32 s30, s30, -8
    s_sub_u32 s31, s30, s97
    s_add_u32 s28, s28, s31
    s_add_u32 s40, s30, s94
    s_add_u32 s41, s40, s95
    s_add_u32 s42, s41, s96
    s_add_u32 s{S_CUT}, s42, {OPT.get('cb', 63)}
    s_lshr_b32 s{S_CUT}, s{S_CUT}, 6
    s_add_u32 s43, s30, 31
    s_lshr_b32 s43, s43, 5
    s_max_u32 s{S_CUT}, s{S_CUT}, s43
    s_add_u32 s43, s28, 31
    s_lshr_b32 s43, s43, 5
    s_min_u32 s{S_CUT}, s{S_CUT}, s43
    s_lshl_b32 s43, s{S_CUT}, 5
    s_max_u32 s43, s43, s28
    s_sub_u32 s43, s43, s28
    s_add_u32 s40, s40, s43
    s_add_u32 s41, s41, s43
    s_add_u32 s42, s42, s43
    s_sub_u32 s40, s40, s98
    s_sub_u32 s52, s41, s99
    s_mov_b32 exec_lo, {HM ^ 0xffffffff}
    s_mov_b32 exec_hi, 0
    v_add_u32 v{I2}, s97, v{I2}
    v_add_u32 v{I3}, s29, v{I3}
    s_mov_b32 exec_lo, {HM}
    s_mov_b32 exec_hi, -1
    v_add_u32 v{I1}, s31, v{I1}
    v_add_u32 v{I2}, s40, v{I2}
    v_add_u32 v{I3}, s52, v{I3}
    s_mov_b32 exec_lo, 0
    v_add_u32 v{I1}, s43, v{I1}
    s_mov_b64 exec, -1
    v_add_u32 v{O2}, v{O1}, v{O2}
    v_sub_u32 v{I2}, v{I2}, v{O1}
    v_sub_u32 v{I3}, v{I3}, v{O2}
    v_lshl_or_b32 v{TL}, v{O2}, 16, v{O1}
    v_mov_b32 v{TL+1}, v{I1}
    v_mov_b32 v{TL+2}, v{I2}
    v_mov_b32 v{TL+3}, v{I3}
    v_max_u32 v55, v{O2}, v{CL}
    v_sub_u32 v55, v55, v{CL}
    v_lshlrev_b32 v{TH}, 16, v55
    v_add_u32 v{TH+2}, v{I2}, v{CL}
    v_add_u32 v{TH+3}, v{I3}, v{CL}
    ds_write_b128 v{L16}, {vr(TL,4)} offset:{L_TBL}
    ds_write_b128 v{L16}, {vr(TH,4)} offset:{L_TBL+1024}
    s_add_u32 s96, s42, 31
    s_lshr_b32 s96, s96, 5
    s_cmp_lg_u32 s{S_SLOW}, 0
    s_cbranch_scc1 L2_s2
    s_cmp_gt_u32 s96, {CAPT}
    s_cselect_b32 s97, 1, 0
    s_cmp_gt_u32 s{S_MAXC}, {3*LPS}
    s_cselect_b32 s97, 1, s97
    s_cmp_eq_u32 s97, 0
    s_cbranch_scc1 L2_s2
    s_mov_b32 s{S_SLOW}, 1
    s_mov_b32 s{S_LIM}, {LPS}
    s_mov_b32 s{S_IMASK}, 3
    s_waitcnt lgkmcnt(0)
    s_barrier
    s_branch L2_batch
    L2_s2:""")
    stamp(a, 6, ST)
    TB = W2R
    for k in range(8): a(f"s_mov_b64 exec, {sr(MASK+2*k,2)}\nds_read_b128 {vr(TB+4*k,4)}, v{RK+k} offset:{L_TBL}")
    a(f"""s_mov_b64 exec, -1
    v_add_u32 v{DEG}, v{DEG}, v{C_}
    s_lshr_b32 s29, s29, 6
    s_lshl_b32 s29, s29, 1
    s_lshr_b32 s41, s41, 5
    s_max_u32 s41, s41, s{S_CUT}
    s_sub_u32 s41, s41, s{S_CUT}
    s_and_b32 s41, s41, -2
    s_cmp_eq_u32 s{S_SAFE}, 0
    s_cselect_b32 s29, s29, 0
    s_cselect_b32 s41, s41, 0
    s_add_u32 s30, s29, 3
    s_lshr_b32 s30, s30, 2
    s_sub_u32 s31, s{S_CUT}, s29
    s_add_u32 s31, s31, 1
    s_lshr_b32 s31, s31, 1
    s_add_u32 s31, s31, s30
    s_add_u32 s40, s41, 3
    s_lshr_b32 s40, s40, 2
    s_add_u32 s40, s40, s31
    s_min_u32 s98, s{S_CUT}, s96
    s_sub_u32 s99, s96, s98
    s_cmp_eq_u32 s{S_GRP}, 0
    s_cselect_b32 s{S_N}, s98, s99
    s_cselect_b32 s{S_T0}, 0, s{S_CUT}
    s_cselect_b32 s{S_NO}, s29, s41
    s_cselect_b32 s53, 0, s31
    s_add_u32 s41, s41, s{S_CUT}
    s_lshl_b32 s30, s30, 1
    s_sub_u32 s30, s30, s29
    s_lshl_b32 s31, s31, 2
    s_sub_u32 s31, s31, s{S_CUT}
    s_lshl_b32 s40, s40, 1
    s_sub_u32 s40, s40, s41
    v_cmp_eq_u32 vcc, 0, v{R3}
    s_cmp_ge_u32 s3, 3
    s_cbranch_scc1 L2_pad
    v_add_u32 v55, s3, v{C_}
    v_cndmask_b32 v59, v{I3}, v{I2}, vcc
    v_cmp_lt_u32 vcc, v55, v{PC}
    s_lshr_b32 s96, s{S_SAFE}, 1
    s_add_u32 s96, s96, {N}
    s_and_b64 exec, exec, vcc
    v_mov_b32 v60, s96
    v_add_lshl_u32 v55, v55, v59, 2
    ds_write_b32 v55, v60 offset:{L_IDX}
    s_mov_b64 exec, -1
    L2_pad:""")
    for r in (PC, O1, O2, I1, I2, I3): a(f"v_lshrrev_b32 v{r}, 2, v{r}")
    QA_, ONE, NC1, Q, T, U, V = 48, 49, 50, 54, 55, 59, 60
    a(f"""v_mul_u32_u24 v{QA_}, {BTS}, v{L}
    v_add_u32 v{QA_}, {L_BT}, v{QA_}
    v_mov_b32 v{ONE}, 0x3f80
    v_subrev_u32 v{NC1}, {17*16}, v{L16}
    v_mov_b32 v61, s30
    v_mov_b32 v62, s40
    s_mov_b32 s97, s3
    L2_q:
    v_cmp_lt_u32 s[94:95], s97, v{O2}
    v_cmp_lt_u32 s[98:99], s97, v{O1}
    v_cmp_lt_u32 vcc, s97, v{PC}
    v_cndmask_b32 v{Q}, v{I3}, v{I2}, s[94:95]
    s_and_b64 exec, exec, vcc
    s_cbranch_execz L2_qd
    v_cndmask_b32 v{Q}, v{Q}, v{I1}, s[98:99]
    v_add_u32 v{Q}, s97, v{Q}
    v_lshrrev_b32 v{T}, 3, v{Q}
    v_lshlrev_b32 v{U}, 2, v{Q}
    ds_write_b32 v{U}, v{QA_} offset:{L_QA}
    v_cmp_le_u32 vcc, s{S_CUT}, v{T}
    v_cmp_gt_u32 s[94:95], s29, v{T}
    v_cmp_gt_u32 s[98:99], s41, v{T}
    v_and_b32 v{V}, 4, v{Q}
    v_cndmask_b32 v{U}, v{L16}, v{NC1}, vcc
    v_lshl_add_u32 v{U}, v{V}, 7, v{U}
    v_and_b32 v{V}, 2, v{Q}
    v_add_u32 v{U}, v{U}, v{V}
    s_and_b64 s[98:99], s[98:99], vcc
    s_or_b64 s[94:95], s[94:95], s[98:99]
    v_cndmask_b32 v{V}, v61, v62, vcc
    v_add_u32 v{V}, v{V}, v{T}
    v_and_b32 v{Q}, 1, v{Q}
    v_lshl_or_b32 v{Q}, v{V}, 1, v{Q}
    v_mov_b32 v{V}, s31
    v_cndmask_b32 v{V}, 0, v{V}, vcc
    v_add_u32 v{V}, v{V}, v{T}
    v_cndmask_b32 v{Q}, v{Q}, v{V}, s[94:95]
    v_and_b32 v{V}, -4, v{Q}
    v_lshl_add_u32 v{U}, v{V}, 8, v{U}
    v_and_b32 v{V}, 3, v{Q}
    v_lshl_add_u32 v{U}, v{V}, 2, v{U}
    ds_write_b16 v{U}, v{ONE} offset:{L_P}
    s_add_u32 s97, s97, 8
    s_branch L2_q
    L2_qd:
    s_mov_b64 exec, -1
    s_cmp_lg_u32 s{S_BDONE}, 0
    s_cbranch_scc1 L2_o1
    v_and_b32 v54, 31, v{L}
    v_lshrrev_b32 v55, 5, v{L}
    v_and_b32 v56, 15, v{L}
    v_xor_b32 v56, v56, v55
    v_lshlrev_b32 v56, 4, v56
    v_lshl_add_u32 v56, v54, 8, v56
    s_lshl_b32 s96, s{S_GRP}, 13
    s_add_u32 s96, s96, {L_BT}
    v_add_u32 v56, s96, v56
    s_lshl_b32 s96, s{S_CG}, 14
    s_add_u32 s96, s96, {L_STG}
    v_add_u32 v125, s96, v{L16}
    """)
    stamp(a, 16, ST)
    a(f"""s_waitcnt vmcnt({PF}) lgkmcnt(0)
    s_barrier""")
    stamp(a, 17, ST)
    for s in range(8):
        a(f"ds_read_b128 {vr(64+4*s,4)}, v56")
        if s < 7: a(f"v_xor_b32 v56, {32*(s ^ (s+1))}, v56")
    for q in range(8, 16): a(f"ds_read_b128 {vr(W2R+4*q,4)}, v125 offset:{1024*q}")
    a(f"""s_branch L2_o2
    L2_o1:
    s_waitcnt lgkmcnt(0)
    L2_o2:""")
    def scatter(ks):
        P = ((94, 96), (28, 30), (40, 42))
        def st1(k):
            r, tb = RECR+4*k+3, TB+4*(k % 8)
            a(f"""v_cmp_lt_u32_sdwa {sr(P[k%3][0],2)}, v{r}, v{tb} src0_sel:DWORD src1_sel:WORD_1
            v_cmp_lt_u32_sdwa {sr(P[k%3][1],2)}, v{r}, v{tb} src0_sel:DWORD src1_sel:WORD_0""")
        def st2(k):
            r, m, tb = RECR+4*k+3, RECR+4*k+2, TB+4*(k % 8)
            a(f"""v_cndmask_b32 v{tb+3}, v{tb+3}, v{tb+2}, {sr(P[k%3][0],2)}
            v_cndmask_b32 v{tb+3}, v{tb+3}, v{tb+1}, {sr(P[k%3][1],2)}
            v_and_b32 v{m}, {OPT.get('imask', 0x3fff)}, v{m}
            v_add_lshl_u32 v{tb+3}, v{tb+3}, v{r}, 2
            v_lshlrev_b32 v{tb}, 1, v{tb+3}""")
        st1(ks[0])
        for i, k in enumerate(ks):
            if i + 1 < len(ks): st1(ks[i+1])
            st2(k)
        for k in ks:
            tb = TB+4*(k % 8)
            a(f"""s_mov_b64 exec, {sr(MASK+2*k,2)}
            ds_write_b32 v{tb+3}, v{RECR+4*k+2} offset:{L_IDX}
            ds_write_b64 v{tb}, {vr(RECR+4*k,2)} offset:{L_EA}""")
    scatter(list(range(8)))
    a(f"s_cmp_eq_u32 s{S_R2}, 0\ns_cbranch_scc1 L2_c12")
    for k2 in range(8, 12):
        a(f"""s_mov_b64 exec, {sr(MASK+2*k2,2)}
        v_lshrrev_b32 v{RK+k2-8}, 14, v{RECR+4*k2+2}
        ds_read_b128 {vr(TB+4*(k2-8),4)}, v{RK+k2-8} offset:{L_TBL}""")
    a("s_mov_b64 exec, -1\ns_waitcnt lgkmcnt(0)")
    scatter(list(range(8, 12)))
    a(f"""L2_c12:
    s_mov_b64 exec, -1
    s_cmp_lg_u32 s{S_BDONE}, 0
    s_cbranch_scc1 L2_c13""")
    for q in range(8): a(f"ds_read_b128 {vr(W2R+4*q,4)}, v125 offset:{1024*q}")
    a(f"""L2_c13:
    s_lshl_b32 s96, s{S_T0}, 7
    s_add_u32 s96, s96, {L_IDX-256}
    v_lshrrev_b32 v54, 3, v{L}
    v_lshl_add_u32 v{IB}, v54, 2, s96
    s_lshl_b32 s96, s{S_T0}, 8
    s_add_u32 s96, s96, {L_EA-512}
    v_add_u32 v{EB}, s96, v{ESIG}
    s_lshl_b32 s96, s{S_T0}, 5
    s_add_u32 s96, s96, {L_QA-64}
    v_add_u32 v{QB}, s96, v{QOFF}
    s_lshl_b32 s96, s53, 10
    s_add_u32 s96, s96, {L_P-1024}
    v_add_u32 v{PB}, s96, v{L16}""")
    for j in range(8): a(f"v_mov_b32 v{HQ0+j}, 0")
    for j in range(4): a(f"v_mov_b32 v{PP+j}, 0\nv_mov_b32 v{EE+2*j+1}, v{IP+2*j+1}")
    srd(a, 44, WS, W2OP, 65536); srd(a, 48, B2, None, 256)
    a(f"""s_mov_b32 s38, {AROWS}
    s_mov_b32 s{S_N0}, s{S_N}
    s_waitcnt lgkmcnt(0)
    s_barrier""")
    stamp(a, 7, ST)
    def prime01():
        rd_idx(a, 2)
        for u in range(4): a(f"ds_read_b32 v{EE+2*u}, v{IB} offset:{128*3+32*u}")
        a("s_waitcnt lgkmcnt(4)"); dma(a, 0)
        rd_idx(a, 4)
        a(f"s_add_u32 m0, s{S_STG}, 4096\ns_waitcnt lgkmcnt(4)")
        for u in range(4):
            a(f"buffer_load_dwordx4 {vr(EE+2*u,2)}, s[36:39], 0 idxen offen lds")
            if u < 3: a("s_add_u32 m0, m0, 1024")
    a(f"""s_sub_u32 s96, s{S_GRP}, s{S_BDONE}
    s_cmp_eq_u32 s96, 1
    s_cbranch_scc1 L2_p0""")
    prime01()
    a("L2_p0:")
    a(f"""ds_read_b32 v{QV[0]}, v{QB} offset:64
    ds_read_b32 v{QV[1]}, v{QB} offset:96
    ds_read2st64_b32 {vr(A2[0]+2,2)}, v{EB} offset0:2 offset1:2
    v_mov_b32 v53, 0""")
    stamp(a, 13, ST)
    a(f"""s_cmp_lg_u32 s{S_BDONE}, 0
    s_cbranch_scc1 L2_p2""")
    for s in range(8): a(mfma(0, 64+4*s, W2R+4*s, None if s == 0 else 0))
    a(f"""s_mov_b32 s94, {NLOG2E}
    s_mov_b32 s{S_BDONE}, 1
    v_lshrrev_b32 v49, 5, v{L}
    s_lshl_b32 s96, s{S_CG}, 7
    v_lshl_add_u32 v50, v175, 1, s96
    v_mul_u32_u24 v51, {4*BTS}, v49
    s_mul_i32 s96, s{S_GRP}, {32*BTS}
    s_add_u32 s96, s96, {L_BT}
    v_add3_u32 v51, v51, v50, s96
    v_mov_b32 v52, 1.0
    s_nop 1""")
    for s in range(8):
        a(mfma(16, 64+4*s, W2R+32+4*s, None if s == 0 else 16))
        for j in range(2*s, 2*s+2): a(f"v_fma_f32 v{j}, v{j}, s94, v126")
        a(f"v_max3_f32 v52, |v{2*s}|, |v{2*s+1}|, v52")
    a(mfma(S0, HQ0, PP, None)); a(mfma(S1, HQ0, PP, None))
    for j in range(16):
        if j == 8: a(f"s_cmp_eq_u32 s{S_GRP}, 0\ns_cselect_b32 exec_hi, -1, 0")
        if j == 9: a("s_cbranch_scc0 L2_bz")
        a(f"""v_fma_f32 v{16+j}, v{16+j}, s94, v127
        v_cvt_pk_bf16_f32 v{j}, v{j}, v{16+j}
        ds_write_b32 v51, v{j} offset:{(8*(j//4) + j % 4)*BTS}""")
        if j & 1: a(f"v_max3_f32 v52, |v{15+j}|, |v{16+j}|, v52")
        if j == 8: a(f"v_max_f32 v52, |v{16+j}|, v52")
    a(f"""s_branch L2_bw
    L2_bz:
    ds_write_b32 v51, v53 offset:{17*BTS}
    s_mov_b64 exec, -1
    L2_bw:
    v_cmp_neq_f32 vcc, 1.0, v52
    s_cmp_eq_u64 vcc, 0
    s_cbranch_scc1 L2_bx
    ds_write_b32 v53, v{VONE} offset:{L_MISC+8}
    L2_bx:
    s_cmp_eq_u32 s{S_GRP}, 0
    s_cbranch_scc1 L2_by""")
    prime01()
    a("L2_by:")
    stamp(a, 14, ST)
    a(f"""s_waitcnt lgkmcnt(0)
    s_barrier
    L2_p2:
    ds_read_b32 v171, v53 offset:{L_MISC+8}
    s_waitcnt lgkmcnt(1)
    v_add_u32 v{QV[0]}, v{QV[0]}, v{QST}
    v_add_u32 v{QV[1]}, v{QV[1]}, v{QST}
    s_waitcnt vmcnt(4)""")
    stamp(a, 15, ST)
    rd_rows(a, 0)
    a(f"ds_read_b64_tr_b16 {vr(B2R[0],2)}, v{QV[0]}\ns_waitcnt lgkmcnt(0)")
    for m in tmf(D0, ALO, A2[0], B2R[0]): a(m)
    dma(a, 0); rd_idx(a, 5)
    group(a, 1, tail=False)
    a(f"""v_readfirstlane_b32 s96, v171
    s_cmp_eq_u32 s{S_SAFE}, 2
    s_cselect_b32 s96, 0, s96
    s_cmp_lg_u32 s96, 0
    s_cbranch_scc1 L2_redo
    s_cmp_eq_u32 s{S_N}, 0
    s_cbranch_scc1 L2_done""")
    stamp(a, 8, ST)
    if OPT.get("stamp"): a(f"v_writelane_b32 v{ST}, s{S_N}, 30")
    a(f"s_cmp_eq_u32 s{S_SAFE}, 2\ns_cbranch_scc1 L2_loopS\ns_cmp_eq_u32 s{S_NO}, 0\ns_cbranch_scc1 L2_loopF")
    main_loops(a)
    a(f"""L2_redo:
    s_mov_b32 s{S_SAFE}, 2
    v_mov_b32 v{DEG}, 0
    s_waitcnt vmcnt(0) lgkmcnt(0)
    s_barrier
    s_branch L2_batch
    L2_end_odd:
    ds_read_b128 {vr(PP,4)}, v{PB}
    s_waitcnt lgkmcnt(0)""")
    a(mfma(S0, HQ0, PP, S0))
    a("L2_end_even:")
    a(mfma(S1, HQ1, PP, S1))
    a(f"""L2_done:
    s_waitcnt vmcnt(0)
    s_cmp_eq_u32 s{S_SLOW}, 0
    s_cbranch_scc1 L2_epi
    s_add_u32 s{S_BETA}, s{S_BETA}, 1
    s_lshr_b32 s{S_BASE}, s{S_BETA}, 1
    s_lshl_b32 s{S_BASE}, s{S_BASE}, {LSH}
    s_xor_b32 s{S_IMASK}, s{S_IMASK}, 15
    s_cmp_ge_u32 s{S_BASE}, s{S_MAXC}
    s_cbranch_scc1 L2_epi
    s_barrier
    s_branch L2_batch""")
    a(f"L2_epi:\ns_cmp_gt_u32 s{S_N0}, 4\ns_cbranch_scc1 L2_epi1")
    for k in range(4): w2chunk(a, k)
    a("s_waitcnt vmcnt(0)\nL2_epi1:")
    stamp(a, 9, ST)
    a(f"""v_and_b32 v2, 31, v{L}
    v_lshrrev_b32 v3, 5, v{L}
    s_mov_b32 s94, {NLN2}
    s_mov_b32 s95, {NLN2}
    v_bfe_u32 v5, v2, 1, 3
    v_lshlrev_b32 v5, 4, v5
    v_lshl_add_u32 v5, v2, 7, v5
    v_lshl_add_u32 v6, v3, 3, v5
    v_add_u32 v6, s{S_STG}, v6""")
    for u in range(8):
        a(f"""v_xor_b32 v{32+u}, {16*u}, v6
        v_cvt_pk_bf16_f32 v{16+2*u}, v{S0+4*u}, v{S0+4*u+1}
        v_cvt_pk_bf16_f32 v{17+2*u}, v{S0+4*u+2}, v{S0+4*u+3}
        ds_write_b64 v{32+u}, {vr(16+2*u,2)}""")
    a(f"""s_cmp_lg_u32 s3, 0
    s_cbranch_scc1 L2_e1
    v_cvt_f32_u32 v8, v{DEG}
    v_lshlrev_b32 v9, 2, v{L}
    s_mov_b32 exec_hi, 0
    ds_write_b32 v9, v8 offset:{L_DEG}
    s_mov_b32 exec_lo, 0xfffe0000
    s_mov_b32 exec_hi, 0x1ffff
    ds_write_b32 v9, v8 offset:{L_DEG+128-68}
    s_mov_b64 exec, -1
    L2_e1:
    v_lshlrev_b32 v7, 4, v3
    v_xor_b32 v5, v5, v7
    s_lshl_b32 s97, s{S_GRP}, 15
    s_add_u32 s97, s97, {L_STG}
    v_add_u32 v241, s97, v5
    v_xor_b32 v242, 32, v241
    v_xor_b32 v243, 64, v241
    v_xor_b32 v244, 96, v241
    s_lshl_b32 s97, s{S_GRP}, 7
    v_lshl_add_u32 v245, v3, 4, s97
    s_lshl_b32 s96, s{S_CG}, 7
    s_add_u32 s96, s96, {L_P-512}
    v_lshlrev_b32 v246, 11, v3
    v_lshl_add_u32 v246, v2, 2, v246
    v_add_u32 v246, s96, v246
    s_mul_i32 s96, s{S_GRP}, {17*256}
    s_lshl_b32 s97, s{S_CG}, 6
    s_add_u32 s96, s96, s97
    v_lshlrev_b32 v247, 10, v3
    v_and_b32 v7, 1, v2
    v_lshl_add_u32 v247, v7, 8, v247
    v_and_b32 v8, 30, v2
    v_lshl_add_u32 v247, v8, 1, v247
    v_cmp_eq_u32 vcc, 0, v7
    v_mov_b32 v8, 0x07060302
    v_mov_b32 v9, 0x01000504
    v_cndmask_b32 v248, v8, v9, vcc
    v_add_u32 v247, s96, v247
    v_lshlrev_b32 v240, 16, v{B2V}
    s_sub_u32 s96, {N}, s{S_NEG}
    s_min_u32 s96, s96, {NPB}
    s_lshl_b32 s96, s96, 8
    s_lshl_b32 s97, s{S_NEG}, 8""")
    srd(a, 52, OUT, "s97", "s96")
    a("""s_mov_b32 s97, 4096
    s_waitcnt lgkmcnt(0)
    s_barrier""")
    for s in range(16): a(f"ds_read_b128 {vr(4*s,4)}, v{241+s%4} offset:{8192*(s//4)}")
    for jq in range(4): a(f"ds_read_b128 {vr(96+4*jq,4)}, v245 offset:{L_DEG+32*jq}")
    stamp(a, 10, ST)
    O = 64
    for s in range(16):
        a(f"s_waitcnt lgkmcnt({min(15, 19-s)})")
        a(mfma(O, 4*s, W2R+4*s, None if s == 0 else O))
    a("s_waitcnt lgkmcnt(0)")
    for j in range(16): a(f"v_mul_f32 v{96+j}, v{96+j}, v240")
    a(f"s_cmp_eq_u32 s{S_GRP}, 0\ns_cbranch_scc1 L2_e2")
    for j in range(8): a(f"ds_write_b32 v246, v{O+j} offset:{(8*(j//4)+j%4+1)*512}")
    a("""L2_e2:
    s_waitcnt lgkmcnt(0)
    s_barrier""")
    def fin(js):
        for j in js: a(f"v_fma_f32 v{O+j}, v{O+j}, s94, v{96+j}")
        for j in js[::2]: a(f"v_cvt_pk_bf16_f32 v{16+j//2}, v{O+j}, v{O+j+1}")
        for j in js[::2]: a(f"v_mov_b32_dpp v{24+j//2}, v{16+j//2} quad_perm:[1,0,3,2] row_mask:0xf bank_mask:0xf")
        for j in js[::2]: a(f"v_perm_b32 v{16+j//2}, v{16+j//2}, v{24+j//2}, v248")
    def st(j):
        off = (8*(j//4) + j % 4)*256
        return f"buffer_store_dword v{16+j//2}, v247, s[52:55], {'0' if off < 4096 else 's97'} offen offset:{off % 4096}"
    a(f"s_cmp_lg_u32 s{S_GRP}, 0\ns_cbranch_scc1 L2_e3")
    for j in range(8, 16): a(f"ds_read_b32 v{j}, v246 offset:{(8*(j//4)+j%4-16)*512}")
    fin(list(range(8)))
    for j in range(0, 8, 2): a(st(j))
    a(f"""s_waitcnt lgkmcnt(0)
    s_mov_b32 exec_lo, 0
    v_add_f32 v{O+8}, v{O+8}, v8
    s_mov_b64 exec, -1""")
    for j in range(9, 16): a(f"v_add_f32 v{O+j}, v{O+j}, v{j}")
    a("s_branch L2_e5\nL2_e3:")
    fin([6, 7])
    a("s_mov_b32 exec_lo, 0\ns_mov_b32 exec_hi, 0xaaaaaaaa")
    a(st(6)); a("s_mov_b64 exec, -1\nL2_e5:")
    fin(list(range(8, 16)))
    for j in range(8, 16, 2): a(st(j))
    stamp_dump(a, ST, 0, 1)
    a("L2_exit2:\ns_endpgm")


HEAD = """; edge-featured MPNN: K1 = edge partition by dst bucket + node tables + operand prep ; K2 = gather / silu / segment-sum / final GEMM
; @launch kernel=k1_kernel grid=({g1},1,1) block=(512,1,1) lds={l1}
; @launch kernel=k2_kernel grid=({g2},1,1) block=(512,1,1) lds={l2}
.amdgcn_target "amdgcn-amd-amdhsa--gfx950"
.text
"""
KD = """.amdhsa_kernel {name}
  .amdhsa_next_free_vgpr {v}
  .amdhsa_next_free_sgpr 102
  .amdhsa_accum_offset {v}
  .amdhsa_group_segment_fixed_size 0
  .amdhsa_kernarg_size 88
  .amdhsa_user_sgpr_count 2
  .amdhsa_user_sgpr_kernarg_segment_ptr 1
  .amdhsa_system_sgpr_workgroup_id_x 1
.end_amdhsa_kernel
"""


def build():
    out = HEAD.format(g1=K1_GRID, l1=K1_LDS, g2=NB, l2=K2_LDS)
    for name, fn in (("k1_kernel", k1), ("k2_kernel", k2)):
        a = Asm(); fn(a)
        out += f".globl {name}\n.p2align 8\n.type {name},@function\n" + a.text(verbose=OPT.get("v", 0))
    out += '.section .rodata,"a"\n.p2align 6\n' + KD.format(name="k1_kernel", v=128) + ".p2align 6\n" + KD.format(name="k2_kernel", v=256)
    return out


if __name__ == "__main__":
    open(sys.argv[1], "w").write(build())
```

```python
import sys, struct
from asmlib import Asm, vr, sr

OPT = dict(prio=1, prio_at=32, pf=1, ept=4, smf=1, gp=0, split=25, cb=95, mix=6)
for a_ in sys.argv[2:]:
    k_, v_ = a_.split("="); OPT[k_] = int(v_)

N, E = 12500, 400000
NPB, NB = 49, 256
EPT = OPT["ept"]
CE = 400*EPT; CH = E//CE
LPS = 2*EPT
LSH = {8: 3, 16: 4}[LPS]
SPLIT, HALF = OPT.get('split', 23), 6250
AROWS = N + 2
REC = 13 << 20
OFF = 19 << 20
W2OP = 20 << 20
STAT = W2OP + 65536
BIAS = STAT + 4096
W1BOP = STAT + 8192
MAXA = W1BOP + 65536
MAXE = MAXA + 1024
MAXW_G = MAXE + 1024
STAMPS = 24 << 20
NG = 208
K1_GRID = NG + 3 + CH
K1_LDS = 65536 + 64

def f2u(x): return struct.unpack("<I", struct.pack("<f", x))[0]
NLOG2E = f2u(-1.4426950408889634)
PLOG2E = NLOG2E ^ 0x80000000
NLN2 = f2u(-0.6931471805599453)
X, EA_, SRC, DST, W1, B1, W2, B2, OUT, DBG, WS = 4, 6, 8, 10, 12, 14, 16, 18, 20, 22, 24
SHR = ["row_shr:%d row_mask:0xf bank_mask:0xf bound_ctrl:0" % i for i in (1, 2, 4, 8)]
BC15, BC31 = "row_bcast:15 row_mask:0xa bank_mask:0xf", "row_bcast:31 row_mask:0xc bank_mask:0xf"


def srd(a, d, base, add, size, stride=0):
    if add is None:
        a(f"s_mov_b32 s{d}, s{base}\ns_mov_b32 s{d+1}, s{base+1}")
    else:
        a(f"s_add_u32 s{d}, s{base}, {add}\ns_addc_u32 s{d+1}, s{base+1}, 0")
    if stride: a(f"s_or_b32 s{d+1}, s{d+1}, {stride << 16}")
    a(f"s_mov_b32 s{d+2}, {size}\ns_mov_b32 s{d+3}, 0x00020000")


def ldargs(a):
    a("""s_load_dwordx16 s[4:19], s[0:1], 0
    s_load_dwordx4 s[20:23], s[0:1], 64
    s_load_dwordx2 s[24:25], s[0:1], 80""")


def dpp_red(a, op, vs, full=True):
    if isinstance(vs, int): vs = [vs]
    for m in SHR + [BC15] + ([BC31] if full else []):
        for v in vs: a(f"{op}_dpp v{v}, v{v}, v{v} {m}")


def stamp(a, k, reg):
    if not OPT.get("stamp"): return
    a(f"s_memrealtime s[100:101]\ns_waitcnt lgkmcnt(0)\nv_writelane_b32 v{reg}, s100, {k}")
    if k in (0, 7, 8, 9, 31): a(f"s_memtime s[100:101]\ns_waitcnt lgkmcnt(0)\nv_writelane_b32 v{reg}, s100, {32+k}")


def stamp_dump(a, reg, tmp, kern):
    if not OPT.get("stamp"): return
    a("s_mov_b64 exec, -1\ns_waitcnt vmcnt(0)")
    stamp(a, 31, reg)
    a(f"""s_lshl_b32 s96, s2, 3
    s_add_u32 s96, s96, s3
    s_lshl_b32 s96, s96, 8
    s_add_u32 s96, s96, {STAMPS + kern*(1 << 20)}""")
    srd(a, 44, WS, "s96", 256)
    a(f"""v_mbcnt_lo_u32_b32 v{tmp}, -1, 0
    v_mbcnt_hi_u32_b32 v{tmp}, -1, v{tmp}
    v_lshlrev_b32 v{tmp}, 2, v{tmp}
    buffer_store_dword v{reg}, v{tmp}, s[44:47], 0 offen""")


def smf(D, B): return f"v_smfmac_f32_32x32x32_bf16 {vr(D,16)}, {vr(ID0,4)}, {vr(B,8)}, v{ID1}"
def tmf(D, rows, a2, b2):
    if OPT["smf"]: return [mfma(D, a2, b2, None), smf(D, rows)]
    return [mfma(D, rows, ID0, None), mfma(D, rows+4, ID1, D), mfma(D, a2, b2, D)]
def code_pf(a, label, size, lane, tmp, junk, sr0, lanes=16):
    if not OPT.get("cpf", 2): return
    code_pf.n += 1
    a(f"""s_getpc_b64 s[{sr0}:{sr0+1}]
    L_pc{code_pf.n}:
    s_sub_u32 s{sr0}, s{sr0}, L_pc{code_pf.n}-{label}
    s_subb_u32 s{sr0+1}, s{sr0+1}, 0
    s_cmp_lt_u32 s2, {OPT.get("cpn", 16)}
    s_cselect_b32 s{sr0+2}, {size}, 0
    s_mov_b32 s{sr0+3}, 0x00020000
    s_mul_i32 s99, s3, {128*lanes}
    v_lshlrev_b32 v{tmp}, 7, v{lane}
    s_mov_b64 exec, {(1 << lanes) - 1}
    buffer_load_dword v{junk}, v{tmp}, s[{sr0}:{sr0+3}], s99 offen
    s_mov_b64 exec, -1""")
code_pf.n = 0
def lane63(a): a("s_mov_b32 exec_lo, 0\ns_mov_b32 exec_hi, 0x80000000")
def full(a): a("s_mov_b64 exec, -1")
def mfma(D, A, B, C): return f"v_mfma_f32_32x32x16_bf16 {vr(D,16)}, {vr(A,4)}, {vr(B,4)}, " + ("0" if C is None else vr(C, 16))


def k1(a):
    ST = 126
    a("k1_kernel:")
    a(f"s_cmp_ge_u32 s2, {K1_GRID}\ns_cbranch_scc1 L1_exit2")
    if OPT.get("stamp"): a(f"v_mov_b32 v{ST}, 0")
    stamp(a, 0, ST)
    ldargs(a)
    a(f"""v_and_b32 v1, 63, v0
    v_lshrrev_b32 v2, 6, v0
    s_nop 0
    v_readfirstlane_b32 s3, v2""")
    if OPT.get("cpf", 2) >= 2: code_pf(a, "k1_kernel", "L2_last-k1_kernel", 1, 63, 63, 64, 24)
    a(f"s_cmp_gt_u32 s2, {NG+2}\ns_cbranch_scc1 L1_part" if OPT.get("gfirst", 1) else f"s_cmp_le_u32 s2, {NG+2}\ns_cbranch_scc1 L1_gemm")
    WOP = 56
    def gemm_role():
        WOP = 56
        a(f"""    s_cmp_eq_u32 s2, {NG+2}
        s_cbranch_scc1 L1_w2
        s_bfe_u32 s27, s2, 0x10003
        s_lshr_b32 s28, s2, 4
        s_lshl_b32 s28, s28, 3
        s_and_b32 s29, s2, 7
        s_add_u32 s28, s28, s29
        s_cmp_ge_u32 s2, {NG}
        s_cselect_b32 s27, s29, s27
        s_cselect_b32 s61, {128*512}, 0
        s_cbranch_scc1 L1_g1
        s_cmp_ge_u32 s28, 98
        s_cbranch_scc1 L1_exit2
        L1_g1:
        v_lshrrev_b32 v18, 4, v1
        v_and_b32 v19, 15, v1
        v_lshlrev_b32 v24, 2, v18
        v_xor_b32 v24, v24, v19
        v_lshlrev_b32 v24, 4, v24
        v_lshl_or_b32 v124, v18, 9, v24""")
        for ii in range(4):
            a(f"""v_add_u32 v20, {4*ii}, v18
            v_xor_b32 v20, v20, v19
            v_lshlrev_b32 v20, 4, v20
            v_lshl_or_b32 v{25+ii}, v18, 8, v20""")
        a(f"""v_mov_b32 v2, 0
        v_mov_b32 v3, 65536
        ds_write_b32 v3, v2
        s_lshl_b32 s43, s3, 13
        s_lshl_b32 s30, s27, 8
        s_add_u32 s43, s43, s30
        s_add_u32 s43, s43, s61
        s_lshl_b32 s31, s3, 12
        s_lshl_b32 s29, s28, 15
        s_add_u32 s29, s29, s31
        s_add_u32 m0, s31, 32768
        s_and_b32 s40, s3, 1
        s_lshr_b32 s41, s3, 1
        v_and_b32 v7, 31, v1
        v_lshlrev_b32 v20, 1, v7
        s_lshl_b32 s42, s40, 7
        s_add_u32 s42, s42, s30
        s_waitcnt lgkmcnt(0)""")
        stamp(a, 5, ST)
        srd(a, 36, X, None, N*256)
        for ii in range(4):
            a(f"buffer_load_dwordx4 v{25+ii}, s[36:39], s29 offen nt lds")
            if ii < 3: a("s_add_u32 m0, m0, 1024\ns_add_u32 s29, s29, 1024")
        a("s_mov_b32 m0, s31")
        srd(a, 32, W1, None, 260*512)
        for ii in range(4):
            a(f"buffer_load_dwordx4 v124, s[32:35], s43 offen lds")
            a("s_add_u32 m0, m0, 1024\ns_add_u32 s43, s43, 2048")
        if OPT.get("cpf", 2) == 1: code_pf(a, "k1_kernel", "L1_exit2-k1_kernel", 1, 21, 22, 64)
        stamp(a, 6, ST)
        a(f"""v_bfe_u32 v18, v1, 2, 2
        v_lshrrev_b32 v6, 5, v1
        v_lshl_add_u32 v19, v6, 3, v18
        v_lshlrev_b32 v19, 8, v19
        v_bfe_u32 v20, v1, 4, 1
        v_lshlrev_b32 v20, 5, v20
        v_and_b32 v21, 3, v1
        v_lshl_add_u32 v20, v21, 3, v20
        v_add_u32 v19, v19, v20
        s_lshl_b32 s42, s40, 1
        v_xor_b32 v20, s42, v18
        v_lshl_add_u32 v120, v20, 6, v19
        v_xor_b32 v20, 1, v20
        v_lshl_add_u32 v121, v20, 6, v19
        s_lshl_b32 s42, s41, 5
        v_add_u32 v19, s42, v7
        v_lshlrev_b32 v19, 8, v19
        v_and_b32 v20, 15, v1
        v_xor_b32 v20, v20, v6
        v_lshl_add_u32 v104, v20, 4, v19
        v_add_u32 v104, 32768, v104""")
        for s in range(1, 8): a(f"v_xor_b32 v{104+s}, {32*s}, v104")
        srd(a, 44, WS, None, N*512)
        a(f"""s_lshl_b32 s42, s28, 2
        s_add_u32 s42, s42, s41
        s_lshl_b32 s42, s42, 14
        s_lshl_b32 s48, s27, 1
        s_add_u32 s48, s48, s40
        s_lshl_b32 s48, s48, 7
        s_add_u32 s48, s42, s48
        s_add_u32 s30, s31, 32768
        v_lshlrev_b32 v4, 9, v6
        v_lshl_add_u32 v4, v7, 2, v4
        v_add_u32 v4, s30, v4
        v_lshl_add_u32 v6, v1, 4, s30
        v_lshrrev_b32 v7, 3, v1
        v_lshlrev_b32 v7, 9, v7
        v_and_b32 v18, 7, v1
        v_lshl_add_u32 v7, v18, 4, v7
        s_mov_b32 s52, {NLOG2E}
        s_mov_b32 s60, {PLOG2E}
        v_mov_b32 v5, 0
        v_mov_b32 v125, 0x80008000
        s_setprio {OPT.get("gp", 0)}
        s_waitcnt vmcnt(0)
        s_barrier""")
        stamp(a, 1, ST)
        def wr(t, s):
            for hf in range(2):
                a(f"ds_read_b64_tr_b16 {vr(WOP+32*t+4*s+2*hf,2)}, v{120+t} offset:{4096*s+1024*hf}")
        GD0, GD1, CV, RB = 8, WOP, 72, 88
        for task in range(1):
            sc = (lambda r, b: f"v_mul_f32 v{r}, s52, v{r}") if task == 0 else (lambda r, b: f"v_fma_f32 v{r}, v{r}, s60, v{b}")
            per = 3 if task == 0 else 2
            ahead = 5 if task == 0 else 7
            def rd(s):
                if s < 8:
                    if task == 0: a(f"ds_read_b128 {vr(24+4*s,4)}, v{104+s}")
                    wr(0, s)
                else: wr(1, s-8)
            a(f"s_cmp_ge_u32 s2, {NG}\ns_cbranch_scc1 L1_w1b")
            for s in range(ahead): rd(s)
            if task == 1:
                a("""v_lshlrev_b32 v122, 16, v122
                v_lshlrev_b32 v123, 16, v123
                v_mul_f32 v122, s60, v122
                v_mul_f32 v123, s60, v123""")
            cnt = lambda lo, hi: sum(per if q < 8 else 2 for q in range(lo, hi))
            for s in range(8):
                a(f"s_waitcnt lgkmcnt({cnt(s+1, s+ahead)})")
                a(mfma(GD0, 24+4*s, WOP+4*s, None if s == 0 else GD0))
                rd(s+ahead)
            for s in range(8+ahead, 16): rd(s)
            a("s_waitcnt lgkmcnt(0)")
            if task == 0:
                a("s_barrier")
                stamp(a, 3, ST)
            for s in range(8):
                a(mfma(GD1, 24+4*s, WOP+32+4*s, None if s == 0 else GD1))
                if s >= 2:
                    for j in range((s-2)*3, min(16, (s-1)*3)): a(sc(GD0+j, 122))
            for j in range(16):
                a(sc(GD1+j, 123))
                a(f"""v_cvt_pk_bf16_f32 v{CV+j}, v{GD0+j}, v{GD1+j}
                ds_write_b32 v4, v{CV+j} offset:{128*(8*(j//4)+j%4)}""")
            a("s_waitcnt lgkmcnt(0)")
            if task == 0: stamp(a, 4, ST)
            for i in range(4): a(f"ds_read_b128 {vr(RB+4*i,4)}, v6 offset:{1024*i}")
            for j in range(16): a(f"v_and_b32 v{CV+j}, 0x7fff7fff, v{CV+j}\nv_pk_max_u16 v5, v5, v{CV+j}")
            for i in range(4):
                a(f"s_waitcnt lgkmcnt({3-i})\nbuffer_store_dwordx4 {vr(RB+4*i,4)}, v7, {sr(44 if task == 0 else 56, 4)}, s48 offen sc1")
                a("s_add_u32 s48, s48, 4096" if i < 3 else "s_sub_u32 s48, s48, 12288")
        stamp(a, 2, ST)
        a("""v_lshlrev_b32 v6, 16, v5
        v_and_b32 v5, 0xffff0000, v5
        v_max_u32 v5, v5, v6""")
        dpp_red(a, "v_max_u32", 5)
        lane63(a); a("ds_max_u32 v3, v5"); full(a)
        srd(a, 44, WS, MAXA, 196*4)
        a(f"""s_lshl_b32 s26, s28, 1
        s_add_u32 s26, s26, s27
        s_lshl_b32 s26, s26, 2
        s_waitcnt lgkmcnt(0)
        s_barrier
        v_cmp_eq_u32 vcc, 0, v0
        s_and_saveexec_b64 s[54:55], vcc
        s_cbranch_execz L1_exit
        ds_read_b32 v6, v3
        s_waitcnt lgkmcnt(0)
        buffer_store_dword v6, v2, s[44:47], s26 offen sc1
        s_branch L1_exit""")
        a(f"""L1_w1b:
        s_lshl_b32 s43, s27, 1
        s_add_u32 s43, s43, s40
        s_lshl_b32 s43, s43, 14
        v_lshlrev_b32 v2, 4, v1
        s_cmp_lg_u32 s41, 0
        s_cbranch_scc1 L1_exit""")
        for t in range(2):
            for s in range(8): wr(t, s)
        srd(a, 44, WS, W1BOP, 65536)
        a("s_waitcnt lgkmcnt(0)")
        for q in range(16):
            a(f"buffer_store_dwordx4 {vr(WOP+4*q,4)}, v2, s[44:47], s43 offen sc1\ns_add_u32 s43, s43, 1024")
        a("s_branch L1_exit")
    def part_role():
        a(f"L1_part:\ns_sub_u32 s56, s2, {NG+3}")
        G = EPT//4
        HIST, START, MAXW = 40960, 41984, 43008
        DV, SV, EV, AV, RV = 4, 12, 24, 40, 48
        a(f"""v_lshlrev_b32 v2, 2, v0
        v_mov_b32 v3, 0
        ds_write_b32 v2, v3 offset:{HIST}
        ds_write_b32 v2, v3 offset:{MAXW}
        v_mov_b32 v60, 0
        v_mov_b32 v61, 1
        s_mul_i32 s26, s56, {CE*4}
        s_add_u32 s27, s26, 6400
        s_mov_b32 s58, s26
        s_mov_b32 s59, s27
        s_lshl_b32 s52, s26, 1
        s_lshl_b32 s53, s27, 1
        v_lshlrev_b32 v3, 4, v0
        v_lshlrev_b32 v20, 5, v0
        v_cmp_gt_u32 vcc, 400, v0
        s_waitcnt lgkmcnt(0)""")
        stamp(a, 5, ST)
        srd(a, 28, DST, None, E*4); srd(a, 32, SRC, None, E*4); srd(a, 36, EA_, None, E*8)
        a("""s_and_saveexec_b64 s[54:55], vcc
        s_mov_b64 s[54:55], exec
        s_cbranch_execz L1_p1""")
        for g in range(G): a(f"buffer_load_dwordx4 {vr(DV+4*g,4)}, v3, s[28:31], s{26+g} offen nt")
        def late_loads():
            for g in range(G): a(f"buffer_load_dwordx4 {vr(SV+4*g,4)}, v3, s[32:35], s{58+g} offen nt")
            for g in range(G):
                a(f"buffer_load_dwordx4 {vr(EV+8*g,4)}, v20, s[36:39], s{52+g} offen nt")
                a(f"buffer_load_dwordx4 {vr(EV+8*g+4,4)}, v20, s[36:39], s{52+g} offen offset:16 nt")
        if not OPT.get("late", 1): late_loads()
        a(f"""L1_p1:
        s_mov_b64 exec, -1
        s_mul_i32 s26, s56, {CE*12}
        s_add_u32 s26, s26, {REC}""")
        srd(a, 40, WS, "s26", CE*12); srd(a, 44, WS, OFF, CH*1024); srd(a, 48, WS, MAXE, CH*4)
        a(f"""s_setprio {OPT.get("pp", 2)}
        s_barrier
        s_mov_b64 exec, s[54:55]
        s_cbranch_execz L1_p2
        s_waitcnt vmcnt({0 if OPT.get("late", 1) else 3*G})""")
        if OPT.get("late", 1): late_loads()
        stamp(a, 1, ST)
        for k in range(EPT):
            a(f"""v_mul_u32_u24 v21, 10700, v{DV+k}
            v_lshrrev_b32 v21, 19, v21
            v_lshlrev_b32 v{AV+k}, 2, v21
            ds_add_rtn_u32 v{RV+k}, v{AV+k}, v61 offset:{HIST}
            v_mul_u32_u24 v21, {NPB}, v21
            v_sub_u32 v{DV+k}, v{DV+k}, v21""")
        a(f"""L1_p2:
        s_mov_b64 exec, -1
        v_lshlrev_b32 v2, 4, v1
        s_waitcnt lgkmcnt(0)
        s_barrier""")
        stamp(a, 3, ST)
        a(f"""ds_read_b128 v[64:67], v2 offset:{HIST}
        s_waitcnt lgkmcnt(0)
        v_add_u32 v68, v64, v65
        v_add_u32 v69, v68, v66
        v_add_u32 v70, v69, v67
        v_mov_b32 v71, v70""")
        dpp_red(a, "v_add_u32", 71)
        a(f"""v_sub_u32 v56, v71, v70
        v_add_u32 v57, v56, v64
        v_add_u32 v58, v56, v68
        v_add_u32 v59, v56, v69
        ds_write_b128 v2, v[56:59] offset:{START}
        s_mov_b64 exec, s[54:55]
        s_cbranch_execz L1_p4""")
        for k in range(EPT): a(f"ds_read_b32 v{AV+k}, v{AV+k} offset:{START}")
        a(f"s_waitcnt vmcnt({2*G})")
        for k in range(EPT):
            a(f"""v_add_u32 v21, {16384-HALF}, v{SV+k}
            v_lshl_or_b32 v{SV+k}, v{DV+k}, 18, v{SV+k}
            v_lshrrev_b32 v21, 14, v21
            v_lshl_or_b32 v{SV+k}, v21, 24, v{SV+k}""")
        a("s_waitcnt vmcnt(0)")
        for k in range(EPT):
            a(f"""s_waitcnt lgkmcnt({EPT-1+k})
            v_add_u32 v{AV+k}, v{AV+k}, v{RV+k}
            v_mul_u32_u24 v{AV+k}, 12, v{AV+k}
            ds_write2_b32 v{AV+k}, v{EV+2*k}, v{EV+2*k+1} offset0:0 offset1:1
            ds_write_b32 v{AV+k}, v{SV+k} offset:8""")
        for k in range(EPT): a(f"v_dot2_f32_bf16 v{DV+k}, v{EV+2*k}, v{EV+2*k}, 0")
        for k in range(EPT): a(f"v_dot2_f32_bf16 v{DV+k}, v{EV+2*k+1}, v{EV+2*k+1}, v{DV+k}")
        a("s_nop 2")
        for k in range(0, EPT, 2): a(f"v_max3_u32 v60, v60, v{DV+k}, v{DV+k+1}")
        a("L1_p4:")
        full(a)
        dpp_red(a, "v_max_u32", 60)
        a("v_mov_b32 v62, 0")
        lane63(a); a(f"ds_max_u32 v62, v60 offset:{MAXW}"); full(a)
        stamp(a, 2, ST)
        a(f"""s_cmp_lg_u32 s3, 7
        s_cbranch_scc1 L1_p3
        v_lshl_or_b32 v64, v64, 16, v56
        v_lshl_or_b32 v65, v65, 16, v57
        v_lshl_or_b32 v66, v66, 16, v58
        v_lshl_or_b32 v67, v67, 16, v59
        v_mul_u32_u24 v2, {CH*16}, v1
        s_lshl_b32 s26, s56, 4
        buffer_store_dwordx4 v[64:67], v2, s[44:47], s26 offen sc1
        L1_p3:
        s_waitcnt lgkmcnt(0)
        s_barrier""")
        stamp(a, 4, ST)
        NO = -(-CE*12//8192)
        for i in range(NO): a(f"ds_read_b128 {vr(4+4*i,4)}, v3 offset:{8192*i}")
        a(f"ds_read_b32 v30, v62 offset:{MAXW}")
        for i in range(NO):
            a(f"s_mov_b32 s26, {8192*i}\ns_waitcnt lgkmcnt({NO-i})\nbuffer_store_dwordx4 {vr(4+4*i,4)}, v3, s[40:43], s26 offen sc1")
        a(f"""s_lshl_b32 s26, s56, 2
        v_cmp_eq_u32 vcc, 0, v0
        s_and_saveexec_b64 s[54:55], vcc
        s_cbranch_execz L1_exit
        s_waitcnt lgkmcnt(0)
        buffer_store_dword v30, v62, s[48:51], s26 offen sc1
        s_branch L1_exit""")
    if OPT.get("gfirst", 1):
        gemm_role(); part_role()
    else:
        part_role(); a("L1_gemm:"); gemm_role()
    a(f"""L1_w2:
    v_lshlrev_b32 v2, 4, v1
    s_lshl_b32 s29, s3, 13
    s_mov_b32 m0, s29
    v_mov_b32 v20, 0
    v_mov_b32 v21, 65536
    ds_write_b32 v21, v20
    v_and_b32 v11, 1, v1
    v_lshlrev_b32 v11, 5, v11
    v_bfe_u32 v12, v1, 1, 4
    v_add_u32 v11, v11, v12
    v_lshlrev_b32 v11, 1, v11
    v_lshrrev_b32 v12, 5, v1
    v_lshl_add_u32 v11, v12, 10, v11
    s_lshr_b32 s40, s3, 1
    s_lshl_b32 s40, s40, 7
    s_and_b32 s41, s3, 1
    s_lshl_b32 s41, s41, 5
    s_add_u32 s40, s40, s41
    s_add_u32 s40, s40, {256*512}
    s_waitcnt lgkmcnt(0)""")
    srd(a, 32, W2, None, 65536); srd(a, 36, W1, None, 260*512)
    srd(a, 60, B1, None, 512)
    a("""v_and_b32 v17, 31, v1
    v_lshlrev_b32 v17, 1, v17
    s_lshl_b32 s41, s3, 7
    buffer_load_ushort v18, v17, s[60:63], s41 offen
    buffer_load_ushort v19, v17, s[60:63], s41 offen offset:64
    buffer_load_ushort v8, v11, s[36:39], s40 offen
    buffer_load_ushort v9, v11, s[36:39], s40 offen offset:512""")
    for ii in range(8):
        a("buffer_load_dwordx4 v2, s[32:35], s29 offen lds")
        if ii < 7: a("s_add_u32 m0, m0, 1024\ns_add_u32 s29, s29, 1024")
    a(f"""s_and_b32 s40, s3, 3
    s_lshr_b32 s41, s3, 2
    v_bfe_u32 v5, v1, 2, 1
    v_lshlrev_b32 v5, 5, v5
    v_bfe_u32 v6, v1, 3, 1
    v_add_u32 v5, v5, v6
    v_lshrrev_b32 v6, 5, v1
    v_lshl_add_u32 v5, v6, 2, v5
    v_lshlrev_b32 v5, 8, v5
    v_bfe_u32 v6, v1, 4, 1
    v_lshl_add_u32 v5, v6, 5, v5
    v_and_b32 v6, 3, v1
    v_lshl_add_u32 v5, v6, 3, v5
    s_lshl_b32 s42, s40, 6
    s_lshl_b32 s43, s41, 15
    s_add_u32 s42, s42, s43
    v_add_u32 v5, s42, v5
    s_lshl_b32 s43, s40, 14
    s_lshl_b32 s42, s41, 13
    s_add_u32 s43, s43, s42
    s_mov_b32 s52, {NLOG2E}
    s_lshl_b32 s42, s3, 9
    v_lshlrev_b32 v3, 3, v1""")
    srd(a, 44, WS, W2OP, 65536); srd(a, 48, WS, STAT, 4096); srd(a, 56, WS, MAXW_G, 4)
    a("""s_waitcnt vmcnt(8)
    v_lshlrev_b32 v8, 16, v8
    v_lshlrev_b32 v9, 16, v9
    v_mul_f32 v8, s52, v8
    v_mul_f32 v9, s52, v9
    v_cvt_pk_bf16_f32 v15, v8, v9
    v_mul_f32 v16, v8, v8
    v_fmac_f32 v16, v9, v9
    v_lshlrev_b32 v12, 16, v15
    v_and_b32 v13, 0xffff0000, v15
    v_sub_f32 v8, v8, v12
    v_sub_f32 v9, v9, v13
    v_cvt_pk_bf16_f32 v14, v8, v9
    buffer_store_dwordx2 v[14:15], v3, s[48:51], s42 offen sc1
    v_lshlrev_b32 v18, 16, v18
    v_lshlrev_b32 v19, 16, v19
    v_mul_f32 v18, s52, v18
    v_mul_f32 v19, s52, v19
    v_lshlrev_b32 v17, 2, v17
    s_lshl_b32 s41, s3, 8""")
    srd(a, 60, WS, BIAS, 1024); srd(a, 64, WS, N*512, 1024)
    a("""buffer_store_dwordx2 v[18:19], v17, s[60:63], s41 offen sc1
    v_mov_b32 v22, 0x41c041c0
    v_mov_b32 v23, 0x7f7f7f7f
    v_cmp_gt_u32 vcc, 128, v0
    v_lshlrev_b32 v24, 2, v0
    v_cndmask_b32 v22, v23, v22, vcc
    buffer_store_dword v22, v24, s[64:67], 0 offen sc1""")
    a("v_mov_b32 v12, v16\nv_permlane32_swap_b32 v12, v16\nv_add_f32 v16, v12, v16")
    dpp_red(a, "v_max_u32", 16)
    a("""    s_waitcnt vmcnt(0)
    s_barrier""")
    lane63(a); a("ds_max_u32 v21, v16"); full(a)
    for s in range(8):
        for hf in range(2):
            row = 64*(s//4) + 16*((s//2) % 2) + 8*(s % 2) + 2*hf
            a(f"ds_read_b64_tr_b16 {vr(WOP+4*s+2*hf,2)}, v5 offset:{256*row}")
    a("s_waitcnt lgkmcnt(0)\ns_barrier\nds_read_b32 v16, v21")
    for s in range(8):
        a(f"buffer_store_dwordx4 {vr(WOP+4*s,4)}, v2, s[44:47], s43 offen sc1\ns_add_u32 s43, s43, 1024")
    srd(a, 48, WS, MAXE + CH*4, 16)
    a("""v_lshlrev_b32 v17, 2, v1
    buffer_store_dword v20, v17, s[48:51], 0 offen sc1
    s_waitcnt lgkmcnt(0)
    buffer_store_dword v16, v3, s[56:59], 0 offen sc1
    L1_exit:""")
    stamp_dump(a, ST, 127, 0)
    a("L1_exit2:\ns_endpgm")


CAPT = 60
L_IDX, L_QA, L_TBL, L_CNT, L_MISC, L_DEG, L_EA, L_P = 256, 8448, 10496, 12544, 14592, 14656, 15104, 30464
L_BT = L_P + 31*1024
L_STG = 91136
BTS = 576
L_NULL = L_BT + NPB*BTS
K2_LDS = L_STG + 65536
assert L_BT + 50*BTS <= L_STG and L_BT % 256 == 0
D0, D1, EE, TT, HQ0, HQ1, S0, S1 = 0, 16, 32, 48, 56, 60, 64, 80
ALO, AHI, ID0, ID1, A2, B2R, PP, IP = 96, (104, 112), 120, 124, (128, 132), (136, 140), 144, 148
QV, QST, RA, IB, EB, QB, PB = (156, 157), 158, 159, 163, 164, 165, 166
TID, LANE, DEG, VONE, ESIG, QOFF, L16 = 167, 168, 169, 170, 172, 173, 174
RECR, OFR, W2R, B2V = 0, 240, 176, 252
MASK = 56
S_BASE, S_LIM, S_IMASK, S_SLOW, S_N, S_T0, S_FIRST, S_BK, S_MAXC, S_SAFE, S_CUT, S_STG, S_BETA, S_NEG = range(80, 94)
S_BDONE = 23
S_CG, S_GRP, S_R2, S_N0, S_NO = 26, 27, 1, 0, 87


def valu_half(D, hq, mode, fill):
    L = [f"v_exp_f32 v{EE+j}, v{D+j}" for j in range(16)]
    p2 = lambda x: vr(x, 2)
    if mode == "o":
        L.insert(15, None)
        L[15] = f"v_pk_add_f32 {p2(TT)}, {p2(EE)}, 1.0 op_sel_hi:[1,0]"
        L[15], L[16] = L[16], L[15]
        for s in range(1, 8):
            n = D if s == 1 else TT+2
            L.append(f"v_pk_fma_f32 {p2(TT+2)}, {p2(n)}, {p2(EE+2*s)}, {p2(n)}")
            L.append(f"v_pk_fma_f32 {p2(TT+2)}, {p2(D+2*s)}, {p2(TT)}, {p2(TT+2)}")
            L.append(f"v_pk_fma_f32 {p2(TT)}, {p2(TT)}, {p2(EE+2*s)}, {p2(TT)}")
        u, nn, dd = L[-3:]
        L[-3:] = [f"v_pk_fma_f32 {p2(TT+4)}, {p2(TT)}, {p2(EE+14)}, {p2(TT)}", f"v_rcp_f32 v{TT+4}, v{TT+4}", f"v_rcp_f32 v{TT+5}, v{TT+5}", u, nn]
        if OPT.get("mix"):
            k = OPT["mix"]
            ex, pk = L[16-k:16], L[16:]
            out = []
            per = 3
            while ex or pk:
                out += pk[:per]; pk = pk[per:]
                if ex: out.append(ex.pop(0))
            L = L[:16-k] + out
        L.append(f"v_pk_mul_f32 {p2(TT+2)}, {p2(TT+2)}, {p2(TT+4)}")
        L.append(f"v_cvt_pk_bf16_f32 v{hq}, v{TT+2}, v{TT+3}")
        return L + fill
    if mode == "q":
        for q in range(2): L.append(f"v_pk_add_f32 {p2(TT+4*q)}, {p2(EE+8*q)}, 1.0 op_sel_hi:[1,0]")
        for s in range(1, 4):
            for q in range(2):
                n = D+8*q if s == 1 else TT+4*q+2
                L.append(f"v_pk_fma_f32 {p2(TT+4*q+2)}, {p2(n)}, {p2(EE+8*q+2*s)}, {p2(n)}")
            for q in range(2):
                L.append(f"v_pk_fma_f32 {p2(TT+4*q+2)}, {p2(D+8*q+2*s)}, {p2(TT+4*q)}, {p2(TT+4*q+2)}")
            for q in range(2):
                L.append(f"v_pk_fma_f32 {p2(TT+4*q)}, {p2(TT+4*q)}, {p2(EE+8*q+2*s)}, {p2(TT+4*q)}")
        for q in range(2):
            for p in range(2): L.append(f"v_rcp_f32 v{TT+4*q+p}, v{TT+4*q+p}")
        for q in range(2): L.append(f"v_pk_mul_f32 {p2(TT+4*q+2)}, {p2(TT+4*q+2)}, {p2(TT+4*q)}")
    else:
        for j in range(0, 16, 2): L.append(f"v_pk_add_f32 {p2(EE+j)}, {p2(EE+j)}, 1.0 op_sel_hi:[1,0]")
        for j in range(16): L.append(f"v_rcp_f32 v{EE+j}, v{EE+j}")
        for q in range(2): L.append(f"v_pk_mul_f32 {p2(TT+4*q+2)}, {p2(D+8*q)}, {p2(EE+8*q)}")
        for s in range(1, 4):
            for q in range(2):
                L.append(f"v_pk_fma_f32 {p2(TT+4*q+2)}, {p2(D+8*q+2*s)}, {p2(EE+8*q+2*s)}, {p2(TT+4*q+2)}")
    for q in range(2): L.append(f"v_cvt_pk_bf16_f32 v{hq+q}, v{TT+4*q+2}, v{TT+4*q+3}")
    return L + fill


def weave(V, M, pos):
    out = []
    for i, x in enumerate(V):
        out += [m for m, p in zip(M, pos) if p == i]
        out.append(x)
    return out


def incs(k): return [f"v_add_u32 v{IB}, {128*k}, v{IB}", f"v_add_u32 v{EB}, {256*k}, v{EB}", f"v_add_u32 v{QB}, {32*k}, v{QB}"]


def block(a, t, mode):
    par = t & 1
    last = 3 if mode == "o" else 1
    M1 = tmf(D1, AHI[par], A2[par], B2R[1])
    if t == 0: M1.append(mfma(S1, HQ1, PP, S1))
    M2 = tmf(D0, ALO, A2[par ^ 1], B2R[0])
    if t == last: M2.append(mfma(S0, HQ0, PP, S0))
    pos = [1, 4, 7, 10] if not OPT.get("mix") else [0, 3, 6]
    extra = (["s_waitcnt lgkmcnt(0)"] if OPT.get('gw', 1) else []) + [f"v_add_u32 v{QV[par]}, v{QV[par]}, v{QST}"]
    if t == 0: extra.append(f"v_add_u32 v{PB}, 1024, v{PB}")
    if mode == "o" and t == 2: extra += incs(4)
    if mode != "o" and t == 0: extra += incs(2)
    k = t if mode == "o" else 2*t
    L = weave(valu_half(D0, HQ0+k, mode, extra), M1, pos) + weave(valu_half(D1, HQ1+k, mode, []), M2, pos)
    if OPT["prio"]:
        L.insert(OPT["prio_at"], "s_setprio 1"); L.append("s_setprio 0")
    a("\n".join(L))


def dma(a, par):
    a(f"s_add_u32 m0, s{S_STG}, {4096*par}")
    for u in range(4):
        a(f"buffer_load_dwordx4 {vr(IP+2*u,2)}, s[36:39], 0 idxen offen lds")
        if u < 3: a("s_add_u32 m0, m0, 1024")


def rd_idx(a, t):
    for u in range(4): a(f"ds_read_b32 v{IP+2*u}, v{IB} offset:{128*t+32*u}")


def rd_rows(a, par):
    if OPT["smf"]:
        for c in range(2):
            for gi in range(4):
                a(f"ds_read_b64_tr_b16 {vr((ALO, AHI[par])[c]+2*gi,2)}, v{RA+c} offset:{4096*par+512*gi}")
        return
    for s in range(4):
        d = ALO+4*s if s < 2 else AHI[par]+4*(s-2)
        a(f"ds_read_b128 {vr(d,4)}, v{RA+s} offset:{4096*par}")


def w2chunk(a, k):
    a(f"s_lshl_b32 s96, s{S_CG}, 14\ns_add_u32 s96, s96, {4096*k}")
    for q in range(4): a(f"buffer_load_dwordx4 {vr(W2R+16*k+4*q,4)}, v{L16}, s[44:47], s96 offen offset:{1024*q}")
    if k == 0: a(f"s_lshl_b32 s96, s{S_CG}, 6\nbuffer_load_ushort v{B2V}, v175, s[48:51], s96 offen")


def group(a, par, sh=0, rdp=False, tail=True):
    a("s_waitcnt vmcnt(4)")
    rd_rows(a, par)
    a(f"ds_read_b64_tr_b16 {vr(B2R[1],2)}, v{QV[par^1]} offset:64")
    a(f"ds_read_b64_tr_b16 {vr(B2R[0],2)}, v{QV[par]}")
    a(f"ds_read2st64_b32 {vr(A2[par]+2,2)}, v{EB} offset0:{2+par+sh} offset1:{2+par+sh}")
    if rdp: a(f"ds_read_b128 {vr(PP,4)}, v{PB}")
    a(f"s_cmp_gt_u32 s{S_N}, 3\ns_cselect_b32 s38, {0 if OPT.get('nodma') else AROWS}, 0")
    if tail:
        group.n += 1
        a(f"s_cmp_gt_u32 s{S_N}, 4\ns_cbranch_scc1 L2_tr{group.n}\ns_call_b64 s[98:99], L2_w2stub\nL2_tr{group.n}:")
    a(f"s_waitcnt lgkmcnt({4 if rdp else 3})")
    dma(a, par)
    rd_idx(a, 5+par+sh)
    a(f"ds_read_b32 v{QV[par^1]}, v{QB} offset:{32*(3+par+sh)}")
    a(f"s_waitcnt lgkmcnt({5 if OPT.get('gw', 1) else 0})")
group.n = 0


def dec(a, tgt): a(f"s_sub_u32 s{S_N}, s{S_N}, 1\ns_cmp_eq_u32 s{S_N}, 0\ns_cbranch_scc1 {tgt}")


def main_loops(a):
    a("L2_loopO:")
    block(a, 0, "o"); a(f"s_sub_u32 s{S_N}, s{S_N}, 1"); group(a, 0, 2, True)
    block(a, 1, "o"); dec(a, "L2_end_odd"); group(a, 1, 2)
    a(f"s_cmp_eq_u32 s{S_NO}, 2\ns_cbranch_scc1 L2_half")
    block(a, 2, "o"); a(f"s_sub_u32 s{S_N}, s{S_N}, 1"); group(a, 0)
    block(a, 3, "o"); dec(a, "L2_end_even"); group(a, 1)
    a(f"s_sub_u32 s{S_NO}, s{S_NO}, 4\ns_cmp_lg_u32 s{S_NO}, 0\ns_cbranch_scc1 L2_loopO\ns_branch L2_loopF\nL2_half:")
    a(mfma(S0, HQ0, PP, S0)); a("\n".join(incs(2)))
    for tag, mode in (("F", "q"), ("S", "s")):
        if tag == "S": keep = a.L; a.L = []
        a(f"L2_loop{tag}:")
        block(a, 0, mode); dec(a, "L2_end_odd"); group(a, 0, 0, True)
        block(a, 1, mode); dec(a, "L2_end_even"); group(a, 1)
        a(f"s_branch L2_loop{tag}")
    a("L2_w2stub:")
    for k in range(4):
        if k < 3: a(f"s_cmp_lg_u32 s{S_N}, {4-k}\ns_cbranch_scc1 L2_st{k}")
        w2chunk(a, k)
        a("s_setpc_b64 s[98:99]")
        if k < 3: a(f"L2_st{k}:")
    a.cold += a.L; a.L = keep


def cold(a, name, fn):
    keep = a.L; a.L = []
    a(f"{name}:"); fn(); a(f"s_branch {name}_r")
    a.cold += a.L; a.L = keep
    a(f"{name}_r:")


def k2(a):
    a.cold = []
    ST = 253
    L = LANE
    PF = OPT["pf"]
    a("k2_kernel:")
    a(f"s_cmp_ge_u32 s2, {NB}\ns_cbranch_scc1 L2_exit2")
    if OPT.get("stamp"): a(f"v_mov_b32 v{ST}, 0")
    stamp(a, 0, ST)
    ldargs(a)
    a(f"""v_mov_b32 v{TID}, v0
    v_and_b32 v{L}, 63, v0
    v_lshrrev_b32 v2, 6, v0
    v_mov_b32 v{DEG}, 0
    v_readfirstlane_b32 s3, v2""")
    if OPT.get("cpf", 2) == 2: code_pf(a, "k2_kernel", "L2_last-k2_kernel", L, 10, 255, 40, 18)
    a(f"""v_mov_b32 v{VONE}, 1
    s_and_b32 s{S_BK}, s2, 7
    s_lshl_b32 s{S_BK}, s{S_BK}, 5
    s_lshr_b32 s28, s2, 3
    s_add_u32 s{S_BK}, s{S_BK}, s28
    s_mul_i32 s{S_NEG}, s{S_BK}, {NPB}
    v_lshrrev_b32 v8, {LSH}, v0
    s_and_b32 s28, s{S_BK}, 3
    s_lshl_b32 s28, s28, 2
    v_lshl_add_u32 v9, v8, 4, s28
    s_lshr_b32 s96, s{S_BK}, 2
    s_mul_i32 s96, s96, {CH*16}
    s_add_u32 s96, s96, {OFF}
    s_mov_b32 s{S_BASE}, 0
    s_mov_b32 s{S_LIM}, {3*LPS}
    s_mov_b32 s{S_IMASK}, 15
    s_mov_b32 s{S_SLOW}, 0
    s_mov_b32 s{S_FIRST}, 1
    s_mov_b32 s{S_BETA}, 0
    s_and_b32 s{S_CG}, s3, 3
    s_lshr_b32 s{S_GRP}, s3, 2
    s_lshl_b32 s{S_STG}, s3, 13
    s_add_u32 s{S_STG}, s{S_STG}, {L_STG}
    v_lshlrev_b32 v{L16}, 4, v{L}
    v_mov_b32 v{IP}, -1
    v_mov_b32 v{IP+2}, -1
    v_mov_b32 v{IP+4}, -1
    v_mov_b32 v{IP+6}, -1
    v_mov_b32 v{IP+1}, 0
    v_mov_b32 v{IP+3}, 0
    v_mov_b32 v{IP+5}, 0
    v_mov_b32 v{IP+7}, 0
    v_mov_b32 v175, 0
    v_lshrrev_b32 v3, 4, v{L}
    v_and_b32 v4, 15, v{L}
    v_xor_b32 v6, v3, v4
    v_lshlrev_b32 v6, 4, v6
    v_lshl_or_b32 v117, v3, 8, v6
    v_xor_b32 v118, 64, v117
    s_waitcnt lgkmcnt(0)""")
    stamp(a, 11, ST)
    srd(a, 28, WS, "s96", CH*16)
    for i in range(4): a(f"buffer_load_dword v{OFR+i}, v9, s[28:31], 0 offen offset:{(8192 >> LSH)*i}")
    if OPT.get("cpf", 2) in (1, 3): code_pf(a, "k2_kernel", "L2_last-k2_kernel", L, 10, 255, 40, 18)
    srd(a, 40, X, None, N*256); srd(a, 52, WS, W1BOP, 65536)
    a(f"s_mov_b32 s{S_BDONE}, 0")
    WE = 0
    srd(a, 32, WS, REC, CH*CE*12); srd(a, 36, WS, None, AROWS, stride=512)
    NZ = (L_BT - L_CNT)//16
    a(f"""s_cmp_lg_u32 s{S_GRP}, 0
    s_cbranch_scc1 L2_b2
    L2_batch:
    v_and_b32 v112, {LPS-1}, v{L}
    v_add_u32 v112, s{S_BASE}, v112
    s_add_u32 s96, s{S_BASE}, s{S_LIM}
    v_lshrrev_b32 v113, {LSH}, v{TID}
    v_mul_u32_u24 v113, {CE*12}, v113""")
    stamp(a, 12, ST)
    a("s_waitcnt vmcnt(0)")
    stamp(a, 1, ST)
    for i in range(4):
        a(f"""v_lshrrev_b32 v{104+i}, 16, v{OFR+i}
        s_bitcmp1_b32 s{S_IMASK}, {i}
        s_cselect_b32 s98, s96, 0
        v_min_u32 v{104+i}, s98, v{104+i}
        v_and_b32 v114, 0xffff, v{OFR+i}
        v_add_u32 v114, v114, v112
        v_mad_u32_u24 v{108+i}, v114, 12, v113""")
        if i < 3: a(f"v_add_u32 v113, {(512 >> LSH)*CE*12}, v113")
    def rec_loads(rnd):
        for i in range(4):
            k = 4*rnd + i
            a(f"s_mov_b64 exec, {sr(MASK+2*k,2)}\ns_cbranch_execz L2_r{k}")
            a(f"""buffer_load_dwordx3 {vr(RECR+4*k,3)}, v{108+i}, s[32:35], 0 offen offset:{12*LPS*rnd}
            L2_r{k}:""")
        full(a)
    for rnd in range(3):
        if rnd: a(f"v_add_u32 v112, {LPS}, v112")
        for i in range(4): a(f"v_cmp_lt_u32 {sr(MASK+2*(4*rnd+i),2)}, v112, v{104+i}")
        if rnd < 2: rec_loads(rnd)
    a(f"""s_or_b64 s[96:97], {sr(MASK+16,2)}, {sr(MASK+18,2)}
    s_or_b64 s[98:99], {sr(MASK+20,2)}, {sr(MASK+22,2)}
    s_or_b64 s[96:97], s[96:97], s[98:99]
    s_cselect_b32 s{S_R2}, 1, 0
    s_cbranch_scc1 L2_x0""")
    cold(a, "L2_x0", lambda: rec_loads(2))
    a(f"s_cmp_eq_u32 s{S_FIRST}, 0\ns_cbranch_scc1 L2_b2")
    a(f"""v_lshrrev_b32 v104, 16, v{OFR}
    v_lshrrev_b32 v105, 16, v{OFR+1}
    v_lshrrev_b32 v106, 16, v{OFR+2}
    v_lshrrev_b32 v107, 16, v{OFR+3}
    v_max3_u32 v104, v104, v105, v106
    v_max_u32 v254, v104, v107""")
    a(f"""    s_lshl_b32 s96, s{S_CG}, 10
    s_lshl_b32 s97, s{S_CG}, 8
    s_add_u32 s97, s97, 4096
    v_lshlrev_b32 v115, 3, v{L}
    v_and_b32 v116, 0xf8, v115""")
    srd(a, 44, WS, STAT, 8192)
    a(f"""buffer_load_dwordx2 {vr(B2R[0]+2,2)}, v115, s[44:47], s96 offen
    buffer_load_dwordx2 {vr(B2R[1]+2,2)}, v115, s[44:47], s96 offen offset:512
    buffer_load_dwordx2 v[126:127], v116, s[44:47], s97 offen""")
    a("s_cmp_eq_u32 s3, 3\ns_cbranch_scc1 L2_x1")
    def g1():
        srd(a, 44, WS, MAXA, 196*4); srd(a, 48, WS, MAXE, (CH*4+15)//16*16); srd(a, 28, WS, MAXW_G, 4)
        a(f"""v_mov_b32 v116, 0
        buffer_load_dwordx4 v[244:247], v{L16}, s[44:47], 0 offen
        buffer_load_dwordx4 v[248:251], v{L16}, s[48:51], 0 offen
        buffer_load_dword v171, v116, s[28:31], 0 offen""")
    cold(a, "L2_x1", g1)
    a(f"""s_cmp_eq_u32 s{S_GRP}, 0
    s_cbranch_scc1 L2_b2
    s_lshl_b32 s97, s{S_CG}, 12
    s_add_u32 m0, s97, {L_BT}
    s_lshl_b32 s96, s{S_NEG}, 8
    s_add_u32 s96, s96, s97""")
    for q in range(4):
        a(f"buffer_load_dwordx4 v{117+q%2}, s[40:43], s96 offen nt lds")
        if q == 1: a("v_xor_b32 v117, 128, v117\nv_xor_b32 v118, 128, v118")
        if q < 3: a("s_add_u32 m0, m0, 1024\ns_add_u32 s96, s96, 1024")
    a(f"""    s_cmp_eq_u32 s{S_GRP}, 0
    s_cbranch_scc1 L2_b2""")
    PFE = OPT.get("pfe", 0)
    if PFE:
        srd(a, 44, WS, None, N*512)
        a(f"""s_lshr_b32 s96, s2, 3
        s_lshl_b32 s96, s96, 2
        s_add_u32 s96, s96, s{S_CG}
        s_mul_i32 s96, s96, {PFE*8192}
        v_lshlrev_b32 v116, 7, v{L}""")
        for q in range(PFE):
            a(f"buffer_load_dword v255, v116, s[44:47], s96 offen")
            if q < PFE-1: a("s_add_u32 s96, s96, 8192")
    a("""s_branch L2_wrec
    L2_b2:""")
    a(f"v_lshlrev_b32 v104, 4, v{TID}")
    for j in range(4): a(f"v_mov_b32 v{96+j}, -1\nv_mov_b32 v{100+j}, 0")
    a(f"ds_write_b128 v104, v[96:99] offset:{L_IDX}")
    for i in range(6): a(f"ds_write_b128 v104, v[100:103] offset:{L_CNT + 8192*i}")
    a(f"""v_cmp_gt_u32 vcc, {NZ - 3072}, v{TID}
    v_mov_b32 v96, {L_NULL}
    v_mov_b32 v97, {L_NULL}
    s_and_b64 exec, exec, vcc
    ds_write_b128 v104, v[100:103] offset:{L_CNT + 8192*6}
    s_mov_b64 exec, -1
    v_cmp_gt_u32 vcc, 128, v{TID}
    v_mov_b32 v98, {L_NULL}
    v_mov_b32 v99, {L_NULL}
    s_and_b64 exec, exec, vcc
    ds_write_b128 v104, v[96:99] offset:{L_QA}
    s_mov_b64 exec, -1
""")
    a(f"""s_cmp_eq_u32 s{S_FIRST}, 0
    s_cbranch_scc1 L2_rank0""")
    n_, h_, one, t0, t1, t2, t3, t4, t5 = 96, 97, 98, 99, 100, 101, 102, 103, 104
    a(f"""v_and_b32 v{n_}, 31, v{L}
    v_lshrrev_b32 v{h_}, 5, v{L}
    v_and_b32 v{t0}, 1, v{L}
    v_lshlrev_b32 v{t0}, 4, v{t0}
    v_mov_b32 v{one}, 0x3f80
    v_lshlrev_b32 v{one}, v{t0}, v{one}
    v_lshrrev_b32 v{t0}, 1, v{n_}
    v_lshlrev_b32 v{t1}, 2, v{h_}
    v_sub_u32 v{t0}, v{t0}, v{t1}
    v_lshlrev_b32 v175, 1, v{n_}""")
    if not OPT['smf']:
        for q in range(8):
            a(f"v_cmp_eq_u32 {sr(94+2*(q%3),2)}, {8*(q//4) + q%4}, v{t0}")
            if q >= 1: a(f"v_cndmask_b32 v{ID0+q-1}, 0, v{one}, {sr(94+2*((q-1)%3),2)}")
        a(f"v_cndmask_b32 v{ID0+7}, 0, v{one}, {sr(94+2*(7%3),2)}")
    a(f"""v_bfe_u32 v{t1}, v{n_}, 2, 1
    v_lshrrev_b32 v{t2}, 4, v{n_}
    v_and_b32 v{t3}, 1, v{n_}
    v_xor_b32 v{t4}, v{t1}, v{h_}
    v_lshl_or_b32 v{t4}, v{t4}, 1, v{t3}
    v_cmp_eq_u32 s[94:95], 0, v{t4}
    v_cmp_eq_u32 s[96:97], 1, v{t4}
    v_lshlrev_b32 v{t4}, 4, v{t2}
    v_mov_b32 v{one}, 0x3f80
    v_lshlrev_b32 v{one}, v{t4}, v{one}
    v_cndmask_b32 v{A2[0]}, 0, v{one}, s[94:95]
    v_cndmask_b32 v{A2[0]+1}, 0, v{one}, s[96:97]
    v_cndmask_b32 v{A2[1]}, 0, v{one}, s[94:95]
    v_cndmask_b32 v{A2[1]+1}, 0, v{one}, s[96:97]
    v_lshlrev_b32 v{t1}, 4, v{t1}
    v_lshl_or_b32 v{t1}, v{t3}, 3, v{t1}
    v_lshl_or_b32 v{t1}, v{t2}, 2, v{t1}
    v_bfe_u32 v{t4}, v{n_}, 3, 1
    v_lshl_or_b32 v{t1}, v{t4}, 1, v{t1}
    v_bfe_u32 v{t5}, v{n_}, 1, 1
    v_or_b32 v{t1}, v{t1}, v{t5}
    v_lshlrev_b32 v{ESIG}, 3, v{t1}
    v_lshl_add_u32 v{ESIG}, v{h_}, 2, v{ESIG}""")
    if OPT["smf"]:
        a(f"""v_lshrrev_b32 v{t2}, 4, v{t1}
        v_bfe_u32 v{t3}, v{t1}, 2, 1
        v_lshl_or_b32 v{t2}, v{t2}, 1, v{t3}
        v_and_b32 v{t3}, 3, v{t1}
        v_lshlrev_b32 v{t4}, 2, v{t2}
        v_lshlrev_b32 v{ID1}, v{t4}, v{t3}
        v_bfe_u32 v{t3}, v{t1}, 3, 1
        v_xor_b32 v{t3}, v{t3}, v{h_}
        v_lshl_or_b32 v{t2}, v{t3}, 2, v{t2}
        v_mov_b32 v{one}, 0x3f80""")
        for q in range(4): a(f"v_cmp_eq_u32 {sr(56+0,2) if False else sr(94+2*(q%3),2)}, {q}, v{t2}" + (f"\nv_cndmask_b32 v{ID0+q-1}, 0, v{one}, {sr(94+2*((q-1)%3),2)}" if q else "\ns_nop 0"))
        a(f"""v_bfe_u32 v{t1}, v{L}, 2, 2
        v_cndmask_b32 v{ID0+3}, 0, v{one}, {sr(94,2)}
        v_lshl_add_u32 v{t2}, v{h_}, 4, v{t1}
        v_lshlrev_b32 v{t2}, 7, v{t2}
        v_lshrrev_b32 v{t1}, 1, v{t1}
        v_lshl_add_u32 v{t2}, v{t1}, 6, v{t2}
        v_bfe_u32 v{t1}, v{L}, 4, 1
        v_lshl_add_u32 v{t2}, v{t1}, 5, v{t2}
        v_and_b32 v{t3}, 3, v{L}
        v_lshl_add_u32 v{t2}, v{t3}, 3, v{t2}
        v_add_u32 v{RA}, s{S_STG}, v{t2}
        v_xor_b32 v{RA+1}, 64, v{RA}
        v_lshlrev_b32 v{t2}, 2, v{t1}""")
    else:
        a(f"""v_bfe_u32 v{t3}, v{t1}, 1, 3
        v_xor_b32 v{t3}, v{t3}, v{h_}
        v_lshlrev_b32 v{t3}, 4, v{t3}
        v_lshl_add_u32 v{t3}, v{t1}, 7, v{t3}
        v_add_u32 v{RA}, s{S_STG}, v{t3}""")
        for s in range(1, 4): a(f"v_xor_b32 v{RA+s}, {32*s}, v{RA}")
        a(f"v_lshrrev_b32 v{t2}, 4, v{L}")
    a(f"""v_and_b32 v{t3}, 7, v{L}
    v_xor_b32 v{t2}, v{t2}, v{t3}
    s_lshl_b32 s96, s{S_CG}, 7
    v_lshl_add_u32 v{IP+1}, v{t2}, 4, s96
    v_xor_b32 v{IP+3}, {0 if OPT['smf'] else 64}, v{IP+1}
    v_mov_b32 v{IP+5}, v{IP+1}
    v_mov_b32 v{IP+7}, v{IP+3}
    v_bfe_u32 v{t1}, v{L}, 4, 1
    v_lshlrev_b32 v{t1}, 5, v{t1}
    v_and_b32 v{t3}, 3, v{L}
    v_lshl_add_u32 v{t1}, v{t3}, 3, v{t1}
    v_add_u32 v{QST}, s96, v{t1}
    v_bfe_u32 v{t1}, v{L}, 2, 2
    v_lshl_add_u32 v{QOFF}, v{h_}, 2, v{t1}
    v_lshlrev_b32 v{QOFF}, 2, v{QOFF}
    s_cmp_lg_u32 s{S_GRP}, 0
    s_cbranch_scc1 L2_batch
    L2_wrec:""")
    dpp_red(a, "v_max_u32", 254)
    stamp(a, 3, ST)
    WE0 = OPT.get('we0', 0)
    WL = 8 - WE0//2
    a(f"""s_cmp_lg_u32 s{S_GRP}, 0
    s_cbranch_scc1 L2_rk1
    s_mul_i32 s99, s{S_CG}, {1024*WE0}
    s_add_u32 m0, s99, {L_STG}""")
    for q in range(WE0):
        if q % 4 == 0 and q: a("s_add_u32 m0, m0, 4096\ns_add_u32 s99, s99, 4096")
        a(f"buffer_load_dwordx4 v{L16}, s[52:55], s99 offen offset:{1024*(q%4)} lds")
    a(f"""s_waitcnt vmcnt({6+WE0})
    s_cmp_eq_u32 s3, 3
    s_cbranch_scc1 L2_rank2
    s_waitcnt vmcnt({3+WE0})
    s_branch L2_rank2
    L2_rk1:
    s_waitcnt vmcnt(7)
    s_branch L2_rank2
    L2_rank0:
    s_waitcnt vmcnt(0)
    L2_rank2:
    s_waitcnt lgkmcnt(0)
    s_barrier""")
    stamp(a, 5, ST)
    RK = 96
    def rank(ks):
        for k in ks:
            a(f"""s_mov_b64 exec, {sr(MASK+2*k,2)}
            v_lshrrev_b32 v{RK+k}, 14, v{RECR+4*k+2}
            ds_add_rtn_u32 v{RECR+4*k+3}, v{RK+k}, v{VONE} offset:{L_CNT}""")
    rank(range(8))
    a(f"s_cmp_lg_u32 s{S_R2}, 0\ns_cbranch_scc1 L2_x2")
    cold(a, "L2_x2", lambda: rank(range(8, 12)))
    a(f"""L2_k12:
    s_mov_b64 exec, -1
    v_mov_b32 v63, 0
    s_cmp_eq_u32 s{S_FIRST}, 0
    s_cbranch_scc1 L2_k13
    s_mov_b32 exec_lo, 0
    s_mov_b32 exec_hi, 0x80000000
    ds_max_u32 v63, v254 offset:{L_MISC+4}
    s_mov_b64 exec, -1""")
    if WL:
        a(f"s_mul_i32 s99, s3, {1024*WL}\ns_add_u32 s99, s99, {4096*WE0}\ns_add_u32 m0, s99, {L_STG}")
        for q in range(WL):
            if q == 4: a("s_add_u32 m0, m0, 4096\ns_add_u32 s99, s99, 4096")
            a(f"buffer_load_dwordx4 v{L16}, s[52:55], s99 offen offset:{1024*(q%4)} lds")
    a("s_cmp_eq_u32 s3, 3\ns_cbranch_scc1 L2_x3")
    def g2():
        a(f"""s_waitcnt vmcnt({WE0+WL})
        v_max3_u32 v244, v244, v245, v246
        v_max3_u32 v248, v248, v249, v250
        v_max_u32 v244, v244, v247
        v_max_u32 v248, v248, v251""")
        dpp_red(a, "v_max_u32", [244, 248])
        a(f"""v_mul_f32 v171, v171, v248
        v_sqrt_f32 v171, v171
        v_mov_b32 v54, {f2u(28.0)}
        v_add_f32 v171, v244, v171
        v_mov_b32 v55, {f2u(8.0)}
        v_cmp_nlt_f32 vcc, v171, v54
        v_cmp_nlt_f32 s[94:95], v171, v55
        v_cndmask_b32 v54, 0, v{VONE}, vcc
        v_cndmask_b32 v55, 0, v{VONE}, s[94:95]
        v_add_u32 v171, v54, v55""")
        lane63(a); a(f"ds_write_b32 v63, v171 offset:{L_MISC}"); full(a)
    cold(a, "L2_x3", g2)
    CL, CU, C_, PC, O1, O2, R3 = 48, 49, 50, 51, 52, 53, 54
    I1, I2, I3 = 56, 57, 58
    TL, TH = 108, 112
    HM = (0xffffffff << SPLIT) & 0xffffffff
    a(f"""L2_k13:
    s_waitcnt lgkmcnt(0)
    s_barrier
    ds_read_b32 v{CL}, v{L16} offset:{L_CNT}
    ds_read_b32 v{CU}, v{L16} offset:{L_CNT+1024}
    ds_read_b64 v[60:61], v63 offset:{L_MISC}
    s_waitcnt lgkmcnt(1)
    v_add_u32 v{C_}, v{CL}, v{CU}
    v_and_b32 v{O1}, -8, v{CL}
    v_add_u32 v{PC}, 3, v{C_}
    v_mov_b32 v{I1}, v{O1}
    v_and_b32 v{PC}, -4, v{PC}
    v_sub_u32 v{R3}, v{PC}, v{O1}
    v_and_b32 v{O2}, -8, v{R3}
    v_and_b32 v{R3}, 4, v{R3}
    v_mov_b32 v{I2}, v{O2}
    v_mov_b32 v{I3}, v{R3}""")
    dpp_red(a, "v_add_u32", [I1, I2, I3])
    a(f"""v_readlane_b32 s94, v{I1}, 63
    v_readlane_b32 s95, v{I2}, 63
    v_readlane_b32 s96, v{I3}, 63
    v_readlane_b32 s97, v{I1}, {SPLIT-1}
    v_readlane_b32 s98, v{I2}, {SPLIT-1}
    v_readlane_b32 s99, v{I3}, {SPLIT-1}
    v_readlane_b32 s28, v{I1}, 31
    v_sub_u32 v{I1}, v{I1}, v{O1}
    v_sub_u32 v{I2}, v{I2}, v{O2}
    v_sub_u32 v{I3}, v{I3}, v{R3}
    s_cmp_eq_u32 s{S_FIRST}, 0
    s_cbranch_scc1 L2_s1
    s_waitcnt lgkmcnt(0)
    v_readfirstlane_b32 s{S_MAXC}, v61
    v_readfirstlane_b32 s{S_SAFE}, v60
    s_mov_b32 s{S_FIRST}, 0""")
    if PF:
        srd(a, 44, WS, None, N*512)
        a(f"""s_lshr_b32 s43, s2, 3
        s_lshl_b32 s43, s43, 3
        s_add_u32 s43, s43, s3
        s_mul_i32 s43, s43, {PF*8192}
        v_lshlrev_b32 v55, 7, v{L}""")
        for q in range(PF):
            a(f"buffer_load_dword v255, v55, s[44:47], s43 offen")
            if q < PF-1: a("s_add_u32 s43, s43, 8192")
    a(f"""L2_s1:
    s_sub_u32 s94, s94, s97
    s_sub_u32 s95, s95, s98
    s_sub_u32 s96, s96, s99
    s_add_u32 s29, s97, s98
    s_add_u32 s30, s29, s99
    s_add_u32 s30, s30, 7
    s_and_b32 s30, s30, -8
    s_sub_u32 s31, s30, s97
    s_add_u32 s28, s28, s31
    s_add_u32 s40, s30, s94
    s_add_u32 s41, s40, s95
    s_add_u32 s42, s41, s96
    s_add_u32 s{S_CUT}, s42, {OPT.get('cb', 63)}
    s_lshr_b32 s{S_CUT}, s{S_CUT}, 6
    s_add_u32 s43, s30, 31
    s_lshr_b32 s43, s43, 5
    s_max_u32 s{S_CUT}, s{S_CUT}, s43
    s_add_u32 s43, s28, 31
    s_lshr_b32 s43, s43, 5
    s_min_u32 s{S_CUT}, s{S_CUT}, s43
    s_lshl_b32 s43, s{S_CUT}, 5
    s_max_u32 s43, s43, s28
    s_sub_u32 s43, s43, s28
    s_add_u32 s40, s40, s43
    s_add_u32 s41, s41, s43
    s_add_u32 s42, s42, s43
    s_sub_u32 s40, s40, s98
    s_sub_u32 s52, s41, s99
    s_mov_b32 exec_lo, {HM ^ 0xffffffff}
    s_mov_b32 exec_hi, 0
    v_add_u32 v{I2}, s97, v{I2}
    v_add_u32 v{I3}, s29, v{I3}
    s_mov_b32 exec_lo, {HM}
    s_mov_b32 exec_hi, -1
    v_add_u32 v{I1}, s31, v{I1}
    v_add_u32 v{I2}, s40, v{I2}
    v_add_u32 v{I3}, s52, v{I3}
    s_mov_b32 exec_lo, 0
    v_add_u32 v{I1}, s43, v{I1}
    s_mov_b64 exec, -1
    v_add_u32 v{O2}, v{O1}, v{O2}
    v_sub_u32 v{I2}, v{I2}, v{O1}
    v_sub_u32 v{I3}, v{I3}, v{O2}
    v_lshl_or_b32 v{TL}, v{O2}, 16, v{O1}
    v_mov_b32 v{TL+1}, v{I1}
    v_mov_b32 v{TL+2}, v{I2}
    v_mov_b32 v{TL+3}, v{I3}
    v_max_u32 v55, v{O2}, v{CL}
    v_sub_u32 v55, v55, v{CL}
    v_lshlrev_b32 v{TH}, 16, v55
    v_add_u32 v{TH+2}, v{I2}, v{CL}
    v_add_u32 v{TH+3}, v{I3}, v{CL}
    ds_write_b128 v{L16}, {vr(TL,4)} offset:{L_TBL}
    ds_write_b128 v{L16}, {vr(TH,4)} offset:{L_TBL+1024}
    s_add_u32 s96, s42, 31
    s_lshr_b32 s96, s96, 5
    s_cmp_lg_u32 s{S_SLOW}, 0
    s_cbranch_scc1 L2_s2
    s_cmp_gt_u32 s96, {CAPT}
    s_cselect_b32 s97, 1, 0
    s_cmp_gt_u32 s{S_MAXC}, {3*LPS}
    s_cselect_b32 s97, 1, s97
    s_cmp_lg_u32 s97, 0
    s_cbranch_scc1 L2_slow
    L2_s2:""")
    stamp(a, 6, ST)
    TB = W2R
    for k in range(8): a(f"s_mov_b64 exec, {sr(MASK+2*k,2)}\nds_read_b128 {vr(TB+4*k,4)}, v{RK+k} offset:{L_TBL}")
    a(f"""s_mov_b64 exec, -1
    v_add_u32 v{DEG}, v{DEG}, v{C_}
    s_lshr_b32 s29, s29, 6
    s_lshl_b32 s29, s29, 1
    s_lshr_b32 s41, s41, 5
    s_max_u32 s41, s41, s{S_CUT}
    s_sub_u32 s41, s41, s{S_CUT}
    s_and_b32 s41, s41, -2
    s_cmp_eq_u32 s{S_SAFE}, 0
    s_cselect_b32 s29, s29, 0
    s_cselect_b32 s41, s41, 0
    s_add_u32 s30, s29, 3
    s_lshr_b32 s30, s30, 2
    s_sub_u32 s31, s{S_CUT}, s29
    s_add_u32 s31, s31, 1
    s_lshr_b32 s31, s31, 1
    s_add_u32 s31, s31, s30
    s_add_u32 s40, s41, 3
    s_lshr_b32 s40, s40, 2
    s_add_u32 s40, s40, s31
    s_min_u32 s98, s{S_CUT}, s96
    s_sub_u32 s99, s96, s98
    s_cmp_eq_u32 s{S_GRP}, 0
    s_cselect_b32 s{S_N}, s98, s99
    s_cselect_b32 s{S_T0}, 0, s{S_CUT}
    s_cselect_b32 s{S_NO}, s29, s41
    s_cselect_b32 s53, 0, s31
    s_add_u32 s41, s41, s{S_CUT}
    s_lshl_b32 s30, s30, 1
    s_sub_u32 s30, s30, s29
    s_lshl_b32 s31, s31, 2
    s_sub_u32 s31, s31, s{S_CUT}
    s_lshl_b32 s40, s40, 1
    s_sub_u32 s40, s40, s41
    v_cmp_eq_u32 vcc, 0, v{R3}
    s_cmp_ge_u32 s3, 3
    s_cbranch_scc1 L2_pad
    v_add_u32 v55, s3, v{C_}
    v_cndmask_b32 v59, v{I3}, v{I2}, vcc
    v_cmp_lt_u32 vcc, v55, v{PC}
    s_lshr_b32 s96, s{S_SAFE}, 1
    s_add_u32 s96, s96, {N}
    s_and_b64 exec, exec, vcc
    v_mov_b32 v60, s96
    v_add_lshl_u32 v55, v55, v59, 2
    ds_write_b32 v55, v60 offset:{L_IDX}
    s_mov_b64 exec, -1
    L2_pad:""")
    for r in (PC, O1, O2, I1, I2, I3): a(f"v_lshrrev_b32 v{r}, 2, v{r}")
    QA_, ONE, NC1, Q, T, U, V = 48, 49, 50, 54, 55, 59, 60
    a(f"""v_mul_u32_u24 v{QA_}, {BTS}, v{L}
    v_add_u32 v{QA_}, {L_BT}, v{QA_}
    v_mov_b32 v{ONE}, 0x3f80
    v_subrev_u32 v{NC1}, {17*16}, v{L16}
    v_mov_b32 v61, s30
    v_mov_b32 v62, s40
    s_mov_b32 s97, s3
    L2_q:
    v_cmp_lt_u32 s[94:95], s97, v{O2}
    v_cmp_lt_u32 s[98:99], s97, v{O1}
    v_cmp_lt_u32 vcc, s97, v{PC}
    v_cndmask_b32 v{Q}, v{I3}, v{I2}, s[94:95]
    s_and_b64 exec, exec, vcc
    s_cbranch_execz L2_qd
    v_cndmask_b32 v{Q}, v{Q}, v{I1}, s[98:99]
    v_add_u32 v{Q}, s97, v{Q}
    v_lshrrev_b32 v{T}, 3, v{Q}
    v_lshlrev_b32 v{U}, 2, v{Q}
    ds_write_b32 v{U}, v{QA_} offset:{L_QA}
    v_cmp_le_u32 vcc, s{S_CUT}, v{T}
    v_cmp_gt_u32 s[94:95], s29, v{T}
    v_cmp_gt_u32 s[98:99], s41, v{T}
    v_and_b32 v{V}, 4, v{Q}
    v_cndmask_b32 v{U}, v{L16}, v{NC1}, vcc
    v_lshl_add_u32 v{U}, v{V}, 7, v{U}
    v_and_b32 v{V}, 2, v{Q}
    v_add_u32 v{U}, v{U}, v{V}
    s_and_b64 s[98:99], s[98:99], vcc
    s_or_b64 s[94:95], s[94:95], s[98:99]
    v_cndmask_b32 v{V}, v61, v62, vcc
    v_add_u32 v{V}, v{V}, v{T}
    v_and_b32 v{Q}, 1, v{Q}
    v_lshl_or_b32 v{Q}, v{V}, 1, v{Q}
    v_mov_b32 v{V}, s31
    v_cndmask_b32 v{V}, 0, v{V}, vcc
    v_add_u32 v{V}, v{V}, v{T}
    v_cndmask_b32 v{Q}, v{Q}, v{V}, s[94:95]
    v_and_b32 v{V}, -4, v{Q}
    v_lshl_add_u32 v{U}, v{V}, 8, v{U}
    v_and_b32 v{V}, 3, v{Q}
    v_lshl_add_u32 v{U}, v{V}, 2, v{U}
    ds_write_b16 v{U}, v{ONE} offset:{L_P}
    s_add_u32 s97, s97, 8
    s_branch L2_q
    L2_qd:
    s_mov_b64 exec, -1
    s_cmp_lg_u32 s{S_BDONE}, 0
    s_cbranch_scc1 L2_o1
    v_and_b32 v54, 31, v{L}
    v_lshrrev_b32 v55, 5, v{L}
    v_and_b32 v56, 15, v{L}
    v_xor_b32 v56, v56, v55
    v_lshlrev_b32 v56, 4, v56
    v_lshl_add_u32 v56, v54, 8, v56
    s_lshl_b32 s96, s{S_GRP}, 13
    s_add_u32 s96, s96, {L_BT}
    v_add_u32 v56, s96, v56
    s_lshl_b32 s96, s{S_CG}, 14
    s_add_u32 s96, s96, {L_STG}
    v_add_u32 v125, s96, v{L16}
    """)
    stamp(a, 16, ST)
    a(f"""s_waitcnt vmcnt({PF}) lgkmcnt(0)
    s_barrier""")
    stamp(a, 17, ST)
    for s in range(8):
        a(f"ds_read_b128 {vr(64+4*s,4)}, v56")
        if s < 7: a(f"v_xor_b32 v56, {32*(s ^ (s+1))}, v56")
    for q in range(8, 16): a(f"ds_read_b128 {vr(W2R+4*q,4)}, v125 offset:{1024*q}")
    a(f"""s_branch L2_o2
    L2_o1:
    s_waitcnt lgkmcnt(0)
    L2_o2:""")
    def scatter(ks):
        P = ((94, 96), (28, 30), (40, 42))
        def st1(k):
            r, tb = RECR+4*k+3, TB+4*(k % 8)
            a(f"""v_cmp_lt_u32_sdwa {sr(P[k%3][0],2)}, v{r}, v{tb} src0_sel:DWORD src1_sel:WORD_1
            v_cmp_lt_u32_sdwa {sr(P[k%3][1],2)}, v{r}, v{tb} src0_sel:DWORD src1_sel:WORD_0""")
        def st2(k):
            r, m, tb = RECR+4*k+3, RECR+4*k+2, TB+4*(k % 8)
            a(f"""v_cndmask_b32 v{tb+3}, v{tb+3}, v{tb+2}, {sr(P[k%3][0],2)}
            v_cndmask_b32 v{tb+3}, v{tb+3}, v{tb+1}, {sr(P[k%3][1],2)}
            v_and_b32 v{m}, {OPT.get('imask', 0x3fff)}, v{m}
            v_add_lshl_u32 v{tb+3}, v{tb+3}, v{r}, 2
            v_lshlrev_b32 v{tb}, 1, v{tb+3}""")
        st1(ks[0])
        for i, k in enumerate(ks):
            if i + 1 < len(ks): st1(ks[i+1])
            st2(k)
        for k in ks:
            tb = TB+4*(k % 8)
            a(f"""s_mov_b64 exec, {sr(MASK+2*k,2)}
            ds_write_b32 v{tb+3}, v{RECR+4*k+2} offset:{L_IDX}
            ds_write_b64 v{tb}, {vr(RECR+4*k,2)} offset:{L_EA}""")
    scatter(list(range(8)))
    a(f"s_cmp_lg_u32 s{S_R2}, 0\ns_cbranch_scc1 L2_x4")
    def sc2():
        for k2 in range(8, 12):
            a(f"""s_mov_b64 exec, {sr(MASK+2*k2,2)}
            v_lshrrev_b32 v{RK+k2-8}, 14, v{RECR+4*k2+2}
            ds_read_b128 {vr(TB+4*(k2-8),4)}, v{RK+k2-8} offset:{L_TBL}""")
        a("s_mov_b64 exec, -1\ns_waitcnt lgkmcnt(0)")
        scatter(list(range(8, 12)))
    cold(a, "L2_x4", sc2)
    a(f"""L2_c12:
    s_mov_b64 exec, -1
    s_cmp_lg_u32 s{S_BDONE}, 0
    s_cbranch_scc1 L2_c13""")
    for q in range(8): a(f"ds_read_b128 {vr(W2R+4*q,4)}, v125 offset:{1024*q}")
    a(f"""L2_c13:
    s_lshl_b32 s96, s{S_T0}, 7
    s_add_u32 s96, s96, {L_IDX-256}
    v_lshrrev_b32 v54, 3, v{L}
    v_lshl_add_u32 v{IB}, v54, 2, s96
    s_lshl_b32 s96, s{S_T0}, 8
    s_add_u32 s96, s96, {L_EA-512}
    v_add_u32 v{EB}, s96, v{ESIG}
    s_lshl_b32 s96, s{S_T0}, 5
    s_add_u32 s96, s96, {L_QA-64}
    v_add_u32 v{QB}, s96, v{QOFF}
    s_lshl_b32 s96, s53, 10
    s_add_u32 s96, s96, {L_P-1024}
    v_add_u32 v{PB}, s96, v{L16}""")
    for j in range(8): a(f"v_mov_b32 v{HQ0+j}, 0")
    for j in range(4): a(f"v_mov_b32 v{PP+j}, 0\nv_mov_b32 v{EE+2*j+1}, v{IP+2*j+1}")
    srd(a, 44, WS, W2OP, 65536); srd(a, 48, B2, None, 256)
    a(f"""s_mov_b32 s38, {AROWS}
    s_mov_b32 s{S_N0}, s{S_N}
    s_waitcnt lgkmcnt(0)
    s_barrier""")
    stamp(a, 7, ST)
    def prime01():
        rd_idx(a, 2)
        for u in range(4): a(f"ds_read_b32 v{EE+2*u}, v{IB} offset:{128*3+32*u}")
        a("s_waitcnt lgkmcnt(4)"); dma(a, 0)
        rd_idx(a, 4)
        a(f"s_add_u32 m0, s{S_STG}, 4096\ns_waitcnt lgkmcnt(4)")
        for u in range(4):
            a(f"buffer_load_dwordx4 {vr(EE+2*u,2)}, s[36:39], 0 idxen offen lds")
            if u < 3: a("s_add_u32 m0, m0, 1024")
    a(f"""s_sub_u32 s96, s{S_GRP}, s{S_BDONE}
    s_cmp_eq_u32 s96, 1
    s_cbranch_scc1 L2_p0""")
    prime01()
    a("L2_p0:")
    a(f"""ds_read_b32 v{QV[0]}, v{QB} offset:64
    ds_read_b32 v{QV[1]}, v{QB} offset:96
    ds_read2st64_b32 {vr(A2[0]+2,2)}, v{EB} offset0:2 offset1:2
    v_mov_b32 v53, 0""")
    stamp(a, 13, ST)
    a(f"""s_cmp_lg_u32 s{S_BDONE}, 0
    s_cbranch_scc1 L2_p2""")
    for s in range(8): a(mfma(0, 64+4*s, W2R+4*s, None if s == 0 else 0))
    a(f"""s_mov_b32 s94, {NLOG2E}
    s_mov_b32 s{S_BDONE}, 1
    v_lshrrev_b32 v49, 5, v{L}
    s_lshl_b32 s96, s{S_CG}, 7
    v_lshl_add_u32 v50, v175, 1, s96
    v_mul_u32_u24 v51, {4*BTS}, v49
    s_mul_i32 s96, s{S_GRP}, {32*BTS}
    s_add_u32 s96, s96, {L_BT}
    v_add3_u32 v51, v51, v50, s96
    v_mov_b32 v52, 1.0
    s_nop 1""")
    for s in range(8):
        a(mfma(16, 64+4*s, W2R+32+4*s, None if s == 0 else 16))
        for j in range(2*s, 2*s+2): a(f"v_fma_f32 v{j}, v{j}, s94, v126")
        a(f"v_max3_f32 v52, |v{2*s}|, |v{2*s+1}|, v52")
    a(mfma(S0, HQ0, PP, None)); a(mfma(S1, HQ0, PP, None))
    for j in range(16):
        if j == 8: a(f"s_cmp_eq_u32 s{S_GRP}, 0\ns_cselect_b32 exec_hi, -1, 0")
        if j == 9: a("s_cbranch_scc0 L2_bz")
        a(f"""v_fma_f32 v{16+j}, v{16+j}, s94, v127
        v_cvt_pk_bf16_f32 v{j}, v{j}, v{16+j}
        ds_write_b32 v51, v{j} offset:{(8*(j//4) + j % 4)*BTS}""")
        if j & 1: a(f"v_max3_f32 v52, |v{15+j}|, |v{16+j}|, v52")
        if j == 8: a(f"v_max_f32 v52, |v{16+j}|, v52")
    a(f"""s_branch L2_bw
    L2_bz:
    ds_write_b32 v51, v53 offset:{17*BTS}
    s_mov_b64 exec, -1
    L2_bw:
    v_cmp_neq_f32 vcc, 1.0, v52
    s_cmp_eq_u64 vcc, 0
    s_cbranch_scc1 L2_bx
    ds_write_b32 v53, v{VONE} offset:{L_MISC+8}
    L2_bx:
    s_cmp_eq_u32 s{S_GRP}, 0
    s_cbranch_scc1 L2_by""")
    prime01()
    a("L2_by:")
    stamp(a, 14, ST)
    a(f"""s_waitcnt lgkmcnt(0)
    s_barrier
    L2_p2:
    ds_read_b32 v171, v53 offset:{L_MISC+8}
    s_waitcnt lgkmcnt(1)
    v_add_u32 v{QV[0]}, v{QV[0]}, v{QST}
    v_add_u32 v{QV[1]}, v{QV[1]}, v{QST}
    s_waitcnt vmcnt(4)""")
    stamp(a, 15, ST)
    rd_rows(a, 0)
    a(f"ds_read_b64_tr_b16 {vr(B2R[0],2)}, v{QV[0]}\ns_waitcnt lgkmcnt(0)")
    for m in tmf(D0, ALO, A2[0], B2R[0]): a(m)
    dma(a, 0); rd_idx(a, 5)
    group(a, 1, tail=False)
    a(f"""v_readfirstlane_b32 s96, v171
    s_cmp_eq_u32 s{S_SAFE}, 2
    s_cselect_b32 s96, 0, s96
    s_cmp_lg_u32 s96, 0
    s_cbranch_scc1 L2_redo
    s_cmp_eq_u32 s{S_N}, 0
    s_cbranch_scc1 L2_done""")
    stamp(a, 8, ST)
    if OPT.get("stag"):
        for k in range(3): a(f"s_cmp_le_u32 s{S_CG}, {k}\ns_cbranch_scc1 L2_stag\n" + "s_nop 15\n"*OPT["stag"])
        a("L2_stag:")
    if OPT.get("stamp"): a(f"v_writelane_b32 v{ST}, s{S_N}, 30")
    a(f"s_cmp_eq_u32 s{S_SAFE}, 2\ns_cbranch_scc1 L2_loopS\ns_cmp_eq_u32 s{S_NO}, 0\ns_cbranch_scc1 L2_loopF")
    main_loops(a)
    keep = a.L; a.L = []
    a(f"""L2_slow:
    s_mov_b32 s{S_SLOW}, 1
    s_mov_b32 s{S_LIM}, {LPS}
    s_mov_b32 s{S_IMASK}, 3
    s_waitcnt lgkmcnt(0)
    s_barrier
    s_branch L2_batch
    L2_redo:
    s_mov_b32 s{S_SAFE}, 2
    v_mov_b32 v{DEG}, 0
    s_waitcnt vmcnt(0) lgkmcnt(0)
    s_barrier
    s_branch L2_batch""")
    a.cold += a.L; a.L = keep
    a(f"""L2_end_odd:
    ds_read_b128 {vr(PP,4)}, v{PB}
    s_waitcnt lgkmcnt(0)""")
    a(mfma(S0, HQ0, PP, S0))
    a("L2_end_even:")
    a(mfma(S1, HQ1, PP, S1))
    a(f"""L2_done:
    s_waitcnt vmcnt(0)
    s_cmp_eq_u32 s{S_SLOW}, 0
    s_cbranch_scc1 L2_epi
    s_add_u32 s{S_BETA}, s{S_BETA}, 1
    s_lshr_b32 s{S_BASE}, s{S_BETA}, 1
    s_lshl_b32 s{S_BASE}, s{S_BASE}, {LSH}
    s_xor_b32 s{S_IMASK}, s{S_IMASK}, 15
    s_cmp_ge_u32 s{S_BASE}, s{S_MAXC}
    s_cbranch_scc1 L2_epi
    s_barrier
    s_branch L2_batch""")
    a(f"L2_epi:\ns_cmp_gt_u32 s{S_N0}, 4\ns_cbranch_scc1 L2_epi1")
    for k in range(4): w2chunk(a, k)
    a("s_waitcnt vmcnt(0)\nL2_epi1:")
    stamp(a, 9, ST)
    a(f"""v_and_b32 v2, 31, v{L}
    v_lshrrev_b32 v3, 5, v{L}
    s_mov_b32 s94, {NLN2}
    s_mov_b32 s95, {NLN2}
    v_bfe_u32 v5, v2, 1, 3
    v_lshlrev_b32 v5, 4, v5
    v_lshl_add_u32 v5, v2, 7, v5
    v_lshl_add_u32 v6, v3, 3, v5
    v_add_u32 v6, s{S_STG}, v6""")
    for u in range(8):
        a(f"""v_xor_b32 v{32+u}, {16*u}, v6
        v_cvt_pk_bf16_f32 v{16+2*u}, v{S0+4*u}, v{S0+4*u+1}
        v_cvt_pk_bf16_f32 v{17+2*u}, v{S0+4*u+2}, v{S0+4*u+3}
        ds_write_b64 v{32+u}, {vr(16+2*u,2)}""")
    a(f"""s_cmp_lg_u32 s3, 0
    s_cbranch_scc1 L2_e1
    v_cvt_f32_u32 v8, v{DEG}
    v_lshlrev_b32 v9, 2, v{L}
    s_mov_b32 exec_hi, 0
    ds_write_b32 v9, v8 offset:{L_DEG}
    s_mov_b32 exec_lo, 0xfffe0000
    s_mov_b32 exec_hi, 0x1ffff
    ds_write_b32 v9, v8 offset:{L_DEG+128-68}
    s_mov_b64 exec, -1
    L2_e1:
    v_lshlrev_b32 v7, 4, v3
    v_xor_b32 v5, v5, v7
    s_lshl_b32 s97, s{S_GRP}, 15
    s_add_u32 s97, s97, {L_STG}
    v_add_u32 v241, s97, v5
    v_xor_b32 v242, 32, v241
    v_xor_b32 v243, 64, v241
    v_xor_b32 v244, 96, v241
    s_lshl_b32 s97, s{S_GRP}, 7
    v_lshl_add_u32 v245, v3, 4, s97
    s_lshl_b32 s96, s{S_CG}, 7
    s_add_u32 s96, s96, {L_P-512}
    v_lshlrev_b32 v246, 11, v3
    v_lshl_add_u32 v246, v2, 2, v246
    v_add_u32 v246, s96, v246
    s_mul_i32 s96, s{S_GRP}, {17*256}
    s_lshl_b32 s97, s{S_CG}, 6
    s_add_u32 s96, s96, s97
    v_lshlrev_b32 v247, 10, v3
    v_and_b32 v7, 1, v2
    v_lshl_add_u32 v247, v7, 8, v247
    v_and_b32 v8, 30, v2
    v_lshl_add_u32 v247, v8, 1, v247
    v_cmp_eq_u32 vcc, 0, v7
    v_mov_b32 v8, 0x07060302
    v_mov_b32 v9, 0x01000504
    v_cndmask_b32 v248, v8, v9, vcc
    v_add_u32 v247, s96, v247
    v_lshlrev_b32 v240, 16, v{B2V}
    s_sub_u32 s96, {N}, s{S_NEG}
    s_min_u32 s96, s96, {NPB}
    s_lshl_b32 s96, s96, 8
    s_lshl_b32 s97, s{S_NEG}, 8""")
    srd(a, 52, OUT, "s97", "s96")
    a("""s_mov_b32 s97, 4096
    s_waitcnt lgkmcnt(0)
    s_barrier""")
    for s in range(16): a(f"ds_read_b128 {vr(4*s,4)}, v{241+s%4} offset:{8192*(s//4)}")
    for jq in range(4): a(f"ds_read_b128 {vr(96+4*jq,4)}, v245 offset:{L_DEG+32*jq}")
    stamp(a, 10, ST)
    O = 64
    for s in range(16):
        a(f"s_waitcnt lgkmcnt({min(15, 19-s)})")
        a(mfma(O, 4*s, W2R+4*s, None if s == 0 else O))
    a("s_waitcnt lgkmcnt(0)")
    for j in range(16): a(f"v_mul_f32 v{96+j}, v{96+j}, v240")
    a(f"s_cmp_eq_u32 s{S_GRP}, 0\ns_cbranch_scc1 L2_e2")
    for j in range(8): a(f"ds_write_b32 v246, v{O+j} offset:{(8*(j//4)+j%4+1)*512}")
    a("""L2_e2:
    s_waitcnt lgkmcnt(0)
    s_barrier""")
    def fin(js):
        for j in js: a(f"v_fma_f32 v{O+j}, v{O+j}, s94, v{96+j}")
        for j in js[::2]: a(f"v_cvt_pk_bf16_f32 v{16+j//2}, v{O+j}, v{O+j+1}")
        for j in js[::2]: a(f"v_mov_b32_dpp v{24+j//2}, v{16+j//2} quad_perm:[1,0,3,2] row_mask:0xf bank_mask:0xf")
        for j in js[::2]: a(f"v_perm_b32 v{16+j//2}, v{16+j//2}, v{24+j//2}, v248")
    def st(j):
        off = (8*(j//4) + j % 4)*256
        return f"buffer_store_dword v{16+j//2}, v247, s[52:55], {'0' if off < 4096 else 's97'} offen offset:{off % 4096}"
    a(f"s_cmp_lg_u32 s{S_GRP}, 0\ns_cbranch_scc1 L2_e3")
    for j in range(8, 16): a(f"ds_read_b32 v{j}, v246 offset:{(8*(j//4)+j%4-16)*512}")
    fin(list(range(8)))
    for j in range(0, 8, 2): a(st(j))
    a(f"""s_waitcnt lgkmcnt(0)
    s_mov_b32 exec_lo, 0
    v_add_f32 v{O+8}, v{O+8}, v8
    s_mov_b64 exec, -1""")
    for j in range(9, 16): a(f"v_add_f32 v{O+j}, v{O+j}, v{j}")
    a("s_branch L2_e5\nL2_e3:")
    fin([6, 7])
    a("s_mov_b32 exec_lo, 0\ns_mov_b32 exec_hi, 0xaaaaaaaa")
    a(st(6)); a("s_mov_b64 exec, -1\nL2_e5:")
    fin(list(range(8, 16)))
    for j in range(8, 16, 2): a(st(j))
    stamp_dump(a, ST, 0, 1)
    a("L2_exit2:\ns_endpgm")
    a.L += a.cold
    a("L2_last:\ns_endpgm")


HEAD = """; edge-featured MPNN: K1 = edge partition by dst bucket + node tables + operand prep ; K2 = gather / silu / segment-sum / final GEMM
; @launch kernel=k1_kernel grid=({g1},1,1) block=(512,1,1) lds={l1}
; @launch kernel=k2_kernel grid=({g2},1,1) block=(512,1,1) lds={l2}
.amdgcn_target "amdgcn-amd-amdhsa--gfx950"
.text
"""
KD = """.amdhsa_kernel {name}
  .amdhsa_next_free_vgpr {v}
  .amdhsa_next_free_sgpr 102
  .amdhsa_accum_offset {v}
  .amdhsa_group_segment_fixed_size 0
  .amdhsa_kernarg_size 88
  .amdhsa_user_sgpr_count 2
  .amdhsa_user_sgpr_kernarg_segment_ptr 1
  .amdhsa_system_sgpr_workgroup_id_x 1
.end_amdhsa_kernel
"""


def build():
    out = HEAD.format(g1=K1_GRID, l1=K1_LDS, g2=NB, l2=K2_LDS)
    for name, fn in (("k1_kernel", k1), ("k2_kernel", k2)):
        a = Asm(); fn(a)
        out += f".globl {name}\n.p2align 8\n.type {name},@function\n" + a.text(verbose=OPT.get("v", 0))
    out += '.section .rodata,"a"\n.p2align 6\n' + KD.format(name="k1_kernel", v=128) + ".p2align 6\n" + KD.format(name="k2_kernel", v=256)
    return out


if __name__ == "__main__":
    open(sys.argv[1], "w").write(build())
```

```python
import sys, struct
from asmlib import Asm, vr, sr

OPT = dict(prio=1, prio_at=32, pf=1, ept=4, smf=1, gp=0, split=25, cb=95, mix=6, osc=1)
for a_ in sys.argv[2:]:
    k_, v_ = a_.split("="); OPT[k_] = int(v_)

N, E = 12500, 400000
NPB, NB = 49, 256
EPT = OPT["ept"]
CE = 400*EPT; CH = E//CE
LPS = 2*EPT
LSH = {8: 3, 16: 4}[LPS]
SPLIT, HALF = OPT.get('split', 23), 6250
AROWS = N + 2
REC = 13 << 20
OFF = 19 << 20
W2OP = 20 << 20
STAT = W2OP + 65536
BIAS = STAT + 4096
W1BOP = STAT + 8192
MAXA = W1BOP + 65536
MAXE = MAXA + 1024
MAXW_G = MAXE + 1024
STAMPS = 24 << 20
NG = 208
K1_GRID = NG + 3 + CH
K1_LDS = 65536 + 64

def f2u(x): return struct.unpack("<I", struct.pack("<f", x))[0]
NLOG2E = f2u(-1.4426950408889634)
PLOG2E = NLOG2E ^ 0x80000000
NLN2 = f2u(-0.6931471805599453)
X, EA_, SRC, DST, W1, B1, W2, B2, OUT, DBG, WS = 4, 6, 8, 10, 12, 14, 16, 18, 20, 22, 24
SHR = ["row_shr:%d row_mask:0xf bank_mask:0xf bound_ctrl:0" % i for i in (1, 2, 4, 8)]
BC15, BC31 = "row_bcast:15 row_mask:0xa bank_mask:0xf", "row_bcast:31 row_mask:0xc bank_mask:0xf"


def srd(a, d, base, add, size, stride=0):
    if add is None:
        a(f"s_mov_b32 s{d}, s{base}\ns_mov_b32 s{d+1}, s{base+1}")
    else:
        a(f"s_add_u32 s{d}, s{base}, {add}\ns_addc_u32 s{d+1}, s{base+1}, 0")
    if stride: a(f"s_or_b32 s{d+1}, s{d+1}, {stride << 16}")
    a(f"s_mov_b32 s{d+2}, {size}\ns_mov_b32 s{d+3}, 0x00020000")


def ldargs(a):
    a("""s_load_dwordx16 s[4:19], s[0:1], 0
    s_load_dwordx4 s[20:23], s[0:1], 64
    s_load_dwordx2 s[24:25], s[0:1], 80""")


def dpp_red(a, op, vs, full=True):
    if isinstance(vs, int): vs = [vs]
    for m in SHR + [BC15] + ([BC31] if full else []):
        for v in vs: a(f"{op}_dpp v{v}, v{v}, v{v} {m}")


def stamp(a, k, reg):
    if not OPT.get("stamp"): return
    a(f"s_memrealtime s[100:101]\ns_waitcnt lgkmcnt(0)\nv_writelane_b32 v{reg}, s100, {k}")
    if k in (0, 7, 8, 9, 31): a(f"s_memtime s[100:101]\ns_waitcnt lgkmcnt(0)\nv_writelane_b32 v{reg}, s100, {32+k}")


def stamp_dump(a, reg, tmp, kern):
    if not OPT.get("stamp"): return
    a("s_mov_b64 exec, -1\ns_waitcnt vmcnt(0)")
    stamp(a, 31, reg)
    a(f"""s_lshl_b32 s96, s2, 3
    s_add_u32 s96, s96, s3
    s_lshl_b32 s96, s96, 8
    s_add_u32 s96, s96, {STAMPS + kern*(1 << 20)}""")
    srd(a, 44, WS, "s96", 256)
    a(f"""v_mbcnt_lo_u32_b32 v{tmp}, -1, 0
    v_mbcnt_hi_u32_b32 v{tmp}, -1, v{tmp}
    v_lshlrev_b32 v{tmp}, 2, v{tmp}
    buffer_store_dword v{reg}, v{tmp}, s[44:47], 0 offen""")


def smf(D, B): return f"v_smfmac_f32_32x32x32_bf16 {vr(D,16)}, {vr(ID0,4)}, {vr(B,8)}, v{ID1}"
def tmf(D, rows, a2, b2):
    if OPT["smf"]: return [mfma(D, a2, b2, None), smf(D, rows)]
    return [mfma(D, rows, ID0, None), mfma(D, rows+4, ID1, D), mfma(D, a2, b2, D)]
def code_pf(a, label, size, lane, tmp, junk, sr0, lanes=16):
    if not OPT.get("cpf", 2): return
    code_pf.n += 1
    a(f"""s_getpc_b64 s[{sr0}:{sr0+1}]
    L_pc{code_pf.n}:
    s_sub_u32 s{sr0}, s{sr0}, L_pc{code_pf.n}-{label}
    s_subb_u32 s{sr0+1}, s{sr0+1}, 0
    s_cmp_lt_u32 s2, {OPT.get("cpn", 16)}
    s_cselect_b32 s{sr0+2}, {size}, 0
    s_mov_b32 s{sr0+3}, 0x00020000
    s_mul_i32 s99, s3, {128*lanes}
    v_lshlrev_b32 v{tmp}, 7, v{lane}
    s_mov_b64 exec, {(1 << lanes) - 1}
    buffer_load_dword v{junk}, v{tmp}, s[{sr0}:{sr0+3}], s99 offen
    s_mov_b64 exec, -1""")
code_pf.n = 0
def lane63(a): a("s_mov_b32 exec_lo, 0\ns_mov_b32 exec_hi, 0x80000000")
def full(a): a("s_mov_b64 exec, -1")
def mfma(D, A, B, C): return f"v_mfma_f32_32x32x16_bf16 {vr(D,16)}, {vr(A,4)}, {vr(B,4)}, " + ("0" if C is None else vr(C, 16))


def k1(a):
    ST = 126
    a("k1_kernel:")
    a(f"s_cmp_ge_u32 s2, {K1_GRID}\ns_cbranch_scc1 L1_exit2")
    if OPT.get("stamp"): a(f"v_mov_b32 v{ST}, 0")
    stamp(a, 0, ST)
    ldargs(a)
    a(f"""v_and_b32 v1, 63, v0
    v_lshrrev_b32 v2, 6, v0
    s_nop 0
    v_readfirstlane_b32 s3, v2""")
    if OPT.get("cpf", 2) >= 2: code_pf(a, "k1_kernel", "L2_last-k1_kernel", 1, 63, 63, 64, 24)
    a(f"s_cmp_gt_u32 s2, {NG+2}\ns_cbranch_scc1 L1_part" if OPT.get("gfirst", 1) else f"s_cmp_le_u32 s2, {NG+2}\ns_cbranch_scc1 L1_gemm")
    WOP = 56
    def gemm_role():
        WOP = 56
        a(f"""    s_cmp_eq_u32 s2, {NG+2}
        s_cbranch_scc1 L1_w2
        s_bfe_u32 s27, s2, 0x10003
        s_lshr_b32 s28, s2, 4
        s_lshl_b32 s28, s28, 3
        s_and_b32 s29, s2, 7
        s_add_u32 s28, s28, s29
        s_cmp_ge_u32 s2, {NG}
        s_cselect_b32 s27, s29, s27
        s_cselect_b32 s61, {128*512}, 0
        s_cbranch_scc1 L1_g1
        s_cmp_ge_u32 s28, 98
        s_cbranch_scc1 L1_exit2
        L1_g1:
        v_lshrrev_b32 v18, 4, v1
        v_and_b32 v19, 15, v1
        v_lshlrev_b32 v24, 2, v18
        v_xor_b32 v24, v24, v19
        v_lshlrev_b32 v24, 4, v24
        v_lshl_or_b32 v124, v18, 9, v24""")
        for ii in range(4):
            a(f"""v_add_u32 v20, {4*ii}, v18
            v_xor_b32 v20, v20, v19
            v_lshlrev_b32 v20, 4, v20
            v_lshl_or_b32 v{25+ii}, v18, 8, v20""")
        a(f"""v_mov_b32 v2, 0
        v_mov_b32 v3, 65536
        ds_write_b32 v3, v2
        s_lshl_b32 s43, s3, 13
        s_lshl_b32 s30, s27, 8
        s_add_u32 s43, s43, s30
        s_add_u32 s43, s43, s61
        s_lshl_b32 s31, s3, 12
        s_lshl_b32 s29, s28, 15
        s_add_u32 s29, s29, s31
        s_add_u32 m0, s31, 32768
        s_and_b32 s40, s3, 1
        s_lshr_b32 s41, s3, 1
        v_and_b32 v7, 31, v1
        v_lshlrev_b32 v20, 1, v7
        s_lshl_b32 s42, s40, 7
        s_add_u32 s42, s42, s30
        s_waitcnt lgkmcnt(0)""")
        stamp(a, 5, ST)
        srd(a, 36, X, None, N*256)
        for ii in range(4):
            a(f"buffer_load_dwordx4 v{25+ii}, s[36:39], s29 offen nt lds")
            if ii < 3: a("s_add_u32 m0, m0, 1024\ns_add_u32 s29, s29, 1024")
        a("s_mov_b32 m0, s31")
        srd(a, 32, W1, None, 260*512)
        for ii in range(4):
            a(f"buffer_load_dwordx4 v124, s[32:35], s43 offen lds")
            a("s_add_u32 m0, m0, 1024\ns_add_u32 s43, s43, 2048")
        if OPT.get("cpf", 2) == 1: code_pf(a, "k1_kernel", "L1_exit2-k1_kernel", 1, 21, 22, 64)
        stamp(a, 6, ST)
        a(f"""v_bfe_u32 v18, v1, 2, 2
        v_lshrrev_b32 v6, 5, v1
        v_lshl_add_u32 v19, v6, 3, v18
        v_lshlrev_b32 v19, 8, v19
        v_bfe_u32 v20, v1, 4, 1
        v_lshlrev_b32 v20, 5, v20
        v_and_b32 v21, 3, v1
        v_lshl_add_u32 v20, v21, 3, v20
        v_add_u32 v19, v19, v20
        s_lshl_b32 s42, s40, 1
        v_xor_b32 v20, s42, v18
        v_lshl_add_u32 v120, v20, 6, v19
        v_xor_b32 v20, 1, v20
        v_lshl_add_u32 v121, v20, 6, v19
        s_lshl_b32 s42, s41, 5
        v_add_u32 v19, s42, v7
        v_lshlrev_b32 v19, 8, v19
        v_and_b32 v20, 15, v1
        v_xor_b32 v20, v20, v6
        v_lshl_add_u32 v104, v20, 4, v19
        v_add_u32 v104, 32768, v104""")
        for s in range(1, 8): a(f"v_xor_b32 v{104+s}, {32*s}, v104")
        srd(a, 44, WS, None, N*512)
        a(f"""s_lshl_b32 s42, s28, 2
        s_add_u32 s42, s42, s41
        s_lshl_b32 s42, s42, 14
        s_lshl_b32 s48, s27, 1
        s_add_u32 s48, s48, s40
        s_lshl_b32 s48, s48, 7
        s_add_u32 s48, s42, s48
        s_add_u32 s30, s31, 32768
        v_lshlrev_b32 v4, 9, v6
        v_lshl_add_u32 v4, v7, 2, v4
        v_add_u32 v4, s30, v4
        v_lshl_add_u32 v6, v1, 4, s30
        v_lshrrev_b32 v7, 3, v1
        v_lshlrev_b32 v7, 9, v7
        v_and_b32 v18, 7, v1
        v_lshl_add_u32 v7, v18, 4, v7
        s_mov_b32 s52, {NLOG2E}
        s_mov_b32 s60, {PLOG2E}
        v_mov_b32 v5, 0
        v_mov_b32 v125, 0x80008000
        s_setprio {OPT.get("gp", 0)}
        s_waitcnt vmcnt(0)
        s_barrier""")
        stamp(a, 1, ST)
        def wr(t, s):
            for hf in range(2):
                a(f"ds_read_b64_tr_b16 {vr(WOP+32*t+4*s+2*hf,2)}, v{120+t} offset:{4096*s+1024*hf}")
        GD0, GD1, CV, RB = 8, WOP, 72, 88
        for task in range(1):
            sc = (lambda r, b: f"v_mul_f32 v{r}, s52, v{r}") if task == 0 else (lambda r, b: f"v_fma_f32 v{r}, v{r}, s60, v{b}")
            per = 3 if task == 0 else 2
            ahead = 5 if task == 0 else 7
            def rd(s):
                if s < 8:
                    if task == 0: a(f"ds_read_b128 {vr(24+4*s,4)}, v{104+s}")
                    wr(0, s)
                else: wr(1, s-8)
            a(f"s_cmp_ge_u32 s2, {NG}\ns_cbranch_scc1 L1_w1b")
            for s in range(ahead): rd(s)
            if task == 1:
                a("""v_lshlrev_b32 v122, 16, v122
                v_lshlrev_b32 v123, 16, v123
                v_mul_f32 v122, s60, v122
                v_mul_f32 v123, s60, v123""")
            cnt = lambda lo, hi: sum(per if q < 8 else 2 for q in range(lo, hi))
            for s in range(8):
                a(f"s_waitcnt lgkmcnt({cnt(s+1, s+ahead)})")
                a(mfma(GD0, 24+4*s, WOP+4*s, None if s == 0 else GD0))
                rd(s+ahead)
            for s in range(8+ahead, 16): rd(s)
            a("s_waitcnt lgkmcnt(0)")
            if task == 0:
                a("s_barrier")
                stamp(a, 3, ST)
            for s in range(8):
                a(mfma(GD1, 24+4*s, WOP+32+4*s, None if s == 0 else GD1))
                if s >= 2:
                    for j in range((s-2)*3, min(16, (s-1)*3)): a(sc(GD0+j, 122))
            for j in range(16):
                a(sc(GD1+j, 123))
                a(f"""v_cvt_pk_bf16_f32 v{CV+j}, v{GD0+j}, v{GD1+j}
                ds_write_b32 v4, v{CV+j} offset:{128*(8*(j//4)+j%4)}""")
            a("s_waitcnt lgkmcnt(0)")
            if task == 0: stamp(a, 4, ST)
            for i in range(4): a(f"ds_read_b128 {vr(RB+4*i,4)}, v6 offset:{1024*i}")
            for i in range(4):
                a(f"s_waitcnt lgkmcnt({3-i})\nbuffer_store_dwordx4 {vr(RB+4*i,4)}, v7, {sr(44 if task == 0 else 56, 4)}, s48 offen sc1")
                a("s_add_u32 s48, s48, 4096" if i < 3 else "s_sub_u32 s48, s48, 12288")
        stamp(a, 2, ST)
        for j in range(16): a(f"v_and_b32 v{CV+j}, 0x7fff7fff, v{CV+j}\nv_pk_max_u16 v5, v5, v{CV+j}")
        a("""v_lshlrev_b32 v6, 16, v5
        v_and_b32 v5, 0xffff0000, v5
        v_max_u32 v5, v5, v6""")
        dpp_red(a, "v_max_u32", 5)
        lane63(a); a("ds_max_u32 v3, v5"); full(a)
        srd(a, 44, WS, MAXA, 196*4)
        a(f"""s_lshl_b32 s26, s28, 1
        s_add_u32 s26, s26, s27
        s_lshl_b32 s26, s26, 2
        s_waitcnt lgkmcnt(0)
        s_barrier
        v_cmp_eq_u32 vcc, 0, v0
        s_and_saveexec_b64 s[54:55], vcc
        s_cbranch_execz L1_exit
        ds_read_b32 v6, v3
        s_waitcnt lgkmcnt(0)
        buffer_store_dword v6, v2, s[44:47], s26 offen sc1
        s_branch L1_exit""")
        a(f"""L1_w1b:
        s_lshl_b32 s43, s27, 1
        s_add_u32 s43, s43, s40
        s_lshl_b32 s43, s43, 14
        v_lshlrev_b32 v2, 4, v1
        s_cmp_lg_u32 s41, 0
        s_cbranch_scc1 L1_exit""")
        for t in range(2):
            for s in range(8): wr(t, s)
        srd(a, 44, WS, W1BOP, 65536)
        a("s_waitcnt lgkmcnt(0)")
        for q in range(16):
            a(f"buffer_store_dwordx4 {vr(WOP+4*q,4)}, v2, s[44:47], s43 offen sc1\ns_add_u32 s43, s43, 1024")
        a("s_branch L1_exit")
    def part_role():
        a(f"L1_part:\ns_sub_u32 s56, s2, {NG+3}")
        G = EPT//4
        HIST, START, MAXW = 40960, 41984, 43008
        DV, SV, EV, AV, RV = 4, 12, 24, 40, 48
        a(f"""v_lshlrev_b32 v2, 2, v0
        v_mov_b32 v3, 0
        ds_write_b32 v2, v3 offset:{HIST}
        ds_write_b32 v2, v3 offset:{MAXW}
        v_mov_b32 v60, 0
        v_mov_b32 v61, 1
        s_mul_i32 s26, s56, {CE*4}
        s_add_u32 s27, s26, 6400
        s_mov_b32 s58, s26
        s_mov_b32 s59, s27
        s_lshl_b32 s52, s26, 1
        s_lshl_b32 s53, s27, 1
        v_lshlrev_b32 v3, 4, v0
        v_lshlrev_b32 v20, 5, v0
        v_cmp_gt_u32 vcc, 400, v0
        s_waitcnt lgkmcnt(0)""")
        stamp(a, 5, ST)
        srd(a, 28, DST, None, E*4); srd(a, 32, SRC, None, E*4); srd(a, 36, EA_, None, E*8)
        a("""s_and_saveexec_b64 s[54:55], vcc
        s_mov_b64 s[54:55], exec
        s_cbranch_execz L1_p1""")
        for g in range(G): a(f"buffer_load_dwordx4 {vr(DV+4*g,4)}, v3, s[28:31], s{26+g} offen nt")
        def late_loads():
            for g in range(G): a(f"buffer_load_dwordx4 {vr(SV+4*g,4)}, v3, s[32:35], s{58+g} offen nt")
            for g in range(G):
                a(f"buffer_load_dwordx4 {vr(EV+8*g,4)}, v20, s[36:39], s{52+g} offen nt")
                a(f"buffer_load_dwordx4 {vr(EV+8*g+4,4)}, v20, s[36:39], s{52+g} offen offset:16 nt")
        if not OPT.get("late", 1): late_loads()
        a(f"""L1_p1:
        s_mov_b64 exec, -1
        s_mul_i32 s26, s56, {CE*12}
        s_add_u32 s26, s26, {REC}""")
        srd(a, 40, WS, "s26", CE*12); srd(a, 44, WS, OFF, CH*1024); srd(a, 48, WS, MAXE, CH*4)
        a(f"""s_setprio {OPT.get("pp", 2)}
        s_barrier
        s_mov_b64 exec, s[54:55]
        s_cbranch_execz L1_p2
        s_waitcnt vmcnt({0 if OPT.get("late", 1) else 3*G})""")
        if OPT.get("late", 1): late_loads()
        stamp(a, 1, ST)
        for k in range(EPT):
            a(f"""v_mul_u32_u24 v21, 10700, v{DV+k}
            v_lshrrev_b32 v21, 19, v21
            v_lshlrev_b32 v{AV+k}, 2, v21
            ds_add_rtn_u32 v{RV+k}, v{AV+k}, v61 offset:{HIST}
            v_mul_u32_u24 v21, {NPB}, v21
            v_sub_u32 v{DV+k}, v{DV+k}, v21""")
        a(f"""L1_p2:
        s_mov_b64 exec, -1
        v_lshlrev_b32 v2, 4, v1
        s_waitcnt lgkmcnt(0)
        s_barrier""")
        stamp(a, 3, ST)
        a(f"""ds_read_b128 v[64:67], v2 offset:{HIST}
        s_waitcnt lgkmcnt(0)
        v_add_u32 v68, v64, v65
        v_add_u32 v69, v68, v66
        v_add_u32 v70, v69, v67
        v_mov_b32 v71, v70""")
        dpp_red(a, "v_add_u32", 71)
        a(f"""v_sub_u32 v56, v71, v70
        v_add_u32 v57, v56, v64
        v_add_u32 v58, v56, v68
        v_add_u32 v59, v56, v69
        ds_write_b128 v2, v[56:59] offset:{START}
        s_mov_b64 exec, s[54:55]
        s_cbranch_execz L1_p4""")
        for k in range(EPT): a(f"ds_read_b32 v{AV+k}, v{AV+k} offset:{START}")
        a(f"s_waitcnt vmcnt({2*G})")
        for k in range(EPT):
            a(f"""v_add_u32 v21, {16384-HALF}, v{SV+k}
            v_lshl_or_b32 v{SV+k}, v{DV+k}, 18, v{SV+k}
            v_lshrrev_b32 v21, 14, v21
            v_lshl_or_b32 v{SV+k}, v21, 24, v{SV+k}""")
        a("s_waitcnt vmcnt(0)")
        for k in range(EPT):
            a(f"""s_waitcnt lgkmcnt({EPT-1+k})
            v_add_u32 v{AV+k}, v{AV+k}, v{RV+k}
            v_mul_u32_u24 v{AV+k}, 12, v{AV+k}
            ds_write2_b32 v{AV+k}, v{EV+2*k}, v{EV+2*k+1} offset0:0 offset1:1
            ds_write_b32 v{AV+k}, v{SV+k} offset:8""")
        a("L1_p4:")
        full(a)
        stamp(a, 2, ST)
        a(f"""s_cmp_lg_u32 s3, 7
        s_cbranch_scc1 L1_p3
        v_lshl_or_b32 v64, v64, 16, v56
        v_lshl_or_b32 v65, v65, 16, v57
        v_lshl_or_b32 v66, v66, 16, v58
        v_lshl_or_b32 v67, v67, 16, v59
        v_mul_u32_u24 v2, {CH*16}, v1
        s_lshl_b32 s26, s56, 4
        buffer_store_dwordx4 v[64:67], v2, s[44:47], s26 offen sc1
        L1_p3:
        s_waitcnt lgkmcnt(0)
        s_barrier""")
        stamp(a, 4, ST)
        NO = -(-CE*12//8192)
        for i in range(NO): a(f"ds_read_b128 {vr(72+4*i,4)}, v3 offset:{8192*i}")
        for i in range(NO):
            a(f"s_mov_b32 s26, {8192*i}\ns_waitcnt lgkmcnt({NO-1-i})\nbuffer_store_dwordx4 {vr(72+4*i,4)}, v3, s[40:43], s26 offen sc1")
        a("s_mov_b64 exec, s[54:55]")
        for k in range(EPT): a(f"v_dot2_f32_bf16 v{DV+k}, v{EV+2*k}, v{EV+2*k}, 0")
        for k in range(EPT): a(f"v_dot2_f32_bf16 v{DV+k}, v{EV+2*k+1}, v{EV+2*k+1}, v{DV+k}")
        a("s_nop 2")
        for k in range(0, EPT, 2): a(f"v_max3_u32 v60, v60, v{DV+k}, v{DV+k+1}")
        full(a)
        dpp_red(a, "v_max_u32", 60)
        a("v_mov_b32 v62, 0")
        lane63(a); a(f"ds_max_u32 v62, v60 offset:{MAXW}"); full(a)
        a(f"s_waitcnt lgkmcnt(0)\ns_barrier\nds_read_b32 v30, v62 offset:{MAXW}")
        a(f"""s_lshl_b32 s26, s56, 2
        v_cmp_eq_u32 vcc, 0, v0
        s_and_saveexec_b64 s[54:55], vcc
        s_cbranch_execz L1_exit
        s_waitcnt lgkmcnt(0)
        buffer_store_dword v30, v62, s[48:51], s26 offen sc1
        s_branch L1_exit""")
    if OPT.get("gfirst", 1):
        gemm_role(); part_role()
    else:
        part_role(); a("L1_gemm:"); gemm_role()
    a(f"""L1_w2:
    v_lshlrev_b32 v2, 4, v1
    s_lshl_b32 s29, s3, 13
    s_mov_b32 m0, s29
    v_mov_b32 v20, 0
    v_mov_b32 v21, 65536
    ds_write_b32 v21, v20
    v_and_b32 v11, 1, v1
    v_lshlrev_b32 v11, 5, v11
    v_bfe_u32 v12, v1, 1, 4
    v_add_u32 v11, v11, v12
    v_lshlrev_b32 v11, 1, v11
    v_lshrrev_b32 v12, 5, v1
    v_lshl_add_u32 v11, v12, 10, v11
    s_lshr_b32 s40, s3, 1
    s_lshl_b32 s40, s40, 7
    s_and_b32 s41, s3, 1
    s_lshl_b32 s41, s41, 5
    s_add_u32 s40, s40, s41
    s_add_u32 s40, s40, {256*512}
    s_waitcnt lgkmcnt(0)""")
    srd(a, 32, W2, None, 65536); srd(a, 36, W1, None, 260*512)
    srd(a, 60, B1, None, 512)
    a("""v_and_b32 v17, 31, v1
    v_lshlrev_b32 v17, 1, v17
    s_lshl_b32 s41, s3, 7
    buffer_load_ushort v18, v17, s[60:63], s41 offen
    buffer_load_ushort v19, v17, s[60:63], s41 offen offset:64
    buffer_load_ushort v8, v11, s[36:39], s40 offen
    buffer_load_ushort v9, v11, s[36:39], s40 offen offset:512""")
    for ii in range(8):
        a("buffer_load_dwordx4 v2, s[32:35], s29 offen lds")
        if ii < 7: a("s_add_u32 m0, m0, 1024\ns_add_u32 s29, s29, 1024")
    a(f"""s_and_b32 s40, s3, 3
    s_lshr_b32 s41, s3, 2
    v_bfe_u32 v5, v1, 2, 1
    v_lshlrev_b32 v5, 5, v5
    v_bfe_u32 v6, v1, 3, 1
    v_add_u32 v5, v5, v6
    v_lshrrev_b32 v6, 5, v1
    v_lshl_add_u32 v5, v6, 2, v5
    v_lshlrev_b32 v5, 8, v5
    v_bfe_u32 v6, v1, 4, 1
    v_lshl_add_u32 v5, v6, 5, v5
    v_and_b32 v6, 3, v1
    v_lshl_add_u32 v5, v6, 3, v5
    s_lshl_b32 s42, s40, 6
    s_lshl_b32 s43, s41, 15
    s_add_u32 s42, s42, s43
    v_add_u32 v5, s42, v5
    s_lshl_b32 s43, s40, 14
    s_lshl_b32 s42, s41, 13
    s_add_u32 s43, s43, s42
    s_mov_b32 s52, {NLOG2E}
    s_lshl_b32 s42, s3, 9
    v_lshlrev_b32 v3, 3, v1""")
    srd(a, 44, WS, W2OP, 65536); srd(a, 48, WS, STAT, 4096); srd(a, 56, WS, MAXW_G, 4)
    a("""s_waitcnt vmcnt(8)
    v_lshlrev_b32 v8, 16, v8
    v_lshlrev_b32 v9, 16, v9
    v_mul_f32 v8, s52, v8
    v_mul_f32 v9, s52, v9
    v_cvt_pk_bf16_f32 v15, v8, v9
    v_mul_f32 v16, v8, v8
    v_fmac_f32 v16, v9, v9
    v_lshlrev_b32 v12, 16, v15
    v_and_b32 v13, 0xffff0000, v15
    v_sub_f32 v8, v8, v12
    v_sub_f32 v9, v9, v13
    v_cvt_pk_bf16_f32 v14, v8, v9
    buffer_store_dwordx2 v[14:15], v3, s[48:51], s42 offen sc1
    v_lshlrev_b32 v18, 16, v18
    v_lshlrev_b32 v19, 16, v19
    v_mul_f32 v18, s52, v18
    v_mul_f32 v19, s52, v19
    v_lshlrev_b32 v17, 2, v17
    s_lshl_b32 s41, s3, 8""")
    srd(a, 60, WS, BIAS, 1024); srd(a, 64, WS, N*512, 1024)
    a("""buffer_store_dwordx2 v[18:19], v17, s[60:63], s41 offen sc1
    v_mov_b32 v22, 0x41c041c0
    v_mov_b32 v23, 0x7f7f7f7f
    v_cmp_gt_u32 vcc, 128, v0
    v_lshlrev_b32 v24, 2, v0
    v_cndmask_b32 v22, v23, v22, vcc
    buffer_store_dword v22, v24, s[64:67], 0 offen sc1""")
    a("v_mov_b32 v12, v16\nv_permlane32_swap_b32 v12, v16\nv_add_f32 v16, v12, v16")
    dpp_red(a, "v_max_u32", 16)
    a("""    s_waitcnt vmcnt(0)
    s_barrier""")
    lane63(a); a("ds_max_u32 v21, v16"); full(a)
    for s in range(8):
        for hf in range(2):
            row = 64*(s//4) + 16*((s//2) % 2) + 8*(s % 2) + 2*hf
            a(f"ds_read_b64_tr_b16 {vr(WOP+4*s+2*hf,2)}, v5 offset:{256*row}")
    a("s_waitcnt lgkmcnt(0)\ns_barrier\nds_read_b32 v16, v21")
    for s in range(8):
        a(f"buffer_store_dwordx4 {vr(WOP+4*s,4)}, v2, s[44:47], s43 offen sc1\ns_add_u32 s43, s43, 1024")
    srd(a, 48, WS, MAXE + CH*4, 16)
    a("""v_lshlrev_b32 v17, 2, v1
    buffer_store_dword v20, v17, s[48:51], 0 offen sc1
    s_waitcnt lgkmcnt(0)
    buffer_store_dword v16, v3, s[56:59], 0 offen sc1
    L1_exit:""")
    stamp_dump(a, ST, 127, 0)
    a("L1_exit2:\ns_endpgm")


CAPT = 60
L_IDX, L_QA, L_TBL, L_CNT, L_MISC, L_DEG, L_EA, L_P = 256, 8448, 10496, 12544, 14592, 14656, 15104, 30464
L_BT = L_P + 31*1024
L_STG = 91136
BTS = 576
L_NULL = L_BT + NPB*BTS
K2_LDS = L_STG + 65536
assert L_BT + 50*BTS <= L_STG and L_BT % 256 == 0
D0, D1, EE, TT, HQ0, HQ1, S0, S1 = 0, 16, 32, 48, 56, 60, 64, 80
ALO, AHI, ID0, ID1, A2, B2R, PP, IP = 96, (104, 112), 120, 124, (128, 132), (136, 140), 144, 148
QV, QST, RA, IB, EB, QB, PB = (156, 157), 158, 159, 163, 164, 165, 166
TID, LANE, DEG, VONE, ESIG, QOFF, L16 = 167, 168, 169, 170, 172, 173, 174
RECR, OFR, W2R, B2V = 0, 240, 176, 252
MASK = 56
S_BASE, S_LIM, S_IMASK, S_SLOW, S_N, S_T0, S_FIRST, S_BK, S_MAXC, S_SAFE, S_CUT, S_STG, S_BETA, S_NEG = range(80, 94)
S_BDONE = 23
S_CG, S_GRP, S_R2, S_N0, S_NO = 26, 27, 1, 0, 87


def valu_half(D, hq, mode, fill):
    L = [f"v_exp_f32 v{EE+j}, v{D+j}" for j in range(16)]
    p2 = lambda x: vr(x, 2)
    if mode == "o":
        L.insert(15, None)
        L[15] = f"v_pk_add_f32 {p2(TT)}, {p2(EE)}, 1.0 op_sel_hi:[1,0]"
        L[15], L[16] = L[16], L[15]
        for s in range(1, 8):
            n = D if s == 1 else TT+2
            L.append(f"v_pk_fma_f32 {p2(TT+2)}, {p2(n)}, {p2(EE+2*s)}, {p2(n)}")
            L.append(f"v_pk_fma_f32 {p2(TT+2)}, {p2(D+2*s)}, {p2(TT)}, {p2(TT+2)}")
            L.append(f"v_pk_fma_f32 {p2(TT)}, {p2(TT)}, {p2(EE+2*s)}, {p2(TT)}")
        u, nn, dd = L[-3:]
        L[-3:] = [f"v_pk_fma_f32 {p2(TT+4)}, {p2(TT)}, {p2(EE+14)}, {p2(TT)}", f"v_rcp_f32 v{TT+4}, v{TT+4}", f"v_rcp_f32 v{TT+5}, v{TT+5}", u, nn]
        if OPT.get("mix"):
            k = OPT["mix"]
            ex, pk = L[16-k:16], L[16:]
            out = []
            per = 3
            while ex or pk:
                out += pk[:per]; pk = pk[per:]
                if ex: out.append(ex.pop(0))
            L = L[:16-k] + out
        L.append(f"v_pk_mul_f32 {p2(TT+2)}, {p2(TT+2)}, {p2(TT+4)}")
        L.append(f"v_cvt_pk_bf16_f32 v{hq}, v{TT+2}, v{TT+3}")
        return L + fill
    if mode == "q":
        for q in range(2): L.append(f"v_pk_add_f32 {p2(TT+4*q)}, {p2(EE+8*q)}, 1.0 op_sel_hi:[1,0]")
        for s in range(1, 4):
            for q in range(2):
                n = D+8*q if s == 1 else TT+4*q+2
                L.append(f"v_pk_fma_f32 {p2(TT+4*q+2)}, {p2(n)}, {p2(EE+8*q+2*s)}, {p2(n)}")
            for q in range(2):
                L.append(f"v_pk_fma_f32 {p2(TT+4*q+2)}, {p2(D+8*q+2*s)}, {p2(TT+4*q)}, {p2(TT+4*q+2)}")
            for q in range(2):
                L.append(f"v_pk_fma_f32 {p2(TT+4*q)}, {p2(TT+4*q)}, {p2(EE+8*q+2*s)}, {p2(TT+4*q)}")
        for q in range(2):
            for p in range(2): L.append(f"v_rcp_f32 v{TT+4*q+p}, v{TT+4*q+p}")
        for q in range(2): L.append(f"v_pk_mul_f32 {p2(TT+4*q+2)}, {p2(TT+4*q+2)}, {p2(TT+4*q)}")
    else:
        for j in range(0, 16, 2): L.append(f"v_pk_add_f32 {p2(EE+j)}, {p2(EE+j)}, 1.0 op_sel_hi:[1,0]")
        for j in range(16): L.append(f"v_rcp_f32 v{EE+j}, v{EE+j}")
        for q in range(2): L.append(f"v_pk_mul_f32 {p2(TT+4*q+2)}, {p2(D+8*q)}, {p2(EE+8*q)}")
        for s in range(1, 4):
            for q in range(2):
                L.append(f"v_pk_fma_f32 {p2(TT+4*q+2)}, {p2(D+8*q+2*s)}, {p2(EE+8*q+2*s)}, {p2(TT+4*q+2)}")
    for q in range(2): L.append(f"v_cvt_pk_bf16_f32 v{hq+q}, v{TT+4*q+2}, v{TT+4*q+3}")
    return L + fill


def weave(V, M, pos):
    out = []
    for i, x in enumerate(V):
        out += [m for m, p in zip(M, pos) if p == i]
        out.append(x)
    return out


def incs(k): return [f"v_add_u32 v{IB}, {128*k}, v{IB}", f"v_add_u32 v{EB}, {256*k}, v{EB}", f"v_add_u32 v{QB}, {32*k}, v{QB}"]


def block(a, t, mode):
    par = t & 1
    last = 3 if mode == "o" else 1
    M1 = tmf(D1, AHI[par], A2[par], B2R[1])
    if t == 0: M1.append(mfma(S1, HQ1, PP, S1))
    M2 = tmf(D0, ALO, A2[par ^ 1], B2R[0])
    if t == last: M2.append(mfma(S0, HQ0, PP, S0))
    pos = [1, 4, 7, 10] if not OPT.get("mix") else [0, 3, 6]
    extra = (["s_waitcnt lgkmcnt(0)"] if OPT.get('gw', 1) else []) + [f"v_add_u32 v{QV[par]}, v{QV[par]}, v{QST}"]
    if t == 0: extra.append(f"v_add_u32 v{PB}, 1024, v{PB}")
    if mode == "o" and t == 2: extra += incs(4)
    if mode != "o" and t == 0: extra += incs(2)
    k = t if mode == "o" else 2*t
    L = weave(valu_half(D0, HQ0+k, mode, extra), M1, pos) + weave(valu_half(D1, HQ1+k, mode, []), M2, pos)
    if OPT["prio"]:
        L.insert(OPT["prio_at"], "s_setprio 1"); L.append("s_setprio 0")
    a("\n".join(L))


def dma(a, par):
    a(f"s_add_u32 m0, s{S_STG}, {4096*par}")
    for u in range(4):
        a(f"buffer_load_dwordx4 {vr(IP+2*u,2)}, s[36:39], 0 idxen offen lds")
        if u < 3: a("s_add_u32 m0, m0, 1024")


def rd_idx(a, t):
    for u in range(4): a(f"ds_read_b32 v{IP+2*u}, v{IB} offset:{128*t+32*u}")


def rd_rows(a, par):
    if OPT["smf"]:
        for c in range(2):
            for gi in range(4):
                a(f"ds_read_b64_tr_b16 {vr((ALO, AHI[par])[c]+2*gi,2)}, v{RA+c} offset:{4096*par+512*gi}")
        return
    for s in range(4):
        d = ALO+4*s if s < 2 else AHI[par]+4*(s-2)
        a(f"ds_read_b128 {vr(d,4)}, v{RA+s} offset:{4096*par}")


def w2chunk(a, k):
    a(f"s_lshl_b32 s96, s{S_CG}, 14\ns_add_u32 s96, s96, {4096*k}")
    for q in range(4): a(f"buffer_load_dwordx4 {vr(W2R+16*k+4*q,4)}, v{L16}, s[44:47], s96 offen offset:{1024*q}")
    if k == 0: a(f"s_lshl_b32 s96, s{S_CG}, 6\nbuffer_load_ushort v{B2V}, v175, s[48:51], s96 offen")


def group(a, par, sh=0, rdp=False, tail=True):
    a("s_waitcnt vmcnt(4)")
    rd_rows(a, par)
    a(f"ds_read_b64_tr_b16 {vr(B2R[1],2)}, v{QV[par^1]} offset:64")
    a(f"ds_read_b64_tr_b16 {vr(B2R[0],2)}, v{QV[par]}")
    a(f"ds_read2st64_b32 {vr(A2[par]+2,2)}, v{EB} offset0:{2+par+sh} offset1:{2+par+sh}")
    if rdp: a(f"ds_read_b128 {vr(PP,4)}, v{PB}")
    a(f"s_cmp_gt_u32 s{S_N}, 3\ns_cselect_b32 s38, {0 if OPT.get('nodma') else AROWS}, 0")
    if tail:
        group.n += 1
        a(f"s_cmp_gt_u32 s{S_N}, 4\ns_cbranch_scc1 L2_tr{group.n}\ns_call_b64 s[98:99], L2_w2stub\nL2_tr{group.n}:")
    a(f"s_waitcnt lgkmcnt({4 if rdp else 3})")
    dma(a, par)
    rd_idx(a, 5+par+sh)
    a(f"ds_read_b32 v{QV[par^1]}, v{QB} offset:{32*(3+par+sh)}")
    a(f"s_waitcnt lgkmcnt({5 if OPT.get('gw', 1) else 0})")
group.n = 0


def dec(a, tgt): a(f"s_sub_u32 s{S_N}, s{S_N}, 1\ns_cmp_eq_u32 s{S_N}, 0\ns_cbranch_scc1 {tgt}")


def main_loops(a):
    a("L2_loopO:")
    block(a, 0, "o"); a(f"s_sub_u32 s{S_N}, s{S_N}, 1"); group(a, 0, 2, True)
    block(a, 1, "o"); dec(a, "L2_end_odd"); group(a, 1, 2)
    a(f"s_cmp_eq_u32 s{S_NO}, 2\ns_cbranch_scc1 L2_half")
    block(a, 2, "o"); a(f"s_sub_u32 s{S_N}, s{S_N}, 1"); group(a, 0)
    block(a, 3, "o"); dec(a, "L2_end_even"); group(a, 1)
    a(f"s_sub_u32 s{S_NO}, s{S_NO}, 4\ns_cmp_lg_u32 s{S_NO}, 0\ns_cbranch_scc1 L2_loopO\ns_branch L2_loopF\nL2_half:")
    a(mfma(S0, HQ0, PP, S0)); a("\n".join(incs(2)))
    for tag, mode in (("F", "q"), ("S", "s")):
        if tag == "S": keep = a.L; a.L = []
        a(f"L2_loop{tag}:")
        block(a, 0, mode); dec(a, "L2_end_odd"); group(a, 0, 0, True)
        block(a, 1, mode); dec(a, "L2_end_even"); group(a, 1)
        a(f"s_branch L2_loop{tag}")
    a("L2_w2stub:")
    for k in range(4):
        if k < 3: a(f"s_cmp_lg_u32 s{S_N}, {4-k}\ns_cbranch_scc1 L2_st{k}")
        w2chunk(a, k)
        a("s_setpc_b64 s[98:99]")
        if k < 3: a(f"L2_st{k}:")
    a.cold += a.L; a.L = keep


def cold(a, name, fn):
    keep = a.L; a.L = []
    a(f"{name}:"); fn(); a(f"s_branch {name}_r")
    a.cold += a.L; a.L = keep
    a(f"{name}_r:")


def k2(a):
    a.cold = []
    ST = 253
    L = LANE
    PF = OPT["pf"]
    a("k2_kernel:")
    a(f"s_cmp_ge_u32 s2, {NB}\ns_cbranch_scc1 L2_exit2")
    if OPT.get("stamp"): a(f"v_mov_b32 v{ST}, 0")
    stamp(a, 0, ST)
    ldargs(a)
    a(f"""v_mov_b32 v{TID}, v0
    v_and_b32 v{L}, 63, v0
    v_lshrrev_b32 v2, 6, v0
    v_mov_b32 v{DEG}, 0
    v_readfirstlane_b32 s3, v2""")
    if OPT.get("cpf", 2) == 2: code_pf(a, "k2_kernel", "L2_last-k2_kernel", L, 10, 255, 40, 18)
    a(f"""v_mov_b32 v{VONE}, 1
    s_and_b32 s{S_BK}, s2, 7
    s_lshl_b32 s{S_BK}, s{S_BK}, 5
    s_lshr_b32 s28, s2, 3
    s_add_u32 s{S_BK}, s{S_BK}, s28
    s_mul_i32 s{S_NEG}, s{S_BK}, {NPB}
    v_lshrrev_b32 v8, {LSH}, v0
    s_and_b32 s28, s{S_BK}, 3
    s_lshl_b32 s28, s28, 2
    v_lshl_add_u32 v9, v8, 4, s28
    s_lshr_b32 s96, s{S_BK}, 2
    s_mul_i32 s96, s96, {CH*16}
    s_add_u32 s96, s96, {OFF}
    s_mov_b32 s{S_BASE}, 0
    s_mov_b32 s{S_LIM}, {3*LPS}
    s_mov_b32 s{S_IMASK}, 15
    s_mov_b32 s{S_SLOW}, 0
    s_mov_b32 s{S_FIRST}, 1
    s_mov_b32 s{S_BETA}, 0
    s_and_b32 s{S_CG}, s3, 3
    s_lshr_b32 s{S_GRP}, s3, 2
    s_lshl_b32 s{S_STG}, s3, 13
    s_add_u32 s{S_STG}, s{S_STG}, {L_STG}
    v_lshlrev_b32 v{L16}, 4, v{L}
    v_mov_b32 v{IP}, -1
    v_mov_b32 v{IP+2}, -1
    v_mov_b32 v{IP+4}, -1
    v_mov_b32 v{IP+6}, -1
    v_mov_b32 v{IP+1}, 0
    v_mov_b32 v{IP+3}, 0
    v_mov_b32 v{IP+5}, 0
    v_mov_b32 v{IP+7}, 0
    v_mov_b32 v175, 0
    v_lshrrev_b32 v3, 4, v{L}
    v_and_b32 v4, 15, v{L}
    v_xor_b32 v6, v3, v4
    v_lshlrev_b32 v6, 4, v6
    v_lshl_or_b32 v117, v3, 8, v6
    v_xor_b32 v118, 64, v117
    s_waitcnt lgkmcnt(0)""")
    stamp(a, 11, ST)
    srd(a, 28, WS, "s96", CH*16)
    for i in range(4): a(f"buffer_load_dword v{OFR+i}, v9, s[28:31], 0 offen offset:{(8192 >> LSH)*i}")
    if OPT.get("cpf", 2) in (1, 3): code_pf(a, "k2_kernel", "L2_last-k2_kernel", L, 10, 255, 40, 18)
    srd(a, 40, X, None, N*256); srd(a, 52, WS, W1BOP, 65536)
    a(f"s_mov_b32 s{S_BDONE}, 0")
    WE = 0
    srd(a, 32, WS, REC, CH*CE*12); srd(a, 36, WS, None, AROWS, stride=512)
    NZ = (L_BT - L_CNT)//16
    a(f"""s_cmp_lg_u32 s{S_GRP}, 0
    s_cbranch_scc1 L2_b2
    L2_batch:
    v_and_b32 v112, {LPS-1}, v{L}
    v_add_u32 v112, s{S_BASE}, v112
    s_add_u32 s96, s{S_BASE}, s{S_LIM}
    v_lshrrev_b32 v113, {LSH}, v{TID}
    v_mul_u32_u24 v113, {CE*12}, v113""")
    stamp(a, 12, ST)
    a("s_waitcnt vmcnt(0)")
    stamp(a, 1, ST)
    for i in range(4):
        a(f"""v_lshrrev_b32 v{104+i}, 16, v{OFR+i}
        s_bitcmp1_b32 s{S_IMASK}, {i}
        s_cselect_b32 s98, s96, 0
        v_min_u32 v{104+i}, s98, v{104+i}
        v_and_b32 v114, 0xffff, v{OFR+i}
        v_add_u32 v114, v114, v112
        v_mad_u32_u24 v{108+i}, v114, 12, v113""")
        if i < 3: a(f"v_add_u32 v113, {(512 >> LSH)*CE*12}, v113")
    def rec_loads(rnd):
        for i in range(4):
            k = 4*rnd + i
            a(f"s_mov_b64 exec, {sr(MASK+2*k,2)}\ns_cbranch_execz L2_r{k}")
            a(f"""buffer_load_dwordx3 {vr(RECR+4*k,3)}, v{108+i}, s[32:35], 0 offen offset:{12*LPS*rnd}
            L2_r{k}:""")
        full(a)
    for rnd in range(3):
        if rnd: a(f"v_add_u32 v112, {LPS}, v112")
        for i in range(4): a(f"v_cmp_lt_u32 {sr(MASK+2*(4*rnd+i),2)}, v112, v{104+i}")
        if rnd < 2: rec_loads(rnd)
    a(f"""s_or_b64 s[96:97], {sr(MASK+16,2)}, {sr(MASK+18,2)}
    s_or_b64 s[98:99], {sr(MASK+20,2)}, {sr(MASK+22,2)}
    s_or_b64 s[96:97], s[96:97], s[98:99]
    s_cselect_b32 s{S_R2}, 1, 0
    s_cbranch_scc1 L2_x0""")
    cold(a, "L2_x0", lambda: rec_loads(2))
    a(f"s_cmp_eq_u32 s{S_FIRST}, 0\ns_cbranch_scc1 L2_b2")
    a(f"""v_lshrrev_b32 v104, 16, v{OFR}
    v_lshrrev_b32 v105, 16, v{OFR+1}
    v_lshrrev_b32 v106, 16, v{OFR+2}
    v_lshrrev_b32 v107, 16, v{OFR+3}
    v_max3_u32 v104, v104, v105, v106
    v_max_u32 v254, v104, v107""")
    a(f"""    s_lshl_b32 s96, s{S_CG}, 10
    s_lshl_b32 s97, s{S_CG}, 8
    s_add_u32 s97, s97, 4096
    v_lshlrev_b32 v115, 3, v{L}
    v_and_b32 v116, 0xf8, v115""")
    srd(a, 44, WS, STAT, 8192)
    a(f"""buffer_load_dwordx2 {vr(B2R[0]+2,2)}, v115, s[44:47], s96 offen
    buffer_load_dwordx2 {vr(B2R[1]+2,2)}, v115, s[44:47], s96 offen offset:512
    buffer_load_dwordx2 v[126:127], v116, s[44:47], s97 offen""")
    a("s_cmp_eq_u32 s3, 3\ns_cbranch_scc1 L2_x1")
    def g1():
        srd(a, 44, WS, MAXA, 196*4); srd(a, 48, WS, MAXE, (CH*4+15)//16*16); srd(a, 28, WS, MAXW_G, 4)
        a(f"""v_mov_b32 v116, 0
        buffer_load_dwordx4 v[244:247], v{L16}, s[44:47], 0 offen
        buffer_load_dwordx4 v[248:251], v{L16}, s[48:51], 0 offen
        buffer_load_dword v171, v116, s[28:31], 0 offen""")
    cold(a, "L2_x1", g1)
    a(f"""s_cmp_eq_u32 s{S_GRP}, 0
    s_cbranch_scc1 L2_b2
    s_lshl_b32 s97, s{S_CG}, 12
    s_add_u32 m0, s97, {L_BT}
    s_lshl_b32 s96, s{S_NEG}, 8
    s_add_u32 s96, s96, s97""")
    for q in range(4):
        a(f"buffer_load_dwordx4 v{117+q%2}, s[40:43], s96 offen nt lds")
        if q == 1: a("v_xor_b32 v117, 128, v117\nv_xor_b32 v118, 128, v118")
        if q < 3: a("s_add_u32 m0, m0, 1024\ns_add_u32 s96, s96, 1024")
    a(f"""    s_cmp_eq_u32 s{S_GRP}, 0
    s_cbranch_scc1 L2_b2""")
    PFE = OPT.get("pfe", 0)
    if PFE:
        srd(a, 44, WS, None, N*512)
        a(f"""s_lshr_b32 s96, s2, 3
        s_lshl_b32 s96, s96, 2
        s_add_u32 s96, s96, s{S_CG}
        s_mul_i32 s96, s96, {PFE*8192}
        v_lshlrev_b32 v116, 7, v{L}""")
        for q in range(PFE):
            a(f"buffer_load_dword v255, v116, s[44:47], s96 offen")
            if q < PFE-1: a("s_add_u32 s96, s96, 8192")
    a("""s_branch L2_wrec
    L2_b2:""")
    a(f"v_lshlrev_b32 v104, 4, v{TID}")
    for j in range(4): a(f"v_mov_b32 v{96+j}, -1\nv_mov_b32 v{100+j}, 0")
    a(f"ds_write_b128 v104, v[96:99] offset:{L_IDX}")
    for i in range(6): a(f"ds_write_b128 v104, v[100:103] offset:{L_CNT + 8192*i}")
    a(f"""v_cmp_gt_u32 vcc, {NZ - 3072}, v{TID}
    v_mov_b32 v96, {L_NULL}
    v_mov_b32 v97, {L_NULL}
    s_and_b64 exec, exec, vcc
    ds_write_b128 v104, v[100:103] offset:{L_CNT + 8192*6}
    s_mov_b64 exec, -1
    v_cmp_gt_u32 vcc, 128, v{TID}
    v_mov_b32 v98, {L_NULL}
    v_mov_b32 v99, {L_NULL}
    s_and_b64 exec, exec, vcc
    ds_write_b128 v104, v[96:99] offset:{L_QA}
    s_mov_b64 exec, -1
""")
    a(f"""s_cmp_eq_u32 s{S_FIRST}, 0
    s_cbranch_scc1 L2_rank0""")
    n_, h_, one, t0, t1, t2, t3, t4, t5 = 96, 97, 98, 99, 100, 101, 102, 103, 104
    a(f"""v_and_b32 v{n_}, 31, v{L}
    v_lshrrev_b32 v{h_}, 5, v{L}
    v_and_b32 v{t0}, 1, v{L}
    v_lshlrev_b32 v{t0}, 4, v{t0}
    v_mov_b32 v{one}, 0x3f80
    v_lshlrev_b32 v{one}, v{t0}, v{one}
    v_lshrrev_b32 v{t0}, 1, v{n_}
    v_lshlrev_b32 v{t1}, 2, v{h_}
    v_sub_u32 v{t0}, v{t0}, v{t1}
    v_lshlrev_b32 v175, 1, v{n_}""")
    if not OPT['smf']:
        for q in range(8):
            a(f"v_cmp_eq_u32 {sr(94+2*(q%3),2)}, {8*(q//4) + q%4}, v{t0}")
            if q >= 1: a(f"v_cndmask_b32 v{ID0+q-1}, 0, v{one}, {sr(94+2*((q-1)%3),2)}")
        a(f"v_cndmask_b32 v{ID0+7}, 0, v{one}, {sr(94+2*(7%3),2)}")
    a(f"""v_bfe_u32 v{t1}, v{n_}, 2, 1
    v_lshrrev_b32 v{t2}, 4, v{n_}
    v_and_b32 v{t3}, 1, v{n_}
    v_xor_b32 v{t4}, v{t1}, v{h_}
    v_lshl_or_b32 v{t4}, v{t4}, 1, v{t3}
    v_cmp_eq_u32 s[94:95], 0, v{t4}
    v_cmp_eq_u32 s[96:97], 1, v{t4}
    v_lshlrev_b32 v{t4}, 4, v{t2}
    v_mov_b32 v{one}, 0x3f80
    v_lshlrev_b32 v{one}, v{t4}, v{one}
    v_cndmask_b32 v{A2[0]}, 0, v{one}, s[94:95]
    v_cndmask_b32 v{A2[0]+1}, 0, v{one}, s[96:97]
    v_cndmask_b32 v{A2[1]}, 0, v{one}, s[94:95]
    v_cndmask_b32 v{A2[1]+1}, 0, v{one}, s[96:97]
    v_lshlrev_b32 v{t1}, 4, v{t1}
    v_lshl_or_b32 v{t1}, v{t3}, 3, v{t1}
    v_lshl_or_b32 v{t1}, v{t2}, 2, v{t1}
    v_bfe_u32 v{t4}, v{n_}, 3, 1
    v_lshl_or_b32 v{t1}, v{t4}, 1, v{t1}
    v_bfe_u32 v{t5}, v{n_}, 1, 1
    v_or_b32 v{t1}, v{t1}, v{t5}
    v_lshlrev_b32 v{ESIG}, 3, v{t1}
    v_lshl_add_u32 v{ESIG}, v{h_}, 2, v{ESIG}""")
    if OPT["smf"]:
        a(f"""v_lshrrev_b32 v{t2}, 4, v{t1}
        v_bfe_u32 v{t3}, v{t1}, 2, 1
        v_lshl_or_b32 v{t2}, v{t2}, 1, v{t3}
        v_and_b32 v{t3}, 3, v{t1}
        v_lshlrev_b32 v{t4}, 2, v{t2}
        v_lshlrev_b32 v{ID1}, v{t4}, v{t3}
        v_bfe_u32 v{t3}, v{t1}, 3, 1
        v_xor_b32 v{t3}, v{t3}, v{h_}
        v_lshl_or_b32 v{t2}, v{t3}, 2, v{t2}
        v_mov_b32 v{one}, 0x3f80""")
        for q in range(4): a(f"v_cmp_eq_u32 {sr(56+0,2) if False else sr(94+2*(q%3),2)}, {q}, v{t2}" + (f"\nv_cndmask_b32 v{ID0+q-1}, 0, v{one}, {sr(94+2*((q-1)%3),2)}" if q else "\ns_nop 0"))
        a(f"""v_bfe_u32 v{t1}, v{L}, 2, 2
        v_cndmask_b32 v{ID0+3}, 0, v{one}, {sr(94,2)}
        v_lshl_add_u32 v{t2}, v{h_}, 4, v{t1}
        v_lshlrev_b32 v{t2}, 7, v{t2}
        v_lshrrev_b32 v{t1}, 1, v{t1}
        v_lshl_add_u32 v{t2}, v{t1}, 6, v{t2}
        v_bfe_u32 v{t1}, v{L}, 4, 1
        v_lshl_add_u32 v{t2}, v{t1}, 5, v{t2}
        v_and_b32 v{t3}, 3, v{L}
        v_lshl_add_u32 v{t2}, v{t3}, 3, v{t2}
        v_add_u32 v{RA}, s{S_STG}, v{t2}
        v_xor_b32 v{RA+1}, 64, v{RA}
        v_lshlrev_b32 v{t2}, 2, v{t1}""")
    else:
        a(f"""v_bfe_u32 v{t3}, v{t1}, 1, 3
        v_xor_b32 v{t3}, v{t3}, v{h_}
        v_lshlrev_b32 v{t3}, 4, v{t3}
        v_lshl_add_u32 v{t3}, v{t1}, 7, v{t3}
        v_add_u32 v{RA}, s{S_STG}, v{t3}""")
        for s in range(1, 4): a(f"v_xor_b32 v{RA+s}, {32*s}, v{RA}")
        a(f"v_lshrrev_b32 v{t2}, 4, v{L}")
    a(f"""v_and_b32 v{t3}, 7, v{L}
    v_xor_b32 v{t2}, v{t2}, v{t3}
    s_lshl_b32 s96, s{S_CG}, 7
    v_lshl_add_u32 v{IP+1}, v{t2}, 4, s96
    v_xor_b32 v{IP+3}, {0 if OPT['smf'] else 64}, v{IP+1}
    v_mov_b32 v{IP+5}, v{IP+1}
    v_mov_b32 v{IP+7}, v{IP+3}
    v_bfe_u32 v{t1}, v{L}, 4, 1
    v_lshlrev_b32 v{t1}, 5, v{t1}
    v_and_b32 v{t3}, 3, v{L}
    v_lshl_add_u32 v{t1}, v{t3}, 3, v{t1}
    v_add_u32 v{QST}, s96, v{t1}
    v_bfe_u32 v{t1}, v{L}, 2, 2
    v_lshl_add_u32 v{QOFF}, v{h_}, 2, v{t1}
    v_lshlrev_b32 v{QOFF}, 2, v{QOFF}
    s_cmp_lg_u32 s{S_GRP}, 0
    s_cbranch_scc1 L2_batch
    L2_wrec:""")
    dpp_red(a, "v_max_u32", 254)
    stamp(a, 3, ST)
    WE0 = OPT.get('we0', 0)
    WL = 8 - WE0//2
    a(f"""s_cmp_lg_u32 s{S_GRP}, 0
    s_cbranch_scc1 L2_rk1
    s_mul_i32 s99, s{S_CG}, {1024*WE0}
    s_add_u32 m0, s99, {L_STG}""")
    for q in range(WE0):
        if q % 4 == 0 and q: a("s_add_u32 m0, m0, 4096\ns_add_u32 s99, s99, 4096")
        a(f"buffer_load_dwordx4 v{L16}, s[52:55], s99 offen offset:{1024*(q%4)} lds")
    a(f"""s_waitcnt vmcnt({6+WE0})
    s_cmp_eq_u32 s3, 3
    s_cbranch_scc1 L2_rank2
    s_waitcnt vmcnt({3+WE0})
    s_branch L2_rank2
    L2_rk1:
    s_waitcnt vmcnt(7)
    s_branch L2_rank2
    L2_rank0:
    s_waitcnt vmcnt(0)
    L2_rank2:
    s_waitcnt lgkmcnt(0)
    s_barrier""")
    stamp(a, 5, ST)
    RK = 96
    def rank(ks):
        for k in ks:
            a(f"""s_mov_b64 exec, {sr(MASK+2*k,2)}
            v_lshrrev_b32 v{RK+k}, 14, v{RECR+4*k+2}
            ds_add_rtn_u32 v{RECR+4*k+3}, v{RK+k}, v{VONE} offset:{L_CNT}""")
    rank(range(8))
    a(f"s_cmp_lg_u32 s{S_R2}, 0\ns_cbranch_scc1 L2_x2")
    cold(a, "L2_x2", lambda: rank(range(8, 12)))
    a(f"""L2_k12:
    s_mov_b64 exec, -1
    v_mov_b32 v63, 0
    s_cmp_eq_u32 s{S_FIRST}, 0
    s_cbranch_scc1 L2_k13
    s_mov_b32 exec_lo, 0
    s_mov_b32 exec_hi, 0x80000000
    ds_max_u32 v63, v254 offset:{L_MISC+4}
    s_mov_b64 exec, -1""")
    if WL:
        a(f"s_mul_i32 s99, s3, {1024*WL}\ns_add_u32 s99, s99, {4096*WE0}\ns_add_u32 m0, s99, {L_STG}")
        for q in range(WL):
            if q == 4: a("s_add_u32 m0, m0, 4096\ns_add_u32 s99, s99, 4096")
            a(f"buffer_load_dwordx4 v{L16}, s[52:55], s99 offen offset:{1024*(q%4)} lds")
    a("s_cmp_eq_u32 s3, 3\ns_cbranch_scc1 L2_x3")
    def g2():
        a(f"""s_waitcnt vmcnt({WE0+WL})
        v_max3_u32 v244, v244, v245, v246
        v_max3_u32 v248, v248, v249, v250
        v_max_u32 v244, v244, v247
        v_max_u32 v248, v248, v251""")
        dpp_red(a, "v_max_u32", [244, 248])
        a(f"""v_mul_f32 v171, v171, v248
        v_sqrt_f32 v171, v171
        v_mov_b32 v54, {f2u(28.0)}
        v_add_f32 v171, v244, v171
        v_mov_b32 v55, {f2u(8.0)}
        v_cmp_nlt_f32 vcc, v171, v54
        v_cmp_nlt_f32 s[94:95], v171, v55
        v_cndmask_b32 v54, 0, v{VONE}, vcc
        v_cndmask_b32 v55, 0, v{VONE}, s[94:95]
        v_add_u32 v171, v54, v55""")
        lane63(a); a(f"ds_write_b32 v63, v171 offset:{L_MISC}"); full(a)
    cold(a, "L2_x3", g2)
    CL, CU, C_, PC, O1, O2, R3 = 48, 49, 50, 51, 52, 53, 54
    I1, I2, I3 = 56, 57, 58
    TL, TH = 108, 112
    HM = (0xffffffff << SPLIT) & 0xffffffff
    a(f"""L2_k13:
    s_waitcnt lgkmcnt(0)
    s_barrier
    ds_read_b32 v{CL}, v{L16} offset:{L_CNT}
    ds_read_b32 v{CU}, v{L16} offset:{L_CNT+1024}
    ds_read_b64 v[60:61], v63 offset:{L_MISC}
    s_waitcnt lgkmcnt(1)
    v_add_u32 v{C_}, v{CL}, v{CU}
    v_and_b32 v{O1}, -8, v{CL}
    v_add_u32 v{PC}, 3, v{C_}
    v_mov_b32 v{I1}, v{O1}
    v_and_b32 v{PC}, -4, v{PC}
    v_sub_u32 v{R3}, v{PC}, v{O1}
    v_and_b32 v{O2}, -8, v{R3}
    v_and_b32 v{R3}, 4, v{R3}
    v_mov_b32 v{I2}, v{O2}
    v_mov_b32 v{I3}, v{R3}""")
    dpp_red(a, "v_add_u32", [I1, I2, I3])
    a(f"""v_readlane_b32 s94, v{I1}, 63
    v_readlane_b32 s95, v{I2}, 63
    v_readlane_b32 s96, v{I3}, 63
    v_readlane_b32 s97, v{I1}, {SPLIT-1}
    v_readlane_b32 s98, v{I2}, {SPLIT-1}
    v_readlane_b32 s99, v{I3}, {SPLIT-1}
    v_readlane_b32 s28, v{I1}, 31
    v_sub_u32 v{I1}, v{I1}, v{O1}
    v_sub_u32 v{I2}, v{I2}, v{O2}
    v_sub_u32 v{I3}, v{I3}, v{R3}
    s_cmp_eq_u32 s{S_FIRST}, 0
    s_cbranch_scc1 L2_s1
    s_waitcnt lgkmcnt(0)
    v_readfirstlane_b32 s{S_MAXC}, v61
    v_readfirstlane_b32 s{S_SAFE}, v60
    s_mov_b32 s{S_FIRST}, 0""")
    if PF:
        srd(a, 44, WS, None, N*512)
        a(f"""s_lshr_b32 s43, s2, 3
        s_lshl_b32 s43, s43, 3
        s_add_u32 s43, s43, s3
        s_mul_i32 s43, s43, {PF*8192}
        v_lshlrev_b32 v55, 7, v{L}""")
        for q in range(PF):
            a(f"buffer_load_dword v255, v55, s[44:47], s43 offen")
            if q < PF-1: a("s_add_u32 s43, s43, 8192")
    a(f"""L2_s1:
    s_sub_u32 s94, s94, s97
    s_sub_u32 s95, s95, s98
    s_sub_u32 s96, s96, s99
    s_add_u32 s29, s97, s98
    s_add_u32 s30, s29, s99
    s_add_u32 s30, s30, 7
    s_and_b32 s30, s30, -8
    s_sub_u32 s31, s30, s97
    s_add_u32 s28, s28, s31
    s_add_u32 s40, s30, s94
    s_add_u32 s41, s40, s95
    s_add_u32 s42, s41, s96
    s_add_u32 s{S_CUT}, s42, {OPT.get('cb', 63)}
    s_lshr_b32 s{S_CUT}, s{S_CUT}, 6
    s_add_u32 s43, s30, 31
    s_lshr_b32 s43, s43, 5
    s_max_u32 s{S_CUT}, s{S_CUT}, s43
    s_add_u32 s43, s28, 31
    s_lshr_b32 s43, s43, 5
    s_min_u32 s{S_CUT}, s{S_CUT}, s43
    s_lshl_b32 s43, s{S_CUT}, 5
    s_max_u32 s43, s43, s28
    s_sub_u32 s43, s43, s28
    s_add_u32 s40, s40, s43
    s_add_u32 s41, s41, s43
    s_add_u32 s42, s42, s43
    s_sub_u32 s40, s40, s98
    s_sub_u32 s52, s41, s99
    s_mov_b32 exec_lo, {HM ^ 0xffffffff}
    s_mov_b32 exec_hi, 0
    v_add_u32 v{I2}, s97, v{I2}
    v_add_u32 v{I3}, s29, v{I3}
    s_mov_b32 exec_lo, {HM}
    s_mov_b32 exec_hi, -1
    v_add_u32 v{I1}, s31, v{I1}
    v_add_u32 v{I2}, s40, v{I2}
    v_add_u32 v{I3}, s52, v{I3}
    s_mov_b32 exec_lo, 0
    v_add_u32 v{I1}, s43, v{I1}
    s_mov_b64 exec, -1
    v_add_u32 v{O2}, v{O1}, v{O2}
    v_sub_u32 v{I2}, v{I2}, v{O1}
    v_sub_u32 v{I3}, v{I3}, v{O2}
    v_lshl_or_b32 v{TL}, v{O2}, 16, v{O1}
    v_mov_b32 v{TL+1}, v{I1}
    v_mov_b32 v{TL+2}, v{I2}
    v_mov_b32 v{TL+3}, v{I3}
    v_max_u32 v55, v{O2}, v{CL}
    v_sub_u32 v55, v55, v{CL}
    v_lshlrev_b32 v{TH}, 16, v55
    v_add_u32 v{TH+2}, v{I2}, v{CL}
    v_add_u32 v{TH+3}, v{I3}, v{CL}
    ds_write_b128 v{L16}, {vr(TL,4)} offset:{L_TBL}
    ds_write_b128 v{L16}, {vr(TH,4)} offset:{L_TBL+1024}
    s_add_u32 s96, s42, 31
    s_lshr_b32 s96, s96, 5
    s_cmp_lg_u32 s{S_SLOW}, 0
    s_cbranch_scc1 L2_s2
    s_cmp_gt_u32 s96, {CAPT}
    s_cselect_b32 s97, 1, 0
    s_cmp_gt_u32 s{S_MAXC}, {3*LPS}
    s_cselect_b32 s97, 1, s97
    s_cmp_lg_u32 s97, 0
    s_cbranch_scc1 L2_slow
    L2_s2:""")
    stamp(a, 6, ST)
    TB = W2R
    for k in range(8): a(f"s_mov_b64 exec, {sr(MASK+2*k,2)}\nds_read_b128 {vr(TB+4*k,4)}, v{RK+k} offset:{L_TBL}")
    a(f"""s_mov_b64 exec, -1
    v_add_u32 v{DEG}, v{DEG}, v{C_}
    s_lshr_b32 s29, s29, 6
    s_lshl_b32 s29, s29, 1
    s_lshr_b32 s41, s41, 5
    s_max_u32 s41, s41, s{S_CUT}
    s_sub_u32 s41, s41, s{S_CUT}
    s_and_b32 s41, s41, -2
    s_cmp_eq_u32 s{S_SAFE}, 0
    s_cselect_b32 s29, s29, 0
    s_cselect_b32 s41, s41, 0
    s_add_u32 s30, s29, 3
    s_lshr_b32 s30, s30, 2
    s_sub_u32 s31, s{S_CUT}, s29
    s_add_u32 s31, s31, 1
    s_lshr_b32 s31, s31, 1
    s_add_u32 s31, s31, s30
    s_add_u32 s40, s41, 3
    s_lshr_b32 s40, s40, 2
    s_add_u32 s40, s40, s31
    s_min_u32 s98, s{S_CUT}, s96
    s_sub_u32 s99, s96, s98
    s_cmp_eq_u32 s{S_GRP}, 0
    s_cselect_b32 s{S_N}, s98, s99
    s_cselect_b32 s{S_T0}, 0, s{S_CUT}
    s_cselect_b32 s{S_NO}, s29, s41
    s_cselect_b32 s53, 0, s31
    s_add_u32 s41, s41, s{S_CUT}
    s_lshl_b32 s30, s30, 1
    s_sub_u32 s30, s30, s29
    s_lshl_b32 s31, s31, 2
    s_sub_u32 s31, s31, s{S_CUT}
    s_lshl_b32 s40, s40, 1
    s_sub_u32 s40, s40, s41
    v_cmp_eq_u32 vcc, 0, v{R3}
    s_cmp_ge_u32 s3, 3
    s_cbranch_scc1 L2_pad
    v_add_u32 v55, s3, v{C_}
    v_cndmask_b32 v59, v{I3}, v{I2}, vcc
    v_cmp_lt_u32 vcc, v55, v{PC}
    s_lshr_b32 s96, s{S_SAFE}, 1
    s_add_u32 s96, s96, {N}
    s_and_b64 exec, exec, vcc
    v_mov_b32 v60, s96
    v_add_lshl_u32 v55, v55, v59, 2
    ds_write_b32 v55, v60 offset:{L_IDX}
    s_mov_b64 exec, -1
    L2_pad:""")
    for r in (PC, O1, O2, I1, I2, I3): a(f"v_lshrrev_b32 v{r}, 2, v{r}")
    QA_, ONE, NC1, Q, T, U, V = 48, 49, 50, 54, 55, 59, 60
    a(f"""v_mul_u32_u24 v{QA_}, {BTS}, v{L}
    v_add_u32 v{QA_}, {L_BT}, v{QA_}
    v_mov_b32 v{ONE}, 0x3f80
    v_subrev_u32 v{NC1}, {17*16}, v{L16}
    v_mov_b32 v61, s30
    v_mov_b32 v62, s40
    s_mov_b32 s97, s3
    L2_q:
    v_cmp_lt_u32 s[94:95], s97, v{O2}
    v_cmp_lt_u32 s[98:99], s97, v{O1}
    v_cmp_lt_u32 vcc, s97, v{PC}
    v_cndmask_b32 v{Q}, v{I3}, v{I2}, s[94:95]
    s_and_b64 exec, exec, vcc
    s_cbranch_execz L2_qd
    v_cndmask_b32 v{Q}, v{Q}, v{I1}, s[98:99]
    v_add_u32 v{Q}, s97, v{Q}
    v_lshrrev_b32 v{T}, 3, v{Q}
    v_lshlrev_b32 v{U}, 2, v{Q}
    ds_write_b32 v{U}, v{QA_} offset:{L_QA}
    v_cmp_le_u32 vcc, s{S_CUT}, v{T}
    v_cmp_gt_u32 s[94:95], s29, v{T}
    v_cmp_gt_u32 s[98:99], s41, v{T}
    v_and_b32 v{V}, 4, v{Q}
    v_cndmask_b32 v{U}, v{L16}, v{NC1}, vcc
    v_lshl_add_u32 v{U}, v{V}, 7, v{U}
    v_and_b32 v{V}, 2, v{Q}
    v_add_u32 v{U}, v{U}, v{V}
    s_and_b64 s[98:99], s[98:99], vcc
    s_or_b64 s[94:95], s[94:95], s[98:99]
    v_cndmask_b32 v{V}, v61, v62, vcc
    v_add_u32 v{V}, v{V}, v{T}
    v_and_b32 v{Q}, 1, v{Q}
    v_lshl_or_b32 v{Q}, v{V}, 1, v{Q}
    v_mov_b32 v{V}, s31
    v_cndmask_b32 v{V}, 0, v{V}, vcc
    v_add_u32 v{V}, v{V}, v{T}
    v_cndmask_b32 v{Q}, v{Q}, v{V}, s[94:95]
    v_and_b32 v{V}, -4, v{Q}
    v_lshl_add_u32 v{U}, v{V}, 8, v{U}
    v_and_b32 v{V}, 3, v{Q}
    v_lshl_add_u32 v{U}, v{V}, 2, v{U}
    ds_write_b16 v{U}, v{ONE} offset:{L_P}
    s_add_u32 s97, s97, 8
    s_branch L2_q
    L2_qd:
    s_mov_b64 exec, -1
    s_cmp_lg_u32 s{S_BDONE}, 0
    s_cbranch_scc1 L2_o1
    v_and_b32 v54, 31, v{L}
    v_lshrrev_b32 v55, 5, v{L}
    v_and_b32 v56, 15, v{L}
    v_xor_b32 v56, v56, v55
    v_lshlrev_b32 v56, 4, v56
    v_lshl_add_u32 v56, v54, 8, v56
    s_lshl_b32 s96, s{S_GRP}, 13
    s_add_u32 s96, s96, {L_BT}
    v_add_u32 v56, s96, v56
    s_lshl_b32 s96, s{S_CG}, 14
    s_add_u32 s96, s96, {L_STG}
    v_add_u32 v125, s96, v{L16}
    """)
    stamp(a, 16, ST)
    a(f"""s_waitcnt vmcnt({PF}) lgkmcnt(0)
    s_barrier""")
    stamp(a, 17, ST)
    for s in range(8):
        a(f"ds_read_b128 {vr(64+4*s,4)}, v56")
        if s < 7: a(f"v_xor_b32 v56, {32*(s ^ (s+1))}, v56")
    for q in range(8, 16): a(f"ds_read_b128 {vr(W2R+4*q,4)}, v125 offset:{1024*q}")
    a(f"""s_branch L2_o2
    L2_o1:
    s_waitcnt lgkmcnt(0)
    L2_o2:""")
    def scatter(ks):
        P = ((94, 96), (28, 30), (40, 42))
        def st1(k):
            r, tb = RECR+4*k+3, TB+4*(k % 8)
            a(f"""v_cmp_lt_u32_sdwa {sr(P[k%3][0],2)}, v{r}, v{tb} src0_sel:DWORD src1_sel:WORD_1
            v_cmp_lt_u32_sdwa {sr(P[k%3][1],2)}, v{r}, v{tb} src0_sel:DWORD src1_sel:WORD_0""")
        def st2(k):
            r, m, tb = RECR+4*k+3, RECR+4*k+2, TB+4*(k % 8)
            a(f"""v_cndmask_b32 v{tb+3}, v{tb+3}, v{tb+2}, {sr(P[k%3][0],2)}
            v_cndmask_b32 v{tb+3}, v{tb+3}, v{tb+1}, {sr(P[k%3][1],2)}
            v_and_b32 v{m}, {OPT.get('imask', 0x3fff)}, v{m}
            v_add_lshl_u32 v{tb+3}, v{tb+3}, v{r}, 2
            v_lshlrev_b32 v{tb}, 1, v{tb+3}""")
        st1(ks[0])
        for i, k in enumerate(ks):
            if i + 1 < len(ks): st1(ks[i+1])
            st2(k)
        for k in ks:
            tb = TB+4*(k % 8)
            a(f"""s_mov_b64 exec, {sr(MASK+2*k,2)}
            ds_write_b32 v{tb+3}, v{RECR+4*k+2} offset:{L_IDX}
            ds_write_b64 v{tb}, {vr(RECR+4*k,2)} offset:{L_EA}""")
    scatter(list(range(8)))
    a(f"s_cmp_lg_u32 s{S_R2}, 0\ns_cbranch_scc1 L2_x4")
    def sc2():
        for k2 in range(8, 12):
            a(f"""s_mov_b64 exec, {sr(MASK+2*k2,2)}
            v_lshrrev_b32 v{RK+k2-8}, 14, v{RECR+4*k2+2}
            ds_read_b128 {vr(TB+4*(k2-8),4)}, v{RK+k2-8} offset:{L_TBL}""")
        a("s_mov_b64 exec, -1\ns_waitcnt lgkmcnt(0)")
        scatter(list(range(8, 12)))
    cold(a, "L2_x4", sc2)
    a(f"""L2_c12:
    s_mov_b64 exec, -1
    s_cmp_lg_u32 s{S_BDONE}, 0
    s_cbranch_scc1 L2_c13""")
    for q in range(8): a(f"ds_read_b128 {vr(W2R+4*q,4)}, v125 offset:{1024*q}")
    a(f"""L2_c13:
    s_lshl_b32 s96, s{S_T0}, 7
    s_add_u32 s96, s96, {L_IDX-256}
    v_lshrrev_b32 v54, 3, v{L}
    v_lshl_add_u32 v{IB}, v54, 2, s96
    s_lshl_b32 s96, s{S_T0}, 8
    s_add_u32 s96, s96, {L_EA-512}
    v_add_u32 v{EB}, s96, v{ESIG}
    s_lshl_b32 s96, s{S_T0}, 5
    s_add_u32 s96, s96, {L_QA-64}
    v_add_u32 v{QB}, s96, v{QOFF}
    s_lshl_b32 s96, s53, 10
    s_add_u32 s96, s96, {L_P-1024}
    v_add_u32 v{PB}, s96, v{L16}""")
    for j in range(8): a(f"v_mov_b32 v{HQ0+j}, 0")
    for j in range(4): a(f"v_mov_b32 v{PP+j}, 0\nv_mov_b32 v{EE+2*j+1}, v{IP+2*j+1}")
    a(f"""v_and_b32 v48, 31, v{L}
    v_lshrrev_b32 v49, 5, v{L}
    v_bfe_u32 v50, v48, 1, 3
    v_lshlrev_b32 v50, 4, v50
    v_lshl_add_u32 v50, v48, 7, v50
    v_lshl_add_u32 v51, v49, 3, v50
    v_add_u32 v251, s{S_STG}, v51
    v_lshlrev_b32 v52, 4, v49
    v_xor_b32 v50, v50, v52
    s_lshl_b32 s97, s{S_GRP}, 15
    s_add_u32 s97, s97, {L_STG}
    v_add_u32 v244, s97, v50
    v_xor_b32 v245, 32, v244
    v_xor_b32 v246, 64, v244
    v_xor_b32 v247, 96, v244
    s_lshl_b32 s97, s{S_GRP}, 7
    v_lshl_add_u32 v254, v49, 4, s97
    s_lshl_b32 s96, s{S_CG}, 7
    s_add_u32 s96, s96, {L_P-512}
    v_lshlrev_b32 v248, 11, v49
    v_lshl_add_u32 v248, v48, 2, v248
    v_add_u32 v248, s96, v248
    s_mul_i32 s96, s{S_GRP}, {17*256}
    s_lshl_b32 s97, s{S_CG}, 6
    s_add_u32 s96, s96, s97
    v_lshlrev_b32 v249, 10, v49
    v_and_b32 v52, 1, v48
    v_lshl_add_u32 v249, v52, 8, v249
    v_and_b32 v53, 30, v48
    v_lshl_add_u32 v249, v53, 1, v249
    v_cmp_eq_u32 vcc, 0, v52
    v_mov_b32 v53, 0x07060302
    v_mov_b32 v55, 0x01000504
    v_cndmask_b32 v250, v53, v55, vcc
    v_add_u32 v249, s96, v249""")
    srd(a, 44, WS, W2OP, 65536); srd(a, 48, B2, None, 256)
    a(f"""s_mov_b32 s38, {AROWS}
    s_mov_b32 s{S_N0}, s{S_N}
    s_waitcnt lgkmcnt(0)
    s_barrier""")
    stamp(a, 7, ST)
    def prime01():
        rd_idx(a, 2)
        for u in range(4): a(f"ds_read_b32 v{EE+2*u}, v{IB} offset:{128*3+32*u}")
        a("s_waitcnt lgkmcnt(4)"); dma(a, 0)
        rd_idx(a, 4)
        a(f"s_add_u32 m0, s{S_STG}, 4096\ns_waitcnt lgkmcnt(4)")
        for u in range(4):
            a(f"buffer_load_dwordx4 {vr(EE+2*u,2)}, s[36:39], 0 idxen offen lds")
            if u < 3: a("s_add_u32 m0, m0, 1024")
    a(f"""s_sub_u32 s96, s{S_GRP}, s{S_BDONE}
    s_cmp_eq_u32 s96, 1
    s_cbranch_scc1 L2_p0""")
    prime01()
    a("L2_p0:")
    a(f"""ds_read_b32 v{QV[0]}, v{QB} offset:64
    ds_read_b32 v{QV[1]}, v{QB} offset:96
    ds_read2st64_b32 {vr(A2[0]+2,2)}, v{EB} offset0:2 offset1:2
    v_mov_b32 v53, 0""")
    stamp(a, 13, ST)
    a(f"""s_cmp_lg_u32 s{S_BDONE}, 0
    s_cbranch_scc1 L2_p2""")
    for s in range(8): a(mfma(0, 64+4*s, W2R+4*s, None if s == 0 else 0))
    a(f"""s_mov_b32 s94, {NLOG2E}
    s_mov_b32 s{S_BDONE}, 1
    v_lshrrev_b32 v49, 5, v{L}
    s_lshl_b32 s96, s{S_CG}, 7
    v_lshl_add_u32 v50, v175, 1, s96
    v_mul_u32_u24 v51, {4*BTS}, v49
    s_mul_i32 s96, s{S_GRP}, {32*BTS}
    s_add_u32 s96, s96, {L_BT}
    v_add3_u32 v51, v51, v50, s96
    v_mov_b32 v52, 1.0
    s_nop 1""")
    for s in range(8):
        a(mfma(16, 64+4*s, W2R+32+4*s, None if s == 0 else 16))
        for j in range(2*s, 2*s+2): a(f"v_fma_f32 v{j}, v{j}, s94, v126")
        a(f"v_max3_f32 v52, |v{2*s}|, |v{2*s+1}|, v52")
    a(mfma(S0, HQ0, PP, None)); a(mfma(S1, HQ0, PP, None))
    for j in range(16):
        if j == 8: a(f"s_cmp_eq_u32 s{S_GRP}, 0\ns_cselect_b32 exec_hi, -1, 0")
        if j == 9: a("s_cbranch_scc0 L2_bz")
        a(f"""v_fma_f32 v{16+j}, v{16+j}, s94, v127
        v_cvt_pk_bf16_f32 v{j}, v{j}, v{16+j}
        ds_write_b32 v51, v{j} offset:{(8*(j//4) + j % 4)*BTS}""")
        if j & 1: a(f"v_max3_f32 v52, |v{15+j}|, |v{16+j}|, v52")
        if j == 8: a(f"v_max_f32 v52, |v{16+j}|, v52")
    a(f"""s_branch L2_bw
    L2_bz:
    ds_write_b32 v51, v53 offset:{17*BTS}
    s_mov_b64 exec, -1
    L2_bw:
    v_cmp_neq_f32 vcc, 1.0, v52
    s_cmp_eq_u64 vcc, 0
    s_cbranch_scc1 L2_bx
    ds_write_b32 v53, v{VONE} offset:{L_MISC+8}
    L2_bx:
    s_cmp_eq_u32 s{S_GRP}, 0
    s_cbranch_scc1 L2_by""")
    prime01()
    a("L2_by:")
    stamp(a, 14, ST)
    a(f"""s_waitcnt lgkmcnt(0)
    s_barrier
    L2_p2:
    ds_read_b32 v171, v53 offset:{L_MISC+8}
    s_waitcnt lgkmcnt(1)
    v_add_u32 v{QV[0]}, v{QV[0]}, v{QST}
    v_add_u32 v{QV[1]}, v{QV[1]}, v{QST}
    s_waitcnt vmcnt(4)""")
    stamp(a, 15, ST)
    rd_rows(a, 0)
    a(f"ds_read_b64_tr_b16 {vr(B2R[0],2)}, v{QV[0]}\ns_waitcnt lgkmcnt(0)")
    for m in tmf(D0, ALO, A2[0], B2R[0]): a(m)
    dma(a, 0); rd_idx(a, 5)
    group(a, 1, tail=False)
    a(f"""v_readfirstlane_b32 s96, v171
    s_cmp_eq_u32 s{S_SAFE}, 2
    s_cselect_b32 s96, 0, s96
    s_cmp_lg_u32 s96, 0
    s_cbranch_scc1 L2_redo
    s_cmp_eq_u32 s{S_N}, 0
    s_cbranch_scc1 L2_done""")
    stamp(a, 8, ST)
    if OPT.get("stag"):
        for k in range(3): a(f"s_cmp_le_u32 s{S_CG}, {k}\ns_cbranch_scc1 L2_stag\n" + "s_nop 15\n"*OPT["stag"])
        a("L2_stag:")
    if OPT.get("stamp"): a(f"v_writelane_b32 v{ST}, s{S_N}, 30")
    a(f"s_cmp_eq_u32 s{S_SAFE}, 2\ns_cbranch_scc1 L2_loopS\ns_cmp_eq_u32 s{S_NO}, 0\ns_cbranch_scc1 L2_loopF")
    main_loops(a)
    keep = a.L; a.L = []
    a(f"""L2_slow:
    s_mov_b32 s{S_SLOW}, 1
    s_mov_b32 s{S_LIM}, {LPS}
    s_mov_b32 s{S_IMASK}, 3
    s_waitcnt lgkmcnt(0)
    s_barrier
    s_branch L2_batch
    L2_redo:
    s_mov_b32 s{S_SAFE}, 2
    v_mov_b32 v{DEG}, 0
    s_waitcnt vmcnt(0) lgkmcnt(0)
    s_barrier
    s_branch L2_batch""")
    a.cold += a.L; a.L = keep
    a(f"""L2_end_odd:
    ds_read_b128 {vr(PP,4)}, v{PB}
    s_waitcnt lgkmcnt(0)""")
    a(mfma(S0, HQ0, PP, S0))
    a("L2_end_even:")
    a(mfma(S1, HQ1, PP, S1))
    a(f"""L2_done:
    s_waitcnt vmcnt(0)
    s_cmp_eq_u32 s{S_SLOW}, 0
    s_cbranch_scc1 L2_epi
    s_add_u32 s{S_BETA}, s{S_BETA}, 1
    s_lshr_b32 s{S_BASE}, s{S_BETA}, 1
    s_lshl_b32 s{S_BASE}, s{S_BASE}, {LSH}
    s_xor_b32 s{S_IMASK}, s{S_IMASK}, 15
    s_cmp_ge_u32 s{S_BASE}, s{S_MAXC}
    s_cbranch_scc1 L2_epi
    s_barrier
    s_branch L2_batch""")
    a(f"L2_epi:\ns_cmp_gt_u32 s{S_N0}, 4\ns_cbranch_scc1 L2_epi1")
    for k in range(4): w2chunk(a, k)
    a("s_waitcnt vmcnt(0)\nL2_epi1:")
    stamp(a, 9, ST)
    a(f"s_mov_b32 s94, {NLN2}")
    for u in range(8):
        a(f"""v_xor_b32 v{32+u}, {16*u}, v251
        v_cvt_pk_bf16_f32 v{16+2*u}, v{S0+4*u}, v{S0+4*u+1}
        v_cvt_pk_bf16_f32 v{17+2*u}, v{S0+4*u+2}, v{S0+4*u+3}
        ds_write_b64 v{32+u}, {vr(16+2*u,2)}""")
    a(f"""s_cmp_lg_u32 s3, 0
    s_cbranch_scc1 L2_e1
    v_cvt_f32_u32 v8, v{DEG}
    v_lshlrev_b32 v9, 2, v{L}
    s_mov_b32 exec_hi, 0
    ds_write_b32 v9, v8 offset:{L_DEG}
    s_mov_b32 exec_lo, 0xfffe0000
    s_mov_b32 exec_hi, 0x1ffff
    ds_write_b32 v9, v8 offset:{L_DEG+128-68}
    s_mov_b64 exec, -1
    L2_e1:
    v_lshlrev_b32 v240, 16, v{B2V}
    s_sub_u32 s96, {N}, s{S_NEG}
    s_min_u32 s96, s96, {NPB}
    s_lshl_b32 s96, s96, 8
    s_lshl_b32 s97, s{S_NEG}, 8""")
    srd(a, 52, OUT, "s97", "s96")
    a("""s_mov_b32 s97, 4096
    s_waitcnt lgkmcnt(0)
    s_barrier""")
    for s in range(16): a(f"ds_read_b128 {vr(4*s,4)}, v{244+s%4} offset:{8192*(s//4)}")
    for jq in range(4): a(f"ds_read_b128 {vr(96+4*jq,4)}, v254 offset:{L_DEG+32*jq}")
    stamp(a, 10, ST)
    O = 64
    for s in range(16):
        a(f"s_waitcnt lgkmcnt({min(15, 19-s)})")
        a(mfma(O, 4*s, W2R+4*s, None if s == 0 else O))
    a("s_waitcnt lgkmcnt(0)")
    for j in range(16): a(f"v_mul_f32 v{96+j}, v{96+j}, v240")
    a(f"s_cmp_eq_u32 s{S_GRP}, 0\ns_cbranch_scc1 L2_e2")
    for j in range(8): a(f"ds_write_b32 v248, v{O+j} offset:{(8*(j//4)+j%4+1)*512}")
    a("""L2_e2:
    s_waitcnt lgkmcnt(0)
    s_barrier""")
    def fin(js):
        for j in js: a(f"v_fma_f32 v{O+j}, v{O+j}, s94, v{96+j}")
        for j in js[::2]: a(f"v_cvt_pk_bf16_f32 v{16+j//2}, v{O+j}, v{O+j+1}")
        for j in js[::2]: a(f"v_mov_b32_dpp v{24+j//2}, v{16+j//2} quad_perm:[1,0,3,2] row_mask:0xf bank_mask:0xf")
        for j in js[::2]: a(f"v_perm_b32 v{16+j//2}, v{16+j//2}, v{24+j//2}, v250")
    def st(j):
        off = (8*(j//4) + j % 4)*256
        return f"buffer_store_dword v{16+j//2}, v249, s[52:55], {'0' if off < 4096 else 's97'} offen offset:{off % 4096}" + ('', ' sc1', ' nt', ' sc0 sc1')[OPT.get('osc', 0)]
    a(f"s_cmp_lg_u32 s{S_GRP}, 0\ns_cbranch_scc1 L2_e3")
    for j in range(8, 16): a(f"ds_read_b32 v{j}, v248 offset:{(8*(j//4)+j%4-16)*512}")
    fin(list(range(8)))
    for j in range(0, 8, 2): a(st(j))
    a(f"""s_waitcnt lgkmcnt(0)
    s_mov_b32 exec_lo, 0
    v_add_f32 v{O+8}, v{O+8}, v8
    s_mov_b64 exec, -1""")
    for j in range(9, 16): a(f"v_add_f32 v{O+j}, v{O+j}, v{j}")
    a("s_branch L2_e5\nL2_e3:")
    fin([6, 7])
    a("s_mov_b32 exec_lo, 0\ns_mov_b32 exec_hi, 0xaaaaaaaa")
    a(st(6)); a("s_mov_b64 exec, -1\nL2_e5:")
    fin(list(range(8, 16)))
    for j in range(8, 16, 2): a(st(j))
    stamp_dump(a, ST, 0, 1)
    a("L2_exit2:\ns_endpgm")
    a.L += a.cold
    a("L2_last:\ns_endpgm")


HEAD = """; edge-featured MPNN: K1 = edge partition by dst bucket + node tables + operand prep ; K2 = gather / silu / segment-sum / final GEMM
; @launch kernel=k1_kernel grid=({g1},1,1) block=(512,1,1) lds={l1}
; @launch kernel=k2_kernel grid=({g2},1,1) block=(512,1,1) lds={l2}
.amdgcn_target "amdgcn-amd-amdhsa--gfx950"
.text
"""
KD = """.amdhsa_kernel {name}
  .amdhsa_next_free_vgpr {v}
  .amdhsa_next_free_sgpr 102
  .amdhsa_accum_offset {v}
  .amdhsa_group_segment_fixed_size 0
  .amdhsa_kernarg_size 88
  .amdhsa_user_sgpr_count 2
  .amdhsa_user_sgpr_kernarg_segment_ptr 1
  .amdhsa_system_sgpr_workgroup_id_x 1
.end_amdhsa_kernel
"""


def build():
    out = HEAD.format(g1=K1_GRID, l1=K1_LDS, g2=NB, l2=K2_LDS)
    for name, fn in (("k1_kernel", k1), ("k2_kernel", k2)):
        a = Asm(); fn(a)
        out += f".globl {name}\n.p2align 8\n.type {name},@function\n" + a.text(verbose=OPT.get("v", 0))
    out += '.section .rodata,"a"\n.p2align 6\n' + KD.format(name="k1_kernel", v=128) + ".p2align 6\n" + KD.format(name="k2_kernel", v=256)
    return out


if __name__ == "__main__":
    open(sys.argv[1], "w").write(build())
```

```python
import sys, struct
from asmlib import Asm, vr, sr

OPT = dict(prio=1, prio_at=32, pf=1, ept=4, smf=1, gp=0, split=25, cb=95, mix=6, osc=1, pfl=40)
for a_ in sys.argv[2:]:
    k_, v_ = a_.split("="); OPT[k_] = int(v_)

N, E = 12500, 400000
NPB, NB = 49, 256
EPT = OPT["ept"]
CE = 400*EPT; CH = E//CE
LPS = 2*EPT
LSH = {8: 3, 16: 4}[LPS]
SPLIT, HALF = OPT.get('split', 23), OPT.get('half', 6250)
AROWS = N + 2
REC = 13 << 20
OFF = 19 << 20
W2OP = 20 << 20
STAT = W2OP + 65536
BIAS = STAT + 4096
W1BOP = STAT + 8192
MAXA = W1BOP + 65536
MAXE = MAXA + 1024
MAXW_G = MAXE + 1024
STAMPS = 24 << 20
NG = 208
K1_GRID = NG + 3 + CH
K1_LDS = 65536 + 64

def f2u(x): return struct.unpack("<I", struct.pack("<f", x))[0]
NLOG2E = f2u(-1.4426950408889634)
PLOG2E = NLOG2E ^ 0x80000000
NLN2 = f2u(-0.6931471805599453)
X, EA_, SRC, DST, W1, B1, W2, B2, OUT, DBG, WS = 4, 6, 8, 10, 12, 14, 16, 18, 20, 22, 24
SHR = ["row_shr:%d row_mask:0xf bank_mask:0xf bound_ctrl:0" % i for i in (1, 2, 4, 8)]
BC15, BC31 = "row_bcast:15 row_mask:0xa bank_mask:0xf", "row_bcast:31 row_mask:0xc bank_mask:0xf"


def srd(a, d, base, add, size, stride=0):
    if add is None:
        a(f"s_mov_b32 s{d}, s{base}\ns_mov_b32 s{d+1}, s{base+1}")
    else:
        a(f"s_add_u32 s{d}, s{base}, {add}\ns_addc_u32 s{d+1}, s{base+1}, 0")
    if stride: a(f"s_or_b32 s{d+1}, s{d+1}, {stride << 16}")
    a(f"s_mov_b32 s{d+2}, {size}\ns_mov_b32 s{d+3}, 0x00020000")


def ldargs(a):
    a("""s_load_dwordx16 s[4:19], s[0:1], 0
    s_load_dwordx4 s[20:23], s[0:1], 64
    s_load_dwordx2 s[24:25], s[0:1], 80""")


def dpp_red(a, op, vs, full=True):
    if isinstance(vs, int): vs = [vs]
    for m in SHR + [BC15] + ([BC31] if full else []):
        for v in vs: a(f"{op}_dpp v{v}, v{v}, v{v} {m}")


def stamp(a, k, reg):
    if not OPT.get("stamp"): return
    a(f"s_memrealtime s[100:101]\ns_waitcnt lgkmcnt(0)\nv_writelane_b32 v{reg}, s100, {k}")
    if k in (0, 7, 8, 9, 31): a(f"s_memtime s[100:101]\ns_waitcnt lgkmcnt(0)\nv_writelane_b32 v{reg}, s100, {32+k}")


def stamp_dump(a, reg, tmp, kern):
    if not OPT.get("stamp"): return
    a("s_mov_b64 exec, -1\ns_waitcnt vmcnt(0)")
    stamp(a, 31, reg)
    a(f"""s_lshl_b32 s96, s2, 3
    s_add_u32 s96, s96, s3
    s_lshl_b32 s96, s96, 8
    s_add_u32 s96, s96, {STAMPS + kern*(1 << 20)}""")
    srd(a, 44, WS, "s96", 256)
    a(f"""v_mbcnt_lo_u32_b32 v{tmp}, -1, 0
    v_mbcnt_hi_u32_b32 v{tmp}, -1, v{tmp}
    v_lshlrev_b32 v{tmp}, 2, v{tmp}
    buffer_store_dword v{reg}, v{tmp}, s[44:47], 0 offen""")


def smf(D, B): return f"v_smfmac_f32_32x32x32_bf16 {vr(D,16)}, {vr(ID0,4)}, {vr(B,8)}, v{ID1}"
def tmf(D, rows, a2, b2):
    if OPT["smf"]: return [mfma(D, a2, b2, None), smf(D, rows)]
    return [mfma(D, rows, ID0, None), mfma(D, rows+4, ID1, D), mfma(D, a2, b2, D)]
def code_pf(a, label, size, lane, tmp, junk, sr0, lanes=16):
    if not OPT.get("cpf", 2): return
    code_pf.n += 1
    a(f"""s_getpc_b64 s[{sr0}:{sr0+1}]
    L_pc{code_pf.n}:
    s_sub_u32 s{sr0}, s{sr0}, L_pc{code_pf.n}-{label}
    s_subb_u32 s{sr0+1}, s{sr0+1}, 0
    s_cmp_lt_u32 s2, {OPT.get("cpn", 16)}
    s_cselect_b32 s{sr0+2}, {size}, 0
    s_mov_b32 s{sr0+3}, 0x00020000
    s_mul_i32 s99, s3, {128*lanes}
    v_lshlrev_b32 v{tmp}, 7, v{lane}
    s_mov_b64 exec, {(1 << lanes) - 1}
    buffer_load_dword v{junk}, v{tmp}, s[{sr0}:{sr0+3}], s99 offen
    s_mov_b64 exec, -1""")
code_pf.n = 0
def lane63(a): a("s_mov_b32 exec_lo, 0\ns_mov_b32 exec_hi, 0x80000000")
def full(a): a("s_mov_b64 exec, -1")
def mfma(D, A, B, C): return f"v_mfma_f32_32x32x16_bf16 {vr(D,16)}, {vr(A,4)}, {vr(B,4)}, " + ("0" if C is None else vr(C, 16))


def k1(a):
    ST = 126
    a("k1_kernel:")
    a(f"s_cmp_ge_u32 s2, {K1_GRID}\ns_cbranch_scc1 L1_exit2")
    if OPT.get("stamp"): a(f"v_mov_b32 v{ST}, 0")
    stamp(a, 0, ST)
    ldargs(a)
    a(f"""v_and_b32 v1, 63, v0
    v_lshrrev_b32 v2, 6, v0
    s_nop 0
    v_readfirstlane_b32 s3, v2""")
    if OPT.get("cpf", 2) >= 2: code_pf(a, "k1_kernel", "L2_last-k1_kernel", 1, 63, 63, 64, 24)
    a(f"s_cmp_gt_u32 s2, {NG+2}\ns_cbranch_scc1 L1_part" if OPT.get("gfirst", 1) else f"s_cmp_le_u32 s2, {NG+2}\ns_cbranch_scc1 L1_gemm")
    WOP = 56
    def gemm_role():
        WOP = 56
        a(f"""    s_cmp_eq_u32 s2, {NG+2}
        s_cbranch_scc1 L1_w2
        s_bfe_u32 s27, s2, 0x10003
        s_lshr_b32 s28, s2, 4
        s_lshl_b32 s28, s28, 3
        s_and_b32 s29, s2, 7
        s_add_u32 s28, s28, s29
        s_cmp_ge_u32 s2, {NG}
        s_cselect_b32 s27, s29, s27
        s_cselect_b32 s61, {128*512}, 0
        s_cbranch_scc1 L1_g1
        s_cmp_ge_u32 s28, 98
        s_cbranch_scc1 L1_exit2
        L1_g1:
        v_lshrrev_b32 v18, 4, v1
        v_and_b32 v19, 15, v1
        v_lshlrev_b32 v24, 2, v18
        v_xor_b32 v24, v24, v19
        v_lshlrev_b32 v24, 4, v24
        v_lshl_or_b32 v124, v18, 9, v24""")
        for ii in range(4):
            a(f"""v_add_u32 v20, {4*ii}, v18
            v_xor_b32 v20, v20, v19
            v_lshlrev_b32 v20, 4, v20
            v_lshl_or_b32 v{25+ii}, v18, 8, v20""")
        a(f"""v_mov_b32 v2, 0
        v_mov_b32 v3, 65536
        ds_write_b32 v3, v2
        s_lshl_b32 s43, s3, 13
        s_lshl_b32 s30, s27, 8
        s_add_u32 s43, s43, s30
        s_add_u32 s43, s43, s61
        s_lshl_b32 s31, s3, 12
        s_lshl_b32 s29, s28, 15
        s_add_u32 s29, s29, s31
        s_add_u32 m0, s31, 32768
        s_and_b32 s40, s3, 1
        s_lshr_b32 s41, s3, 1
        v_and_b32 v7, 31, v1
        v_lshlrev_b32 v20, 1, v7
        s_lshl_b32 s42, s40, 7
        s_add_u32 s42, s42, s30
        s_waitcnt lgkmcnt(0)""")
        stamp(a, 5, ST)
        srd(a, 36, X, None, N*256)
        for ii in range(4):
            a(f"buffer_load_dwordx4 v{25+ii}, s[36:39], s29 offen nt lds")
            if ii < 3: a("s_add_u32 m0, m0, 1024\ns_add_u32 s29, s29, 1024")
        a("s_mov_b32 m0, s31")
        srd(a, 32, W1, None, 260*512)
        for ii in range(4):
            a(f"buffer_load_dwordx4 v124, s[32:35], s43 offen lds")
            a("s_add_u32 m0, m0, 1024\ns_add_u32 s43, s43, 2048")
        if OPT.get("cpf", 2) == 1: code_pf(a, "k1_kernel", "L1_exit2-k1_kernel", 1, 21, 22, 64)
        stamp(a, 6, ST)
        a(f"""v_bfe_u32 v18, v1, 2, 2
        v_lshrrev_b32 v6, 5, v1
        v_lshl_add_u32 v19, v6, 3, v18
        v_lshlrev_b32 v19, 8, v19
        v_bfe_u32 v20, v1, 4, 1
        v_lshlrev_b32 v20, 5, v20
        v_and_b32 v21, 3, v1
        v_lshl_add_u32 v20, v21, 3, v20
        v_add_u32 v19, v19, v20
        s_lshl_b32 s42, s40, 1
        v_xor_b32 v20, s42, v18
        v_lshl_add_u32 v120, v20, 6, v19
        v_xor_b32 v20, 1, v20
        v_lshl_add_u32 v121, v20, 6, v19
        s_lshl_b32 s42, s41, 5
        v_add_u32 v19, s42, v7
        v_lshlrev_b32 v19, 8, v19
        v_and_b32 v20, 15, v1
        v_xor_b32 v20, v20, v6
        v_lshl_add_u32 v104, v20, 4, v19
        v_add_u32 v104, 32768, v104""")
        for s in range(1, 8): a(f"v_xor_b32 v{104+s}, {32*s}, v104")
        srd(a, 44, WS, None, N*512)
        a(f"""s_lshl_b32 s42, s28, 2
        s_add_u32 s42, s42, s41
        s_lshl_b32 s42, s42, 14
        s_lshl_b32 s48, s27, 1
        s_add_u32 s48, s48, s40
        s_lshl_b32 s48, s48, 7
        s_add_u32 s48, s42, s48
        s_add_u32 s30, s31, 32768
        v_lshlrev_b32 v4, 9, v6
        v_lshl_add_u32 v4, v7, 2, v4
        v_add_u32 v4, s30, v4
        v_lshl_add_u32 v6, v1, 4, s30
        v_lshrrev_b32 v7, 3, v1
        v_lshlrev_b32 v7, 9, v7
        v_and_b32 v18, 7, v1
        v_lshl_add_u32 v7, v18, 4, v7
        s_mov_b32 s52, {NLOG2E}
        s_mov_b32 s60, {PLOG2E}
        v_mov_b32 v5, 0
        v_mov_b32 v125, 0x80008000
        s_setprio {OPT.get("gp", 0)}
        s_waitcnt vmcnt(0)
        s_barrier""")
        stamp(a, 1, ST)
        def wr(t, s):
            for hf in range(2):
                a(f"ds_read_b64_tr_b16 {vr(WOP+32*t+4*s+2*hf,2)}, v{120+t} offset:{4096*s+1024*hf}")
        GD0, GD1, CV, RB = 8, WOP, 72, 88
        for task in range(1):
            sc = (lambda r, b: f"v_mul_f32 v{r}, s52, v{r}") if task == 0 else (lambda r, b: f"v_fma_f32 v{r}, v{r}, s60, v{b}")
            per = 3 if task == 0 else 2
            ahead = 5 if task == 0 else 7
            def rd(s):
                if s < 8:
                    if task == 0: a(f"ds_read_b128 {vr(24+4*s,4)}, v{104+s}")
                    wr(0, s)
                else: wr(1, s-8)
            a(f"s_cmp_ge_u32 s2, {NG}\ns_cbranch_scc1 L1_w1b")
            for s in range(ahead): rd(s)
            if task == 1:
                a("""v_lshlrev_b32 v122, 16, v122
                v_lshlrev_b32 v123, 16, v123
                v_mul_f32 v122, s60, v122
                v_mul_f32 v123, s60, v123""")
            cnt = lambda lo, hi: sum(per if q < 8 else 2 for q in range(lo, hi))
            for s in range(8):
                a(f"s_waitcnt lgkmcnt({cnt(s+1, s+ahead)})")
                a(mfma(GD0, 24+4*s, WOP+4*s, None if s == 0 else GD0))
                rd(s+ahead)
            for s in range(8+ahead, 16): rd(s)
            a("s_waitcnt lgkmcnt(0)")
            if task == 0:
                a("s_barrier")
                stamp(a, 3, ST)
            for s in range(8):
                a(mfma(GD1, 24+4*s, WOP+32+4*s, None if s == 0 else GD1))
                if s >= 2:
                    for j in range((s-2)*3, min(16, (s-1)*3)): a(sc(GD0+j, 122))
            for j in range(16):
                a(sc(GD1+j, 123))
                a(f"""v_cvt_pk_bf16_f32 v{CV+j}, v{GD0+j}, v{GD1+j}
                ds_write_b32 v4, v{CV+j} offset:{128*(8*(j//4)+j%4)}""")
            a("s_waitcnt lgkmcnt(0)")
            if task == 0: stamp(a, 4, ST)
            for i in range(4): a(f"ds_read_b128 {vr(RB+4*i,4)}, v6 offset:{1024*i}")
            for i in range(4):
                a(f"s_waitcnt lgkmcnt({3-i})\nbuffer_store_dwordx4 {vr(RB+4*i,4)}, v7, {sr(44 if task == 0 else 56, 4)}, s48 offen sc1")
                a("s_add_u32 s48, s48, 4096" if i < 3 else "s_sub_u32 s48, s48, 12288")
        stamp(a, 2, ST)
        for j in range(16): a(f"v_and_b32 v{CV+j}, 0x7fff7fff, v{CV+j}\nv_pk_max_u16 v5, v5, v{CV+j}")
        a("""v_lshlrev_b32 v6, 16, v5
        v_and_b32 v5, 0xffff0000, v5
        v_max_u32 v5, v5, v6""")
        dpp_red(a, "v_max_u32", 5)
        lane63(a); a("ds_max_u32 v3, v5"); full(a)
        srd(a, 44, WS, MAXA, 196*4)
        a(f"""s_lshl_b32 s26, s28, 1
        s_add_u32 s26, s26, s27
        s_lshl_b32 s26, s26, 2
        s_waitcnt lgkmcnt(0)
        s_barrier
        v_cmp_eq_u32 vcc, 0, v0
        s_and_saveexec_b64 s[54:55], vcc
        s_cbranch_execz L1_exit
        ds_read_b32 v6, v3
        s_waitcnt lgkmcnt(0)
        buffer_store_dword v6, v2, s[44:47], s26 offen sc1
        s_branch L1_exit""")
        a(f"""L1_w1b:
        s_lshl_b32 s43, s27, 1
        s_add_u32 s43, s43, s40
        s_lshl_b32 s43, s43, 14
        v_lshlrev_b32 v2, 4, v1
        s_cmp_lg_u32 s41, 0
        s_cbranch_scc1 L1_exit""")
        for t in range(2):
            for s in range(8): wr(t, s)
        srd(a, 44, WS, W1BOP, 65536)
        a("s_waitcnt lgkmcnt(0)")
        for q in range(16):
            a(f"buffer_store_dwordx4 {vr(WOP+4*q,4)}, v2, s[44:47], s43 offen sc1\ns_add_u32 s43, s43, 1024")
        a("s_branch L1_exit")
    def part_role():
        a(f"L1_part:\ns_sub_u32 s56, s2, {NG+3}")
        G = EPT//4
        HIST, START, MAXW = 40960, 41984, 43008
        DV, SV, EV, AV, RV = 4, 12, 24, 40, 48
        a(f"""v_lshlrev_b32 v2, 2, v0
        v_mov_b32 v3, 0
        ds_write_b32 v2, v3 offset:{HIST}
        ds_write_b32 v2, v3 offset:{MAXW}
        v_mov_b32 v60, 0
        v_mov_b32 v61, 1
        s_mul_i32 s26, s56, {CE*4}
        s_add_u32 s27, s26, 6400
        s_mov_b32 s58, s26
        s_mov_b32 s59, s27
        s_lshl_b32 s52, s26, 1
        s_lshl_b32 s53, s27, 1
        v_lshlrev_b32 v3, 4, v0
        v_lshlrev_b32 v20, 5, v0
        v_cmp_gt_u32 vcc, 400, v0
        s_waitcnt lgkmcnt(0)""")
        stamp(a, 5, ST)
        srd(a, 28, DST, None, E*4); srd(a, 32, SRC, None, E*4); srd(a, 36, EA_, None, E*8)
        a("""s_and_saveexec_b64 s[54:55], vcc
        s_mov_b64 s[54:55], exec
        s_cbranch_execz L1_p1""")
        for g in range(G): a(f"buffer_load_dwordx4 {vr(DV+4*g,4)}, v3, s[28:31], s{26+g} offen nt")
        def late_loads():
            for g in range(G): a(f"buffer_load_dwordx4 {vr(SV+4*g,4)}, v3, s[32:35], s{58+g} offen nt")
            for g in range(G):
                a(f"buffer_load_dwordx4 {vr(EV+8*g,4)}, v20, s[36:39], s{52+g} offen nt")
                a(f"buffer_load_dwordx4 {vr(EV+8*g+4,4)}, v20, s[36:39], s{52+g} offen offset:16 nt")
        if not OPT.get("late", 1): late_loads()
        a(f"""L1_p1:
        s_mov_b64 exec, -1
        s_mul_i32 s26, s56, {CE*12}
        s_add_u32 s26, s26, {REC}""")
        srd(a, 40, WS, "s26", CE*12); srd(a, 44, WS, OFF, CH*1024); srd(a, 48, WS, MAXE, CH*4)
        a(f"""s_setprio {OPT.get("pp", 2)}
        s_barrier
        s_mov_b64 exec, s[54:55]
        s_cbranch_execz L1_p2
        s_waitcnt vmcnt({0 if OPT.get("late", 1) else 3*G})""")
        if OPT.get("late", 1): late_loads()
        stamp(a, 1, ST)
        for k in range(EPT):
            a(f"""v_mul_u32_u24 v21, 10700, v{DV+k}
            v_lshrrev_b32 v21, 19, v21
            v_lshlrev_b32 v{AV+k}, 2, v21
            ds_add_rtn_u32 v{RV+k}, v{AV+k}, v61 offset:{HIST}
            v_mul_u32_u24 v21, {NPB}, v21
            v_sub_u32 v{DV+k}, v{DV+k}, v21""")
        a(f"""L1_p2:
        s_mov_b64 exec, -1
        v_lshlrev_b32 v2, 4, v1
        s_waitcnt lgkmcnt(0)
        s_barrier""")
        stamp(a, 3, ST)
        a(f"""ds_read_b128 v[64:67], v2 offset:{HIST}
        s_waitcnt lgkmcnt(0)
        v_add_u32 v68, v64, v65
        v_add_u32 v69, v68, v66
        v_add_u32 v70, v69, v67
        v_mov_b32 v71, v70""")
        dpp_red(a, "v_add_u32", 71)
        a(f"""v_sub_u32 v56, v71, v70
        v_add_u32 v57, v56, v64
        v_add_u32 v58, v56, v68
        v_add_u32 v59, v56, v69
        ds_write_b128 v2, v[56:59] offset:{START}
        s_mov_b64 exec, s[54:55]
        s_cbranch_execz L1_p4""")
        for k in range(EPT): a(f"ds_read_b32 v{AV+k}, v{AV+k} offset:{START}")
        a(f"s_waitcnt vmcnt({2*G})")
        for k in range(EPT):
            a(f"""v_add_u32 v21, {16384-HALF}, v{SV+k}
            v_lshl_or_b32 v{SV+k}, v{DV+k}, 18, v{SV+k}
            v_lshrrev_b32 v21, 14, v21
            v_lshl_or_b32 v{SV+k}, v21, 24, v{SV+k}""")
        a("s_waitcnt vmcnt(0)")
        for k in range(EPT):
            a(f"""s_waitcnt lgkmcnt({EPT-1+k})
            v_add_u32 v{AV+k}, v{AV+k}, v{RV+k}
            v_mul_u32_u24 v{AV+k}, 12, v{AV+k}
            ds_write2_b32 v{AV+k}, v{EV+2*k}, v{EV+2*k+1} offset0:0 offset1:1
            ds_write_b32 v{AV+k}, v{SV+k} offset:8""")
        a("L1_p4:")
        full(a)
        stamp(a, 2, ST)
        a(f"""s_cmp_lg_u32 s3, 7
        s_cbranch_scc1 L1_p3
        v_lshl_or_b32 v64, v64, 16, v56
        v_lshl_or_b32 v65, v65, 16, v57
        v_lshl_or_b32 v66, v66, 16, v58
        v_lshl_or_b32 v67, v67, 16, v59
        v_mul_u32_u24 v2, {CH*16}, v1
        s_lshl_b32 s26, s56, 4
        buffer_store_dwordx4 v[64:67], v2, s[44:47], s26 offen sc1
        L1_p3:
        s_waitcnt lgkmcnt(0)
        s_barrier""")
        stamp(a, 4, ST)
        NO = -(-CE*12//8192)
        for i in range(NO): a(f"ds_read_b128 {vr(72+4*i,4)}, v3 offset:{8192*i}")
        for i in range(NO):
            a(f"s_mov_b32 s26, {8192*i}\ns_waitcnt lgkmcnt({NO-1-i})\nbuffer_store_dwordx4 {vr(72+4*i,4)}, v3, s[40:43], s26 offen sc1")
        a("s_mov_b64 exec, s[54:55]")
        for k in range(EPT): a(f"v_dot2_f32_bf16 v{DV+k}, v{EV+2*k}, v{EV+2*k}, 0")
        for k in range(EPT): a(f"v_dot2_f32_bf16 v{DV+k}, v{EV+2*k+1}, v{EV+2*k+1}, v{DV+k}")
        a("s_nop 2")
        for k in range(0, EPT, 2): a(f"v_max3_u32 v60, v60, v{DV+k}, v{DV+k+1}")
        full(a)
        dpp_red(a, "v_max_u32", 60)
        a("v_mov_b32 v62, 0")
        lane63(a); a(f"ds_max_u32 v62, v60 offset:{MAXW}"); full(a)
        a(f"s_waitcnt lgkmcnt(0)\ns_barrier\nds_read_b32 v30, v62 offset:{MAXW}")
        a(f"""s_lshl_b32 s26, s56, 2
        v_cmp_eq_u32 vcc, 0, v0
        s_and_saveexec_b64 s[54:55], vcc
        s_cbranch_execz L1_exit
        s_waitcnt lgkmcnt(0)
        buffer_store_dword v30, v62, s[48:51], s26 offen sc1
        s_branch L1_exit""")
    if OPT.get("gfirst", 1):
        gemm_role(); part_role()
    else:
        part_role(); a("L1_gemm:"); gemm_role()
    a(f"""L1_w2:
    v_lshlrev_b32 v2, 4, v1
    s_lshl_b32 s29, s3, 13
    s_mov_b32 m0, s29
    v_mov_b32 v20, 0
    v_mov_b32 v21, 65536
    ds_write_b32 v21, v20
    v_and_b32 v11, 1, v1
    v_lshlrev_b32 v11, 5, v11
    v_bfe_u32 v12, v1, 1, 4
    v_add_u32 v11, v11, v12
    v_lshlrev_b32 v11, 1, v11
    v_lshrrev_b32 v12, 5, v1
    v_lshl_add_u32 v11, v12, 10, v11
    s_lshr_b32 s40, s3, 1
    s_lshl_b32 s40, s40, 7
    s_and_b32 s41, s3, 1
    s_lshl_b32 s41, s41, 5
    s_add_u32 s40, s40, s41
    s_add_u32 s40, s40, {256*512}
    s_waitcnt lgkmcnt(0)""")
    srd(a, 32, W2, None, 65536); srd(a, 36, W1, None, 260*512)
    srd(a, 60, B1, None, 512)
    a("""v_and_b32 v17, 31, v1
    v_lshlrev_b32 v17, 1, v17
    s_lshl_b32 s41, s3, 7
    buffer_load_ushort v18, v17, s[60:63], s41 offen
    buffer_load_ushort v19, v17, s[60:63], s41 offen offset:64
    buffer_load_ushort v8, v11, s[36:39], s40 offen
    buffer_load_ushort v9, v11, s[36:39], s40 offen offset:512""")
    for ii in range(8):
        a("buffer_load_dwordx4 v2, s[32:35], s29 offen lds")
        if ii < 7: a("s_add_u32 m0, m0, 1024\ns_add_u32 s29, s29, 1024")
    a(f"""s_and_b32 s40, s3, 3
    s_lshr_b32 s41, s3, 2
    v_bfe_u32 v5, v1, 2, 1
    v_lshlrev_b32 v5, 5, v5
    v_bfe_u32 v6, v1, 3, 1
    v_add_u32 v5, v5, v6
    v_lshrrev_b32 v6, 5, v1
    v_lshl_add_u32 v5, v6, 2, v5
    v_lshlrev_b32 v5, 8, v5
    v_bfe_u32 v6, v1, 4, 1
    v_lshl_add_u32 v5, v6, 5, v5
    v_and_b32 v6, 3, v1
    v_lshl_add_u32 v5, v6, 3, v5
    s_lshl_b32 s42, s40, 6
    s_lshl_b32 s43, s41, 15
    s_add_u32 s42, s42, s43
    v_add_u32 v5, s42, v5
    s_lshl_b32 s43, s40, 14
    s_lshl_b32 s42, s41, 13
    s_add_u32 s43, s43, s42
    s_mov_b32 s52, {NLOG2E}
    s_lshl_b32 s42, s3, 9
    v_lshlrev_b32 v3, 3, v1""")
    srd(a, 44, WS, W2OP, 65536); srd(a, 48, WS, STAT, 4096); srd(a, 56, WS, MAXW_G, 4)
    a("""s_waitcnt vmcnt(8)
    v_lshlrev_b32 v8, 16, v8
    v_lshlrev_b32 v9, 16, v9
    v_mul_f32 v8, s52, v8
    v_mul_f32 v9, s52, v9
    v_cvt_pk_bf16_f32 v15, v8, v9
    v_mul_f32 v16, v8, v8
    v_fmac_f32 v16, v9, v9
    v_lshlrev_b32 v12, 16, v15
    v_and_b32 v13, 0xffff0000, v15
    v_sub_f32 v8, v8, v12
    v_sub_f32 v9, v9, v13
    v_cvt_pk_bf16_f32 v14, v8, v9
    buffer_store_dwordx2 v[14:15], v3, s[48:51], s42 offen sc1
    v_lshlrev_b32 v18, 16, v18
    v_lshlrev_b32 v19, 16, v19
    v_mul_f32 v18, s52, v18
    v_mul_f32 v19, s52, v19
    v_lshlrev_b32 v17, 2, v17
    s_lshl_b32 s41, s3, 8""")
    srd(a, 60, WS, BIAS, 1024); srd(a, 64, WS, N*512, 1024)
    a("""buffer_store_dwordx2 v[18:19], v17, s[60:63], s41 offen sc1
    v_mov_b32 v22, 0x41c041c0
    v_mov_b32 v23, 0x7f7f7f7f
    v_cmp_gt_u32 vcc, 128, v0
    v_lshlrev_b32 v24, 2, v0
    v_cndmask_b32 v22, v23, v22, vcc
    buffer_store_dword v22, v24, s[64:67], 0 offen sc1""")
    a("v_mov_b32 v12, v16\nv_permlane32_swap_b32 v12, v16\nv_add_f32 v16, v12, v16")
    dpp_red(a, "v_max_u32", 16)
    a("""    s_waitcnt vmcnt(0)
    s_barrier""")
    lane63(a); a("ds_max_u32 v21, v16"); full(a)
    for s in range(8):
        for hf in range(2):
            row = 64*(s//4) + 16*((s//2) % 2) + 8*(s % 2) + 2*hf
            a(f"ds_read_b64_tr_b16 {vr(WOP+4*s+2*hf,2)}, v5 offset:{256*row}")
    a("s_waitcnt lgkmcnt(0)\ns_barrier\nds_read_b32 v16, v21")
    for s in range(8):
        a(f"buffer_store_dwordx4 {vr(WOP+4*s,4)}, v2, s[44:47], s43 offen sc1\ns_add_u32 s43, s43, 1024")
    srd(a, 48, WS, MAXE + CH*4, 16)
    a("""v_lshlrev_b32 v17, 2, v1
    buffer_store_dword v20, v17, s[48:51], 0 offen sc1
    s_waitcnt lgkmcnt(0)
    buffer_store_dword v16, v3, s[56:59], 0 offen sc1
    L1_exit:""")
    stamp_dump(a, ST, 127, 0)
    a("L1_exit2:\ns_endpgm")


CAPT = 60
L_IDX, L_QA, L_TBL, L_CNT, L_MISC, L_DEG, L_EA, L_P = 256, 8448, 10496, 12544, 14592, 14656, 15104, 30464
L_BT = L_P + 31*1024
L_STG = 91136
BTS = 576
L_NULL = L_BT + NPB*BTS
K2_LDS = L_STG + 65536
assert L_BT + 50*BTS <= L_STG and L_BT % 256 == 0
D0, D1, EE, TT, HQ0, HQ1, S0, S1 = 0, 16, 32, 48, 56, 60, 64, 80
ALO, AHI, ID0, ID1, A2, B2R, PP, IP = 96, (104, 112), 120, 124, (128, 132), (136, 140), 144, 148
QV, QST, RA, IB, EB, QB, PB = (156, 157), 158, 159, 163, 164, 165, 166
TID, LANE, DEG, VONE, ESIG, QOFF, L16 = 167, 168, 169, 170, 172, 173, 174
RECR, OFR, W2R, B2V = 0, 240, 176, 252
MASK = 56
S_BASE, S_LIM, S_IMASK, S_SLOW, S_N, S_T0, S_FIRST, S_BK, S_MAXC, S_SAFE, S_CUT, S_STG, S_BETA, S_NEG = range(80, 94)
S_BDONE = 23
S_CG, S_GRP, S_R2, S_N0, S_NO = 26, 27, 1, 0, 87


def valu_half(D, hq, mode, fill):
    L = [f"v_exp_f32 v{EE+j}, v{D+j}" for j in range(16)]
    p2 = lambda x: vr(x, 2)
    if mode == "o":
        L.insert(15, None)
        L[15] = f"v_pk_add_f32 {p2(TT)}, {p2(EE)}, 1.0 op_sel_hi:[1,0]"
        L[15], L[16] = L[16], L[15]
        for s in range(1, 8):
            n = D if s == 1 else TT+2
            L.append(f"v_pk_fma_f32 {p2(TT+2)}, {p2(n)}, {p2(EE+2*s)}, {p2(n)}")
            L.append(f"v_pk_fma_f32 {p2(TT+2)}, {p2(D+2*s)}, {p2(TT)}, {p2(TT+2)}")
            L.append(f"v_pk_fma_f32 {p2(TT)}, {p2(TT)}, {p2(EE+2*s)}, {p2(TT)}")
        u, nn, dd = L[-3:]
        L[-3:] = [f"v_pk_fma_f32 {p2(TT+4)}, {p2(TT)}, {p2(EE+14)}, {p2(TT)}", f"v_rcp_f32 v{TT+4}, v{TT+4}", f"v_rcp_f32 v{TT+5}, v{TT+5}", u, nn]
        if OPT.get("mix"):
            k = OPT["mix"]
            ex, pk = L[16-k:16], L[16:]
            out = []
            per = 3
            while ex or pk:
                out += pk[:per]; pk = pk[per:]
                if ex: out.append(ex.pop(0))
            L = L[:16-k] + out
        L.append(f"v_pk_mul_f32 {p2(TT+2)}, {p2(TT+2)}, {p2(TT+4)}")
        L.append(f"v_cvt_pk_bf16_f32 v{hq}, v{TT+2}, v{TT+3}")
        return L + fill
    if mode == "q":
        for q in range(2): L.append(f"v_pk_add_f32 {p2(TT+4*q)}, {p2(EE+8*q)}, 1.0 op_sel_hi:[1,0]")
        for s in range(1, 4):
            for q in range(2):
                n = D+8*q if s == 1 else TT+4*q+2
                L.append(f"v_pk_fma_f32 {p2(TT+4*q+2)}, {p2(n)}, {p2(EE+8*q+2*s)}, {p2(n)}")
            for q in range(2):
                L.append(f"v_pk_fma_f32 {p2(TT+4*q+2)}, {p2(D+8*q+2*s)}, {p2(TT+4*q)}, {p2(TT+4*q+2)}")
            for q in range(2):
                L.append(f"v_pk_fma_f32 {p2(TT+4*q)}, {p2(TT+4*q)}, {p2(EE+8*q+2*s)}, {p2(TT+4*q)}")
        for q in range(2):
            for p in range(2): L.append(f"v_rcp_f32 v{TT+4*q+p}, v{TT+4*q+p}")
        for q in range(2): L.append(f"v_pk_mul_f32 {p2(TT+4*q+2)}, {p2(TT+4*q+2)}, {p2(TT+4*q)}")
    else:
        for j in range(0, 16, 2): L.append(f"v_pk_add_f32 {p2(EE+j)}, {p2(EE+j)}, 1.0 op_sel_hi:[1,0]")
        for j in range(16): L.append(f"v_rcp_f32 v{EE+j}, v{EE+j}")
        for q in range(2): L.append(f"v_pk_mul_f32 {p2(TT+4*q+2)}, {p2(D+8*q)}, {p2(EE+8*q)}")
        for s in range(1, 4):
            for q in range(2):
                L.append(f"v_pk_fma_f32 {p2(TT+4*q+2)}, {p2(D+8*q+2*s)}, {p2(EE+8*q+2*s)}, {p2(TT+4*q+2)}")
    for q in range(2): L.append(f"v_cvt_pk_bf16_f32 v{hq+q}, v{TT+4*q+2}, v{TT+4*q+3}")
    return L + fill


def weave(V, M, pos):
    out = []
    for i, x in enumerate(V):
        out += [m for m, p in zip(M, pos) if p == i]
        out.append(x)
    return out


def incs(k): return [f"v_add_u32 v{IB}, {128*k}, v{IB}", f"v_add_u32 v{EB}, {256*k}, v{EB}", f"v_add_u32 v{QB}, {32*k}, v{QB}"]


def block(a, t, mode):
    par = t & 1
    last = 3 if mode == "o" else 1
    M1 = tmf(D1, AHI[par], A2[par], B2R[1])
    if t == 0: M1.append(mfma(S1, HQ1, PP, S1))
    M2 = tmf(D0, ALO, A2[par ^ 1], B2R[0])
    if t == last: M2.append(mfma(S0, HQ0, PP, S0))
    pos = [1, 4, 7, 10] if not OPT.get("mix") else [0, 3, 6]
    extra = (["s_waitcnt lgkmcnt(0)"] if OPT.get('gw', 1) else []) + [f"v_add_u32 v{QV[par]}, v{QV[par]}, v{QST}"]
    if t == 0: extra.append(f"v_add_u32 v{PB}, 1024, v{PB}")
    if mode == "o" and t == 2: extra += incs(4)
    if mode != "o" and t == 0: extra += incs(2)
    k = t if mode == "o" else 2*t
    L = weave(valu_half(D0, HQ0+k, mode, extra), M1, pos) + weave(valu_half(D1, HQ1+k, mode, []), M2, pos)
    if OPT["prio"]:
        L.insert(OPT["prio_at"], "s_setprio 1"); L.append("s_setprio 0")
    a("\n".join(L))


def dma(a, par):
    a(f"s_add_u32 m0, s{S_STG}, {4096*par}")
    for u in range(4):
        a(f"buffer_load_dwordx4 {vr(IP+2*u,2)}, s[36:39], 0 idxen offen lds")
        if u < 3: a("s_add_u32 m0, m0, 1024")


def rd_idx(a, t):
    for u in range(4): a(f"ds_read_b32 v{IP+2*u}, v{IB} offset:{128*t+32*u}")


def rd_rows(a, par):
    if OPT["smf"]:
        for c in range(2):
            for gi in range(4):
                a(f"ds_read_b64_tr_b16 {vr((ALO, AHI[par])[c]+2*gi,2)}, v{RA+c} offset:{4096*par+512*gi}")
        return
    for s in range(4):
        d = ALO+4*s if s < 2 else AHI[par]+4*(s-2)
        a(f"ds_read_b128 {vr(d,4)}, v{RA+s} offset:{4096*par}")


def w2chunk(a, k):
    a(f"s_lshl_b32 s96, s{S_CG}, 14\ns_add_u32 s96, s96, {4096*k}")
    for q in range(4): a(f"buffer_load_dwordx4 {vr(W2R+16*k+4*q,4)}, v{L16}, s[44:47], s96 offen offset:{1024*q}")
    if k == 0: a(f"s_lshl_b32 s96, s{S_CG}, 6\nbuffer_load_ushort v{B2V}, v175, s[48:51], s96 offen")


def group(a, par, sh=0, rdp=False, tail=True):
    a("s_waitcnt vmcnt(4)")
    rd_rows(a, par)
    a(f"ds_read_b64_tr_b16 {vr(B2R[1],2)}, v{QV[par^1]} offset:64")
    a(f"ds_read_b64_tr_b16 {vr(B2R[0],2)}, v{QV[par]}")
    a(f"ds_read2st64_b32 {vr(A2[par]+2,2)}, v{EB} offset0:{2+par+sh} offset1:{2+par+sh}")
    if rdp: a(f"ds_read_b128 {vr(PP,4)}, v{PB}")
    a(f"s_cmp_gt_u32 s{S_N}, 3\ns_cselect_b32 s38, {0 if OPT.get('nodma') else AROWS}, 0")
    if tail:
        group.n += 1
        a(f"s_cmp_gt_u32 s{S_N}, 4\ns_cbranch_scc1 L2_tr{group.n}\ns_call_b64 s[98:99], L2_w2stub\nL2_tr{group.n}:")
    a(f"s_waitcnt lgkmcnt({4 if rdp else 3})")
    dma(a, par)
    rd_idx(a, 5+par+sh)
    a(f"ds_read_b32 v{QV[par^1]}, v{QB} offset:{32*(3+par+sh)}")
    a(f"s_waitcnt lgkmcnt({5 if OPT.get('gw', 1) else 0})")
group.n = 0


def dec(a, tgt): a(f"s_sub_u32 s{S_N}, s{S_N}, 1\ns_cmp_eq_u32 s{S_N}, 0\ns_cbranch_scc1 {tgt}")


def main_loops(a):
    a("L2_loopO:")
    block(a, 0, "o"); a(f"s_sub_u32 s{S_N}, s{S_N}, 1"); group(a, 0, 2, True)
    block(a, 1, "o"); dec(a, "L2_end_odd"); group(a, 1, 2)
    a(f"s_cmp_eq_u32 s{S_NO}, 2\ns_cbranch_scc1 L2_half")
    block(a, 2, "o"); a(f"s_sub_u32 s{S_N}, s{S_N}, 1"); group(a, 0)
    block(a, 3, "o"); dec(a, "L2_end_even"); group(a, 1)
    a(f"s_sub_u32 s{S_NO}, s{S_NO}, 4\ns_cmp_lg_u32 s{S_NO}, 0\ns_cbranch_scc1 L2_loopO\ns_branch L2_loopF\nL2_half:")
    a(mfma(S0, HQ0, PP, S0)); a("\n".join(incs(2)))
    for tag, mode in (("F", "q"), ("S", "s")):
        if tag == "S": keep = a.L; a.L = []
        a(f"L2_loop{tag}:")
        block(a, 0, mode); dec(a, "L2_end_odd"); group(a, 0, 0, True)
        block(a, 1, mode); dec(a, "L2_end_even"); group(a, 1)
        a(f"s_branch L2_loop{tag}")
    a("L2_w2stub:")
    for k in range(4):
        if k < 3: a(f"s_cmp_lg_u32 s{S_N}, {4-k}\ns_cbranch_scc1 L2_st{k}")
        w2chunk(a, k)
        a("s_setpc_b64 s[98:99]")
        if k < 3: a(f"L2_st{k}:")
    a.cold += a.L; a.L = keep


def cold(a, name, fn):
    keep = a.L; a.L = []
    a(f"{name}:"); fn(); a(f"s_branch {name}_r")
    a.cold += a.L; a.L = keep
    a(f"{name}_r:")


def k2(a):
    a.cold = []
    ST = 253
    L = LANE
    PF = OPT["pf"]
    a("k2_kernel:")
    a(f"s_cmp_ge_u32 s2, {NB}\ns_cbranch_scc1 L2_exit2")
    if OPT.get("stamp"): a(f"v_mov_b32 v{ST}, 0")
    stamp(a, 0, ST)
    ldargs(a)
    a(f"""v_mov_b32 v{TID}, v0
    v_and_b32 v{L}, 63, v0
    v_lshrrev_b32 v2, 6, v0
    v_mov_b32 v{DEG}, 0
    v_readfirstlane_b32 s3, v2""")
    if OPT.get("cpf", 2) == 2: code_pf(a, "k2_kernel", "L2_last-k2_kernel", L, 10, 255, 40, 18)
    a(f"""v_mov_b32 v{VONE}, 1
    s_and_b32 s{S_BK}, s2, 7
    s_lshl_b32 s{S_BK}, s{S_BK}, 5
    s_lshr_b32 s28, s2, 3
    s_add_u32 s{S_BK}, s{S_BK}, s28
    s_mul_i32 s{S_NEG}, s{S_BK}, {NPB}
    v_lshrrev_b32 v8, {LSH}, v0
    s_and_b32 s28, s{S_BK}, 3
    s_lshl_b32 s28, s28, 2
    v_lshl_add_u32 v9, v8, 4, s28
    s_lshr_b32 s96, s{S_BK}, 2
    s_mul_i32 s96, s96, {CH*16}
    s_add_u32 s96, s96, {OFF}
    s_mov_b32 s{S_BASE}, 0
    s_mov_b32 s{S_LIM}, {3*LPS}
    s_mov_b32 s{S_IMASK}, 15
    s_mov_b32 s{S_SLOW}, 0
    s_mov_b32 s{S_FIRST}, 1
    s_mov_b32 s{S_BETA}, 0
    s_and_b32 s{S_CG}, s3, 3
    s_lshr_b32 s{S_GRP}, s3, 2
    s_lshl_b32 s{S_STG}, s3, 13
    s_add_u32 s{S_STG}, s{S_STG}, {L_STG}
    v_lshlrev_b32 v{L16}, 4, v{L}
    v_mov_b32 v{IP}, -1
    v_mov_b32 v{IP+2}, -1
    v_mov_b32 v{IP+4}, -1
    v_mov_b32 v{IP+6}, -1
    v_mov_b32 v{IP+1}, 0
    v_mov_b32 v{IP+3}, 0
    v_mov_b32 v{IP+5}, 0
    v_mov_b32 v{IP+7}, 0
    v_mov_b32 v175, 0
    v_lshrrev_b32 v3, 4, v{L}
    v_and_b32 v4, 15, v{L}
    v_xor_b32 v6, v3, v4
    v_lshlrev_b32 v6, 4, v6
    v_lshl_or_b32 v117, v3, 8, v6
    v_xor_b32 v118, 64, v117
    s_waitcnt lgkmcnt(0)""")
    stamp(a, 11, ST)
    srd(a, 28, WS, "s96", CH*16)
    for i in range(4): a(f"buffer_load_dword v{OFR+i}, v9, s[28:31], 0 offen offset:{(8192 >> LSH)*i}")
    if OPT.get("cpf", 2) in (1, 3): code_pf(a, "k2_kernel", "L2_last-k2_kernel", L, 10, 255, 40, 18)
    srd(a, 40, X, None, N*256); srd(a, 52, WS, W1BOP, 65536)
    a(f"s_mov_b32 s{S_BDONE}, 0")
    WE = 0
    srd(a, 32, WS, REC, CH*CE*12); srd(a, 36, WS, None, AROWS, stride=512)
    NZ = (L_BT - L_CNT)//16
    a(f"""s_cmp_lg_u32 s{S_GRP}, 0
    s_cbranch_scc1 L2_b2
    L2_batch:
    v_and_b32 v112, {LPS-1}, v{L}
    v_add_u32 v112, s{S_BASE}, v112
    s_add_u32 s96, s{S_BASE}, s{S_LIM}
    v_lshrrev_b32 v113, {LSH}, v{TID}
    v_mul_u32_u24 v113, {CE*12}, v113""")
    stamp(a, 12, ST)
    a("s_waitcnt vmcnt(0)")
    stamp(a, 1, ST)
    for i in range(4):
        a(f"""v_lshrrev_b32 v{104+i}, 16, v{OFR+i}
        s_bitcmp1_b32 s{S_IMASK}, {i}
        s_cselect_b32 s98, s96, 0
        v_min_u32 v{104+i}, s98, v{104+i}
        v_and_b32 v114, 0xffff, v{OFR+i}
        v_add_u32 v114, v114, v112
        v_mad_u32_u24 v{108+i}, v114, 12, v113""")
        if i < 3: a(f"v_add_u32 v113, {(512 >> LSH)*CE*12}, v113")
    def rec_loads(rnd):
        for i in range(4):
            k = 4*rnd + i
            a(f"s_mov_b64 exec, {sr(MASK+2*k,2)}\ns_cbranch_execz L2_r{k}")
            a(f"""buffer_load_dwordx3 {vr(RECR+4*k,3)}, v{108+i}, s[32:35], 0 offen offset:{12*LPS*rnd}
            L2_r{k}:""")
        full(a)
    for rnd in range(3):
        if rnd: a(f"v_add_u32 v112, {LPS}, v112")
        for i in range(4): a(f"v_cmp_lt_u32 {sr(MASK+2*(4*rnd+i),2)}, v112, v{104+i}")
        if rnd < 2: rec_loads(rnd)
    a(f"""s_or_b64 s[96:97], {sr(MASK+16,2)}, {sr(MASK+18,2)}
    s_or_b64 s[98:99], {sr(MASK+20,2)}, {sr(MASK+22,2)}
    s_or_b64 s[96:97], s[96:97], s[98:99]
    s_cselect_b32 s{S_R2}, 1, 0
    s_cbranch_scc1 L2_x0""")
    cold(a, "L2_x0", lambda: rec_loads(2))
    a(f"s_cmp_eq_u32 s{S_FIRST}, 0\ns_cbranch_scc1 L2_b2")
    a(f"""v_lshrrev_b32 v104, 16, v{OFR}
    v_lshrrev_b32 v105, 16, v{OFR+1}
    v_lshrrev_b32 v106, 16, v{OFR+2}
    v_lshrrev_b32 v107, 16, v{OFR+3}
    v_max3_u32 v104, v104, v105, v106
    v_max_u32 v254, v104, v107""")
    a(f"""    s_lshl_b32 s96, s{S_CG}, 10
    s_lshl_b32 s97, s{S_CG}, 8
    s_add_u32 s97, s97, 4096
    v_lshlrev_b32 v115, 3, v{L}
    v_and_b32 v116, 0xf8, v115""")
    srd(a, 44, WS, STAT, 8192)
    a(f"""buffer_load_dwordx2 {vr(B2R[0]+2,2)}, v115, s[44:47], s96 offen
    buffer_load_dwordx2 {vr(B2R[1]+2,2)}, v115, s[44:47], s96 offen offset:512
    buffer_load_dwordx2 v[126:127], v116, s[44:47], s97 offen""")
    a("s_cmp_eq_u32 s3, 3\ns_cbranch_scc1 L2_x1")
    def g1():
        srd(a, 44, WS, MAXA, 196*4); srd(a, 48, WS, MAXE, (CH*4+15)//16*16); srd(a, 28, WS, MAXW_G, 4)
        a(f"""v_mov_b32 v116, 0
        buffer_load_dwordx4 v[244:247], v{L16}, s[44:47], 0 offen
        buffer_load_dwordx4 v[248:251], v{L16}, s[48:51], 0 offen
        buffer_load_dword v171, v116, s[28:31], 0 offen""")
    cold(a, "L2_x1", g1)
    a(f"""s_cmp_eq_u32 s{S_GRP}, 0
    s_cbranch_scc1 L2_b2
    s_lshl_b32 s97, s{S_CG}, 12
    s_add_u32 m0, s97, {L_BT}
    s_lshl_b32 s96, s{S_NEG}, 8
    s_add_u32 s96, s96, s97""")
    for q in range(4):
        a(f"buffer_load_dwordx4 v{117+q%2}, s[40:43], s96 offen nt lds")
        if q == 1: a("v_xor_b32 v117, 128, v117\nv_xor_b32 v118, 128, v118")
        if q < 3: a("s_add_u32 m0, m0, 1024\ns_add_u32 s96, s96, 1024")
    a(f"""    s_cmp_eq_u32 s{S_GRP}, 0
    s_cbranch_scc1 L2_b2""")
    PFE = OPT.get("pfe", 0)
    if PFE:
        srd(a, 44, WS, None, N*512)
        a(f"""s_lshr_b32 s96, s2, 3
        s_lshl_b32 s96, s96, 2
        s_add_u32 s96, s96, s{S_CG}
        s_mul_i32 s96, s96, {PFE*8192}
        v_lshlrev_b32 v116, 7, v{L}""")
        for q in range(PFE):
            a(f"buffer_load_dword v255, v116, s[44:47], s96 offen")
            if q < PFE-1: a("s_add_u32 s96, s96, 8192")
    a("""s_branch L2_wrec
    L2_b2:""")
    a(f"v_lshlrev_b32 v104, 4, v{TID}")
    for j in range(4): a(f"v_mov_b32 v{96+j}, -1\nv_mov_b32 v{100+j}, 0")
    a(f"ds_write_b128 v104, v[96:99] offset:{L_IDX}")
    for i in range(6): a(f"ds_write_b128 v104, v[100:103] offset:{L_CNT + 8192*i}")
    a(f"""v_cmp_gt_u32 vcc, {NZ - 3072}, v{TID}
    v_mov_b32 v96, {L_NULL}
    v_mov_b32 v97, {L_NULL}
    s_and_b64 exec, exec, vcc
    ds_write_b128 v104, v[100:103] offset:{L_CNT + 8192*6}
    s_mov_b64 exec, -1
    v_cmp_gt_u32 vcc, 128, v{TID}
    v_mov_b32 v98, {L_NULL}
    v_mov_b32 v99, {L_NULL}
    s_and_b64 exec, exec, vcc
    ds_write_b128 v104, v[96:99] offset:{L_QA}
    s_mov_b64 exec, -1
""")
    a(f"""s_cmp_eq_u32 s{S_FIRST}, 0
    s_cbranch_scc1 L2_rank0""")
    n_, h_, one, t0, t1, t2, t3, t4, t5 = 96, 97, 98, 99, 100, 101, 102, 103, 104
    a(f"""v_and_b32 v{n_}, 31, v{L}
    v_lshrrev_b32 v{h_}, 5, v{L}
    v_and_b32 v{t0}, 1, v{L}
    v_lshlrev_b32 v{t0}, 4, v{t0}
    v_mov_b32 v{one}, 0x3f80
    v_lshlrev_b32 v{one}, v{t0}, v{one}
    v_lshrrev_b32 v{t0}, 1, v{n_}
    v_lshlrev_b32 v{t1}, 2, v{h_}
    v_sub_u32 v{t0}, v{t0}, v{t1}
    v_lshlrev_b32 v175, 1, v{n_}""")
    if not OPT['smf']:
        for q in range(8):
            a(f"v_cmp_eq_u32 {sr(94+2*(q%3),2)}, {8*(q//4) + q%4}, v{t0}")
            if q >= 1: a(f"v_cndmask_b32 v{ID0+q-1}, 0, v{one}, {sr(94+2*((q-1)%3),2)}")
        a(f"v_cndmask_b32 v{ID0+7}, 0, v{one}, {sr(94+2*(7%3),2)}")
    a(f"""v_bfe_u32 v{t1}, v{n_}, 2, 1
    v_lshrrev_b32 v{t2}, 4, v{n_}
    v_and_b32 v{t3}, 1, v{n_}
    v_xor_b32 v{t4}, v{t1}, v{h_}
    v_lshl_or_b32 v{t4}, v{t4}, 1, v{t3}
    v_cmp_eq_u32 s[94:95], 0, v{t4}
    v_cmp_eq_u32 s[96:97], 1, v{t4}
    v_lshlrev_b32 v{t4}, 4, v{t2}
    v_mov_b32 v{one}, 0x3f80
    v_lshlrev_b32 v{one}, v{t4}, v{one}
    v_cndmask_b32 v{A2[0]}, 0, v{one}, s[94:95]
    v_cndmask_b32 v{A2[0]+1}, 0, v{one}, s[96:97]
    v_cndmask_b32 v{A2[1]}, 0, v{one}, s[94:95]
    v_cndmask_b32 v{A2[1]+1}, 0, v{one}, s[96:97]
    v_lshlrev_b32 v{t1}, 4, v{t1}
    v_lshl_or_b32 v{t1}, v{t3}, 3, v{t1}
    v_lshl_or_b32 v{t1}, v{t2}, 2, v{t1}
    v_bfe_u32 v{t4}, v{n_}, 3, 1
    v_lshl_or_b32 v{t1}, v{t4}, 1, v{t1}
    v_bfe_u32 v{t5}, v{n_}, 1, 1
    v_or_b32 v{t1}, v{t1}, v{t5}
    v_lshlrev_b32 v{ESIG}, 3, v{t1}
    v_lshl_add_u32 v{ESIG}, v{h_}, 2, v{ESIG}""")
    if OPT["smf"]:
        a(f"""v_lshrrev_b32 v{t2}, 4, v{t1}
        v_bfe_u32 v{t3}, v{t1}, 2, 1
        v_lshl_or_b32 v{t2}, v{t2}, 1, v{t3}
        v_and_b32 v{t3}, 3, v{t1}
        v_lshlrev_b32 v{t4}, 2, v{t2}
        v_lshlrev_b32 v{ID1}, v{t4}, v{t3}
        v_bfe_u32 v{t3}, v{t1}, 3, 1
        v_xor_b32 v{t3}, v{t3}, v{h_}
        v_lshl_or_b32 v{t2}, v{t3}, 2, v{t2}
        v_mov_b32 v{one}, 0x3f80""")
        for q in range(4): a(f"v_cmp_eq_u32 {sr(56+0,2) if False else sr(94+2*(q%3),2)}, {q}, v{t2}" + (f"\nv_cndmask_b32 v{ID0+q-1}, 0, v{one}, {sr(94+2*((q-1)%3),2)}" if q else "\ns_nop 0"))
        a(f"""v_bfe_u32 v{t1}, v{L}, 2, 2
        v_cndmask_b32 v{ID0+3}, 0, v{one}, {sr(94,2)}
        v_lshl_add_u32 v{t2}, v{h_}, 4, v{t1}
        v_lshlrev_b32 v{t2}, 7, v{t2}
        v_lshrrev_b32 v{t1}, 1, v{t1}
        v_lshl_add_u32 v{t2}, v{t1}, 6, v{t2}
        v_bfe_u32 v{t1}, v{L}, 4, 1
        v_lshl_add_u32 v{t2}, v{t1}, 5, v{t2}
        v_and_b32 v{t3}, 3, v{L}
        v_lshl_add_u32 v{t2}, v{t3}, 3, v{t2}
        v_add_u32 v{RA}, s{S_STG}, v{t2}
        v_xor_b32 v{RA+1}, 64, v{RA}
        v_lshlrev_b32 v{t2}, 2, v{t1}""")
    else:
        a(f"""v_bfe_u32 v{t3}, v{t1}, 1, 3
        v_xor_b32 v{t3}, v{t3}, v{h_}
        v_lshlrev_b32 v{t3}, 4, v{t3}
        v_lshl_add_u32 v{t3}, v{t1}, 7, v{t3}
        v_add_u32 v{RA}, s{S_STG}, v{t3}""")
        for s in range(1, 4): a(f"v_xor_b32 v{RA+s}, {32*s}, v{RA}")
        a(f"v_lshrrev_b32 v{t2}, 4, v{L}")
    a(f"""v_and_b32 v{t3}, 7, v{L}
    v_xor_b32 v{t2}, v{t2}, v{t3}
    s_lshl_b32 s96, s{S_CG}, 7
    v_lshl_add_u32 v{IP+1}, v{t2}, 4, s96
    v_xor_b32 v{IP+3}, {0 if OPT['smf'] else 64}, v{IP+1}
    v_mov_b32 v{IP+5}, v{IP+1}
    v_mov_b32 v{IP+7}, v{IP+3}
    v_bfe_u32 v{t1}, v{L}, 4, 1
    v_lshlrev_b32 v{t1}, 5, v{t1}
    v_and_b32 v{t3}, 3, v{L}
    v_lshl_add_u32 v{t1}, v{t3}, 3, v{t1}
    v_add_u32 v{QST}, s96, v{t1}
    v_bfe_u32 v{t1}, v{L}, 2, 2
    v_lshl_add_u32 v{QOFF}, v{h_}, 2, v{t1}
    v_lshlrev_b32 v{QOFF}, 2, v{QOFF}
    s_cmp_lg_u32 s{S_GRP}, 0
    s_cbranch_scc1 L2_batch
    L2_wrec:""")
    dpp_red(a, "v_max_u32", 254)
    stamp(a, 3, ST)
    WE0 = OPT.get('we0', 0)
    WL = 8 - WE0//2
    a(f"""s_cmp_lg_u32 s{S_GRP}, 0
    s_cbranch_scc1 L2_rk1
    s_mul_i32 s99, s{S_CG}, {1024*WE0}
    s_add_u32 m0, s99, {L_STG}""")
    for q in range(WE0):
        if q % 4 == 0 and q: a("s_add_u32 m0, m0, 4096\ns_add_u32 s99, s99, 4096")
        a(f"buffer_load_dwordx4 v{L16}, s[52:55], s99 offen offset:{1024*(q%4)} lds")
    a(f"""s_waitcnt vmcnt({6+WE0})
    s_cmp_eq_u32 s3, 3
    s_cbranch_scc1 L2_rank2
    s_waitcnt vmcnt({3+WE0})
    s_branch L2_rank2
    L2_rk1:
    s_waitcnt vmcnt(7)
    s_branch L2_rank2
    L2_rank0:
    s_waitcnt vmcnt(0)
    L2_rank2:
    s_waitcnt lgkmcnt(0)
    s_barrier""")
    stamp(a, 5, ST)
    RK = 96
    def rank(ks):
        for k in ks:
            a(f"""s_mov_b64 exec, {sr(MASK+2*k,2)}
            v_lshrrev_b32 v{RK+k}, 14, v{RECR+4*k+2}
            ds_add_rtn_u32 v{RECR+4*k+3}, v{RK+k}, v{VONE} offset:{L_CNT}""")
    rank(range(8))
    a(f"s_cmp_lg_u32 s{S_R2}, 0\ns_cbranch_scc1 L2_x2")
    cold(a, "L2_x2", lambda: rank(range(8, 12)))
    a(f"""L2_k12:
    s_mov_b64 exec, -1
    v_mov_b32 v63, 0
    s_cmp_eq_u32 s{S_FIRST}, 0
    s_cbranch_scc1 L2_k13
    s_mov_b32 exec_lo, 0
    s_mov_b32 exec_hi, 0x80000000
    ds_max_u32 v63, v254 offset:{L_MISC+4}
    s_mov_b64 exec, -1""")
    if WL:
        a(f"s_mul_i32 s99, s3, {1024*WL}\ns_add_u32 s99, s99, {4096*WE0}\ns_add_u32 m0, s99, {L_STG}")
        for q in range(WL):
            if q == 4: a("s_add_u32 m0, m0, 4096\ns_add_u32 s99, s99, 4096")
            a(f"buffer_load_dwordx4 v{L16}, s[52:55], s99 offen offset:{1024*(q%4)} lds")
    a("s_cmp_eq_u32 s3, 3\ns_cbranch_scc1 L2_x3")
    def g2():
        a(f"""s_waitcnt vmcnt({WE0+WL})
        v_max3_u32 v244, v244, v245, v246
        v_max3_u32 v248, v248, v249, v250
        v_max_u32 v244, v244, v247
        v_max_u32 v248, v248, v251""")
        dpp_red(a, "v_max_u32", [244, 248])
        a(f"""v_mul_f32 v171, v171, v248
        v_sqrt_f32 v171, v171
        v_mov_b32 v54, {f2u(28.0)}
        v_add_f32 v171, v244, v171
        v_mov_b32 v55, {f2u(8.0)}
        v_cmp_nlt_f32 vcc, v171, v54
        v_cmp_nlt_f32 s[94:95], v171, v55
        v_cndmask_b32 v54, 0, v{VONE}, vcc
        v_cndmask_b32 v55, 0, v{VONE}, s[94:95]
        v_add_u32 v171, v54, v55""")
        lane63(a); a(f"ds_write_b32 v63, v171 offset:{L_MISC}"); full(a)
    cold(a, "L2_x3", g2)
    CL, CU, C_, PC, O1, O2, R3 = 48, 49, 50, 51, 52, 53, 54
    I1, I2, I3 = 56, 57, 58
    TL, TH = 108, 112
    HM = (0xffffffff << SPLIT) & 0xffffffff
    a(f"""L2_k13:
    s_waitcnt lgkmcnt(0)
    s_barrier
    ds_read_b32 v{CL}, v{L16} offset:{L_CNT}
    ds_read_b32 v{CU}, v{L16} offset:{L_CNT+1024}
    ds_read_b64 v[60:61], v63 offset:{L_MISC}
    s_waitcnt lgkmcnt(1)
    v_add_u32 v{C_}, v{CL}, v{CU}
    v_and_b32 v{O1}, -8, v{CL}
    v_add_u32 v{PC}, 3, v{C_}
    v_mov_b32 v{I1}, v{O1}
    v_and_b32 v{PC}, -4, v{PC}
    v_sub_u32 v{R3}, v{PC}, v{O1}
    v_and_b32 v{O2}, -8, v{R3}
    v_and_b32 v{R3}, 4, v{R3}
    v_mov_b32 v{I2}, v{O2}
    v_mov_b32 v{I3}, v{R3}""")
    dpp_red(a, "v_add_u32", [I1, I2, I3])
    a(f"""v_readlane_b32 s94, v{I1}, 63
    v_readlane_b32 s95, v{I2}, 63
    v_readlane_b32 s96, v{I3}, 63
    v_readlane_b32 s97, v{I1}, {SPLIT-1}
    v_readlane_b32 s98, v{I2}, {SPLIT-1}
    v_readlane_b32 s99, v{I3}, {SPLIT-1}
    v_readlane_b32 s28, v{I1}, 31
    v_sub_u32 v{I1}, v{I1}, v{O1}
    v_sub_u32 v{I2}, v{I2}, v{O2}
    v_sub_u32 v{I3}, v{I3}, v{R3}
    s_cmp_eq_u32 s{S_FIRST}, 0
    s_cbranch_scc1 L2_s1
    s_waitcnt lgkmcnt(0)
    v_readfirstlane_b32 s{S_MAXC}, v61
    v_readfirstlane_b32 s{S_SAFE}, v60
    s_mov_b32 s{S_FIRST}, 0""")
    if PF:
        srd(a, 44, WS, None, N*512)
        a(f"""s_lshr_b32 s43, s2, 3
        s_lshl_b32 s43, s43, 3
        s_add_u32 s43, s43, s3
        s_mul_i32 s43, s43, {128*OPT.get("pfl", 64)}
        v_lshlrev_b32 v55, 7, v{L}
        s_mov_b32 exec_hi, {(1 << (OPT.get("pfl", 64) - 32)) - 1}
        buffer_load_dword v255, v55, s[44:47], s43 offen
        s_mov_b32 exec_hi, -1""")
    a(f"""L2_s1:
    s_sub_u32 s94, s94, s97
    s_sub_u32 s95, s95, s98
    s_sub_u32 s96, s96, s99
    s_add_u32 s29, s97, s98
    s_add_u32 s30, s29, s99
    s_add_u32 s30, s30, 7
    s_and_b32 s30, s30, -8
    s_sub_u32 s31, s30, s97
    s_add_u32 s28, s28, s31
    s_add_u32 s40, s30, s94
    s_add_u32 s41, s40, s95
    s_add_u32 s42, s41, s96
    s_add_u32 s{S_CUT}, s42, {OPT.get('cb', 63)}
    s_lshr_b32 s{S_CUT}, s{S_CUT}, 6
    s_add_u32 s43, s30, 31
    s_lshr_b32 s43, s43, 5
    s_max_u32 s{S_CUT}, s{S_CUT}, s43
    s_add_u32 s43, s28, 31
    s_lshr_b32 s43, s43, 5
    s_min_u32 s{S_CUT}, s{S_CUT}, s43
    s_lshl_b32 s43, s{S_CUT}, 5
    s_max_u32 s43, s43, s28
    s_sub_u32 s43, s43, s28
    s_add_u32 s40, s40, s43
    s_add_u32 s41, s41, s43
    s_add_u32 s42, s42, s43
    s_sub_u32 s40, s40, s98
    s_sub_u32 s52, s41, s99
    s_mov_b32 exec_lo, {HM ^ 0xffffffff}
    s_mov_b32 exec_hi, 0
    v_add_u32 v{I2}, s97, v{I2}
    v_add_u32 v{I3}, s29, v{I3}
    s_mov_b32 exec_lo, {HM}
    s_mov_b32 exec_hi, -1
    v_add_u32 v{I1}, s31, v{I1}
    v_add_u32 v{I2}, s40, v{I2}
    v_add_u32 v{I3}, s52, v{I3}
    s_mov_b32 exec_lo, 0
    v_add_u32 v{I1}, s43, v{I1}
    s_mov_b64 exec, -1
    v_add_u32 v{O2}, v{O1}, v{O2}
    v_sub_u32 v{I2}, v{I2}, v{O1}
    v_sub_u32 v{I3}, v{I3}, v{O2}
    v_lshl_or_b32 v{TL}, v{O2}, 16, v{O1}
    v_mov_b32 v{TL+1}, v{I1}
    v_mov_b32 v{TL+2}, v{I2}
    v_mov_b32 v{TL+3}, v{I3}
    v_max_u32 v55, v{O2}, v{CL}
    v_sub_u32 v55, v55, v{CL}
    v_lshlrev_b32 v{TH}, 16, v55
    v_add_u32 v{TH+2}, v{I2}, v{CL}
    v_add_u32 v{TH+3}, v{I3}, v{CL}
    ds_write_b128 v{L16}, {vr(TL,4)} offset:{L_TBL}
    ds_write_b128 v{L16}, {vr(TH,4)} offset:{L_TBL+1024}
    s_add_u32 s96, s42, 31
    s_lshr_b32 s96, s96, 5
    s_cmp_lg_u32 s{S_SLOW}, 0
    s_cbranch_scc1 L2_s2
    s_cmp_gt_u32 s96, {CAPT}
    s_cselect_b32 s97, 1, 0
    s_cmp_gt_u32 s{S_MAXC}, {3*LPS}
    s_cselect_b32 s97, 1, s97
    s_cmp_lg_u32 s97, 0
    s_cbranch_scc1 L2_slow
    L2_s2:""")
    stamp(a, 6, ST)
    TB = W2R
    for k in range(8): a(f"s_mov_b64 exec, {sr(MASK+2*k,2)}\nds_read_b128 {vr(TB+4*k,4)}, v{RK+k} offset:{L_TBL}")
    a(f"""s_mov_b64 exec, -1
    v_add_u32 v{DEG}, v{DEG}, v{C_}
    s_lshr_b32 s29, s29, 6
    s_lshl_b32 s29, s29, 1
    s_lshr_b32 s41, s41, 5
    s_max_u32 s41, s41, s{S_CUT}
    s_sub_u32 s41, s41, s{S_CUT}
    s_and_b32 s41, s41, -2
    s_cmp_eq_u32 s{S_SAFE}, 0
    s_cselect_b32 s29, s29, 0
    s_cselect_b32 s41, s41, 0
    s_add_u32 s30, s29, 3
    s_lshr_b32 s30, s30, 2
    s_sub_u32 s31, s{S_CUT}, s29
    s_add_u32 s31, s31, 1
    s_lshr_b32 s31, s31, 1
    s_add_u32 s31, s31, s30
    s_add_u32 s40, s41, 3
    s_lshr_b32 s40, s40, 2
    s_add_u32 s40, s40, s31
    s_min_u32 s98, s{S_CUT}, s96
    s_sub_u32 s99, s96, s98
    s_cmp_eq_u32 s{S_GRP}, 0
    s_cselect_b32 s{S_N}, s98, s99
    s_cselect_b32 s{S_T0}, 0, s{S_CUT}
    s_cselect_b32 s{S_NO}, s29, s41
    s_cselect_b32 s53, 0, s31
    s_add_u32 s41, s41, s{S_CUT}
    s_lshl_b32 s30, s30, 1
    s_sub_u32 s30, s30, s29
    s_lshl_b32 s31, s31, 2
    s_sub_u32 s31, s31, s{S_CUT}
    s_lshl_b32 s40, s40, 1
    s_sub_u32 s40, s40, s41
    v_cmp_eq_u32 vcc, 0, v{R3}
    s_cmp_ge_u32 s3, 3
    s_cbranch_scc1 L2_pad
    v_add_u32 v55, s3, v{C_}
    v_cndmask_b32 v59, v{I3}, v{I2}, vcc
    v_cmp_lt_u32 vcc, v55, v{PC}
    s_lshr_b32 s96, s{S_SAFE}, 1
    s_add_u32 s96, s96, {N}
    s_and_b64 exec, exec, vcc
    v_mov_b32 v60, s96
    v_add_lshl_u32 v55, v55, v59, 2
    ds_write_b32 v55, v60 offset:{L_IDX}
    s_mov_b64 exec, -1
    L2_pad:""")
    for r in (PC, O1, O2, I1, I2, I3): a(f"v_lshrrev_b32 v{r}, 2, v{r}")
    QA_, ONE, NC1, Q, T, U, V = 48, 49, 50, 54, 55, 59, 60
    a(f"""v_mul_u32_u24 v{QA_}, {BTS}, v{L}
    v_add_u32 v{QA_}, {L_BT}, v{QA_}
    v_mov_b32 v{ONE}, 0x3f80
    v_subrev_u32 v{NC1}, {17*16}, v{L16}
    v_mov_b32 v61, s30
    v_mov_b32 v62, s40
    s_mov_b32 s97, s3
    L2_q:
    v_cmp_lt_u32 s[94:95], s97, v{O2}
    v_cmp_lt_u32 s[98:99], s97, v{O1}
    v_cmp_lt_u32 vcc, s97, v{PC}
    v_cndmask_b32 v{Q}, v{I3}, v{I2}, s[94:95]
    s_and_b64 exec, exec, vcc
    s_cbranch_execz L2_qd
    v_cndmask_b32 v{Q}, v{Q}, v{I1}, s[98:99]
    v_add_u32 v{Q}, s97, v{Q}
    v_lshrrev_b32 v{T}, 3, v{Q}
    v_lshlrev_b32 v{U}, 2, v{Q}
    ds_write_b32 v{U}, v{QA_} offset:{L_QA}
    v_cmp_le_u32 vcc, s{S_CUT}, v{T}
    v_cmp_gt_u32 s[94:95], s29, v{T}
    v_cmp_gt_u32 s[98:99], s41, v{T}
    v_and_b32 v{V}, 4, v{Q}
    v_cndmask_b32 v{U}, v{L16}, v{NC1}, vcc
    v_lshl_add_u32 v{U}, v{V}, 7, v{U}
    v_and_b32 v{V}, 2, v{Q}
    v_add_u32 v{U}, v{U}, v{V}
    s_and_b64 s[98:99], s[98:99], vcc
    s_or_b64 s[94:95], s[94:95], s[98:99]
    v_cndmask_b32 v{V}, v61, v62, vcc
    v_add_u32 v{V}, v{V}, v{T}
    v_and_b32 v{Q}, 1, v{Q}
    v_lshl_or_b32 v{Q}, v{V}, 1, v{Q}
    v_mov_b32 v{V}, s31
    v_cndmask_b32 v{V}, 0, v{V}, vcc
    v_add_u32 v{V}, v{V}, v{T}
    v_cndmask_b32 v{Q}, v{Q}, v{V}, s[94:95]
    v_and_b32 v{V}, -4, v{Q}
    v_lshl_add_u32 v{U}, v{V}, 8, v{U}
    v_and_b32 v{V}, 3, v{Q}
    v_lshl_add_u32 v{U}, v{V}, 2, v{U}
    ds_write_b16 v{U}, v{ONE} offset:{L_P}
    s_add_u32 s97, s97, 8
    s_branch L2_q
    L2_qd:
    s_mov_b64 exec, -1
    s_cmp_lg_u32 s{S_BDONE}, 0
    s_cbranch_scc1 L2_o1
    v_and_b32 v54, 31, v{L}
    v_lshrrev_b32 v55, 5, v{L}
    v_and_b32 v56, 15, v{L}
    v_xor_b32 v56, v56, v55
    v_lshlrev_b32 v56, 4, v56
    v_lshl_add_u32 v56, v54, 8, v56
    s_lshl_b32 s96, s{S_GRP}, 13
    s_add_u32 s96, s96, {L_BT}
    v_add_u32 v56, s96, v56
    s_lshl_b32 s96, s{S_CG}, 14
    s_add_u32 s96, s96, {L_STG}
    v_add_u32 v125, s96, v{L16}
    """)
    stamp(a, 16, ST)
    a(f"""s_waitcnt vmcnt({PF}) lgkmcnt(0)
    s_barrier""")
    stamp(a, 17, ST)
    for s in range(8):
        a(f"ds_read_b128 {vr(64+4*s,4)}, v56")
        if s < 7: a(f"v_xor_b32 v56, {32*(s ^ (s+1))}, v56")
    for q in range(8, 16): a(f"ds_read_b128 {vr(W2R+4*q,4)}, v125 offset:{1024*q}")
    a(f"""s_branch L2_o2
    L2_o1:
    s_waitcnt lgkmcnt(0)
    L2_o2:""")
    def scatter(ks):
        P = ((94, 96), (28, 30), (40, 42))
        def st1(k):
            r, tb = RECR+4*k+3, TB+4*(k % 8)
            a(f"""v_cmp_lt_u32_sdwa {sr(P[k%3][0],2)}, v{r}, v{tb} src0_sel:DWORD src1_sel:WORD_1
            v_cmp_lt_u32_sdwa {sr(P[k%3][1],2)}, v{r}, v{tb} src0_sel:DWORD src1_sel:WORD_0""")
        def st2(k):
            r, m, tb = RECR+4*k+3, RECR+4*k+2, TB+4*(k % 8)
            a(f"""v_cndmask_b32 v{tb+3}, v{tb+3}, v{tb+2}, {sr(P[k%3][0],2)}
            v_cndmask_b32 v{tb+3}, v{tb+3}, v{tb+1}, {sr(P[k%3][1],2)}
            v_and_b32 v{m}, {OPT.get('imask', 0x3fff)}, v{m}
            v_add_lshl_u32 v{tb+3}, v{tb+3}, v{r}, 2
            v_lshlrev_b32 v{tb}, 1, v{tb+3}""")
        st1(ks[0])
        for i, k in enumerate(ks):
            if i + 1 < len(ks): st1(ks[i+1])
            st2(k)
        for k in ks:
            tb = TB+4*(k % 8)
            a(f"""s_mov_b64 exec, {sr(MASK+2*k,2)}
            ds_write_b32 v{tb+3}, v{RECR+4*k+2} offset:{L_IDX}
            ds_write_b64 v{tb}, {vr(RECR+4*k,2)} offset:{L_EA}""")
    scatter(list(range(8)))
    a(f"s_cmp_lg_u32 s{S_R2}, 0\ns_cbranch_scc1 L2_x4")
    def sc2():
        for k2 in range(8, 12):
            a(f"""s_mov_b64 exec, {sr(MASK+2*k2,2)}
            v_lshrrev_b32 v{RK+k2-8}, 14, v{RECR+4*k2+2}
            ds_read_b128 {vr(TB+4*(k2-8),4)}, v{RK+k2-8} offset:{L_TBL}""")
        a("s_mov_b64 exec, -1\ns_waitcnt lgkmcnt(0)")
        scatter(list(range(8, 12)))
    cold(a, "L2_x4", sc2)
    a(f"""L2_c12:
    s_mov_b64 exec, -1
    s_cmp_lg_u32 s{S_BDONE}, 0
    s_cbranch_scc1 L2_c13""")
    for q in range(8): a(f"ds_read_b128 {vr(W2R+4*q,4)}, v125 offset:{1024*q}")
    a(f"""L2_c13:
    s_lshl_b32 s96, s{S_T0}, 7
    s_add_u32 s96, s96, {L_IDX-256}
    v_lshrrev_b32 v54, 3, v{L}
    v_lshl_add_u32 v{IB}, v54, 2, s96
    s_lshl_b32 s96, s{S_T0}, 8
    s_add_u32 s96, s96, {L_EA-512}
    v_add_u32 v{EB}, s96, v{ESIG}
    s_lshl_b32 s96, s{S_T0}, 5
    s_add_u32 s96, s96, {L_QA-64}
    v_add_u32 v{QB}, s96, v{QOFF}
    s_lshl_b32 s96, s53, 10
    s_add_u32 s96, s96, {L_P-1024}
    v_add_u32 v{PB}, s96, v{L16}""")
    for j in range(8): a(f"v_mov_b32 v{HQ0+j}, 0")
    for j in range(4): a(f"v_mov_b32 v{PP+j}, 0\nv_mov_b32 v{EE+2*j+1}, v{IP+2*j+1}")
    a(f"""v_and_b32 v48, 31, v{L}
    v_lshrrev_b32 v49, 5, v{L}
    v_bfe_u32 v50, v48, 1, 3
    v_lshlrev_b32 v50, 4, v50
    v_lshl_add_u32 v50, v48, 7, v50
    v_lshl_add_u32 v51, v49, 3, v50
    v_add_u32 v251, s{S_STG}, v51
    v_lshlrev_b32 v52, 4, v49
    v_xor_b32 v50, v50, v52
    s_lshl_b32 s97, s{S_GRP}, 15
    s_add_u32 s97, s97, {L_STG}
    v_add_u32 v244, s97, v50
    v_xor_b32 v245, 32, v244
    v_xor_b32 v246, 64, v244
    v_xor_b32 v247, 96, v244
    s_lshl_b32 s97, s{S_GRP}, 7
    v_lshl_add_u32 v254, v49, 4, s97
    s_lshl_b32 s96, s{S_CG}, 7
    s_add_u32 s96, s96, {L_P-512}
    v_lshlrev_b32 v248, 11, v49
    v_lshl_add_u32 v248, v48, 2, v248
    v_add_u32 v248, s96, v248
    s_mul_i32 s96, s{S_GRP}, {17*256}
    s_lshl_b32 s97, s{S_CG}, 6
    s_add_u32 s96, s96, s97
    v_lshlrev_b32 v249, 10, v49
    v_and_b32 v52, 1, v48
    v_lshl_add_u32 v249, v52, 8, v249
    v_and_b32 v53, 30, v48
    v_lshl_add_u32 v249, v53, 1, v249
    v_cmp_eq_u32 vcc, 0, v52
    v_mov_b32 v53, 0x07060302
    v_mov_b32 v55, 0x01000504
    v_cndmask_b32 v250, v53, v55, vcc
    v_add_u32 v249, s96, v249""")
    srd(a, 44, WS, W2OP, 65536); srd(a, 48, B2, None, 256)
    a(f"""s_mov_b32 s38, {AROWS}
    s_mov_b32 s{S_N0}, s{S_N}
    s_waitcnt lgkmcnt(0)
    s_barrier""")
    stamp(a, 7, ST)
    def prime01():
        rd_idx(a, 2)
        for u in range(4): a(f"ds_read_b32 v{EE+2*u}, v{IB} offset:{128*3+32*u}")
        a("s_waitcnt lgkmcnt(4)"); dma(a, 0)
        rd_idx(a, 4)
        a(f"s_add_u32 m0, s{S_STG}, 4096\ns_waitcnt lgkmcnt(4)")
        for u in range(4):
            a(f"buffer_load_dwordx4 {vr(EE+2*u,2)}, s[36:39], 0 idxen offen lds")
            if u < 3: a("s_add_u32 m0, m0, 1024")
    a(f"""s_sub_u32 s96, s{S_GRP}, s{S_BDONE}
    s_cmp_eq_u32 s96, 1
    s_cbranch_scc1 L2_p0""")
    prime01()
    a("L2_p0:")
    a(f"""ds_read_b32 v{QV[0]}, v{QB} offset:64
    ds_read_b32 v{QV[1]}, v{QB} offset:96
    ds_read2st64_b32 {vr(A2[0]+2,2)}, v{EB} offset0:2 offset1:2
    v_mov_b32 v53, 0""")
    stamp(a, 13, ST)
    a(f"""s_cmp_lg_u32 s{S_BDONE}, 0
    s_cbranch_scc1 L2_p2""")
    for s in range(8): a(mfma(0, 64+4*s, W2R+4*s, None if s == 0 else 0))
    a(f"""s_mov_b32 s94, {NLOG2E}
    s_mov_b32 s{S_BDONE}, 1
    v_lshrrev_b32 v49, 5, v{L}
    s_lshl_b32 s96, s{S_CG}, 7
    v_lshl_add_u32 v50, v175, 1, s96
    v_mul_u32_u24 v51, {4*BTS}, v49
    s_mul_i32 s96, s{S_GRP}, {32*BTS}
    s_add_u32 s96, s96, {L_BT}
    v_add3_u32 v51, v51, v50, s96
    v_mov_b32 v52, 1.0
    s_nop 1""")
    for s in range(8):
        a(mfma(16, 64+4*s, W2R+32+4*s, None if s == 0 else 16))
        for j in range(2*s, 2*s+2): a(f"v_fma_f32 v{j}, v{j}, s94, v126")
        a(f"v_max3_f32 v52, |v{2*s}|, |v{2*s+1}|, v52")
    a(mfma(S0, HQ0, PP, None)); a(mfma(S1, HQ0, PP, None))
    for j in range(16):
        if j == 8: a(f"s_cmp_eq_u32 s{S_GRP}, 0\ns_cselect_b32 exec_hi, -1, 0")
        if j == 9: a("s_cbranch_scc0 L2_bz")
        a(f"""v_fma_f32 v{16+j}, v{16+j}, s94, v127
        v_cvt_pk_bf16_f32 v{j}, v{j}, v{16+j}
        ds_write_b32 v51, v{j} offset:{(8*(j//4) + j % 4)*BTS}""")
        if j & 1: a(f"v_max3_f32 v52, |v{15+j}|, |v{16+j}|, v52")
        if j == 8: a(f"v_max_f32 v52, |v{16+j}|, v52")
    a(f"""s_branch L2_bw
    L2_bz:
    ds_write_b32 v51, v53 offset:{17*BTS}
    s_mov_b64 exec, -1
    L2_bw:
    v_cmp_neq_f32 vcc, 1.0, v52
    s_cmp_eq_u64 vcc, 0
    s_cbranch_scc1 L2_bx
    ds_write_b32 v53, v{VONE} offset:{L_MISC+8}
    L2_bx:
    s_cmp_eq_u32 s{S_GRP}, 0
    s_cbranch_scc1 L2_by""")
    prime01()
    a("L2_by:")
    stamp(a, 14, ST)
    a(f"""s_waitcnt lgkmcnt(0)
    s_barrier
    L2_p2:
    ds_read_b32 v171, v53 offset:{L_MISC+8}
    s_waitcnt lgkmcnt(1)
    v_add_u32 v{QV[0]}, v{QV[0]}, v{QST}
    v_add_u32 v{QV[1]}, v{QV[1]}, v{QST}
    s_waitcnt vmcnt(4)""")
    stamp(a, 15, ST)
    rd_rows(a, 0)
    a(f"ds_read_b64_tr_b16 {vr(B2R[0],2)}, v{QV[0]}\ns_waitcnt lgkmcnt(0)")
    for m in tmf(D0, ALO, A2[0], B2R[0]): a(m)
    dma(a, 0); rd_idx(a, 5)
    group(a, 1, tail=False)
    a(f"""v_readfirstlane_b32 s96, v171
    s_cmp_eq_u32 s{S_SAFE}, 2
    s_cselect_b32 s96, 0, s96
    s_cmp_lg_u32 s96, 0
    s_cbranch_scc1 L2_redo
    s_cmp_eq_u32 s{S_N}, 0
    s_cbranch_scc1 L2_done""")
    stamp(a, 8, ST)
    if OPT.get("stag"):
        for k in range(3): a(f"s_cmp_le_u32 s{S_CG}, {k}\ns_cbranch_scc1 L2_stag\n" + "s_nop 15\n"*OPT["stag"])
        a("L2_stag:")
    if OPT.get("stamp"): a(f"v_writelane_b32 v{ST}, s{S_N}, 30")
    a(f"s_cmp_eq_u32 s{S_SAFE}, 2\ns_cbranch_scc1 L2_loopS\ns_cmp_eq_u32 s{S_NO}, 0\ns_cbranch_scc1 L2_loopF")
    main_loops(a)
    keep = a.L; a.L = []
    a(f"""L2_slow:
    s_mov_b32 s{S_SLOW}, 1
    s_mov_b32 s{S_LIM}, {LPS}
    s_mov_b32 s{S_IMASK}, 3
    s_waitcnt lgkmcnt(0)
    s_barrier
    s_branch L2_batch
    L2_redo:
    s_mov_b32 s{S_SAFE}, 2
    v_mov_b32 v{DEG}, 0
    s_waitcnt vmcnt(0) lgkmcnt(0)
    s_barrier
    s_branch L2_batch""")
    a.cold += a.L; a.L = keep
    a(f"""L2_end_odd:
    ds_read_b128 {vr(PP,4)}, v{PB}
    s_waitcnt lgkmcnt(0)""")
    a(mfma(S0, HQ0, PP, S0))
    a("L2_end_even:")
    a(mfma(S1, HQ1, PP, S1))
    a(f"""L2_done:
    s_waitcnt vmcnt(0)
    s_cmp_eq_u32 s{S_SLOW}, 0
    s_cbranch_scc1 L2_epi
    s_add_u32 s{S_BETA}, s{S_BETA}, 1
    s_lshr_b32 s{S_BASE}, s{S_BETA}, 1
    s_lshl_b32 s{S_BASE}, s{S_BASE}, {LSH}
    s_xor_b32 s{S_IMASK}, s{S_IMASK}, 15
    s_cmp_ge_u32 s{S_BASE}, s{S_MAXC}
    s_cbranch_scc1 L2_epi
    s_barrier
    s_branch L2_batch""")
    a(f"L2_epi:\ns_cmp_gt_u32 s{S_N0}, 4\ns_cbranch_scc1 L2_epi1")
    for k in range(4): w2chunk(a, k)
    a("s_waitcnt vmcnt(0)\nL2_epi1:")
    stamp(a, 9, ST)
    a(f"s_mov_b32 s94, {NLN2}")
    for u in range(8):
        a(f"""v_xor_b32 v{32+u}, {16*u}, v251
        v_cvt_pk_bf16_f32 v{16+2*u}, v{S0+4*u}, v{S0+4*u+1}
        v_cvt_pk_bf16_f32 v{17+2*u}, v{S0+4*u+2}, v{S0+4*u+3}
        ds_write_b64 v{32+u}, {vr(16+2*u,2)}""")
    a(f"""s_cmp_lg_u32 s3, 0
    s_cbranch_scc1 L2_e1
    v_cvt_f32_u32 v8, v{DEG}
    v_lshlrev_b32 v9, 2, v{L}
    s_mov_b32 exec_hi, 0
    ds_write_b32 v9, v8 offset:{L_DEG}
    s_mov_b32 exec_lo, 0xfffe0000
    s_mov_b32 exec_hi, 0x1ffff
    ds_write_b32 v9, v8 offset:{L_DEG+128-68}
    s_mov_b64 exec, -1
    L2_e1:
    v_lshlrev_b32 v240, 16, v{B2V}
    s_sub_u32 s96, {N}, s{S_NEG}
    s_min_u32 s96, s96, {NPB}
    s_lshl_b32 s96, s96, 8
    s_lshl_b32 s97, s{S_NEG}, 8""")
    srd(a, 52, OUT, "s97", "s96")
    a("""s_mov_b32 s97, 4096
    s_waitcnt lgkmcnt(0)
    s_barrier""")
    for s in range(16): a(f"ds_read_b128 {vr(4*s,4)}, v{244+s%4} offset:{8192*(s//4)}")
    for jq in range(4): a(f"ds_read_b128 {vr(96+4*jq,4)}, v254 offset:{L_DEG+32*jq}")
    stamp(a, 10, ST)
    O = 64
    for s in range(16):
        a(f"s_waitcnt lgkmcnt({min(15, 19-s)})")
        a(mfma(O, 4*s, W2R+4*s, None if s == 0 else O))
    a("s_waitcnt lgkmcnt(0)")
    for j in range(16): a(f"v_mul_f32 v{96+j}, v{96+j}, v240")
    a(f"s_cmp_eq_u32 s{S_GRP}, 0\ns_cbranch_scc1 L2_e2")
    for j in range(8): a(f"ds_write_b32 v248, v{O+j} offset:{(8*(j//4)+j%4+1)*512}")
    a("""L2_e2:
    s_waitcnt lgkmcnt(0)
    s_barrier""")
    def fin(js):
        for j in js: a(f"v_fma_f32 v{O+j}, v{O+j}, s94, v{96+j}")
        for j in js[::2]: a(f"v_cvt_pk_bf16_f32 v{16+j//2}, v{O+j}, v{O+j+1}")
        for j in js[::2]: a(f"v_mov_b32_dpp v{24+j//2}, v{16+j//2} quad_perm:[1,0,3,2] row_mask:0xf bank_mask:0xf")
        for j in js[::2]: a(f"v_perm_b32 v{16+j//2}, v{16+j//2}, v{24+j//2}, v250")
    def st(j):
        off = (8*(j//4) + j % 4)*256
        return f"buffer_store_dword v{16+j//2}, v249, s[52:55], {'0' if off < 4096 else 's97'} offen offset:{off % 4096}" + ('', ' sc1', ' nt', ' sc0 sc1')[OPT.get('osc', 0)]
    a(f"s_cmp_lg_u32 s{S_GRP}, 0\ns_cbranch_scc1 L2_e3")
    for j in range(8, 16): a(f"ds_read_b32 v{j}, v248 offset:{(8*(j//4)+j%4-16)*512}")
    fin(list(range(8)))
    for j in range(0, 8, 2): a(st(j))
    a(f"""s_waitcnt lgkmcnt(0)
    s_mov_b32 exec_lo, 0
    v_add_f32 v{O+8}, v{O+8}, v8
    s_mov_b64 exec, -1""")
    for j in range(9, 16): a(f"v_add_f32 v{O+j}, v{O+j}, v{j}")
    a("s_branch L2_e5\nL2_e3:")
    fin([6, 7])
    a("s_mov_b32 exec_lo, 0\ns_mov_b32 exec_hi, 0xaaaaaaaa")
    a(st(6)); a("s_mov_b64 exec, -1\nL2_e5:")
    fin(list(range(8, 16)))
    for j in range(8, 16, 2): a(st(j))
    stamp_dump(a, ST, 0, 1)
    a("L2_exit2:\ns_endpgm")
    a.L += a.cold
    a("L2_last:\ns_endpgm")


HEAD = """; edge-featured MPNN: K1 = edge partition by dst bucket + node tables + operand prep ; K2 = gather / silu / segment-sum / final GEMM
; @launch kernel=k1_kernel grid=({g1},1,1) block=(512,1,1) lds={l1}
; @launch kernel=k2_kernel grid=({g2},1,1) block=(512,1,1) lds={l2}
.amdgcn_target "amdgcn-amd-amdhsa--gfx950"
.text
"""
KD = """.amdhsa_kernel {name}
  .amdhsa_next_free_vgpr {v}
  .amdhsa_next_free_sgpr 102
  .amdhsa_accum_offset {v}
  .amdhsa_group_segment_fixed_size 0
  .amdhsa_kernarg_size 88
  .amdhsa_user_sgpr_count 2
  .amdhsa_user_sgpr_kernarg_segment_ptr 1
  .amdhsa_system_sgpr_workgroup_id_x 1
.end_amdhsa_kernel
"""


def build():
    out = HEAD.format(g1=K1_GRID, l1=K1_LDS, g2=NB, l2=K2_LDS)
    for name, fn in (("k1_kernel", k1), ("k2_kernel", k2)):
        a = Asm(); fn(a)
        out += f".globl {name}\n.p2align 8\n.type {name},@function\n" + a.text(verbose=OPT.get("v", 0))
    out += '.section .rodata,"a"\n.p2align 6\n' + KD.format(name="k1_kernel", v=128) + ".p2align 6\n" + KD.format(name="k2_kernel", v=256)
    return out


if __name__ == "__main__":
    open(sys.argv[1], "w").write(build())
```

```python
import sys, struct
from asmlib import Asm, vr, sr

OPT = dict(prio=1, prio_at=32, pf=1, ept=4, smf=1, gp=3, split=25, cb=95, mix=6, osc=1, pfl=40)
for a_ in sys.argv[2:]:
    k_, v_ = a_.split("="); OPT[k_] = int(v_)

N, E = 12500, 400000
NPB, NB = 49, 256
EPT = OPT["ept"]
CE = 400*EPT; CH = E//CE
LPS = 2*EPT
LSH = {8: 3, 16: 4}[LPS]
SPLIT, HALF = OPT.get('split', 23), OPT.get('half', 6250)
AROWS = N + 2
W2OP = 6401024 + 1024 - 6401024 % 1024 + 2048
STAT = W2OP + 65536
BIAS = STAT + 4096
W1BOP = STAT + 8192
MAXA = W1BOP + 65536
MAXE = MAXA + 1024
MAXW_G = MAXE + 1024
OFF = MAXW_G + 1024
REC = OFF + 256000
assert W2OP % 128 == 0 and REC % 128 == 0 and MAXA % 128 == 0
STAMPS = 24 << 20
NG = 208
K1_GRID = NG + 3 + CH
K1_LDS = 81920

def f2u(x): return struct.unpack("<I", struct.pack("<f", x))[0]
NLOG2E = f2u(-1.4426950408889634)
PLOG2E = NLOG2E ^ 0x80000000
NLN2 = f2u(-0.6931471805599453)
X, EA_, SRC, DST, W1, B1, W2, B2, OUT, DBG, WS = 4, 6, 8, 10, 12, 14, 16, 18, 20, 22, 24
SHR = ["row_shr:%d row_mask:0xf bank_mask:0xf bound_ctrl:0" % i for i in (1, 2, 4, 8)]
BC15, BC31 = "row_bcast:15 row_mask:0xa bank_mask:0xf", "row_bcast:31 row_mask:0xc bank_mask:0xf"


def srd(a, d, base, add, size, stride=0):
    if add is None:
        a(f"s_mov_b32 s{d}, s{base}\ns_mov_b32 s{d+1}, s{base+1}")
    else:
        a(f"s_add_u32 s{d}, s{base}, {add}\ns_addc_u32 s{d+1}, s{base+1}, 0")
    if stride: a(f"s_or_b32 s{d+1}, s{d+1}, {stride << 16}")
    a(f"s_mov_b32 s{d+2}, {size}\ns_mov_b32 s{d+3}, 0x00020000")


def ldargs(a):
    a("""s_load_dwordx16 s[4:19], s[0:1], 0
    s_load_dwordx4 s[20:23], s[0:1], 64
    s_load_dwordx2 s[24:25], s[0:1], 80""")


def dpp_red(a, op, vs, full=True):
    if isinstance(vs, int): vs = [vs]
    for m in SHR + [BC15] + ([BC31] if full else []):
        for v in vs: a(f"{op}_dpp v{v}, v{v}, v{v} {m}")


def stamp(a, k, reg):
    if not OPT.get("stamp"): return
    a(f"s_memrealtime s[100:101]\ns_waitcnt lgkmcnt(0)\nv_writelane_b32 v{reg}, s100, {k}")
    if k in (0, 7, 8, 9, 31): a(f"s_memtime s[100:101]\ns_waitcnt lgkmcnt(0)\nv_writelane_b32 v{reg}, s100, {32+k}")


def stamp_dump(a, reg, tmp, kern):
    if not OPT.get("stamp"): return
    a("s_mov_b64 exec, -1\ns_waitcnt vmcnt(0)")
    stamp(a, 31, reg)
    a(f"""s_lshl_b32 s96, s2, {3 + kern}
    s_add_u32 s96, s96, s3
    s_lshl_b32 s96, s96, 8
    s_add_u32 s96, s96, {STAMPS + kern*(1 << 20)}""")
    srd(a, 44, WS, "s96", 256)
    a(f"""v_mbcnt_lo_u32_b32 v{tmp}, -1, 0
    v_mbcnt_hi_u32_b32 v{tmp}, -1, v{tmp}
    v_lshlrev_b32 v{tmp}, 2, v{tmp}
    buffer_store_dword v{reg}, v{tmp}, s[44:47], 0 offen""")


def smf(D, B): return f"v_smfmac_f32_32x32x32_bf16 {vr(D,16)}, {vr(ID0,4)}, {vr(B,8)}, v{ID1}"
def tmf(D, rows, a2, b2):
    if OPT["smf"]: return [mfma(D, a2, b2, None), smf(D, rows)]
    return [mfma(D, rows, ID0, None), mfma(D, rows+4, ID1, D), mfma(D, a2, b2, D)]
def code_pf(a, label, size, lane, tmp, junk, sr0, lanes=16, wid=3):
    if not OPT.get("cpf", 2): return
    code_pf.n += 1
    n = code_pf.n
    a(f"""s_cmp_ge_u32 s2, {OPT.get("cpn", 16)}
    s_cbranch_scc1 L_pe{n}
    s_getpc_b64 s[{sr0}:{sr0+1}]
    L_pc{n}:
    s_sub_u32 s{sr0}, s{sr0}, L_pc{n}-{label}
    s_subb_u32 s{sr0+1}, s{sr0+1}, 0
    s_mul_i32 s{sr0+2}, s{wid}, {128*lanes}
    v_min_u32 v{tmp}, {lanes-1}, v{lane}
    v_lshl_add_u32 v{tmp}, v{tmp}, 7, s{sr0+2}
    v_min_u32 v{tmp}, {size}-4, v{tmp}
    v_mov_b32 v{tmp+1}, s{sr0+1}
    v_add_co_u32 v{tmp}, vcc, s{sr0}, v{tmp}
    v_addc_co_u32 v{tmp+1}, vcc, 0, v{tmp+1}, vcc
    global_load_dword v{junk}, v[{tmp}:{tmp+1}], off
    L_pe{n}:""")
code_pf.n = 0
def lane63(a): a("s_mov_b32 exec_lo, 0\ns_mov_b32 exec_hi, 0x80000000")
def full(a): a("s_mov_b64 exec, -1")
def mfma(D, A, B, C): return f"v_mfma_f32_32x32x16_bf16 {vr(D,16)}, {vr(A,4)}, {vr(B,4)}, " + ("0" if C is None else vr(C, 16))


def k1(a):
    ST = 126
    a("k1_kernel:")
    a(f"s_cmp_ge_u32 s2, {K1_GRID}\ns_cbranch_scc1 L1_exit2")
    if OPT.get("stamp"): a(f"v_mov_b32 v{ST}, 0")
    stamp(a, 0, ST)
    ldargs(a)
    a(f"""v_and_b32 v1, 63, v0
    v_lshrrev_b32 v2, 6, v0
    s_nop 0
    v_readfirstlane_b32 s3, v2""")
    if OPT.get("cpf", 2) >= 2: code_pf(a, "k1_kernel", "L2_last-k1_kernel", 1, 122, 125, 64, 24)
    a(f"s_cmp_gt_u32 s2, {NG+2}\ns_cbranch_scc1 L1_part" if OPT.get("gfirst", 1) else f"s_cmp_le_u32 s2, {NG+2}\ns_cbranch_scc1 L1_gemm")
    WOP = 56
    def gemm_role():
        WOP = 56
        a(f"""    s_cmp_eq_u32 s2, {NG+2}
        s_cbranch_scc1 L1_w2
        s_bfe_u32 s27, s2, 0x10003
        s_lshr_b32 s28, s2, 4
        s_lshl_b32 s28, s28, 3
        s_and_b32 s29, s2, 7
        s_add_u32 s28, s28, s29
        s_cmp_ge_u32 s2, {NG}
        s_cselect_b32 s27, s29, s27
        s_cselect_b32 s61, {128*512}, 0
        s_cbranch_scc1 L1_g1
        s_cmp_ge_u32 s28, 98
        s_cbranch_scc1 L1_exit2
        L1_g1:
        v_lshrrev_b32 v18, 4, v1
        v_and_b32 v19, 15, v1
        v_lshlrev_b32 v24, 2, v18
        v_xor_b32 v24, v24, v19
        v_lshlrev_b32 v24, 4, v24
        v_lshl_or_b32 v124, v18, 9, v24""")
        for ii in range(4):
            a(f"""v_add_u32 v20, {4*ii}, v18
            v_xor_b32 v20, v20, v19
            v_lshlrev_b32 v20, 4, v20
            v_lshl_or_b32 v{25+ii}, v18, 8, v20""")
        a(f"""v_mov_b32 v2, 0
        s_lshl_b32 s43, s3, 13
        s_lshl_b32 s30, s27, 8
        s_add_u32 s43, s43, s30
        s_add_u32 s43, s43, s61
        s_lshl_b32 s31, s3, 12
        s_lshl_b32 s29, s28, 15
        s_add_u32 s29, s29, s31
        s_add_u32 m0, s31, 32768
        s_and_b32 s40, s3, 1
        s_lshr_b32 s41, s3, 1
        v_and_b32 v7, 31, v1
        v_lshlrev_b32 v20, 1, v7
        s_lshl_b32 s42, s40, 7
        s_add_u32 s42, s42, s30
        s_waitcnt lgkmcnt(0)""")
        stamp(a, 5, ST)
        srd(a, 36, X, None, N*256)
        for ii in range(4):
            a(f"buffer_load_dwordx4 v{25+ii}, s[36:39], s29 offen lds")
            if ii < 3: a("s_add_u32 m0, m0, 1024\ns_add_u32 s29, s29, 1024")
        a("s_mov_b32 m0, s31")
        srd(a, 32, W1, None, 260*512)
        for ii in range(4):
            a(f"buffer_load_dwordx4 v124, s[32:35], s43 offen lds")
            a("s_add_u32 m0, m0, 1024\ns_add_u32 s43, s43, 2048")
        if OPT.get("cpf", 2) == 1: code_pf(a, "k1_kernel", "L1_exit2-k1_kernel", 1, 21, 22, 64)
        stamp(a, 6, ST)
        a(f"""v_bfe_u32 v18, v1, 2, 2
        v_lshrrev_b32 v6, 5, v1
        v_lshl_add_u32 v19, v6, 3, v18
        v_lshlrev_b32 v19, 8, v19
        v_bfe_u32 v20, v1, 4, 1
        v_lshlrev_b32 v20, 5, v20
        v_and_b32 v21, 3, v1
        v_lshl_add_u32 v20, v21, 3, v20
        v_add_u32 v19, v19, v20
        s_lshl_b32 s42, s40, 1
        v_xor_b32 v20, s42, v18
        v_lshl_add_u32 v120, v20, 6, v19
        v_xor_b32 v20, 1, v20
        v_lshl_add_u32 v121, v20, 6, v19
        s_lshl_b32 s42, s41, 5
        v_add_u32 v19, s42, v7
        v_lshlrev_b32 v19, 8, v19
        v_and_b32 v20, 15, v1
        v_xor_b32 v20, v20, v6
        v_lshl_add_u32 v104, v20, 4, v19
        v_add_u32 v104, 32768, v104""")
        for s in range(1, 8): a(f"v_xor_b32 v{104+s}, {32*s}, v104")
        srd(a, 44, WS, None, N*512)
        a(f"""s_lshl_b32 s42, s28, 2
        s_add_u32 s42, s42, s41
        s_lshl_b32 s42, s42, 14
        s_lshl_b32 s48, s27, 1
        s_add_u32 s48, s48, s40
        s_lshl_b32 s48, s48, 7
        s_add_u32 s48, s42, s48
        s_lshl_b32 s30, s3, 11
        s_add_u32 s30, s30, 65536
        v_lshlrev_b32 v4, 9, v6
        v_lshl_add_u32 v4, v7, 2, v4
        v_add_u32 v4, s30, v4
        v_lshl_add_u32 v6, v1, 4, s30
        v_lshrrev_b32 v7, 3, v1
        v_lshlrev_b32 v7, 9, v7
        v_and_b32 v18, 7, v1
        v_lshl_add_u32 v7, v18, 4, v7
        s_mov_b32 s52, {NLOG2E}
        s_mov_b32 s60, {PLOG2E}
        v_mov_b32 v5, 0
        v_mov_b32 v125, 0x80008000
        s_setprio {OPT.get("gp", 0)}
        s_waitcnt vmcnt(0)
        s_barrier""")
        stamp(a, 1, ST)
        def wr(t, s):
            for hf in range(2):
                a(f"ds_read_b64_tr_b16 {vr(WOP+32*t+4*s+2*hf,2)}, v{120+t} offset:{4096*s+1024*hf}")
        GD0, GD1, CV, RB = 8, WOP, 72, 88
        for task in range(1):
            sc = (lambda r, b: f"v_mul_f32 v{r}, s52, v{r}") if task == 0 else (lambda r, b: f"v_fma_f32 v{r}, v{r}, s60, v{b}")
            per = 3 if task == 0 else 2
            ahead = 5 if task == 0 else 7
            def rd(s):
                if s < 8:
                    if task == 0: a(f"ds_read_b128 {vr(24+4*s,4)}, v{104+s}")
                    wr(0, s)
                else: wr(1, s-8)
            a(f"s_cmp_ge_u32 s2, {NG}\ns_cbranch_scc1 L1_w1b")
            for s in range(ahead): rd(s)
            if task == 1:
                a("""v_lshlrev_b32 v122, 16, v122
                v_lshlrev_b32 v123, 16, v123
                v_mul_f32 v122, s60, v122
                v_mul_f32 v123, s60, v123""")
            cnt = lambda lo, hi: sum(per if q < 8 else 2 for q in range(lo, hi))
            for s in range(8):
                a(f"s_waitcnt lgkmcnt({cnt(s+1, s+ahead)})")
                a(mfma(GD0, 24+4*s, WOP+4*s, None if s == 0 else GD0))
                rd(s+ahead)
            for s in range(8+ahead, 16): rd(s)
            a("s_waitcnt lgkmcnt(0)")
            if task == 0:
                stamp(a, 3, ST)
            for s in range(8):
                a(mfma(GD1, 24+4*s, WOP+32+4*s, None if s == 0 else GD1))
                if s >= 2:
                    for j in range((s-2)*3, min(16, (s-1)*3)): a(sc(GD0+j, 122))
            for hf in range(2):
                for j in range(8*hf, 8*hf+8):
                    a(sc(GD1+j, 123))
                    a(f"""v_cvt_pk_bf16_f32 v{CV+j}, v{GD0+j}, v{GD1+j}
                    ds_write_b32 v4, v{CV+j} offset:{128*(8*(j//4 % 2)+j%4)}""")
                    if j == 10:
                        a("s_waitcnt lgkmcnt(3)")
                        for i in range(2): a(f"buffer_store_dwordx4 {vr(RB+4*i,4)}, v7, s[44:47], s48 offen sc1\ns_add_u32 s48, s48, 4096")
                for i in range(2): a(f"ds_read_b128 {vr(RB+8*hf+4*i,4)}, v6 offset:{1024*i}")
                if hf == 0: stamp(a, 4, ST)
            for i in range(2, 4):
                a(f"s_waitcnt lgkmcnt({(11, 10, 1, 0)[i]})\nbuffer_store_dwordx4 {vr(RB+4*i,4)}, v7, s[44:47], s48 offen sc1\ns_add_u32 s48, s48, 4096")
        stamp(a, 2, ST)
        for j in range(16): a(f"v_and_b32 v{CV+j}, 0x7fff7fff, v{CV+j}\nv_pk_max_u16 v5, v5, v{CV+j}")
        a("""v_lshlrev_b32 v6, 16, v5
        v_and_b32 v5, 0xffff0000, v5
        v_max_u32 v5, v5, v6""")
        dpp_red(a, "v_max_u32", 5)
        a("v_mov_b32 v3, s30")
        lane63(a); a("ds_write_b32 v3, v5"); full(a)
        srd(a, 44, WS, MAXA, 196*4)
        a(f"""s_lshl_b32 s26, s28, 1
        s_add_u32 s26, s26, s27
        s_lshl_b32 s26, s26, 2
        v_and_b32 v3, 7, v1
        v_lshlrev_b32 v3, 11, v3
        v_add_u32 v3, 65536, v3
        s_waitcnt lgkmcnt(0)
        s_barrier
        s_cmp_lg_u32 s3, 0
        s_cbranch_scc1 L1_exit
        ds_read_b32 v6, v3
        s_waitcnt lgkmcnt(0)""")
        for m in SHR[:3]: a(f"v_max_u32_dpp v6, v6, v6 {m}")
        a(f"""s_mov_b64 exec, 0x80
        buffer_store_dword v6, v2, s[44:47], s26 offen sc1
        s_branch L1_exit""")
        a(f"""L1_w1b:
        s_lshl_b32 s43, s27, 1
        s_add_u32 s43, s43, s40
        s_lshl_b32 s43, s43, 14
        v_lshlrev_b32 v2, 4, v1
        s_cmp_lg_u32 s41, 0
        s_cbranch_scc1 L1_exit""")
        for t in range(2):
            for s in range(8): wr(t, s)
        srd(a, 44, WS, W1BOP, 65536)
        a("s_waitcnt lgkmcnt(0)")
        for q in range(16):
            a(f"buffer_store_dwordx4 {vr(WOP+4*q,4)}, v2, s[44:47], s43 offen sc1\ns_add_u32 s43, s43, 1024")
        a("s_branch L1_exit")
    def part_role():
        a(f"L1_part:\ns_sub_u32 s56, s2, {NG+3}")
        G = EPT//4
        HIST, START, MAXW = 40960, 41984, 43008
        DV, SV, EV, AV, RV = 4, 12, 24, 40, 48
        a(f"""v_lshlrev_b32 v2, 2, v0
        v_mov_b32 v3, 0
        ds_write_b32 v2, v3 offset:{HIST}
        ds_write_b32 v2, v3 offset:{MAXW}
        v_mov_b32 v60, 0
        v_mov_b32 v61, 1
        s_mul_i32 s26, s56, {CE*4}
        s_add_u32 s27, s26, 6400
        s_mov_b32 s58, s26
        s_mov_b32 s59, s27
        s_lshl_b32 s52, s26, 1
        s_lshl_b32 s53, s27, 1
        v_lshlrev_b32 v3, 4, v0
        v_lshlrev_b32 v20, 5, v0
        v_cmp_gt_u32 vcc, 400, v0
        s_waitcnt lgkmcnt(0)""")
        stamp(a, 5, ST)
        srd(a, 28, DST, None, E*4); srd(a, 32, SRC, None, E*4); srd(a, 36, EA_, None, E*8)
        a("""s_and_saveexec_b64 s[54:55], vcc
        s_mov_b64 s[54:55], exec
        s_cbranch_execz L1_p1""")
        for g in range(G): a(f"buffer_load_dwordx4 {vr(DV+4*g,4)}, v3, s[28:31], s{26+g} offen")
        def late_loads():
            for g in range(G): a(f"buffer_load_dwordx4 {vr(SV+4*g,4)}, v3, s[32:35], s{58+g} offen")
            for g in range(G):
                a(f"buffer_load_dwordx4 {vr(EV+8*g,4)}, v20, s[36:39], s{52+g} offen")
                a(f"buffer_load_dwordx4 {vr(EV+8*g+4,4)}, v20, s[36:39], s{52+g} offen offset:16")
        if not OPT.get("late", 1): late_loads()
        a(f"""L1_p1:
        s_mov_b64 exec, -1
        s_mul_i32 s26, s56, {CE*12}
        s_add_u32 s26, s26, {REC}""")
        srd(a, 40, WS, "s26", CE*12); srd(a, 44, WS, OFF, CH*1024); srd(a, 48, WS, MAXE, CH*4)
        a(f"""s_setprio {OPT.get("pp", 2)}
        s_barrier
        s_mov_b64 exec, s[54:55]
        s_cbranch_execz L1_p2
        s_waitcnt vmcnt({0 if OPT.get("late", 1) else 3*G})""")
        if OPT.get("late", 1): late_loads()
        stamp(a, 1, ST)
        for k in range(EPT):
            a(f"""v_mul_u32_u24 v21, 10700, v{DV+k}
            v_lshrrev_b32 v21, 19, v21
            v_lshlrev_b32 v{AV+k}, 2, v21
            ds_add_rtn_u32 v{RV+k}, v{AV+k}, v61 offset:{HIST}
            v_mul_u32_u24 v21, {NPB}, v21
            v_sub_u32 v{DV+k}, v{DV+k}, v21""")
        a(f"""L1_p2:
        s_mov_b64 exec, -1
        v_lshlrev_b32 v2, 4, v1
        s_waitcnt lgkmcnt(0)
        s_barrier""")
        stamp(a, 3, ST)
        a(f"""ds_read_b128 v[64:67], v2 offset:{HIST}
        s_waitcnt lgkmcnt(0)
        v_add_u32 v68, v64, v65
        v_add_u32 v69, v68, v66
        v_add_u32 v70, v69, v67
        v_mov_b32 v71, v70""")
        dpp_red(a, "v_add_u32", 71)
        a(f"""v_sub_u32 v56, v71, v70
        v_add_u32 v57, v56, v64
        v_add_u32 v58, v56, v68
        v_add_u32 v59, v56, v69
        ds_write_b128 v2, v[56:59] offset:{START}
        s_mov_b64 exec, s[54:55]
        s_cbranch_execz L1_p4""")
        for k in range(EPT): a(f"ds_read_b32 v{AV+k}, v{AV+k} offset:{START}")
        a(f"s_waitcnt vmcnt({2*G})")
        for k in range(EPT):
            a(f"""v_add_u32 v21, {16384-HALF}, v{SV+k}
            v_lshl_or_b32 v{SV+k}, v{DV+k}, 18, v{SV+k}
            v_lshrrev_b32 v21, 14, v21
            v_lshl_or_b32 v{SV+k}, v21, 24, v{SV+k}""")
        a("s_waitcnt vmcnt(0)")
        for k in range(EPT):
            a(f"""s_waitcnt lgkmcnt({EPT-1+k})
            v_add_u32 v{AV+k}, v{AV+k}, v{RV+k}
            v_mul_u32_u24 v{AV+k}, 12, v{AV+k}
            ds_write2_b32 v{AV+k}, v{EV+2*k}, v{EV+2*k+1} offset0:0 offset1:1
            ds_write_b32 v{AV+k}, v{SV+k} offset:8""")
        a("L1_p4:")
        full(a)
        stamp(a, 2, ST)
        a(f"""s_cmp_lg_u32 s3, 7
        s_cbranch_scc1 L1_p3
        v_lshl_or_b32 v64, v64, 16, v56
        v_lshl_or_b32 v65, v65, 16, v57
        v_lshl_or_b32 v66, v66, 16, v58
        v_lshl_or_b32 v67, v67, 16, v59
        v_mul_u32_u24 v2, {CH*16}, v1
        s_lshl_b32 s26, s56, 4
        buffer_store_dwordx4 v[64:67], v2, s[44:47], s26 offen sc1
        L1_p3:
        s_waitcnt lgkmcnt(0)
        s_barrier""")
        stamp(a, 4, ST)
        NO = -(-CE*12//8192)
        for i in range(NO): a(f"ds_read_b128 {vr(72+4*i,4)}, v3 offset:{8192*i}")
        for i in range(NO):
            a(f"s_mov_b32 s26, {8192*i}\ns_waitcnt lgkmcnt({NO-1-i})\nbuffer_store_dwordx4 {vr(72+4*i,4)}, v3, s[40:43], s26 offen sc1")
        a("s_mov_b64 exec, s[54:55]")
        for k in range(EPT): a(f"v_dot2_f32_bf16 v{DV+k}, v{EV+2*k}, v{EV+2*k}, 0")
        for k in range(EPT): a(f"v_dot2_f32_bf16 v{DV+k}, v{EV+2*k+1}, v{EV+2*k+1}, v{DV+k}")
        a("s_nop 2")
        for k in range(0, EPT, 2): a(f"v_max3_u32 v60, v60, v{DV+k}, v{DV+k+1}")
        full(a)
        dpp_red(a, "v_max_u32", 60)
        a("v_mov_b32 v62, 0")
        lane63(a); a(f"ds_max_u32 v62, v60 offset:{MAXW}"); full(a)
        a(f"s_waitcnt lgkmcnt(0)\ns_barrier\nds_read_b32 v30, v62 offset:{MAXW}")
        a(f"""s_lshl_b32 s26, s56, 2
        v_cmp_eq_u32 vcc, 0, v0
        s_and_saveexec_b64 s[54:55], vcc
        s_cbranch_execz L1_exit
        s_waitcnt lgkmcnt(0)
        buffer_store_dword v30, v62, s[48:51], s26 offen sc1
        s_branch L1_exit""")
    if OPT.get("gfirst", 1):
        gemm_role(); part_role()
    else:
        part_role(); a("L1_gemm:"); gemm_role()
    a(f"""L1_w2:
    v_lshlrev_b32 v2, 4, v1
    s_lshl_b32 s29, s3, 13
    s_mov_b32 m0, s29
    v_mov_b32 v20, 0
    v_mov_b32 v21, 65536
    ds_write_b32 v21, v20
    v_and_b32 v11, 1, v1
    v_lshlrev_b32 v11, 5, v11
    v_bfe_u32 v12, v1, 1, 4
    v_add_u32 v11, v11, v12
    v_lshlrev_b32 v11, 1, v11
    v_lshrrev_b32 v12, 5, v1
    v_lshl_add_u32 v11, v12, 10, v11
    s_lshr_b32 s40, s3, 1
    s_lshl_b32 s40, s40, 7
    s_and_b32 s41, s3, 1
    s_lshl_b32 s41, s41, 5
    s_add_u32 s40, s40, s41
    s_add_u32 s40, s40, {256*512}
    s_waitcnt lgkmcnt(0)""")
    srd(a, 32, W2, None, 65536); srd(a, 36, W1, None, 260*512)
    srd(a, 60, B1, None, 512)
    a("""v_and_b32 v17, 31, v1
    v_lshlrev_b32 v17, 1, v17
    s_lshl_b32 s41, s3, 7
    buffer_load_ushort v18, v17, s[60:63], s41 offen
    buffer_load_ushort v19, v17, s[60:63], s41 offen offset:64
    buffer_load_ushort v8, v11, s[36:39], s40 offen
    buffer_load_ushort v9, v11, s[36:39], s40 offen offset:512""")
    for ii in range(8):
        a("buffer_load_dwordx4 v2, s[32:35], s29 offen lds")
        if ii < 7: a("s_add_u32 m0, m0, 1024\ns_add_u32 s29, s29, 1024")
    a(f"""s_and_b32 s40, s3, 3
    s_lshr_b32 s41, s3, 2
    v_bfe_u32 v5, v1, 2, 1
    v_lshlrev_b32 v5, 5, v5
    v_bfe_u32 v6, v1, 3, 1
    v_add_u32 v5, v5, v6
    v_lshrrev_b32 v6, 5, v1
    v_lshl_add_u32 v5, v6, 2, v5
    v_lshlrev_b32 v5, 8, v5
    v_bfe_u32 v6, v1, 4, 1
    v_lshl_add_u32 v5, v6, 5, v5
    v_and_b32 v6, 3, v1
    v_lshl_add_u32 v5, v6, 3, v5
    s_lshl_b32 s42, s40, 6
    s_lshl_b32 s43, s41, 15
    s_add_u32 s42, s42, s43
    v_add_u32 v5, s42, v5
    s_lshl_b32 s43, s40, 14
    s_lshl_b32 s42, s41, 13
    s_add_u32 s43, s43, s42
    s_mov_b32 s52, {NLOG2E}
    s_lshl_b32 s42, s3, 9
    v_lshlrev_b32 v3, 3, v1""")
    srd(a, 44, WS, W2OP, 65536); srd(a, 48, WS, STAT, 4096); srd(a, 56, WS, MAXW_G, 4)
    a("""s_waitcnt vmcnt(8)
    v_lshlrev_b32 v8, 16, v8
    v_lshlrev_b32 v9, 16, v9
    v_mul_f32 v8, s52, v8
    v_mul_f32 v9, s52, v9
    v_cvt_pk_bf16_f32 v15, v8, v9
    v_mul_f32 v16, v8, v8
    v_fmac_f32 v16, v9, v9
    v_lshlrev_b32 v12, 16, v15
    v_and_b32 v13, 0xffff0000, v15
    v_sub_f32 v8, v8, v12
    v_sub_f32 v9, v9, v13
    v_cvt_pk_bf16_f32 v14, v8, v9
    buffer_store_dwordx2 v[14:15], v3, s[48:51], s42 offen sc1
    v_lshlrev_b32 v18, 16, v18
    v_lshlrev_b32 v19, 16, v19
    v_mul_f32 v18, s52, v18
    v_mul_f32 v19, s52, v19
    v_lshlrev_b32 v17, 2, v17
    s_lshl_b32 s41, s3, 8""")
    srd(a, 60, WS, BIAS, 1024); srd(a, 64, WS, N*512, 1024)
    a("""buffer_store_dwordx2 v[18:19], v17, s[60:63], s41 offen sc1
    v_mov_b32 v22, 0x41c041c0
    v_mov_b32 v23, 0x7f7f7f7f
    v_cmp_gt_u32 vcc, 128, v0
    v_lshlrev_b32 v24, 2, v0
    v_cndmask_b32 v22, v23, v22, vcc
    buffer_store_dword v22, v24, s[64:67], 0 offen sc1""")
    a("v_mov_b32 v12, v16\nv_permlane32_swap_b32 v12, v16\nv_add_f32 v16, v12, v16")
    dpp_red(a, "v_max_u32", 16)
    a("""    s_waitcnt vmcnt(0)
    s_barrier""")
    lane63(a); a("ds_max_u32 v21, v16"); full(a)
    for s in range(8):
        for hf in range(2):
            row = 64*(s//4) + 16*((s//2) % 2) + 8*(s % 2) + 2*hf
            a(f"ds_read_b64_tr_b16 {vr(WOP+4*s+2*hf,2)}, v5 offset:{256*row}")
    a("s_waitcnt lgkmcnt(0)\ns_barrier\nds_read_b32 v16, v21")
    for s in range(8):
        a(f"buffer_store_dwordx4 {vr(WOP+4*s,4)}, v2, s[44:47], s43 offen sc1\ns_add_u32 s43, s43, 1024")
    srd(a, 48, WS, MAXE + CH*4, 16)
    a("""v_lshlrev_b32 v17, 2, v1
    buffer_store_dword v20, v17, s[48:51], 0 offen sc1
    s_waitcnt lgkmcnt(0)
    buffer_store_dword v16, v3, s[56:59], 0 offen sc1
    L1_exit:""")
    stamp_dump(a, ST, 127, 0)
    a("L1_exit2:\ns_endpgm")


CAPT = 60
L_IDX, L_QA, L_TBL, L_CNT, L_MISC, L_DEG, L_EA, L_P = 256, 8448, 10496, 12544, 14592, 14656, 15104, 30464
L_BT = L_P + 31*1024
L_STG = 91136
BTS = 576
L_NULL = L_BT + NPB*BTS
K2_LDS = L_STG + 65536
assert L_BT + 50*BTS <= L_STG and L_BT % 256 == 0
D0, D1, EE, TT, HQ0, HQ1, S0, S1 = 0, 16, 32, 48, 56, 60, 64, 80
ALO, AHI, ID0, ID1, A2, B2R, PP, IP = 96, (104, 112), 120, 124, (128, 132), (136, 140), 144, 148
QV, QST, RA, IB, EB, QB, PB = (156, 157), 158, 159, 163, 164, 165, 166
LANE, ESIG, QOFF, L16, SWA = 125, 126, 127, 161, 162
RECR, OFR, VONE, MXC = 0, 116, 62, 115
MASK = 56
S_BASE, S_LIM, S_IMASK, S_SLOW, S_N, S_T0, S_FIRST, S_BK, S_MAXC, S_SAFE, S_CUT, S_STG, S_BETA, S_NEG = range(80, 94)
S_CG, S_GRP, S_R2, S_N0, S_NO = 26, 27, 1, 0, 87


def valu_half(D, hq, mode, fill):
    L = [f"v_exp_f32 v{EE+j}, v{D+j}" for j in range(16)]
    p2 = lambda x: vr(x, 2)
    if mode == "o":
        L.insert(15, None)
        L[15] = f"v_pk_add_f32 {p2(TT)}, {p2(EE)}, 1.0 op_sel_hi:[1,0]"
        L[15], L[16] = L[16], L[15]
        for s in range(1, 8):
            n = D if s == 1 else TT+2
            L.append(f"v_pk_fma_f32 {p2(TT+2)}, {p2(n)}, {p2(EE+2*s)}, {p2(n)}")
            L.append(f"v_pk_fma_f32 {p2(TT+2)}, {p2(D+2*s)}, {p2(TT)}, {p2(TT+2)}")
            L.append(f"v_pk_fma_f32 {p2(TT)}, {p2(TT)}, {p2(EE+2*s)}, {p2(TT)}")
        u, nn, dd = L[-3:]
        L[-3:] = [f"v_pk_fma_f32 {p2(TT+4)}, {p2(TT)}, {p2(EE+14)}, {p2(TT)}", f"v_rcp_f32 v{TT+4}, v{TT+4}", f"v_rcp_f32 v{TT+5}, v{TT+5}", u, nn]
        if OPT.get("mix"):
            k = OPT["mix"]
            ex, pk = L[16-k:16], L[16:]
            out = []
            per = 3
            while ex or pk:
                out += pk[:per]; pk = pk[per:]
                if ex: out.append(ex.pop(0))
            L = L[:16-k] + out
        L.append(f"v_pk_mul_f32 {p2(TT+2)}, {p2(TT+2)}, {p2(TT+4)}")
        L.append(f"v_cvt_pk_bf16_f32 v{hq}, v{TT+2}, v{TT+3}")
        return L + fill
    if mode == "q":
        for q in range(2): L.append(f"v_pk_add_f32 {p2(TT+4*q)}, {p2(EE+8*q)}, 1.0 op_sel_hi:[1,0]")
        for s in range(1, 4):
            for q in range(2):
                n = D+8*q if s == 1 else TT+4*q+2
                L.append(f"v_pk_fma_f32 {p2(TT+4*q+2)}, {p2(n)}, {p2(EE+8*q+2*s)}, {p2(n)}")
            for q in range(2):
                L.append(f"v_pk_fma_f32 {p2(TT+4*q+2)}, {p2(D+8*q+2*s)}, {p2(TT+4*q)}, {p2(TT+4*q+2)}")
            for q in range(2):
                L.append(f"v_pk_fma_f32 {p2(TT+4*q)}, {p2(TT+4*q)}, {p2(EE+8*q+2*s)}, {p2(TT+4*q)}")
        for q in range(2):
            for p in range(2): L.append(f"v_rcp_f32 v{TT+4*q+p}, v{TT+4*q+p}")
        for q in range(2): L.append(f"v_pk_mul_f32 {p2(TT+4*q+2)}, {p2(TT+4*q+2)}, {p2(TT+4*q)}")
    else:
        for j in range(0, 16, 2): L.append(f"v_pk_add_f32 {p2(EE+j)}, {p2(EE+j)}, 1.0 op_sel_hi:[1,0]")
        for j in range(16): L.append(f"v_rcp_f32 v{EE+j}, v{EE+j}")
        for q in range(2): L.append(f"v_pk_mul_f32 {p2(TT+4*q+2)}, {p2(D+8*q)}, {p2(EE+8*q)}")
        for s in range(1, 4):
            for q in range(2):
                L.append(f"v_pk_fma_f32 {p2(TT+4*q+2)}, {p2(D+8*q+2*s)}, {p2(EE+8*q+2*s)}, {p2(TT+4*q+2)}")
    for q in range(2): L.append(f"v_cvt_pk_bf16_f32 v{hq+q}, v{TT+4*q+2}, v{TT+4*q+3}")
    return L + fill


def weave(V, M, pos):
    out = []
    for i, x in enumerate(V):
        out += [m for m, p in zip(M, pos) if p == i]
        out.append(x)
    return out


def incs(k): return [f"v_add_u32 v{IB}, {128*k}, v{IB}", f"v_add_u32 v{EB}, {256*k}, v{EB}", f"v_add_u32 v{QB}, {32*k}, v{QB}"]


def block(a, t, mode):
    par = t & 1
    last = 3 if mode == "o" else 1
    M1 = tmf(D1, AHI[par], A2[par], B2R[1])
    if t == 0: M1.append(mfma(S1, HQ1, PP, S1))
    M2 = tmf(D0, ALO, A2[par ^ 1], B2R[0])
    if t == last: M2.append(mfma(S0, HQ0, PP, S0))
    pos = [1, 4, 7, 10] if not OPT.get("mix") else [0, 3, 6]
    extra = (["s_waitcnt lgkmcnt(0)"] if OPT.get('gw', 1) else []) + [f"v_add_u32 v{QV[par]}, v{QV[par]}, v{QST}"]
    if t == 0: extra.append(f"v_add_u32 v{PB}, 1024, v{PB}")
    if mode == "o" and t == 2: extra += incs(4)
    if mode != "o" and t == 0: extra += incs(2)
    k = t if mode == "o" else 2*t
    L = weave(valu_half(D0, HQ0+k, mode, extra), M1, pos) + weave(valu_half(D1, HQ1+k, mode, []), M2, pos)
    if OPT["prio"]:
        L.insert(OPT["prio_at"], "s_setprio 1"); L.append("s_setprio 0")
    a("\n".join(L))


def dma(a, par):
    a(f"s_add_u32 m0, s{S_STG}, {4096*par}")
    for u in range(4):
        a(f"buffer_load_dwordx4 {vr(IP+2*u,2)}, s[36:39], 0 idxen offen lds")
        if u < 3: a("s_add_u32 m0, m0, 1024")


def rd_idx(a, t):
    for u in range(4): a(f"ds_read_b32 v{IP+2*u}, v{IB} offset:{128*t+32*u}")


def rd_rows(a, par):
    if OPT["smf"]:
        for c in range(2):
            for gi in range(4):
                a(f"ds_read_b64_tr_b16 {vr((ALO, AHI[par])[c]+2*gi,2)}, v{RA+c} offset:{4096*par+512*gi}")
        return
    for s in range(4):
        d = ALO+4*s if s < 2 else AHI[par]+4*(s-2)
        a(f"ds_read_b128 {vr(d,4)}, v{RA+s} offset:{4096*par}")


def group(a, par, sh=0, rdp=False, tail=True):
    a("s_waitcnt vmcnt(4)")
    rd_rows(a, par)
    a(f"ds_read_b64_tr_b16 {vr(B2R[1],2)}, v{QV[par^1]} offset:64")
    a(f"ds_read_b64_tr_b16 {vr(B2R[0],2)}, v{QV[par]}")
    a(f"ds_read2st64_b32 {vr(A2[par]+2,2)}, v{EB} offset0:{2+par+sh} offset1:{2+par+sh}")
    if rdp: a(f"ds_read_b128 {vr(PP,4)}, v{PB}")
    a(f"s_cmp_gt_u32 s{S_N}, 3\ns_cselect_b32 s38, {0 if OPT.get('nodma') else AROWS}, 0")
    a(f"s_waitcnt lgkmcnt({4 if rdp else 3})")
    dma(a, par)
    rd_idx(a, 5+par+sh)
    a(f"ds_read_b32 v{QV[par^1]}, v{QB} offset:{32*(3+par+sh)}")
    a(f"s_waitcnt lgkmcnt({5 if OPT.get('gw', 1) else 0})")
group.n = 0


def dec(a, tgt): a(f"s_sub_u32 s{S_N}, s{S_N}, 1\ns_cmp_eq_u32 s{S_N}, 0\ns_cbranch_scc1 {tgt}")


def main_loops(a):
    a("L2_loopO:")
    block(a, 0, "o"); a(f"s_sub_u32 s{S_N}, s{S_N}, 1"); group(a, 0, 2, True)
    block(a, 1, "o"); dec(a, "L2_end_odd"); group(a, 1, 2)
    a(f"s_cmp_eq_u32 s{S_NO}, 2\ns_cbranch_scc1 L2_half")
    block(a, 2, "o"); a(f"s_sub_u32 s{S_N}, s{S_N}, 1"); group(a, 0)
    block(a, 3, "o"); dec(a, "L2_end_even"); group(a, 1)
    a(f"s_sub_u32 s{S_NO}, s{S_NO}, 4\ns_cmp_lg_u32 s{S_NO}, 0\ns_cbranch_scc1 L2_loopO\ns_branch L2_loopF\nL2_half:")
    a(mfma(S0, HQ0, PP, S0)); a("\n".join(incs(2)))
    for tag, mode in (("F", "q"), ("S", "s")):
        if tag == "S": keep = a.L; a.L = []
        a(f"L2_loop{tag}:")
        block(a, 0, mode); dec(a, "L2_end_odd"); group(a, 0, 0, True)
        block(a, 1, mode); dec(a, "L2_end_even"); group(a, 1)
        a(f"s_branch L2_loop{tag}")
    a.cold += a.L; a.L = keep


def cold(a, name, fn):
    keep = a.L; a.L = []
    a(f"{name}:"); fn(); a(f"s_branch {name}_r")
    a.cold += a.L; a.L = keep
    a(f"{name}_r:")


def k2(a):
    a.cold = []
    ST = 167
    L = LANE
    NZ = (L_BT - L_CNT)//16
    a("k2_kernel:")
    a(f"s_cmp_ge_u32 s2, {NB}\ns_cbranch_scc1 L2_exit2")
    if OPT.get("stamp"): a(f"v_mov_b32 v{ST}, 0")
    stamp(a, 0, ST)
    ldargs(a)
    a(f"""v_and_b32 v{L}, 63, v0
    v_lshrrev_b32 v2, 6, v0
    s_and_b32 s{S_BK}, s2, 7
    v_readfirstlane_b32 s3, v2
    s_lshl_b32 s{S_BK}, s{S_BK}, 5
    s_lshr_b32 s28, s2, 3
    s_add_u32 s{S_BK}, s{S_BK}, s28
    s_mul_i32 s{S_NEG}, s{S_BK}, {NPB}
    s_mov_b32 s{S_BASE}, 0
    s_mov_b32 s{S_LIM}, {3*LPS}
    s_mov_b32 s{S_IMASK}, 15
    s_mov_b32 s{S_SLOW}, 0
    s_mov_b32 s{S_FIRST}, 1
    s_mov_b32 s{S_BETA}, 0
    s_and_b32 s{S_CG}, s3, 3
    s_lshr_b32 s{S_GRP}, s3, 2
    v_lshlrev_b32 v{L16}, 4, v{L}
    s_cmp_eq_u32 s{S_GRP}, 2
    s_cbranch_scc1 L2_H
    s_lshr_b32 s96, s{S_BK}, 2
    s_mul_i32 s96, s96, {CH*16}
    s_and_b32 s97, s{S_BK}, 3
    s_lshl_b32 s97, s97, 2
    s_add_u32 s96, s96, {OFF}
    s_lshl_b32 s{S_STG}, s3, 13
    s_add_u32 s{S_STG}, s{S_STG}, {L_STG}""")
    for j in range(8): a(f"v_mov_b32 v{IP+j}, {-1 if j % 2 == 0 else 0}")
    a(f"""s_lshl_b32 s98, s3, {6-LSH+4}
    s_add_u32 s98, s98, s97
    s_waitcnt lgkmcnt(0)
    s_mov_b32 s6, s98""")
    stamp(a, 11, ST)
    srd(a, 8, WS, "s96", CH*16)
    a(f"""L2_batch:
    v_lshrrev_b32 v113, {LSH}, v{L}
    v_lshl_add_u32 v9, v113, 4, s6""")
    for i in range(4): a(f"buffer_load_dword v{OFR+i}, v9, s[8:11], 0 offen offset:{(8192 >> LSH)*i}")
    srd(a, 32, WS, REC, CH*CE*12); srd(a, 36, WS, None, AROWS, stride=512)
    a(f"""s_and_b32 s96, s{S_FIRST}, s{S_GRP}
    s_cbranch_scc1 L2_stat
    L2_ld:
    v_and_b32 v112, {LPS-1}, v{L}
    v_add_u32 v112, s{S_BASE}, v112
    s_lshl_b32 s96, s3, {6-LSH}
    v_add_u32 v113, s96, v113
    s_add_u32 s96, s{S_BASE}, s{S_LIM}
    v_mul_u32_u24 v113, {CE*12}, v113
    s_waitcnt vmcnt(0)""")
    stamp(a, 1, ST)
    for i in range(4):
        a(f"""v_lshrrev_b32 v{104+i}, 16, v{OFR+i}
        s_bitcmp1_b32 s{S_IMASK}, {i}
        s_cselect_b32 s98, s96, 0
        v_min_u32 v{104+i}, s98, v{104+i}
        v_and_b32 v114, 0xffff, v{OFR+i}
        v_add_u32 v114, v114, v112
        v_mad_u32_u24 v{108+i}, v114, 12, v113""")
        if i < 3: a(f"v_add_u32 v113, {(512 >> LSH)*CE*12}, v113")
    def rec_loads(rnd):
        for i in range(4):
            k = 4*rnd + i
            a(f"s_mov_b64 exec, {sr(MASK+2*k,2)}\ns_cbranch_execz L2_r{k}")
            a(f"""buffer_load_dwordx3 {vr(RECR+4*k,3)}, v{108+i}, s[32:35], 0 offen offset:{12*LPS*rnd}
            L2_r{k}:""")
        full(a)
    for rnd in range(3):
        if rnd: a(f"v_add_u32 v112, {LPS}, v112")
        for i in range(4): a(f"v_cmp_lt_u32 {sr(MASK+2*(4*rnd+i),2)}, v112, v{104+i}")
        if rnd < 2: rec_loads(rnd)
    a(f"""s_or_b64 s[96:97], {sr(MASK+16,2)}, {sr(MASK+18,2)}
    s_or_b64 s[98:99], {sr(MASK+20,2)}, {sr(MASK+22,2)}
    s_or_b64 s[96:97], s[96:97], s[98:99]
    s_cselect_b32 s{S_R2}, 1, 0
    s_cbranch_scc1 L2_x0""")
    cold(a, "L2_x0", lambda: rec_loads(2))
    a(f"""s_cmp_eq_u32 s{S_FIRST}, 0
    s_cbranch_scc1 L2_rank0
    v_lshrrev_b32 v104, 16, v{OFR}
    v_lshrrev_b32 v105, 16, v{OFR+1}
    v_lshrrev_b32 v106, 16, v{OFR+2}
    v_lshrrev_b32 v107, 16, v{OFR+3}
    v_max3_u32 v104, v104, v105, v106
    v_max_u32 v{MXC}, v104, v107
    s_lshl_b32 s96, s{S_CG}, 10
    v_lshlrev_b32 v114, 3, v{L}""")
    srd(a, 44, WS, STAT, 4096)
    a(f"""buffer_load_dwordx2 {vr(B2R[0]+2,2)}, v114, s[44:47], s96 offen
    buffer_load_dwordx2 {vr(B2R[1]+2,2)}, v114, s[44:47], s96 offen offset:512
    s_cmp_lg_u32 s{S_GRP}, 0
    s_cbranch_scc1 L2_wrec
    L2_stat:""")
    n_, h_, one, t0, t1, t2, t3, t4, t5 = 96, 97, 98, 99, 100, 101, 102, 103, 104
    for j in range(32): a(f"v_mov_b32 v{S0+j}, 0")
    a(f"""v_and_b32 v{n_}, 31, v{L}
    v_lshrrev_b32 v{h_}, 5, v{L}
    v_bfe_u32 v{t1}, v{n_}, 1, 3
    v_lshlrev_b32 v{t1}, 4, v{t1}
    v_lshl_add_u32 v{t1}, v{n_}, 7, v{t1}
    v_lshl_add_u32 v{t1}, v{h_}, 3, v{t1}
    v_add_u32 v{SWA}, s{S_STG}, v{t1}""")
    a(f"""v_bfe_u32 v{t1}, v{n_}, 2, 1
    v_lshrrev_b32 v{t2}, 4, v{n_}
    v_and_b32 v{t3}, 1, v{n_}
    v_xor_b32 v{t4}, v{t1}, v{h_}
    v_lshl_or_b32 v{t4}, v{t4}, 1, v{t3}
    v_cmp_eq_u32 s[94:95], 0, v{t4}
    v_cmp_eq_u32 s[96:97], 1, v{t4}
    v_lshlrev_b32 v{t4}, 4, v{t2}
    v_mov_b32 v{one}, 0x3f80
    v_lshlrev_b32 v{one}, v{t4}, v{one}
    v_cndmask_b32 v{A2[0]}, 0, v{one}, s[94:95]
    v_cndmask_b32 v{A2[0]+1}, 0, v{one}, s[96:97]
    v_cndmask_b32 v{A2[1]}, 0, v{one}, s[94:95]
    v_cndmask_b32 v{A2[1]+1}, 0, v{one}, s[96:97]
    v_lshlrev_b32 v{t1}, 4, v{t1}
    v_lshl_or_b32 v{t1}, v{t3}, 3, v{t1}
    v_lshl_or_b32 v{t1}, v{t2}, 2, v{t1}
    v_bfe_u32 v{t4}, v{n_}, 3, 1
    v_lshl_or_b32 v{t1}, v{t4}, 1, v{t1}
    v_bfe_u32 v{t5}, v{n_}, 1, 1
    v_or_b32 v{t1}, v{t1}, v{t5}
    v_lshlrev_b32 v{ESIG}, 3, v{t1}
    v_lshl_add_u32 v{ESIG}, v{h_}, 2, v{ESIG}""")
    if OPT["smf"]:
        a(f"""v_lshrrev_b32 v{t2}, 4, v{t1}
        v_bfe_u32 v{t3}, v{t1}, 2, 1
        v_lshl_or_b32 v{t2}, v{t2}, 1, v{t3}
        v_and_b32 v{t3}, 3, v{t1}
        v_lshlrev_b32 v{t4}, 2, v{t2}
        v_lshlrev_b32 v{ID1}, v{t4}, v{t3}
        v_bfe_u32 v{t3}, v{t1}, 3, 1
        v_xor_b32 v{t3}, v{t3}, v{h_}
        v_lshl_or_b32 v{t2}, v{t3}, 2, v{t2}
        v_mov_b32 v{one}, 0x3f80""")
        for q in range(4): a(f"v_cmp_eq_u32 {sr(56+0,2) if False else sr(94+2*(q%3),2)}, {q}, v{t2}" + (f"\nv_cndmask_b32 v{ID0+q-1}, 0, v{one}, {sr(94+2*((q-1)%3),2)}" if q else "\ns_nop 0"))
        a(f"""v_bfe_u32 v{t1}, v{L}, 2, 2
        v_cndmask_b32 v{ID0+3}, 0, v{one}, {sr(94,2)}
        v_lshl_add_u32 v{t2}, v{h_}, 4, v{t1}
        v_lshlrev_b32 v{t2}, 7, v{t2}
        v_lshrrev_b32 v{t1}, 1, v{t1}
        v_lshl_add_u32 v{t2}, v{t1}, 6, v{t2}
        v_bfe_u32 v{t1}, v{L}, 4, 1
        v_lshl_add_u32 v{t2}, v{t1}, 5, v{t2}
        v_and_b32 v{t3}, 3, v{L}
        v_lshl_add_u32 v{t2}, v{t3}, 3, v{t2}
        v_add_u32 v{RA}, s{S_STG}, v{t2}
        v_xor_b32 v{RA+1}, 64, v{RA}
        v_lshlrev_b32 v{t2}, 2, v{t1}""")
    else:
        a(f"""v_bfe_u32 v{t3}, v{t1}, 1, 3
        v_xor_b32 v{t3}, v{t3}, v{h_}
        v_lshlrev_b32 v{t3}, 4, v{t3}
        v_lshl_add_u32 v{t3}, v{t1}, 7, v{t3}
        v_add_u32 v{RA}, s{S_STG}, v{t3}""")
        for s in range(1, 4): a(f"v_xor_b32 v{RA+s}, {32*s}, v{RA}")
        a(f"v_lshrrev_b32 v{t2}, 4, v{L}")
    a(f"""v_and_b32 v{t3}, 7, v{L}
    v_xor_b32 v{t2}, v{t2}, v{t3}
    s_lshl_b32 s96, s{S_CG}, 7
    v_lshl_add_u32 v{IP+1}, v{t2}, 4, s96
    v_xor_b32 v{IP+3}, {0 if OPT['smf'] else 64}, v{IP+1}
    v_mov_b32 v{IP+5}, v{IP+1}
    v_mov_b32 v{IP+7}, v{IP+3}
    v_bfe_u32 v{t1}, v{L}, 4, 1
    v_lshlrev_b32 v{t1}, 5, v{t1}
    v_and_b32 v{t3}, 3, v{L}
    v_lshl_add_u32 v{t1}, v{t3}, 3, v{t1}
    v_add_u32 v{QST}, s96, v{t1}
    v_bfe_u32 v{t1}, v{L}, 2, 2
    v_lshl_add_u32 v{QOFF}, v{h_}, 2, v{t1}
    v_lshlrev_b32 v{QOFF}, 2, v{QOFF}
    s_cmp_lg_u32 s{S_GRP}, 0
    s_cbranch_scc1 L2_ld
    L2_wrec:""")
    dpp_red(a, "v_max_u32", MXC)
    stamp(a, 3, ST)
    a(f"""s_waitcnt vmcnt(2)
    s_branch L2_rank2
    L2_rank0:
    s_waitcnt vmcnt(0)
    L2_rank2:
    v_mov_b32 v{VONE}, 1
    v_mov_b32 v63, 0
    s_barrier""")
    stamp(a, 5, ST)
    RK = 96
    def rank(ks):
        for k in ks:
            a(f"""s_mov_b64 exec, {sr(MASK+2*k,2)}
            v_lshrrev_b32 v{RK+k}, 14, v{RECR+4*k+2}
            ds_add_rtn_u32 v{RECR+4*k+3}, v{RK+k}, v{VONE} offset:{L_CNT}""")
    rank(range(8))
    a(f"s_cmp_lg_u32 s{S_R2}, 0\ns_cbranch_scc1 L2_x2")
    cold(a, "L2_x2", lambda: rank(range(8, 12)))
    a(f"""s_mov_b64 exec, -1
    s_cmp_eq_u32 s{S_FIRST}, 0
    s_cbranch_scc1 L2_k13
    s_mov_b32 exec_lo, 0
    s_mov_b32 exec_hi, 0x80000000
    ds_max_u32 v63, v{MXC} offset:{L_MISC+4}
    s_mov_b64 exec, -1""")
    CL, CU, C_, PC, O1, O2, R3 = 48, 49, 50, 51, 52, 53, 54
    I1, I2, I3 = 56, 57, 58
    TL, TH = 108, 112
    HM = (0xffffffff << SPLIT) & 0xffffffff
    a(f"""L2_k13:
    s_waitcnt lgkmcnt(0)
    s_barrier
    ds_read_b32 v{CL}, v{L16} offset:{L_CNT}
    ds_read_b32 v{CU}, v{L16} offset:{L_CNT+1024}
    ds_read_b64 v[60:61], v63 offset:{L_MISC}
    s_waitcnt lgkmcnt(1)
    v_add_u32 v{C_}, v{CL}, v{CU}
    v_and_b32 v{O1}, -8, v{CL}
    v_add_u32 v{PC}, 3, v{C_}
    v_mov_b32 v{I1}, v{O1}
    v_and_b32 v{PC}, -4, v{PC}
    v_sub_u32 v{R3}, v{PC}, v{O1}
    v_and_b32 v{O2}, -8, v{R3}
    v_and_b32 v{R3}, 4, v{R3}
    v_mov_b32 v{I2}, v{O2}
    v_mov_b32 v{I3}, v{R3}""")
    dpp_red(a, "v_add_u32", [I1, I2, I3])
    a(f"""v_readlane_b32 s94, v{I1}, 63
    v_readlane_b32 s95, v{I2}, 63
    v_readlane_b32 s96, v{I3}, 63
    v_readlane_b32 s97, v{I1}, {SPLIT-1}
    v_readlane_b32 s98, v{I2}, {SPLIT-1}
    v_readlane_b32 s99, v{I3}, {SPLIT-1}
    v_readlane_b32 s28, v{I1}, 31
    v_sub_u32 v{I1}, v{I1}, v{O1}
    v_sub_u32 v{I2}, v{I2}, v{O2}
    v_sub_u32 v{I3}, v{I3}, v{R3}
    s_cmp_eq_u32 s{S_FIRST}, 0
    s_cbranch_scc1 L2_s1
    s_waitcnt lgkmcnt(0)
    v_readfirstlane_b32 s{S_MAXC}, v61
    v_readfirstlane_b32 s{S_SAFE}, v60
    s_mov_b32 s{S_FIRST}, 0""")
    a(f"""L2_s1:
    s_sub_u32 s94, s94, s97
    s_sub_u32 s95, s95, s98
    s_sub_u32 s96, s96, s99
    s_add_u32 s29, s97, s98
    s_add_u32 s30, s29, s99
    s_add_u32 s30, s30, 7
    s_and_b32 s30, s30, -8
    s_sub_u32 s31, s30, s97
    s_add_u32 s28, s28, s31
    s_add_u32 s40, s30, s94
    s_add_u32 s41, s40, s95
    s_add_u32 s42, s41, s96
    s_add_u32 s{S_CUT}, s42, {OPT.get('cb', 63)}
    s_lshr_b32 s{S_CUT}, s{S_CUT}, 6
    s_add_u32 s43, s30, 31
    s_lshr_b32 s43, s43, 5
    s_max_u32 s{S_CUT}, s{S_CUT}, s43
    s_add_u32 s43, s28, 31
    s_lshr_b32 s43, s43, 5
    s_min_u32 s{S_CUT}, s{S_CUT}, s43
    s_lshl_b32 s43, s{S_CUT}, 5
    s_max_u32 s43, s43, s28
    s_sub_u32 s43, s43, s28
    s_add_u32 s40, s40, s43
    s_add_u32 s41, s41, s43
    s_add_u32 s42, s42, s43
    s_sub_u32 s40, s40, s98
    s_sub_u32 s52, s41, s99
    s_mov_b32 exec_lo, {HM ^ 0xffffffff}
    s_mov_b32 exec_hi, 0
    v_add_u32 v{I2}, s97, v{I2}
    v_add_u32 v{I3}, s29, v{I3}
    s_mov_b32 exec_lo, {HM}
    s_mov_b32 exec_hi, -1
    v_add_u32 v{I1}, s31, v{I1}
    v_add_u32 v{I2}, s40, v{I2}
    v_add_u32 v{I3}, s52, v{I3}
    s_mov_b32 exec_lo, 0
    v_add_u32 v{I1}, s43, v{I1}
    s_mov_b64 exec, -1
    v_add_u32 v{O2}, v{O1}, v{O2}
    v_sub_u32 v{I2}, v{I2}, v{O1}
    v_sub_u32 v{I3}, v{I3}, v{O2}
    v_lshl_or_b32 v{TL}, v{O2}, 16, v{O1}
    v_mov_b32 v{TL+1}, v{I1}
    v_mov_b32 v{TL+2}, v{I2}
    v_mov_b32 v{TL+3}, v{I3}
    v_max_u32 v55, v{O2}, v{CL}
    v_sub_u32 v55, v55, v{CL}
    v_lshlrev_b32 v{TH}, 16, v55
    v_add_u32 v{TH+2}, v{I2}, v{CL}
    v_add_u32 v{TH+3}, v{I3}, v{CL}
    ds_write_b128 v{L16}, {vr(TL,4)} offset:{L_TBL}
    ds_write_b128 v{L16}, {vr(TH,4)} offset:{L_TBL+1024}
    s_add_u32 s96, s42, 31
    s_lshr_b32 s96, s96, 5
    s_cmp_lg_u32 s{S_SLOW}, 0
    s_cbranch_scc1 L2_s2
    s_cmp_gt_u32 s96, {CAPT}
    s_cselect_b32 s97, 1, 0
    s_cmp_gt_u32 s{S_MAXC}, {3*LPS}
    s_cselect_b32 s97, 1, s97
    s_cmp_lg_u32 s97, 0
    s_cbranch_scc1 L2_ovf
    L2_s2:
    s_waitcnt lgkmcnt(0)""")
    stamp(a, 6, ST)
    TB = 104
    def tbrd(ks):
        for k in ks: a(f"s_mov_b64 exec, {sr(MASK+2*k,2)}\nds_read_b128 {vr(TB+4*(k%4),4)}, v{RK+k} offset:{L_TBL}")
        full(a)
    def scatter(ks):
        P = ((94, 96), (12, 14), (16, 18))
        def st1(k):
            r, tb = RECR+4*k+3, TB+4*(k % 4)
            a(f"""v_cmp_lt_u32_sdwa {sr(P[k%3][0],2)}, v{r}, v{tb} src0_sel:DWORD src1_sel:WORD_1
            v_cmp_lt_u32_sdwa {sr(P[k%3][1],2)}, v{r}, v{tb} src0_sel:DWORD src1_sel:WORD_0""")
        def st2(k):
            r, m, tb = RECR+4*k+3, RECR+4*k+2, TB+4*(k % 4)
            a(f"""v_cndmask_b32 v{tb+3}, v{tb+3}, v{tb+2}, {sr(P[k%3][0],2)}
            v_cndmask_b32 v{tb+3}, v{tb+3}, v{tb+1}, {sr(P[k%3][1],2)}
            v_and_b32 v{m}, {OPT.get('imask', 0x3fff)}, v{m}
            v_add_lshl_u32 v{tb+3}, v{tb+3}, v{r}, 2
            v_lshlrev_b32 v{tb}, 1, v{tb+3}""")
        st1(ks[0])
        for i, k in enumerate(ks):
            if i + 1 < len(ks): st1(ks[i+1])
            st2(k)
        for k in ks:
            tb = TB+4*(k % 4)
            a(f"""s_mov_b64 exec, {sr(MASK+2*k,2)}
            ds_write_b32 v{tb+3}, v{RECR+4*k+2} offset:{L_IDX}
            ds_write_b64 v{tb}, {vr(RECR+4*k,2)} offset:{L_EA}""")
    def sc2():
        for k2 in range(8, 12):
            a(f"""s_mov_b64 exec, {sr(MASK+2*k2,2)}
            v_lshrrev_b32 v{RK+k2-8}, 14, v{RECR+4*k2+2}
            ds_read_b128 {vr(TB+4*(k2-8),4)}, v{RK+k2-8} offset:{L_TBL}""")
        a("s_mov_b64 exec, -1\ns_waitcnt lgkmcnt(0)")
        scatter(list(range(8, 12)))
    tbrd(range(4))
    a(f"""s_lshr_b32 s29, s29, 6
    s_lshl_b32 s29, s29, 1
    s_lshr_b32 s41, s41, 5
    s_max_u32 s41, s41, s{S_CUT}
    s_sub_u32 s41, s41, s{S_CUT}
    s_and_b32 s41, s41, -2
    s_cmp_eq_u32 s{S_SAFE}, 0
    s_cselect_b32 s29, s29, 0
    s_cselect_b32 s41, s41, 0
    s_add_u32 s30, s29, 3
    s_lshr_b32 s30, s30, 2
    s_sub_u32 s31, s{S_CUT}, s29
    s_add_u32 s31, s31, 1
    s_lshr_b32 s31, s31, 1
    s_add_u32 s31, s31, s30
    s_add_u32 s40, s41, 3
    s_lshr_b32 s40, s40, 2
    s_add_u32 s40, s40, s31
    s_min_u32 s98, s{S_CUT}, s96
    s_sub_u32 s99, s96, s98
    s_cmp_eq_u32 s{S_GRP}, 0
    s_cselect_b32 s{S_N}, s98, s99
    s_cselect_b32 s{S_T0}, 0, s{S_CUT}
    s_cselect_b32 s{S_NO}, s29, s41
    s_cselect_b32 s53, 0, s31
    s_add_u32 s41, s41, s{S_CUT}
    s_lshl_b32 s30, s30, 1
    s_sub_u32 s30, s30, s29
    s_lshl_b32 s31, s31, 2
    s_sub_u32 s31, s31, s{S_CUT}
    s_lshl_b32 s40, s40, 1
    s_sub_u32 s40, s40, s41
    s_waitcnt lgkmcnt(0)""")
    scatter(list(range(4)))
    tbrd(range(4, 8))
    a(f"""v_cmp_eq_u32 vcc, 0, v{R3}
    s_cmp_ge_u32 s3, 3
    s_cbranch_scc1 L2_pad
    v_add_u32 v55, s3, v{C_}
    v_cndmask_b32 v59, v{I3}, v{I2}, vcc
    v_cmp_lt_u32 vcc, v55, v{PC}
    s_lshr_b32 s96, s{S_SAFE}, 1
    s_add_u32 s96, s96, {N}
    s_and_b64 exec, exec, vcc
    v_mov_b32 v60, s96
    v_add_lshl_u32 v55, v55, v59, 2
    ds_write_b32 v55, v60 offset:{L_IDX}
    s_mov_b64 exec, -1
    L2_pad:""")
    for r in (PC, O1, O2, I1, I2, I3): a(f"v_lshrrev_b32 v{r}, 2, v{r}")
    QA_, ONE, NC1, Q, T, U, V = 48, 49, 50, 54, 55, 59, 60
    a(f"""v_mul_u32_u24 v{QA_}, {BTS}, v{L}
    v_add_u32 v{QA_}, {L_BT}, v{QA_}
    v_mov_b32 v{ONE}, 0x3f80
    v_subrev_u32 v{NC1}, {17*16}, v{L16}
    v_mov_b32 v61, s30
    v_mov_b32 v62, s40
    s_mov_b32 s97, s3
    L2_q:
    v_cmp_lt_u32 s[94:95], s97, v{O2}
    v_cmp_lt_u32 s[98:99], s97, v{O1}
    v_cmp_lt_u32 vcc, s97, v{PC}
    v_cndmask_b32 v{Q}, v{I3}, v{I2}, s[94:95]
    s_and_b64 exec, exec, vcc
    s_cbranch_execz L2_qd
    v_cndmask_b32 v{Q}, v{Q}, v{I1}, s[98:99]
    v_add_u32 v{Q}, s97, v{Q}
    v_lshrrev_b32 v{T}, 3, v{Q}
    v_lshlrev_b32 v{U}, 2, v{Q}
    ds_write_b32 v{U}, v{QA_} offset:{L_QA}
    v_cmp_le_u32 vcc, s{S_CUT}, v{T}
    v_cmp_gt_u32 s[94:95], s29, v{T}
    v_cmp_gt_u32 s[98:99], s41, v{T}
    v_and_b32 v{V}, 4, v{Q}
    v_cndmask_b32 v{U}, v{L16}, v{NC1}, vcc
    v_lshl_add_u32 v{U}, v{V}, 7, v{U}
    v_and_b32 v{V}, 2, v{Q}
    v_add_u32 v{U}, v{U}, v{V}
    s_and_b64 s[98:99], s[98:99], vcc
    s_or_b64 s[94:95], s[94:95], s[98:99]
    v_cndmask_b32 v{V}, v61, v62, vcc
    v_add_u32 v{V}, v{V}, v{T}
    v_and_b32 v{Q}, 1, v{Q}
    v_lshl_or_b32 v{Q}, v{V}, 1, v{Q}
    v_mov_b32 v{V}, s31
    v_cndmask_b32 v{V}, 0, v{V}, vcc
    v_add_u32 v{V}, v{V}, v{T}
    v_cndmask_b32 v{Q}, v{Q}, v{V}, s[94:95]
    v_and_b32 v{V}, -4, v{Q}
    v_lshl_add_u32 v{U}, v{V}, 8, v{U}
    v_and_b32 v{V}, 3, v{Q}
    v_lshl_add_u32 v{U}, v{V}, 2, v{U}
    ds_write_b16 v{U}, v{ONE} offset:{L_P}
    s_add_u32 s97, s97, 8
    s_branch L2_q
    L2_qd:
    s_mov_b64 exec, -1
    s_waitcnt lgkmcnt(0)""")
    scatter(list(range(4, 8)))
    a(f"s_cmp_lg_u32 s{S_R2}, 0\ns_cbranch_scc1 L2_x4")
    cold(a, "L2_x4", sc2)
    a(f"""s_mov_b64 exec, -1
    s_lshl_b32 s96, s{S_T0}, 7
    s_add_u32 s96, s96, {L_IDX-256}
    v_lshrrev_b32 v54, 3, v{L}
    v_lshl_add_u32 v{IB}, v54, 2, s96
    s_lshl_b32 s96, s{S_T0}, 8
    s_add_u32 s96, s96, {L_EA-512}
    v_add_u32 v{EB}, s96, v{ESIG}
    s_lshl_b32 s96, s{S_T0}, 5
    s_add_u32 s96, s96, {L_QA-64}
    v_add_u32 v{QB}, s96, v{QOFF}
    s_lshl_b32 s96, s53, 10
    s_add_u32 s96, s96, {L_P-1024}
    v_add_u32 v{PB}, s96, v{L16}""")
    for j in range(8): a(f"v_mov_b32 v{HQ0+j}, 0")
    for j in range(4): a(f"v_mov_b32 v{PP+j}, 0\nv_mov_b32 v{EE+2*j+1}, v{IP+2*j+1}")
    a(f"""s_mov_b32 s38, {AROWS}
    L2_b2:
    v_mov_b32 v53, 0
    s_waitcnt vmcnt(0) lgkmcnt(0)
    s_barrier
    ds_read_b64 v[54:55], v53 offset:{L_MISC+8}""")
    stamp(a, 7, ST)
    def prime01():
        rd_idx(a, 2)
        for u in range(4): a(f"ds_read_b32 v{EE+2*u}, v{IB} offset:{128*3+32*u}")
        a("s_waitcnt lgkmcnt(4)"); dma(a, 0)
        rd_idx(a, 4)
        a(f"s_add_u32 m0, s{S_STG}, 4096\ns_waitcnt lgkmcnt(4)")
        for u in range(4):
            a(f"buffer_load_dwordx4 {vr(EE+2*u,2)}, s[36:39], 0 idxen offen lds")
            if u < 3: a("s_add_u32 m0, m0, 1024")
    prime01()
    a(f"""ds_read_b32 v{QV[0]}, v{QB} offset:64
    ds_read_b32 v{QV[1]}, v{QB} offset:96
    ds_read2st64_b32 {vr(A2[0]+2,2)}, v{EB} offset0:2 offset1:2
    v_readfirstlane_b32 s96, v54
    v_readfirstlane_b32 s97, v55
    s_cmp_eq_u32 s{S_SAFE}, 2
    s_cselect_b32 s96, 0, s96
    s_or_b32 s98, s96, s97
    s_cbranch_scc1 L2_again
    s_cmp_eq_u32 s{S_N}, 0
    s_cbranch_scc1 L2_done
    s_waitcnt lgkmcnt(0)
    v_add_u32 v{QV[0]}, v{QV[0]}, v{QST}
    v_add_u32 v{QV[1]}, v{QV[1]}, v{QST}
    s_waitcnt vmcnt(4)""")
    rd_rows(a, 0)
    a(f"ds_read_b64_tr_b16 {vr(B2R[0],2)}, v{QV[0]}\ns_waitcnt lgkmcnt(0)")
    for m in tmf(D0, ALO, A2[0], B2R[0]): a(m)
    dma(a, 0); rd_idx(a, 5)
    group(a, 1)
    stamp(a, 8, ST)
    if OPT.get("stamp"): a(f"v_writelane_b32 v{ST}, s{S_N}, 30")
    a(f"s_cmp_eq_u32 s{S_SAFE}, 2\ns_cbranch_scc1 L2_loopS\ns_cmp_eq_u32 s{S_NO}, 0\ns_cbranch_scc1 L2_loopF")
    main_loops(a)
    def again(tgt):
        a(f"""s_cmp_lg_u32 s96, 0
        s_cselect_b32 s{S_SAFE}, 2, s{S_SAFE}
        s_cmp_lg_u32 s97, 0
        s_cselect_b32 s{S_SLOW}, 1, s{S_SLOW}
        s_cselect_b32 s{S_LIM}, {LPS}, s{S_LIM}
        s_cselect_b32 s{S_IMASK}, 3, s{S_IMASK}
        s_waitcnt vmcnt(0) lgkmcnt(0)
        s_barrier
        s_branch {tgt}""")
    def more(tgt, done):
        a(f"""s_cmp_eq_u32 s{S_SLOW}, 0
        s_cbranch_scc1 {done}
        s_add_u32 s{S_BETA}, s{S_BETA}, 1
        s_lshr_b32 s{S_BASE}, s{S_BETA}, 1
        s_lshl_b32 s{S_BASE}, s{S_BASE}, {LSH}
        s_xor_b32 s{S_IMASK}, s{S_IMASK}, 15
        s_cmp_ge_u32 s{S_BASE}, s{S_MAXC}
        s_cbranch_scc1 {done}
        s_barrier
        s_branch {tgt}""")
    keep = a.L; a.L = []
    a(f"""L2_ovf:
    ds_write_b32 v63, v{VONE} offset:{L_MISC+12}
    v_mov_b32 v{IB}, 0
    v_mov_b32 v{EB}, 0
    v_mov_b32 v{QB}, 0
    s_mov_b32 s38, 0""")
    for j in range(4): a(f"v_mov_b32 v{EE+2*j+1}, 0")
    a("s_branch L2_b2\nL2_again:")
    again("L2_batch")
    a.cold += a.L; a.L = keep
    a(f"""L2_end_odd:
    ds_read_b128 {vr(PP,4)}, v{PB}
    s_waitcnt lgkmcnt(0)""")
    a(mfma(S0, HQ0, PP, S0))
    a("L2_end_even:")
    a(mfma(S1, HQ1, PP, S1))
    a("L2_done:\ns_waitcnt vmcnt(0)")
    more("L2_batch", "L2_epi")
    a("L2_epi:")
    stamp(a, 9, ST)
    for u in range(8):
        a(f"""v_xor_b32 v{32+u}, {16*u}, v{SWA}
        v_cvt_pk_bf16_f32 v{16+2*u}, v{S0+4*u}, v{S0+4*u+1}
        v_cvt_pk_bf16_f32 v{17+2*u}, v{S0+4*u+2}, v{S0+4*u+3}
        ds_write_b64 v{32+u}, {vr(16+2*u,2)}""")
    a("s_waitcnt lgkmcnt(0)\ns_barrier\ns_branch L2_fin")

    XR, WR, DX, DY = 0, 64, 128, 144
    HL, MB, DEG, BIA, T1, JK = 160, 162, 163, 164, 166, 167
    a(f"L2_H:\nv_mov_b32 v{HL}, v{LANE}")
    L = HL
    code_pf(a, "k2_kernel", "L2_last-k2_kernel", L, 10, JK, 40, 36, S_CG)
    a(f"""v_mov_b32 v{DEG}, 0
    v_lshrrev_b32 v3, 4, v{L}
    v_and_b32 v4, 15, v{L}
    v_xor_b32 v6, v3, v4
    v_lshlrev_b32 v6, 4, v6
    v_lshl_or_b32 v6, v3, 8, v6
    v_xor_b32 v7, 64, v6
    v_xor_b32 v8, 128, v6
    v_xor_b32 v9, 192, v6
    s_lshl_b32 s97, s{S_CG}, 12
    s_add_u32 m0, s97, {L_BT}
    s_lshl_b32 s96, s{S_NEG}, 8
    s_add_u32 s96, s96, s97
    v_and_b32 v12, 31, v{L}
    v_lshlrev_b32 v13, 3, v12
    v_mov_b32 v14, 0
    s_waitcnt lgkmcnt(0)""")
    srd(a, 40, X, None, N*256)
    for q in range(4):
        a(f"buffer_load_dwordx4 v{6+q}, s[40:43], s96 offen lds")
        if q < 3: a("s_add_u32 m0, m0, 1024\ns_add_u32 s96, s96, 1024")
    srd(a, 44, WS, BIAS, 1024); srd(a, 28, WS, MAXA, 196*4); srd(a, 32, WS, MAXE, (CH*4+15)//16*16); srd(a, 36, WS, MAXW_G, 4)
    a(f"""s_lshl_b32 s96, s{S_CG}, 8
    buffer_load_dwordx2 {vr(BIA,2)}, v13, s[44:47], s96 offen
    buffer_load_dwordx4 v[128:131], v{L16}, s[28:31], 0 offen
    buffer_load_dwordx4 v[132:135], v{L16}, s[32:35], 0 offen
    buffer_load_dword v136, v14, s[36:39], 0 offen
    L2_hb:
    s_lshl_b32 s96, s{S_CG}, 10
    v_add_u32 v144, s96, v{L16}""")
    for j in range(4): a(f"v_mov_b32 v{148+j}, -1\nv_mov_b32 v{152+j}, 0")
    for i in range(NZ//256): a(f"ds_write_b128 v144, v[152:155] offset:{L_CNT + 4096*i}")
    for i in range(2): a(f"ds_write_b128 v144, v[148:151] offset:{L_IDX + 4096*i}")
    for j in range(4): a(f"v_mov_b32 v{156+j}, {L_NULL}")
    a(f"""v_cmp_gt_u32 vcc, {16*(NZ % 256)}, v144
    s_and_b64 exec, exec, vcc
    ds_write_b128 v144, v[152:155] offset:{L_CNT + 4096*(NZ//256)}
    s_mov_b64 exec, -1
    v_cmp_gt_u32 vcc, 2048, v144
    s_and_b64 exec, exec, vcc
    ds_write_b128 v144, v[156:159] offset:{L_QA}
    s_mov_b64 exec, -1
    s_cmp_eq_u32 s{S_FIRST}, 0
    s_cbranch_scc1 L2_hn""")
    def wload(base, q0=0, q1=16):
        srd(a, 44, WS, base, 65536)
        a(f"s_lshl_b32 s96, s{S_CG}, 14\ns_add_u32 s96, s96, {4096*(q0//4)}")
        for q in range(q0, q1):
            if q % 4 == 0 and q > q0: a("s_add_u32 s96, s96, 4096")
            a(f"buffer_load_dwordx4 {vr(WR+4*q,4)}, v{L16}, s[44:47], s96 offen offset:{1024*(q%4)}")
            if base == W2OP and OPT.get("w2p", 1): a("s_waitcnt vmcnt(0)")
    WA = OPT.get("wa", 0); WB = OPT.get("wb", 8)
    a(f"s_setprio {OPT.get('hp', 3)}")
    if OPT.get("gfirst2", 1):
        a("s_waitcnt vmcnt(0)")
        a("""v_mov_b32 v140, 1
        v_mov_b32 v141, 0
        v_max3_u32 v128, v128, v129, v130
        v_max3_u32 v132, v132, v133, v134
        v_max_u32 v128, v128, v131
        v_max_u32 v132, v132, v135""")
        dpp_red(a, "v_max_u32", [128, 132])
        a(f"""v_mul_f32 v136, v136, v132
        v_sqrt_f32 v136, v136
        v_mov_b32 v142, {f2u(28.0)}
        v_add_f32 v136, v128, v136
        v_mov_b32 v143, {f2u(8.0)}
        v_cmp_nlt_f32 vcc, v136, v142
        v_cmp_nlt_f32 s[94:95], v136, v143
        v_cndmask_b32 v142, 0, v140, vcc
        v_cndmask_b32 v143, 0, v140, s[94:95]
        v_cmp_gt_f32 vcc, {f2u(1/64)}, v136
        v_add_u32 v136, v142, v143
        v_cndmask_b32_e64 v136, v136, 2, vcc""")
    if WA: wload(W1BOP, 0, WA)
    a(f"""v_and_b32 v137, 31, v{L}
    v_lshrrev_b32 v138, 5, v{L}
    v_and_b32 v139, 15, v{L}
    v_xor_b32 v139, v139, v138
    v_lshlrev_b32 v139, 4, v139
    v_lshl_add_u32 v139, v137, 8, v139
    v_add_u32 v139, {L_BT}, v139
    s_lshl_b32 s96, s{S_CG}, 7
    s_add_u32 s96, s96, {L_BT}
    v_lshl_add_u32 v{T1}, v137, 2, s96
    v_mul_u32_u24 v138, {4*BTS}, v138
    v_add_u32 v{T1}, v{T1}, v138
    s_waitcnt vmcnt({WA}) lgkmcnt(0)
    s_barrier""")
    for s in range(8):
        a(f"ds_read_b128 {vr(XR+4*s,4)}, v139\nds_read_b128 {vr(XR+32+4*s,4)}, v139 offset:8192")
        if s < 7: a(f"v_xor_b32 v139, {32*(s ^ (s+1))}, v139")
    if not OPT.get("gfirst2", 1):
        a("""v_mov_b32 v140, 1
        v_mov_b32 v141, 0
        v_max3_u32 v128, v128, v129, v130
        v_max3_u32 v132, v132, v133, v134
        v_max_u32 v128, v128, v131
        v_max_u32 v132, v132, v135""")
        dpp_red(a, "v_max_u32", [128, 132])
        a(f"""v_mul_f32 v136, v136, v132
        v_sqrt_f32 v136, v136
        v_mov_b32 v142, {f2u(28.0)}
        v_add_f32 v136, v128, v136
        v_mov_b32 v143, {f2u(8.0)}
        v_cmp_nlt_f32 vcc, v136, v142
        v_cmp_nlt_f32 s[94:95], v136, v143
        v_cndmask_b32 v142, 0, v140, vcc
        v_cndmask_b32 v143, 0, v140, s[94:95]
        v_cmp_gt_f32 vcc, {f2u(1/64)}, v136
        v_add_u32 v136, v142, v143
        v_cndmask_b32_e64 v136, v136, 2, vcc""")
    lane63(a); a(f"ds_write_b32 v141, v136 offset:{L_MISC}"); full(a)
    if WB > WA: wload(W1BOP, WA, WB)
    srd(a, 28, WS, None, N*512)
    PL = OPT["pfl"]
    a(f"""s_lshr_b32 s96, s2, 3
    s_lshl_b32 s96, s96, 2
    s_add_u32 s96, s96, s{S_CG}
    s_mul_i32 s96, s96, {256*PL}
    v_lshlrev_b32 v142, 7, v{L}
    s_waitcnt lgkmcnt(0)
    s_barrier
    ds_read_b64 v[128:129], v141 offset:{L_MISC}
    s_mov_b32 s97, s96""")
    WC = max(WA, WB)
    if WC < 16: wload(W1BOP, WC, 16)
    a(f"""s_mov_b32 s96, s97
    s_mov_b32 exec_hi, {(1 << (PL - 32)) - 1}
    buffer_load_dword v{JK}, v142, s[28:31], s96 offen
    s_add_u32 s96, s96, {128*PL}
    buffer_load_dword v{JK}, v142, s[28:31], s96 offen
    s_mov_b32 exec_hi, -1
    s_mov_b32 s94, {NLOG2E}
    s_mov_b32 s{S_FIRST}, 0
    v_mov_b32 v{MB}, 1.0
    s_waitcnt vmcnt({2 + 16 - max(WC, 8)}) lgkmcnt(0)
    v_readfirstlane_b32 s{S_SAFE}, v128
    v_readfirstlane_b32 s{S_MAXC}, v129""")
    def epi(d0, d1, mt, j):
        return [f"v_fma_f32 v{d0+j}, v{d0+j}, s94, v{BIA}", f"v_fma_f32 v{d1+j}, v{d1+j}, s94, v{BIA+1}",
                f"v_max3_f32 v{MB}, |v{d0+j}|, |v{d1+j}|, v{MB}", f"v_cvt_pk_bf16_f32 v{d0+j}, v{d0+j}, v{d1+j}",
                f"ds_write_b32 v{T1}, v{d0+j} offset:{(32*mt + 8*(j//4) + j % 4)*BTS}"]
    for s in range(8): a(mfma(DX, XR+4*s, WR+4*s, None if s == 0 else DX))
    a("s_waitcnt vmcnt(2)")
    for s in range(8): a(mfma(DY, XR+4*s, WR+32+4*s, None if s == 0 else DY))
    E0 = [x for j in range(16) for x in epi(DX, DY, 0, j)]
    for s in range(16):
        d = XR + 16*(s//8)
        a(mfma(d, XR+32+4*(s % 8), WR+32*(s//8)+4*(s % 8), None if s % 8 == 0 else d))
        if s >= 3: a("\n".join(E0[:7])); E0 = E0[7:]
    assert not E0
    for j in range(9):
        if j == 8: a("s_mov_b32 exec_hi, 0")
        a("\n".join(epi(XR, XR+16, 1, j)))
    a(f"""v_mov_b32 v40, 0
    ds_write_b32 v{T1}, v40 offset:{NPB*BTS}
    s_mov_b64 exec, -1
    v_mov_b32 v40, 0
    v_mov_b32 v41, 1
    v_cmp_neq_f32 vcc, 1.0, v{MB}
    s_cmp_eq_u64 vcc, 0
    s_cbranch_scc1 L2_hx
    ds_write_b32 v40, v41 offset:{L_MISC+8}
    L2_hx:""")
    a(f"""    s_branch L2_h2
    L2_hn:
    s_waitcnt lgkmcnt(0)
    s_barrier
    s_barrier
    L2_h2:
    v_mov_b32 v0, 0
    s_waitcnt lgkmcnt(0)
    s_barrier
    ds_read_b64 v[2:3], v0 offset:{L_MISC+8}
    ds_read_b32 v4, v{L16} offset:{L_CNT}
    ds_read_b32 v5, v{L16} offset:{L_CNT+1024}
    s_waitcnt lgkmcnt(0)
    v_readfirstlane_b32 s96, v2
    v_readfirstlane_b32 s97, v3
    s_cmp_eq_u32 s{S_SAFE}, 2
    s_cselect_b32 s96, 0, s96
    s_or_b32 s98, s96, s97
    s_cbranch_scc0 L2_h3""")
    again("L2_hb")
    a(f"L2_h3:\nv_add3_u32 v{DEG}, v{DEG}, v4, v5")
    more("L2_hb", "L2_h4")
    RX, RY, OA, SEL = BIA, BIA+1, T1, L16
    a("L2_h4:\ns_setprio 0")
    wload(W2OP)
    srd(a, 48, B2, None, 256)
    a(f"""v_and_b32 v2, 31, v{L}
    v_lshlrev_b32 v2, 1, v2
    s_lshl_b32 s96, s{S_CG}, 6
    buffer_load_ushort v{MB}, v2, s[48:51], s96 offen
    v_cvt_f32_u32 v8, v{DEG}
    v_lshlrev_b32 v9, 2, v{L}
    ds_write_b32 v9, v8 offset:{L_DEG}
    v_and_b32 v2, 31, v{L}
    v_lshrrev_b32 v3, 5, v{L}
    v_bfe_u32 v4, v2, 1, 3
    v_xor_b32 v4, v4, v3
    v_lshlrev_b32 v4, 4, v4
    v_lshl_add_u32 v4, v2, 7, v4
    v_add_u32 v{RX}, {L_STG}, v4
    v_add_u32 v5, 15, v2
    v_and_b32 v5, 31, v5
    v_bfe_u32 v4, v5, 1, 3
    v_xor_b32 v4, v4, v3
    v_lshlrev_b32 v4, 4, v4
    v_lshl_add_u32 v4, v5, 7, v4
    v_add_u32 v{RY}, {L_STG + 32768}, v4
    v_lshlrev_b32 v{DEG}, 4, v3
    v_lshlrev_b32 v{OA}, 10, v3
    v_and_b32 v4, 1, v2
    v_lshl_add_u32 v{OA}, v4, 8, v{OA}
    v_and_b32 v5, 30, v2
    v_lshl_add_u32 v{OA}, v5, 1, v{OA}
    s_lshl_b32 s96, s{S_CG}, 6
    v_add_u32 v{OA}, s96, v{OA}
    v_cmp_eq_u32 vcc, 0, v4
    v_mov_b32 v5, 0x07060302
    v_mov_b32 v6, 0x01000504
    v_cndmask_b32 v{SEL}, v5, v6, vcc
    s_sub_u32 s96, {N}, s{S_NEG}
    s_min_u32 s96, s96, {NPB}
    s_lshl_b32 s96, s96, 8
    s_lshl_b32 s97, s{S_NEG}, 8""")
    srd(a, 52, OUT, "s97", "s96")
    a(f"""s_mov_b32 s94, {NLN2}
    s_mov_b32 s95, 4096
    s_mov_b32 s96, 8192
    s_mov_b32 s97, 12288
    s_waitcnt vmcnt(0)
    v_lshlrev_b32 v{MB}, 16, v{MB}""")
    if OPT.get("stamp"): a(f"v_mov_b32 v{ST}, 0")
    a("s_waitcnt lgkmcnt(0)\ns_barrier")
    def rd(reg, s):
        a(f"ds_read_b128 {vr(XR+4*s,4)}, v{reg} offset:{8192*(s//4)}")
        a(f"v_xor_b32 v{reg}, {32*((s % 4) ^ ((s+1) % 4))}, v{reg}")
    AH = 12
    for s in range(AH): rd(RX, s)
    for s in range(16):
        a(f"s_waitcnt lgkmcnt({AH-1})")
        a(mfma(DX, XR+4*s, WR+4*s, None if s == 0 else DX))
        if s + AH < 16: rd(RX, s+AH)
        else: rd(RY, s+AH-16)
    for s in range(16):
        a(f"s_waitcnt lgkmcnt({AH-1 if s < 4 else (15-s) + max(0, min(7, s-4))})")
        a(mfma(DY, XR+4*s, WR+4*s, None if s == 0 else DY))
        if s + AH < 16: rd(RY, s+AH)
        elif 4 <= s < 11: a(f"ds_read_b128 {vr(XR+4*(s-4),4)}, v{DEG} offset:{L_DEG + 32*(s-4)}")
    stamp(a, 10, ST)
    def fin(D, dg, js, tmp):
        for j in js: a(f"v_mul_f32 v{D+j}, s94, v{D+j}")
        for j in js: a(f"v_fmac_f32 v{D+j}, v{dg+j}, v{MB}")
        for j in js[::2]: a(f"v_cvt_pk_bf16_f32 v{tmp+j//2}, v{D+j}, v{D+j+1}")
        for j in js[::2]: a(f"v_mov_b32_dpp v{tmp+8+j//2}, v{tmp+j//2} quad_perm:[1,0,3,2] row_mask:0xf bank_mask:0xf")
        for j in js[::2]: a(f"v_perm_b32 v{tmp+j//2}, v{tmp+j//2}, v{tmp+8+j//2}, v{SEL}")
        for j in js[::2]:
            off = (8*(j//4) + j % 4)*256 + (0 if D == DX else 8192)
            a(f"buffer_store_dword v{tmp+j//2}, v{OA}, s[52:55], {('0', 's95', 's96', 's97')[off//4096]} offen offset:{off % 4096} sc1")
    a("s_waitcnt lgkmcnt(0)")
    fin(DX, XR, list(range(8)), 32)
    a(f"s_mov_b32 exec_lo, 0\nv_add_f32 v{DX+8}, v{DX+8}, v{DY+8}\ns_mov_b64 exec, -1")
    for j in range(9, 16): a(f"v_add_f32 v{DX+j}, v{DX+j}, v{DY+j}")
    fin(DX, XR, list(range(8, 16)), 32)
    fin(DY, XR+16, list(range(10)), 48)
    a("L2_fin:")
    stamp_dump(a, ST, 0, 1)
    a("L2_exit2:\ns_endpgm")
    a.L += a.cold
    a("L2_last:\ns_endpgm")


HEAD = """; edge-featured MPNN.  out = (sum_e silu(A[src]+B[dst]+e@W1c)) @ w2 + deg*b2 with A = x@w1[:128], B = x@w1[128:256]+b1
; @launch kernel=k1_kernel grid=({g1},1,1) block=(512,1,1) lds={l1}
; @launch kernel=k2_kernel grid=({g2},1,1) block=(768,1,1) lds={l2}
.amdgcn_target "amdgcn-amd-amdhsa--gfx950"
.text
"""
KD = """.amdhsa_kernel {name}
  .amdhsa_next_free_vgpr {v}
  .amdhsa_next_free_sgpr 102
  .amdhsa_accum_offset {v}
  .amdhsa_group_segment_fixed_size 0
  .amdhsa_kernarg_size 88
  .amdhsa_user_sgpr_count 2
  .amdhsa_user_sgpr_kernarg_segment_ptr 1
  .amdhsa_system_sgpr_workgroup_id_x 1
.end_amdhsa_kernel
"""


def build():
    out = HEAD.format(g1=K1_GRID, l1=K1_LDS, g2=NB, l2=K2_LDS)
    for name, fn in (("k1_kernel", k1), ("k2_kernel", k2)):
        a = Asm(); fn(a)
        out += f".globl {name}\n.p2align 8\n.type {name},@function\n" + a.text(verbose=OPT.get("v", 0))
    out += '.section .rodata,"a"\n.p2align 6\n' + KD.format(name="k1_kernel", v=128) + ".p2align 6\n" + KD.format(name="k2_kernel", v=168)
    return out


if __name__ == "__main__":
    open(sys.argv[1], "w").write(build())
```

```python
import sys, struct
from asmlib import Asm, vr, sr

OPT = dict(prio=1, prio_at=32, pf=1, ept=4, smf=1, gp=3, split=25, cb=95, mix=6, osc=1, pfl=40)
for a_ in sys.argv[2:]:
    k_, v_ = a_.split("="); OPT[k_] = int(v_)

N, E = 12500, 400000
NPB, NB = 49, 256
EPT = OPT["ept"]
CE = 400*EPT; CH = E//CE
LPS = 2*EPT
LSH = {8: 3, 16: 4}[LPS]
SPLIT, HALF = OPT.get('split', 23), OPT.get('half', 6250)
AROWS = N + 2
W2OP = 6401024 + 1024 - 6401024 % 1024 + 2048
STAT = W2OP + 65536
BIAS = STAT + 4096
W1BOP = STAT + 8192
MAXA = W1BOP + 65536
MAXE = MAXA + 1024
MAXW_G = MAXE + 1024
OFF = MAXW_G + 1024
REC = OFF + 256000
assert W2OP % 128 == 0 and REC % 128 == 0 and MAXA % 128 == 0
STAMPS = 24 << 20
NG = 208
K1_GRID = NG + 3 + CH
K1_LDS = 81920

def f2u(x): return struct.unpack("<I", struct.pack("<f", x))[0]
NLOG2E = f2u(-1.4426950408889634)
PLOG2E = NLOG2E ^ 0x80000000
NLN2 = f2u(-0.6931471805599453)
X, EA_, SRC, DST, W1, B1, W2, B2, OUT, DBG, WS = 4, 6, 8, 10, 12, 14, 16, 18, 20, 22, 24
SHR = ["row_shr:%d row_mask:0xf bank_mask:0xf bound_ctrl:0" % i for i in (1, 2, 4, 8)]
BC15, BC31 = "row_bcast:15 row_mask:0xa bank_mask:0xf", "row_bcast:31 row_mask:0xc bank_mask:0xf"


def srd(a, d, base, add, size, stride=0):
    if add is None:
        a(f"s_mov_b32 s{d}, s{base}\ns_mov_b32 s{d+1}, s{base+1}")
    else:
        a(f"s_add_u32 s{d}, s{base}, {add}\ns_addc_u32 s{d+1}, s{base+1}, 0")
    if stride: a(f"s_or_b32 s{d+1}, s{d+1}, {stride << 16}")
    a(f"s_mov_b32 s{d+2}, {size}\ns_mov_b32 s{d+3}, 0x00020000")


def ldargs(a):
    a("""s_load_dwordx16 s[4:19], s[0:1], 0
    s_load_dwordx4 s[20:23], s[0:1], 64
    s_load_dwordx2 s[24:25], s[0:1], 80""")


def dpp_red(a, op, vs, full=True):
    if isinstance(vs, int): vs = [vs]
    for m in SHR + [BC15] + ([BC31] if full else []):
        for v in vs: a(f"{op}_dpp v{v}, v{v}, v{v} {m}")


def stamp(a, k, reg):
    if not OPT.get("stamp"): return
    a(f"s_memrealtime s[100:101]\ns_waitcnt lgkmcnt(0)\nv_writelane_b32 v{reg}, s100, {k}")
    if k in (0, 7, 8, 9, 31): a(f"s_memtime s[100:101]\ns_waitcnt lgkmcnt(0)\nv_writelane_b32 v{reg}, s100, {32+k}")


def stamp_dump(a, reg, tmp, kern):
    if not OPT.get("stamp"): return
    a("s_mov_b64 exec, -1\ns_waitcnt vmcnt(0)")
    stamp(a, 31, reg)
    a(f"""s_lshl_b32 s96, s2, {3 + kern}
    s_add_u32 s96, s96, s3
    s_lshl_b32 s96, s96, 8
    s_add_u32 s96, s96, {STAMPS + kern*(1 << 20)}""")
    srd(a, 44, WS, "s96", 256)
    a(f"""v_mbcnt_lo_u32_b32 v{tmp}, -1, 0
    v_mbcnt_hi_u32_b32 v{tmp}, -1, v{tmp}
    v_lshlrev_b32 v{tmp}, 2, v{tmp}
    buffer_store_dword v{reg}, v{tmp}, s[44:47], 0 offen""")


def smf(D, B): return f"v_smfmac_f32_32x32x32_bf16 {vr(D,16)}, {vr(ID0,4)}, {vr(B,8)}, v{ID1}"
def tmf(D, rows, a2, b2):
    if OPT["smf"]: return [mfma(D, a2, b2, None), smf(D, rows)]
    return [mfma(D, rows, ID0, None), mfma(D, rows+4, ID1, D), mfma(D, a2, b2, D)]
def code_pf(a, label, size, lane, tmp, junk, sr0, lanes=16, wid=3):
    if not OPT.get("cpf", 2): return
    code_pf.n += 1
    n = code_pf.n
    a(f"""s_cmp_ge_u32 s2, {OPT.get("cpn", 16)}
    s_cbranch_scc1 L_pe{n}
    s_getpc_b64 s[{sr0}:{sr0+1}]
    L_pc{n}:
    s_sub_u32 s{sr0}, s{sr0}, L_pc{n}-{label}
    s_subb_u32 s{sr0+1}, s{sr0+1}, 0
    s_mul_i32 s{sr0+2}, s{wid}, {128*lanes}
    v_min_u32 v{tmp}, {lanes-1}, v{lane}
    v_lshl_add_u32 v{tmp}, v{tmp}, 7, s{sr0+2}
    v_min_u32 v{tmp}, {size}-4, v{tmp}
    v_mov_b32 v{tmp+1}, s{sr0+1}
    v_add_co_u32 v{tmp}, vcc, s{sr0}, v{tmp}
    v_addc_co_u32 v{tmp+1}, vcc, 0, v{tmp+1}, vcc
    global_load_dword v{junk}, v[{tmp}:{tmp+1}], off
    L_pe{n}:""")
code_pf.n = 0
def lane63(a): a("s_mov_b32 exec_lo, 0\ns_mov_b32 exec_hi, 0x80000000")
def full(a): a("s_mov_b64 exec, -1")
def mfma(D, A, B, C): return f"v_mfma_f32_32x32x16_bf16 {vr(D,16)}, {vr(A,4)}, {vr(B,4)}, " + ("0" if C is None else vr(C, 16))


def k1(a):
    ST = 126
    a("k1_kernel:")
    a(f"s_cmp_ge_u32 s2, {K1_GRID}\ns_cbranch_scc1 L1_exit2")
    if OPT.get("stamp"): a(f"v_mov_b32 v{ST}, 0")
    stamp(a, 0, ST)
    ldargs(a)
    a(f"""v_and_b32 v1, 63, v0
    v_lshrrev_b32 v2, 6, v0
    s_nop 0
    v_readfirstlane_b32 s3, v2""")
    if OPT.get("cpf", 2) >= 2: code_pf(a, "k1_kernel", "L2_last-k1_kernel", 1, 122, 125, 64, 24)
    a(f"s_cmp_gt_u32 s2, {NG+2}\ns_cbranch_scc1 L1_part" if OPT.get("gfirst", 1) else f"s_cmp_le_u32 s2, {NG+2}\ns_cbranch_scc1 L1_gemm")
    WOP = 56
    def gemm_role():
        WOP = 56
        a(f"""    s_cmp_eq_u32 s2, {NG+2}
        s_cbranch_scc1 L1_w2
        s_bfe_u32 s27, s2, 0x10003
        s_lshr_b32 s28, s2, 4
        s_lshl_b32 s28, s28, 3
        s_and_b32 s29, s2, 7
        s_add_u32 s28, s28, s29
        s_cmp_ge_u32 s2, {NG}
        s_cselect_b32 s27, s29, s27
        s_cselect_b32 s61, {128*512}, 0
        s_cbranch_scc1 L1_g1
        s_cmp_ge_u32 s28, 98
        s_cbranch_scc1 L1_exit2
        L1_g1:
        v_lshrrev_b32 v18, 4, v1
        v_and_b32 v19, 15, v1
        v_lshlrev_b32 v24, 2, v18
        v_xor_b32 v24, v24, v19
        v_lshlrev_b32 v24, 4, v24
        v_lshl_or_b32 v124, v18, 9, v24""")
        for ii in range(4):
            a(f"""v_add_u32 v20, {4*ii}, v18
            v_xor_b32 v20, v20, v19
            v_lshlrev_b32 v20, 4, v20
            v_lshl_or_b32 v{25+ii}, v18, 8, v20""")
        a(f"""v_mov_b32 v2, 0
        s_lshl_b32 s43, s3, 13
        s_lshl_b32 s30, s27, 8
        s_add_u32 s43, s43, s30
        s_add_u32 s43, s43, s61
        s_lshl_b32 s31, s3, 12
        s_lshl_b32 s29, s28, 15
        s_add_u32 s29, s29, s31
        s_add_u32 m0, s31, 32768
        s_and_b32 s40, s3, 1
        s_lshr_b32 s41, s3, 1
        v_and_b32 v7, 31, v1
        v_lshlrev_b32 v20, 1, v7
        s_lshl_b32 s42, s40, 7
        s_add_u32 s42, s42, s30
        s_waitcnt lgkmcnt(0)""")
        stamp(a, 5, ST)
        srd(a, 36, X, None, N*256)
        for ii in range(4):
            a(f"buffer_load_dwordx4 v{25+ii}, s[36:39], s29 offen lds")
            if ii < 3: a("s_add_u32 m0, m0, 1024\ns_add_u32 s29, s29, 1024")
        a("s_mov_b32 m0, s31")
        srd(a, 32, W1, None, 260*512)
        for ii in range(4):
            a(f"buffer_load_dwordx4 v124, s[32:35], s43 offen lds")
            a("s_add_u32 m0, m0, 1024\ns_add_u32 s43, s43, 2048")
        if OPT.get("cpf", 2) == 1: code_pf(a, "k1_kernel", "L1_exit2-k1_kernel", 1, 21, 22, 64)
        stamp(a, 6, ST)
        a(f"""v_bfe_u32 v18, v1, 2, 2
        v_lshrrev_b32 v6, 5, v1
        v_lshl_add_u32 v19, v6, 3, v18
        v_lshlrev_b32 v19, 8, v19
        v_bfe_u32 v20, v1, 4, 1
        v_lshlrev_b32 v20, 5, v20
        v_and_b32 v21, 3, v1
        v_lshl_add_u32 v20, v21, 3, v20
        v_add_u32 v19, v19, v20
        s_lshl_b32 s42, s40, 1
        v_xor_b32 v20, s42, v18
        v_lshl_add_u32 v120, v20, 6, v19
        v_xor_b32 v20, 1, v20
        v_lshl_add_u32 v121, v20, 6, v19
        s_lshl_b32 s42, s41, 5
        v_add_u32 v19, s42, v7
        v_lshlrev_b32 v19, 8, v19
        v_and_b32 v20, 15, v1
        v_xor_b32 v20, v20, v6
        v_lshl_add_u32 v104, v20, 4, v19
        v_add_u32 v104, 32768, v104""")
        for s in range(1, 8): a(f"v_xor_b32 v{104+s}, {32*s}, v104")
        srd(a, 44, WS, None, N*512)
        a(f"""s_lshl_b32 s42, s28, 2
        s_add_u32 s42, s42, s41
        s_lshl_b32 s42, s42, 14
        s_lshl_b32 s48, s27, 1
        s_add_u32 s48, s48, s40
        s_lshl_b32 s48, s48, 7
        s_add_u32 s48, s42, s48
        s_lshl_b32 s30, s3, 11
        s_add_u32 s30, s30, 65536
        v_lshlrev_b32 v4, 9, v6
        v_lshl_add_u32 v4, v7, 2, v4
        v_add_u32 v4, s30, v4
        v_lshl_add_u32 v6, v1, 4, s30
        v_lshrrev_b32 v7, 3, v1
        v_lshlrev_b32 v7, 9, v7
        v_and_b32 v18, 7, v1
        v_lshl_add_u32 v7, v18, 4, v7
        s_mov_b32 s52, {NLOG2E}
        s_mov_b32 s60, {PLOG2E}
        v_mov_b32 v5, 0
        v_mov_b32 v125, 0x80008000
        s_setprio {OPT.get("gp", 0)}
        s_waitcnt vmcnt(0)
        s_barrier""")
        stamp(a, 1, ST)
        def wr(t, s):
            for hf in range(2):
                a(f"ds_read_b64_tr_b16 {vr(WOP+32*t+4*s+2*hf,2)}, v{120+t} offset:{4096*s+1024*hf}")
        GD0, GD1, CV, RB = 8, WOP, 72, 88
        for task in range(1):
            sc = (lambda r, b: f"v_mul_f32 v{r}, s52, v{r}") if task == 0 else (lambda r, b: f"v_fma_f32 v{r}, v{r}, s60, v{b}")
            per = 3 if task == 0 else 2
            ahead = 5 if task == 0 else 7
            def rd(s):
                if s < 8:
                    if task == 0: a(f"ds_read_b128 {vr(24+4*s,4)}, v{104+s}")
                    wr(0, s)
                else: wr(1, s-8)
            a(f"s_cmp_ge_u32 s2, {NG}\ns_cbranch_scc1 L1_w1b")
            for s in range(ahead): rd(s)
            if task == 1:
                a("""v_lshlrev_b32 v122, 16, v122
                v_lshlrev_b32 v123, 16, v123
                v_mul_f32 v122, s60, v122
                v_mul_f32 v123, s60, v123""")
            cnt = lambda lo, hi: sum(per if q < 8 else 2 for q in range(lo, hi))
            for s in range(8):
                a(f"s_waitcnt lgkmcnt({cnt(s+1, s+ahead)})")
                a(mfma(GD0, 24+4*s, WOP+4*s, None if s == 0 else GD0))
                rd(s+ahead)
            for s in range(8+ahead, 16): rd(s)
            a("s_waitcnt lgkmcnt(0)")
            if task == 0:
                stamp(a, 3, ST)
            for s in range(8):
                a(mfma(GD1, 24+4*s, WOP+32+4*s, None if s == 0 else GD1))
                if s >= 2:
                    for j in range((s-2)*3, min(16, (s-1)*3)): a(sc(GD0+j, 122))
            for hf in range(2):
                for j in range(8*hf, 8*hf+8):
                    a(sc(GD1+j, 123))
                    a(f"""v_cvt_pk_bf16_f32 v{CV+j}, v{GD0+j}, v{GD1+j}
                    ds_write_b32 v4, v{CV+j} offset:{128*(8*(j//4 % 2)+j%4)}""")
                    if j == 10:
                        a("s_waitcnt lgkmcnt(3)")
                        for i in range(2): a(f"buffer_store_dwordx4 {vr(RB+4*i,4)}, v7, s[44:47], s48 offen sc1\ns_add_u32 s48, s48, 4096")
                for i in range(2): a(f"ds_read_b128 {vr(RB+8*hf+4*i,4)}, v6 offset:{1024*i}")
                if hf == 0: stamp(a, 4, ST)
            for i in range(2, 4):
                a(f"s_waitcnt lgkmcnt({(11, 10, 1, 0)[i]})\nbuffer_store_dwordx4 {vr(RB+4*i,4)}, v7, s[44:47], s48 offen sc1\ns_add_u32 s48, s48, 4096")
        stamp(a, 2, ST)
        for j in range(16): a(f"v_and_b32 v{CV+j}, 0x7fff7fff, v{CV+j}\nv_pk_max_u16 v5, v5, v{CV+j}")
        a("""v_lshlrev_b32 v6, 16, v5
        v_and_b32 v5, 0xffff0000, v5
        v_max_u32 v5, v5, v6""")
        dpp_red(a, "v_max_u32", 5)
        a("v_mov_b32 v3, s30")
        lane63(a); a("ds_write_b32 v3, v5"); full(a)
        srd(a, 44, WS, MAXA, 196*4)
        a(f"""s_lshl_b32 s26, s28, 1
        s_add_u32 s26, s26, s27
        s_lshl_b32 s26, s26, 2
        v_and_b32 v3, 7, v1
        v_lshlrev_b32 v3, 11, v3
        v_add_u32 v3, 65536, v3
        s_waitcnt lgkmcnt(0)
        s_barrier
        s_cmp_lg_u32 s3, 0
        s_cbranch_scc1 L1_exit
        ds_read_b32 v6, v3
        s_waitcnt lgkmcnt(0)""")
        for m in SHR[:3]: a(f"v_max_u32_dpp v6, v6, v6 {m}")
        a(f"""s_mov_b64 exec, 0x80
        buffer_store_dword v6, v2, s[44:47], s26 offen sc1
        s_branch L1_exit""")
        a(f"""L1_w1b:
        s_lshl_b32 s43, s27, 1
        s_add_u32 s43, s43, s40
        s_lshl_b32 s43, s43, 14
        v_lshlrev_b32 v2, 4, v1
        s_cmp_lg_u32 s41, 0
        s_cbranch_scc1 L1_exit""")
        for t in range(2):
            for s in range(8): wr(t, s)
        srd(a, 44, WS, W1BOP, 65536)
        a("s_waitcnt lgkmcnt(0)")
        for q in range(16):
            a(f"buffer_store_dwordx4 {vr(WOP+4*q,4)}, v2, s[44:47], s43 offen sc1\ns_add_u32 s43, s43, 1024")
        a("s_branch L1_exit")
    def part_role():
        a(f"L1_part:\ns_sub_u32 s56, s2, {NG+3}")
        G = EPT//4
        HIST, START, MAXW = 40960, 41984, 43008
        DV, SV, EV, AV, RV = 4, 12, 24, 40, 48
        a(f"""v_lshlrev_b32 v2, 2, v0
        v_mov_b32 v3, 0
        ds_write_b32 v2, v3 offset:{HIST}
        ds_write_b32 v2, v3 offset:{MAXW}
        v_mov_b32 v60, 0
        v_mov_b32 v61, 1
        s_mul_i32 s26, s56, {CE*4}
        s_add_u32 s27, s26, 6400
        s_mov_b32 s58, s26
        s_mov_b32 s59, s27
        s_lshl_b32 s52, s26, 1
        s_lshl_b32 s53, s27, 1
        v_lshlrev_b32 v3, 4, v0
        v_lshlrev_b32 v20, 5, v0
        v_cmp_gt_u32 vcc, 400, v0
        s_waitcnt lgkmcnt(0)""")
        stamp(a, 5, ST)
        srd(a, 28, DST, None, E*4); srd(a, 32, SRC, None, E*4); srd(a, 36, EA_, None, E*8)
        a("""s_and_saveexec_b64 s[54:55], vcc
        s_mov_b64 s[54:55], exec
        s_cbranch_execz L1_p1""")
        for g in range(G): a(f"buffer_load_dwordx4 {vr(DV+4*g,4)}, v3, s[28:31], s{26+g} offen")
        def late_loads():
            for g in range(G): a(f"buffer_load_dwordx4 {vr(SV+4*g,4)}, v3, s[32:35], s{58+g} offen")
            for g in range(G):
                a(f"buffer_load_dwordx4 {vr(EV+8*g,4)}, v20, s[36:39], s{52+g} offen")
                a(f"buffer_load_dwordx4 {vr(EV+8*g+4,4)}, v20, s[36:39], s{52+g} offen offset:16")
        if not OPT.get("late", 1): late_loads()
        a(f"""L1_p1:
        s_mov_b64 exec, -1
        s_mul_i32 s26, s56, {CE*12}
        s_add_u32 s26, s26, {REC}""")
        srd(a, 40, WS, "s26", CE*12); srd(a, 44, WS, OFF, CH*1024); srd(a, 48, WS, MAXE, CH*4)
        a(f"""s_setprio {OPT.get("pp", 2)}
        s_barrier
        s_mov_b64 exec, s[54:55]
        s_cbranch_execz L1_p2
        s_waitcnt vmcnt({0 if OPT.get("late", 1) else 3*G})""")
        if OPT.get("late", 1): late_loads()
        stamp(a, 1, ST)
        for k in range(EPT):
            a(f"""v_mul_u32_u24 v21, 10700, v{DV+k}
            v_lshrrev_b32 v21, 19, v21
            v_lshlrev_b32 v{AV+k}, 2, v21
            ds_add_rtn_u32 v{RV+k}, v{AV+k}, v61 offset:{HIST}
            v_mul_u32_u24 v21, {NPB}, v21
            v_sub_u32 v{DV+k}, v{DV+k}, v21""")
        a(f"""L1_p2:
        s_mov_b64 exec, -1
        v_lshlrev_b32 v2, 4, v1
        s_waitcnt lgkmcnt(0)
        s_barrier""")
        stamp(a, 3, ST)
        a(f"""ds_read_b128 v[64:67], v2 offset:{HIST}
        s_waitcnt lgkmcnt(0)
        v_add_u32 v68, v64, v65
        v_add_u32 v69, v68, v66
        v_add_u32 v70, v69, v67
        v_mov_b32 v71, v70""")
        dpp_red(a, "v_add_u32", 71)
        a(f"""v_sub_u32 v56, v71, v70
        v_add_u32 v57, v56, v64
        v_add_u32 v58, v56, v68
        v_add_u32 v59, v56, v69
        ds_write_b128 v2, v[56:59] offset:{START}
        s_mov_b64 exec, s[54:55]
        s_cbranch_execz L1_p4""")
        for k in range(EPT): a(f"ds_read_b32 v{AV+k}, v{AV+k} offset:{START}")
        a(f"s_waitcnt vmcnt({2*G})")
        for k in range(EPT):
            a(f"""v_add_u32 v21, {16384-HALF}, v{SV+k}
            v_lshl_or_b32 v{SV+k}, v{DV+k}, 18, v{SV+k}
            v_lshrrev_b32 v21, 14, v21
            v_lshl_or_b32 v{SV+k}, v21, 24, v{SV+k}""")
        a("s_waitcnt vmcnt(0)")
        for k in range(EPT):
            a(f"""s_waitcnt lgkmcnt({EPT-1+k})
            v_add_u32 v{AV+k}, v{AV+k}, v{RV+k}
            v_mul_u32_u24 v{AV+k}, 12, v{AV+k}
            ds_write2_b32 v{AV+k}, v{EV+2*k}, v{EV+2*k+1} offset0:0 offset1:1
            ds_write_b32 v{AV+k}, v{SV+k} offset:8""")
        a("L1_p4:")
        full(a)
        stamp(a, 2, ST)
        a(f"""s_cmp_lg_u32 s3, 7
        s_cbranch_scc1 L1_p3
        v_lshl_or_b32 v64, v64, 16, v56
        v_lshl_or_b32 v65, v65, 16, v57
        v_lshl_or_b32 v66, v66, 16, v58
        v_lshl_or_b32 v67, v67, 16, v59
        v_mul_u32_u24 v2, {CH*16}, v1
        s_lshl_b32 s26, s56, 4
        buffer_store_dwordx4 v[64:67], v2, s[44:47], s26 offen sc1
        L1_p3:
        s_waitcnt lgkmcnt(0)
        s_barrier""")
        stamp(a, 4, ST)
        NO = -(-CE*12//8192)
        for i in range(NO): a(f"ds_read_b128 {vr(72+4*i,4)}, v3 offset:{8192*i}")
        for i in range(NO):
            a(f"s_mov_b32 s26, {8192*i}\ns_waitcnt lgkmcnt({NO-1-i})\nbuffer_store_dwordx4 {vr(72+4*i,4)}, v3, s[40:43], s26 offen sc1")
        a("s_mov_b64 exec, s[54:55]")
        for k in range(EPT): a(f"v_dot2_f32_bf16 v{DV+k}, v{EV+2*k}, v{EV+2*k}, 0")
        for k in range(EPT): a(f"v_dot2_f32_bf16 v{DV+k}, v{EV+2*k+1}, v{EV+2*k+1}, v{DV+k}")
        a("s_nop 2")
        for k in range(0, EPT, 2): a(f"v_max3_u32 v60, v60, v{DV+k}, v{DV+k+1}")
        full(a)
        dpp_red(a, "v_max_u32", 60)
        a("v_mov_b32 v62, 0")
        lane63(a); a(f"ds_max_u32 v62, v60 offset:{MAXW}"); full(a)
        a(f"s_waitcnt lgkmcnt(0)\ns_barrier\nds_read_b32 v30, v62 offset:{MAXW}")
        a(f"""s_lshl_b32 s26, s56, 2
        v_cmp_eq_u32 vcc, 0, v0
        s_and_saveexec_b64 s[54:55], vcc
        s_cbranch_execz L1_exit
        s_waitcnt lgkmcnt(0)
        buffer_store_dword v30, v62, s[48:51], s26 offen sc1
        s_branch L1_exit""")
    if OPT.get("gfirst", 1):
        gemm_role(); part_role()
    else:
        part_role(); a("L1_gemm:"); gemm_role()
    a(f"""L1_w2:
    v_lshlrev_b32 v2, 4, v1
    s_lshl_b32 s29, s3, 13
    s_mov_b32 m0, s29
    v_mov_b32 v20, 0
    v_mov_b32 v21, 65536
    ds_write_b32 v21, v20
    v_and_b32 v11, 1, v1
    v_lshlrev_b32 v11, 5, v11
    v_bfe_u32 v12, v1, 1, 4
    v_add_u32 v11, v11, v12
    v_lshlrev_b32 v11, 1, v11
    v_lshrrev_b32 v12, 5, v1
    v_lshl_add_u32 v11, v12, 10, v11
    s_lshr_b32 s40, s3, 1
    s_lshl_b32 s40, s40, 7
    s_and_b32 s41, s3, 1
    s_lshl_b32 s41, s41, 5
    s_add_u32 s40, s40, s41
    s_add_u32 s40, s40, {256*512}
    s_waitcnt lgkmcnt(0)""")
    srd(a, 32, W2, None, 65536); srd(a, 36, W1, None, 260*512)
    srd(a, 60, B1, None, 512)
    a("""v_and_b32 v17, 31, v1
    v_lshlrev_b32 v17, 1, v17
    s_lshl_b32 s41, s3, 7
    buffer_load_ushort v18, v17, s[60:63], s41 offen
    buffer_load_ushort v19, v17, s[60:63], s41 offen offset:64
    buffer_load_ushort v8, v11, s[36:39], s40 offen
    buffer_load_ushort v9, v11, s[36:39], s40 offen offset:512""")
    for ii in range(8):
        a("buffer_load_dwordx4 v2, s[32:35], s29 offen lds")
        if ii < 7: a("s_add_u32 m0, m0, 1024\ns_add_u32 s29, s29, 1024")
    a(f"""s_and_b32 s40, s3, 3
    s_lshr_b32 s41, s3, 2
    v_bfe_u32 v5, v1, 2, 1
    v_lshlrev_b32 v5, 5, v5
    v_bfe_u32 v6, v1, 3, 1
    v_add_u32 v5, v5, v6
    v_lshrrev_b32 v6, 5, v1
    v_lshl_add_u32 v5, v6, 2, v5
    v_lshlrev_b32 v5, 8, v5
    v_bfe_u32 v6, v1, 4, 1
    v_lshl_add_u32 v5, v6, 5, v5
    v_and_b32 v6, 3, v1
    v_lshl_add_u32 v5, v6, 3, v5
    s_lshl_b32 s42, s40, 6
    s_lshl_b32 s43, s41, 15
    s_add_u32 s42, s42, s43
    v_add_u32 v5, s42, v5
    s_lshl_b32 s43, s40, 14
    s_lshl_b32 s42, s41, 13
    s_add_u32 s43, s43, s42
    s_mov_b32 s52, {NLOG2E}
    s_lshl_b32 s42, s3, 9
    v_lshlrev_b32 v3, 3, v1""")
    srd(a, 44, WS, W2OP, 65536); srd(a, 48, WS, STAT, 4096); srd(a, 56, WS, MAXW_G, 4)
    a("""s_waitcnt vmcnt(8)
    v_lshlrev_b32 v8, 16, v8
    v_lshlrev_b32 v9, 16, v9
    v_mul_f32 v8, s52, v8
    v_mul_f32 v9, s52, v9
    v_cvt_pk_bf16_f32 v15, v8, v9
    v_mul_f32 v16, v8, v8
    v_fmac_f32 v16, v9, v9
    v_lshlrev_b32 v12, 16, v15
    v_and_b32 v13, 0xffff0000, v15
    v_sub_f32 v8, v8, v12
    v_sub_f32 v9, v9, v13
    v_cvt_pk_bf16_f32 v14, v8, v9
    buffer_store_dwordx2 v[14:15], v3, s[48:51], s42 offen sc1
    v_lshlrev_b32 v18, 16, v18
    v_lshlrev_b32 v19, 16, v19
    v_mul_f32 v18, s52, v18
    v_mul_f32 v19, s52, v19
    v_lshlrev_b32 v17, 2, v17
    s_lshl_b32 s41, s3, 8""")
    srd(a, 60, WS, BIAS, 1024); srd(a, 64, WS, N*512, 1024)
    a("""buffer_store_dwordx2 v[18:19], v17, s[60:63], s41 offen sc1
    v_mov_b32 v22, 0x41c041c0
    v_mov_b32 v23, 0x7f7f7f7f
    v_cmp_gt_u32 vcc, 128, v0
    v_lshlrev_b32 v24, 2, v0
    v_cndmask_b32 v22, v23, v22, vcc
    buffer_store_dword v22, v24, s[64:67], 0 offen sc1""")
    a("v_mov_b32 v12, v16\nv_permlane32_swap_b32 v12, v16\nv_add_f32 v16, v12, v16")
    dpp_red(a, "v_max_u32", 16)
    a("""    s_waitcnt vmcnt(0)
    s_barrier""")
    lane63(a); a("ds_max_u32 v21, v16"); full(a)
    for s in range(8):
        for hf in range(2):
            row = 64*(s//4) + 16*((s//2) % 2) + 8*(s % 2) + 2*hf
            a(f"ds_read_b64_tr_b16 {vr(WOP+4*s+2*hf,2)}, v5 offset:{256*row}")
    a("s_waitcnt lgkmcnt(0)\ns_barrier\nds_read_b32 v16, v21")
    for s in range(8):
        a(f"buffer_store_dwordx4 {vr(WOP+4*s,4)}, v2, s[44:47], s43 offen sc1\ns_add_u32 s43, s43, 1024")
    srd(a, 48, WS, MAXE + CH*4, 16)
    a("""v_lshlrev_b32 v17, 2, v1
    buffer_store_dword v20, v17, s[48:51], 0 offen sc1
    s_waitcnt lgkmcnt(0)
    buffer_store_dword v16, v3, s[56:59], 0 offen sc1
    L1_exit:""")
    stamp_dump(a, ST, 127, 0)
    a("L1_exit2:\ns_endpgm")


CAPT = 60
L_IDX, L_QA, L_TBL, L_CNT, L_MISC, L_DEG, L_EA, L_P = 256, 8448, 10496, 12544, 14592, 14656, 15104, 30464
L_BT = L_P + 31*1024
L_STG = 91136
BTS = 576
L_NULL = L_BT + NPB*BTS
K2_LDS = L_STG + 65536
assert L_BT + 50*BTS <= L_STG and L_BT % 256 == 0
D0, D1, EE, TT, HQ0, HQ1, S0, S1 = 0, 16, 32, 48, 56, 60, 64, 80
ALO, AHI, ID0, ID1, A2, B2R, PP, IP = 96, (104, 112), 120, 124, (128, 132), (136, 140), 144, 148
QV, QST, RA, IB, EB, QB, PB = (156, 157), 158, 159, 163, 164, 165, 166
LANE, ESIG, QOFF, L16, SWA = 125, 126, 127, 161, 162
RECR, OFR, VONE, MXC = 0, 116, 62, 115
MASK = 56
S_BASE, S_LIM, S_IMASK, S_SLOW, S_N, S_T0, S_FIRST, S_BK, S_MAXC, S_SAFE, S_CUT, S_STG, S_BETA, S_NEG = range(80, 94)
S_CG, S_GRP, S_R2, S_N0, S_NO = 26, 27, 1, 0, 87


def valu_half(D, hq, mode, fill):
    L = [f"v_exp_f32 v{EE+j}, v{D+j}" for j in range(16)]
    p2 = lambda x: vr(x, 2)
    if mode == "o":
        L.insert(15, None)
        L[15] = f"v_pk_add_f32 {p2(TT)}, {p2(EE)}, 1.0 op_sel_hi:[1,0]"
        L[15], L[16] = L[16], L[15]
        for s in range(1, 8):
            n = D if s == 1 else TT+2
            L.append(f"v_pk_fma_f32 {p2(TT+2)}, {p2(n)}, {p2(EE+2*s)}, {p2(n)}")
            L.append(f"v_pk_fma_f32 {p2(TT+2)}, {p2(D+2*s)}, {p2(TT)}, {p2(TT+2)}")
            L.append(f"v_pk_fma_f32 {p2(TT)}, {p2(TT)}, {p2(EE+2*s)}, {p2(TT)}")
        u, nn, dd = L[-3:]
        L[-3:] = [f"v_pk_fma_f32 {p2(TT+4)}, {p2(TT)}, {p2(EE+14)}, {p2(TT)}", f"v_rcp_f32 v{TT+4}, v{TT+4}", f"v_rcp_f32 v{TT+5}, v{TT+5}", u, nn]
        if OPT.get("mix"):
            k = OPT["mix"]
            ex, pk = L[16-k:16], L[16:]
            out = []
            per = 3
            while ex or pk:
                out += pk[:per]; pk = pk[per:]
                if ex: out.append(ex.pop(0))
            L = L[:16-k] + out
        L.append(f"v_pk_mul_f32 {p2(TT+2)}, {p2(TT+2)}, {p2(TT+4)}")
        L.append(f"v_cvt_pk_bf16_f32 v{hq}, v{TT+2}, v{TT+3}")
        return L + fill
    if mode == "q":
        for q in range(2): L.append(f"v_pk_add_f32 {p2(TT+4*q)}, {p2(EE+8*q)}, 1.0 op_sel_hi:[1,0]")
        for s in range(1, 4):
            for q in range(2):
                n = D+8*q if s == 1 else TT+4*q+2
                L.append(f"v_pk_fma_f32 {p2(TT+4*q+2)}, {p2(n)}, {p2(EE+8*q+2*s)}, {p2(n)}")
            for q in range(2):
                L.append(f"v_pk_fma_f32 {p2(TT+4*q+2)}, {p2(D+8*q+2*s)}, {p2(TT+4*q)}, {p2(TT+4*q+2)}")
            for q in range(2):
                L.append(f"v_pk_fma_f32 {p2(TT+4*q)}, {p2(TT+4*q)}, {p2(EE+8*q+2*s)}, {p2(TT+4*q)}")
        for q in range(2):
            for p in range(2): L.append(f"v_rcp_f32 v{TT+4*q+p}, v{TT+4*q+p}")
        for q in range(2): L.append(f"v_pk_mul_f32 {p2(TT+4*q+2)}, {p2(TT+4*q+2)}, {p2(TT+4*q)}")
    else:
        for j in range(0, 16, 2): L.append(f"v_pk_add_f32 {p2(EE+j)}, {p2(EE+j)}, 1.0 op_sel_hi:[1,0]")
        for j in range(16): L.append(f"v_rcp_f32 v{EE+j}, v{EE+j}")
        for q in range(2): L.append(f"v_pk_mul_f32 {p2(TT+4*q+2)}, {p2(D+8*q)}, {p2(EE+8*q)}")
        for s in range(1, 4):
            for q in range(2):
                L.append(f"v_pk_fma_f32 {p2(TT+4*q+2)}, {p2(D+8*q+2*s)}, {p2(EE+8*q+2*s)}, {p2(TT+4*q+2)}")
    for q in range(2): L.append(f"v_cvt_pk_bf16_f32 v{hq+q}, v{TT+4*q+2}, v{TT+4*q+3}")
    return L + fill


def weave(V, M, pos):
    out = []
    for i, x in enumerate(V):
        out += [m for m, p in zip(M, pos) if p == i]
        out.append(x)
    return out


def incs(k): return [f"v_add_u32 v{IB}, {128*k}, v{IB}", f"v_add_u32 v{EB}, {256*k}, v{EB}", f"v_add_u32 v{QB}, {32*k}, v{QB}"]


def block(a, t, mode):
    par = t & 1
    last = 3 if mode == "o" else 1
    M1 = tmf(D1, AHI[par], A2[par], B2R[1])
    if t == 0: M1.append(mfma(S1, HQ1, PP, S1))
    M2 = tmf(D0, ALO, A2[par ^ 1], B2R[0])
    if t == last: M2.append(mfma(S0, HQ0, PP, S0))
    pos = [1, 4, 7, 10] if not OPT.get("mix") else [0, 3, 6]
    extra = (["s_waitcnt lgkmcnt(0)"] if OPT.get('gw', 1) else []) + [f"v_add_u32 v{QV[par]}, v{QV[par]}, v{QST}"]
    if t == 0: extra.append(f"v_add_u32 v{PB}, 1024, v{PB}")
    if mode == "o" and t == 2: extra += incs(4)
    if mode != "o" and t == 0: extra += incs(2)
    k = t if mode == "o" else 2*t
    L = weave(valu_half(D0, HQ0+k, mode, extra), M1, pos) + weave(valu_half(D1, HQ1+k, mode, []), M2, pos)
    if OPT["prio"]:
        L.insert(OPT["prio_at"], "s_setprio 1"); L.append("s_setprio 0")
    a("\n".join(L))


def dma(a, par):
    a(f"s_add_u32 m0, s{S_STG}, {4096*par}")
    for u in range(4):
        a(f"buffer_load_dwordx4 {vr(IP+2*u,2)}, s[36:39], 0 idxen offen lds")
        if u < 3: a("s_add_u32 m0, m0, 1024")


def rd_idx(a, t):
    for u in range(4): a(f"ds_read_b32 v{IP+2*u}, v{IB} offset:{128*t+32*u}")


def rd_rows(a, par):
    if OPT["smf"]:
        for c in range(2):
            for gi in range(4):
                a(f"ds_read_b64_tr_b16 {vr((ALO, AHI[par])[c]+2*gi,2)}, v{RA+c} offset:{4096*par+512*gi}")
        return
    for s in range(4):
        d = ALO+4*s if s < 2 else AHI[par]+4*(s-2)
        a(f"ds_read_b128 {vr(d,4)}, v{RA+s} offset:{4096*par}")


def group(a, par, sh=0, rdp=False, tail=True):
    a("s_waitcnt vmcnt(4)")
    rd_rows(a, par)
    a(f"ds_read_b64_tr_b16 {vr(B2R[1],2)}, v{QV[par^1]} offset:64")
    a(f"ds_read_b64_tr_b16 {vr(B2R[0],2)}, v{QV[par]}")
    a(f"ds_read2st64_b32 {vr(A2[par]+2,2)}, v{EB} offset0:{2+par+sh} offset1:{2+par+sh}")
    if rdp: a(f"ds_read_b128 {vr(PP,4)}, v{PB}")
    a(f"s_cmp_gt_u32 s{S_N}, 3\ns_cselect_b32 s38, {0 if OPT.get('nodma') else AROWS}, 0")
    a(f"s_waitcnt lgkmcnt({4 if rdp else 3})")
    dma(a, par)
    rd_idx(a, 5+par+sh)
    a(f"ds_read_b32 v{QV[par^1]}, v{QB} offset:{32*(3+par+sh)}")
    a(f"s_waitcnt lgkmcnt({5 if OPT.get('gw', 1) else 0})")
group.n = 0


def dec(a, tgt): a(f"s_sub_u32 s{S_N}, s{S_N}, 1\ns_cmp_eq_u32 s{S_N}, 0\ns_cbranch_scc1 {tgt}")


def main_loops(a):
    a("L2_loopO:")
    block(a, 0, "o"); a(f"s_sub_u32 s{S_N}, s{S_N}, 1"); group(a, 0, 2, True)
    block(a, 1, "o"); dec(a, "L2_end_odd"); group(a, 1, 2)
    a(f"s_cmp_eq_u32 s{S_NO}, 2\ns_cbranch_scc1 L2_half")
    block(a, 2, "o"); a(f"s_sub_u32 s{S_N}, s{S_N}, 1"); group(a, 0)
    block(a, 3, "o"); dec(a, "L2_end_even"); group(a, 1)
    a(f"s_sub_u32 s{S_NO}, s{S_NO}, 4\ns_cmp_lg_u32 s{S_NO}, 0\ns_cbranch_scc1 L2_loopO\ns_branch L2_loopF\nL2_half:")
    a(mfma(S0, HQ0, PP, S0)); a("\n".join(incs(2)))
    for tag, mode in (("F", "q"), ("S", "s")):
        if tag == "S": keep = a.L; a.L = []
        a(f"L2_loop{tag}:")
        block(a, 0, mode); dec(a, "L2_end_odd"); group(a, 0, 0, True)
        block(a, 1, mode); dec(a, "L2_end_even"); group(a, 1)
        a(f"s_branch L2_loop{tag}")
    a.cold += a.L; a.L = keep


def cold(a, name, fn):
    keep = a.L; a.L = []
    a(f"{name}:"); fn(); a(f"s_branch {name}_r")
    a.cold += a.L; a.L = keep
    a(f"{name}_r:")


def k2(a):
    a.cold = []
    ST = 167
    L = LANE
    NZ = (L_BT - L_CNT)//16
    a("k2_kernel:")
    a(f"s_cmp_ge_u32 s2, {NB}\ns_cbranch_scc1 L2_exit2")
    if OPT.get("stamp"): a(f"v_mov_b32 v{ST}, 0")
    stamp(a, 0, ST)
    ldargs(a)
    a(f"""v_and_b32 v{L}, 63, v0
    v_lshrrev_b32 v2, 6, v0
    s_and_b32 s{S_BK}, s2, 7
    v_readfirstlane_b32 s3, v2
    s_lshl_b32 s{S_BK}, s{S_BK}, 5
    s_lshr_b32 s28, s2, 3
    s_add_u32 s{S_BK}, s{S_BK}, s28
    s_mul_i32 s{S_NEG}, s{S_BK}, {NPB}
    s_mov_b32 s{S_BASE}, 0
    s_mov_b32 s{S_LIM}, {3*LPS}
    s_mov_b32 s{S_IMASK}, 15
    s_mov_b32 s{S_SLOW}, 0
    s_mov_b32 s{S_FIRST}, 1
    s_mov_b32 s{S_BETA}, 0
    s_and_b32 s{S_CG}, s3, 3
    s_lshr_b32 s{S_GRP}, s3, 2
    v_lshlrev_b32 v{L16}, 4, v{L}
    s_cmp_eq_u32 s{S_GRP}, 2
    s_cbranch_scc1 L2_H
    s_lshr_b32 s96, s{S_BK}, 2
    s_mul_i32 s96, s96, {CH*16}
    s_and_b32 s97, s{S_BK}, 3
    s_lshl_b32 s97, s97, 2
    s_add_u32 s96, s96, {OFF}
    s_lshl_b32 s{S_STG}, s3, 13
    s_add_u32 s{S_STG}, s{S_STG}, {L_STG}""")
    for j in range(8): a(f"v_mov_b32 v{IP+j}, {-1 if j % 2 == 0 else 0}")
    a(f"""s_lshl_b32 s98, s3, {6-LSH+4}
    s_add_u32 s98, s98, s97
    s_waitcnt lgkmcnt(0)
    s_mov_b32 s6, s98""")
    stamp(a, 11, ST)
    srd(a, 8, WS, "s96", CH*16)
    a(f"""L2_batch:
    v_lshrrev_b32 v113, {LSH}, v{L}
    v_lshl_add_u32 v9, v113, 4, s6""")
    for i in range(4): a(f"buffer_load_dword v{OFR+i}, v9, s[8:11], 0 offen offset:{(8192 >> LSH)*i}")
    srd(a, 32, WS, REC, CH*CE*12); srd(a, 36, WS, None, AROWS, stride=512)
    a(f"""s_and_b32 s96, s{S_FIRST}, s{S_GRP}
    s_cbranch_scc1 L2_stat
    L2_ld:
    v_and_b32 v112, {LPS-1}, v{L}
    v_add_u32 v112, s{S_BASE}, v112
    s_lshl_b32 s96, s3, {6-LSH}
    v_add_u32 v113, s96, v113
    s_add_u32 s96, s{S_BASE}, s{S_LIM}
    v_mul_u32_u24 v113, {CE*12}, v113
    s_waitcnt vmcnt(0)""")
    stamp(a, 1, ST)
    for i in range(4):
        a(f"""v_lshrrev_b32 v{104+i}, 16, v{OFR+i}
        s_bitcmp1_b32 s{S_IMASK}, {i}
        s_cselect_b32 s98, s96, 0
        v_min_u32 v{104+i}, s98, v{104+i}
        v_and_b32 v114, 0xffff, v{OFR+i}
        v_add_u32 v114, v114, v112
        v_mad_u32_u24 v{108+i}, v114, 12, v113""")
        if i < 3: a(f"v_add_u32 v113, {(512 >> LSH)*CE*12}, v113")
    def rec_loads(rnd):
        for i in range(4):
            k = 4*rnd + i
            a(f"s_mov_b64 exec, {sr(MASK+2*k,2)}\ns_cbranch_execz L2_r{k}")
            a(f"""buffer_load_dwordx3 {vr(RECR+4*k,3)}, v{108+i}, s[32:35], 0 offen offset:{12*LPS*rnd}
            L2_r{k}:""")
        full(a)
    for rnd in range(3):
        if rnd: a(f"v_add_u32 v112, {LPS}, v112")
        for i in range(4): a(f"v_cmp_lt_u32 {sr(MASK+2*(4*rnd+i),2)}, v112, v{104+i}")
        if rnd < 2: rec_loads(rnd)
    a(f"""s_or_b64 s[96:97], {sr(MASK+16,2)}, {sr(MASK+18,2)}
    s_or_b64 s[98:99], {sr(MASK+20,2)}, {sr(MASK+22,2)}
    s_or_b64 s[96:97], s[96:97], s[98:99]
    s_cselect_b32 s{S_R2}, 1, 0
    s_cbranch_scc1 L2_x0""")
    cold(a, "L2_x0", lambda: rec_loads(2))
    a(f"""s_cmp_eq_u32 s{S_FIRST}, 0
    s_cbranch_scc1 L2_rank0
    v_lshrrev_b32 v104, 16, v{OFR}
    v_lshrrev_b32 v105, 16, v{OFR+1}
    v_lshrrev_b32 v106, 16, v{OFR+2}
    v_lshrrev_b32 v107, 16, v{OFR+3}
    v_max3_u32 v104, v104, v105, v106
    v_max_u32 v{MXC}, v104, v107
    s_lshl_b32 s96, s{S_CG}, 10
    v_lshlrev_b32 v114, 3, v{L}""")
    srd(a, 44, WS, STAT, 4096)
    a(f"""buffer_load_dwordx2 {vr(B2R[0]+2,2)}, v114, s[44:47], s96 offen
    buffer_load_dwordx2 {vr(B2R[1]+2,2)}, v114, s[44:47], s96 offen offset:512
    s_cmp_lg_u32 s{S_GRP}, 0
    s_cbranch_scc1 L2_wrec
    L2_stat:""")
    n_, h_, one, t0, t1, t2, t3, t4, t5 = 96, 97, 98, 99, 100, 101, 102, 103, 104
    for j in range(32): a(f"v_mov_b32 v{S0+j}, 0")
    a(f"""v_and_b32 v{n_}, 31, v{L}
    v_lshrrev_b32 v{h_}, 5, v{L}
    v_bfe_u32 v{t1}, v{n_}, 1, 3
    v_lshlrev_b32 v{t1}, 4, v{t1}
    v_lshl_add_u32 v{t1}, v{n_}, 7, v{t1}
    v_lshl_add_u32 v{t1}, v{h_}, 3, v{t1}
    v_add_u32 v{SWA}, s{S_STG}, v{t1}""")
    a(f"""v_bfe_u32 v{t1}, v{n_}, 2, 1
    v_lshrrev_b32 v{t2}, 4, v{n_}
    v_and_b32 v{t3}, 1, v{n_}
    v_xor_b32 v{t4}, v{t1}, v{h_}
    v_lshl_or_b32 v{t4}, v{t4}, 1, v{t3}
    v_cmp_eq_u32 s[94:95], 0, v{t4}
    v_cmp_eq_u32 s[96:97], 1, v{t4}
    v_lshlrev_b32 v{t4}, 4, v{t2}
    v_mov_b32 v{one}, 0x3f80
    v_lshlrev_b32 v{one}, v{t4}, v{one}
    v_cndmask_b32 v{A2[0]}, 0, v{one}, s[94:95]
    v_cndmask_b32 v{A2[0]+1}, 0, v{one}, s[96:97]
    v_cndmask_b32 v{A2[1]}, 0, v{one}, s[94:95]
    v_cndmask_b32 v{A2[1]+1}, 0, v{one}, s[96:97]
    v_lshlrev_b32 v{t1}, 4, v{t1}
    v_lshl_or_b32 v{t1}, v{t3}, 3, v{t1}
    v_lshl_or_b32 v{t1}, v{t2}, 2, v{t1}
    v_bfe_u32 v{t4}, v{n_}, 3, 1
    v_lshl_or_b32 v{t1}, v{t4}, 1, v{t1}
    v_bfe_u32 v{t5}, v{n_}, 1, 1
    v_or_b32 v{t1}, v{t1}, v{t5}
    v_lshlrev_b32 v{ESIG}, 3, v{t1}
    v_lshl_add_u32 v{ESIG}, v{h_}, 2, v{ESIG}""")
    if OPT["smf"]:
        a(f"""v_lshrrev_b32 v{t2}, 4, v{t1}
        v_bfe_u32 v{t3}, v{t1}, 2, 1
        v_lshl_or_b32 v{t2}, v{t2}, 1, v{t3}
        v_and_b32 v{t3}, 3, v{t1}
        v_lshlrev_b32 v{t4}, 2, v{t2}
        v_lshlrev_b32 v{ID1}, v{t4}, v{t3}
        v_bfe_u32 v{t3}, v{t1}, 3, 1
        v_xor_b32 v{t3}, v{t3}, v{h_}
        v_lshl_or_b32 v{t2}, v{t3}, 2, v{t2}
        v_mov_b32 v{one}, 0x3f80""")
        for q in range(4): a(f"v_cmp_eq_u32 {sr(56+0,2) if False else sr(94+2*(q%3),2)}, {q}, v{t2}" + (f"\nv_cndmask_b32 v{ID0+q-1}, 0, v{one}, {sr(94+2*((q-1)%3),2)}" if q else "\ns_nop 0"))
        a(f"""v_bfe_u32 v{t1}, v{L}, 2, 2
        v_cndmask_b32 v{ID0+3}, 0, v{one}, {sr(94,2)}
        v_lshl_add_u32 v{t2}, v{h_}, 4, v{t1}
        v_lshlrev_b32 v{t2}, 7, v{t2}
        v_lshrrev_b32 v{t1}, 1, v{t1}
        v_lshl_add_u32 v{t2}, v{t1}, 6, v{t2}
        v_bfe_u32 v{t1}, v{L}, 4, 1
        v_lshl_add_u32 v{t2}, v{t1}, 5, v{t2}
        v_and_b32 v{t3}, 3, v{L}
        v_lshl_add_u32 v{t2}, v{t3}, 3, v{t2}
        v_add_u32 v{RA}, s{S_STG}, v{t2}
        v_xor_b32 v{RA+1}, 64, v{RA}
        v_lshlrev_b32 v{t2}, 2, v{t1}""")
    else:
        a(f"""v_bfe_u32 v{t3}, v{t1}, 1, 3
        v_xor_b32 v{t3}, v{t3}, v{h_}
        v_lshlrev_b32 v{t3}, 4, v{t3}
        v_lshl_add_u32 v{t3}, v{t1}, 7, v{t3}
        v_add_u32 v{RA}, s{S_STG}, v{t3}""")
        for s in range(1, 4): a(f"v_xor_b32 v{RA+s}, {32*s}, v{RA}")
        a(f"v_lshrrev_b32 v{t2}, 4, v{L}")
    a(f"""v_and_b32 v{t3}, 7, v{L}
    v_xor_b32 v{t2}, v{t2}, v{t3}
    s_lshl_b32 s96, s{S_CG}, 7
    v_lshl_add_u32 v{IP+1}, v{t2}, 4, s96
    v_xor_b32 v{IP+3}, {0 if OPT['smf'] else 64}, v{IP+1}
    v_mov_b32 v{IP+5}, v{IP+1}
    v_mov_b32 v{IP+7}, v{IP+3}
    v_bfe_u32 v{t1}, v{L}, 4, 1
    v_lshlrev_b32 v{t1}, 5, v{t1}
    v_and_b32 v{t3}, 3, v{L}
    v_lshl_add_u32 v{t1}, v{t3}, 3, v{t1}
    v_add_u32 v{QST}, s96, v{t1}
    v_bfe_u32 v{t1}, v{L}, 2, 2
    v_lshl_add_u32 v{QOFF}, v{h_}, 2, v{t1}
    v_lshlrev_b32 v{QOFF}, 2, v{QOFF}
    s_cmp_lg_u32 s{S_GRP}, 0
    s_cbranch_scc1 L2_ld
    L2_wrec:""")
    dpp_red(a, "v_max_u32", MXC)
    stamp(a, 3, ST)
    a(f"""s_waitcnt vmcnt(2)
    s_branch L2_rank2
    L2_rank0:
    s_waitcnt vmcnt(0)
    L2_rank2:
    v_mov_b32 v{VONE}, 1
    v_mov_b32 v63, 0
    s_barrier""")
    stamp(a, 5, ST)
    RK = 96
    def rank(ks):
        for k in ks:
            a(f"""s_mov_b64 exec, {sr(MASK+2*k,2)}
            v_lshrrev_b32 v{RK+k}, 14, v{RECR+4*k+2}
            ds_add_rtn_u32 v{RECR+4*k+3}, v{RK+k}, v{VONE} offset:{L_CNT}""")
    rank(range(8))
    a(f"s_cmp_lg_u32 s{S_R2}, 0\ns_cbranch_scc1 L2_x2")
    cold(a, "L2_x2", lambda: rank(range(8, 12)))
    a(f"""s_mov_b64 exec, -1
    s_cmp_eq_u32 s{S_FIRST}, 0
    s_cbranch_scc1 L2_k13
    s_mov_b32 exec_lo, 0
    s_mov_b32 exec_hi, 0x80000000
    ds_max_u32 v63, v{MXC} offset:{L_MISC+4}
    s_mov_b64 exec, -1""")
    CL, CU, C_, PC, O1, O2, R3 = 48, 49, 50, 51, 52, 53, 54
    I1, I2, I3 = 56, 57, 58
    TL, TH = 108, 112
    HM = (0xffffffff << SPLIT) & 0xffffffff
    a(f"""L2_k13:
    s_waitcnt lgkmcnt(0)
    s_barrier
    ds_read_b32 v{CL}, v{L16} offset:{L_CNT}
    ds_read_b32 v{CU}, v{L16} offset:{L_CNT+1024}
    ds_read_b64 v[60:61], v63 offset:{L_MISC}
    s_waitcnt lgkmcnt(1)
    v_add_u32 v{C_}, v{CL}, v{CU}
    v_and_b32 v{O1}, -8, v{CL}
    v_add_u32 v{PC}, 3, v{C_}
    v_mov_b32 v{I1}, v{O1}
    v_and_b32 v{PC}, -4, v{PC}
    v_sub_u32 v{R3}, v{PC}, v{O1}
    v_and_b32 v{O2}, -8, v{R3}
    v_and_b32 v{R3}, 4, v{R3}
    v_mov_b32 v{I2}, v{O2}
    v_mov_b32 v{I3}, v{R3}""")
    dpp_red(a, "v_add_u32", [I1, I2, I3])
    a(f"""v_readlane_b32 s94, v{I1}, 63
    v_readlane_b32 s95, v{I2}, 63
    v_readlane_b32 s96, v{I3}, 63
    v_readlane_b32 s97, v{I1}, {SPLIT-1}
    v_readlane_b32 s98, v{I2}, {SPLIT-1}
    v_readlane_b32 s99, v{I3}, {SPLIT-1}
    v_readlane_b32 s28, v{I1}, 31
    v_sub_u32 v{I1}, v{I1}, v{O1}
    v_sub_u32 v{I2}, v{I2}, v{O2}
    v_sub_u32 v{I3}, v{I3}, v{R3}
    s_cmp_eq_u32 s{S_FIRST}, 0
    s_cbranch_scc1 L2_s1
    s_waitcnt lgkmcnt(0)
    v_readfirstlane_b32 s{S_MAXC}, v61
    v_readfirstlane_b32 s{S_SAFE}, v60
    s_mov_b32 s{S_FIRST}, 0""")
    a(f"""L2_s1:
    s_sub_u32 s94, s94, s97
    s_sub_u32 s95, s95, s98
    s_sub_u32 s96, s96, s99
    s_add_u32 s29, s97, s98
    s_add_u32 s30, s29, s99
    s_add_u32 s30, s30, 7
    s_and_b32 s30, s30, -8
    s_sub_u32 s31, s30, s97
    s_add_u32 s28, s28, s31
    s_add_u32 s40, s30, s94
    s_add_u32 s41, s40, s95
    s_add_u32 s42, s41, s96
    s_add_u32 s{S_CUT}, s42, {OPT.get('cb', 63)}
    s_lshr_b32 s{S_CUT}, s{S_CUT}, 6
    s_add_u32 s43, s30, 31
    s_lshr_b32 s43, s43, 5
    s_max_u32 s{S_CUT}, s{S_CUT}, s43
    s_add_u32 s43, s28, 31
    s_lshr_b32 s43, s43, 5
    s_min_u32 s{S_CUT}, s{S_CUT}, s43
    s_lshl_b32 s43, s{S_CUT}, 5
    s_max_u32 s43, s43, s28
    s_sub_u32 s43, s43, s28
    s_add_u32 s40, s40, s43
    s_add_u32 s41, s41, s43
    s_add_u32 s42, s42, s43
    s_sub_u32 s40, s40, s98
    s_sub_u32 s52, s41, s99
    s_mov_b32 exec_lo, {HM ^ 0xffffffff}
    s_mov_b32 exec_hi, 0
    v_add_u32 v{I2}, s97, v{I2}
    v_add_u32 v{I3}, s29, v{I3}
    s_mov_b32 exec_lo, {HM}
    s_mov_b32 exec_hi, -1
    v_add_u32 v{I1}, s31, v{I1}
    v_add_u32 v{I2}, s40, v{I2}
    v_add_u32 v{I3}, s52, v{I3}
    s_mov_b32 exec_lo, 0
    v_add_u32 v{I1}, s43, v{I1}
    s_mov_b64 exec, -1
    v_add_u32 v{O2}, v{O1}, v{O2}
    v_sub_u32 v{I2}, v{I2}, v{O1}
    v_sub_u32 v{I3}, v{I3}, v{O2}
    v_lshl_or_b32 v{TL}, v{O2}, 16, v{O1}
    v_mov_b32 v{TL+1}, v{I1}
    v_mov_b32 v{TL+2}, v{I2}
    v_mov_b32 v{TL+3}, v{I3}
    v_max_u32 v55, v{O2}, v{CL}
    v_sub_u32 v55, v55, v{CL}
    v_lshlrev_b32 v{TH}, 16, v55
    v_add_u32 v{TH+2}, v{I2}, v{CL}
    v_add_u32 v{TH+3}, v{I3}, v{CL}
    ds_write_b128 v{L16}, {vr(TL,4)} offset:{L_TBL}
    ds_write_b128 v{L16}, {vr(TH,4)} offset:{L_TBL+1024}
    s_add_u32 s96, s42, 31
    s_lshr_b32 s96, s96, 5
    s_cmp_lg_u32 s{S_SLOW}, 0
    s_cbranch_scc1 L2_s2
    s_cmp_gt_u32 s96, {CAPT}
    s_cselect_b32 s97, 1, 0
    s_cmp_gt_u32 s{S_MAXC}, {3*LPS}
    s_cselect_b32 s97, 1, s97
    s_cmp_lg_u32 s97, 0
    s_cbranch_scc1 L2_ovf
    L2_s2:
    s_waitcnt lgkmcnt(0)""")
    stamp(a, 6, ST)
    TB = 104
    def tbrd(ks):
        for k in ks: a(f"s_mov_b64 exec, {sr(MASK+2*k,2)}\nds_read_b128 {vr(TB+4*(k%4),4)}, v{RK+k} offset:{L_TBL}")
        full(a)
    def scatter(ks):
        P = ((94, 96), (12, 14), (16, 18))
        def st1(k):
            r, tb = RECR+4*k+3, TB+4*(k % 4)
            a(f"""v_cmp_lt_u32_sdwa {sr(P[k%3][0],2)}, v{r}, v{tb} src0_sel:DWORD src1_sel:WORD_1
            v_cmp_lt_u32_sdwa {sr(P[k%3][1],2)}, v{r}, v{tb} src0_sel:DWORD src1_sel:WORD_0""")
        def st2(k):
            r, m, tb = RECR+4*k+3, RECR+4*k+2, TB+4*(k % 4)
            a(f"""v_cndmask_b32 v{tb+3}, v{tb+3}, v{tb+2}, {sr(P[k%3][0],2)}
            v_cndmask_b32 v{tb+3}, v{tb+3}, v{tb+1}, {sr(P[k%3][1],2)}
            v_and_b32 v{m}, {OPT.get('imask', 0x3fff)}, v{m}
            v_add_lshl_u32 v{tb+3}, v{tb+3}, v{r}, 2
            v_lshlrev_b32 v{tb}, 1, v{tb+3}""")
        st1(ks[0])
        for i, k in enumerate(ks):
            if i + 1 < len(ks): st1(ks[i+1])
            st2(k)
        for k in ks:
            tb = TB+4*(k % 4)
            a(f"""s_mov_b64 exec, {sr(MASK+2*k,2)}
            ds_write_b32 v{tb+3}, v{RECR+4*k+2} offset:{L_IDX}
            ds_write_b64 v{tb}, {vr(RECR+4*k,2)} offset:{L_EA}""")
    def sc2():
        for k2 in range(8, 12):
            a(f"""s_mov_b64 exec, {sr(MASK+2*k2,2)}
            v_lshrrev_b32 v{RK+k2-8}, 14, v{RECR+4*k2+2}
            ds_read_b128 {vr(TB+4*(k2-8),4)}, v{RK+k2-8} offset:{L_TBL}""")
        a("s_mov_b64 exec, -1\ns_waitcnt lgkmcnt(0)")
        scatter(list(range(8, 12)))
    tbrd(range(4))
    a(f"""s_lshr_b32 s29, s29, 6
    s_lshl_b32 s29, s29, 1
    s_lshr_b32 s41, s41, 5
    s_max_u32 s41, s41, s{S_CUT}
    s_sub_u32 s41, s41, s{S_CUT}
    s_and_b32 s41, s41, -2
    s_cmp_eq_u32 s{S_SAFE}, 0
    s_cselect_b32 s29, s29, 0
    s_cselect_b32 s41, s41, 0
    s_add_u32 s30, s29, 3
    s_lshr_b32 s30, s30, 2
    s_sub_u32 s31, s{S_CUT}, s29
    s_add_u32 s31, s31, 1
    s_lshr_b32 s31, s31, 1
    s_add_u32 s31, s31, s30
    s_add_u32 s40, s41, 3
    s_lshr_b32 s40, s40, 2
    s_add_u32 s40, s40, s31
    s_min_u32 s98, s{S_CUT}, s96
    s_sub_u32 s99, s96, s98
    s_cmp_eq_u32 s{S_GRP}, 0
    s_cselect_b32 s{S_N}, s98, s99
    s_cselect_b32 s{S_T0}, 0, s{S_CUT}
    s_cselect_b32 s{S_NO}, s29, s41
    s_cselect_b32 s53, 0, s31
    s_add_u32 s41, s41, s{S_CUT}
    s_lshl_b32 s30, s30, 1
    s_sub_u32 s30, s30, s29
    s_lshl_b32 s31, s31, 2
    s_sub_u32 s31, s31, s{S_CUT}
    s_lshl_b32 s40, s40, 1
    s_sub_u32 s40, s40, s41
    s_waitcnt lgkmcnt(0)""")
    scatter(list(range(4)))
    tbrd(range(4, 8))
    a(f"""v_cmp_eq_u32 vcc, 0, v{R3}
    s_cmp_ge_u32 s3, 3
    s_cbranch_scc1 L2_pad
    v_add_u32 v55, s3, v{C_}
    v_cndmask_b32 v59, v{I3}, v{I2}, vcc
    v_cmp_lt_u32 vcc, v55, v{PC}
    s_lshr_b32 s96, s{S_SAFE}, 1
    s_add_u32 s96, s96, {N}
    s_and_b64 exec, exec, vcc
    v_mov_b32 v60, s96
    v_add_lshl_u32 v55, v55, v59, 2
    ds_write_b32 v55, v60 offset:{L_IDX}
    s_mov_b64 exec, -1
    L2_pad:""")
    for r in (PC, O1, O2, I1, I2, I3): a(f"v_lshrrev_b32 v{r}, 2, v{r}")
    QA_, ONE, NC1, Q, T, U, V = 48, 49, 50, 54, 55, 59, 60
    a(f"""v_mul_u32_u24 v{QA_}, {BTS}, v{L}
    v_add_u32 v{QA_}, {L_BT}, v{QA_}
    v_mov_b32 v{ONE}, 0x3f80
    v_subrev_u32 v{NC1}, {17*16}, v{L16}
    v_mov_b32 v61, s30
    v_mov_b32 v62, s40
    s_mov_b32 s97, s3
    L2_q:
    v_cmp_lt_u32 s[94:95], s97, v{O2}
    v_cmp_lt_u32 s[98:99], s97, v{O1}
    v_cmp_lt_u32 vcc, s97, v{PC}
    v_cndmask_b32 v{Q}, v{I3}, v{I2}, s[94:95]
    s_and_b64 exec, exec, vcc
    s_cbranch_execz L2_qd
    v_cndmask_b32 v{Q}, v{Q}, v{I1}, s[98:99]
    v_add_u32 v{Q}, s97, v{Q}
    v_lshrrev_b32 v{T}, 3, v{Q}
    v_lshlrev_b32 v{U}, 2, v{Q}
    ds_write_b32 v{U}, v{QA_} offset:{L_QA}
    v_cmp_le_u32 vcc, s{S_CUT}, v{T}
    v_cmp_gt_u32 s[94:95], s29, v{T}
    v_cmp_gt_u32 s[98:99], s41, v{T}
    v_and_b32 v{V}, 4, v{Q}
    v_cndmask_b32 v{U}, v{L16}, v{NC1}, vcc
    v_lshl_add_u32 v{U}, v{V}, 7, v{U}
    v_and_b32 v{V}, 2, v{Q}
    v_add_u32 v{U}, v{U}, v{V}
    s_and_b64 s[98:99], s[98:99], vcc
    s_or_b64 s[94:95], s[94:95], s[98:99]
    v_cndmask_b32 v{V}, v61, v62, vcc
    v_add_u32 v{V}, v{V}, v{T}
    v_and_b32 v{Q}, 1, v{Q}
    v_lshl_or_b32 v{Q}, v{V}, 1, v{Q}
    v_mov_b32 v{V}, s31
    v_cndmask_b32 v{V}, 0, v{V}, vcc
    v_add_u32 v{V}, v{V}, v{T}
    v_cndmask_b32 v{Q}, v{Q}, v{V}, s[94:95]
    v_and_b32 v{V}, -4, v{Q}
    v_lshl_add_u32 v{U}, v{V}, 8, v{U}
    v_and_b32 v{V}, 3, v{Q}
    v_lshl_add_u32 v{U}, v{V}, 2, v{U}
    ds_write_b16 v{U}, v{ONE} offset:{L_P}
    s_add_u32 s97, s97, 8
    s_branch L2_q
    L2_qd:
    s_mov_b64 exec, -1
    s_waitcnt lgkmcnt(0)""")
    scatter(list(range(4, 8)))
    a(f"s_cmp_lg_u32 s{S_R2}, 0\ns_cbranch_scc1 L2_x4")
    cold(a, "L2_x4", sc2)
    a(f"""s_mov_b64 exec, -1
    s_lshl_b32 s96, s{S_T0}, 7
    s_add_u32 s96, s96, {L_IDX-256}
    v_lshrrev_b32 v54, 3, v{L}
    v_lshl_add_u32 v{IB}, v54, 2, s96
    s_lshl_b32 s96, s{S_T0}, 8
    s_add_u32 s96, s96, {L_EA-512}
    v_add_u32 v{EB}, s96, v{ESIG}
    s_lshl_b32 s96, s{S_T0}, 5
    s_add_u32 s96, s96, {L_QA-64}
    v_add_u32 v{QB}, s96, v{QOFF}
    s_lshl_b32 s96, s53, 10
    s_add_u32 s96, s96, {L_P-1024}
    v_add_u32 v{PB}, s96, v{L16}""")
    for j in range(8): a(f"v_mov_b32 v{HQ0+j}, 0")
    for j in range(4): a(f"v_mov_b32 v{PP+j}, 0\nv_mov_b32 v{EE+2*j+1}, v{IP+2*j+1}")
    a(f"""s_mov_b32 s38, {AROWS}
    L2_b2:
    v_mov_b32 v53, 0
    s_waitcnt vmcnt(0) lgkmcnt(0)
    s_barrier
    ds_read_b64 v[54:55], v53 offset:{L_MISC+8}""")
    stamp(a, 7, ST)
    def prime01():
        rd_idx(a, 2)
        for u in range(4): a(f"ds_read_b32 v{EE+2*u}, v{IB} offset:{128*3+32*u}")
        a("s_waitcnt lgkmcnt(4)"); dma(a, 0)
        rd_idx(a, 4)
        a(f"s_add_u32 m0, s{S_STG}, 4096\ns_waitcnt lgkmcnt(4)")
        for u in range(4):
            a(f"buffer_load_dwordx4 {vr(EE+2*u,2)}, s[36:39], 0 idxen offen lds")
            if u < 3: a("s_add_u32 m0, m0, 1024")
    prime01()
    a(f"""ds_read_b32 v{QV[0]}, v{QB} offset:64
    ds_read_b32 v{QV[1]}, v{QB} offset:96
    ds_read2st64_b32 {vr(A2[0]+2,2)}, v{EB} offset0:2 offset1:2
    v_readfirstlane_b32 s96, v54
    v_readfirstlane_b32 s97, v55
    s_cmp_eq_u32 s{S_SAFE}, 2
    s_cselect_b32 s96, 0, s96
    s_or_b32 s98, s96, s97
    s_cbranch_scc1 L2_again
    s_cmp_eq_u32 s{S_N}, 0
    s_cbranch_scc1 L2_done
    s_waitcnt lgkmcnt(0)
    v_add_u32 v{QV[0]}, v{QV[0]}, v{QST}
    v_add_u32 v{QV[1]}, v{QV[1]}, v{QST}
    s_waitcnt vmcnt(4)""")
    rd_rows(a, 0)
    a(f"ds_read_b64_tr_b16 {vr(B2R[0],2)}, v{QV[0]}\ns_waitcnt lgkmcnt(0)")
    for m in tmf(D0, ALO, A2[0], B2R[0]): a(m)
    dma(a, 0); rd_idx(a, 5)
    group(a, 1)
    stamp(a, 8, ST)
    if OPT.get("stamp"): a(f"v_writelane_b32 v{ST}, s{S_N}, 30")
    a(f"s_cmp_eq_u32 s{S_SAFE}, 2\ns_cbranch_scc1 L2_loopS\ns_cmp_eq_u32 s{S_NO}, 0\ns_cbranch_scc1 L2_loopF")
    main_loops(a)
    def again(tgt):
        a(f"""s_cmp_lg_u32 s96, 0
        s_cselect_b32 s{S_SAFE}, 2, s{S_SAFE}
        s_cmp_lg_u32 s97, 0
        s_cselect_b32 s{S_SLOW}, 1, s{S_SLOW}
        s_cselect_b32 s{S_LIM}, {LPS}, s{S_LIM}
        s_cselect_b32 s{S_IMASK}, 3, s{S_IMASK}
        s_waitcnt vmcnt(0) lgkmcnt(0)
        s_barrier
        s_branch {tgt}""")
    def more(tgt, done):
        a(f"""s_cmp_eq_u32 s{S_SLOW}, 0
        s_cbranch_scc1 {done}
        s_add_u32 s{S_BETA}, s{S_BETA}, 1
        s_lshr_b32 s{S_BASE}, s{S_BETA}, 1
        s_lshl_b32 s{S_BASE}, s{S_BASE}, {LSH}
        s_xor_b32 s{S_IMASK}, s{S_IMASK}, 15
        s_cmp_ge_u32 s{S_BASE}, s{S_MAXC}
        s_cbranch_scc1 {done}
        s_barrier
        s_branch {tgt}""")
    keep = a.L; a.L = []
    a(f"""L2_ovf:
    ds_write_b32 v63, v{VONE} offset:{L_MISC+12}
    v_mov_b32 v{IB}, 0
    v_mov_b32 v{EB}, 0
    v_mov_b32 v{QB}, 0
    s_mov_b32 s38, 0""")
    for j in range(4): a(f"v_mov_b32 v{EE+2*j+1}, 0")
    a("s_branch L2_b2\nL2_again:")
    again("L2_batch")
    a.cold += a.L; a.L = keep
    a(f"""L2_end_odd:
    ds_read_b128 {vr(PP,4)}, v{PB}
    s_waitcnt lgkmcnt(0)""")
    a(mfma(S0, HQ0, PP, S0))
    a("L2_end_even:")
    a(mfma(S1, HQ1, PP, S1))
    a("L2_done:\ns_waitcnt vmcnt(0)")
    more("L2_batch", "L2_epi")
    a("L2_epi:")
    stamp(a, 9, ST)
    for u in range(8):
        a(f"""v_xor_b32 v{32+u}, {16*u}, v{SWA}
        v_cvt_pk_bf16_f32 v{16+2*u}, v{S0+4*u}, v{S0+4*u+1}
        v_cvt_pk_bf16_f32 v{17+2*u}, v{S0+4*u+2}, v{S0+4*u+3}
        ds_write_b64 v{32+u}, {vr(16+2*u,2)}""")
    a("s_waitcnt lgkmcnt(0)\ns_barrier\ns_branch L2_fin")

    XR, WR, DX, DY = 0, 64, 128, 144
    HL, MB, DEG, BIA, T1, JK = 160, 162, 163, 164, 166, 167
    a(f"L2_H:\nv_mov_b32 v{HL}, v{LANE}")
    L = HL
    code_pf(a, "k2_kernel", "L2_last-k2_kernel", L, 10, JK, 40, 36, S_CG)
    a(f"""v_mov_b32 v{DEG}, 0
    v_lshrrev_b32 v3, 4, v{L}
    v_and_b32 v4, 15, v{L}
    v_xor_b32 v6, v3, v4
    v_lshlrev_b32 v6, 4, v6
    v_lshl_or_b32 v6, v3, 8, v6
    v_xor_b32 v7, 64, v6
    v_xor_b32 v8, 128, v6
    v_xor_b32 v9, 192, v6
    s_lshl_b32 s97, s{S_CG}, 12
    s_add_u32 m0, s97, {L_BT}
    s_lshl_b32 s96, s{S_NEG}, 8
    s_add_u32 s96, s96, s97
    v_and_b32 v12, 31, v{L}
    v_lshlrev_b32 v13, 3, v12
    v_mov_b32 v14, 0
    s_waitcnt lgkmcnt(0)""")
    srd(a, 40, X, None, N*256)
    for q in range(4):
        a(f"buffer_load_dwordx4 v{6+q}, s[40:43], s96 offen lds")
        if q < 3: a("s_add_u32 m0, m0, 1024\ns_add_u32 s96, s96, 1024")
    def wload(base, q0=0, q1=16):
        srd(a, 44, WS, base, 65536)
        a(f"s_lshl_b32 s96, s{S_CG}, 14\ns_add_u32 s96, s96, {4096*(q0//4)}")
        for q in range(q0, q1):
            if q % 4 == 0 and q > q0: a("s_add_u32 s96, s96, 4096")
            a(f"buffer_load_dwordx4 {vr(WR+4*q,4)}, v{L16}, s[44:47], s96 offen offset:{1024*(q%4)}")
            if base == W2OP and OPT.get("w2p", 1): a("s_waitcnt vmcnt(0)")
    W0 = OPT.get('w0', 0)
    srd(a, 44, WS, BIAS, 1024); srd(a, 28, WS, MAXA, 196*4); srd(a, 32, WS, MAXE, (CH*4+15)//16*16); srd(a, 36, WS, MAXW_G, 4)
    a(f"""s_lshl_b32 s96, s{S_CG}, 8
    buffer_load_dwordx2 {vr(BIA,2)}, v13, s[44:47], s96 offen
    buffer_load_dwordx4 v[128:131], v{L16}, s[28:31], 0 offen
    buffer_load_dwordx4 v[132:135], v{L16}, s[32:35], 0 offen
    buffer_load_dword v136, v14, s[36:39], 0 offen""")
    if W0: wload(W1BOP, 0, W0)
    a(f"""L2_hb:
    s_lshl_b32 s96, s{S_CG}, 10
    v_add_u32 v144, s96, v{L16}""")
    for j in range(4): a(f"v_mov_b32 v{148+j}, -1\nv_mov_b32 v{152+j}, 0")
    for i in range(NZ//256): a(f"ds_write_b128 v144, v[152:155] offset:{L_CNT + 4096*i}")
    for i in range(2): a(f"ds_write_b128 v144, v[148:151] offset:{L_IDX + 4096*i}")
    for j in range(4): a(f"v_mov_b32 v{156+j}, {L_NULL}")
    a(f"""v_cmp_gt_u32 vcc, {16*(NZ % 256)}, v144
    s_and_b64 exec, exec, vcc
    ds_write_b128 v144, v[152:155] offset:{L_CNT + 4096*(NZ//256)}
    s_mov_b64 exec, -1
    v_cmp_gt_u32 vcc, 2048, v144
    s_and_b64 exec, exec, vcc
    ds_write_b128 v144, v[156:159] offset:{L_QA}
    s_mov_b64 exec, -1
    s_cmp_eq_u32 s{S_FIRST}, 0
    s_cbranch_scc1 L2_hn""")
    WA = max(W0, OPT.get("wa", 0)); WB = OPT.get("wb", 8)
    a(f"s_setprio {OPT.get('hp', 3)}")
    if OPT.get("gfirst2", 1):
        a(f"s_waitcnt vmcnt({W0})")
        a("""v_mov_b32 v140, 1
        v_mov_b32 v141, 0
        v_max3_u32 v128, v128, v129, v130
        v_max3_u32 v132, v132, v133, v134
        v_max_u32 v128, v128, v131
        v_max_u32 v132, v132, v135""")
        dpp_red(a, "v_max_u32", [128, 132])
        a(f"""v_mul_f32 v136, v136, v132
        v_sqrt_f32 v136, v136
        v_mov_b32 v142, {f2u(28.0)}
        v_add_f32 v136, v128, v136
        v_mov_b32 v143, {f2u(8.0)}
        v_cmp_nlt_f32 vcc, v136, v142
        v_cmp_nlt_f32 s[94:95], v136, v143
        v_cndmask_b32 v142, 0, v140, vcc
        v_cndmask_b32 v143, 0, v140, s[94:95]
        v_cmp_gt_f32 vcc, {f2u(1/64)}, v136
        v_add_u32 v136, v142, v143
        v_cndmask_b32_e64 v136, v136, 2, vcc""")
    if WA > W0: wload(W1BOP, W0, WA)
    a(f"""v_and_b32 v137, 31, v{L}
    v_lshrrev_b32 v138, 5, v{L}
    v_and_b32 v139, 15, v{L}
    v_xor_b32 v139, v139, v138
    v_lshlrev_b32 v139, 4, v139
    v_lshl_add_u32 v139, v137, 8, v139
    v_add_u32 v139, {L_BT}, v139
    s_lshl_b32 s96, s{S_CG}, 7
    s_add_u32 s96, s96, {L_BT}
    v_lshl_add_u32 v{T1}, v137, 2, s96
    v_mul_u32_u24 v138, {4*BTS}, v138
    v_add_u32 v{T1}, v{T1}, v138
    s_waitcnt vmcnt({WA}) lgkmcnt(0)
    s_barrier""")
    for s in range(8):
        a(f"ds_read_b128 {vr(XR+4*s,4)}, v139\nds_read_b128 {vr(XR+32+4*s,4)}, v139 offset:8192")
        if s < 7: a(f"v_xor_b32 v139, {32*(s ^ (s+1))}, v139")
    if not OPT.get("gfirst2", 1):
        a("""v_mov_b32 v140, 1
        v_mov_b32 v141, 0
        v_max3_u32 v128, v128, v129, v130
        v_max3_u32 v132, v132, v133, v134
        v_max_u32 v128, v128, v131
        v_max_u32 v132, v132, v135""")
        dpp_red(a, "v_max_u32", [128, 132])
        a(f"""v_mul_f32 v136, v136, v132
        v_sqrt_f32 v136, v136
        v_mov_b32 v142, {f2u(28.0)}
        v_add_f32 v136, v128, v136
        v_mov_b32 v143, {f2u(8.0)}
        v_cmp_nlt_f32 vcc, v136, v142
        v_cmp_nlt_f32 s[94:95], v136, v143
        v_cndmask_b32 v142, 0, v140, vcc
        v_cndmask_b32 v143, 0, v140, s[94:95]
        v_cmp_gt_f32 vcc, {f2u(1/64)}, v136
        v_add_u32 v136, v142, v143
        v_cndmask_b32_e64 v136, v136, 2, vcc""")
    lane63(a); a(f"ds_write_b32 v141, v136 offset:{L_MISC}"); full(a)
    if WB > WA: wload(W1BOP, WA, WB)
    srd(a, 28, WS, None, N*512)
    PL = OPT["pfl"]
    a(f"""s_lshr_b32 s96, s2, 3
    s_lshl_b32 s96, s96, 2
    s_add_u32 s96, s96, s{S_CG}
    s_mul_i32 s96, s96, {256*PL}
    v_lshlrev_b32 v142, 7, v{L}
    s_waitcnt lgkmcnt(0)
    s_barrier
    ds_read_b64 v[128:129], v141 offset:{L_MISC}
    s_mov_b32 s97, s96""")
    WC = max(WA, WB)
    if WC < 16: wload(W1BOP, WC, 16)
    a(f"""s_mov_b32 s96, s97
    s_mov_b32 exec_hi, {(1 << (PL - 32)) - 1}
    buffer_load_dword v{JK}, v142, s[28:31], s96 offen
    s_add_u32 s96, s96, {128*PL}
    buffer_load_dword v{JK}, v142, s[28:31], s96 offen
    s_mov_b32 exec_hi, -1
    s_mov_b32 s94, {NLOG2E}
    s_mov_b32 s{S_FIRST}, 0
    v_mov_b32 v{MB}, 1.0
    s_waitcnt vmcnt({2 + 16 - max(WC, 8)}) lgkmcnt(0)
    v_readfirstlane_b32 s{S_SAFE}, v128
    v_readfirstlane_b32 s{S_MAXC}, v129""")
    def epi(d0, d1, mt, j):
        return [f"v_fma_f32 v{d0+j}, v{d0+j}, s94, v{BIA}", f"v_fma_f32 v{d1+j}, v{d1+j}, s94, v{BIA+1}",
                f"v_max3_f32 v{MB}, |v{d0+j}|, |v{d1+j}|, v{MB}", f"v_cvt_pk_bf16_f32 v{d0+j}, v{d0+j}, v{d1+j}",
                f"ds_write_b32 v{T1}, v{d0+j} offset:{(32*mt + 8*(j//4) + j % 4)*BTS}"]
    for s in range(8): a(mfma(DX, XR+4*s, WR+4*s, None if s == 0 else DX))
    a("s_waitcnt vmcnt(2)")
    for s in range(8): a(mfma(DY, XR+4*s, WR+32+4*s, None if s == 0 else DY))
    E0 = [x for j in range(16) for x in epi(DX, DY, 0, j)]
    for s in range(16):
        d = XR + 16*(s//8)
        a(mfma(d, XR+32+4*(s % 8), WR+32*(s//8)+4*(s % 8), None if s % 8 == 0 else d))
        if s >= 3: a("\n".join(E0[:7])); E0 = E0[7:]
    assert not E0
    for j in range(9):
        if j == 8: a("s_mov_b32 exec_hi, 0")
        a("\n".join(epi(XR, XR+16, 1, j)))
    a(f"""v_mov_b32 v40, 0
    ds_write_b32 v{T1}, v40 offset:{NPB*BTS}
    s_mov_b64 exec, -1
    v_mov_b32 v40, 0
    v_mov_b32 v41, 1
    v_cmp_neq_f32 vcc, 1.0, v{MB}
    s_cmp_eq_u64 vcc, 0
    s_cbranch_scc1 L2_hx
    ds_write_b32 v40, v41 offset:{L_MISC+8}
    L2_hx:""")
    a(f"""    s_branch L2_h2
    L2_hn:
    s_waitcnt lgkmcnt(0)
    s_barrier
    s_barrier
    L2_h2:
    v_mov_b32 v0, 0
    s_waitcnt lgkmcnt(0)
    s_barrier
    ds_read_b64 v[2:3], v0 offset:{L_MISC+8}
    ds_read_b32 v4, v{L16} offset:{L_CNT}
    ds_read_b32 v5, v{L16} offset:{L_CNT+1024}
    s_waitcnt lgkmcnt(0)
    v_readfirstlane_b32 s96, v2
    v_readfirstlane_b32 s97, v3
    s_cmp_eq_u32 s{S_SAFE}, 2
    s_cselect_b32 s96, 0, s96
    s_or_b32 s98, s96, s97
    s_cbranch_scc0 L2_h3""")
    again("L2_hb")
    a(f"L2_h3:\nv_add3_u32 v{DEG}, v{DEG}, v4, v5")
    more("L2_hb", "L2_h4")
    RX, RY, OA, SEL = BIA, BIA+1, T1, L16
    a("L2_h4:\ns_setprio 0")
    wload(W2OP)
    srd(a, 48, B2, None, 256)
    a(f"""v_and_b32 v2, 31, v{L}
    v_lshlrev_b32 v2, 1, v2
    s_lshl_b32 s96, s{S_CG}, 6
    buffer_load_ushort v{MB}, v2, s[48:51], s96 offen
    v_cvt_f32_u32 v8, v{DEG}
    v_lshlrev_b32 v9, 2, v{L}
    ds_write_b32 v9, v8 offset:{L_DEG}
    v_and_b32 v2, 31, v{L}
    v_lshrrev_b32 v3, 5, v{L}
    v_bfe_u32 v4, v2, 1, 3
    v_xor_b32 v4, v4, v3
    v_lshlrev_b32 v4, 4, v4
    v_lshl_add_u32 v4, v2, 7, v4
    v_add_u32 v{RX}, {L_STG}, v4
    v_add_u32 v5, 15, v2
    v_and_b32 v5, 31, v5
    v_bfe_u32 v4, v5, 1, 3
    v_xor_b32 v4, v4, v3
    v_lshlrev_b32 v4, 4, v4
    v_lshl_add_u32 v4, v5, 7, v4
    v_add_u32 v{RY}, {L_STG + 32768}, v4
    v_lshlrev_b32 v{DEG}, 4, v3
    v_lshlrev_b32 v{OA}, 10, v3
    v_and_b32 v4, 1, v2
    v_lshl_add_u32 v{OA}, v4, 8, v{OA}
    v_and_b32 v5, 30, v2
    v_lshl_add_u32 v{OA}, v5, 1, v{OA}
    s_lshl_b32 s96, s{S_CG}, 6
    v_add_u32 v{OA}, s96, v{OA}
    v_cmp_eq_u32 vcc, 0, v4
    v_mov_b32 v5, 0x07060302
    v_mov_b32 v6, 0x01000504
    v_cndmask_b32 v{SEL}, v5, v6, vcc
    s_sub_u32 s96, {N}, s{S_NEG}
    s_min_u32 s96, s96, {NPB}
    s_lshl_b32 s96, s96, 8
    s_lshl_b32 s97, s{S_NEG}, 8""")
    srd(a, 52, OUT, "s97", "s96")
    a(f"""s_mov_b32 s94, {NLN2}
    s_mov_b32 s95, 4096
    s_mov_b32 s96, 8192
    s_mov_b32 s97, 12288
    s_waitcnt vmcnt(0)
    v_lshlrev_b32 v{MB}, 16, v{MB}
    v_mul_f32 v{MB}, {NLOG2E}, v{MB}""")
    for k in range(7): a(f"ds_read_b128 {vr(DX+4*k,4)}, v{DEG} offset:{L_DEG + 32*k}")
    a("s_waitcnt lgkmcnt(0)")
    for j in range(25): a(f"v_mul_f32 v{DX+j}, v{DX+j}, v{MB}")
    a(f"s_mov_b32 exec_lo, 0\nv_mov_b32 v{DY+8}, 0\ns_mov_b64 exec, -1")
    for j in range(9, 16): a(f"v_mov_b32 v{DY+j}, 0")
    if OPT.get("stamp"): a(f"v_mov_b32 v{ST}, 0")
    a("s_barrier")
    def rd(reg, s):
        a(f"ds_read_b128 {vr(XR+4*s,4)}, v{reg} offset:{8192*(s//4)}")
        a(f"v_xor_b32 v{reg}, {32*((s % 4) ^ ((s+1) % 4))}, v{reg}")
    def fin(D, js, tmp):
        o = [f"v_mul_f32 v{D+j}, s94, v{D+j}" for j in js]
        o += [f"v_cvt_pk_bf16_f32 v{tmp+j//2}, v{D+j}, v{D+j+1}" for j in js[::2]]
        o += [f"v_mov_b32_dpp v{tmp+8+j//2}, v{tmp+j//2} quad_perm:[1,0,3,2] row_mask:0xf bank_mask:0xf" for j in js[::2]]
        o += [f"v_perm_b32 v{tmp+j//2}, v{tmp+j//2}, v{tmp+8+j//2}, v{SEL}" for j in js[::2]]
        for j in js[::2]:
            off = (8*(j//4) + j % 4)*256 + (0 if D == DX else 8192)
            o.append(f"buffer_store_dword v{tmp+j//2}, v{OA}, s[52:55], {('0', 's95', 's96', 's97')[off//4096]} offen offset:{off % 4096} sc1")
        return o
    AH = 12
    for s in range(AH): rd(RX, s)
    for s in range(16):
        a(f"s_waitcnt lgkmcnt({AH-1})")
        a(mfma(DX, XR+4*s, WR+4*s, DX))
        if s + AH < 16: rd(RX, s+AH)
        else: rd(RY, s+AH-16)
    F0 = fin(DX, list(range(8)), 0)
    for s in range(16):
        a(f"s_waitcnt lgkmcnt({min(AH-1, 15-s)})")
        a(mfma(DY, XR+4*s, WR+4*s, DY))
        if s + AH < 16: rd(RY, s+AH)
        if s >= 6: a("\n".join(F0[:4])); F0 = F0[4:]
    assert not F0
    stamp(a, 10, ST)
    a(f"s_mov_b32 exec_lo, 0\nv_add_f32 v{DX+8}, v{DX+8}, v{DY+8}\ns_mov_b64 exec, -1")
    for j in range(9, 16): a(f"v_add_f32 v{DX+j}, v{DX+j}, v{DY+j}")
    a("\n".join(fin(DX, list(range(8, 16)), 0) + fin(DY, list(range(10)), 16)))
    a("L2_fin:")
    stamp_dump(a, ST, 0, 1)
    a("L2_exit2:\ns_endpgm")
    a.L += a.cold
    a("L2_last:\ns_endpgm")


HEAD = """; edge-featured MPNN.  out = (sum_e silu(A[src]+B[dst]+e@W1c)) @ w2 + deg*b2 with A = x@w1[:128], B = x@w1[128:256]+b1
; @launch kernel=k1_kernel grid=({g1},1,1) block=(512,1,1) lds={l1}
; @launch kernel=k2_kernel grid=({g2},1,1) block=(768,1,1) lds={l2}
.amdgcn_target "amdgcn-amd-amdhsa--gfx950"
.text
"""
KD = """.amdhsa_kernel {name}
  .amdhsa_next_free_vgpr {v}
  .amdhsa_next_free_sgpr 102
  .amdhsa_accum_offset {v}
  .amdhsa_group_segment_fixed_size 0
  .amdhsa_kernarg_size 88
  .amdhsa_user_sgpr_count 2
  .amdhsa_user_sgpr_kernarg_segment_ptr 1
  .amdhsa_system_sgpr_workgroup_id_x 1
.end_amdhsa_kernel
"""


def build():
    out = HEAD.format(g1=K1_GRID, l1=K1_LDS, g2=NB, l2=K2_LDS)
    for name, fn in (("k1_kernel", k1), ("k2_kernel", k2)):
        a = Asm(); fn(a)
        out += f".globl {name}\n.p2align 8\n.type {name},@function\n" + a.text(verbose=OPT.get("v", 0))
    out += '.section .rodata,"a"\n.p2align 6\n' + KD.format(name="k1_kernel", v=128) + ".p2align 6\n" + KD.format(name="k2_kernel", v=168)
    return out


if __name__ == "__main__":
    open(sys.argv[1], "w").write(build())
```

```python
import sys, struct
from asmlib import Asm, vr, sr

OPT = dict(prio=1, prio_at=32, pf=1, ept=4, smf=1, gp=3, split=25, cb=95, mix=6, osc=1, pfl=40)
for a_ in sys.argv[2:]:
    k_, v_ = a_.split("="); OPT[k_] = int(v_)

N, E = 12500, 400000
NPB, NB = 49, 256
EPT = OPT["ept"]
CE = 400*EPT; CH = E//CE
LPS = 2*EPT
LSH = {8: 3, 16: 4}[LPS]
SPLIT, HALF = OPT.get('split', 23), OPT.get('half', 6250)
AROWS = N + 2
W2OP = 6401024 + 1024 - 6401024 % 1024 + 2048
STAT = W2OP + 65536
BIAS = STAT + 4096
W1BOP = STAT + 8192
MAXA = W1BOP + 65536
MAXE = MAXA + 1024
MAXW_G = MAXE + 1024
OFF = MAXW_G + 1024
REC = OFF + 256000
assert W2OP % 128 == 0 and REC % 128 == 0 and MAXA % 128 == 0
STAMPS = 24 << 20
NG = 208
K1_GRID = NG + 3 + CH
K1_LDS = 81920

def f2u(x): return struct.unpack("<I", struct.pack("<f", x))[0]
NLOG2E = f2u(-1.4426950408889634)
PLOG2E = NLOG2E ^ 0x80000000
NLN2 = f2u(-0.6931471805599453)
X, EA_, SRC, DST, W1, B1, W2, B2, OUT, DBG, WS = 4, 6, 8, 10, 12, 14, 16, 18, 20, 22, 24
SHR = ["row_shr:%d row_mask:0xf bank_mask:0xf bound_ctrl:0" % i for i in (1, 2, 4, 8)]
BC15, BC31 = "row_bcast:15 row_mask:0xa bank_mask:0xf", "row_bcast:31 row_mask:0xc bank_mask:0xf"


def srd(a, d, base, add, size, stride=0):
    if add is None:
        a(f"s_mov_b32 s{d}, s{base}\ns_mov_b32 s{d+1}, s{base+1}")
    else:
        a(f"s_add_u32 s{d}, s{base}, {add}\ns_addc_u32 s{d+1}, s{base+1}, 0")
    if stride: a(f"s_or_b32 s{d+1}, s{d+1}, {stride << 16}")
    a(f"s_mov_b32 s{d+2}, {size}\ns_mov_b32 s{d+3}, 0x00020000")


def ldargs(a):
    a("""s_load_dwordx16 s[4:19], s[0:1], 0
    s_load_dwordx4 s[20:23], s[0:1], 64
    s_load_dwordx2 s[24:25], s[0:1], 80""")


def dpp_red(a, op, vs, full=True):
    if isinstance(vs, int): vs = [vs]
    for m in SHR + [BC15] + ([BC31] if full else []):
        for v in vs: a(f"{op}_dpp v{v}, v{v}, v{v} {m}")


def stamp(a, k, reg):
    if not OPT.get("stamp"): return
    a(f"s_memrealtime s[100:101]\ns_waitcnt lgkmcnt(0)\nv_writelane_b32 v{reg}, s100, {k}")
    if k in (0, 7, 8, 9, 31): a(f"s_memtime s[100:101]\ns_waitcnt lgkmcnt(0)\nv_writelane_b32 v{reg}, s100, {32+k}")


def stamp_dump(a, reg, tmp, kern):
    if not OPT.get("stamp"): return
    a("s_mov_b64 exec, -1\ns_waitcnt vmcnt(0)")
    stamp(a, 31, reg)
    a(f"""s_lshl_b32 s96, s2, {3 + kern}
    s_add_u32 s96, s96, s3
    s_lshl_b32 s96, s96, 8
    s_add_u32 s96, s96, {STAMPS + kern*(1 << 20)}""")
    srd(a, 44, WS, "s96", 256)
    a(f"""v_mbcnt_lo_u32_b32 v{tmp}, -1, 0
    v_mbcnt_hi_u32_b32 v{tmp}, -1, v{tmp}
    v_lshlrev_b32 v{tmp}, 2, v{tmp}
    buffer_store_dword v{reg}, v{tmp}, s[44:47], 0 offen""")


def smf(D, B): return f"v_smfmac_f32_32x32x32_bf16 {vr(D,16)}, {vr(ID0,4)}, {vr(B,8)}, v{ID1}"
def tmf(D, rows, a2, b2):
    if OPT["smf"]: return [mfma(D, a2, b2, None), smf(D, rows)]
    return [mfma(D, rows, ID0, None), mfma(D, rows+4, ID1, D), mfma(D, a2, b2, D)]
def code_pf(a, label, size, lane, tmp, junk, sr0, lanes=16, wid=3):
    if not OPT.get("cpf", 2): return
    code_pf.n += 1
    n = code_pf.n
    a(f"""s_cmp_ge_u32 s2, {OPT.get("cpn", 32)}
    s_cbranch_scc1 L_pe{n}
    s_getpc_b64 s[{sr0}:{sr0+1}]
    L_pc{n}:
    s_sub_u32 s{sr0}, s{sr0}, L_pc{n}-{label}
    s_subb_u32 s{sr0+1}, s{sr0+1}, 0
    s_mul_i32 s{sr0+2}, s{wid}, {128*lanes}
    v_min_u32 v{tmp}, {lanes-1}, v{lane}
    v_lshl_add_u32 v{tmp}, v{tmp}, 7, s{sr0+2}
    v_min_u32 v{tmp}, {size}-4, v{tmp}
    v_mov_b32 v{tmp+1}, s{sr0+1}
    v_add_co_u32 v{tmp}, vcc, s{sr0}, v{tmp}
    v_addc_co_u32 v{tmp+1}, vcc, 0, v{tmp+1}, vcc
    global_load_dword v{junk}, v[{tmp}:{tmp+1}], off
    L_pe{n}:""")
code_pf.n = 0
def lane63(a): a("s_mov_b32 exec_lo, 0\ns_mov_b32 exec_hi, 0x80000000")
def full(a): a("s_mov_b64 exec, -1")
def mfma(D, A, B, C): return f"v_mfma_f32_32x32x16_bf16 {vr(D,16)}, {vr(A,4)}, {vr(B,4)}, " + ("0" if C is None else vr(C, 16))


def k1(a):
    ST = 126
    a("k1_kernel:")
    a(f"s_cmp_ge_u32 s2, {K1_GRID}\ns_cbranch_scc1 L1_exit2")
    if OPT.get("stamp"): a(f"v_mov_b32 v{ST}, 0")
    stamp(a, 0, ST)
    ldargs(a)
    a(f"""v_and_b32 v1, 63, v0
    v_lshrrev_b32 v2, 6, v0
    s_nop 0
    v_readfirstlane_b32 s3, v2""")
    if OPT.get("cpf", 2) >= 2: code_pf(a, "k1_kernel", "L2_last-k1_kernel", 1, 122, 125, 64, 24)
    a(f"s_cmp_gt_u32 s2, {NG+2}\ns_cbranch_scc1 L1_part" if OPT.get("gfirst", 1) else f"s_cmp_le_u32 s2, {NG+2}\ns_cbranch_scc1 L1_gemm")
    WOP = 56
    def gemm_role():
        WOP = 56
        a(f"""    s_cmp_eq_u32 s2, {NG+2}
        s_cbranch_scc1 L1_w2
        s_bfe_u32 s27, s2, 0x10003
        s_lshr_b32 s28, s2, 4
        s_lshl_b32 s28, s28, 3
        s_and_b32 s29, s2, 7
        s_add_u32 s28, s28, s29
        s_cmp_ge_u32 s2, {NG}
        s_cselect_b32 s27, s29, s27
        s_cselect_b32 s61, {128*512}, 0
        s_cbranch_scc1 L1_g1
        s_cmp_ge_u32 s28, 98
        s_cbranch_scc1 L1_exit2
        L1_g1:
        v_lshrrev_b32 v18, 4, v1
        v_and_b32 v19, 15, v1
        v_lshlrev_b32 v24, 2, v18
        v_xor_b32 v24, v24, v19
        v_lshlrev_b32 v24, 4, v24
        v_lshl_or_b32 v124, v18, 9, v24""")
        for ii in range(4):
            a(f"""v_add_u32 v20, {4*ii}, v18
            v_xor_b32 v20, v20, v19
            v_lshlrev_b32 v20, 4, v20
            v_lshl_or_b32 v{25+ii}, v18, 8, v20""")
        a(f"""v_mov_b32 v2, 0
        s_lshl_b32 s43, s3, 13
        s_lshl_b32 s30, s27, 8
        s_add_u32 s43, s43, s30
        s_add_u32 s43, s43, s61
        s_lshl_b32 s31, s3, 12
        s_lshl_b32 s29, s28, 15
        s_add_u32 s29, s29, s31
        s_add_u32 m0, s31, 32768
        s_and_b32 s40, s3, 1
        s_lshr_b32 s41, s3, 1
        v_and_b32 v7, 31, v1
        v_lshlrev_b32 v20, 1, v7
        s_lshl_b32 s42, s40, 7
        s_add_u32 s42, s42, s30
        s_waitcnt lgkmcnt(0)""")
        stamp(a, 5, ST)
        srd(a, 36, X, None, N*256)
        for ii in range(4):
            a(f"buffer_load_dwordx4 v{25+ii}, s[36:39], s29 offen lds")
            if ii < 3: a("s_add_u32 m0, m0, 1024\ns_add_u32 s29, s29, 1024")
        a("s_mov_b32 m0, s31")
        srd(a, 32, W1, None, 260*512)
        for ii in range(4):
            a(f"buffer_load_dwordx4 v124, s[32:35], s43 offen lds")
            a("s_add_u32 m0, m0, 1024\ns_add_u32 s43, s43, 2048")
        if OPT.get("cpf", 2) == 1: code_pf(a, "k1_kernel", "L1_exit2-k1_kernel", 1, 21, 22, 64)
        stamp(a, 6, ST)
        a(f"""v_bfe_u32 v18, v1, 2, 2
        v_lshrrev_b32 v6, 5, v1
        v_lshl_add_u32 v19, v6, 3, v18
        v_lshlrev_b32 v19, 8, v19
        v_bfe_u32 v20, v1, 4, 1
        v_lshlrev_b32 v20, 5, v20
        v_and_b32 v21, 3, v1
        v_lshl_add_u32 v20, v21, 3, v20
        v_add_u32 v19, v19, v20
        s_lshl_b32 s42, s40, 1
        v_xor_b32 v20, s42, v18
        v_lshl_add_u32 v120, v20, 6, v19
        v_xor_b32 v20, 1, v20
        v_lshl_add_u32 v121, v20, 6, v19
        s_lshl_b32 s42, s41, 5
        v_add_u32 v19, s42, v7
        v_lshlrev_b32 v19, 8, v19
        v_and_b32 v20, 15, v1
        v_xor_b32 v20, v20, v6
        v_lshl_add_u32 v104, v20, 4, v19
        v_add_u32 v104, 32768, v104""")
        for s in range(1, 8): a(f"v_xor_b32 v{104+s}, {32*s}, v104")
        srd(a, 44, WS, None, N*512)
        a(f"""s_lshl_b32 s42, s28, 2
        s_add_u32 s42, s42, s41
        s_lshl_b32 s42, s42, 14
        s_lshl_b32 s48, s27, 1
        s_add_u32 s48, s48, s40
        s_lshl_b32 s48, s48, 7
        s_add_u32 s48, s42, s48
        s_lshl_b32 s30, s3, 11
        s_add_u32 s30, s30, 65536
        v_lshlrev_b32 v4, 9, v6
        v_lshl_add_u32 v4, v7, 2, v4
        v_add_u32 v4, s30, v4
        v_lshl_add_u32 v6, v1, 4, s30
        v_lshrrev_b32 v7, 3, v1
        v_lshlrev_b32 v7, 9, v7
        v_and_b32 v18, 7, v1
        v_lshl_add_u32 v7, v18, 4, v7
        s_mov_b32 s52, {NLOG2E}
        s_mov_b32 s60, {PLOG2E}
        v_mov_b32 v5, 0
        v_mov_b32 v125, 0x80008000
        s_setprio {OPT.get("gp", 0)}
        s_waitcnt vmcnt(0)
        s_barrier""")
        stamp(a, 1, ST)
        def wr(t, s):
            for hf in range(2):
                a(f"ds_read_b64_tr_b16 {vr(WOP+32*t+4*s+2*hf,2)}, v{120+t} offset:{4096*s+1024*hf}")
        GD0, GD1, CV, RB = 8, WOP, 72, 88
        for task in range(1):
            sc = (lambda r, b: f"v_mul_f32 v{r}, s52, v{r}") if task == 0 else (lambda r, b: f"v_fma_f32 v{r}, v{r}, s60, v{b}")
            per = 3 if task == 0 else 2
            ahead = 5 if task == 0 else 7
            def rd(s):
                if s < 8:
                    if task == 0: a(f"ds_read_b128 {vr(24+4*s,4)}, v{104+s}")
                    wr(0, s)
                else: wr(1, s-8)
            a(f"s_cmp_ge_u32 s2, {NG}\ns_cbranch_scc1 L1_w1b")
            for s in range(ahead): rd(s)
            if task == 1:
                a("""v_lshlrev_b32 v122, 16, v122
                v_lshlrev_b32 v123, 16, v123
                v_mul_f32 v122, s60, v122
                v_mul_f32 v123, s60, v123""")
            cnt = lambda lo, hi: sum(per if q < 8 else 2 for q in range(lo, hi))
            for s in range(8):
                a(f"s_waitcnt lgkmcnt({cnt(s+1, s+ahead)})")
                a(mfma(GD0, 24+4*s, WOP+4*s, None if s == 0 else GD0))
                rd(s+ahead)
            for s in range(8+ahead, 16): rd(s)
            a("s_waitcnt lgkmcnt(0)")
            if task == 0:
                stamp(a, 3, ST)
            for s in range(8):
                a(mfma(GD1, 24+4*s, WOP+32+4*s, None if s == 0 else GD1))
                if s >= 2:
                    for j in range((s-2)*3, min(16, (s-1)*3)): a(sc(GD0+j, 122))
            for hf in range(2):
                for j in range(8*hf, 8*hf+8):
                    a(sc(GD1+j, 123))
                    a(f"""v_cvt_pk_bf16_f32 v{CV+j}, v{GD0+j}, v{GD1+j}
                    ds_write_b32 v4, v{CV+j} offset:{128*(8*(j//4 % 2)+j%4)}""")
                    if j == 10:
                        a("s_waitcnt lgkmcnt(3)")
                        for i in range(2): a(f"buffer_store_dwordx4 {vr(RB+4*i,4)}, v7, s[44:47], s48 offen sc1\ns_add_u32 s48, s48, 4096")
                for i in range(2): a(f"ds_read_b128 {vr(RB+8*hf+4*i,4)}, v6 offset:{1024*i}")
                if hf == 0: stamp(a, 4, ST)
            for i in range(2, 4):
                a(f"s_waitcnt lgkmcnt({(11, 10, 1, 0)[i]})\nbuffer_store_dwordx4 {vr(RB+4*i,4)}, v7, s[44:47], s48 offen sc1\ns_add_u32 s48, s48, 4096")
        stamp(a, 2, ST)
        for j in range(16): a(f"v_and_b32 v{CV+j}, 0x7fff7fff, v{CV+j}\nv_pk_max_u16 v5, v5, v{CV+j}")
        a("""v_lshlrev_b32 v6, 16, v5
        v_and_b32 v5, 0xffff0000, v5
        v_max_u32 v5, v5, v6""")
        dpp_red(a, "v_max_u32", 5)
        a("v_mov_b32 v3, s30")
        lane63(a); a("ds_write_b32 v3, v5"); full(a)
        srd(a, 44, WS, MAXA, 196*4)
        a(f"""s_lshl_b32 s26, s28, 1
        s_add_u32 s26, s26, s27
        s_lshl_b32 s26, s26, 2
        v_and_b32 v3, 7, v1
        v_lshlrev_b32 v3, 11, v3
        v_add_u32 v3, 65536, v3
        s_waitcnt lgkmcnt(0)
        s_barrier
        s_cmp_lg_u32 s3, 0
        s_cbranch_scc1 L1_exit
        ds_read_b32 v6, v3
        s_waitcnt lgkmcnt(0)""")
        for m in SHR[:3]: a(f"v_max_u32_dpp v6, v6, v6 {m}")
        a(f"""s_mov_b64 exec, 0x80
        buffer_store_dword v6, v2, s[44:47], s26 offen sc1
        s_branch L1_exit""")
        a(f"""L1_w1b:
        s_lshl_b32 s43, s27, 1
        s_add_u32 s43, s43, s40
        s_lshl_b32 s43, s43, 14
        v_lshlrev_b32 v2, 4, v1
        s_cmp_lg_u32 s41, 0
        s_cbranch_scc1 L1_exit""")
        for t in range(2):
            for s in range(8): wr(t, s)
        srd(a, 44, WS, W1BOP, 65536)
        a("s_waitcnt lgkmcnt(0)")
        for q in range(16):
            a(f"buffer_store_dwordx4 {vr(WOP+4*q,4)}, v2, s[44:47], s43 offen sc1\ns_add_u32 s43, s43, 1024")
        a("s_branch L1_exit")
    def part_role():
        a(f"L1_part:\ns_sub_u32 s56, s2, {NG+3}")
        G = EPT//4
        HIST, START, MAXW = 40960, 41984, 43008
        DV, SV, EV, AV, RV = 4, 12, 24, 40, 48
        a(f"""v_lshlrev_b32 v2, 2, v0
        v_mov_b32 v3, 0
        ds_write_b32 v2, v3 offset:{HIST}
        ds_write_b32 v2, v3 offset:{MAXW}
        v_mov_b32 v60, 0
        v_mov_b32 v61, 1
        s_mul_i32 s26, s56, {CE*4}
        s_add_u32 s27, s26, 6400
        s_mov_b32 s58, s26
        s_mov_b32 s59, s27
        s_lshl_b32 s52, s26, 1
        s_lshl_b32 s53, s27, 1
        v_lshlrev_b32 v3, 4, v0
        v_lshlrev_b32 v20, 5, v0
        v_cmp_gt_u32 vcc, 400, v0
        s_waitcnt lgkmcnt(0)""")
        stamp(a, 5, ST)
        srd(a, 28, DST, None, E*4); srd(a, 32, SRC, None, E*4); srd(a, 36, EA_, None, E*8)
        a("""s_and_saveexec_b64 s[54:55], vcc
        s_mov_b64 s[54:55], exec
        s_cbranch_execz L1_p1""")
        for g in range(G): a(f"buffer_load_dwordx4 {vr(DV+4*g,4)}, v3, s[28:31], s{26+g} offen")
        def late_loads():
            for g in range(G): a(f"buffer_load_dwordx4 {vr(SV+4*g,4)}, v3, s[32:35], s{58+g} offen")
            for g in range(G):
                a(f"buffer_load_dwordx4 {vr(EV+8*g,4)}, v20, s[36:39], s{52+g} offen")
                a(f"buffer_load_dwordx4 {vr(EV+8*g+4,4)}, v20, s[36:39], s{52+g} offen offset:16")
        if not OPT.get("late", 1): late_loads()
        a(f"""L1_p1:
        s_mov_b64 exec, -1
        s_mul_i32 s26, s56, {CE*12}
        s_add_u32 s26, s26, {REC}""")
        srd(a, 40, WS, "s26", CE*12); srd(a, 44, WS, OFF, CH*1024); srd(a, 48, WS, MAXE, CH*4)
        a(f"""s_setprio {OPT.get("pp", 2)}
        s_barrier
        s_mov_b64 exec, s[54:55]
        s_cbranch_execz L1_p2
        s_waitcnt vmcnt({0 if OPT.get("late", 1) else 3*G})""")
        if OPT.get("late", 1): late_loads()
        stamp(a, 1, ST)
        for k in range(EPT):
            a(f"""v_mul_u32_u24 v21, 10700, v{DV+k}
            v_lshrrev_b32 v21, 19, v21
            v_lshlrev_b32 v{AV+k}, 2, v21
            ds_add_rtn_u32 v{RV+k}, v{AV+k}, v61 offset:{HIST}
            v_mul_u32_u24 v21, {NPB}, v21
            v_sub_u32 v{DV+k}, v{DV+k}, v21""")
        a(f"""L1_p2:
        s_mov_b64 exec, -1
        v_lshlrev_b32 v2, 4, v1
        s_waitcnt lgkmcnt(0)
        s_barrier""")
        stamp(a, 3, ST)
        a(f"""ds_read_b128 v[64:67], v2 offset:{HIST}
        s_waitcnt lgkmcnt(0)
        v_add_u32 v68, v64, v65
        v_add_u32 v69, v68, v66
        v_add_u32 v70, v69, v67
        v_mov_b32 v71, v70""")
        dpp_red(a, "v_add_u32", 71)
        a(f"""v_sub_u32 v56, v71, v70
        v_add_u32 v57, v56, v64
        v_add_u32 v58, v56, v68
        v_add_u32 v59, v56, v69
        ds_write_b128 v2, v[56:59] offset:{START}
        s_mov_b64 exec, s[54:55]
        s_cbranch_execz L1_p4""")
        for k in range(EPT): a(f"ds_read_b32 v{AV+k}, v{AV+k} offset:{START}")
        a(f"s_waitcnt vmcnt({2*G})")
        for k in range(EPT):
            a(f"""v_add_u32 v21, {16384-HALF}, v{SV+k}
            v_lshl_or_b32 v{SV+k}, v{DV+k}, 18, v{SV+k}
            v_lshrrev_b32 v21, 14, v21
            v_lshl_or_b32 v{SV+k}, v21, 24, v{SV+k}""")
        a("s_waitcnt vmcnt(0)")
        for k in range(EPT):
            a(f"""s_waitcnt lgkmcnt({EPT-1+k})
            v_add_u32 v{AV+k}, v{AV+k}, v{RV+k}
            v_mul_u32_u24 v{AV+k}, 12, v{AV+k}
            ds_write2_b32 v{AV+k}, v{EV+2*k}, v{EV+2*k+1} offset0:0 offset1:1
            ds_write_b32 v{AV+k}, v{SV+k} offset:8""")
        a("L1_p4:")
        full(a)
        stamp(a, 2, ST)
        a(f"""s_cmp_lg_u32 s3, 7
        s_cbranch_scc1 L1_p3
        v_lshl_or_b32 v64, v64, 16, v56
        v_lshl_or_b32 v65, v65, 16, v57
        v_lshl_or_b32 v66, v66, 16, v58
        v_lshl_or_b32 v67, v67, 16, v59
        v_mul_u32_u24 v2, {CH*16}, v1
        s_lshl_b32 s26, s56, 4
        buffer_store_dwordx4 v[64:67], v2, s[44:47], s26 offen sc1
        L1_p3:
        s_waitcnt lgkmcnt(0)
        s_barrier""")
        stamp(a, 4, ST)
        NO = -(-CE*12//8192)
        for i in range(NO): a(f"ds_read_b128 {vr(72+4*i,4)}, v3 offset:{8192*i}")
        for i in range(NO):
            a(f"s_mov_b32 s26, {8192*i}\ns_waitcnt lgkmcnt({NO-1-i})\nbuffer_store_dwordx4 {vr(72+4*i,4)}, v3, s[40:43], s26 offen sc1")
        a("s_mov_b64 exec, s[54:55]")
        for k in range(EPT): a(f"v_dot2_f32_bf16 v{DV+k}, v{EV+2*k}, v{EV+2*k}, 0")
        for k in range(EPT): a(f"v_dot2_f32_bf16 v{DV+k}, v{EV+2*k+1}, v{EV+2*k+1}, v{DV+k}")
        a("s_nop 2")
        for k in range(0, EPT, 2): a(f"v_max3_u32 v60, v60, v{DV+k}, v{DV+k+1}")
        full(a)
        dpp_red(a, "v_max_u32", 60)
        a("v_mov_b32 v62, 0")
        lane63(a); a(f"ds_max_u32 v62, v60 offset:{MAXW}"); full(a)
        a(f"s_waitcnt lgkmcnt(0)\ns_barrier\nds_read_b32 v30, v62 offset:{MAXW}")
        a(f"""s_lshl_b32 s26, s56, 2
        v_cmp_eq_u32 vcc, 0, v0
        s_and_saveexec_b64 s[54:55], vcc
        s_cbranch_execz L1_exit
        s_waitcnt lgkmcnt(0)
        buffer_store_dword v30, v62, s[48:51], s26 offen sc1
        s_branch L1_exit""")
    if OPT.get("gfirst", 1):
        gemm_role(); part_role()
    else:
        part_role(); a("L1_gemm:"); gemm_role()
    a(f"""L1_w2:
    v_lshlrev_b32 v2, 4, v1
    s_lshl_b32 s29, s3, 13
    s_mov_b32 m0, s29
    v_mov_b32 v20, 0
    v_mov_b32 v21, 65536
    ds_write_b32 v21, v20
    v_and_b32 v11, 1, v1
    v_lshlrev_b32 v11, 5, v11
    v_bfe_u32 v12, v1, 1, 4
    v_add_u32 v11, v11, v12
    v_lshlrev_b32 v11, 1, v11
    v_lshrrev_b32 v12, 5, v1
    v_lshl_add_u32 v11, v12, 10, v11
    s_lshr_b32 s40, s3, 1
    s_lshl_b32 s40, s40, 7
    s_and_b32 s41, s3, 1
    s_lshl_b32 s41, s41, 5
    s_add_u32 s40, s40, s41
    s_add_u32 s40, s40, {256*512}
    s_waitcnt lgkmcnt(0)""")
    srd(a, 32, W2, None, 65536); srd(a, 36, W1, None, 260*512)
    srd(a, 60, B1, None, 512)
    a("""v_and_b32 v17, 31, v1
    v_lshlrev_b32 v17, 1, v17
    s_lshl_b32 s41, s3, 7
    buffer_load_ushort v18, v17, s[60:63], s41 offen
    buffer_load_ushort v19, v17, s[60:63], s41 offen offset:64
    buffer_load_ushort v8, v11, s[36:39], s40 offen
    buffer_load_ushort v9, v11, s[36:39], s40 offen offset:512""")
    for ii in range(8):
        a("buffer_load_dwordx4 v2, s[32:35], s29 offen lds")
        if ii < 7: a("s_add_u32 m0, m0, 1024\ns_add_u32 s29, s29, 1024")
    a(f"""s_and_b32 s40, s3, 3
    s_lshr_b32 s41, s3, 2
    v_bfe_u32 v5, v1, 2, 1
    v_lshlrev_b32 v5, 5, v5
    v_bfe_u32 v6, v1, 3, 1
    v_add_u32 v5, v5, v6
    v_lshrrev_b32 v6, 5, v1
    v_lshl_add_u32 v5, v6, 2, v5
    v_lshlrev_b32 v5, 8, v5
    v_bfe_u32 v6, v1, 4, 1
    v_lshl_add_u32 v5, v6, 5, v5
    v_and_b32 v6, 3, v1
    v_lshl_add_u32 v5, v6, 3, v5
    s_lshl_b32 s42, s40, 6
    s_lshl_b32 s43, s41, 15
    s_add_u32 s42, s42, s43
    v_add_u32 v5, s42, v5
    s_lshl_b32 s43, s40, 14
    s_lshl_b32 s42, s41, 13
    s_add_u32 s43, s43, s42
    s_mov_b32 s52, {NLOG2E}
    s_lshl_b32 s42, s3, 9
    v_lshlrev_b32 v3, 3, v1""")
    srd(a, 44, WS, W2OP, 65536); srd(a, 48, WS, STAT, 4096); srd(a, 56, WS, MAXW_G, 4)
    a("""s_waitcnt vmcnt(8)
    v_lshlrev_b32 v8, 16, v8
    v_lshlrev_b32 v9, 16, v9
    v_mul_f32 v8, s52, v8
    v_mul_f32 v9, s52, v9
    v_cvt_pk_bf16_f32 v15, v8, v9
    v_mul_f32 v16, v8, v8
    v_fmac_f32 v16, v9, v9
    v_lshlrev_b32 v12, 16, v15
    v_and_b32 v13, 0xffff0000, v15
    v_sub_f32 v8, v8, v12
    v_sub_f32 v9, v9, v13
    v_cvt_pk_bf16_f32 v14, v8, v9
    buffer_store_dwordx2 v[14:15], v3, s[48:51], s42 offen sc1
    v_lshlrev_b32 v18, 16, v18
    v_lshlrev_b32 v19, 16, v19
    v_mul_f32 v18, s52, v18
    v_mul_f32 v19, s52, v19
    v_lshlrev_b32 v17, 2, v17
    s_lshl_b32 s41, s3, 8""")
    srd(a, 60, WS, BIAS, 1024); srd(a, 64, WS, N*512, 1024)
    a("""buffer_store_dwordx2 v[18:19], v17, s[60:63], s41 offen sc1
    v_mov_b32 v22, 0x41c041c0
    v_mov_b32 v23, 0x7f7f7f7f
    v_cmp_gt_u32 vcc, 128, v0
    v_lshlrev_b32 v24, 2, v0
    v_cndmask_b32 v22, v23, v22, vcc
    buffer_store_dword v22, v24, s[64:67], 0 offen sc1""")
    a("v_mov_b32 v12, v16\nv_permlane32_swap_b32 v12, v16\nv_add_f32 v16, v12, v16")
    dpp_red(a, "v_max_u32", 16)
    a("""    s_waitcnt vmcnt(0)
    s_barrier""")
    lane63(a); a("ds_max_u32 v21, v16"); full(a)
    for s in range(8):
        for hf in range(2):
            row = 64*(s//4) + 16*((s//2) % 2) + 8*(s % 2) + 2*hf
            a(f"ds_read_b64_tr_b16 {vr(WOP+4*s+2*hf,2)}, v5 offset:{256*row}")
    a("s_waitcnt lgkmcnt(0)\ns_barrier\nds_read_b32 v16, v21")
    for s in range(8):
        a(f"buffer_store_dwordx4 {vr(WOP+4*s,4)}, v2, s[44:47], s43 offen sc1\ns_add_u32 s43, s43, 1024")
    srd(a, 48, WS, MAXE + CH*4, 16)
    a("""v_lshlrev_b32 v17, 2, v1
    buffer_store_dword v20, v17, s[48:51], 0 offen sc1
    s_waitcnt lgkmcnt(0)
    buffer_store_dword v16, v3, s[56:59], 0 offen sc1
    L1_exit:""")
    stamp_dump(a, ST, 127, 0)
    a("L1_exit2:\ns_endpgm")


CAPT = 60
L_IDX, L_QA, L_TBL, L_CNT, L_MISC, L_DEG, L_EA, L_P = 256, 8448, 10496, 12544, 14592, 14656, 15104, 30464
L_BT = L_P + 31*1024
L_STG = 91136
BTS = 576
L_NULL = L_BT + NPB*BTS
K2_LDS = L_STG + 65536
assert L_BT + 50*BTS <= L_STG and L_BT % 256 == 0
D0, D1, EE, TT, HQ0, HQ1, S0, S1 = 0, 16, 32, 48, 56, 60, 64, 80
ALO, AHI, ID0, ID1, A2, B2R, PP, IP = 96, (104, 112), 120, 124, (128, 132), (136, 140), 144, 148
QV, QST, RA, IB, EB, QB, PB = (156, 157), 158, 159, 163, 164, 165, 166
LANE, ESIG, QOFF, L16, SWA = 125, 126, 127, 161, 162
RECR, OFR, VONE, MXC = 0, 116, 62, 115
MASK = 56
S_BASE, S_LIM, S_IMASK, S_SLOW, S_N, S_T0, S_FIRST, S_BK, S_MAXC, S_SAFE, S_CUT, S_STG, S_BETA, S_NEG = range(80, 94)
S_CG, S_GRP, S_R2, S_N0, S_NO = 26, 27, 1, 0, 87


def valu_half(D, hq, mode, fill):
    L = [f"v_exp_f32 v{EE+j}, v{D+j}" for j in range(16)]
    p2 = lambda x: vr(x, 2)
    if mode == "o":
        L.insert(15, None)
        L[15] = f"v_pk_add_f32 {p2(TT)}, {p2(EE)}, 1.0 op_sel_hi:[1,0]"
        L[15], L[16] = L[16], L[15]
        for s in range(1, 8):
            n = D if s == 1 else TT+2
            L.append(f"v_pk_fma_f32 {p2(TT+2)}, {p2(n)}, {p2(EE+2*s)}, {p2(n)}")
            L.append(f"v_pk_fma_f32 {p2(TT+2)}, {p2(D+2*s)}, {p2(TT)}, {p2(TT+2)}")
            L.append(f"v_pk_fma_f32 {p2(TT)}, {p2(TT)}, {p2(EE+2*s)}, {p2(TT)}")
        u, nn, dd = L[-3:]
        L[-3:] = [f"v_pk_fma_f32 {p2(TT+4)}, {p2(TT)}, {p2(EE+14)}, {p2(TT)}", f"v_rcp_f32 v{TT+4}, v{TT+4}", f"v_rcp_f32 v{TT+5}, v{TT+5}", u, nn]
        if OPT.get("mix"):
            k = OPT["mix"]
            ex, pk = L[16-k:16], L[16:]
            out = []
            per = 3
            while ex or pk:
                out += pk[:per]; pk = pk[per:]
                if ex: out.append(ex.pop(0))
            L = L[:16-k] + out
        L.append(f"v_pk_mul_f32 {p2(TT+2)}, {p2(TT+2)}, {p2(TT+4)}")
        L.append(f"v_cvt_pk_bf16_f32 v{hq}, v{TT+2}, v{TT+3}")
        return L + fill
    if mode == "q":
        for q in range(2): L.append(f"v_pk_add_f32 {p2(TT+4*q)}, {p2(EE+8*q)}, 1.0 op_sel_hi:[1,0]")
        for s in range(1, 4):
            for q in range(2):
                n = D+8*q if s == 1 else TT+4*q+2
                L.append(f"v_pk_fma_f32 {p2(TT+4*q+2)}, {p2(n)}, {p2(EE+8*q+2*s)}, {p2(n)}")
            for q in range(2):
                L.append(f"v_pk_fma_f32 {p2(TT+4*q+2)}, {p2(D+8*q+2*s)}, {p2(TT+4*q)}, {p2(TT+4*q+2)}")
            for q in range(2):
                L.append(f"v_pk_fma_f32 {p2(TT+4*q)}, {p2(TT+4*q)}, {p2(EE+8*q+2*s)}, {p2(TT+4*q)}")
        for q in range(2):
            for p in range(2): L.append(f"v_rcp_f32 v{TT+4*q+p}, v{TT+4*q+p}")
        for q in range(2): L.append(f"v_pk_mul_f32 {p2(TT+4*q+2)}, {p2(TT+4*q+2)}, {p2(TT+4*q)}")
    else:
        for j in range(0, 16, 2): L.append(f"v_pk_add_f32 {p2(EE+j)}, {p2(EE+j)}, 1.0 op_sel_hi:[1,0]")
        for j in range(16): L.append(f"v_rcp_f32 v{EE+j}, v{EE+j}")
        for q in range(2): L.append(f"v_pk_mul_f32 {p2(TT+4*q+2)}, {p2(D+8*q)}, {p2(EE+8*q)}")
        for s in range(1, 4):
            for q in range(2):
                L.append(f"v_pk_fma_f32 {p2(TT+4*q+2)}, {p2(D+8*q+2*s)}, {p2(EE+8*q+2*s)}, {p2(TT+4*q+2)}")
    for q in range(2): L.append(f"v_cvt_pk_bf16_f32 v{hq+q}, v{TT+4*q+2}, v{TT+4*q+3}")
    return L + fill


def weave(V, M, pos):
    out = []
    for i, x in enumerate(V):
        out += [m for m, p in zip(M, pos) if p == i]
        out.append(x)
    return out


def incs(k): return [f"v_add_u32 v{IB}, {128*k}, v{IB}", f"v_add_u32 v{EB}, {256*k}, v{EB}", f"v_add_u32 v{QB}, {32*k}, v{QB}"]


def block(a, t, mode):
    par = t & 1
    last = 3 if mode == "o" else 1
    M1 = tmf(D1, AHI[par], A2[par], B2R[1])
    if t == 0: M1.append(mfma(S1, HQ1, PP, S1))
    M2 = tmf(D0, ALO, A2[par ^ 1], B2R[0])
    if t == last: M2.append(mfma(S0, HQ0, PP, S0))
    pos = [1, 4, 7, 10] if not OPT.get("mix") else [0, 3, 6]
    extra = (["s_waitcnt lgkmcnt(0)"] if OPT.get('gw', 1) else []) + [f"v_add_u32 v{QV[par]}, v{QV[par]}, v{QST}"]
    if t == 0: extra.append(f"v_add_u32 v{PB}, 1024, v{PB}")
    if mode == "o" and t == 2: extra += incs(4)
    if mode != "o" and t == 0: extra += incs(2)
    k = t if mode == "o" else 2*t
    L = weave(valu_half(D0, HQ0+k, mode, extra), M1, pos) + weave(valu_half(D1, HQ1+k, mode, []), M2, pos)
    if OPT["prio"]:
        L.insert(OPT["prio_at"], "s_setprio 1"); L.append("s_setprio 0")
    a("\n".join(L))


def dma(a, par):
    a(f"s_add_u32 m0, s{S_STG}, {4096*par}")
    for u in range(4):
        a(f"buffer_load_dwordx4 {vr(IP+2*u,2)}, s[36:39], 0 idxen offen lds")
        if u < 3: a("s_add_u32 m0, m0, 1024")


def rd_idx(a, t):
    for u in range(4): a(f"ds_read_b32 v{IP+2*u}, v{IB} offset:{128*t+32*u}")


def rd_rows(a, par):
    if OPT["smf"]:
        for c in range(2):
            for gi in range(4):
                a(f"ds_read_b64_tr_b16 {vr((ALO, AHI[par])[c]+2*gi,2)}, v{RA+c} offset:{4096*par+512*gi}")
        return
    for s in range(4):
        d = ALO+4*s if s < 2 else AHI[par]+4*(s-2)
        a(f"ds_read_b128 {vr(d,4)}, v{RA+s} offset:{4096*par}")


def group(a, par, sh=0, rdp=False, tail=True):
    a("s_waitcnt vmcnt(4)")
    rd_rows(a, par)
    a(f"ds_read_b64_tr_b16 {vr(B2R[1],2)}, v{QV[par^1]} offset:64")
    a(f"ds_read_b64_tr_b16 {vr(B2R[0],2)}, v{QV[par]}")
    a(f"ds_read2st64_b32 {vr(A2[par]+2,2)}, v{EB} offset0:{2+par+sh} offset1:{2+par+sh}")
    if rdp: a(f"ds_read_b128 {vr(PP,4)}, v{PB}")
    a(f"s_cmp_gt_u32 s{S_N}, 3\ns_cselect_b32 s38, {0 if OPT.get('nodma') else AROWS}, 0")
    a(f"s_waitcnt lgkmcnt({4 if rdp else 3})")
    dma(a, par)
    rd_idx(a, 5+par+sh)
    a(f"ds_read_b32 v{QV[par^1]}, v{QB} offset:{32*(3+par+sh)}")
    a(f"s_waitcnt lgkmcnt({5 if OPT.get('gw', 1) else 0})")
group.n = 0


def dec(a, tgt): a(f"s_sub_u32 s{S_N}, s{S_N}, 1\ns_cmp_eq_u32 s{S_N}, 0\ns_cbranch_scc1 {tgt}")


def main_loops(a):
    a("L2_loopO:")
    block(a, 0, "o"); a(f"s_sub_u32 s{S_N}, s{S_N}, 1"); group(a, 0, 2, True)
    block(a, 1, "o"); dec(a, "L2_end_odd"); group(a, 1, 2)
    a(f"s_cmp_eq_u32 s{S_NO}, 2\ns_cbranch_scc1 L2_half")
    block(a, 2, "o"); a(f"s_sub_u32 s{S_N}, s{S_N}, 1"); group(a, 0)
    block(a, 3, "o"); dec(a, "L2_end_even"); group(a, 1)
    a(f"s_sub_u32 s{S_NO}, s{S_NO}, 4\ns_cmp_lg_u32 s{S_NO}, 0\ns_cbranch_scc1 L2_loopO\ns_branch L2_loopF\nL2_half:")
    a(mfma(S0, HQ0, PP, S0)); a("\n".join(incs(2)))
    for tag, mode in (("F", "q"), ("S", "s")):
        if tag == "S": keep = a.L; a.L = []
        a(f"L2_loop{tag}:")
        block(a, 0, mode); dec(a, "L2_end_odd"); group(a, 0, 0, True)
        block(a, 1, mode); dec(a, "L2_end_even"); group(a, 1)
        a(f"s_branch L2_loop{tag}")
    a.cold += a.L; a.L = keep


def cold(a, name, fn):
    keep = a.L; a.L = []
    a(f"{name}:"); fn(); a(f"s_branch {name}_r")
    a.cold += a.L; a.L = keep
    a(f"{name}_r:")


def k2(a):
    a.cold = []
    ST = 167
    L = LANE
    NZ = (L_BT - L_CNT)//16
    a("k2_kernel:")
    a(f"s_cmp_ge_u32 s2, {NB}\ns_cbranch_scc1 L2_exit2")
    if OPT.get("stamp"): a(f"v_mov_b32 v{ST}, 0")
    stamp(a, 0, ST)
    ldargs(a)
    a(f"""v_and_b32 v{L}, 63, v0
    v_lshrrev_b32 v2, 6, v0
    s_and_b32 s{S_BK}, s2, 7
    v_readfirstlane_b32 s3, v2
    s_lshl_b32 s{S_BK}, s{S_BK}, 5
    s_lshr_b32 s28, s2, 3
    s_add_u32 s{S_BK}, s{S_BK}, s28
    s_mul_i32 s{S_NEG}, s{S_BK}, {NPB}
    s_mov_b32 s{S_BASE}, 0
    s_mov_b32 s{S_LIM}, {3*LPS}
    s_mov_b32 s{S_IMASK}, 15
    s_mov_b32 s{S_SLOW}, 0
    s_mov_b32 s{S_FIRST}, 1
    s_mov_b32 s{S_BETA}, 0
    s_and_b32 s{S_CG}, s3, 3
    s_lshr_b32 s{S_GRP}, s3, 2
    v_lshlrev_b32 v{L16}, 4, v{L}
    s_cmp_eq_u32 s{S_GRP}, 2
    s_cbranch_scc0 L2_M""")
    code_pf(a, "k2_kernel", "L2_last-k2_kernel", L, 10, 167, 40, 36, S_CG)
    a(f"""s_branch L2_H
    L2_M:
    s_lshr_b32 s96, s{S_BK}, 2
    s_mul_i32 s96, s96, {CH*16}
    s_and_b32 s97, s{S_BK}, 3
    s_lshl_b32 s97, s97, 2
    s_add_u32 s96, s96, {OFF}
    s_lshl_b32 s{S_STG}, s3, 13
    s_add_u32 s{S_STG}, s{S_STG}, {L_STG}""")
    for j in range(8): a(f"v_mov_b32 v{IP+j}, {-1 if j % 2 == 0 else 0}")
    a(f"""s_lshl_b32 s98, s3, {6-LSH+4}
    s_add_u32 s98, s98, s97
    s_waitcnt lgkmcnt(0)
    s_mov_b32 s6, s98""")
    stamp(a, 11, ST)
    srd(a, 8, WS, "s96", CH*16)
    a(f"""L2_batch:
    v_lshrrev_b32 v113, {LSH}, v{L}
    v_lshl_add_u32 v9, v113, 4, s6""")
    for i in range(4): a(f"buffer_load_dword v{OFR+i}, v9, s[8:11], 0 offen offset:{(8192 >> LSH)*i}")
    srd(a, 32, WS, REC, CH*CE*12); srd(a, 36, WS, None, AROWS, stride=512)
    a(f"""s_and_b32 s96, s{S_FIRST}, s{S_GRP}
    s_cbranch_scc1 L2_stat
    L2_ld:
    v_and_b32 v112, {LPS-1}, v{L}
    v_add_u32 v112, s{S_BASE}, v112
    s_lshl_b32 s96, s3, {6-LSH}
    v_add_u32 v113, s96, v113
    s_add_u32 s96, s{S_BASE}, s{S_LIM}
    v_mul_u32_u24 v113, {CE*12}, v113
    s_waitcnt vmcnt(0)""")
    stamp(a, 1, ST)
    for i in range(4):
        a(f"""v_lshrrev_b32 v{104+i}, 16, v{OFR+i}
        s_bitcmp1_b32 s{S_IMASK}, {i}
        s_cselect_b32 s98, s96, 0
        v_min_u32 v{104+i}, s98, v{104+i}
        v_and_b32 v114, 0xffff, v{OFR+i}
        v_add_u32 v114, v114, v112
        v_mad_u32_u24 v{108+i}, v114, 12, v113""")
        if i < 3: a(f"v_add_u32 v113, {(512 >> LSH)*CE*12}, v113")
    def rec_loads(rnd):
        for i in range(4):
            k = 4*rnd + i
            a(f"s_mov_b64 exec, {sr(MASK+2*k,2)}\ns_cbranch_execz L2_r{k}")
            a(f"""buffer_load_dwordx3 {vr(RECR+4*k,3)}, v{108+i}, s[32:35], 0 offen offset:{12*LPS*rnd}
            L2_r{k}:""")
        full(a)
    for rnd in range(3):
        if rnd: a(f"v_add_u32 v112, {LPS}, v112")
        for i in range(4): a(f"v_cmp_lt_u32 {sr(MASK+2*(4*rnd+i),2)}, v112, v{104+i}")
        if rnd < 2: rec_loads(rnd)
    a(f"""s_or_b64 s[96:97], {sr(MASK+16,2)}, {sr(MASK+18,2)}
    s_or_b64 s[98:99], {sr(MASK+20,2)}, {sr(MASK+22,2)}
    s_or_b64 s[96:97], s[96:97], s[98:99]
    s_cselect_b32 s{S_R2}, 1, 0
    s_cbranch_scc1 L2_x0""")
    cold(a, "L2_x0", lambda: rec_loads(2))
    a(f"""s_cmp_eq_u32 s{S_FIRST}, 0
    s_cbranch_scc1 L2_rank0
    v_lshrrev_b32 v104, 16, v{OFR}
    v_lshrrev_b32 v105, 16, v{OFR+1}
    v_lshrrev_b32 v106, 16, v{OFR+2}
    v_lshrrev_b32 v107, 16, v{OFR+3}
    v_max3_u32 v104, v104, v105, v106
    v_max_u32 v{MXC}, v104, v107
    s_lshl_b32 s96, s{S_CG}, 10
    v_lshlrev_b32 v114, 3, v{L}""")
    srd(a, 44, WS, STAT, 4096)
    a(f"""buffer_load_dwordx2 {vr(B2R[0]+2,2)}, v114, s[44:47], s96 offen
    buffer_load_dwordx2 {vr(B2R[1]+2,2)}, v114, s[44:47], s96 offen offset:512
    s_cmp_lg_u32 s{S_GRP}, 0
    s_cbranch_scc1 L2_wrec
    L2_stat:""")
    n_, h_, one, t0, t1, t2, t3, t4, t5 = 96, 97, 98, 99, 100, 101, 102, 103, 104
    for j in range(32): a(f"v_mov_b32 v{S0+j}, 0")
    a(f"""v_and_b32 v{n_}, 31, v{L}
    v_lshrrev_b32 v{h_}, 5, v{L}
    v_bfe_u32 v{t1}, v{n_}, 1, 3
    v_lshlrev_b32 v{t1}, 4, v{t1}
    v_lshl_add_u32 v{t1}, v{n_}, 7, v{t1}
    v_lshl_add_u32 v{t1}, v{h_}, 3, v{t1}
    v_add_u32 v{SWA}, s{S_STG}, v{t1}""")
    a(f"""v_bfe_u32 v{t1}, v{n_}, 2, 1
    v_lshrrev_b32 v{t2}, 4, v{n_}
    v_and_b32 v{t3}, 1, v{n_}
    v_xor_b32 v{t4}, v{t1}, v{h_}
    v_lshl_or_b32 v{t4}, v{t4}, 1, v{t3}
    v_cmp_eq_u32 s[94:95], 0, v{t4}
    v_cmp_eq_u32 s[96:97], 1, v{t4}
    v_lshlrev_b32 v{t4}, 4, v{t2}
    v_mov_b32 v{one}, 0x3f80
    v_lshlrev_b32 v{one}, v{t4}, v{one}
    v_cndmask_b32 v{A2[0]}, 0, v{one}, s[94:95]
    v_cndmask_b32 v{A2[0]+1}, 0, v{one}, s[96:97]
    v_cndmask_b32 v{A2[1]}, 0, v{one}, s[94:95]
    v_cndmask_b32 v{A2[1]+1}, 0, v{one}, s[96:97]
    v_lshlrev_b32 v{t1}, 4, v{t1}
    v_lshl_or_b32 v{t1}, v{t3}, 3, v{t1}
    v_lshl_or_b32 v{t1}, v{t2}, 2, v{t1}
    v_bfe_u32 v{t4}, v{n_}, 3, 1
    v_lshl_or_b32 v{t1}, v{t4}, 1, v{t1}
    v_bfe_u32 v{t5}, v{n_}, 1, 1
    v_or_b32 v{t1}, v{t1}, v{t5}
    v_lshlrev_b32 v{ESIG}, 3, v{t1}
    v_lshl_add_u32 v{ESIG}, v{h_}, 2, v{ESIG}""")
    if OPT["smf"]:
        a(f"""v_lshrrev_b32 v{t2}, 4, v{t1}
        v_bfe_u32 v{t3}, v{t1}, 2, 1
        v_lshl_or_b32 v{t2}, v{t2}, 1, v{t3}
        v_and_b32 v{t3}, 3, v{t1}
        v_lshlrev_b32 v{t4}, 2, v{t2}
        v_lshlrev_b32 v{ID1}, v{t4}, v{t3}
        v_bfe_u32 v{t3}, v{t1}, 3, 1
        v_xor_b32 v{t3}, v{t3}, v{h_}
        v_lshl_or_b32 v{t2}, v{t3}, 2, v{t2}
        v_mov_b32 v{one}, 0x3f80""")
        for q in range(4): a(f"v_cmp_eq_u32 {sr(56+0,2) if False else sr(94+2*(q%3),2)}, {q}, v{t2}" + (f"\nv_cndmask_b32 v{ID0+q-1}, 0, v{one}, {sr(94+2*((q-1)%3),2)}" if q else "\ns_nop 0"))
        a(f"""v_bfe_u32 v{t1}, v{L}, 2, 2
        v_cndmask_b32 v{ID0+3}, 0, v{one}, {sr(94,2)}
        v_lshl_add_u32 v{t2}, v{h_}, 4, v{t1}
        v_lshlrev_b32 v{t2}, 7, v{t2}
        v_lshrrev_b32 v{t1}, 1, v{t1}
        v_lshl_add_u32 v{t2}, v{t1}, 6, v{t2}
        v_bfe_u32 v{t1}, v{L}, 4, 1
        v_lshl_add_u32 v{t2}, v{t1}, 5, v{t2}
        v_and_b32 v{t3}, 3, v{L}
        v_lshl_add_u32 v{t2}, v{t3}, 3, v{t2}
        v_add_u32 v{RA}, s{S_STG}, v{t2}
        v_xor_b32 v{RA+1}, 64, v{RA}
        v_lshlrev_b32 v{t2}, 2, v{t1}""")
    else:
        a(f"""v_bfe_u32 v{t3}, v{t1}, 1, 3
        v_xor_b32 v{t3}, v{t3}, v{h_}
        v_lshlrev_b32 v{t3}, 4, v{t3}
        v_lshl_add_u32 v{t3}, v{t1}, 7, v{t3}
        v_add_u32 v{RA}, s{S_STG}, v{t3}""")
        for s in range(1, 4): a(f"v_xor_b32 v{RA+s}, {32*s}, v{RA}")
        a(f"v_lshrrev_b32 v{t2}, 4, v{L}")
    a(f"""v_and_b32 v{t3}, 7, v{L}
    v_xor_b32 v{t2}, v{t2}, v{t3}
    s_lshl_b32 s96, s{S_CG}, 7
    v_lshl_add_u32 v{IP+1}, v{t2}, 4, s96
    v_xor_b32 v{IP+3}, {0 if OPT['smf'] else 64}, v{IP+1}
    v_mov_b32 v{IP+5}, v{IP+1}
    v_mov_b32 v{IP+7}, v{IP+3}
    v_bfe_u32 v{t1}, v{L}, 4, 1
    v_lshlrev_b32 v{t1}, 5, v{t1}
    v_and_b32 v{t3}, 3, v{L}
    v_lshl_add_u32 v{t1}, v{t3}, 3, v{t1}
    v_add_u32 v{QST}, s96, v{t1}
    v_bfe_u32 v{t1}, v{L}, 2, 2
    v_lshl_add_u32 v{QOFF}, v{h_}, 2, v{t1}
    v_lshlrev_b32 v{QOFF}, 2, v{QOFF}
    s_cmp_lg_u32 s{S_GRP}, 0
    s_cbranch_scc1 L2_ld
    L2_wrec:""")
    dpp_red(a, "v_max_u32", MXC)
    stamp(a, 3, ST)
    a(f"""s_waitcnt vmcnt(2)
    s_branch L2_rank2
    L2_rank0:
    s_waitcnt vmcnt(0)
    L2_rank2:
    v_mov_b32 v{VONE}, 1
    v_mov_b32 v63, 0
    s_barrier""")
    stamp(a, 5, ST)
    RK = 96
    def rank(ks):
        for k in ks:
            a(f"""s_mov_b64 exec, {sr(MASK+2*k,2)}
            v_lshrrev_b32 v{RK+k}, 14, v{RECR+4*k+2}
            ds_add_rtn_u32 v{RECR+4*k+3}, v{RK+k}, v{VONE} offset:{L_CNT}""")
    rank(range(8))
    a(f"s_cmp_lg_u32 s{S_R2}, 0\ns_cbranch_scc1 L2_x2")
    cold(a, "L2_x2", lambda: rank(range(8, 12)))
    a(f"""s_mov_b64 exec, -1
    s_cmp_eq_u32 s{S_FIRST}, 0
    s_cbranch_scc1 L2_k13
    s_mov_b32 exec_lo, 0
    s_mov_b32 exec_hi, 0x80000000
    ds_max_u32 v63, v{MXC} offset:{L_MISC+4}
    s_mov_b64 exec, -1""")
    CL, CU, C_, PC, O1, O2, R3 = 48, 49, 50, 51, 52, 53, 54
    I1, I2, I3 = 56, 57, 58
    TL, TH = 108, 112
    HM = (0xffffffff << SPLIT) & 0xffffffff
    a(f"""L2_k13:
    s_waitcnt lgkmcnt(0)
    s_barrier
    ds_read_b32 v{CL}, v{L16} offset:{L_CNT}
    ds_read_b32 v{CU}, v{L16} offset:{L_CNT+1024}
    ds_read_b64 v[60:61], v63 offset:{L_MISC}
    s_waitcnt lgkmcnt(1)
    v_add_u32 v{C_}, v{CL}, v{CU}
    v_and_b32 v{O1}, -8, v{CL}
    v_add_u32 v{PC}, 3, v{C_}
    v_mov_b32 v{I1}, v{O1}
    v_and_b32 v{PC}, -4, v{PC}
    v_sub_u32 v{R3}, v{PC}, v{O1}
    v_and_b32 v{O2}, -8, v{R3}
    v_and_b32 v{R3}, 4, v{R3}
    v_mov_b32 v{I2}, v{O2}
    v_mov_b32 v{I3}, v{R3}""")
    dpp_red(a, "v_add_u32", [I1, I2, I3])
    a(f"""v_readlane_b32 s94, v{I1}, 63
    v_readlane_b32 s95, v{I2}, 63
    v_readlane_b32 s96, v{I3}, 63
    v_readlane_b32 s97, v{I1}, {SPLIT-1}
    v_readlane_b32 s98, v{I2}, {SPLIT-1}
    v_readlane_b32 s99, v{I3}, {SPLIT-1}
    v_readlane_b32 s28, v{I1}, 31
    v_sub_u32 v{I1}, v{I1}, v{O1}
    v_sub_u32 v{I2}, v{I2}, v{O2}
    v_sub_u32 v{I3}, v{I3}, v{R3}
    s_cmp_eq_u32 s{S_FIRST}, 0
    s_cbranch_scc1 L2_s1
    s_waitcnt lgkmcnt(0)
    v_readfirstlane_b32 s{S_MAXC}, v61
    v_readfirstlane_b32 s{S_SAFE}, v60
    s_mov_b32 s{S_FIRST}, 0""")
    a(f"""L2_s1:
    s_sub_u32 s94, s94, s97
    s_sub_u32 s95, s95, s98
    s_sub_u32 s96, s96, s99
    s_add_u32 s29, s97, s98
    s_add_u32 s30, s29, s99
    s_add_u32 s30, s30, 7
    s_and_b32 s30, s30, -8
    s_sub_u32 s31, s30, s97
    s_add_u32 s28, s28, s31
    s_add_u32 s40, s30, s94
    s_add_u32 s41, s40, s95
    s_add_u32 s42, s41, s96
    s_add_u32 s{S_CUT}, s42, {OPT.get('cb', 63)}
    s_lshr_b32 s{S_CUT}, s{S_CUT}, 6
    s_add_u32 s43, s30, 31
    s_lshr_b32 s43, s43, 5
    s_max_u32 s{S_CUT}, s{S_CUT}, s43
    s_add_u32 s43, s28, 31
    s_lshr_b32 s43, s43, 5
    s_min_u32 s{S_CUT}, s{S_CUT}, s43
    s_lshl_b32 s43, s{S_CUT}, 5
    s_max_u32 s43, s43, s28
    s_sub_u32 s43, s43, s28
    s_add_u32 s40, s40, s43
    s_add_u32 s41, s41, s43
    s_add_u32 s42, s42, s43
    s_sub_u32 s40, s40, s98
    s_sub_u32 s52, s41, s99
    s_mov_b32 exec_lo, {HM ^ 0xffffffff}
    s_mov_b32 exec_hi, 0
    v_add_u32 v{I2}, s97, v{I2}
    v_add_u32 v{I3}, s29, v{I3}
    s_mov_b32 exec_lo, {HM}
    s_mov_b32 exec_hi, -1
    v_add_u32 v{I1}, s31, v{I1}
    v_add_u32 v{I2}, s40, v{I2}
    v_add_u32 v{I3}, s52, v{I3}
    s_mov_b32 exec_lo, 0
    v_add_u32 v{I1}, s43, v{I1}
    s_mov_b64 exec, -1
    v_add_u32 v{O2}, v{O1}, v{O2}
    v_sub_u32 v{I2}, v{I2}, v{O1}
    v_sub_u32 v{I3}, v{I3}, v{O2}
    v_lshl_or_b32 v{TL}, v{O2}, 16, v{O1}
    v_mov_b32 v{TL+1}, v{I1}
    v_mov_b32 v{TL+2}, v{I2}
    v_mov_b32 v{TL+3}, v{I3}
    v_max_u32 v55, v{O2}, v{CL}
    v_sub_u32 v55, v55, v{CL}
    v_lshlrev_b32 v{TH}, 16, v55
    v_add_u32 v{TH+2}, v{I2}, v{CL}
    v_add_u32 v{TH+3}, v{I3}, v{CL}
    ds_write_b128 v{L16}, {vr(TL,4)} offset:{L_TBL}
    ds_write_b128 v{L16}, {vr(TH,4)} offset:{L_TBL+1024}
    s_add_u32 s96, s42, 31
    s_lshr_b32 s96, s96, 5
    s_cmp_lg_u32 s{S_SLOW}, 0
    s_cbranch_scc1 L2_s2
    s_cmp_gt_u32 s96, {CAPT}
    s_cselect_b32 s97, 1, 0
    s_cmp_gt_u32 s{S_MAXC}, {3*LPS}
    s_cselect_b32 s97, 1, s97
    s_cmp_lg_u32 s97, 0
    s_cbranch_scc1 L2_ovf
    L2_s2:
    s_waitcnt lgkmcnt(0)""")
    stamp(a, 6, ST)
    TB = 104
    def tbrd(ks):
        for k in ks: a(f"s_mov_b64 exec, {sr(MASK+2*k,2)}\nds_read_b128 {vr(TB+4*(k%4),4)}, v{RK+k} offset:{L_TBL}")
        full(a)
    def scatter(ks):
        P = ((94, 96), (12, 14), (16, 18))
        def st1(k):
            r, tb = RECR+4*k+3, TB+4*(k % 4)
            a(f"""v_cmp_lt_u32_sdwa {sr(P[k%3][0],2)}, v{r}, v{tb} src0_sel:DWORD src1_sel:WORD_1
            v_cmp_lt_u32_sdwa {sr(P[k%3][1],2)}, v{r}, v{tb} src0_sel:DWORD src1_sel:WORD_0""")
        def st2(k):
            r, m, tb = RECR+4*k+3, RECR+4*k+2, TB+4*(k % 4)
            a(f"""v_cndmask_b32 v{tb+3}, v{tb+3}, v{tb+2}, {sr(P[k%3][0],2)}
            v_cndmask_b32 v{tb+3}, v{tb+3}, v{tb+1}, {sr(P[k%3][1],2)}
            v_and_b32 v{m}, {OPT.get('imask', 0x3fff)}, v{m}
            v_add_lshl_u32 v{tb+3}, v{tb+3}, v{r}, 2
            v_lshlrev_b32 v{tb}, 1, v{tb+3}""")
        st1(ks[0])
        for i, k in enumerate(ks):
            if i + 1 < len(ks): st1(ks[i+1])
            st2(k)
        for k in ks:
            tb = TB+4*(k % 4)
            a(f"""s_mov_b64 exec, {sr(MASK+2*k,2)}
            ds_write_b32 v{tb+3}, v{RECR+4*k+2} offset:{L_IDX}
            ds_write_b64 v{tb}, {vr(RECR+4*k,2)} offset:{L_EA}""")
    def sc2():
        for k2 in range(8, 12):
            a(f"""s_mov_b64 exec, {sr(MASK+2*k2,2)}
            v_lshrrev_b32 v{RK+k2-8}, 14, v{RECR+4*k2+2}
            ds_read_b128 {vr(TB+4*(k2-8),4)}, v{RK+k2-8} offset:{L_TBL}""")
        a("s_mov_b64 exec, -1\ns_waitcnt lgkmcnt(0)")
        scatter(list(range(8, 12)))
    tbrd(range(4))
    a(f"""s_lshr_b32 s29, s29, 6
    s_lshl_b32 s29, s29, 1
    s_lshr_b32 s41, s41, 5
    s_max_u32 s41, s41, s{S_CUT}
    s_sub_u32 s41, s41, s{S_CUT}
    s_and_b32 s41, s41, -2
    s_cmp_eq_u32 s{S_SAFE}, 0
    s_cselect_b32 s29, s29, 0
    s_cselect_b32 s41, s41, 0
    s_add_u32 s30, s29, 3
    s_lshr_b32 s30, s30, 2
    s_sub_u32 s31, s{S_CUT}, s29
    s_add_u32 s31, s31, 1
    s_lshr_b32 s31, s31, 1
    s_add_u32 s31, s31, s30
    s_add_u32 s40, s41, 3
    s_lshr_b32 s40, s40, 2
    s_add_u32 s40, s40, s31
    s_min_u32 s98, s{S_CUT}, s96
    s_sub_u32 s99, s96, s98
    s_cmp_eq_u32 s{S_GRP}, 0
    s_cselect_b32 s{S_N}, s98, s99
    s_cselect_b32 s{S_T0}, 0, s{S_CUT}
    s_cselect_b32 s{S_NO}, s29, s41
    s_cselect_b32 s53, 0, s31
    s_add_u32 s41, s41, s{S_CUT}
    s_lshl_b32 s30, s30, 1
    s_sub_u32 s30, s30, s29
    s_lshl_b32 s31, s31, 2
    s_sub_u32 s31, s31, s{S_CUT}
    s_lshl_b32 s40, s40, 1
    s_sub_u32 s40, s40, s41
    s_waitcnt lgkmcnt(0)""")
    scatter(list(range(4)))
    tbrd(range(4, 8))
    a(f"""v_cmp_eq_u32 vcc, 0, v{R3}
    s_cmp_ge_u32 s3, 3
    s_cbranch_scc1 L2_pad
    v_add_u32 v55, s3, v{C_}
    v_cndmask_b32 v59, v{I3}, v{I2}, vcc
    v_cmp_lt_u32 vcc, v55, v{PC}
    s_lshr_b32 s96, s{S_SAFE}, 1
    s_add_u32 s96, s96, {N}
    s_and_b64 exec, exec, vcc
    v_mov_b32 v60, s96
    v_add_lshl_u32 v55, v55, v59, 2
    ds_write_b32 v55, v60 offset:{L_IDX}
    s_mov_b64 exec, -1
    L2_pad:""")
    for r in (PC, O1, O2, I1, I2, I3): a(f"v_lshrrev_b32 v{r}, 2, v{r}")
    QA_, ONE, NC1, Q, T, U, V = 48, 49, 50, 54, 55, 59, 60
    a(f"""v_mul_u32_u24 v{QA_}, {BTS}, v{L}
    v_add_u32 v{QA_}, {L_BT}, v{QA_}
    v_mov_b32 v{ONE}, 0x3f80
    v_subrev_u32 v{NC1}, {17*16}, v{L16}
    v_mov_b32 v61, s30
    v_mov_b32 v62, s40
    s_mov_b32 s97, s3
    L2_q:
    v_cmp_lt_u32 s[94:95], s97, v{O2}
    v_cmp_lt_u32 s[98:99], s97, v{O1}
    v_cmp_lt_u32 vcc, s97, v{PC}
    v_cndmask_b32 v{Q}, v{I3}, v{I2}, s[94:95]
    s_and_b64 exec, exec, vcc
    s_cbranch_execz L2_qd
    v_cndmask_b32 v{Q}, v{Q}, v{I1}, s[98:99]
    v_add_u32 v{Q}, s97, v{Q}
    v_lshrrev_b32 v{T}, 3, v{Q}
    v_lshlrev_b32 v{U}, 2, v{Q}
    ds_write_b32 v{U}, v{QA_} offset:{L_QA}
    v_cmp_le_u32 vcc, s{S_CUT}, v{T}
    v_cmp_gt_u32 s[94:95], s29, v{T}
    v_cmp_gt_u32 s[98:99], s41, v{T}
    v_and_b32 v{V}, 4, v{Q}
    v_cndmask_b32 v{U}, v{L16}, v{NC1}, vcc
    v_lshl_add_u32 v{U}, v{V}, 7, v{U}
    v_and_b32 v{V}, 2, v{Q}
    v_add_u32 v{U}, v{U}, v{V}
    s_and_b64 s[98:99], s[98:99], vcc
    s_or_b64 s[94:95], s[94:95], s[98:99]
    v_cndmask_b32 v{V}, v61, v62, vcc
    v_add_u32 v{V}, v{V}, v{T}
    v_and_b32 v{Q}, 1, v{Q}
    v_lshl_or_b32 v{Q}, v{V}, 1, v{Q}
    v_mov_b32 v{V}, s31
    v_cndmask_b32 v{V}, 0, v{V}, vcc
    v_add_u32 v{V}, v{V}, v{T}
    v_cndmask_b32 v{Q}, v{Q}, v{V}, s[94:95]
    v_and_b32 v{V}, -4, v{Q}
    v_lshl_add_u32 v{U}, v{V}, 8, v{U}
    v_and_b32 v{V}, 3, v{Q}
    v_lshl_add_u32 v{U}, v{V}, 2, v{U}
    ds_write_b16 v{U}, v{ONE} offset:{L_P}
    s_add_u32 s97, s97, 8
    s_branch L2_q
    L2_qd:
    s_mov_b64 exec, -1
    s_waitcnt lgkmcnt(0)""")
    scatter(list(range(4, 8)))
    a(f"s_cmp_lg_u32 s{S_R2}, 0\ns_cbranch_scc1 L2_x4")
    cold(a, "L2_x4", sc2)
    a(f"""s_mov_b64 exec, -1
    s_lshl_b32 s96, s{S_T0}, 7
    s_add_u32 s96, s96, {L_IDX-256}
    v_lshrrev_b32 v54, 3, v{L}
    v_lshl_add_u32 v{IB}, v54, 2, s96
    s_lshl_b32 s96, s{S_T0}, 8
    s_add_u32 s96, s96, {L_EA-512}
    v_add_u32 v{EB}, s96, v{ESIG}
    s_lshl_b32 s96, s{S_T0}, 5
    s_add_u32 s96, s96, {L_QA-64}
    v_add_u32 v{QB}, s96, v{QOFF}
    s_lshl_b32 s96, s53, 10
    s_add_u32 s96, s96, {L_P-1024}
    v_add_u32 v{PB}, s96, v{L16}""")
    for j in range(8): a(f"v_mov_b32 v{HQ0+j}, 0")
    for j in range(4): a(f"v_mov_b32 v{PP+j}, 0\nv_mov_b32 v{EE+2*j+1}, v{IP+2*j+1}")
    a(f"""s_mov_b32 s38, {AROWS}
    L2_b2:
    v_mov_b32 v53, 0
    s_waitcnt vmcnt(0) lgkmcnt(0)
    s_barrier
    ds_read_b64 v[54:55], v53 offset:{L_MISC+8}""")
    stamp(a, 7, ST)
    def prime01():
        rd_idx(a, 2)
        for u in range(4): a(f"ds_read_b32 v{EE+2*u}, v{IB} offset:{128*3+32*u}")
        a("s_waitcnt lgkmcnt(4)"); dma(a, 0)
        rd_idx(a, 4)
        a(f"s_add_u32 m0, s{S_STG}, 4096\ns_waitcnt lgkmcnt(4)")
        for u in range(4):
            a(f"buffer_load_dwordx4 {vr(EE+2*u,2)}, s[36:39], 0 idxen offen lds")
            if u < 3: a("s_add_u32 m0, m0, 1024")
    prime01()
    a(f"""ds_read_b32 v{QV[0]}, v{QB} offset:64
    ds_read_b32 v{QV[1]}, v{QB} offset:96
    ds_read2st64_b32 {vr(A2[0]+2,2)}, v{EB} offset0:2 offset1:2
    v_readfirstlane_b32 s96, v54
    v_readfirstlane_b32 s97, v55
    s_cmp_eq_u32 s{S_SAFE}, 2
    s_cselect_b32 s96, 0, s96
    s_or_b32 s98, s96, s97
    s_cbranch_scc1 L2_again
    s_cmp_eq_u32 s{S_N}, 0
    s_cbranch_scc1 L2_done
    s_waitcnt lgkmcnt(0)
    v_add_u32 v{QV[0]}, v{QV[0]}, v{QST}
    v_add_u32 v{QV[1]}, v{QV[1]}, v{QST}
    s_waitcnt vmcnt(4)""")
    rd_rows(a, 0)
    a(f"ds_read_b64_tr_b16 {vr(B2R[0],2)}, v{QV[0]}\ns_waitcnt lgkmcnt(0)")
    for m in tmf(D0, ALO, A2[0], B2R[0]): a(m)
    dma(a, 0); rd_idx(a, 5)
    group(a, 1)
    stamp(a, 8, ST)
    if OPT.get("stamp"): a(f"v_writelane_b32 v{ST}, s{S_N}, 30")
    a(f"s_cmp_eq_u32 s{S_SAFE}, 2\ns_cbranch_scc1 L2_loopS\ns_cmp_eq_u32 s{S_NO}, 0\ns_cbranch_scc1 L2_loopF")
    main_loops(a)
    def again(tgt):
        a(f"""s_cmp_lg_u32 s96, 0
        s_cselect_b32 s{S_SAFE}, 2, s{S_SAFE}
        s_cmp_lg_u32 s97, 0
        s_cselect_b32 s{S_SLOW}, 1, s{S_SLOW}
        s_cselect_b32 s{S_LIM}, {LPS}, s{S_LIM}
        s_cselect_b32 s{S_IMASK}, 3, s{S_IMASK}
        s_waitcnt vmcnt(0) lgkmcnt(0)
        s_barrier
        s_branch {tgt}""")
    def more(tgt, done):
        a(f"""s_cmp_eq_u32 s{S_SLOW}, 0
        s_cbranch_scc1 {done}
        s_add_u32 s{S_BETA}, s{S_BETA}, 1
        s_lshr_b32 s{S_BASE}, s{S_BETA}, 1
        s_lshl_b32 s{S_BASE}, s{S_BASE}, {LSH}
        s_xor_b32 s{S_IMASK}, s{S_IMASK}, 15
        s_cmp_ge_u32 s{S_BASE}, s{S_MAXC}
        s_cbranch_scc1 {done}
        s_barrier
        s_branch {tgt}""")
    keep = a.L; a.L = []
    a(f"""L2_ovf:
    ds_write_b32 v63, v{VONE} offset:{L_MISC+12}
    v_mov_b32 v{IB}, 0
    v_mov_b32 v{EB}, 0
    v_mov_b32 v{QB}, 0
    s_mov_b32 s38, 0""")
    for j in range(4): a(f"v_mov_b32 v{EE+2*j+1}, 0")
    a("s_branch L2_b2\nL2_again:")
    again("L2_batch")
    a.cold += a.L; a.L = keep
    a(f"""L2_end_odd:
    ds_read_b128 {vr(PP,4)}, v{PB}
    s_waitcnt lgkmcnt(0)""")
    a(mfma(S0, HQ0, PP, S0))
    a("L2_end_even:")
    a(mfma(S1, HQ1, PP, S1))
    a("L2_done:\ns_waitcnt vmcnt(0)")
    more("L2_batch", "L2_epi")
    a("L2_epi:")
    stamp(a, 9, ST)
    for u in range(8):
        a(f"""v_xor_b32 v{32+u}, {16*u}, v{SWA}
        v_cvt_pk_bf16_f32 v{16+2*u}, v{S0+4*u}, v{S0+4*u+1}
        v_cvt_pk_bf16_f32 v{17+2*u}, v{S0+4*u+2}, v{S0+4*u+3}
        ds_write_b64 v{32+u}, {vr(16+2*u,2)}""")
    a("s_waitcnt lgkmcnt(0)\ns_barrier\ns_branch L2_fin")

    XR, WR, DX, DY = 0, 64, 128, 144
    HL, MB, DEG, BIA, T1, JK = 160, 162, 163, 164, 166, 167
    a(f"L2_H:\nv_mov_b32 v{HL}, v{LANE}")
    L = HL
    a(f"""v_mov_b32 v{DEG}, 0
    v_lshrrev_b32 v3, 4, v{L}
    v_and_b32 v4, 15, v{L}
    v_xor_b32 v6, v3, v4
    v_lshlrev_b32 v6, 4, v6
    v_lshl_or_b32 v6, v3, 8, v6
    v_xor_b32 v7, 64, v6
    v_xor_b32 v8, 128, v6
    v_xor_b32 v9, 192, v6
    s_lshl_b32 s97, s{S_CG}, 12
    s_add_u32 m0, s97, {L_BT}
    s_lshl_b32 s96, s{S_NEG}, 8
    s_add_u32 s96, s96, s97
    v_and_b32 v12, 31, v{L}
    v_lshlrev_b32 v13, 3, v12
    v_mov_b32 v14, 0
    s_waitcnt lgkmcnt(0)""")
    srd(a, 40, X, None, N*256)
    for q in range(4):
        a(f"buffer_load_dwordx4 v{6+q}, s[40:43], s96 offen lds")
        if q < 3: a("s_add_u32 m0, m0, 1024\ns_add_u32 s96, s96, 1024")
    def wload(base, q0=0, q1=16):
        srd(a, 44, WS, base, 65536)
        a(f"s_lshl_b32 s96, s{S_CG}, 14\ns_add_u32 s96, s96, {4096*(q0//4)}")
        for q in range(q0, q1):
            if q % 4 == 0 and q > q0: a("s_add_u32 s96, s96, 4096")
            a(f"buffer_load_dwordx4 {vr(WR+4*q,4)}, v{L16}, s[44:47], s96 offen offset:{1024*(q%4)}")
            if base == W2OP and OPT.get("w2p", 1): a("s_waitcnt vmcnt(0)")
    W0 = OPT.get('w0', 0)
    srd(a, 44, WS, BIAS, 1024); srd(a, 28, WS, MAXA, 196*4); srd(a, 32, WS, MAXE, (CH*4+15)//16*16); srd(a, 36, WS, MAXW_G, 4)
    a(f"""s_lshl_b32 s96, s{S_CG}, 8
    buffer_load_dwordx2 {vr(BIA,2)}, v13, s[44:47], s96 offen
    buffer_load_dwordx4 v[128:131], v{L16}, s[28:31], 0 offen
    buffer_load_dwordx4 v[132:135], v{L16}, s[32:35], 0 offen
    buffer_load_dword v136, v14, s[36:39], 0 offen""")
    if W0: wload(W1BOP, 0, W0)
    a(f"""L2_hb:
    s_lshl_b32 s96, s{S_CG}, 10
    v_add_u32 v144, s96, v{L16}""")
    for j in range(4): a(f"v_mov_b32 v{148+j}, -1\nv_mov_b32 v{152+j}, 0")
    for i in range(NZ//256): a(f"ds_write_b128 v144, v[152:155] offset:{L_CNT + 4096*i}")
    for i in range(2): a(f"ds_write_b128 v144, v[148:151] offset:{L_IDX + 4096*i}")
    for j in range(4): a(f"v_mov_b32 v{156+j}, {L_NULL}")
    a(f"""v_cmp_gt_u32 vcc, {16*(NZ % 256)}, v144
    s_and_b64 exec, exec, vcc
    ds_write_b128 v144, v[152:155] offset:{L_CNT + 4096*(NZ//256)}
    s_mov_b64 exec, -1
    v_cmp_gt_u32 vcc, 2048, v144
    s_and_b64 exec, exec, vcc
    ds_write_b128 v144, v[156:159] offset:{L_QA}
    s_mov_b64 exec, -1
    s_cmp_eq_u32 s{S_FIRST}, 0
    s_cbranch_scc1 L2_hn""")
    WA = max(W0, OPT.get("wa", 0)); WB = OPT.get("wb", 8)
    a(f"s_setprio {OPT.get('hp', 3)}")
    if OPT.get("gfirst2", 1):
        a(f"s_waitcnt vmcnt({W0})")
        a("""v_mov_b32 v140, 1
        v_mov_b32 v141, 0
        v_max3_u32 v128, v128, v129, v130
        v_max3_u32 v132, v132, v133, v134
        v_max_u32 v128, v128, v131
        v_max_u32 v132, v132, v135""")
        dpp_red(a, "v_max_u32", [128, 132])
        a(f"""v_mul_f32 v136, v136, v132
        v_sqrt_f32 v136, v136
        v_mov_b32 v142, {f2u(28.0)}
        v_add_f32 v136, v128, v136
        v_mov_b32 v143, {f2u(8.0)}
        v_cmp_nlt_f32 vcc, v136, v142
        v_cmp_nlt_f32 s[94:95], v136, v143
        v_cndmask_b32 v142, 0, v140, vcc
        v_cndmask_b32 v143, 0, v140, s[94:95]
        v_cmp_gt_f32 vcc, {f2u(1/64)}, v136
        v_add_u32 v136, v142, v143
        v_cndmask_b32_e64 v136, v136, 2, vcc""")
    if WA > W0: wload(W1BOP, W0, WA)
    PE, PEL = OPT.get("pe", 0), OPT.get("pel", 40)
    if PE:
        srd(a, 28, WS, None, N*512)
        a(f"""s_lshr_b32 s96, s2, 3
        s_lshl_b32 s96, s96, 2
        s_add_u32 s96, s96, s{S_CG}
        s_mul_i32 s96, s96, {128*PEL*PE}
        s_add_u32 s96, s96, {128*256*OPT["pfl"]*OPT.get("pl", 1)}
        v_lshlrev_b32 v142, 7, v{L}
        s_mov_b32 exec_hi, {(1 << (PEL - 32)) - 1}""")
        for q in range(PE): a(f"buffer_load_dword v{JK}, v142, s[28:31], s96 offen\ns_add_u32 s96, s96, {128*PEL}")
        a("s_mov_b32 exec_hi, -1")
    a(f"""v_and_b32 v137, 31, v{L}
    v_lshrrev_b32 v138, 5, v{L}
    v_and_b32 v139, 15, v{L}
    v_xor_b32 v139, v139, v138
    v_lshlrev_b32 v139, 4, v139
    v_lshl_add_u32 v139, v137, 8, v139
    v_add_u32 v139, {L_BT}, v139
    s_lshl_b32 s96, s{S_CG}, 7
    s_add_u32 s96, s96, {L_BT}
    v_lshl_add_u32 v{T1}, v137, 2, s96
    v_mul_u32_u24 v138, {4*BTS}, v138
    v_add_u32 v{T1}, v{T1}, v138
    s_waitcnt vmcnt({WA+PE}) lgkmcnt(0)
    s_barrier""")
    for s in range(8):
        a(f"ds_read_b128 {vr(XR+4*s,4)}, v139\nds_read_b128 {vr(XR+32+4*s,4)}, v139 offset:8192")
        if s < 7: a(f"v_xor_b32 v139, {32*(s ^ (s+1))}, v139")
    if not OPT.get("gfirst2", 1):
        a("""v_mov_b32 v140, 1
        v_mov_b32 v141, 0
        v_max3_u32 v128, v128, v129, v130
        v_max3_u32 v132, v132, v133, v134
        v_max_u32 v128, v128, v131
        v_max_u32 v132, v132, v135""")
        dpp_red(a, "v_max_u32", [128, 132])
        a(f"""v_mul_f32 v136, v136, v132
        v_sqrt_f32 v136, v136
        v_mov_b32 v142, {f2u(28.0)}
        v_add_f32 v136, v128, v136
        v_mov_b32 v143, {f2u(8.0)}
        v_cmp_nlt_f32 vcc, v136, v142
        v_cmp_nlt_f32 s[94:95], v136, v143
        v_cndmask_b32 v142, 0, v140, vcc
        v_cndmask_b32 v143, 0, v140, s[94:95]
        v_cmp_gt_f32 vcc, {f2u(1/64)}, v136
        v_add_u32 v136, v142, v143
        v_cndmask_b32_e64 v136, v136, 2, vcc""")
    lane63(a); a(f"ds_write_b32 v141, v136 offset:{L_MISC}"); full(a)
    if WB > WA: wload(W1BOP, WA, WB)
    srd(a, 28, WS, None, N*512)
    PL = OPT["pfl"]
    a(f"""s_lshr_b32 s96, s2, 3
    s_lshl_b32 s96, s96, 2
    s_add_u32 s96, s96, s{S_CG}
    s_mul_i32 s96, s96, {256*PL}
    v_lshlrev_b32 v142, 7, v{L}
    s_waitcnt lgkmcnt(0)
    s_barrier
    ds_read_b64 v[128:129], v141 offset:{L_MISC}
    s_mov_b32 s97, s96""")
    WC = max(WA, WB)
    if WC < 16: wload(W1BOP, WC, 16)
    a(f"""s_mov_b32 s96, s97
    s_mov_b32 exec_hi, {(1 << (PL - 32)) - 1}
    buffer_load_dword v{JK}, v142, s[28:31], s96 offen
    s_add_u32 s96, s96, {128*PL}
    buffer_load_dword v{JK}, v142, s[28:31], s96 offen
    s_mov_b32 exec_hi, -1
    s_mov_b32 s94, {NLOG2E}
    s_mov_b32 s{S_FIRST}, 0
    v_mov_b32 v{MB}, 1.0
    s_waitcnt vmcnt({2 + 16 - max(WC, 8)}) lgkmcnt(0)
    v_readfirstlane_b32 s{S_SAFE}, v128
    v_readfirstlane_b32 s{S_MAXC}, v129""")
    def epi(d0, d1, mt, j):
        return [f"v_fma_f32 v{d0+j}, v{d0+j}, s94, v{BIA}", f"v_fma_f32 v{d1+j}, v{d1+j}, s94, v{BIA+1}",
                f"v_max3_f32 v{MB}, |v{d0+j}|, |v{d1+j}|, v{MB}", f"v_cvt_pk_bf16_f32 v{d0+j}, v{d0+j}, v{d1+j}",
                f"ds_write_b32 v{T1}, v{d0+j} offset:{(32*mt + 8*(j//4) + j % 4)*BTS}"]
    for s in range(8): a(mfma(DX, XR+4*s, WR+4*s, None if s == 0 else DX))
    a("s_waitcnt vmcnt(2)")
    for s in range(8): a(mfma(DY, XR+4*s, WR+32+4*s, None if s == 0 else DY))
    E0 = [x for j in range(16) for x in epi(DX, DY, 0, j)]
    for s in range(16):
        d = XR + 16*(s//8)
        a(mfma(d, XR+32+4*(s % 8), WR+32*(s//8)+4*(s % 8), None if s % 8 == 0 else d))
        if s >= 3: a("\n".join(E0[:7])); E0 = E0[7:]
    assert not E0
    for j in range(9):
        if j == 8: a("s_mov_b32 exec_hi, 0")
        a("\n".join(epi(XR, XR+16, 1, j)))
    a(f"""v_mov_b32 v40, 0
    ds_write_b32 v{T1}, v40 offset:{NPB*BTS}
    s_mov_b64 exec, -1
    v_mov_b32 v40, 0
    v_mov_b32 v41, 1
    v_cmp_neq_f32 vcc, 1.0, v{MB}
    s_cmp_eq_u64 vcc, 0
    s_cbranch_scc1 L2_hx
    ds_write_b32 v40, v41 offset:{L_MISC+8}
    L2_hx:""")
    a(f"""    s_branch L2_h2
    L2_hn:
    s_waitcnt lgkmcnt(0)
    s_barrier
    s_barrier
    L2_h2:
    v_mov_b32 v0, 0
    s_waitcnt lgkmcnt(0)
    s_barrier
    ds_read_b64 v[2:3], v0 offset:{L_MISC+8}
    ds_read_b32 v4, v{L16} offset:{L_CNT}
    ds_read_b32 v5, v{L16} offset:{L_CNT+1024}
    s_waitcnt lgkmcnt(0)
    v_readfirstlane_b32 s96, v2
    v_readfirstlane_b32 s97, v3
    s_cmp_eq_u32 s{S_SAFE}, 2
    s_cselect_b32 s96, 0, s96
    s_or_b32 s98, s96, s97
    s_cbranch_scc0 L2_h3""")
    again("L2_hb")
    a(f"L2_h3:\nv_add3_u32 v{DEG}, v{DEG}, v4, v5")
    more("L2_hb", "L2_h4")
    RX, RY, OA, SEL = BIA, BIA+1, T1, L16
    a("L2_h4:\ns_setprio 0")
    wload(W2OP)
    srd(a, 48, B2, None, 256)
    a(f"""v_and_b32 v2, 31, v{L}
    v_lshlrev_b32 v2, 1, v2
    s_lshl_b32 s96, s{S_CG}, 6
    buffer_load_ushort v{MB}, v2, s[48:51], s96 offen
    v_cvt_f32_u32 v8, v{DEG}
    v_lshlrev_b32 v9, 2, v{L}
    ds_write_b32 v9, v8 offset:{L_DEG}
    v_and_b32 v2, 31, v{L}
    v_lshrrev_b32 v3, 5, v{L}
    v_bfe_u32 v4, v2, 1, 3
    v_xor_b32 v4, v4, v3
    v_lshlrev_b32 v4, 4, v4
    v_lshl_add_u32 v4, v2, 7, v4
    v_add_u32 v{RX}, {L_STG}, v4
    v_add_u32 v5, 15, v2
    v_and_b32 v5, 31, v5
    v_bfe_u32 v4, v5, 1, 3
    v_xor_b32 v4, v4, v3
    v_lshlrev_b32 v4, 4, v4
    v_lshl_add_u32 v4, v5, 7, v4
    v_add_u32 v{RY}, {L_STG + 32768}, v4
    v_lshlrev_b32 v{DEG}, 4, v3
    v_lshlrev_b32 v{OA}, 10, v3
    v_and_b32 v4, 1, v2
    v_lshl_add_u32 v{OA}, v4, 8, v{OA}
    v_and_b32 v5, 30, v2
    v_lshl_add_u32 v{OA}, v5, 1, v{OA}
    s_lshl_b32 s96, s{S_CG}, 6
    v_add_u32 v{OA}, s96, v{OA}
    v_cmp_eq_u32 vcc, 0, v4
    v_mov_b32 v5, 0x07060302
    v_mov_b32 v6, 0x01000504
    v_cndmask_b32 v{SEL}, v5, v6, vcc
    s_sub_u32 s96, {N}, s{S_NEG}
    s_min_u32 s96, s96, {NPB}
    s_lshl_b32 s96, s96, 8
    s_lshl_b32 s97, s{S_NEG}, 8""")
    srd(a, 52, OUT, "s97", "s96")
    a(f"""s_mov_b32 s94, {NLN2}
    s_mov_b32 s95, 4096
    s_mov_b32 s96, 8192
    s_mov_b32 s97, 12288
    s_waitcnt vmcnt(0)
    v_lshlrev_b32 v{MB}, 16, v{MB}
    v_mul_f32 v{MB}, {NLOG2E}, v{MB}""")
    for k in range(7): a(f"ds_read_b128 {vr(DX+4*k,4)}, v{DEG} offset:{L_DEG + 32*k}")
    a("s_waitcnt lgkmcnt(0)")
    for j in range(25): a(f"v_mul_f32 v{DX+j}, v{DX+j}, v{MB}")
    a(f"s_mov_b32 exec_lo, 0\nv_mov_b32 v{DY+8}, 0\ns_mov_b64 exec, -1")
    for j in range(9, 16): a(f"v_mov_b32 v{DY+j}, 0")
    if OPT.get("stamp"): a(f"v_mov_b32 v{ST}, 0")
    a("s_barrier")
    def rd(reg, s):
        a(f"ds_read_b128 {vr(XR+4*s,4)}, v{reg} offset:{8192*(s//4)}")
        a(f"v_xor_b32 v{reg}, {32*((s % 4) ^ ((s+1) % 4))}, v{reg}")
    def fin(D, js, tmp):
        o = [f"v_mul_f32 v{D+j}, s94, v{D+j}" for j in js]
        o += [f"v_cvt_pk_bf16_f32 v{tmp+j//2}, v{D+j}, v{D+j+1}" for j in js[::2]]
        o += [f"v_mov_b32_dpp v{tmp+8+j//2}, v{tmp+j//2} quad_perm:[1,0,3,2] row_mask:0xf bank_mask:0xf" for j in js[::2]]
        o += [f"v_perm_b32 v{tmp+j//2}, v{tmp+j//2}, v{tmp+8+j//2}, v{SEL}" for j in js[::2]]
        for j in js[::2]:
            off = (8*(j//4) + j % 4)*256 + (0 if D == DX else 8192)
            o.append(f"buffer_store_dword v{tmp+j//2}, v{OA}, s[52:55], {('0', 's95', 's96', 's97')[off//4096]} offen offset:{off % 4096} sc1")
        return o
    AH = 12
    for s in range(AH): rd(RX, s)
    for s in range(16):
        a(f"s_waitcnt lgkmcnt({AH-1})")
        a(mfma(DX, XR+4*s, WR+4*s, DX))
        if s + AH < 16: rd(RX, s+AH)
        else: rd(RY, s+AH-16)
    F0 = fin(DX, list(range(8)), 0)
    for s in range(16):
        a(f"s_waitcnt lgkmcnt({min(AH-1, 15-s)})")
        a(mfma(DY, XR+4*s, WR+4*s, DY))
        if s + AH < 16: rd(RY, s+AH)
        if s >= 6: a("\n".join(F0[:4])); F0 = F0[4:]
    assert not F0
    stamp(a, 10, ST)
    a(f"s_mov_b32 exec_lo, 0\nv_add_f32 v{DX+8}, v{DX+8}, v{DY+8}\ns_mov_b64 exec, -1")
    for j in range(9, 16): a(f"v_add_f32 v{DX+j}, v{DX+j}, v{DY+j}")
    a("\n".join(fin(DX, list(range(8, 16)), 0) + fin(DY, list(range(10)), 16)))
    a("L2_fin:")
    stamp_dump(a, ST, 0, 1)
    a("L2_exit2:\ns_endpgm")
    a.L += a.cold
    a("L2_last:\ns_endpgm")


HEAD = """; edge-featured MPNN.  out = (sum_e silu(A[src]+B[dst]+e@W1c)) @ w2 + deg*b2 with A = x@w1[:128], B = x@w1[128:256]+b1
; @launch kernel=k1_kernel grid=({g1},1,1) block=(512,1,1) lds={l1}
; @launch kernel=k2_kernel grid=({g2},1,1) block=(768,1,1) lds={l2}
.amdgcn_target "amdgcn-amd-amdhsa--gfx950"
.text
"""
KD = """.amdhsa_kernel {name}
  .amdhsa_next_free_vgpr {v}
  .amdhsa_next_free_sgpr 102
  .amdhsa_accum_offset {v}
  .amdhsa_group_segment_fixed_size 0
  .amdhsa_kernarg_size 88
  .amdhsa_user_sgpr_count 2
  .amdhsa_user_sgpr_kernarg_segment_ptr 1
  .amdhsa_system_sgpr_workgroup_id_x 1
.end_amdhsa_kernel
"""


def build():
    out = HEAD.format(g1=K1_GRID, l1=K1_LDS, g2=NB, l2=K2_LDS)
    for name, fn in (("k1_kernel", k1), ("k2_kernel", k2)):
        a = Asm(); fn(a)
        out += f".globl {name}\n.p2align 8\n.type {name},@function\n" + a.text(verbose=OPT.get("v", 0))
    out += '.section .rodata,"a"\n.p2align 6\n' + KD.format(name="k1_kernel", v=128) + ".p2align 6\n" + KD.format(name="k2_kernel", v=168)
    return out


if __name__ == "__main__":
    open(sys.argv[1], "w").write(build())
```
